```python
import torch

def _softmax(x, axis=-1):
    return torch.softmax(x, dim=axis)
def _gelu(x):
    return torch.nn.functional.gelu(x, approximate="tanh")
def _silu(x):
    return torch.nn.functional.silu(x)
def _sigmoid(x):
    return torch.sigmoid(x)
def _layernorm(x, axis=-1, eps=1e-5):
    m = x.mean(dim=axis, keepdim=True)
    v = x.var(dim=axis, keepdim=True, unbiased=False)
    return (x - m) / torch.sqrt(v + eps)
def _scatter_add(tgt, idx, src, axis=0):
    return tgt.clone().index_add_(axis, idx, src)
def _segment_sum(src, seg, n):
    out = torch.zeros((n,) + src.shape[1:], dtype=src.dtype)
    return out.index_add_(0, seg, src)
def _pad(x, pw):
    flat = tuple(v for pair in reversed(pw) for v in pair)
    return torch.nn.functional.pad(x, flat)

kernel_name = 'concat_heads__mha_block_cached__sliding_block_cached__decode'

def setup_inputs():

    _w = (lambda a: (lambda t: t.to(torch.bfloat16) if t.is_floating_point() else t)(torch.as_tensor(a)))
    def _A_setup():
        B, Sq, D = 4, 1, 448
        H, Sk, Dh = 16, 4096, 256
        return {
            "x": _w((lambda *s: torch.randn(*s, dtype=torch.bfloat16) * 0.8)(B, Sq, D)),
            "k_cache": _w((lambda *s: torch.randn(*s, dtype=torch.bfloat16) * 1.6)(B, H, Sk, Dh)),
            "v_cache": _w((lambda *s: torch.randn(*s, dtype=torch.bfloat16) * 0.2)(B, H, Sk, Dh)),
            "wq": _w((lambda *s: torch.randn(*s, dtype=torch.bfloat16) * 1.6)(D, H * Dh) * (D ** -0.5)),
            "wo": _w((lambda *s: torch.randn(*s, dtype=torch.bfloat16) * 0.2)(H * Dh, D) * ((H * Dh) ** -0.5)),
        }
    _A_in = _A_setup()

    def _B_setup():
        B, Sq, D = 4, 1, 448
        Hq, Hkv, Sk, Dh = 16, 8, 4096, 256
        assert Hq % Hkv == 0, (Hq, Hkv)
        return {
            "x": _w((lambda *s: torch.randn(*s, dtype=torch.bfloat16) * 0.8)(B, Sq, D)),
            "k_cache": _w((lambda *s: torch.randn(*s, dtype=torch.bfloat16) * 1.6)(B, Hkv, Sk, Dh)),
            "v_cache": _w((lambda *s: torch.randn(*s, dtype=torch.bfloat16) * 0.2)(B, Hkv, Sk, Dh)),
            "wq": _w((lambda *s: torch.randn(*s, dtype=torch.bfloat16) * 1.6)(D, Hq * Dh) * (D ** -0.5)),
            "wo": _w((lambda *s: torch.randn(*s, dtype=torch.bfloat16) * 0.2)(Hq * Dh, D) * ((Hq * Dh) ** -0.5)),
        }
    _B_in = _B_setup()

    return {
        "A_x": _A_in["x"],
        "A_k_cache": _A_in["k_cache"],
        "A_v_cache": _A_in["v_cache"],
        "A_wq": _A_in["wq"],
        "A_wo": _A_in["wo"],
        "B_x": _B_in["x"],
        "B_k_cache": _B_in["k_cache"],
        "B_v_cache": _B_in["v_cache"],
        "B_wq": _B_in["wq"],
        "B_wo": _B_in["wo"],
    }

def reference(A_x, A_k_cache, A_v_cache, A_wq, A_wo, B_x, B_k_cache, B_v_cache, B_wq, B_wo):
    def _A_ref(x, k_cache, v_cache, wq, wo):
        B, Sq, D = x.shape
        H, Dh = 16, 256
        q = (lambda x, *d: x.permute(*d))((x @ wq).reshape(B, Sq, H, Dh), 0, 2, 1, 3)
        scores = torch.einsum("bhqd,bhkd->bhqk", q, k_cache) * (Dh ** -0.5)
        p = _softmax(scores, axis=-1)
        o = torch.einsum("bhqk,bhkd->bhqd", p, v_cache)
        return (lambda x, *d: x.permute(*d))(o, 0, 2, 1, 3).reshape(B, Sq, H * Dh) @ wo

    def _B_ref(x, k_cache, v_cache, wq, wo):
        B, Sq, D = x.shape
        Hq, Dh = 16, 256
        Hkv, Sk = k_cache.shape[1], k_cache.shape[2]
        W = min(4096, max(256, Sk // 4))
        rep = Hq // Hkv
        q = (lambda x, *d: x.permute(*d))((x @ wq).reshape(B, Sq, Hq, Dh), 0, 2, 1, 3)
        k = (lambda x, n, axis: torch.repeat_interleave(x, n, dim=axis))(k_cache[:, :, Sk - W:, :], rep, axis=1)
        v = (lambda x, n, axis: torch.repeat_interleave(x, n, dim=axis))(v_cache[:, :, Sk - W:, :], rep, axis=1)
        scores = torch.einsum("bhqd,bhkd->bhqk", q, k) * (Dh ** -0.5)
        p = _softmax(scores, axis=-1)
        o = torch.einsum("bhqk,bhkd->bhqd", p, v)
        return (lambda x, *d: x.permute(*d))(o, 0, 2, 1, 3).reshape(B, Sq, Hq * Dh) @ wo

    a = _A_ref(A_x, A_k_cache, A_v_cache, A_wq, A_wo)
    b = _B_ref(B_x, B_k_cache, B_v_cache, B_wq, B_wo)
    return torch.concatenate([a, b], axis=-1)
```

```python
import re

TRANS = ("v_exp_f32", "v_log_f32", "v_rcp_f32", "v_rsq_f32", "v_sqrt_f32", "v_sin_f32", "v_cos_f32")

def regs_of(tok):
    tok = tok.strip()
    tok = tok.lstrip("-|").rstrip("|")
    if tok.startswith("abs("): tok = tok[4:-1]
    m = re.fullmatch(r"([vsa])(\d+)", tok)
    if m: return [(m.group(1), int(m.group(2)))]
    m = re.fullmatch(r"([vsa])\[(\d+):(\d+)\]", tok)
    if m: return [(m.group(1), i) for i in range(int(m.group(2)), int(m.group(3)) + 1)]
    if tok in ("vcc", "vcc_lo", "vcc_hi"): return [("s", "vcc")]
    if tok in ("exec", "exec_lo", "exec_hi"): return [("s", "exec")]
    if tok == "m0": return [("s", "m0")]
    return []

class Ins:
    def __init__(self, text):
        self.text = text
        t = text.split(";")[0].strip()
        self.label = t.endswith(":")
        self.directive = t.startswith(".")
        self.op = ""
        self.rd = set(); self.wr = set(); self.srcc = set(); self.srcab = set()
        self.kind = "none"
        if self.label or self.directive or not t: return
        parts = t.split(None, 1)
        op = self.op = parts[0]
        rest = parts[1] if len(parts) > 1 else ""
        ops = []; depth = 0; cur = ""
        for ch in rest:
            if ch == "[": depth += 1
            if ch == "]": depth -= 1
            if ch == "," and depth == 0: ops.append(cur); cur = ""
            else: cur += ch
        ops.append(cur)
        last = ops[-1].strip().split()
        self.mods = last[1:] if last else []
        ops[-1] = last[0] if last else ""
        ops = [o.strip() for o in ops]
        R = [regs_of(o) for o in ops]
        self.dpp = op.endswith("_dpp")
        base = re.sub(r"_(e32|e64|dpp)$", "", op)
        self.base = base
        if op.startswith("v_mfma"):
            self.kind = "mfma"; self.wr = set(R[0]); self.srcab = set(R[1]) | set(R[2]); self.srcc = set(R[3])
            self.rd = self.srcab | self.srcc
            self.passes = 8 if "32x32" in op else 4
        elif op.startswith("v_"):
            self.kind = "valu"
            if base.startswith("v_cmp"):
                self.wr = set(R[0]); self.rd = set(sum(R[1:], []))
            elif base.startswith("v_permlane") :
                self.wr = set(R[0]) | set(R[1]); self.rd = set(self.wr)
            elif base in ("v_add_co_u32", "v_sub_co_u32", "v_addc_co_u32"):
                self.wr = set(R[0]) | set(R[1]); self.rd = set(sum(R[2:], []))
            else:
                self.wr = set(R[0]); self.rd = set(sum(R[1:], []))
                if base.startswith("v_fmac") or base.startswith("v_dot2c") or self.dpp or base == "v_writelane_b32":
                    self.rd |= set(R[0])
            if base.startswith("v_dot2"):
                self.srcab = set(R[1]) | set(R[2])
        elif op.startswith("buffer_") or op.startswith("global_"):
            self.kind = "vmem"
            lds = "lds" in self.mods
            self.ldsdma = lds
            if op in ("buffer_wbl2", "buffer_inv"):
                pass
            elif "load" in op and not lds:
                self.wr = set(R[0]); self.rd = set(sum(R[1:], []))
            elif "atomic" in op and "sc0" in self.mods:
                self.wr = set(R[0]); self.rd = set(sum(R, [])) if op.startswith("buffer") else set(sum(R[1:], []))
            else:
                self.rd = set(sum(R, []))
                if lds: self.rd.add(("s", "m0"))
            self.wide_store_data = set()
            if "store" in op and ("x3" in op or "x4" in op):
                self.wide_store_data = set(R[0] if op.startswith("buffer") else R[1])
        elif op.startswith("ds_"):
            self.kind = "ds"
            if "read" in op or "permute" in op or "swizzle" in op or "rtn" in op:
                self.wr = set(R[0]); self.rd = set(sum(R[1:], []))
            else:
                self.rd = set(sum(R, []))
        elif op.startswith("s_"):
            self.kind = "salu"
            if op.startswith(("s_cmp", "s_cbranch", "s_branch", "s_waitcnt", "s_nop", "s_barrier", "s_endpgm", "s_sleep", "s_setprio", "s_bitcmp")):
                self.rd = set(sum(R, []))
            else:
                self.wr = set(R[0]) if R else set(); self.rd = set(sum(R[1:], []))
                if "saveexec" in op: self.wr.add(("s", "exec"))
    def states(self):
        if self.label or self.directive or not self.op: return 0
        if self.op == "s_nop": return int(self.text.split(";")[0].split()[1], 0) + 1
        return 1

def need(p, c):
    n = 0
    vw = {r for r in p.wr if r[0] in "va"}
    sw = {r for r in p.wr if r[0] == "s"}
    if p.kind == "valu":
        if c.kind == "valu" and c.dpp and (vw & c.rd): n = max(n, 2)
        if c.kind == "valu" and c.base in ("v_readlane_b32", "v_readfirstlane_b32") and (vw & c.rd): n = max(n, 1)
        if c.kind == "valu" and c.base.startswith("v_permlane") and (vw & c.rd): n = max(n, 2)
        if p.base in TRANS and c.kind in ("valu", "mfma") and (vw & c.rd): n = max(n, 1)
        if p.base.startswith("v_dot2"):
            if c.kind in ("valu", "mfma", "vmem", "ds"):
                if c.op == p.op:
                    if vw & c.srcab: n = max(n, 3)
                elif vw & (c.rd | c.wr): n = max(n, 3)
        if c.kind == "mfma" and (vw & c.rd): n = max(n, 2)
        if sw:
            if c.kind == "valu" and (sw & c.rd): n = max(n, 4 if c.base in ("v_readlane_b32", "v_writelane_b32") else 2)
            if c.kind == "vmem" and (sw & c.rd): n = max(n, 5)
            if c.kind == "salu" and (sw & c.rd): n = max(n, 1)
            if c.op.startswith("s_cbranch_vcc") and ("s", "vcc") in sw: n = max(n, 1)
            if ("s", "exec") in sw and c.kind in ("valu", "mfma"): n = max(n, 5)
    if p.kind == "mfma":
        k = {4: (0, 6, 8, 3), 8: (0, 10, 12, 7)}[p.passes]
        if c.kind == "mfma":
            if vw & c.srcab: n = max(n, k[2])
            if vw & c.srcc and not (vw == c.srcc and c.passes == p.passes): n = max(n, k[1])
            if vw & c.wr and not (vw == c.wr and c.passes == p.passes): n = max(n, k[2])
        elif c.kind in ("valu", "vmem", "ds"):
            if vw & (c.rd | c.wr): n = max(n, k[2])
            if c.kind == "valu" and (p.srcc & c.wr): n = max(n, k[3])
    if p.kind == "salu" and ("s", "m0") in p.wr and c.kind == "vmem" and getattr(c, "ldsdma", False): n = max(n, 1)
    if p.kind == "vmem" and p.wide_store_data and (p.wide_store_data & c.wr): n = max(n, 2)
    return n

LOOK = 14
class Asm:
    def __init__(self):
        self.L = []
        self.vm_seq = 0
    def __call__(self, text):
        for line in text.split("\n"):
            line = line.strip()
            if not line: continue
            i = Ins(line)
            self.L.append(i)
            if i.kind == "vmem":
                self.vm_seq += 1
        return self.vm_seq
    def wait_vm(self, op_id, force=False):
        n = self.vm_seq - op_id
        assert n >= 0
        if n > 63: n = 63
        self(f"s_waitcnt vmcnt({n})")
    def pad(self):
        out = []
        for c in self.L:
            if c.op:
                d = 0; req = 0
                for p in reversed(out):
                    if d >= LOOK: break
                    if p.op in ("s_branch", "s_endpgm"): break
                    if p.op:
                        req = max(req, need(p, c) - d)
                    d += p.states()
                if req > 0: out.append(Ins(f"s_nop {req-1}"))
            out.append(c)
        changed = True
        while changed:
            changed = False
            labels = {i.text.split(":")[0].strip(): k for k, i in enumerate(out) if i.label}
            for k, b in enumerate(out):
                if b.op.startswith(("s_cbranch", "s_branch")):
                    tgt = labels[b.text.split(";")[0].split()[1]]
                    req = 0
                    dc = 0
                    for c in out[tgt:]:
                        if dc >= LOOK: break
                        if c.op:
                            d = dc + 1
                            for p in reversed(out[:k]):
                                if d >= LOOK: break
                                if p.op in ("s_branch", "s_endpgm"): break
                                if p.op: req = max(req, need(p, c) - d)
                                d += p.states()
                        if c.op in ("s_branch", "s_endpgm"): break
                        dc += c.states()
                    if req > 0:
                        out.insert(k, Ins(f"s_nop {req-1}")); changed = True; break
        self.L = out
    def text(self):
        return "\n".join((i.text if (i.label or i.directive) else "    " + i.text) for i in self.L) + "\n"
```

```python
import math, sys
from asmlib import Asm

NAME = "concat_heads__mha_block_cached__sliding_block_cached__decode"
HEADER = open("cdna_kernels/" + NAME + ".s.ref").read().split("; Override launch")[0] if __import__("os").path.exists("cdna_kernels/" + NAME + ".s.ref") else ""

WS_QP = 0x0
WS_CNT = 0x40000
WS_PO = 0x48000
REC = 1152
WS_Y = 0x168000
WS_END = WS_Y + 224 * 8192
WS_STAMP = 0x400000
L_WQ = 0
L_WO = 28672
L_PART = 57344
L_ML = L_PART + 12288
LDS_BYTES = L_ML + 128
OOB = 0x40000000
CSCALE = 0x3DB8AA3B
NEGBIG = 0xF149F2CA

def brev4(j): return int(f"{j:04b}"[::-1], 2)

def gen(D=5, RP=48, R=16, ratio=5, p_ack=12, p_poll=24, p_chk=31, DB=None, wo_early=False, stamps=False,
        round_s=False, spin=1 << 18, codepf=True, pol="nt"):
    DB = DB or D
    a = Asm()
    sWG = "s2"; sW = "s3"
    KA, VA, KB, VB, WQ, WO, XS, WS, DBG, OUT = (f"s[{i}:{i+3}]" for i in range(32, 72, 4))
    sX, sR, sH, sB = "s72", "s73", "s74", "s75"
    sOff = "s76"; sCnt = "s77"; sT0 = "s78"; sT1 = "s79"
    sIt = ["s80", "s81", "s82", "s83"]; sNext = "s84"; sLeft = "s85"
    sRec = "s86"; sC = "s87"; sSpin = "s88"; sT2 = "s89"
    sMk1 = "s[90:91]"; sMk0 = "s[92:93]"
    sEx = "s[94:95]"
    vL = "v0"; vKo = "v1"; vM = [f"v{i}" for i in range(2, 6)]
    QA = 6; QB = 14; SP = 30; AOP = 34; ACC = 38
    T = ["v46", "v47"]; U = ["v48", "v49"]; V = ["v50", "v51"]; X = ["v52", "v53"]
    t0, t1, t2, t3 = "v54", "v55", "v56", "v57"
    vm, vl, vg, vn = "v58", "v59", "v60", "v61"
    vPoll = 62
    RING = 64
    def slot(k): return RING + 4 * k
    def vr(i, n=4): return f"v[{i}:{i+n-1}]"
    nst = [0]
    STAMP0 = 4
    stamp_regs = [4, 6, 8, 10, 12, 14, 16, 18, 20, 22, 24, 26]
    def stamp():
        if not stamps: return
        r = stamp_regs[nst[0]]; nst[0] += 1
        a(f"s_memrealtime s[{r}:{r+1}]")
    lab = [0]
    def spin_loop(name, emit_load, emit_check_fail_vcc):
        a(f"s_mov_b32 {sSpin}, {spin}")
        a(f"{name}_retry:")
        a("s_sleep 2")
        emit_load()
        a("s_waitcnt vmcnt(0)")
        emit_check_fail_vcc()
        a(f"s_cbranch_vccz {name}_ok")
        a(f"s_sub_u32 {sSpin}, {sSpin}, 1")
        a(f"s_cmp_lg_u32 {sSpin}, 0")
        a(f"s_cbranch_scc1 {name}_retry")

    a(f"s_cmp_ge_u32 {sWG}, 256")
    a("s_cbranch_scc1 L_end")
    if stamps: a("s_memrealtime s[96:97]")
    a("s_load_dwordx16 s[4:19], s[0:1], 0")
    a("s_load_dwordx8 s[20:27], s[0:1], 64")
    a("s_load_dwordx2 s[28:29], s[0:1], 96")
    if codepf:
        a("s_getpc_b64 s[30:31]")
        a("L_pc:")
        a(f"v_lshlrev_b32 {t0}, 6, v0")
        a(f"v_min_u32 {t0}, L_end-L_pc, {t0}")
        a(f"global_load_dword {t1}, {t0}, s[30:31]")
    a(f"v_lshrrev_b32 {t2}, 6, v0")
    a(f"v_and_b32 {vL}, 63, v0")
    a(f"v_readfirstlane_b32 {sW}, {t2}")
    a(f"v_lshrrev_b32 {vg}, 4, {vL}")
    a(f"v_and_b32 {vn}, 15, {vL}")
    a(f"s_and_b32 {sX}, {sWG}, 7")
    a(f"s_lshr_b32 {sR}, {sWG}, 3")
    a(f"s_lshr_b32 {sT0}, {sR}, 4")
    a(f"s_lshl_b32 {sH}, {sX}, 1")
    a(f"s_add_u32 {sH}, {sH}, {sT0}")
    a(f"s_bfe_u32 {sB}, {sR}, 0x20002")
    a(f"v_lshlrev_b32 {vKo}, 4, {vn}")
    a(f"v_lshl_add_u32 {vKo}, {vg}, 9, {vKo}")
    a(f"v_lshl_add_u32 {vKo}, {t2}, 11, {vKo}")
    a(f"v_lshrrev_b32 {t3}, 3, {vL}")
    a(f"v_lshlrev_b32 {t3}, 13, {t3}")
    a(f"v_and_b32 {t2}, 7, {vL}")
    a(f"v_lshl_add_u32 {t3}, {t2}, 4, {t3}")
    a(f"v_and_b32 {t2}, 3, {vL}")
    a(f"v_mul_u32_u24 {t2}, 896, {t2}")
    a(f"v_lshl_add_u32 {t2}, {vg}, 4, {t2}")
    a(f"s_lshl_b32 s40, {sB}, 4"); a(f"s_add_u32 s40, s40, {sH}"); a("s_lshl_b32 s40, s40, 2")
    a(f"s_and_b32 s41, {sR}, 3"); a("s_add_u32 s40, s40, s41"); a("s_lshl_b32 s40, s40, 19")
    a(f"s_bfe_u32 s44, {sR}, 0x10003")
    a(f"s_and_b32 s45, {sR}, 7"); a(f"s_lshl_b32 s46, {sX}, 3"); a("s_add_u32 s45, s45, s46")
    a(f"s_mul_i32 s46, s44, {224*8192}"); a("s_lshl_b32 s47, s45, 7"); a("s_add_u32 s46, s46, s47")
    a(f"s_mul_i32 s47, {sW}, {7*65536}"); a(f"s_add_u32 {sOff}, s46, s47")
    a(f"s_mul_i32 {sT1}, {sW}, 7168")
    a(f"s_mul_i32 {sT2}, s44, 448")
    a("s_mov_b32 s50, 0x380000"); a("s_mov_b32 s51, 0x20000")
    a("s_mov_b32 s58, 3584"); a("s_mov_b32 s59, 0x20000")
    a("s_mov_b32 s34, 0x80000"); a("s_mov_b32 s35, 0x20000")
    a(f"s_cmp_eq_u32 {sT0}, 0")
    a("s_waitcnt lgkmcnt(0)")
    a("s_cselect_b32 s48, s10, s20"); a("s_cselect_b32 s49, s11, s21")
    a("s_cselect_b32 s56, s4, s14"); a("s_cselect_b32 s57, s5, s15")
    for k in range(7):
        a(f"s_add_u32 m0, {sT1}, {L_WQ + k*1024}")
        if k: a(f"s_add_u32 {sOff}, {sOff}, 65536")
        id_wq = a(f"buffer_load_dwordx4 {t3}, {WQ}, {sOff} offen {pol} lds")
    XOP = slot(41); WOP = slot(34)
    for k in range(7):
        id_x = a(f"buffer_load_dwordx4 {vr(XOP+4*k)}, {t2}, {XS}, {sT2} offen offset:{64*k}")
    a("s_add_u32 s32, s6, s40"); a("s_addc_u32 s33, s7, 0")
    a(f"s_mov_b32 {sOff}, 0")
    ids = {}
    def issueA(n):
        srd = KA if n < 128 else VA
        k = n if n < RP else n % R
        if n == 128: a(f"s_mov_b32 {sOff}, 0")
        ids[n] = a(f"buffer_load_dwordx4 {vr(slot(k))}, {vKo}, {srd}, {sOff} offen offset:{256*(n&1)} {pol}")
        if n & 1: a(f"s_add_u32 {sOff}, {sOff}, 8192")
    for n in range(D): issueA(n)
    a("s_add_u32 s36, s8, s40"); a("s_addc_u32 s37, s9, 0"); a("s_mov_b32 s38, 0x80000"); a("s_mov_b32 s39, 0x20000")
    a("s_mov_b32 s60, s28"); a("s_mov_b32 s61, s29"); a(f"s_mov_b32 s62, {WS_END}"); a("s_mov_b32 s63, 0x20000")
    a("s_mov_b32 s64, s26"); a("s_mov_b32 s65, s27"); a("s_mov_b32 s66, 256"); a("s_mov_b32 s67, 0x20000")
    a("s_mov_b32 s68, s24"); a("s_mov_b32 s69, s25"); a("s_mov_b32 s70, 7168"); a("s_mov_b32 s71, 0x20000")
    a(f"s_cmp_lt_u32 {sWG}, 128")
    a("s_cselect_b32 s52, s12, s22"); a("s_cselect_b32 s53, s13, s23"); a("s_mov_b32 s54, 0x380000"); a("s_mov_b32 s55, 0x20000")
    a(f"s_lshl_b32 {sCnt}, {sT0}, 1"); a(f"s_add_u32 {sCnt}, {sCnt}, s44"); a(f"s_lshl_b32 {sCnt}, {sCnt}, 16")
    a("s_lshl_b32 s46, s45, 8"); a(f"s_add_u32 {sCnt}, {sCnt}, s46")
    a(f"s_lshl_b32 s46, {sW}, 6"); a(f"s_add_u32 {sCnt}, {sCnt}, s46")
    a(f"s_lshl_b32 {sNext}, {sT0}, 7"); a("s_lshl_b32 s46, s45, 1"); a(f"s_add_u32 {sNext}, {sNext}, s46"); a(f"s_add_u32 {sNext}, {sNext}, s44")
    a(f"s_and_b32 s44, {sR}, 7"); a("s_lshl_b32 s44, s44, 1"); a(f"s_add_u32 s44, s44, {sW}"); a("s_add_u32 s44, s44, 16")
    a("s_lshl_b32 s44, s44, 2"); a(f"s_lshr_b32 s45, {sR}, 3"); a("s_add_u32 s44, s44, s45")
    a("s_lshl_b32 s44, s44, 3"); a(f"s_add_u32 s44, s44, {sX}")
    a(f"s_lshl_b32 s45, {sH}, 2"); a(f"s_add_u32 s45, s45, {sB}"); a("s_lshl_b32 s45, s45, 3"); a("s_add_u32 s45, s45, s41")
    a(f"s_cmp_eq_u32 {sW}, 2"); a("s_cselect_b32 s44, s45, s44")
    a(f"s_mul_i32 s44, s44, {REC}"); a(f"s_add_u32 s44, s44, {WS_PO}")
    a(f"s_cmp_eq_u32 {sW}, 3"); a(f"s_cselect_b32 {sRec}, {OOB}, s44")
    a(f"s_lshl_b32 s44, {sR}, 21"); a("s_add_u32 s44, s44, 0x180000")
    a("s_add_u32 s40, s16, s44"); a("s_addc_u32 s41, s17, 0"); a("s_mov_b32 s42, 0x80000"); a("s_mov_b32 s43, 0x20000")
    a("s_add_u32 s44, s18, s44"); a("s_addc_u32 s45, s19, 0"); a("s_mov_b32 s46, 0x80000"); a("s_mov_b32 s47, 0x20000")
    for i in range(4): a(f"v_mov_b32 v{AOP+i}, -1")
    vL16 = t3
    a(f"v_lshlrev_b32 {vL16}, 4, {vL}")
    a(f"s_lshl_b32 {sT0}, {sWG}, 13"); a(f"s_lshl_b32 {sT1}, {sW}, 11"); a(f"s_add_u32 {sT0}, {sT0}, {sT1}"); a(f"s_add_u32 {sT0}, {sT0}, {WS_Y}")
    a(f"buffer_store_dwordx4 {vr(AOP)}, {vL16}, {WS}, {sT0} offen sc1")
    a(f"buffer_store_dwordx4 {vr(AOP)}, {vL16}, {WS}, {sT0} offen offset:1024 sc1")
    a(f"buffer_store_dwordx4 {vr(AOP)}, {vL16}, {WS}, {sRec} offen sc1")
    a("s_mov_b64 exec, 1")
    a(f"buffer_store_dwordx4 {vr(AOP)}, off, {WS}, {sRec} offset:1024 sc1")
    a("s_mov_b64 exec, -1")
    def wo_dma():
        a(f"s_and_b32 {sT0}, {sWG}, 127"); a(f"s_mul_i32 {sT0}, {sT0}, 28672")
        a(f"s_mul_i32 {sT1}, {sW}, 7168"); a(f"s_add_u32 {sT0}, {sT0}, {sT1}")
        a(f"v_lshlrev_b32 {t3}, 4, {vL}")
        a(f"s_add_u32 m0, {sT1}, {L_WO}")
        r = 0
        for k in range(7):
            if k == 4:
                a(f"s_add_u32 m0, {sT1}, {L_WO+4096}"); a(f"s_add_u32 {sT0}, {sT0}, 4096")
            r = a(f"buffer_load_dwordx4 {t3}, {WO}, {sT0} offen offset:{(k%4)*1024} {pol} lds")
        return r
    a(f"s_mov_b32 {sC}, {CSCALE}")
    a("s_mov_b32 s90, 0xcccccccc"); a("s_mov_b32 s91, 0xcccccccc")
    a("s_mov_b32 s92, 0xaaaaaaaa"); a("s_mov_b32 s93, 0xaaaaaaaa")
    a(f"v_bfe_u32 {t0}, {vL}, 1, 2")
    a(f"v_mov_b32 {t2}, 0xffff")
    a(f"v_mov_b32 {X[0]}, 0xffff0000")
    a(f"v_cndmask_b32 {t2}, {t2}, {X[0]}, {sMk0}")
    for j in range(4):
        a(f"v_cmp_eq_u32 vcc, {j}, {t0}")
        a(f"v_cndmask_b32 {vM[j]}, 0, {t2}, vcc")
    a(f"v_lshrrev_b32 {t0}, 2, {vn}")
    a(f"v_lshl_add_u32 {t0}, {vg}, 3, {t0}")
    a(f"v_lshlrev_b32 {t0}, 7, {t0}")
    a(f"v_and_b32 {t2}, 3, {vL}")
    a(f"v_lshl_add_u32 {t0}, {t2}, 3, {t0}")
    a(f"s_lshl_b32 {sT0}, {sW}, 5")
    a(f"v_add_u32 {t0}, {sT0}, {t0}")
    a(f"v_lshlrev_b32 {t2}, 14, {vn}")
    a(f"v_lshl_add_u32 {t2}, {vg}, 4, {t2}")
    stamp()
    a.wait_vm(id_x)
    a("s_barrier")
    stamp()
    for k in range(7):
        a(f"ds_read_b64_tr_b16 {vr(WOP+4*k,2)}, {t0} offset:{L_WQ + k*4096}")
        a(f"ds_read_b64_tr_b16 {vr(WOP+4*k+2,2)}, {t0} offset:{L_WQ + k*4096 + 512}")
    issued = D
    def throttled_issue():
        nonlocal issued
        a.wait_vm(ids[issued - D]); issueA(issued); issued += 1
    a("s_waitcnt lgkmcnt(0)")
    for k in range(7):
        a(f"v_mfma_f32_16x16x32_bf16 {vr(ACC)}, {vr(WOP+4*k)}, {vr(XOP+4*k)}, {vr(ACC) if k else 0}")
    a("s_mov_b32 exec_lo, 0x000f000f"); a("s_mov_b32 exec_hi, 0x000f000f")
    id_qs = a(f"buffer_store_dwordx4 {vr(ACC)}, {t2}, {WS}, {sCnt} offen sc1")
    a("s_mov_b64 exec, -1")
    if wo_early: id_wo = wo_dma()
    while issued < p_ack: throttled_issue()
    a.wait_vm(id_qs)
    a("s_barrier")
    stamp()
    a(f"v_mov_b32 {t0}, 1")
    a(f"s_cmp_eq_u32 {sW}, 0"); a(f"s_cselect_b32 {sNext}, {sNext}, 0x1000")
    a("s_mov_b64 exec, 1")
    a(f"buffer_store_byte {t0}, off, {DBG}, {sNext} sc1")
    a("s_mov_b64 exec, -1")
    while issued < p_poll: throttled_issue()
    a(f"s_lshl_b32 {sT0}, {sH}, 3")
    def pollA(): return a(f"buffer_load_dwordx2 {vr(vPoll,2)}, off, {DBG}, {sT0} sc1")
    def chkA():
        a(f"v_and_b32 v{vPoll}, v{vPoll}, v{vPoll+1}")
        a(f"v_cmp_ne_u32 vcc, 0x01010101, v{vPoll}")
    id_p = pollA()
    vQo = X[1]
    a(f"v_and_b32 {t0}, 1, {vg}"); a(f"v_lshlrev_b32 {t0}, 16, {t0}")
    a(f"v_lshrrev_b32 {t1}, 1, {vg}"); a(f"v_lshl_add_u32 {t0}, {t1}, 9, {t0}")
    a(f"v_lshl_add_u32 {vQo}, {vn}, 5, {t0}")
    while issued < p_chk: throttled_issue()
    a.wait_vm(id_p)
    chkA()
    a("s_cbranch_vccz L_pollA_ok")
    sv = a.vm_seq
    spin_loop("L_pollA", pollA, chkA)
    a.vm_seq = sv
    a("L_pollA_ok:")
    stamp()
    a(f"s_lshl_b32 {sT0}, {sB}, 14"); a(f"s_lshl_b32 {sT1}, {sH}, 10"); a(f"s_add_u32 {sT0}, {sT0}, {sT1}")
    QR = QB
    a(f"buffer_load_dwordx4 {vr(QR)}, {vQo}, {WS}, {sT0} offen sc1")
    id_q = a(f"buffer_load_dwordx4 {vr(QR+4)}, {vQo}, {WS}, {sT0} offen offset:16 sc1")
    a(f"v_mov_b32 v{vPoll+1}, {vQo}")
    while issued < RP: throttled_issue()
    a.wait_vm(id_q)
    def q_convert(src, tmp, dst):
        for e in range(8): a(f"v_mov_b32 v{tmp+e}, v{src+e}")
        for e in range(8): a(f"v_permlane16_swap_b32 v{src+e}, v{tmp+e}")
        for e in range(8): a(f"v_add_f32 v{src+e}, v{src+e}, v{tmp+e}")
        for e in range(4): a(f"v_cvt_pk_bf16_f32 v{dst+e}, v{src+2*e}, v{src+2*e+1}")
        for e in range(4): a(f"v_mov_b32 v{dst+4+e}, v{dst+e}")
        for e in range(4): a(f"v_permlane32_swap_b32 v{dst+e}, v{dst+4+e}")
    q_convert(QR, QR + 8, QA)
    stamp()

    def procK(n, k):
        j = (n >> 1) & 15; hf = n & 1
        acc = T[j & 1]
        for e in range(4):
            a(f"v_dot2_f32_bf16 {acc}, v{slot(k)+e}, v{QA+4*hf+e}, {acc if (hf or e) else 0}")
        if not hf: return
        u = U[(j >> 1) & 1]
        a(f"v_add_f32_dpp {u}, {acc}, {acc} row_ror:8 row_mask:0xf bank_mask:{'0xc' if j & 1 else '0x3'}")
        if not j & 1: return
        v = V[(j >> 2) & 1]
        a(f"v_add_f32_dpp {v}, {u}, {u} row_half_mirror row_mask:0xf bank_mask:{'0xa' if j & 2 else '0x5'}")
        if not j & 2: return
        a(f"v_add_f32_dpp {v}, {v}, {v} quad_perm:[2,3,0,1] row_mask:0xf bank_mask:0xf")
        if not j & 4: return
        x = X[(j >> 3) & 1]
        a(f"v_cndmask_b32 {x}, {V[0]}, {V[1]}, {sMk1}")
        a(f"v_add_f32_dpp {x}, {x}, {x} quad_perm:[1,0,3,2] row_mask:0xf bank_mask:0xf")
        if not j & 8: return
        for e in range(3): a(f"v_mov_b32 v{SP+e}, v{SP+e+1}")
        a(f"v_cndmask_b32 v{SP+3}, {X[0]}, {X[1]}, {sMk0}")
    def kslot(n): return n if n < RP else n % R
    p = 0; waited = -1
    burst = 0
    while not (p % 32 == 0 and issued - p == D and p >= RP):
        if issued - p == D:
            a.wait_vm(ids[p]); issueA(issued); issued += 1
        elif p >= issued - D or p > waited:
            if p >= issued - D - 0 and p > issued - 1 - D: a.wait_vm(ids[p])
        procK(p, kslot(p)); p += 1
        if issued - p > D or issued - p == D:
            free = (issued - R < p) if issued >= RP + R else (issued - RP < p)
            if issued - p > D and free and (burst < D or p % ratio == 0):
                throttled_issue(); burst += 1
        assert p <= 96
    vL4 = t3
    a(f"v_lshlrev_b32 {vL4}, 2, {vL}")
    def pollAll(): return a(f"buffer_load_dword v{vPoll}, {vL4}, {DBG}, 0 offen sc1")
    def chkAll(): a(f"v_cmp_ne_u32 vcc, 0x01010101, v{vPoll}")
    pollAll()
    stamp()
    def loop(name, n0, nend, proc):
        iters = (nend - n0) // 32
        a(f"s_mov_b32 {sCnt}, {iters}")
        a(f"{name}:")
        for q in range(32):
            if q == 32 - D:
                a(f"s_sub_u32 {sCnt}, {sCnt}, 1"); a(f"s_cmp_eq_u32 {sCnt}, 0"); a(f"s_cbranch_scc1 {name}_x")
            a(f"s_waitcnt vmcnt({D-1})")
            n = n0 + q + D
            srd = KA if n0 < 128 else VA
            a(f"buffer_load_dwordx4 {vr(slot(n % R))}, {vKo}, {srd}, {sOff} offen offset:{256*(n&1)} {pol}")
            if n & 1: a(f"s_add_u32 {sOff}, {sOff}, 8192")
            proc(n0 + q, (n0 + q) % R)
        a(f"s_branch {name}")
        a(f"{name}_x:")
        for k in range(D): ids[nend - D + k] = a.vm_seq - (D - 1 - k)
    loop("L_k", p, 128, procK)
    for n in range(128 - D, 128):
        a.wait_vm(ids[n]); issueA(n + D); procK(n, n % R)
    stamp()
    chkAll()
    a("s_cbranch_vccz L_pollAll_ok")
    sv = a.vm_seq
    spin_loop("L_pollAll", pollAll, chkAll)
    a.vm_seq = sv
    a("L_pollAll_ok:")
    QBR = slot(R)
    a(f"s_lshr_b32 {sT0}, {sR}, 3"); a(f"s_lshl_b32 {sT0}, {sT0}, 14"); a(f"s_and_b32 {sT1}, {sR}, 7"); a(f"s_lshl_b32 {sT1}, {sT1}, 11")
    a(f"s_add_u32 {sT0}, {sT0}, {sT1}"); a(f"s_add_u32 {sT0}, {sT0}, 0x20000")
    for k in range(4):
        a(f"buffer_load_dwordx4 {vr(QBR+4*k)}, v{vPoll+1}, {WS}, {sT0} offen offset:{(k>>1)*1024 + (k&1)*16} sc1")
    def rnd(r, tmp):
        a(f"v_cvt_pk_bf16_f32 {r}, {r}, {r}"); a(f"v_and_b32 {r}, 0xffff0000, {r}")
    if round_s:
        for e in range(4): rnd(f"v{SP+e}", t0)
    def allred(op, r, rows_only=False):
        if not rows_only:
            for s in (8, 4, 2, 1):
                a(f"{op}_dpp {r}, {r}, {r} row_ror:{s} row_mask:0xf bank_mask:0xf")
        for sw in (16, 32):
            a(f"v_mov_b32 {t1}, {r}"); a(f"v_permlane{sw}_swap_b32 {r}, {t1}"); a(f"{op} {r}, {r}, {t1}")
    a(f"v_max3_f32 {vm}, v{SP}, v{SP+1}, v{SP+2}"); a(f"v_max_f32 {vm}, {vm}, v{SP+3}")
    allred("v_max_f32", vm)
    a(f"v_mul_f32 {vm}, {sC}, {vm}")
    for e in range(4): a(f"v_fma_f32 v{SP+e}, v{SP+e}, {sC}, -{vm}")
    for e in range(4): a(f"v_exp_f32 v{SP+e}, v{SP+e}")
    a(f"v_add_f32 {vl}, v{SP}, v{SP+1}"); a(f"v_add_f32 {t0}, v{SP+2}, v{SP+3}"); a(f"v_add_f32 {vl}, {vl}, {t0}")
    for e in range(4): a(f"v_cvt_pk_bf16_f32 v{SP+e}, v{SP+e}, v{SP+e}")
    allred("v_add_f32", vl)
    for e in range(8): a(f"v_mov_b32 v{ACC+e}, 0")
    a(f"s_lshl_b32 {sT0}, {sW}, 2"); a(f"s_add_u32 {sT0}, {sT0}, {L_ML + 64}")
    a(f"v_mov_b32 {t0}, {sT0}")
    a(f"ds_write2_b32 {t0}, {vm}, {vl} offset0:0 offset1:4")

    def procV(n, k):
        j = (n >> 1) & 15; hf = n & 1
        if not hf:
            for e in range(4):
                a(f"v_and_b32_dpp v{AOP+e}, v{SP}, {vM[e]} row_newbcast:{brev4(j)} row_mask:0xf bank_mask:0xf")
        a(f"v_mfma_f32_16x16x32_bf16 {vr(ACC+4*hf)}, {vr(AOP)}, {vr(slot(k))}, {vr(ACC+4*hf)}")
        if hf and j == 15:
            for e in range(3): a(f"v_mov_b32 v{SP+e}, v{SP+e+1}")
    loop("L_v", 128, 256, procV)
    NI = R // 4
    a(f"s_lshl_b32 {sNext}, {sX}, 16"); a(f"s_mov_b32 {sLeft}, 8")
    def next_item(u):
        a(f"s_cmp_lg_u32 {sLeft}, 0")
        a(f"s_cselect_b32 {sIt[u % NI]}, {sNext}, {OOB}")
        a(f"s_subb_u32 {sLeft}, {sLeft}, 0")
        a(f"s_add_u32 {sNext}, {sNext}, 8192")
    def issueB(n):
        u = (n - 256) >> 2; kind = n & 3
        if kind == 0: next_item(u)
        ids[n] = a(f"buffer_load_dwordx4 {vr(slot(n % R))}, {vKo}, {KB if kind < 2 else VB}, {sIt[u % NI]} offen offset:{256*(n&1)} {pol}")
    q_convert(QBR, QBR + 16, QB)
    q_convert(QBR + 8, QBR + 16, QB + 8)
    for n in range(256 - D, 256):
        a.wait_vm(ids[n]); issueB(n + D); procV(n, n % R)
    for n in range(256 + D, 256 + DB): issueB(n)
    stamp()
    vPa = X[0]
    a(f"v_and_b32 {t0}, 1, {vg}"); a(f"v_lshlrev_b32 {t0}, 4, {t0}"); a(f"v_lshl_add_u32 {t0}, {vn}, 5, {t0}")
    a(f"s_lshl_b32 {sT0}, {sW}, 10"); a(f"s_add_u32 {sT0}, {sT0}, {L_PART}")
    a(f"v_add_u32 {t0}, {sT0}, {t0}")
    a(f"v_lshrrev_b32 {t1}, 1, {vg}"); a(f"v_lshl_add_u32 {vPa}, {t1}, 12, {t0}")
    a("s_mov_b32 exec_hi, 0")
    a(f"ds_write_b128 {t0}, {vr(ACC)} offset:8192")
    a(f"ds_write_b128 {t0}, {vr(ACC+4)} offset:{8192+512}")
    a("s_mov_b32 exec_hi, -1")
    a(f"v_mov_b32 {vm}, {NEGBIG}"); a(f"v_mov_b32 {vl}, 0")
    a("s_waitcnt lgkmcnt(0)")
    for e in range(8): a(f"v_mov_b32 v{ACC+e}, 0")
    a(f"s_cmp_ge_u32 {sIt[0]}, {OOB}"); a("s_cbranch_scc1 L_b_x")
    def procB(n, k):
        kind = n & 3
        if kind < 2:
            for hd in range(2):
                for e in range(4):
                    a(f"v_dot2_f32_bf16 {T[hd]}, v{slot(k)+e}, v{QB+8*hd+4*kind+e}, {T[hd] if (kind or e) else 0}")
        if kind == 1:
            s = U[0]
            a(f"v_add_f32_dpp {s}, {T[0]}, {T[0]} row_ror:8 row_mask:0xf bank_mask:0x3")
            a(f"v_add_f32_dpp {s}, {T[1]}, {T[1]} row_ror:8 row_mask:0xf bank_mask:0xc")
            a(f"v_add_f32_dpp {s}, {s}, {s} row_half_mirror row_mask:0xf bank_mask:0xf")
            a(f"v_add_f32_dpp {s}, {s}, {s} quad_perm:[2,3,0,1] row_mask:0xf bank_mask:0xf")
            a(f"v_add_f32_dpp {s}, {s}, {s} quad_perm:[1,0,3,2] row_mask:0xf bank_mask:0xf")
            if round_s: rnd(s, t0)
            a(f"v_mul_f32 {s}, {sC}, {s}")
            mn = U[1]
            a(f"v_max_f32 {mn}, {s}, {vm}")
            allred("v_max_f32", mn, rows_only=True)
            a(f"v_sub_f32 {t0}, {vm}, {mn}"); a(f"v_sub_f32 {s}, {s}, {mn}")
            a(f"v_exp_f32 {t0}, {t0}"); a(f"v_exp_f32 {s}, {s}")
            a(f"v_mov_b32 {vm}, {mn}")
            a(f"v_fma_f32 {vl}, {vl}, {t0}, {s}")
            a(f"v_cvt_pk_bf16_f32 {s}, {s}, {s}")
            a(f"v_mov_b32_dpp {t2}, {t0} row_newbcast:0 row_mask:0x3 bank_mask:0xf")
            a(f"v_mov_b32_dpp {t2}, {t0} row_newbcast:8 row_mask:0xc bank_mask:0xf")
            for e in range(4): a(f"v_and_b32 v{AOP+e}, {s}, {vM[e]}")
            for e in range(8): a(f"v_mul_f32 v{ACC+e}, v{ACC+e}, {t2}")
        if kind >= 2:
            hf = kind & 1
            a(f"v_mfma_f32_16x16x32_bf16 {vr(ACC+4*hf)}, {vr(AOP)}, {vr(slot(k))}, {vr(ACC+4*hf)}")
    a("L_b:")
    for n in range(256, 256 + R):
        a(f"s_waitcnt vmcnt({DB-1})")
        issueB(n + DB)
        procB(n, n % R)
        if n & 3 == 3:
            u = (n - 256) >> 2
            a(f"s_cmp_ge_u32 {sIt[(u+1) % NI]}, {OOB}")
            if u < NI - 1: a("s_cbranch_scc1 L_b_x")
            else: a("s_cbranch_scc0 L_b")
    a("L_b_x:")
    stamp()
    if not wo_early: id_wo = wo_dma()
    a(f"ds_write_b128 {vPa}, {vr(ACC)}")
    a(f"ds_write_b128 {vPa}, {vr(ACC+4)} offset:512")
    allred("v_add_f32", vl, rows_only=True)
    a(f"v_lshrrev_b32 {t0}, 3, {vn}"); a(f"v_lshlrev_b32 {t0}, 5, {t0}")
    a(f"s_lshl_b32 {sT0}, {sW}, 2"); a(f"s_add_u32 {sT0}, {sT0}, {L_ML}")
    a(f"v_add_u32 {t0}, {sT0}, {t0}")
    a(f"ds_write2_b32 {t0}, {vm}, {vl} offset0:0 offset1:4")
    CB = slot(R)
    a(f"s_lshl_b32 {sT0}, {sW}, 12"); a(f"s_add_u32 {sT0}, {sT0}, {L_PART}")
    a(f"v_lshlrev_b32 {t3}, 4, {vL}")
    a(f"v_add_u32 {t0}, {sT0}, {t3}")
    a(f"s_lshl_b32 {sT0}, {sW}, 5"); a(f"s_add_u32 {sT0}, {sT0}, {L_ML}")
    a(f"v_mov_b32 {t1}, {sT0}")
    a("s_waitcnt lgkmcnt(0)")
    a("s_barrier")
    a(f"s_cmp_eq_u32 {sW}, 3"); a("s_cbranch_scc1 L_nocomb")
    a(f"ds_read_b128 {vr(CB)}, {t1}"); a(f"ds_read_b128 {vr(CB+4)}, {t1} offset:16")
    for w in range(4): a(f"ds_read_b128 {vr(CB+8+4*w)}, {t0} offset:{1024*w}")
    a("s_waitcnt lgkmcnt(0)" if stamps else "s_waitcnt lgkmcnt(4)")
    ML = CB + 24
    a(f"v_max3_f32 v{ML}, v{CB}, v{CB+1}, v{CB+2}"); a(f"v_max_f32 v{ML}, v{ML}, v{CB+3}")
    for w in range(4): a(f"v_sub_f32 v{CB+w}, v{CB+w}, v{ML}")
    for w in range(4): a(f"v_exp_f32 v{CB+w}, v{CB+w}")
    a(f"v_mul_f32 v{ML+1}, v{CB}, v{CB+4}")
    for w in range(1, 4): a(f"v_fmac_f32 v{ML+1}, v{CB+w}, v{CB+4+w}")
    a("s_waitcnt lgkmcnt(0)")
    for e in range(4): a(f"v_mul_f32 v{CB+8+e}, v{CB}, v{CB+8+e}")
    for w in range(1, 4):
        for e in range(4): a(f"v_fmac_f32 v{CB+8+e}, v{CB+w}, v{CB+8+4*w+e}")
    for e in range(4): a(f"v_min_u32 v{CB+8+e}, -2, v{CB+8+e}")
    a(f"v_min_u32 v{ML}, -2, v{ML}"); a(f"v_min_u32 v{ML+1}, -2, v{ML+1}")
    sv = a.vm_seq
    a(f"buffer_store_dwordx4 {vr(CB+8)}, {t3}, {WS}, {sRec} offen sc1")
    a("s_mov_b64 exec, 1")
    a(f"buffer_store_dwordx2 {vr(ML,2)}, off, {WS}, {sRec} offset:1024 sc1")
    a("s_mov_b64 exec, -1")
    if not wo_early:
        a("s_waitcnt vmcnt(2)")
        a("s_branch L_comb_done")
    a("L_nocomb:")
    if not wo_early:
        a("s_waitcnt vmcnt(0)")
        a("L_comb_done:")
    stamp()
    WT = slot(R) + 32
    G = slot(R) + 60
    a(f"v_lshrrev_b32 {t0}, 2, {vn}"); a(f"v_lshl_add_u32 {t1}, {vg}, 3, {t0}"); a(f"v_mul_u32_u24 {t1}, 896, {t1}")
    a(f"v_and_b32 {t2}, 3, {vL}"); a(f"v_lshl_add_u32 {t1}, {t2}, 3, {t1}")
    a(f"s_mul_i32 {sT0}, {sW}, 224"); a(f"s_add_u32 {sT0}, {sT0}, {L_WO}"); a(f"v_add_u32 {t1}, {sT0}, {t1}")
    vGm, vGo, vYo = U[0], U[1], V[0]
    a(f"v_lshl_add_u32 {vGm}, {t0}, 3, {t2}"); a(f"v_mul_u32_u24 {vGm}, {REC}, {vGm}")
    a(f"s_and_b32 {sT0}, {sWG}, 7"); a(f"s_lshl_b32 {sT0}, {sT0}, 7")
    a(f"v_lshl_add_u32 {vGo}, {vg}, 5, {sT0}"); a(f"v_add_u32 {vGo}, {vGo}, {vGm}")
    a(f"s_lshr_b32 {sT1}, {sWG}, 3"); a(f"s_mul_i32 {sT1}, {sT1}, {32*REC}"); a(f"s_add_u32 {sT1}, {sT1}, {WS_PO}")
    a(f"s_add_u32 {sT2}, {sT1}, {4*REC}")
    a(f"v_mul_u32_u24 {vYo}, 28, {t0}"); a(f"v_add_u32 {vYo}, {vYo}, {t2}"); a(f"v_lshlrev_b32 {vYo}, 13, {vYo}")
    a(f"v_lshl_add_u32 {vYo}, {vg}, 4, {vYo}")
    a(f"s_lshr_b32 {sNext}, {sWG}, 7"); a(f"s_mul_i32 {sNext}, {sNext}, 112"); a(f"s_mul_i32 {sLeft}, {sW}, 7"); a(f"s_add_u32 {sNext}, {sNext}, {sLeft}")
    a(f"s_lshl_b32 {sNext}, {sNext}, 13"); a(f"s_and_b32 {sLeft}, {sWG}, 127"); a(f"s_lshl_b32 {sLeft}, {sLeft}, 6")
    a(f"s_add_u32 {sNext}, {sNext}, {sLeft}"); a(f"s_add_u32 {sNext}, {sNext}, {WS_Y}")
    for e in range(8): a(f"v_mov_b32 v{G+8+e}, 0")
    a(f"v_mov_b32 v{G+18}, {NEGBIG}"); a(f"v_mov_b32 v{G+19}, 0")
    if not wo_early: a("s_barrier")
    for k in range(7):
        a(f"ds_read_b64_tr_b16 {vr(WT+4*k,2)}, {t1} offset:{32*k}")
        a(f"ds_read_b64_tr_b16 {vr(WT+4*k+2,2)}, {t1} offset:{32*k + 4*896}")
    a(f"s_mov_b32 {sSpin}, {spin}")
    a("L_s2:")
    a(f"buffer_load_dwordx2 {vr(G+16,2)}, {vGm}, {WS}, {sT1} offen offset:1024 sc1")
    a(f"buffer_load_dwordx4 {vr(G)}, {vGo}, {WS}, {sT1} offen sc1")
    a(f"buffer_load_dwordx4 {vr(G+4)}, {vGo}, {WS}, {sT1} offen offset:16 sc1")
    a(f"s_cmp_lt_u32 {sWG}, 128"); a("s_cbranch_scc1 L_s2_a")
    a(f"buffer_load_dwordx2 {vr(G+18,2)}, {vGm}, {WS}, {sT2} offen offset:1024 sc1")
    a(f"buffer_load_dwordx4 {vr(G+8)}, {vGo}, {WS}, {sT2} offen sc1")
    a(f"buffer_load_dwordx4 {vr(G+12)}, {vGo}, {WS}, {sT2} offen offset:16 sc1")
    a("L_s2_a:")
    a(f"s_sub_u32 {sSpin}, {sSpin}, 1"); a(f"s_cmp_eq_u32 {sSpin}, 0"); a("s_cbranch_scc1 L_s2_go")
    a("s_waitcnt vmcnt(0)")
    a(f"v_max3_u32 {t0}, v{G}, v{G+1}, v{G+2}"); a(f"v_max3_u32 {t2}, v{G+3}, v{G+4}, v{G+5}")
    for k in range(6, 20, 4):
        a(f"v_max3_u32 {t0}, {t0}, v{G+k}, v{G+k+1}")
        if k + 2 < 20: a(f"v_max3_u32 {t2}, {t2}, v{G+k+2}, v{G+k+3}")
    a(f"v_max_u32 {t0}, {t0}, {t2}")
    a(f"v_cmp_eq_u32 vcc, -1, {t0}")
    a("s_cbranch_vccnz L_s2")
    a("L_s2_go:")
    a("s_waitcnt vmcnt(0) lgkmcnt(0)")
    stamp()
    QP1 = "quad_perm:[1,0,3,2] row_mask:0xf bank_mask:0xf"; QP2 = "quad_perm:[2,3,0,1] row_mask:0xf bank_mask:0xf"
    a(f"v_max_f32 {t0}, v{G+16}, v{G+18}")
    a(f"v_max_f32_dpp {t0}, {t0}, {t0} {QP1}"); a(f"v_max_f32_dpp {t0}, {t0}, {t0} {QP2}")
    a(f"v_sub_f32 v{G+16}, v{G+16}, {t0}"); a(f"v_sub_f32 v{G+18}, v{G+18}, {t0}")
    a(f"v_exp_f32 v{G+16}, v{G+16}"); a(f"v_exp_f32 v{G+18}, v{G+18}")
    a(f"v_mul_f32 {t0}, v{G+16}, v{G+17}"); a(f"v_fmac_f32 {t0}, v{G+18}, v{G+19}")
    for e in range(8): a(f"v_mul_f32 v{G+e}, v{G+16}, v{G+e}")
    a(f"v_add_f32_dpp {t0}, {t0}, {t0} {QP1}")
    for e in range(8): a(f"v_fmac_f32 v{G+e}, v{G+18}, v{G+8+e}")
    a(f"v_add_f32_dpp {t0}, {t0}, {t0} {QP2}")
    for e in range(8): a(f"v_add_f32_dpp v{G+e}, v{G+e}, v{G+e} {QP1}")
    a(f"v_rcp_f32 {t0}, {t0}")
    for e in range(8): a(f"v_add_f32_dpp v{G+e}, v{G+e}, v{G+e} {QP2}")
    for e in range(8): a(f"v_mul_f32 v{G+e}, v{G+e}, {t0}")
    for e in range(4): a(f"v_cvt_pk_bf16_f32 v{G+e}, v{G+2*e}, v{G+2*e+1}")
    BO = G + 4
    for s in range(4):
        m = 0x11111111 << s
        a(f"s_mov_b32 vcc_lo, {m}"); a(f"s_mov_b32 vcc_hi, {m}")
        for e in range(4): a(f"v_cndmask_b32 v{BO+4*s+e}, 0, v{G+e}, vcc")
    for k in range(7):
        u = k >> 2; s = k & 3
        a(f"v_mfma_f32_16x16x32_bf16 {vr(ACC+4*u)}, {vr(WT+4*k)}, {vr(BO+4*s)}, {vr(ACC+4*u) if s else 0}")
    a(f"s_add_u32 {sLeft}, {sNext}, {4*8192}")
    for e in range(4): a(f"v_min_u32 v{ACC+e}, -2, v{ACC+e}")
    a(f"buffer_store_dwordx4 {vr(ACC)}, {vYo}, {WS}, {sNext} offen sc1")
    for e in range(4): a(f"v_min_u32 v{ACC+4+e}, -2, v{ACC+4+e}")
    a("s_mov_b32 exec_lo, 0x77777777"); a("s_mov_b32 exec_hi, 0x77777777")
    a(f"buffer_store_dwordx4 {vr(ACC+4)}, {vYo}, {WS}, {sLeft} offen sc1")
    a("s_mov_b64 exec, -1")
    stamp()
    fin = "L_fin" if stamps else "L_end"
    a(f"s_cmp_lg_u32 {sW}, 0"); a(f"s_cbranch_scc1 {fin}")
    a(f"s_cmp_ge_u32 {sWG}, 224"); a(f"s_cbranch_scc1 {fin}")
    F = RING
    a(f"s_lshl_b32 {sT0}, {sWG}, 13"); a(f"s_add_u32 {sT0}, {sT0}, {WS_Y}"); a(f"s_add_u32 {sT1}, {sT0}, 4096")
    a(f"s_mov_b32 {sSpin}, {spin}")
    a(f"s_mul_i32 {sT2}, {sWG}, 2341"); a(f"s_lshr_b32 {sT2}, {sT2}, 16")
    a(f"s_mul_i32 {sLeft}, {sT2}, 28"); a(f"s_sub_u32 {sLeft}, {sWG}, {sLeft}"); a(f"s_lshl_b32 {sLeft}, {sLeft}, 5")
    a(f"s_and_b32 {sNext}, {sT2}, 3"); a(f"s_mul_i32 {sNext}, {sNext}, 1792"); a(f"s_add_u32 {sLeft}, {sLeft}, {sNext}")
    a(f"s_lshr_b32 {sT2}, {sT2}, 2"); a(f"s_mul_i32 {sT2}, {sT2}, 896"); a(f"s_add_u32 {sLeft}, {sLeft}, {sT2}")
    a(f"v_lshrrev_b32 {t1}, 1, {vg}"); a(f"v_and_b32 {t2}, 1, {vg}"); a(f"v_lshl_add_u32 {t1}, {t2}, 1, {t1}")
    a(f"v_lshl_add_u32 {t1}, {vn}, 2, {t1}"); a(f"v_lshlrev_b32 {t1}, 1, {t1}")
    a("L_f:")
    for k in range(8):
        a(f"buffer_load_dwordx4 {vr(F+4*k)}, {t3}, {WS}, {sT0 if k < 4 else sT1} offen offset:{(k%4)*1024} sc1")
    a(f"s_sub_u32 {sSpin}, {sSpin}, 1"); a(f"s_cmp_eq_u32 {sSpin}, 0"); a("s_cbranch_scc1 L_f_go")
    for k in range(8):
        a(f"s_waitcnt vmcnt({7-k})")
        if k == 0:
            a(f"v_max_u32 {t0}, v{F}, v{F+1}"); a(f"v_max_u32 {t2}, v{F+2}, v{F+3}")
        else:
            a(f"v_max3_u32 {t0}, {t0}, v{F+4*k}, v{F+4*k+1}"); a(f"v_max3_u32 {t2}, {t2}, v{F+4*k+2}, v{F+4*k+3}")
            for e in range(4): a(f"v_add_f32 v{F+e}, v{F+e}, v{F+4*k+e}")
    a(f"v_max_u32 {t0}, {t0}, {t2}")
    a(f"v_cmp_eq_u32 vcc, -1, {t0}")
    a("s_cbranch_vccnz L_f")
    a("L_f_go:")
    a("s_waitcnt vmcnt(0)")
    a(f"v_permlane32_swap_b32 v{F}, v{F+1}"); a(f"v_permlane32_swap_b32 v{F+2}, v{F+3}")
    a(f"v_add_f32 v{F}, v{F}, v{F+1}"); a(f"v_add_f32 v{F+2}, v{F+2}, v{F+3}")
    a(f"v_permlane16_swap_b32 v{F}, v{F+2}")
    a(f"v_add_f32 v{F}, v{F}, v{F+2}")
    a(f"v_add_f32_dpp v{F}, v{F}, v{F} row_ror:4 row_mask:0xf bank_mask:0xf")
    a(f"v_add_f32_dpp v{F}, v{F}, v{F} row_ror:8 row_mask:0xf bank_mask:0xf")
    a(f"v_cvt_pk_bf16_f32 v{F}, v{F}, v{F}")
    a("s_mov_b32 exec_lo, 0x000f000f"); a("s_mov_b32 exec_hi, 0x000f000f")
    a(f"buffer_store_short v{F}, {t1}, {OUT}, {sLeft} offen")
    if stamps:
        a("L_fin:")
        a("s_memrealtime s[98:99]")
        a("s_getreg_b32 s100, hwreg(HW_REG_XCC_ID)")
        a("s_waitcnt lgkmcnt(0)")
        a("s_mov_b64 exec, 1")
        a(f"s_lshl_b32 {sT0}, {sWG}, 2"); a(f"s_add_u32 {sT0}, {sT0}, {sW}"); a(f"s_lshl_b32 {sT0}, {sT0}, 6"); a(f"s_add_u32 {sT0}, {sT0}, {WS_STAMP}")
        vals = [96] + stamp_regs[:nst[0]] + [98, 100]
        for i, r in enumerate(vals): a(f"v_mov_b32 v{RING+64+i}, s{r}")
        a(f"v_mov_b32 {t0}, {sT0}")
        for i in range(0, 16, 4):
            a(f"global_store_dwordx4 {t0}, {vr(RING+64+i)}, s[28:29] offset:{4*i}")
    a("L_end:")
    a("s_endpgm")
    a.pad()
    head = HEADER + f"; @launch grid=(256,1,1) block=(256,1,1) lds={LDS_BYTES}\n"
    head += f'.amdgcn_target "amdgcn-amd-amdhsa--gfx950"\n.text\n.globl {NAME}_kernel\n.p2align 8\n.type {NAME}_kernel,@function\n{NAME}_kernel:\n'
    tail = f'''.section .rodata,"a"
.p2align 6
.amdhsa_kernel {NAME}_kernel
  .amdhsa_next_free_vgpr 256
  .amdhsa_next_free_sgpr 102
  .amdhsa_accum_offset 256
  .amdhsa_group_segment_fixed_size 0
  .amdhsa_kernarg_size 104
  .amdhsa_user_sgpr_count 2
  .amdhsa_user_sgpr_kernarg_segment_ptr 1
  .amdhsa_system_sgpr_workgroup_id_x 1
  .amdhsa_float_denorm_mode_32 3
.end_amdhsa_kernel
'''
    return head + a.text() + tail

if __name__ == "__main__":
    kw = eval("dict(" + (sys.argv[2] if len(sys.argv) > 2 else "") + ")")
    open(sys.argv[1], "w").write(gen(**kw))
```

```python
import os, sys
from asmlib import Asm

NAME = "concat_heads__mha_block_cached__sliding_block_cached__decode"
_ref = "cdna_kernels/" + NAME + ".s.ref"
HEADER = open(_ref).read().split("; Override launch")[0] if os.path.exists(_ref) else ""

WS_QP = 0x0
WS_ML = 0x40000
WS_PO = 0x48000
WS_Y = 0xC8000
WS_END = WS_Y + 224 * 2048
WS_STAMP = 0x400000
L_WQ = 0
L_WOA = 0
L_WOB = 16384
L_PART = 32768
L_Q = L_PART + 12288
L_CNT = L_Q + 1536
LDS_BYTES = L_CNT + 64
OOB = 0x40000000
CSCALE = 0x3DB8AA3B
NW = 5

def brev(j, bits): return int(f"{j:0{bits}b}"[::-1], 2)
FULL = "row_mask:0xf bank_mask:0xf"
QP1 = "quad_perm:[1,0,3,2] " + FULL
QP2 = "quad_perm:[2,3,0,1] " + FULL

def gen(D=5, RP=46, R=16, ratio=5, stamps=False, round_s=True, spin=1 << 18, codepf=True, pol="nt",
        force_remote=False, wo_thr=4, DE=None, hsleep=4, fine=False, pfsplit=True, wo_pre=True, diag=0):
    DE = DE or D
    a = Asm()
    sWG = "s2"; sW = "s3"
    KA, VA, KB, VB, WQ, XS, WS, DBG, OUT, WOA, WOB = (f"s[{i}:{i+3}]" for i in (32, 36, 40, 44, 32, 36, 60, 40, 44, 48, 52))
    sX, sR, sH, sB = "s72", "s73", "s74", "s75"
    sOff = "s76"; sCnt = "s77"; sT0 = "s78"; sT1 = "s79"; sT2 = "s80"; sT3 = "s81"
    sRecA = "s82"; sRecB = "s83"; sC = "s87"; sSpin = "s88"; sLocal = "s89"
    sMk1 = "s[90:91]"; sMk0 = "s[92:93]"
    sG = "s84"; sY = "s85"; sU = "s86"
    vL = "v0"; vKo = "v1"; vM = [f"v{i}" for i in range(2, 6)]
    QA = 6; QB = 14; SP = 30; AOP = 34; ACC = 38
    T = ["v46", "v47"]; U = ["v48", "v49"]; V = ["v50", "v51"]; X = ["v52", "v53"]
    t0, t1, t2, t3 = "v54", "v55", "v56", "v57"
    vm, vl, vg, vn = "v58", "v59", "v60", "v61"
    vmB, vlB = "v62", "v63"
    RING = 64
    ACCB = 128; SB = "v136"; vfA = "v137"; MLG = 138; WT = 144; G = 160
    vGo = "v176"; vYo = "v177"; vTr = "v178"; vPa = "v179"
    def slot(k): return RING + 4 * k
    def vr(i, n=4): return f"v[{i}:{i+n-1}]"
    names = {"s": [], "h": []}
    cur = ["s"]
    def stamp(name):
        if not stamps: return
        nm = names[cur[0]]
        if nm:
            a("s_waitcnt lgkmcnt(0)")
            a(f"v_writelane_b32 v255, s96, {len(nm)-1}")
        nm.append(name)
        a("s_memrealtime s[96:97]")
    def finish(tag):
        if not stamps:
            a("s_endpgm"); return
        a("s_mov_b64 exec, -1")
        stamp("end"); stamp("xcc")
        a("s_getreg_b32 s100, hwreg(HW_REG_XCC_ID)")
        a("v_writelane_b32 v255, s100, 31")
        a("s_mov_b32 exec_hi, 0")
        a(f"s_mul_i32 {sT0}, {sWG}, {NW}"); a(f"s_add_u32 {sT0}, {sT0}, {sW}"); a(f"s_lshl_b32 {sT0}, {sT0}, 7"); a(f"s_add_u32 {sT0}, {sT0}, {WS_STAMP}")
        a(f"v_lshl_add_u32 {t0}, {vL}, 2, {sT0}")
        a(f"global_store_dword {t0}, v255, s[28:29]")
        a("s_endpgm")
    def srd(i, lo, hi, size):
        if lo is not None: a(f"s_mov_b32 s{i}, {lo}"); a(f"s_mov_b32 s{i+1}, {hi}")
        a(f"s_mov_b32 s{i+2}, {size}"); a(f"s_mov_b32 s{i+3}, 0x20000")
    def poll(name, loads, check, sleep=0, first_issued=False):
        sv = a.vm_seq
        a(f"s_mov_b32 {sSpin}, {spin}")
        if first_issued: a(f"s_branch {name}_chk")
        a(f"{name}:")
        if sleep: a(f"s_sleep {sleep}")
        loads()
        a(f"s_sub_u32 {sSpin}, {sSpin}, 1"); a(f"s_cmp_eq_u32 {sSpin}, 0")
        a("s_waitcnt vmcnt(0) lgkmcnt(0)")
        a(f"s_cbranch_scc1 {name}_go")
        if first_issued: a(f"{name}_chk:")
        check()
        a(f"s_cbranch_vccnz {name}")
        a(f"{name}_go:")
        if first_issued: a.vm_seq = sv
    def sentinel(regs):
        regs = list(regs)
        accs = [t0, t2]
        if len(regs) <= 3:
            a(f"v_max_u32 {t0}, v{regs[0]}, v{regs[1]}") if len(regs) == 2 else a(f"v_max3_u32 {t0}, v{regs[0]}, v{regs[1]}, v{regs[2]}")
        else:
            a(f"v_max_u32 {t0}, v{regs[0]}, v{regs[1]}"); a(f"v_max_u32 {t2}, v{regs[2]}, v{regs[3]}")
            for i in range(4, len(regs), 2):
                c = accs[(i >> 1) & 1]
                a(f"v_max3_u32 {c}, {c}, v{regs[i]}, v{regs[i+1]}")
            a(f"v_max_u32 {t0}, {t0}, {t2}")
        a(f"v_cmp_eq_u32 vcc, -1, {t0}")
    def red(op, r, steps):
        for s in steps:
            if s in (16, 32):
                a(f"v_mov_b32 {t1}, {r}"); a(f"v_permlane{s}_swap_b32 {r}, {t1}"); a(f"{op} {r}, {r}, {t1}")
            elif s == "hm": a(f"{op}_dpp {r}, {r}, {r} row_half_mirror {FULL}")
            elif s == "q1": a(f"{op}_dpp {r}, {r}, {r} {QP1}")
            elif s == "q2": a(f"{op}_dpp {r}, {r}, {r} {QP2}")
            else: a(f"{op}_dpp {r}, {r}, {r} row_ror:{s} {FULL}")
    def rnd(r):
        a(f"v_cvt_pk_bf16_f32 {r}, {r}, {r}"); a(f"v_and_b32 {r}, 0xffff0000, {r}")
    def recs():
        a(f"s_lshl_b32 {sRecA}, {sH}, 2"); a(f"s_add_u32 {sRecA}, {sRecA}, {sB}"); a(f"s_lshl_b32 {sRecA}, {sRecA}, 3")
        a(f"s_and_b32 {sT0}, {sR}, 3"); a(f"s_add_u32 {sRecA}, {sRecA}, {sT0}")
        a(f"s_lshl_b32 {sRecB}, {sX}, 6"); a(f"s_add_u32 {sRecB}, {sRecB}, {sR}"); a(f"s_add_u32 {sRecB}, {sRecB}, 512")
    def unit(P):
        a(f"s_mul_i32 {sT0}, {sR}, 37"); a(f"s_lshr_b32 {sT0}, {sT0}, 8")
        a(f"s_mul_i32 {sT1}, {sT0}, 7"); a(f"s_sub_u32 {sT1}, {sR}, {sT1}")
        a(f"s_lshl_b32 {sT2}, {sX}, 2"); a(f"s_add_u32 {sT0}, {sT0}, {sT2}")
        a(f"s_mul_i32 {sU}, {sT0}, {128*896}"); a(f"s_lshl_b32 {sT2}, {sT1}, 7"); a(f"s_add_u32 {sU}, {sU}, {sT2}")
        a(f"s_lshr_b32 {sG}, {sT0}, 1"); a(f"s_lshl_b32 {sG}, {sG}, 14"); a(f"s_and_b32 {sT2}, {sT0}, 1"); a(f"s_lshl_b32 {sT2}, {sT2}, 12")
        a(f"s_add_u32 {sG}, {sG}, {sT2}"); a(f"s_add_u32 {sG}, {sG}, {WS_PO + P*512*512}")
        a(f"s_lshl_b32 {sY}, {sT1}, 13"); a(f"s_lshl_b32 {sT2}, {sT0}, 6"); a(f"s_add_u32 {sY}, {sY}, {sT2}")
        a(f"s_add_u32 {sY}, {sY}, {WS_Y + P*112*2048}")
    def unit_v():
        a(f"v_lshrrev_b32 {t0}, 2, {vn}"); a(f"v_and_b32 {t2}, 3, {vn}")
        a(f"v_lshlrev_b32 {vGo}, 4, {vL}")
        a(f"v_mul_u32_u24 {vYo}, {28*2048}, {t0}"); a(f"v_lshl_add_u32 {vYo}, {vg}, 4, {vYo}")
        a(f"v_lshl_add_u32 {vTr}, {vg}, 3, {t0}"); a(f"v_lshlrev_b32 {vTr}, 7, {vTr}"); a(f"v_lshl_add_u32 {vTr}, {t2}, 3, {vTr}")

    a(f"s_cmp_ge_u32 {sWG}, 256")
    a("s_cbranch_scc1 L_end")
    stamp("start"); names["h"] = list(names["s"])
    a("s_load_dwordx16 s[4:19], s[0:1], 0")
    a("s_load_dwordx8 s[20:27], s[0:1], 64")
    a("s_load_dwordx2 s[28:29], s[0:1], 96")
    a(f"v_lshrrev_b32 {t2}, 6, v0")
    a(f"v_and_b32 {vL}, 63, v0")
    a(f"v_readfirstlane_b32 {sW}, {t2}")
    a(f"v_lshrrev_b32 {vg}, 4, {vL}")
    a(f"v_and_b32 {vn}, 15, {vL}")
    a(f"s_and_b32 {sX}, {sWG}, 7")
    a(f"s_lshr_b32 {sR}, {sWG}, 3")
    a(f"s_lshr_b32 {sT0}, {sR}, 4")
    a(f"s_lshl_b32 {sH}, {sX}, 1")
    a(f"s_add_u32 {sH}, {sH}, {sT0}")
    a(f"s_bfe_u32 {sB}, {sR}, 0x20002")
    a(f"s_cmp_eq_u32 {sW}, 4")
    a("s_cbranch_scc1 L_helper")

    a(f"v_lshlrev_b32 {vKo}, 4, {vn}")
    a(f"v_lshl_add_u32 {vKo}, {vg}, 9, {vKo}")
    a(f"v_lshl_add_u32 {vKo}, {t2}, 11, {vKo}")
    a(f"s_lshl_b32 s40, {sB}, 4"); a(f"s_add_u32 s40, s40, {sH}"); a("s_lshl_b32 s40, s40, 2")
    a(f"s_and_b32 s41, {sR}, 3"); a("s_add_u32 s40, s40, s41"); a("s_lshl_b32 s40, s40, 19")
    srd(32, None, None, 0x80000)
    a(f"s_mov_b32 {sOff}, 0")
    a("s_waitcnt lgkmcnt(0)")
    a("s_add_u32 s32, s6, s40"); a("s_addc_u32 s33, s7, 0")
    ids = {}
    NTOT = 288
    def srd_of(n): return KA if n < 128 else KB if n < 144 else VB if n < 160 else VA
    def kslot(n): return n if n < RP else (n - RP) % R
    def issue(n):
        if n in (128, 144, 160): a(f"s_mov_b32 {sOff}, 0")
        ids[n] = a(f"buffer_load_dwordx4 {vr(slot(kslot(n)))}, {vKo}, {srd_of(n)}, {sOff} offen offset:{256*(n&1)} {pol}")
        if n & 1: a(f"s_add_u32 {sOff}, {sOff}, 8192")
    for n in range(D): issue(n)
    issued = D
    stamp("k0")
    a("s_add_u32 s36, s8, s40"); a("s_addc_u32 s37, s9, 0"); srd(36, None, None, 0x80000)
    a(f"s_lshr_b32 s44, {sR}, 3"); a("s_lshl_b32 s44, s44, 3"); a(f"s_add_u32 s44, s44, {sX}"); a("s_lshl_b32 s44, s44, 5")
    a(f"s_and_b32 s45, {sR}, 7"); a("s_add_u32 s44, s44, s45"); a("s_add_u32 s44, s44, 24"); a("s_lshl_b32 s44, s44, 16")
    a("s_add_u32 s40, s16, s44"); a("s_addc_u32 s41, s17, 0"); srd(40, None, None, 0x10000)
    a("s_add_u32 s44, s18, s44"); a("s_addc_u32 s45, s19, 0"); srd(44, None, None, 0x10000)
    srd(60, "s28", "s29", WS_END)
    recs(); unit(0)
    a(f"s_mov_b32 {sC}, {CSCALE}")
    a("s_mov_b32 s90, 0xcccccccc"); a("s_mov_b32 s91, 0xcccccccc")
    a("s_mov_b32 s92, 0xaaaaaaaa"); a("s_mov_b32 s93, 0xaaaaaaaa")
    a(f"v_bfe_u32 {t0}, {vL}, 1, 2")
    a(f"v_mov_b32 {t2}, 0xffff"); a(f"v_mov_b32 {t1}, 0xffff0000")
    a(f"v_cndmask_b32 {t2}, {t2}, {t1}, {sMk0}")
    for j in range(4):
        a(f"v_cmp_eq_u32 vcc, {j}, {t0}")
        a(f"v_cndmask_b32 {vM[j]}, 0, {t2}, vcc")
    a(f"v_lshlrev_b32 {t3}, 4, {vn}")
    def throttled_issue():
        nonlocal issued
        a.wait_vm(ids[issued - D]); issue(issued); issued += 1
    while issued < RP:
        throttled_issue()
        if fine and issued - D in (1, 6, 11, 21, 31): stamp(f"kl{issued-D}")
    stamp("ring_full")
    if diag in (1, 2): a("s_barrier")
    a("s_barrier")
    a(f"ds_read_b128 {vr(QA)}, {t3} offset:{L_Q+1024}"); a(f"ds_read_b128 {vr(QA+4)}, {t3} offset:{L_Q+1024+256}")
    for k in range(4): a(f"ds_read_b128 {vr(QB+4*k)}, {t3} offset:{L_Q+256*k}")
    a("s_waitcnt lgkmcnt(0)")
    stamp("q_ready")

    def tree(j, acc, dst_fn):
        u = U[(j >> 1) & 1]
        a(f"v_add_f32_dpp {u}, {acc}, {acc} row_ror:8 row_mask:0xf bank_mask:{'0xc' if j & 1 else '0x3'}")
        if not j & 1: return
        v = V[(j >> 2) & 1]
        a(f"v_add_f32_dpp {v}, {u}, {u} row_half_mirror row_mask:0xf bank_mask:{'0xa' if j & 2 else '0x5'}")
        if not j & 2: return
        a(f"v_add_f32_dpp {v}, {v}, {v} {QP2}")
        if not j & 4: return
        x = X[(j >> 3) & 1]
        a(f"v_cndmask_b32 {x}, {V[0]}, {V[1]}, {sMk1}")
        a(f"v_add_f32_dpp {x}, {x}, {x} {QP1}")
        if not j & 8: return
        dst_fn()
    def procK(n, k):
        j = (n >> 1) & 15; hf = n & 1
        acc = T[j & 1]
        for e in range(4):
            a(f"v_dot2_f32_bf16 {acc}, v{slot(k)+e}, v{QA+4*hf+e}, {acc if (hf or e) else 0}")
        if not hf: return
        def dst():
            for e in range(3): a(f"v_mov_b32 v{SP+e}, v{SP+e+1}")
            a(f"v_cndmask_b32 v{SP+3}, {X[0]}, {X[1]}, {sMk0}")
        tree(j, acc, dst)
    def procKB(n, k):
        j = (n - 128) >> 1; hf = n & 1
        for hd in range(2):
            for e in range(4):
                a(f"v_dot2_f32_bf16 {T[hd]}, v{slot(k)+e}, v{QB+8*hd+4*hf+e}, {T[hd] if (hf or e) else 0}")
        if not hf: return
        for hd in range(2):
            tree(2 * j + hd, T[hd], lambda: a(f"v_cndmask_b32 {SB}, {X[0]}, {X[1]}, {sMk0}"))
    def procVB(n, k):
        j = (n - 144) >> 1; hf = n & 1
        if not hf:
            a(f"v_mov_b32_dpp {t0}, {SB} row_newbcast:{brev(j,3)} row_mask:0xf bank_mask:0x3")
            a(f"v_mov_b32_dpp {t0}, {SB} row_newbcast:{8+brev(j,3)} row_mask:0xf bank_mask:0xc")
            for e in range(4): a(f"v_and_b32 v{AOP+e}, {t0}, {vM[e]}")
        a(f"v_mfma_f32_16x16x32_bf16 {vr(ACCB+4*hf)}, {vr(AOP)}, {vr(slot(k))}, {vr(ACCB+4*hf) if j else 0}")
    def procV(n, k):
        j = (n >> 1) & 15; hf = n & 1
        if not hf:
            for e in range(4):
                a(f"v_and_b32_dpp v{AOP+e}, v{SP}, {vM[e]} row_newbcast:{brev(j,4)} {FULL}")
        a(f"v_mfma_f32_16x16x32_bf16 {vr(ACC+4*hf)}, {vr(AOP)}, {vr(slot(k))}, {vr(ACC+4*hf)}")
        if hf and j == 15:
            for e in range(3): a(f"v_mov_b32 v{SP+e}, v{SP+e+1}")
    p = 0; burst = 0
    while not (p % 32 == 0 and issued - p == D and p >= RP):
        if issued - p == D:
            a.wait_vm(ids[p]); issue(issued); issued += 1
        procK(p, kslot(p)); p += 1
        free = (issued - R < p) if issued >= RP + R else (issued - RP < p)
        if issued - p > D and free and (burst < D or p % ratio == 0):
            throttled_issue(); burst += 1
        assert p <= 96
    stamp("caught_up")
    def loop(name, n0, nend, proc, head=None, lead=0):
        iters = (nend - n0) // 32
        a(f"s_mov_b32 {sCnt}, {iters}")
        a(f"{name}:")
        if head: head()
        for q in range(32):
            if q == 32 - D - lead:
                a(f"s_sub_u32 {sCnt}, {sCnt}, 1"); a(f"s_cmp_eq_u32 {sCnt}, 0"); a(f"s_cbranch_scc1 {name}_x")
            a(f"s_waitcnt vmcnt({D-1})")
            n = n0 + q + D
            a(f"buffer_load_dwordx4 {vr(slot(kslot(n)))}, {vKo}, {srd_of(n0)}, {sOff} offen offset:{256*(n&1)} {pol}")
            if n & 1: a(f"s_add_u32 {sOff}, {sOff}, 8192")
            proc(n0 + q, kslot(n0 + q))
        a(f"s_branch {name}")
    def loop_exit(name, nend, lead=0):
        a(f"{name}_x:")
        for k in range(D): ids[nend - D - lead + k] = a.vm_seq - (D - 1 - k)
    loop("L_k", p, 128, procK); loop_exit("L_k", 128)
    def softmaxA():
        if round_s:
            for e in range(4): rnd(f"v{SP+e}")
        a(f"v_max3_f32 {vm}, v{SP}, v{SP+1}, v{SP+2}"); a(f"v_max_f32 {vm}, {vm}, v{SP+3}")
        red("v_max_f32", vm, (8, 4, 2, 1, 16, 32))
        a(f"v_mul_f32 {vm}, {sC}, {vm}")
        for e in range(4): a(f"v_fma_f32 v{SP+e}, v{SP+e}, {sC}, -{vm}")
        for e in range(4): a(f"v_exp_f32 v{SP+e}, v{SP+e}")
        a(f"v_add_f32 {vl}, v{SP}, v{SP+1}"); a(f"v_add_f32 {t0}, v{SP+2}, v{SP+3}"); a(f"v_add_f32 {vl}, {vl}, {t0}")
        for e in range(4): a(f"v_cvt_pk_bf16_f32 v{SP+e}, v{SP+e}, v{SP+e}")
    def softmaxA2():
        red("v_add_f32", vl, (8, 4, 2, 1, 16, 32))
        for e in range(8): a(f"v_mov_b32 v{ACC+e}, 0")
        a(f"v_min_u32 {vm}, -2, {vm}"); a(f"v_min_u32 {vl}, -2, {vl}")
        a(f"s_lshl_b32 {sT0}, {sRecA}, 2"); a(f"s_add_u32 {sT0}, {sT0}, {sW}"); a(f"s_lshl_b32 {sT0}, {sT0}, 3"); a(f"s_add_u32 {sT0}, {sT0}, {WS_ML}")
        a("s_mov_b64 exec, 1")
        a(f"buffer_store_dwordx2 v[58:59], off, {WS}, {sT0} sc1")
        a("s_mov_b64 exec, -1")
    def softmaxB():
        if round_s: rnd(SB)
        a(f"v_mul_f32 {SB}, {sC}, {SB}")
        a(f"v_max_f32_dpp {vmB}, {SB}, {SB} row_half_mirror {FULL}")
        red("v_max_f32", vmB, ("q1", "q2", 16, 32))
        a(f"v_sub_f32 {SB}, {SB}, {vmB}"); a(f"v_exp_f32 {SB}, {SB}")
        a(f"v_add_f32_dpp {vlB}, {SB}, {SB} row_half_mirror {FULL}")
        a(f"v_cvt_pk_bf16_f32 {SB}, {SB}, {SB}")
    def softmaxB2():
        red("v_add_f32", vlB, ("q1", "q2", 16, 32))
        a(f"v_min_u32 {vmB}, -2, {vmB}"); a(f"v_min_u32 {vlB}, -2, {vlB}")
        a(f"s_lshl_b32 {sT0}, {sRecB}, 2"); a(f"s_add_u32 {sT0}, {sT0}, {sW}"); a(f"s_lshl_b32 {sT0}, {sT0}, 3"); a(f"s_add_u32 {sT0}, {sT0}, {WS_ML}")
        a(f"v_lshlrev_b32 {t2}, 7, {vn}")
        a("s_mov_b64 exec, 0x101")
        a(f"buffer_store_dwordx2 v[62:63], {t2}, {WS}, {sT0} offen sc1")
        a("s_mov_b64 exec, -1")
    for n in range(128 - D, 160):
        a.wait_vm(ids[n]); issue(n + D)
        (procK if n < 128 else procKB if n < 144 else procVB)(n, kslot(n))
        if n == 127: stamp("K_done"); softmaxA()
        if n == 128: softmaxA2()
        if n == 130: unit_v()
        if n == 132:
            a(f"s_lshl_b32 {sT0}, {sW}, 5"); a(f"s_add_u32 {sT0}, {sT0}, {L_WOA}"); a(f"v_add_u32 {vTr}, {sT0}, {vTr}")
            a(f"s_lshl_b32 {sT0}, {sW}, 11"); a(f"s_add_u32 {sY}, {sY}, {sT0}")
            a(f"v_and_b32 {t0}, 1, {vg}"); a(f"v_lshlrev_b32 {t0}, 4, {t0}"); a(f"v_lshl_add_u32 {t0}, {vn}, 5, {t0}")
            a(f"s_lshl_b32 {sT0}, {sW}, 10"); a(f"s_add_u32 {sT0}, {sT0}, {L_PART}")
            a(f"v_add_u32 {vPa}, {sT0}, {t0}")
        if n == 143: softmaxB()
        if n == 145: softmaxB2()
    stamp("B_done")
    def vhead():
        a(f"s_cmp_eq_u32 {sCnt}, 3"); a("s_cbranch_scc1 L_ml_issue")
        a(f"s_cmp_eq_u32 {sCnt}, 2"); a("s_cbranch_scc1 L_ml_use")
        a("L_v_body:")
    lead = 0 if DE == D else 32 - D
    loop("L_v", 160, NTOT, procV, vhead, lead)
    sv = a.vm_seq
    def ml_loads():
        a(f"buffer_load_dwordx2 {vr(MLG,2)}, {U[0]}, {WS}, {sT0} offen sc1")
        a(f"buffer_load_dwordx2 {vr(MLG+2,2)}, {U[1]}, {WS}, {sT1} offen sc1")
    a("L_ml_issue:")
    a(f"s_andn2_b32 {sT0}, {sRecA}, 7"); a(f"s_lshl_b32 {sT0}, {sT0}, 5"); a(f"s_add_u32 {sT0}, {sT0}, {WS_ML}")
    a(f"s_andn2_b32 {sT1}, {sRecB}, 7"); a(f"s_lshl_b32 {sT1}, {sT1}, 5"); a(f"s_add_u32 {sT1}, {sT1}, {WS_ML}")
    a(f"v_lshlrev_b32 {U[0]}, 3, {vn}")
    a(f"v_and_b32 {t0}, 31, {vL}"); a(f"v_lshlrev_b32 {t0}, 3, {t0}"); a(f"v_lshrrev_b32 {t1}, 5, {vL}"); a(f"v_lshl_add_u32 {U[1]}, {t1}, 10, {t0}")
    ml_loads()
    a("s_branch L_v_body")
    a("L_ml_use:")
    poll("L_ml", ml_loads, lambda: sentinel(range(MLG, MLG + 4)), sleep=2, first_issued=True)
    MA, MB = V
    a(f"v_max_f32_dpp {MA}, v{MLG}, v{MLG} row_ror:8 {FULL}"); a(f"v_max_f32_dpp {MB}, v{MLG+2}, v{MLG+2} row_ror:8 {FULL}")
    for s in (4, 2, 1):
        a(f"v_max_f32_dpp {MA}, {MA}, {MA} row_ror:{s} {FULL}"); a(f"v_max_f32_dpp {MB}, {MB}, {MB} row_ror:{s} {FULL}")
    red("v_max_f32", MB, (16,))
    a(f"v_mov_b32_dpp {t3}, {vmB} row_newbcast:0 row_mask:0x3 bank_mask:0xf")
    a(f"v_mov_b32_dpp {t3}, {vmB} row_newbcast:8 row_mask:0xc bank_mask:0xf")
    a(f"v_sub_f32 v{MLG}, v{MLG}, {MA}"); a(f"v_sub_f32 v{MLG+2}, v{MLG+2}, {MB}")
    a(f"v_sub_f32 {vfA}, {vm}, {MA}"); a(f"v_sub_f32 {t3}, {t3}, {MB}")
    a(f"v_exp_f32 v{MLG}, v{MLG}"); a(f"v_exp_f32 v{MLG+2}, v{MLG+2}"); a(f"v_exp_f32 {vfA}, {vfA}"); a(f"v_exp_f32 {t3}, {t3}")
    a(f"v_mul_f32 {MA}, v{MLG}, v{MLG+1}"); a(f"v_mul_f32 {MB}, v{MLG+2}, v{MLG+3}")
    for s in (8, 4, 2, 1):
        a(f"v_add_f32_dpp {MA}, {MA}, {MA} row_ror:{s} {FULL}"); a(f"v_add_f32_dpp {MB}, {MB}, {MB} row_ror:{s} {FULL}")
    red("v_add_f32", MB, (16,))
    a(f"v_rcp_f32 {MA}, {MA}"); a(f"v_rcp_f32 {MB}, {MB}")
    a(f"v_mul_f32 {vfA}, {vfA}, {MA}"); a(f"v_mul_f32 {t3}, {t3}, {MB}")
    for e in range(8): a(f"v_mul_f32 v{ACCB+e}, v{ACCB+e}, {t3}")
    a(f"v_lshrrev_b32 {t1}, 1, {vg}"); a(f"v_lshl_add_u32 {t0}, {t1}, 12, {vPa}")
    a(f"ds_write_b128 {t0}, {vr(ACCB)}"); a(f"ds_write_b128 {t0}, {vr(ACCB+4)} offset:512")
    a(f"v_lshl_add_u32 {vPa}, {t1}, 9, {vPa}")
    a(f"v_mov_b32 {t0}, {L_CNT}"); a(f"v_mov_b32 {t2}, 1")
    a("s_waitcnt lgkmcnt(0)")
    a("s_mov_b64 exec, 1")
    a(f"ds_add_u32 {t0}, {t2}")
    a("s_mov_b64 exec, -1")
    a("s_branch L_v_body")
    a.vm_seq = sv
    loop_exit("L_v", NTOT, lead)
    issued = NTOT - lead
    for n in range(NTOT - D - lead, NTOT):
        a.wait_vm(ids[n])
        c = 0
        while issued < NTOT and issued - n < DE + 1 and c < 2:
            issue(issued); issued += 1; c += 1
        procV(n, kslot(n))
    stamp("stream_done")
    a("s_mov_b32 vcc_lo, 0"); a("s_mov_b32 vcc_hi, -1")
    for e in range(4): a(f"v_cndmask_b32 v{ACC+e}, v{ACC+e}, v{ACC+4+e}, vcc")
    for e in range(4): a(f"v_mul_f32 v{ACC+e}, v{ACC+e}, {vfA}")
    a(f"ds_write_b128 {vPa}, {vr(ACC)} offset:8192")
    a("s_waitcnt lgkmcnt(0)")
    a("s_barrier")
    a(f"s_cmp_ge_u32 {sR}, 28"); a("s_cbranch_scc1 L_s_fin")
    for k in range(4):
        a(f"ds_read_b64_tr_b16 {vr(WT+4*k,2)}, {vTr} offset:{4096*k}")
        a(f"ds_read_b64_tr_b16 {vr(WT+4*k+2,2)}, {vTr} offset:{4096*k+512}")
    def gA():
        for k in range(4): a(f"buffer_load_dwordx4 {vr(G+4*k)}, {vGo}, {WS}, {sG} offen offset:{1024*k} sc1")
    poll("L_s2", gA, lambda: sentinel(range(G, G + 16)))
    stamp("gathered")
    for k in range(4):
        a(f"v_mfma_f32_16x16x32_bf16 {vr(ACC)}, {vr(WT+4*k)}, {vr(G+4*k)}, {vr(ACC) if k else 0}")
    for qp in (QP1, QP2):
        for e in range(4): a(f"v_add_f32_dpp v{ACC+e}, v{ACC+e}, v{ACC+e} {qp}")
    for e in range(4): a(f"v_min_u32 v{ACC+e}, -2, v{ACC+e}")
    a("s_mov_b32 exec_lo, 0x11111111"); a("s_mov_b32 exec_hi, 0x11111111")
    a(f"buffer_store_dwordx4 {vr(ACC)}, {vYo}, {WS}, {sY} offen sc1")
    if stamps:
        a("s_branch L_s_fin2")
        a("L_s_fin:")
        names["s"].pop(); stamp("gathered")
        a("L_s_fin2:")
    else:
        a("L_s_fin:")
    finish("s")

    cur[0] = "h"
    a("L_helper:")
    if codepf:
        a("s_getpc_b64 s[30:31]")
        a("L_pc:")
        a(f"s_sub_u32 s30, s30, L_pc-{NAME}_kernel"); a("s_subb_u32 s31, s31, 0")
        if pfsplit:
            a(f"s_lshl_b32 {sT1}, {sR}, 7")
            a(f"v_lshl_add_u32 {t0}, {vL}, 12, {sT1}")
            a(f"v_min_u32 {t0}, L_end-{NAME}_kernel, {t0}")
            a("s_mov_b64 exec, 0x1f")
            a(f"global_load_dword v2, {t0}, s[30:31]")
            a("s_mov_b64 exec, -1")
        else:
            a(f"v_lshlrev_b32 {t0}, 7, {vL}")
            a(f"v_add_u32 {t1}, 8192, {t0}")
            a(f"v_add_u32 {t2}, 16384, {t0}")
            a(f"v_min_u32 {t2}, L_end-{NAME}_kernel, {t2}")
            a(f"global_load_dword v2, {t1}, s[30:31]")
            a(f"global_load_dword v3, {t2}, s[30:31]")
            a(f"global_load_dword v9, {t0}, s[30:31]")
    XOP = 64; WOP = 96; QD = 208
    vWo = "v4"; vXo = "v5"; vL16 = "v6"; vL8 = "v7"
    a(f"v_lshrrev_b32 {t3}, 3, {vL}"); a(f"v_and_b32 {t2}, 7, {vL}"); a(f"v_lshlrev_b32 {t2}, 4, {t2}")
    a(f"v_lshl_add_u32 {vKo}, {t3}, 13, {t2}")
    a(f"v_mad_u32_u24 {vWo}, {t3}, 56, 0"); a(f"v_lshl_add_u32 {vWo}, {vWo}, 4, {t2}")
    a(f"v_and_b32 {vXo}, 3, {vL}"); a(f"v_mul_u32_u24 {vXo}, 896, {vXo}"); a(f"v_lshl_add_u32 {vXo}, {vg}, 4, {vXo}")
    a(f"s_bfe_u32 s44, {sR}, 0x10003")
    a(f"s_and_b32 s45, {sR}, 7"); a(f"s_lshl_b32 s46, {sX}, 3"); a("s_add_u32 s45, s45, s46")
    a(f"s_mul_i32 s46, s44, {224*8192}"); a("s_lshl_b32 s47, s45, 7"); a(f"s_add_u32 {sOff}, s46, s47")
    a(f"s_mul_i32 {sT2}, s44, 448")
    srd(32, None, None, 0x380000); srd(36, None, None, 3584)
    a(f"s_mov_b32 m0, {L_WQ}")
    a(f"s_cmp_eq_u32 {sT0}, 0")
    a("s_waitcnt lgkmcnt(0)")
    a("s_cselect_b32 s32, s10, s20"); a("s_cselect_b32 s33, s11, s21")
    a("s_cselect_b32 s36, s4, s14"); a("s_cselect_b32 s37, s5, s15")
    idk = []
    if diag == 1: a("s_mov_b32 s34, 0")
    for k in range(7):
        a(f"buffer_load_dwordx4 {vr(XOP+4*k)}, {vXo}, {XS}, {sT2} offen offset:{64*k}")
        for j in range(4):
            r = a(f"buffer_load_dwordx4 {vKo}, {WQ}, {sOff} offen {pol} lds")
            if k < 6 or j < 3:
                a("s_add_u32 m0, m0, 1024"); a(f"s_add_u32 {sOff}, {sOff}, 65536")
        idk.append(r)
    stamp("wq_issued")
    a(f"s_lshl_b32 {sCnt}, {sT0}, 1"); a(f"s_add_u32 {sCnt}, {sCnt}, s44"); a(f"s_lshl_b32 {sCnt}, {sCnt}, 16")
    a("s_lshl_b32 s46, s45, 8"); a(f"s_add_u32 {sCnt}, {sCnt}, s46")
    srd(60, "s28", "s29", WS_END); srd(40, "s26", "s27", 256); srd(44, "s24", "s25", 7168)
    srd(48, "s12", "s13", 0x380000); srd(52, "s22", "s23", 0x380000)
    recs(); unit(1); unit_v()
    for i in range(4): a(f"v_mov_b32 v{AOP+i}, -1")
    a(f"v_lshlrev_b32 {vL16}, 4, {vL}"); a(f"v_lshlrev_b32 {vL8}, 3, {vL}")
    a(f"s_lshl_b32 {sT3}, {sWG}, 11"); a(f"s_add_u32 {sT3}, {sT3}, {WS_Y}")
    a(f"buffer_store_dwordx4 {vr(AOP)}, {vL16}, {WS}, {sT3} offen sc1")
    a(f"buffer_store_dwordx4 {vr(AOP)}, {vL16}, {WS}, {sT3} offen offset:1024 sc1")
    a(f"v_mov_b32 {t0}, {sRecB}"); a(f"v_mov_b32 {t1}, {sRecA}")
    a(f"v_cmp_gt_u32 vcc, 2, {vL}"); a(f"v_cndmask_b32 {t0}, {t0}, {t1}, vcc")
    a(f"v_lshrrev_b32 {t1}, 2, {vL}"); a(f"v_lshl_add_u32 {t0}, {t1}, 5, {t0}"); a(f"v_lshlrev_b32 {t0}, 5, {t0}")
    a(f"v_and_b32 {t1}, 1, {vL}"); a(f"v_lshl_add_u32 {t0}, {t1}, 4, {t0}")
    a(f"s_mov_b32 {sT0}, {WS_ML}")
    a("s_mov_b64 exec, 0x3f")
    a(f"buffer_store_dwordx4 {vr(AOP)}, {t0}, {WS}, {sT0} offen sc1")
    a("s_mov_b64 exec, -1")
    a(f"s_lshl_b32 {sRecA}, {sH}, 14"); a(f"s_add_u32 {sRecA}, {sRecA}, {WS_PO}")
    a(f"s_lshl_b32 {sRecB}, {sX}, 15"); a(f"s_add_u32 {sRecB}, {sRecB}, {WS_PO + 16*16384}")
    a(f"s_and_b32 {sT0}, {sR}, 15"); a(f"s_lshl_b32 {sT1}, {sT0}, 9"); a(f"s_add_u32 {sT1}, {sT1}, {sRecA}")
    a(f"s_lshl_b32 {sT2}, {sR}, 9"); a(f"s_add_u32 {sT2}, {sT2}, {sRecB}")
    a(f"v_and_b32 {t0}, 31, {vL}"); a(f"v_lshlrev_b32 {t0}, 4, {t0}"); a(f"v_lshrrev_b32 {t1}, 5, {vL}"); a(f"v_lshl_add_u32 {t0}, {t1}, 14, {t0}")
    a(f"buffer_store_dwordx4 {vr(AOP)}, {t0}, {WS}, {sT2} offen sc1")
    a("s_mov_b32 exec_hi, 0")
    a(f"buffer_store_dwordx4 {vr(AOP)}, {t0}, {WS}, {sT1} offen sc1")
    a("s_mov_b32 exec_hi, -1")
    a(f"s_lshl_b32 {sT0}, {sT0}, 4"); a(f"s_add_u32 {sRecA}, {sRecA}, {sT0}")
    a(f"s_lshr_b32 {sT0}, {sR}, 3"); a(f"s_lshl_b32 {sT0}, {sT0}, 6"); a(f"s_add_u32 {sRecB}, {sRecB}, {sT0}")
    a(f"s_and_b32 {sT0}, {sR}, 3"); a(f"s_lshl_b32 {sT0}, {sT0}, 4"); a(f"s_add_u32 {sRecB}, {sRecB}, {sT0}")
    a(f"s_bfe_u32 {sT0}, {sR}, 0x10002"); a(f"s_lshl_b32 {sT0}, {sT0}, 13"); a(f"s_add_u32 {sRecB}, {sRecB}, {sT0}")
    a(f"v_lshrrev_b32 {t0}, 1, {vL}"); a(f"v_lshlrev_b32 {t0}, 8, {t0}"); a(f"v_and_b32 {t1}, 1, {vL}"); a(f"v_lshl_add_u32 {vPa}, {t1}, 3, {t0}")
    a(f"v_mov_b32 {t0}, {L_CNT}"); a(f"v_mov_b32 {t1}, 0"); a(f"ds_write_b32 {t0}, {t1}")
    stamp("cleared")
    for k in range(8):
        if k < 7: a.wait_vm(idk[k])
        if k: a("s_waitcnt lgkmcnt(0)")
        if k < 7:
            for c in range(4):
                a(f"ds_read_b64_tr_b16 {vr(WOP+16*(k%3)+4*c,2)}, {vTr} offset:{L_WQ + k*4096 + 32*c}")
                a(f"ds_read_b64_tr_b16 {vr(WOP+16*(k%3)+4*c+2,2)}, {vTr} offset:{L_WQ + k*4096 + 32*c + 512}")
        if k:
            for c in range(4):
                a(f"v_mfma_f32_16x16x32_bf16 {vr(QD+4*c)}, {vr(WOP+16*((k-1)%3)+4*c)}, {vr(XOP+4*(k-1))}, {vr(QD+4*c) if k > 1 else 0}")
    a(f"v_and_b32 {t0}, 3, {vn}"); a(f"v_lshlrev_b32 {t0}, 14, {t0}"); a(f"v_lshrrev_b32 {t1}, 2, {vn}")
    a(f"v_lshl_add_u32 {t0}, {t1}, 6, {t0}"); a(f"v_lshl_add_u32 {t0}, {vg}, 4, {t0}")
    for c in range(1, 4):
        for e in range(4):
            a(f"v_mov_b32_dpp v{QD+e}, v{QD+4*c+e} quad_perm:[0,1,2,3] row_mask:0xf bank_mask:{1<<c}")
    a(f"buffer_store_dwordx4 {vr(QD)}, {t0}, {WS}, {sCnt} offen sc1")
    stamp("q_stored")
    a(f"s_getreg_b32 {sT0}, hwreg(HW_REG_XCC_ID, 0, 4)")
    a(f"s_mul_i32 {sT1}, {sT0}, {sT0}"); a(f"s_lshl_b32 {sT1}, {sT1}, 18"); a(f"s_lshl_b32 {sT0}, {sT0}, 8")
    a(f"s_add_u32 {sT0}, {sT0}, {sT1}"); a(f"s_add_u32 {sT0}, {sT0}, 1")
    a(f"s_and_b32 {sT1}, {sX}, 1"); a(f"s_lshl_b32 {sT1}, {sT1}, 6"); a(f"s_lshl_b32 {sT2}, {sX}, 2"); a(f"s_add_u32 {sT1}, {sT1}, {sT2}")
    a(f"v_mov_b32 {t0}, {sT0}")
    a("s_waitcnt vmcnt(0)")
    if diag in (1, 2):
        a("s_barrier")
    stamp("acked")
    a("s_mov_b64 exec, 1")
    a(f"buffer_atomic_add {t0}, off, {DBG}, {sT1} sc0 sc1")
    a("s_mov_b64 exec, -1")
    a(f"s_mul_i32 {sT0}, {sT0}, 31")
    a("s_waitcnt vmcnt(0)")
    a(f"v_readfirstlane_b32 {sT1}, {t0}")
    stamp("counted")
    a(f"s_cmp_eq_u32 {sT1}, {sT0}"); a(f"s_cselect_b32 {sLocal}, {2 if force_remote else 1}, 2")
    a(f"s_and_b32 {sT1}, {sT1}, 0xff"); a(f"s_cmp_eq_u32 {sT1}, 31"); a("s_cbranch_scc0 L_notlast")
    a(f"v_mov_b32 {t0}, {sLocal}")
    a("s_mov_b64 exec, 1")
    a(f"buffer_store_dword {t0}, off, {DBG}, {sT2} offset:128 sc1")
    a("s_mov_b64 exec, -1")
    a("s_branch L_go")
    a("L_notlast:")
    poll("L_fl", lambda: a(f"buffer_load_dword v8, off, {DBG}, {sT2} offset:128 sc1"), lambda: a("v_cmp_eq_u32 vcc, 0, v8"), sleep=hsleep)
    a(f"v_readfirstlane_b32 {sLocal}, v8")
    a("L_go:")
    stamp("go_seen")
    a(f"s_lshr_b32 {sT0}, {sR}, 3"); a(f"s_lshl_b32 {sT0}, {sT0}, 14"); a(f"s_lshl_b32 {sT1}, {sX}, 11"); a(f"s_add_u32 {sT0}, {sT0}, {sT1}")
    a(f"s_add_u32 {sT0}, {sT0}, 0x20000"); a(f"s_add_u32 {sT1}, {sT0}, 0x10000")
    a(f"s_lshl_b32 {sT2}, {sB}, 14"); a(f"s_lshl_b32 {sCnt}, {sH}, 10"); a(f"s_add_u32 {sT2}, {sT2}, {sCnt}"); a(f"s_add_u32 {sCnt}, {sT2}, 0x10000")
    for u in range(3):
        for kh in range(2):
            so = (sT0, sT1)[kh] if u < 2 else (sT2, sCnt)[kh]
            a(f"buffer_load_dwordx4 {vr(64+8*u+4*kh)}, {vL16}, {WS}, {so} offen offset:{1024 if u == 1 else 0} sc1")
    a("s_waitcnt vmcnt(0)")
    for u in range(3):
        for e in range(4): a(f"v_add_f32 v{64+8*u+e}, v{64+8*u+e}, v{64+8*u+4+e}")
        for e in range(2): a(f"v_cvt_pk_bf16_f32 v{64+8*u+e}, v{64+8*u+2*e}, v{64+8*u+2*e+1}")
        a(f"ds_write_b64 {vL8}, {vr(64+8*u,2)} offset:{L_Q+512*u}")
    a("s_waitcnt lgkmcnt(0)")
    stamp("q_in_lds")
    def wo_dma(j0, j1):
        for jj in range(j0, j1):
            P, j = jj >> 4, jj & 15
            if j == 0: a(f"s_mov_b32 {sOff}, {sU}")
            if jj >= wo_thr: a(f"s_waitcnt vmcnt({wo_thr-1})")
            a(f"buffer_load_dwordx4 {vWo}, {(WOA, WOB)[P]}, {sOff} offen {pol} lds")
            a("s_add_u32 m0, m0, 1024"); a(f"s_add_u32 {sOff}, {sOff}, {8*896}")
    a(f"s_mov_b32 m0, {L_WOA}")
    npre = wo_thr if wo_pre else 0
    if npre:
        a(f"s_cmp_ge_u32 {sR}, 28"); a("s_cbranch_scc1 L_h_nopre")
        wo_dma(0, npre)
        a("L_h_nopre:")
    a("s_barrier")
    a(f"s_cmp_ge_u32 {sR}, 28"); a("s_cbranch_scc1 L_h_nowo")
    wo_dma(npre, 32)
    a("s_waitcnt vmcnt(0)")
    WB = 64
    for k in range(4):
        for c in range(4):
            a(f"ds_read_b64_tr_b16 {vr(WB+16*k+4*c,2)}, {vTr} offset:{L_WOB + k*4096 + 32*c}")
            a(f"ds_read_b64_tr_b16 {vr(WB+16*k+4*c+2,2)}, {vTr} offset:{L_WOB + k*4096 + 32*c + 512}")
        a("s_waitcnt lgkmcnt(0)")
    a("L_h_nowo:")
    stamp("wo_done")
    a(f"v_mov_b32 {t3}, {L_CNT}")
    poll("L_cnt", lambda: a(f"ds_read_b32 v8, {t3}"), lambda: a("v_cmp_ne_u32 vcc, 4, v8"), sleep=16)
    stamp("B_in_lds")
    CB = 184
    def combine(u):
        for w in range(4): a(f"ds_read_b128 {vr(CB+4*w)}, {vL16} offset:{L_PART + 4096*u + 1024*w}")
        a("s_waitcnt lgkmcnt(0)" if stamps else "s_waitcnt lgkmcnt(2)")
        for e in range(4): a(f"v_add_f32 v{CB+e}, v{CB+e}, v{CB+4+e}")
        a("s_waitcnt lgkmcnt(0)")
        for e in range(4): a(f"v_add_f32 v{CB+8+e}, v{CB+8+e}, v{CB+12+e}")
        for e in range(4): a(f"v_add_f32 v{CB+e}, v{CB+e}, v{CB+8+e}")
        for e in range(2): a(f"v_cvt_pk_bf16_f32 v{CB+e}, v{CB+2*e}, v{CB+2*e+1}")
        for e in range(2): a(f"v_min_u32 v{CB+16+2*u+e}, -2, v{CB+e}")
    def publish(u, so):
        a(f"s_cbranch_scc1 L_h_local{u}")
        a(f"buffer_store_dwordx2 {vr(CB+16+2*u,2)}, {vPa}, {WS}, {so} offen sc1")
        a(f"s_branch L_h_pub{u}")
        a(f"L_h_local{u}:")
        a(f"buffer_store_dwordx2 {vr(CB+16+2*u,2)}, {vPa}, {WS}, {so} offen")
        a(f"L_h_pub{u}:")
    a(f"s_add_u32 {sT0}, {sRecB}, 16384")
    a(f"s_cmp_eq_u32 {sLocal}, 1")
    for u in range(2):
        combine(u); publish(u, (sRecB, sT0)[u])
    a(f"v_and_b32 {t3}, 7, {vL}"); a(f"v_lshlrev_b32 {t3}, 2, {t3}")
    poll("L_all", lambda: a(f"buffer_load_dword v8, {t3}, {DBG}, 0 offen offset:128 sc1"), lambda: a("v_cmp_eq_u32 vcc, 0, v8"), sleep=4)
    a(f"s_cmp_ge_u32 {sR}, 28"); a("s_cbranch_scc1 L_h_nos2")
    GB = 128
    a(f"s_add_u32 {sT0}, {sG}, 8192")
    def gB():
        for st in range(2):
            for k in range(4): a(f"buffer_load_dwordx4 {vr(GB+16*st+4*k)}, {vGo}, {WS}, {(sG, sT0)[st]} offen offset:{1024*k} sc1")
    poll("L_s2b", gB, lambda: sentinel(range(GB, GB + 32)), sleep=16)
    for st in range(2):
        for k in range(4):
            for c in range(4):
                a(f"v_mfma_f32_16x16x32_bf16 {vr(QD+4*c)}, {vr(WB+16*k+4*c)}, {vr(GB+16*st+4*k)}, {vr(QD+4*c) if (st or k) else 0}")
    for qp in (QP1, QP2):
        for e in range(16): a(f"v_add_f32_dpp v{QD+e}, v{QD+e}, v{QD+e} {qp}")
    for c in range(1, 4):
        m = 0x11111111 << c
        a(f"s_mov_b32 vcc_lo, {m}"); a(f"s_mov_b32 vcc_hi, {m}")
        for e in range(4): a(f"v_cndmask_b32 v{QD+e}, v{QD+e}, v{QD+4*c+e}, vcc")
    for e in range(4): a(f"v_min_u32 v{QD+e}, -2, v{QD+e}")
    a(f"v_and_b32 {t0}, 3, {vL}"); a(f"v_lshl_add_u32 {t0}, {t0}, 11, {vYo}")
    a(f"buffer_store_dwordx4 {vr(QD)}, {t0}, {WS}, {sY} offen sc1")
    a("L_h_nos2:")
    a(f"s_mul_i32 {sT2}, {sWG}, 2341"); a(f"s_lshr_b32 {sT2}, {sT2}, 16")
    a(f"s_mul_i32 {sOff}, {sT2}, 28"); a(f"s_sub_u32 {sOff}, {sWG}, {sOff}"); a(f"s_lshl_b32 {sOff}, {sOff}, 5")
    a(f"s_and_b32 {sT0}, {sT2}, 3"); a(f"s_mul_i32 {sT0}, {sT0}, 1792"); a(f"s_add_u32 {sOff}, {sOff}, {sT0}")
    a(f"s_lshr_b32 {sT2}, {sT2}, 2"); a(f"s_mul_i32 {sT2}, {sT2}, 896"); a(f"s_add_u32 {sOff}, {sOff}, {sT2}")
    a(f"v_lshrrev_b32 {t1}, 1, {vg}"); a(f"v_and_b32 {t2}, 1, {vg}"); a(f"v_lshl_add_u32 {t1}, {t2}, 1, {t1}")
    a(f"v_lshl_add_u32 {t1}, {vn}, 2, {t1}"); a(f"v_lshlrev_b32 {t3}, 1, {t1}")
    stamp("B_s2_done")
    a(f"s_cmp_eq_u32 {sLocal}, 1")
    a("s_barrier")
    combine(2); publish(2, sRecA)
    stamp("published")
    a(f"s_cmp_ge_u32 {sWG}, 224"); a("s_cbranch_scc1 L_h_fin")
    F = 64
    def gY():
        for k in range(2): a(f"buffer_load_dwordx4 {vr(F+4*k)}, {vL16}, {WS}, {sT3} offen offset:{1024*k} sc1")
    poll("L_f", gY, lambda: sentinel(range(F, F + 8)))
    for e in range(4): a(f"v_add_f32 v{F+e}, v{F+e}, v{F+4+e}")
    a(f"v_permlane32_swap_b32 v{F}, v{F+1}"); a(f"v_permlane32_swap_b32 v{F+2}, v{F+3}")
    a(f"v_add_f32 v{F}, v{F}, v{F+1}"); a(f"v_add_f32 v{F+2}, v{F+2}, v{F+3}")
    a(f"v_permlane16_swap_b32 v{F}, v{F+2}")
    a(f"v_add_f32 v{F}, v{F}, v{F+2}")
    red("v_add_f32", f"v{F}", (4, 8))
    a(f"v_cvt_pk_bf16_f32 v{F}, v{F}, v{F}")
    a("s_mov_b32 exec_lo, 0x000f000f"); a("s_mov_b32 exec_hi, 0x000f000f")
    a(f"buffer_store_short v{F}, {t3}, {OUT}, {sOff} offen")
    a("L_h_fin:")
    if stamps: finish("h")
    a("L_end:")
    a("s_endpgm")
    a.pad()
    global STAMP_NAMES
    STAMP_NAMES = {k: v[:-1] for k, v in names.items()}
    head = HEADER + f"; @launch grid=(256,1,1) block=({64*NW},1,1) lds={LDS_BYTES}\n"
    head += f'.amdgcn_target "amdgcn-amd-amdhsa--gfx950"\n.text\n.globl {NAME}_kernel\n.p2align 8\n.type {NAME}_kernel,@function\n{NAME}_kernel:\n'
    nv = RING + 4 * RP
    nv = 256 if stamps else max(nv, 224)
    assert not (stamps and RP > 47)
    tail = f'''.section .rodata,"a"
.p2align 6
.amdhsa_kernel {NAME}_kernel
  .amdhsa_next_free_vgpr {nv}
  .amdhsa_next_free_sgpr 102
  .amdhsa_accum_offset {nv}
  .amdhsa_group_segment_fixed_size 0
  .amdhsa_kernarg_size 104
  .amdhsa_user_sgpr_count 2
  .amdhsa_user_sgpr_kernarg_segment_ptr 1
  .amdhsa_system_sgpr_workgroup_id_x 1
  .amdhsa_float_denorm_mode_32 3
.end_amdhsa_kernel
'''
    return head + a.text() + tail

if __name__ == "__main__":
    kw = eval("dict(" + (sys.argv[2] if len(sys.argv) > 2 else "") + ")")
    open(sys.argv[1], "w").write(gen(**kw))
```

```python
import os, sys, struct
def f2u(x): return struct.unpack('<I', struct.pack('<f', x))[0]
from asmlib import Asm

NAME = "concat_heads__mha_block_cached__sliding_block_cached__decode"
_ref = "cdna_kernels/" + NAME + ".s.ref"
HEADER = open(_ref).read().split("; Override launch")[0] if os.path.exists(_ref) else ""

WS_QP = 0x0
WS_ML = 0x40000
WS_PO = 0x48000
WS_MB = 0xC8000
WS_GC = 0xD0000
WS_Y = 0xE8000
WS_END = WS_Y + 224 * 2048
WS_STAMP = 0x400000
L_WQ = 0
L_WOA = 0
L_WOB = 16384
L_PART = 32768
L_Q = L_PART + 12288
L_CNT = L_Q + 1536
L_PRG = L_CNT + 16
L_TH = L_CNT + 32
L_LOC = L_CNT + 4
LDS_BYTES = L_CNT + 64
OOB = 0x40000000
CSCALE = 0x3DB8AA3B
NW = 6

def brev(j, bits): return int(f"{j:0{bits}b}"[::-1], 2)
FULL = "row_mask:0xf bank_mask:0xf"
QP1 = "quad_perm:[1,0,3,2] " + FULL
QP2 = "quad_perm:[2,3,0,1] " + FULL

def gen(D=5, RP=46, R=16, ratio=5, stamps=False, round_s=True, spin=1 << 18, codepf=True, pol="nt",
        force_remote=False, wo_thr=32, DE=None, hsleep=4, fine=False, pfsplit=True, diag=0, DP=None, NDP=24, light=2,
        gov=True, th0=4.5, thmin=2, thmax=6, gain=0.125, gw=0.0, gx=0.5, gsleep=0, gstop=2, nend=0, e5=True, gI=1024, gc=None, nlead=1):
    DE = DE or D
    DP = DP or D
    a = Asm()
    LG = 8; THMAX = LG - 2
    global NW
    NW = 6 if gov else 5
    sWG = "s2"; sW = "s3"
    KA, VA, KB, VB, WQ, XS, WS, DBG, OUT, WOA, WOB = (f"s[{i}:{i+3}]" for i in (32, 36, 40, 44, 32, 36, 60, 40, 44, 48, 52))
    sX, sR, sH, sB = "s72", "s73", "s74", "s75"
    sOff = "s76"; sCnt = "s77"; sT0 = "s78"; sT1 = "s79"; sT2 = "s80"; sT3 = "s81"
    sRecA = "s82"; sRecB = "s83"; sC = "s87"; sSpin = "s88"; sLocal = "s89"
    sMk1 = "s[90:91]"; sMk0 = "s[92:93]"
    sG = "s84"; sY = "s85"; sU = "s86"
    vL = "v0"; vKo = "v1"; vM = [f"v{i}" for i in range(2, 6)]
    QA = 6; QB = 14; SP = 30; AOP = 34; ACC = 38
    T = ["v46", "v47"]; U = ["v48", "v49"]; V = ["v50", "v51"]; X = ["v52", "v53"]
    t0, t1, t2, t3 = "v54", "v55", "v56", "v57"
    vm, vl, vg, vn = "v58", "v59", "v60", "v61"
    vmB, vlB = "v62", "v63"
    RING = 64
    ACCB = 128; SB = "v136"; vfA = "v137"; MLG = 138; WT = 144; G = 160
    vGo = "v176"; vYo = "v177"; vTr = "v178"; vPa = "v179"
    vPrg = "v180"; vPrA = "v181"; vZ = "v184"; TH = 182
    sTh = ["s94", "s95"]
    def slot(k): return RING + 4 * k
    def vr(i, n=4): return f"v[{i}:{i+n-1}]"
    names = {"s": [], "h": [], "g": []}
    cur = ["s"]
    def stamp(name):
        if not stamps: return
        nm = names[cur[0]]
        if nm:
            a("s_waitcnt lgkmcnt(0)")
            a(f"v_writelane_b32 v255, s96, {len(nm)-1}")
        nm.append(name)
        a("s_memrealtime s[96:97]")
    def finish(tag):
        if not stamps:
            a("s_endpgm"); return
        a("s_mov_b64 exec, -1")
        stamp("end"); stamp("xcc")
        a("s_getreg_b32 s100, hwreg(HW_REG_XCC_ID)")
        a("v_writelane_b32 v255, s100, 31")
        a("s_mov_b32 exec_hi, 0")
        a(f"s_mul_i32 {sT0}, {sWG}, {NW}"); a(f"s_add_u32 {sT0}, {sT0}, {sW}"); a(f"s_lshl_b32 {sT0}, {sT0}, 7"); a(f"s_add_u32 {sT0}, {sT0}, {WS_STAMP}")
        a(f"v_lshl_add_u32 {t0}, {vL}, 2, {sT0}")
        a(f"global_store_dword {t0}, v255, s[28:29]")
        a("s_endpgm")
    def srd(i, lo, hi, size):
        if lo is not None: a(f"s_mov_b32 s{i}, {lo}"); a(f"s_mov_b32 s{i+1}, {hi}")
        a(f"s_mov_b32 s{i+2}, {size}"); a(f"s_mov_b32 s{i+3}, 0x20000")
    def poll(name, loads, check, sleep=0, first_issued=False, masked=False):
        sv = a.vm_seq
        a(f"s_mov_b32 {sSpin}, {spin}")
        if first_issued: a(f"s_branch {name}_chk")
        a(f"{name}:")
        if sleep: a(f"s_sleep {sleep}")
        loads()
        a(f"s_sub_u32 {sSpin}, {sSpin}, 1"); a(f"s_cmp_eq_u32 {sSpin}, 0")
        a("s_waitcnt vmcnt(0) lgkmcnt(0)")
        a(f"s_cbranch_scc1 {name}_go")
        if first_issued: a(f"{name}_chk:")
        check()
        if masked:
            a("s_and_b64 exec, exec, vcc")
            a(f"s_cbranch_scc1 {name}")
        else:
            a(f"s_cbranch_vccnz {name}")
        a(f"{name}_go:")
        if masked: a("s_mov_b64 exec, -1")
        if first_issued: a.vm_seq = sv
    def sentinel(regs):
        regs = list(regs)
        accs = [t0, t2]
        if len(regs) <= 3:
            a(f"v_max_u32 {t0}, v{regs[0]}, v{regs[1]}") if len(regs) == 2 else a(f"v_max3_u32 {t0}, v{regs[0]}, v{regs[1]}, v{regs[2]}")
        else:
            a(f"v_max_u32 {t0}, v{regs[0]}, v{regs[1]}"); a(f"v_max_u32 {t2}, v{regs[2]}, v{regs[3]}")
            for i in range(4, len(regs), 2):
                c = accs[(i >> 1) & 1]
                a(f"v_max3_u32 {c}, {c}, v{regs[i]}, v{regs[i+1]}")
            a(f"v_max_u32 {t0}, {t0}, {t2}")
        a(f"v_cmp_eq_u32 vcc, -1, {t0}")
    def red(op, r, steps):
        for s in steps:
            if s in (16, 32):
                a(f"v_mov_b32 {t1}, {r}"); a(f"v_permlane{s}_swap_b32 {r}, {t1}"); a(f"{op} {r}, {r}, {t1}")
            elif s == "hm": a(f"{op}_dpp {r}, {r}, {r} row_half_mirror {FULL}")
            elif s == "q1": a(f"{op}_dpp {r}, {r}, {r} {QP1}")
            elif s == "q2": a(f"{op}_dpp {r}, {r}, {r} {QP2}")
            else: a(f"{op}_dpp {r}, {r}, {r} row_ror:{s} {FULL}")
    def rnd(r):
        a(f"v_cvt_pk_bf16_f32 {r}, {r}, {r}"); a(f"v_and_b32 {r}, 0xffff0000, {r}")
    def recs():
        a(f"s_lshl_b32 {sRecA}, {sH}, 2"); a(f"s_add_u32 {sRecA}, {sRecA}, {sB}"); a(f"s_lshl_b32 {sRecA}, {sRecA}, 3")
        a(f"s_and_b32 {sT0}, {sR}, 3"); a(f"s_add_u32 {sRecA}, {sRecA}, {sT0}")
        a(f"s_lshl_b32 {sRecB}, {sX}, 6"); a(f"s_add_u32 {sRecB}, {sRecB}, {sR}"); a(f"s_add_u32 {sRecB}, {sRecB}, 512")
    def unit(P):
        a(f"s_mul_i32 {sT0}, {sR}, 37"); a(f"s_lshr_b32 {sT0}, {sT0}, 8")
        a(f"s_mul_i32 {sT1}, {sT0}, 7"); a(f"s_sub_u32 {sT1}, {sR}, {sT1}")
        a(f"s_lshl_b32 {sT2}, {sX}, 2"); a(f"s_add_u32 {sT0}, {sT0}, {sT2}")
        a(f"s_mul_i32 {sU}, {sT0}, {128*896}"); a(f"s_lshl_b32 {sT2}, {sT1}, 7"); a(f"s_add_u32 {sU}, {sU}, {sT2}")
        a(f"s_lshr_b32 {sG}, {sT0}, 1"); a(f"s_lshl_b32 {sG}, {sG}, 14"); a(f"s_and_b32 {sT2}, {sT0}, 1"); a(f"s_lshl_b32 {sT2}, {sT2}, 12")
        a(f"s_add_u32 {sG}, {sG}, {sT2}"); a(f"s_add_u32 {sG}, {sG}, {WS_PO + P*512*512}")
        a(f"s_lshl_b32 {sY}, {sT1}, 13"); a(f"s_lshl_b32 {sT2}, {sT0}, 6"); a(f"s_add_u32 {sY}, {sY}, {sT2}")
        a(f"s_add_u32 {sY}, {sY}, {WS_Y + P*112*2048}")
    def unit_v():
        a(f"v_lshrrev_b32 {t0}, 2, {vn}"); a(f"v_and_b32 {t2}, 3, {vn}")
        a(f"v_lshlrev_b32 {vGo}, 4, {vL}")
        a(f"v_mul_u32_u24 {vYo}, {28*2048}, {t0}"); a(f"v_lshl_add_u32 {vYo}, {vg}, 4, {vYo}")
        a(f"v_lshl_add_u32 {vTr}, {vg}, 3, {t0}"); a(f"v_lshlrev_b32 {vTr}, 7, {vTr}"); a(f"v_lshl_add_u32 {vTr}, {t2}, 3, {vTr}")

    a(f"s_cmp_ge_u32 {sWG}, 256")
    a("s_cbranch_scc1 L_end")
    stamp("start"); names["h"] = list(names["s"]); names["g"] = list(names["s"])
    a("s_load_dwordx16 s[4:19], s[0:1], 0")
    a("s_load_dwordx8 s[20:27], s[0:1], 64")
    a("s_load_dwordx2 s[28:29], s[0:1], 96")
    a(f"v_lshrrev_b32 {t2}, 6, v0")
    a(f"v_and_b32 {vL}, 63, v0")
    a(f"v_readfirstlane_b32 {sW}, {t2}")
    a(f"v_lshrrev_b32 {vg}, 4, {vL}")
    a(f"v_and_b32 {vn}, 15, {vL}")
    a(f"s_and_b32 {sX}, {sWG}, 7")
    a(f"s_lshr_b32 {sR}, {sWG}, 3")
    a(f"s_lshr_b32 {sT0}, {sR}, 4")
    a(f"s_lshl_b32 {sH}, {sX}, 1")
    a(f"s_add_u32 {sH}, {sH}, {sT0}")
    a(f"s_bfe_u32 {sB}, {sR}, 0x20002")
    a(f"s_cmp_ge_u32 {sW}, 4")
    a("s_cbranch_scc1 L_helper")

    a(f"v_lshlrev_b32 {vKo}, 4, {vn}")
    a(f"v_lshl_add_u32 {vKo}, {vg}, 9, {vKo}")
    a(f"v_lshl_add_u32 {vKo}, {t2}, 11, {vKo}")
    a(f"s_lshl_b32 s40, {sB}, 4"); a(f"s_add_u32 s40, s40, {sH}"); a("s_lshl_b32 s40, s40, 2")
    a(f"s_and_b32 s41, {sR}, 3"); a("s_add_u32 s40, s40, s41"); a("s_lshl_b32 s40, s40, 19")
    srd(32, None, None, 0x80000)
    a(f"s_mov_b32 {sOff}, 0")
    a("s_waitcnt lgkmcnt(0)")
    a("s_add_u32 s32, s6, s40"); a("s_addc_u32 s33, s7, 0")
    ids = {}
    NTOT = 288
    def srd_of(n): return KA if n < 128 else KB if n < 144 else VB if n < 160 else VA
    def kslot(n): return n if n < RP else (n - RP) % R
    def issue(n):
        if n in (128, 144, 160): a(f"s_mov_b32 {sOff}, 0")
        ids[n] = a(f"buffer_load_dwordx4 {vr(slot(kslot(n)))}, {vKo}, {srd_of(n)}, {sOff} offen offset:{256*(n&1)} {pol}")
        if n & 1: a(f"s_add_u32 {sOff}, {sOff}, 8192")
    for n in range(DP): issue(n)
    issued = DP
    stamp("k0")
    a("s_add_u32 s36, s8, s40"); a("s_addc_u32 s37, s9, 0"); srd(36, None, None, 0x80000)
    a(f"s_lshr_b32 s44, {sR}, 3"); a("s_lshl_b32 s44, s44, 3"); a(f"s_add_u32 s44, s44, {sX}"); a("s_lshl_b32 s44, s44, 5")
    a(f"s_and_b32 s45, {sR}, 7"); a("s_add_u32 s44, s44, s45"); a("s_add_u32 s44, s44, 24"); a("s_lshl_b32 s44, s44, 16")
    a("s_add_u32 s40, s16, s44"); a("s_addc_u32 s41, s17, 0"); srd(40, None, None, 0x10000)
    a("s_add_u32 s44, s18, s44"); a("s_addc_u32 s45, s19, 0"); srd(44, None, None, 0x10000)
    srd(60, "s28", "s29", WS_END)
    recs(); unit(0)
    a(f"s_mov_b32 {sC}, {CSCALE}")
    a("s_mov_b32 s90, 0xcccccccc"); a("s_mov_b32 s91, 0xcccccccc")
    a("s_mov_b32 s92, 0xaaaaaaaa"); a("s_mov_b32 s93, 0xaaaaaaaa")
    a(f"v_bfe_u32 {t0}, {vL}, 1, 2")
    a(f"v_mov_b32 {t2}, 0xffff"); a(f"v_mov_b32 {t1}, 0xffff0000")
    a(f"v_cndmask_b32 {t2}, {t2}, {t1}, {sMk0}")
    for j in range(4):
        a(f"v_cmp_eq_u32 vcc, {j}, {t0}")
        a(f"v_cndmask_b32 {vM[j]}, 0, {t2}, vcc")
    a(f"v_lshlrev_b32 {t3}, 4, {vn}")
    def throttled_issue():
        nonlocal issued
        d = max(D, DP - max(0, issued - NDP) // 2)
        a.wait_vm(ids[issued - d]); issue(issued); issued += 1
    assert DP - (RP - 1 - NDP) // 2 <= D
    while issued < RP:
        throttled_issue()
        if fine and issued in (DP + 1, 11, 16, 26, 36): stamp(f"ki{issued}")
    stamp("ring_full")
    if diag in (1, 2): a("s_barrier")
    a("s_barrier")
    a(f"ds_read_b128 {vr(QA)}, {t3} offset:{L_Q+1024}"); a(f"ds_read_b128 {vr(QA+4)}, {t3} offset:{L_Q+1024+256}")
    for k in range(4): a(f"ds_read_b128 {vr(QB+4*k)}, {t3} offset:{L_Q+256*k}")
    a("s_waitcnt lgkmcnt(0)")
    stamp("q_ready")

    def tree(j, acc, dst_fn):
        u = U[(j >> 1) & 1]
        a(f"v_add_f32_dpp {u}, {acc}, {acc} row_ror:8 row_mask:0xf bank_mask:{'0xc' if j & 1 else '0x3'}")
        if not j & 1: return
        v = V[(j >> 2) & 1]
        a(f"v_add_f32_dpp {v}, {u}, {u} row_half_mirror row_mask:0xf bank_mask:{'0xa' if j & 2 else '0x5'}")
        if not j & 2: return
        a(f"v_add_f32_dpp {v}, {v}, {v} {QP2}")
        if not j & 4: return
        x = X[(j >> 3) & 1]
        a(f"v_cndmask_b32 {x}, {V[0]}, {V[1]}, {sMk1}")
        a(f"v_add_f32_dpp {x}, {x}, {x} {QP1}")
        if not j & 8: return
        dst_fn()
    def procK(n, k):
        j = (n >> 1) & 15; hf = n & 1
        acc = T[j & 1]
        for e in range(4):
            a(f"v_dot2_f32_bf16 {acc}, v{slot(k)+e}, v{QA+4*hf+e}, {acc if (hf or e) else 0}")
        if not hf: return
        def dst():
            for e in range(3): a(f"v_mov_b32 v{SP+e}, v{SP+e+1}")
            a(f"v_cndmask_b32 v{SP+3}, {X[0]}, {X[1]}, {sMk0}")
        tree(j, acc, dst)
    def procKB(n, k):
        j = (n - 128) >> 1; hf = n & 1
        for hd in range(2):
            for e in range(4):
                a(f"v_dot2_f32_bf16 {T[hd]}, v{slot(k)+e}, v{QB+8*hd+4*hf+e}, {T[hd] if (hf or e) else 0}")
        if not hf: return
        for hd in range(2):
            tree(2 * j + hd, T[hd], lambda: a(f"v_cndmask_b32 {SB}, {X[0]}, {X[1]}, {sMk0}"))
    def procVB(n, k):
        j = (n - 144) >> 1; hf = n & 1
        if not hf:
            a(f"v_mov_b32_dpp {t0}, {SB} row_newbcast:{brev(j,3)} row_mask:0xf bank_mask:0x3")
            a(f"v_mov_b32_dpp {t0}, {SB} row_newbcast:{8+brev(j,3)} row_mask:0xf bank_mask:0xc")
            for e in range(4): a(f"v_and_b32 v{AOP+e}, {t0}, {vM[e]}")
        a(f"v_mfma_f32_16x16x32_bf16 {vr(ACCB+4*hf)}, {vr(AOP)}, {vr(slot(k))}, {vr(ACCB+4*hf) if j else 0}")
    def procV(n, k):
        j = (n >> 1) & 15; hf = n & 1
        if not hf:
            for e in range(4):
                a(f"v_and_b32_dpp v{AOP+e}, v{SP}, {vM[e]} row_newbcast:{brev(j,4)} {FULL}")
        a(f"v_mfma_f32_16x16x32_bf16 {vr(ACC+4*hf)}, {vr(AOP)}, {vr(slot(k))}, {vr(ACC+4*hf)}")
        if hf and j == 15:
            for e in range(3): a(f"v_mov_b32 v{SP+e}, v{SP+e+1}")
    p = 0; burst = 0
    while not (p % 32 == 0 and issued - p == LG and p >= RP):
        if issued - p == LG: throttled_issue()
        procK(p, kslot(p)); p += 1
        free = (issued - R < p) if issued >= RP + R else (issued - RP < p)
        if issued - p > LG and free and (burst < D or p % ratio == 0):
            throttled_issue(); burst += 1
        assert p <= 96
    P0 = p
    if gov:
        a(f"s_lshl_b32 {sT0}, {sW}, 2"); a(f"s_add_u32 {sT0}, {sT0}, {L_PRG}")
        a(f"v_mov_b32 {vPrA}, {sT0}"); a(f"v_mov_b32 {vPrg}, 0")
        a(f"s_mov_b32 {sTh[0]}, {int(th0)}")
    stamp("caught_up")
    nlad = [0]
    def throttle(j):
        if not gov:
            a(f"s_waitcnt vmcnt({int(th0)})"); return
        if j & 1:
            a("s_waitcnt lgkmcnt(0)")
            a(f"v_readfirstlane_b32 {sTh[0]}, v{TH}")
        nlad[0] += 1
        assert thmax <= THMAX
        for th in range(thmax, thmin - 1, -1):
            a(f"s_waitcnt vmcnt({th})")
            if th > thmin:
                a(f"s_cmp_ge_u32 {sTh[0]}, {th}"); a(f"s_cbranch_scc1 L_lad{nlad[0]}")
        a(f"L_lad{nlad[0]}:")
    def post(j):
        if not gov: return
        a(f"v_add_u32 {vPrg}, 1, {vPrg}")
        a(f"ds_write_b32 {vPrA}, {vPrg}")
        if not j & 1: a(f"ds_read_b32 v{TH}, {vPrA} offset:{L_TH - L_PRG}")
    def loop(name, n0, nend_, proc, head=None, lead=0):
        iters = (nend_ - n0) // 32
        a(f"s_mov_b32 {sCnt}, {iters}")
        a(f"{name}:")
        if head: head()
        for q in range(0, 32, 2):
            if q == 32 - LG - lead:
                a(f"s_sub_u32 {sCnt}, {sCnt}, 1"); a(f"s_cmp_eq_u32 {sCnt}, 0"); a(f"s_cbranch_scc1 {name}_x")
            throttle(q >> 1)
            for n in (n0 + q + LG, n0 + q + LG + 1):
                a(f"buffer_load_dwordx4 {vr(slot(kslot(n)))}, {vKo}, {srd_of(n0)}, {sOff} offen offset:{256*(n&1)} {pol}")
            a(f"s_add_u32 {sOff}, {sOff}, 8192")
            post(q >> 1)
            proc(n0 + q, kslot(n0 + q)); proc(n0 + q + 1, kslot(n0 + q + 1))
        a(f"s_branch {name}")
    def loop_exit(name, nend_, lead=0):
        a(f"{name}_x:")
        for k in range(LG): ids[nend_ - LG - lead + k] = a.vm_seq - (LG - 1 - k)
    loop("L_k", p, 128, procK); loop_exit("L_k", 128)
    def softmaxA():
        if round_s:
            for e in range(4): rnd(f"v{SP+e}")
        a(f"v_max3_f32 {vm}, v{SP}, v{SP+1}, v{SP+2}"); a(f"v_max_f32 {vm}, {vm}, v{SP+3}")
        red("v_max_f32", vm, (8, 4, 2, 1, 16, 32))
        a(f"v_mul_f32 {vm}, {sC}, {vm}")
        for e in range(4): a(f"v_fma_f32 v{SP+e}, v{SP+e}, {sC}, -{vm}")
        for e in range(4): a(f"v_exp_f32 v{SP+e}, v{SP+e}")
        a(f"v_add_f32 {vl}, v{SP}, v{SP+1}"); a(f"v_add_f32 {t0}, v{SP+2}, v{SP+3}"); a(f"v_add_f32 {vl}, {vl}, {t0}")
        for e in range(4): a(f"v_cvt_pk_bf16_f32 v{SP+e}, v{SP+e}, v{SP+e}")
    def softmaxA2():
        red("v_add_f32", vl, (8, 4, 2, 1, 16, 32))
        for e in range(8): a(f"v_mov_b32 v{ACC+e}, 0")
        a(f"v_min_u32 {vm}, -2, {vm}"); a(f"v_min_u32 {vl}, -2, {vl}")
        a(f"s_lshl_b32 {sT0}, {sRecA}, 2"); a(f"s_add_u32 {sT0}, {sT0}, {sW}"); a(f"s_lshl_b32 {sT0}, {sT0}, 3"); a(f"s_add_u32 {sT0}, {sT0}, {WS_ML}")
        a("s_mov_b64 exec, 1")
        a(f"buffer_store_dwordx2 v[58:59], off, {WS}, {sT0} sc1")
        a("s_mov_b64 exec, -1")
    def softmaxB():
        if round_s: rnd(SB)
        a(f"v_mul_f32 {SB}, {sC}, {SB}")
        a(f"v_max_f32_dpp {vmB}, {SB}, {SB} row_half_mirror {FULL}")
        red("v_max_f32", vmB, ("q1", "q2", 16, 32))
        a(f"v_sub_f32 {SB}, {SB}, {vmB}"); a(f"v_exp_f32 {SB}, {SB}")
        a(f"v_add_f32_dpp {vlB}, {SB}, {SB} row_half_mirror {FULL}")
        a(f"v_cvt_pk_bf16_f32 {SB}, {SB}, {SB}")
    def softmaxB2():
        red("v_add_f32", vlB, ("q1", "q2", 16, 32))
        a(f"v_min_u32 {vmB}, -2, {vmB}"); a(f"v_min_u32 {vlB}, -2, {vlB}")
        a(f"s_lshl_b32 {sT0}, {sRecB}, 2"); a(f"s_add_u32 {sT0}, {sT0}, {sW}"); a(f"s_lshl_b32 {sT0}, {sT0}, 3"); a(f"s_add_u32 {sT0}, {sT0}, {WS_ML}")
        a(f"v_lshlrev_b32 {t2}, 7, {vn}")
        a("s_mov_b64 exec, 0x101")
        a(f"buffer_store_dwordx2 v[62:63], {t2}, {WS}, {sT0} offen sc1")
        a("s_mov_b64 exec, -1")
    for n in range(128 - LG, 160):
        if not n & 1:
            throttle(n >> 1); issue(n + LG); issue(n + LG + 1); post(n >> 1)
        (procK if n < 128 else procKB if n < 144 else procVB)(n, kslot(n))
        if n == 127: stamp("K_done"); softmaxA()
        if n == 128: softmaxA2()
        if n == 130: unit_v()
        if n == 132:
            a(f"s_lshl_b32 {sT0}, {sW}, 5"); a(f"s_add_u32 {sT0}, {sT0}, {L_WOA}"); a(f"v_add_u32 {vTr}, {sT0}, {vTr}")
            a(f"s_lshl_b32 {sT0}, {sW}, 11"); a(f"s_add_u32 {sY}, {sY}, {sT0}")
            a(f"v_and_b32 {t0}, 1, {vg}"); a(f"v_lshlrev_b32 {t0}, 4, {t0}"); a(f"v_lshl_add_u32 {t0}, {vn}, 5, {t0}")
            a(f"s_lshl_b32 {sT0}, {sW}, 10"); a(f"s_add_u32 {sT0}, {sT0}, {L_PART}")
            a(f"v_add_u32 {vPa}, {sT0}, {t0}")
        if n == 143: softmaxB()
        if n == 145: softmaxB2()
    stamp("B_done")
    def vhead():
        a(f"s_cmp_eq_u32 {sCnt}, 3"); a("s_cbranch_scc1 L_ml_issue")
        a(f"s_cmp_eq_u32 {sCnt}, 2"); a("s_cbranch_scc1 L_ml_use")
        a("L_v_body:")
    lead = nend
    assert lead % 4 == 0 and lead <= 32 - LG
    loop("L_v", 160, NTOT, procV, vhead, lead)
    sv = a.vm_seq
    def ml_loads():
        a(f"buffer_load_dwordx2 {vr(MLG,2)}, {U[0]}, {WS}, {sT0} offen sc1")
        a(f"buffer_load_dwordx2 {vr(MLG+2,2)}, {U[1]}, {WS}, {sT1} offen sc1")
    a("L_ml_issue:")
    a(f"s_andn2_b32 {sT0}, {sRecA}, 7"); a(f"s_lshl_b32 {sT0}, {sT0}, 5"); a(f"s_add_u32 {sT0}, {sT0}, {WS_ML}")
    a(f"s_andn2_b32 {sT1}, {sRecB}, 7"); a(f"s_lshl_b32 {sT1}, {sT1}, 5"); a(f"s_add_u32 {sT1}, {sT1}, {WS_ML}")
    a(f"v_lshlrev_b32 {U[0]}, 3, {vn}")
    a(f"v_and_b32 {t0}, 31, {vL}"); a(f"v_lshlrev_b32 {t0}, 3, {t0}"); a(f"v_lshrrev_b32 {t1}, 5, {vL}"); a(f"v_lshl_add_u32 {U[1]}, {t1}, 10, {t0}")
    ml_loads()
    a("s_branch L_v_body")
    a("L_ml_use:")
    poll("L_ml", ml_loads, lambda: sentinel(range(MLG, MLG + 4)), sleep=2, first_issued=True)
    MA, MB = V
    a(f"v_max_f32_dpp {MA}, v{MLG}, v{MLG} row_ror:8 {FULL}"); a(f"v_max_f32_dpp {MB}, v{MLG+2}, v{MLG+2} row_ror:8 {FULL}")
    for s in (4, 2, 1):
        a(f"v_max_f32_dpp {MA}, {MA}, {MA} row_ror:{s} {FULL}"); a(f"v_max_f32_dpp {MB}, {MB}, {MB} row_ror:{s} {FULL}")
    red("v_max_f32", MB, (16,))
    a(f"v_mov_b32_dpp {t3}, {vmB} row_newbcast:0 row_mask:0x3 bank_mask:0xf")
    a(f"v_mov_b32_dpp {t3}, {vmB} row_newbcast:8 row_mask:0xc bank_mask:0xf")
    a(f"v_sub_f32 v{MLG}, v{MLG}, {MA}"); a(f"v_sub_f32 v{MLG+2}, v{MLG+2}, {MB}")
    a(f"v_sub_f32 {vfA}, {vm}, {MA}"); a(f"v_sub_f32 {t3}, {t3}, {MB}")
    a(f"v_exp_f32 v{MLG}, v{MLG}"); a(f"v_exp_f32 v{MLG+2}, v{MLG+2}"); a(f"v_exp_f32 {vfA}, {vfA}"); a(f"v_exp_f32 {t3}, {t3}")
    a(f"v_mul_f32 {MA}, v{MLG}, v{MLG+1}"); a(f"v_mul_f32 {MB}, v{MLG+2}, v{MLG+3}")
    for s in (8, 4, 2, 1):
        a(f"v_add_f32_dpp {MA}, {MA}, {MA} row_ror:{s} {FULL}"); a(f"v_add_f32_dpp {MB}, {MB}, {MB} row_ror:{s} {FULL}")
    red("v_add_f32", MB, (16,))
    a(f"v_rcp_f32 {MA}, {MA}"); a(f"v_rcp_f32 {MB}, {MB}")
    a(f"v_mul_f32 {vfA}, {vfA}, {MA}"); a(f"v_mul_f32 {t3}, {t3}, {MB}")
    for e in range(8): a(f"v_mul_f32 v{ACCB+e}, v{ACCB+e}, {t3}")
    a(f"v_lshrrev_b32 {t1}, 1, {vg}"); a(f"v_lshl_add_u32 {t0}, {t1}, 12, {vPa}")
    a(f"ds_write_b128 {t0}, {vr(ACCB)}"); a(f"ds_write_b128 {t0}, {vr(ACCB+4)} offset:512")
    a(f"v_lshl_add_u32 {vPa}, {t1}, 9, {vPa}")
    a(f"v_mov_b32 {t0}, {L_CNT}"); a(f"v_mov_b32 {t2}, 1")
    a("s_waitcnt lgkmcnt(0)")
    a("s_mov_b64 exec, 1")
    a(f"ds_add_u32 {t0}, {t2}")
    a("s_mov_b64 exec, -1")
    a("s_branch L_v_body")
    a.vm_seq = sv
    loop_exit("L_v", NTOT, lead)
    issued = NTOT - lead
    for n in range(NTOT - LG - lead, NTOT):
        a.wait_vm(ids[n])
        if issued < NTOT:
            issue(issued); issued += 1
        procV(n, kslot(n))
    stamp("stream_done")
    a("s_mov_b32 vcc_lo, 0"); a("s_mov_b32 vcc_hi, -1")
    for e in range(4): a(f"v_cndmask_b32 v{ACC+e}, v{ACC+e}, v{ACC+4+e}, vcc")
    for e in range(4): a(f"v_mul_f32 v{ACC+e}, v{ACC+e}, {vfA}")
    a(f"ds_write_b128 {vPa}, {vr(ACC)} offset:8192")
    a("s_waitcnt lgkmcnt(0)")
    a("s_barrier")
    a(f"s_cmp_ge_u32 {sR}, 28"); a("s_cbranch_scc1 L_s_fin")
    for k in range(4):
        a(f"ds_read_b64_tr_b16 {vr(WT+4*k,2)}, {vTr} offset:{4096*k}")
        a(f"ds_read_b64_tr_b16 {vr(WT+4*k+2,2)}, {vTr} offset:{4096*k+512}")
    def gA():
        for k in range(4): a(f"buffer_load_dwordx4 {vr(G+4*k)}, {vGo}, {WS}, {sG} offen offset:{1024*k} sc1")
    if light == 1:
        a("s_mov_b64 exec, 0xffff")
        poll("L_s2l", lambda: a(f"buffer_load_dword v{G}, {vGo}, {WS}, {sG} offen offset:{3*1024+768+12} sc1"), lambda: a(f"v_cmp_eq_u32 vcc, -1, v{G}"))
        a("s_mov_b64 exec, -1")
    poll("L_s2", gA, lambda: sentinel(range(G, G + 16)), masked=(light == 2))
    stamp("gathered")
    for k in range(4):
        a(f"v_mfma_f32_16x16x32_bf16 {vr(ACC)}, {vr(WT+4*k)}, {vr(G+4*k)}, {vr(ACC) if k else 0}")
    for qp in (QP1, QP2):
        for e in range(4): a(f"v_add_f32_dpp v{ACC+e}, v{ACC+e}, v{ACC+e} {qp}")
    for e in range(4): a(f"v_min_u32 v{ACC+e}, -2, v{ACC+e}")
    a("s_mov_b32 exec_lo, 0x11111111"); a("s_mov_b32 exec_hi, 0x11111111")
    a(f"buffer_store_dwordx4 {vr(ACC)}, {vYo}, {WS}, {sY} offen sc1")
    if stamps:
        a("s_branch L_s_fin2")
        a("L_s_fin:")
        names["s"].pop(); stamp("gathered")
        a("L_s_fin2:")
    else:
        a("L_s_fin:")
    if e5: a("s_barrier")
    finish("s")

    if gov:
        cur[0] = "g"
        a("L_gov:")
        vA4 = "v2"; vBo = "v3"; vPw = "v4"; vP = "v5"; vPp = "v6"; vB = "v7"; vTh = "v8"
        a(f"v_and_b32 {vA4}, 3, {vL}"); a(f"v_lshlrev_b32 {vA4}, 2, {vA4}")
        a(f"v_mov_b32 {vPp}, 0"); a(f"v_mov_b32 {vTh}, {int(th0)}")
        a(f"ds_write_b32 {vA4}, {vPp} offset:{L_PRG}"); a(f"ds_write_b32 {vA4}, {vTh} offset:{L_TH}")
        gc_ = gI // 2 if gc is None else gc
        sTg = sU; sPo = sRecA; sGa = sRecB
        a(f"s_mul_i32 {sG}, {sX}, 4352"); a(f"s_add_u32 {sG}, {sG}, {WS_GC}")
        a(f"v_lshlrev_b32 {vBo}, 2, {vL}")
        a(f"s_lshl_b32 {sT0}, {sR}, 2"); a(f"s_add_u32 {sOff}, {sG}, {sT0}")
        a(f"s_sub_u32 {sT0}, {sR}, 28")
        a(f"s_mul_i32 {sGa}, {sT0}, 4352"); a(f"s_add_u32 {sGa}, {sGa}, {WS_GC + 8*4352}")
        a(f"s_mul_i32 {sT1}, {sT0}, {8 // nlead}"); a(f"s_add_u32 {sT1}, {sT1}, {sX}"); a(f"s_and_b32 {sT1}, {sT1}, 7")
        a(f"s_mul_i32 {sTg}, {sT1}, {gI // 8}"); a(f"s_add_u32 {sTg}, {sTg}, {gI // 8}")
        a(f"s_cmp_lt_u32 {sT0}, {nlead if gx else 0}"); a(f"s_cselect_b32 {sTg}, {sTg}, -1")
        a(f"s_mov_b32 {sPo}, 0")
        a(f"v_lshlrev_b32 {t3}, 4, {vA4}")
        a(f"v_mov_b32 {vB}, 0")
        a("s_waitcnt lgkmcnt(0)")
        srd(40, "s26", "s27", 256); srd(60, "s28", "s29", WS_END)
        a("s_barrier")
        a(f"ds_read_b32 v10, {vB} offset:{L_LOC}")
        a("s_waitcnt lgkmcnt(0)")
        a(f"v_readfirstlane_b32 {sLocal}, v10")
        a(f"s_cmp_lg_u32 {sLocal}, 1"); a("s_cbranch_scc1 L_gend")
        poll("L_g0", lambda: a(f"ds_read_b32 {vPw}, {vA4} offset:{L_PRG}"), lambda: a(f"v_cmp_eq_u32 vcc, 0, {vPw}"), sleep=4)
        def gall_chk():
            a("v_and_b32 v10, v10, v11"); a("v_and_b32 v10, 32, v10"); a("v_cmp_eq_u32 vcc, 0, v10")
        poll("L_gall", lambda: a(f"buffer_load_dwordx2 v[10:11], {t3}, {DBG}, 0 offen sc1"), gall_chk, sleep=8)
        stamp("start_gov")
        total = (NTOT - LG - lead - P0) // 2 * 4
        if stamps: a(f"s_mov_b32 {sY}, 0")
        a(f"s_mov_b32 {sSpin}, {spin}")
        a("L_gloop:")
        if gsleep: a(f"s_sleep {gsleep}")
        a(f"ds_read_b32 {vPw}, {vA4} offset:{L_PRG}")
        a(f"s_sub_u32 {sSpin}, {sSpin}, 1"); a(f"s_cmp_eq_u32 {sSpin}, 0"); a("s_cbranch_scc1 L_gend")
        a("s_waitcnt lgkmcnt(0)")
        a(f"v_add_u32_dpp {vP}, {vPw}, {vPw} {QP1}"); a(f"v_add_u32_dpp {vP}, {vP}, {vP} {QP2}")
        a("s_mov_b64 exec, 1")
        a(f"buffer_store_dword {vP}, off, {WS}, {sOff}")
        a(f"v_cmp_le_u32 vcc, {total - 4 * gstop}, {vP}")
        a("s_cbranch_vccnz L_gend")
        a("s_mov_b32 exec_lo, -1"); a("s_mov_b32 exec_hi, 1")
        a(f"buffer_load_dword {vB}, {vBo}, {WS}, {sG} offen sc1")
        a("s_mov_b64 exec, -1")
        a(f"v_add_u32 {t0}, {vP}, {vPp}"); a(f"v_mov_b32 {vPp}, {vP}"); a(f"v_cvt_f32_u32 {t0}, {t0}")
        a(f"v_mul_f32 {t0}, {f2u(-0.5 * gain)}, {t0}"); a(f"v_add_f32 {t0}, {f2u(th0 + 0.5)}, {t0}")
        if gw:
            a(f"v_lshlrev_b32 {vPw}, 2, {vPw}"); a(f"v_sub_u32 {vPw}, {vP}, {vPw}"); a(f"v_cvt_f32_i32 {vPw}, {vPw}")
            a(f"v_mul_f32 {vPw}, {f2u(gw)}, {vPw}"); a(f"v_add_f32 {t0}, {t0}, {vPw}")
        a("s_waitcnt vmcnt(0)")
        a(f"v_add_u32_dpp {t1}, {vB}, {vB} row_ror:8 {FULL}")
        a(f"v_readlane_b32 {sT3}, {vB}, 32")
        for sft in (4, 2, 1): a(f"v_add_u32_dpp {t1}, {t1}, {t1} row_ror:{sft} {FULL}")
        a(f"v_readlane_b32 {sT0}, {t1}, 0"); a(f"v_readlane_b32 {sT1}, {t1}, 16")
        a(f"v_cvt_f32_i32 v11, {sT3}")
        a(f"s_add_u32 {sT2}, {sT0}, {sT1}")
        a(f"v_cvt_f32_u32 v10, {sT2}")
        a(f"v_mul_f32 v10, {f2u(gain / 32)}, v10"); a(f"v_mul_f32 v11, {f2u(gain * gx / 256)}, v11")
        a(f"v_add_f32 {t0}, {t0}, v10"); a(f"v_add_f32 {t0}, {t0}, v11")
        if stamps:
            a(f"v_readfirstlane_b32 {sT0}, {t0}")
            a(f"s_lshr_b32 {sT1}, {sY}, 1"); a(f"s_add_u32 {sT1}, {sT1}, 3"); a(f"s_min_u32 m0, {sT1}, 30"); a(f"s_add_u32 {sY}, {sY}, 1"); a(f"v_writelane_b32 v254, {sT0}, m0")
            a(f"v_writelane_b32 v254, {sY}, 2")
        a(f"v_cvt_i32_f32 {vTh}, {t0}")
        a(f"v_med3_i32 {vTh}, {vTh}, {thmin}, {thmax}")
        a(f"ds_write_b32 {vA4}, {vTh} offset:{L_TH}")
        a(f"s_cmp_lt_u32 {sT2}, {sTg}"); a("s_cbranch_scc1 L_gloop")
        a(f"s_sub_u32 {sT0}, {sT2}, {sPo}")
        a(f"s_atomic_add {sT0}, s[28:29], {sGa} glc")
        a(f"s_add_u32 {sTg}, {sTg}, {gI}")
        a(f"s_sub_u32 {sT1}, {gc_}, {sT2}"); a(f"s_mul_i32 {sT1}, {sT1}, 7"); a(f"s_sub_u32 {sT1}, {sT1}, {sPo}")
        a(f"s_mov_b32 {sPo}, {sT2}")
        a("s_waitcnt lgkmcnt(0)")
        a(f"s_add_u32 {sT0}, {sT0}, {sT1}")
        a(f"v_mov_b32 v10, {sT0}")
        a("s_mov_b64 exec, 1")
        a(f"buffer_store_dword v10, off, {WS}, {sG} offset:128")
        a("s_mov_b64 exec, -1")
        a("s_branch L_gloop")
        a("L_gend:")
        if stamps:
            a("s_mov_b64 exec, -1")
            a("s_waitcnt lgkmcnt(0)")
            a("v_writelane_b32 v254, s96, 1"); a("v_readlane_b32 s96, v255, 0"); a("s_nop 3"); a("v_writelane_b32 v254, s96, 0")
            a("s_mov_b32 exec_hi, 0")
            a(f"s_mul_i32 {sT0}, {sWG}, {NW}"); a(f"s_add_u32 {sT0}, {sT0}, {sW}"); a(f"s_lshl_b32 {sT0}, {sT0}, 7"); a(f"s_add_u32 {sT0}, {sT0}, {WS_STAMP}")
            a(f"v_lshl_add_u32 {t0}, {vL}, 2, {sT0}")
            a(f"global_store_dword {t0}, v254, s[28:29]")
        a("s_endpgm")
    cur[0] = "h"
    a("L_helper:")
    if gov:
        a(f"s_cmp_eq_u32 {sW}, 5"); a("s_cbranch_scc1 L_gov")
    if codepf:
        a("s_getpc_b64 s[30:31]")
        a("L_pc:")
        a(f"s_sub_u32 s30, s30, L_pc-{NAME}_kernel"); a("s_subb_u32 s31, s31, 0")
        if pfsplit:
            a(f"s_lshl_b32 {sT1}, {sR}, 7")
            a(f"v_lshl_add_u32 {t0}, {vL}, 12, {sT1}")
            a(f"v_min_u32 {t0}, L_end-{NAME}_kernel, {t0}")
            a("s_mov_b64 exec, 0x3f")
            a(f"global_load_dword v2, {t0}, s[30:31]")
            a("s_mov_b64 exec, -1")
        else:
            a(f"v_lshlrev_b32 {t0}, 7, {vL}")
            a(f"v_add_u32 {t1}, 8192, {t0}")
            a(f"v_add_u32 {t2}, 16384, {t0}")
            a(f"v_min_u32 {t2}, L_end-{NAME}_kernel, {t2}")
            a(f"global_load_dword v2, {t1}, s[30:31]")
            a(f"global_load_dword v3, {t2}, s[30:31]")
            a(f"global_load_dword v9, {t0}, s[30:31]")
    XOP = 64; WOP = 96; QD = 208
    vWo = "v4"; vXo = "v5"; vL16 = "v6"; vL8 = "v7"
    a(f"v_lshrrev_b32 {t3}, 3, {vL}"); a(f"v_and_b32 {t2}, 7, {vL}"); a(f"v_lshlrev_b32 {t2}, 4, {t2}")
    a(f"v_lshl_add_u32 {vKo}, {t3}, 13, {t2}")
    a(f"v_mad_u32_u24 {vWo}, {t3}, 56, 0"); a(f"v_lshl_add_u32 {vWo}, {vWo}, 4, {t2}")
    a(f"v_and_b32 {vXo}, 3, {vL}"); a(f"v_mul_u32_u24 {vXo}, 896, {vXo}"); a(f"v_lshl_add_u32 {vXo}, {vg}, 4, {vXo}")
    a(f"s_bfe_u32 s44, {sR}, 0x10003")
    a(f"s_and_b32 s45, {sR}, 7"); a(f"s_lshl_b32 s46, {sX}, 3"); a("s_add_u32 s45, s45, s46")
    a(f"s_mul_i32 s46, s44, {224*8192}"); a("s_lshl_b32 s47, s45, 7"); a(f"s_add_u32 {sOff}, s46, s47")
    a(f"s_mul_i32 {sT2}, s44, 448")
    srd(32, None, None, 0x380000); srd(36, None, None, 3584)
    a(f"s_mov_b32 m0, {L_WQ}")
    a(f"s_cmp_eq_u32 {sT0}, 0")
    a("s_waitcnt lgkmcnt(0)")
    a("s_cselect_b32 s32, s10, s20"); a("s_cselect_b32 s33, s11, s21")
    a("s_cselect_b32 s36, s4, s14"); a("s_cselect_b32 s37, s5, s15")
    idk = []
    if diag == 1: a("s_mov_b32 s34, 0")
    for k in range(7):
        a(f"buffer_load_dwordx4 {vr(XOP+4*k)}, {vXo}, {XS}, {sT2} offen offset:{64*k}")
        for j in range(4):
            r = a(f"buffer_load_dwordx4 {vKo}, {WQ}, {sOff} offen {pol} lds")
            if k < 6 or j < 3:
                a("s_add_u32 m0, m0, 1024"); a(f"s_add_u32 {sOff}, {sOff}, 65536")
        idk.append(r)
    stamp("wq_issued")
    a(f"s_lshl_b32 {sCnt}, {sT0}, 1"); a(f"s_add_u32 {sCnt}, {sCnt}, s44"); a(f"s_lshl_b32 {sCnt}, {sCnt}, 16")
    a("s_lshl_b32 s46, s45, 8"); a(f"s_add_u32 {sCnt}, {sCnt}, s46")
    srd(60, "s28", "s29", WS_END); srd(40, "s26", "s27", 256); srd(44, "s24", "s25", 7168)
    srd(48, "s12", "s13", 0x380000); srd(52, "s22", "s23", 0x380000)
    recs(); unit(1); unit_v()
    for i in range(4): a(f"v_mov_b32 v{AOP+i}, -1")
    a(f"v_lshlrev_b32 {vL16}, 4, {vL}"); a(f"v_lshlrev_b32 {vL8}, 3, {vL}")
    a(f"s_lshl_b32 {sT3}, {sWG}, 11"); a(f"s_add_u32 {sT3}, {sT3}, {WS_Y}")
    a(f"buffer_store_dwordx4 {vr(AOP)}, {vL16}, {WS}, {sT3} offen sc1")
    a(f"buffer_store_dwordx4 {vr(AOP)}, {vL16}, {WS}, {sT3} offen offset:1024 sc1")
    a(f"v_mov_b32 {t0}, {sRecB}"); a(f"v_mov_b32 {t1}, {sRecA}")
    a(f"v_cmp_gt_u32 vcc, 2, {vL}"); a(f"v_cndmask_b32 {t0}, {t0}, {t1}, vcc")
    a(f"v_lshrrev_b32 {t1}, 2, {vL}"); a(f"v_lshl_add_u32 {t0}, {t1}, 5, {t0}"); a(f"v_lshlrev_b32 {t0}, 5, {t0}")
    a(f"v_and_b32 {t1}, 1, {vL}"); a(f"v_lshl_add_u32 {t0}, {t1}, 4, {t0}")
    a(f"s_mov_b32 {sT0}, {WS_ML}")
    a("s_mov_b64 exec, 0x3f")
    a(f"buffer_store_dwordx4 {vr(AOP)}, {t0}, {WS}, {sT0} offen sc1")
    a("s_mov_b64 exec, -1")
    a(f"s_lshl_b32 {sRecA}, {sH}, 14"); a(f"s_add_u32 {sRecA}, {sRecA}, {WS_PO}")
    a(f"s_lshl_b32 {sRecB}, {sX}, 15"); a(f"s_add_u32 {sRecB}, {sRecB}, {WS_PO + 16*16384}")
    a(f"s_and_b32 {sT0}, {sR}, 15"); a(f"s_lshl_b32 {sT1}, {sT0}, 9"); a(f"s_add_u32 {sT1}, {sT1}, {sRecA}")
    a(f"s_lshl_b32 {sT2}, {sR}, 9"); a(f"s_add_u32 {sT2}, {sT2}, {sRecB}")
    a(f"v_and_b32 {t0}, 31, {vL}"); a(f"v_lshlrev_b32 {t0}, 4, {t0}"); a(f"v_lshrrev_b32 {t1}, 5, {vL}"); a(f"v_lshl_add_u32 {t0}, {t1}, 14, {t0}")
    a(f"buffer_store_dwordx4 {vr(AOP)}, {t0}, {WS}, {sT2} offen sc1")
    a("s_mov_b32 exec_hi, 0")
    a(f"buffer_store_dwordx4 {vr(AOP)}, {t0}, {WS}, {sT1} offen sc1")
    a("s_mov_b32 exec_hi, -1")
    a(f"s_lshl_b32 {sT0}, {sT0}, 4"); a(f"s_add_u32 {sRecA}, {sRecA}, {sT0}")
    a(f"s_lshr_b32 {sT0}, {sR}, 3"); a(f"s_lshl_b32 {sT0}, {sT0}, 6"); a(f"s_add_u32 {sRecB}, {sRecB}, {sT0}")
    a(f"s_and_b32 {sT0}, {sR}, 3"); a(f"s_lshl_b32 {sT0}, {sT0}, 4"); a(f"s_add_u32 {sRecB}, {sRecB}, {sT0}")
    a(f"s_bfe_u32 {sT0}, {sR}, 0x10002"); a(f"s_lshl_b32 {sT0}, {sT0}, 13"); a(f"s_add_u32 {sRecB}, {sRecB}, {sT0}")
    a(f"v_lshrrev_b32 {t0}, 1, {vL}"); a(f"v_lshlrev_b32 {t0}, 8, {t0}"); a(f"v_and_b32 {t1}, 1, {vL}"); a(f"v_lshl_add_u32 {vPa}, {t1}, 3, {t0}")
    a(f"v_mov_b32 {t0}, {L_CNT}"); a(f"v_mov_b32 {t1}, 0"); a(f"ds_write_b32 {t0}, {t1}")
    sMB = "s94"
    a(f"s_lshl_b32 {sMB}, {sWG}, 7"); a(f"s_add_u32 {sMB}, {sMB}, {WS_MB}")
    a("s_mov_b64 exec, 1")
    a(f"buffer_store_dword {t1}, off, {WS}, {sMB} sc1")
    if gov:
        a(f"s_mul_i32 {sT0}, {sWG}, 4352"); a(f"s_add_u32 {sT0}, {sT0}, {WS_GC}")
        a(f"s_cmp_lt_u32 {sWG}, 16"); a(f"s_cselect_b32 {sT0}, {sT0}, {OOB}")
        a("s_mov_b64 exec, -1")
        a(f"v_lshlrev_b32 {t0}, 2, {vL}")
        a(f"buffer_store_dword {t1}, {t0}, {WS}, {sT0} offen sc1")
    a("s_mov_b64 exec, -1")
    stamp("cleared")
    for k in range(8):
        if k < 7: a.wait_vm(idk[k])
        if k: a("s_waitcnt lgkmcnt(0)")
        if k < 7:
            for c in range(4):
                a(f"ds_read_b64_tr_b16 {vr(WOP+16*(k%3)+4*c,2)}, {vTr} offset:{L_WQ + k*4096 + 32*c}")
                a(f"ds_read_b64_tr_b16 {vr(WOP+16*(k%3)+4*c+2,2)}, {vTr} offset:{L_WQ + k*4096 + 32*c + 512}")
        if k:
            for c in range(4):
                a(f"v_mfma_f32_16x16x32_bf16 {vr(QD+4*c)}, {vr(WOP+16*((k-1)%3)+4*c)}, {vr(XOP+4*(k-1))}, {vr(QD+4*c) if k > 1 else 0}")
    a(f"v_and_b32 {t0}, 3, {vn}"); a(f"v_lshlrev_b32 {t0}, 14, {t0}"); a(f"v_lshrrev_b32 {t1}, 2, {vn}")
    a(f"v_lshl_add_u32 {t0}, {t1}, 6, {t0}"); a(f"v_lshl_add_u32 {t0}, {vg}, 4, {t0}")
    for c in range(1, 4):
        for e in range(4):
            a(f"v_mov_b32_dpp v{QD+e}, v{QD+4*c+e} quad_perm:[0,1,2,3] row_mask:0xf bank_mask:{1<<c}")
    a(f"buffer_store_dwordx4 {vr(QD)}, {t0}, {WS}, {sCnt} offen sc1")
    stamp("q_stored")
    a(f"s_getreg_b32 {sT0}, hwreg(HW_REG_XCC_ID, 0, 4)")
    a(f"s_mul_i32 {sT1}, {sT0}, {sT0}"); a(f"s_lshl_b32 {sT1}, {sT1}, 18"); a(f"s_lshl_b32 {sT0}, {sT0}, 8")
    a(f"s_add_u32 {sT0}, {sT0}, {sT1}"); a(f"s_add_u32 {sT0}, {sT0}, 1")
    a(f"s_and_b32 {sT1}, {sX}, 1"); a(f"s_lshl_b32 {sT1}, {sT1}, 2"); a(f"s_lshr_b32 {sT2}, {sX}, 1"); a(f"s_lshl_b32 {sT2}, {sT2}, 6"); a(f"s_add_u32 {sT1}, {sT1}, {sT2}")
    a(f"s_mul_i32 {sT2}, {sT0}, 31")
    a(f"s_lshl_b32 {sCnt}, {sX}, 7"); a(f"s_add_u32 {sCnt}, {sCnt}, {WS_MB}")
    a(f"v_lshlrev_b32 {t3}, 10, {vL}")
    a("s_waitcnt vmcnt(0)")
    if diag in (1, 2):
        a("s_barrier")
    stamp("acked")
    a(f"s_atomic_add {sT0}, s[26:27], {sT1} glc")
    def wo_dma(j0, j1):
        for jj in range(j0, j1):
            P, j = jj >> 4, jj & 15
            if j == 0: a(f"s_mov_b32 {sOff}, {sU}")
            if jj >= wo_thr: a(f"s_waitcnt vmcnt({min(wo_thr, 4)-1})")
            a(f"buffer_load_dwordx4 {vWo}, {(WOA, WOB)[P]}, {sOff} offen {pol} lds")
            a("s_add_u32 m0, m0, 1024"); a(f"s_add_u32 {sOff}, {sOff}, {8*896}")
    a(f"s_mov_b32 m0, {L_WOA}")
    npre = wo_thr
    a(f"s_cmp_ge_u32 {sR}, 28"); a("s_cbranch_scc1 L_h_nopre")
    wo_dma(0, npre)
    a("L_h_nopre:")
    a("s_waitcnt lgkmcnt(0)")
    stamp("counted")
    a(f"s_cmp_eq_u32 {sT0}, {sT2}"); a(f"s_cselect_b32 {sLocal}, {2 if force_remote else 1}, 2")
    a(f"s_and_b32 {sT0}, {sT0}, 0xff"); a(f"s_cmp_eq_u32 {sT0}, 31"); a("s_cbranch_scc0 L_notlast")
    a(f"v_mov_b32 {t0}, {sLocal}")
    a("s_mov_b32 exec_hi, 0")
    a(f"buffer_store_dword {t0}, {t3}, {WS}, {sCnt} offen sc1")
    a("s_mov_b32 exec_hi, -1")
    a("s_branch L_go")
    a("L_notlast:")
    def spoll(name, loads, check, sleep):
        a(f"s_mov_b32 {sSpin}, {spin}")
        a(f"{name}:")
        if sleep: a(f"s_sleep {sleep}")
        loads()
        a(f"s_sub_u32 {sSpin}, {sSpin}, 1"); a(f"s_cmp_eq_u32 {sSpin}, 0")
        a("s_waitcnt lgkmcnt(0)")
        a(f"s_cbranch_scc1 {name}_go")
        check()
        a(f"s_cbranch_scc1 {name}")
        a(f"{name}_go:")
    spoll("L_fl", lambda: a(f"s_load_dword {sLocal}, s[28:29], {sMB} glc"), lambda: a(f"s_cmp_eq_u32 {sLocal}, 0"), hsleep)
    a("L_go:")
    stamp("go_seen")
    a(f"s_lshr_b32 {sT0}, {sR}, 3"); a(f"s_lshl_b32 {sT0}, {sT0}, 14"); a(f"s_lshl_b32 {sT1}, {sX}, 11"); a(f"s_add_u32 {sT0}, {sT0}, {sT1}")
    a(f"s_add_u32 {sT0}, {sT0}, 0x20000"); a(f"s_add_u32 {sT1}, {sT0}, 0x10000")
    a(f"s_lshl_b32 {sT2}, {sB}, 14"); a(f"s_lshl_b32 {sCnt}, {sH}, 10"); a(f"s_add_u32 {sT2}, {sT2}, {sCnt}"); a(f"s_add_u32 {sCnt}, {sT2}, 0x10000")
    for u in range(3):
        for kh in range(2):
            so = (sT0, sT1)[kh] if u < 2 else (sT2, sCnt)[kh]
            a(f"buffer_load_dwordx4 {vr(64+8*u+4*kh)}, {vL16}, {WS}, {so} offen offset:{1024 if u == 1 else 0} sc1")
    if gov:
        a(f"v_mov_b32 {t0}, {L_LOC}"); a(f"v_mov_b32 {t1}, {sLocal}"); a(f"ds_write_b32 {t0}, {t1}")
    a("s_waitcnt vmcnt(0)")
    for u in range(3):
        for e in range(4): a(f"v_add_f32 v{64+8*u+e}, v{64+8*u+e}, v{64+8*u+4+e}")
        for e in range(2): a(f"v_cvt_pk_bf16_f32 v{64+8*u+e}, v{64+8*u+2*e}, v{64+8*u+2*e+1}")
        a(f"ds_write_b64 {vL8}, {vr(64+8*u,2)} offset:{L_Q+512*u}")
    a("s_waitcnt lgkmcnt(0)")
    stamp("q_in_lds")
    a("s_barrier")
    a(f"s_cmp_ge_u32 {sR}, 28"); a("s_cbranch_scc1 L_h_nowo")
    wo_dma(npre, 32)
    a("s_waitcnt vmcnt(0)")
    WB = 64
    for k in range(4):
        for c in range(4):
            a(f"ds_read_b64_tr_b16 {vr(WB+16*k+4*c,2)}, {vTr} offset:{L_WOB + k*4096 + 32*c}")
            a(f"ds_read_b64_tr_b16 {vr(WB+16*k+4*c+2,2)}, {vTr} offset:{L_WOB + k*4096 + 32*c + 512}")
        a("s_waitcnt lgkmcnt(0)")
    a("L_h_nowo:")
    stamp("wo_done")
    a(f"v_mov_b32 {t3}, {L_CNT}")
    poll("L_cnt", lambda: a(f"ds_read_b32 v8, {t3}"), lambda: a("v_cmp_ne_u32 vcc, 4, v8"), sleep=16)
    stamp("B_in_lds")
    CB = 184
    def combine(u):
        for w in range(4): a(f"ds_read_b128 {vr(CB+4*w)}, {vL16} offset:{L_PART + 4096*u + 1024*w}")
        a("s_waitcnt lgkmcnt(0)" if stamps else "s_waitcnt lgkmcnt(2)")
        for e in range(4): a(f"v_add_f32 v{CB+e}, v{CB+e}, v{CB+4+e}")
        a("s_waitcnt lgkmcnt(0)")
        for e in range(4): a(f"v_add_f32 v{CB+8+e}, v{CB+8+e}, v{CB+12+e}")
        for e in range(4): a(f"v_add_f32 v{CB+e}, v{CB+e}, v{CB+8+e}")
        for e in range(2): a(f"v_cvt_pk_bf16_f32 v{CB+e}, v{CB+2*e}, v{CB+2*e+1}")
        for e in range(2): a(f"v_min_u32 v{CB+16+2*u+e}, -2, v{CB+e}")
    def publish(u, so):
        a(f"s_cbranch_scc1 L_h_local{u}")
        a(f"buffer_store_dwordx2 {vr(CB+16+2*u,2)}, {vPa}, {WS}, {so} offen sc1")
        a(f"s_branch L_h_pub{u}")
        a(f"L_h_local{u}:")
        a(f"buffer_store_dwordx2 {vr(CB+16+2*u,2)}, {vPa}, {WS}, {so} offen")
        a(f"L_h_pub{u}:")
    a(f"s_add_u32 {sT0}, {sRecB}, 16384")
    a(f"s_cmp_eq_u32 {sLocal}, 1")
    for u in range(2):
        combine(u); publish(u, (sRecB, sT0)[u])
    a(f"v_and_b32 {t3}, 3, {vL}"); a(f"v_lshlrev_b32 {t3}, 6, {t3}")
    def all_chk():
        a("v_and_b32 v8, v8, v9"); a("v_and_b32 v8, 32, v8"); a("v_cmp_eq_u32 vcc, 0, v8")
    poll("L_all", lambda: a(f"buffer_load_dwordx2 v[8:9], {t3}, {DBG}, 0 offen sc1"), all_chk, sleep=8)
    a(f"s_cmp_ge_u32 {sR}, 28"); a("s_cbranch_scc1 L_h_nos2")
    GB = 128
    a(f"s_add_u32 {sT0}, {sG}, 8192")
    def gB():
        for st in range(2):
            for k in range(4): a(f"buffer_load_dwordx4 {vr(GB+16*st+4*k)}, {vGo}, {WS}, {(sG, sT0)[st]} offen offset:{1024*k} sc1")
    poll("L_s2b", gB, lambda: sentinel(range(GB, GB + 32)), sleep=16, masked=(light == 2))
    for st in range(2):
        for k in range(4):
            for c in range(4):
                a(f"v_mfma_f32_16x16x32_bf16 {vr(QD+4*c)}, {vr(WB+16*k+4*c)}, {vr(GB+16*st+4*k)}, {vr(QD+4*c) if (st or k) else 0}")
    for qp in (QP1, QP2):
        for e in range(16): a(f"v_add_f32_dpp v{QD+e}, v{QD+e}, v{QD+e} {qp}")
    for c in range(1, 4):
        m = 0x11111111 << c
        a(f"s_mov_b32 vcc_lo, {m}"); a(f"s_mov_b32 vcc_hi, {m}")
        for e in range(4): a(f"v_cndmask_b32 v{QD+e}, v{QD+e}, v{QD+4*c+e}, vcc")
    for e in range(4): a(f"v_min_u32 v{QD+e}, -2, v{QD+e}")
    a(f"v_and_b32 {t0}, 3, {vL}"); a(f"v_lshl_add_u32 {t0}, {t0}, 11, {vYo}")
    a(f"buffer_store_dwordx4 {vr(QD)}, {t0}, {WS}, {sY} offen sc1")
    a("L_h_nos2:")
    a(f"s_mul_i32 {sT2}, {sWG}, 2341"); a(f"s_lshr_b32 {sT2}, {sT2}, 16")
    a(f"s_mul_i32 {sOff}, {sT2}, 28"); a(f"s_sub_u32 {sOff}, {sWG}, {sOff}"); a(f"s_lshl_b32 {sOff}, {sOff}, 5")
    a(f"s_and_b32 {sT0}, {sT2}, 3"); a(f"s_mul_i32 {sT0}, {sT0}, 1792"); a(f"s_add_u32 {sOff}, {sOff}, {sT0}")
    a(f"s_lshr_b32 {sT2}, {sT2}, 2"); a(f"s_mul_i32 {sT2}, {sT2}, 896"); a(f"s_add_u32 {sOff}, {sOff}, {sT2}")
    a(f"v_lshrrev_b32 {t1}, 1, {vg}"); a(f"v_and_b32 {t2}, 1, {vg}"); a(f"v_lshl_add_u32 {t1}, {t2}, 1, {t1}")
    a(f"v_lshl_add_u32 {t1}, {vn}, 2, {t1}"); a(f"v_lshlrev_b32 {t3}, 1, {t1}")
    stamp("B_s2_done")
    a(f"s_cmp_eq_u32 {sLocal}, 1")
    a("s_barrier")
    combine(2); publish(2, sRecA)
    stamp("published")
    if e5: a("s_barrier")
    a(f"s_cmp_ge_u32 {sWG}, 224"); a("s_cbranch_scc1 L_h_fin")
    F = 64
    def gY():
        for k in range(2): a(f"buffer_load_dwordx4 {vr(F+4*k)}, {vL16}, {WS}, {sT3} offen offset:{1024*k} sc1")
    poll("L_f", gY, lambda: sentinel(range(F, F + 8)), masked=(light == 2))
    for e in range(4): a(f"v_add_f32 v{F+e}, v{F+e}, v{F+4+e}")
    a(f"v_permlane32_swap_b32 v{F}, v{F+1}"); a(f"v_permlane32_swap_b32 v{F+2}, v{F+3}")
    a(f"v_add_f32 v{F}, v{F}, v{F+1}"); a(f"v_add_f32 v{F+2}, v{F+2}, v{F+3}")
    a(f"v_permlane16_swap_b32 v{F}, v{F+2}")
    a(f"v_add_f32 v{F}, v{F}, v{F+2}")
    red("v_add_f32", f"v{F}", (4, 8))
    a(f"v_cvt_pk_bf16_f32 v{F}, v{F}, v{F}")
    a("s_mov_b32 exec_lo, 0x000f000f"); a("s_mov_b32 exec_hi, 0x000f000f")
    a(f"buffer_store_short v{F}, {t3}, {OUT}, {sOff} offen")
    a("L_h_fin:")
    if stamps: finish("h")
    a("L_end:")
    a("s_endpgm")
    a.pad()
    global STAMP_NAMES
    STAMP_NAMES = {k: v[:-1] for k, v in names.items()}
    head = HEADER + f"; @launch grid=(256,1,1) block=({64*NW},1,1) lds={LDS_BYTES}\n"
    head += f'.amdgcn_target "amdgcn-amd-amdhsa--gfx950"\n.text\n.globl {NAME}_kernel\n.p2align 8\n.type {NAME}_kernel,@function\n{NAME}_kernel:\n'
    nv = RING + 4 * RP
    nv = 256 if stamps else max(nv, 224)
    assert not (stamps and RP > 47)
    tail = f'''.section .rodata,"a"
.p2align 6
.amdhsa_kernel {NAME}_kernel
  .amdhsa_next_free_vgpr {nv}
  .amdhsa_next_free_sgpr 102
  .amdhsa_accum_offset {nv}
  .amdhsa_group_segment_fixed_size 0
  .amdhsa_kernarg_size 104
  .amdhsa_user_sgpr_count 2
  .amdhsa_user_sgpr_kernarg_segment_ptr 1
  .amdhsa_system_sgpr_workgroup_id_x 1
  .amdhsa_float_denorm_mode_32 3
.end_amdhsa_kernel
'''
    return head + a.text() + tail

if __name__ == "__main__":
    kw = eval("dict(" + (sys.argv[2] if len(sys.argv) > 2 else "") + ")")
    open(sys.argv[1], "w").write(gen(**kw))
```

```python
import os, sys, struct
def f2u(x): return struct.unpack('<I', struct.pack('<f', x))[0]
from asmlib import Asm

NAME = "concat_heads__mha_block_cached__sliding_block_cached__decode"
_ref = "cdna_kernels/" + NAME + ".s.ref"
HEADER = open(_ref).read().split("; Override launch")[0] if os.path.exists(_ref) else ""

WS_QP = 0x0
WS_ML = 0x40000
WS_PO = 0x48000
WS_FL = 0xC8000
WS_GC = 0xD0000
WS_EP = 0xE4000
WS_Y = 0xE8000
WS_END = WS_Y + 224 * 2048
WS_STAMP = 0x400000
L_WQ = 0
L_WOA = 0
L_WOB = 16384
L_PART = 32768
L_Q = L_PART + 12288
L_CNT = L_Q + 1536
L_PRG = L_CNT + 16
L_TH = L_CNT + 32
L_LOC = L_CNT + 4
L_KB = L_CNT + 512
assert L_KB % 1024 == 0
OOB = 0x40000000
TAGC = (0x9E3779B9, 0x7F4A7C15)
CSCALE = 0x3DB8AA3B
NW = 6

def brev(j, bits): return int(f"{j:0{bits}b}"[::-1], 2)
FULL = "row_mask:0xf bank_mask:0xf"
QP1 = "quad_perm:[1,0,3,2] " + FULL
QP2 = "quad_perm:[2,3,0,1] " + FULL

def gen(D=5, RP=46, R=16, ratio=5, stamps=False, round_s=True, spin=1 << 16, codepf=True, pol="nt",
        force_remote=False, wo_thr=32, DE=None, hsleep=4, fine=False, pfsplit=True, diag=0, DP=None, NDP=24, light=2,
        gov=True, th0=4.5, thmin=2, thmax=6, gain=0.125, gw=0.0, gx=1.0, gsleep=0, gstop=2, nend=0, e5=True, gI=1024, gc=None, nlead=1, rot=1, rotx=4, mlplain=True, NL=28, D0=5, ND0=12, tlb=True):
    DE = DE or D
    DP = DP or D
    a = Asm()
    LG = 8; THMAX = LG - 2
    global NW
    NW = 6 if gov else 5
    sWG = "s2"; sW = "s3"
    KA, VA, KB, VB, WQ, XS, WS, DBG, OUT, WOA, WOB = (f"s[{i}:{i+3}]" for i in (32, 36, 40, 44, 32, 36, 60, 40, 44, 48, 52))
    sX, sR, sH, sB = "s72", "s73", "s74", "s75"
    sOff = "s76"; sCnt = "s77"; sT0 = "s78"; sT1 = "s79"; sT2 = "s80"; sT3 = "s81"
    sRecA = "s82"; sRecB = "s83"; sC = "s87"; sSpin = "s88"; sLocal = "s89"
    sMk1 = "s[90:91]"; sMk0 = "s[92:93]"
    sG = "s84"; sY = "s85"; sU = "s86"
    vL = "v0"; vKo = "v1"; vM = [f"v{i}" for i in range(2, 6)]
    QA = 6; QB = 14; SP = 30; AOP = 34; ACC = 38
    T = ["v46", "v47"]; U = ["v48", "v49"]; V = ["v50", "v51"]; X = ["v52", "v53"]
    t0, t1, t2, t3 = "v54", "v55", "v56", "v57"
    vm, vl, vg, vn = "v58", "v59", "v60", "v61"
    vmB, vlB = "v62", "v63"
    RING = 64
    ACCB = 128; SB = "v136"; vfA = "v137"; MLG = 138; WT = 144; G = 160
    vGo = "v176"; vYo = "v177"; vTr = "v178"; vPa = "v179"
    vPrg = "v180"; vPrA = "v181"; vZ = "v184"; TH = 182
    sTh = ["s94", "s95"]
    def slot(k): return RING + 4 * k
    def vr(i, n=4): return f"v[{i}:{i+n-1}]"
    names = {"s": [], "h": [], "g": []}
    cur = ["s"]
    def stamp(name):
        if not stamps: return
        nm = names[cur[0]]
        if nm:
            a("s_waitcnt lgkmcnt(0)")
            a(f"v_writelane_b32 v255, s96, {len(nm)-1}")
        nm.append(name)
        a("s_memrealtime s[96:97]")
    def finish(tag):
        if not stamps:
            a("s_endpgm"); return
        a("s_mov_b64 exec, -1")
        stamp("end"); stamp("xcc")
        a("s_getreg_b32 s100, hwreg(HW_REG_XCC_ID)")
        a("v_writelane_b32 v255, s100, 31")
        a("s_mov_b32 exec_hi, 0")
        a(f"s_mul_i32 {sT0}, {sWG}, {NW}"); a(f"s_add_u32 {sT0}, {sT0}, {sW}"); a(f"s_lshl_b32 {sT0}, {sT0}, 7"); a(f"s_add_u32 {sT0}, {sT0}, {WS_STAMP}")
        a(f"v_lshl_add_u32 {t0}, {vL}, 2, {sT0}")
        a(f"global_store_dword {t0}, v255, s[28:29]")
        a("s_endpgm")
    def srd(i, lo, hi, size):
        if lo is not None: a(f"s_mov_b32 s{i}, {lo}"); a(f"s_mov_b32 s{i+1}, {hi}")
        a(f"s_mov_b32 s{i+2}, {size}"); a(f"s_mov_b32 s{i+3}, 0x20000")
    def poll(name, loads, check, sleep=0, first_issued=False, masked=False):
        sv = a.vm_seq
        a(f"s_mov_b32 {sSpin}, {spin}")
        if first_issued: a(f"s_branch {name}_chk")
        a(f"{name}:")
        if sleep: a(f"s_sleep {sleep}")
        loads()
        a(f"s_sub_u32 {sSpin}, {sSpin}, 1"); a(f"s_cmp_eq_u32 {sSpin}, 0")
        a("s_waitcnt vmcnt(0) lgkmcnt(0)")
        a(f"s_cbranch_scc1 {name}_go")
        if first_issued: a(f"{name}_chk:")
        check()
        if masked:
            a("s_and_b64 exec, exec, vcc")
            a(f"s_cbranch_scc1 {name}")
        else:
            a(f"s_cbranch_vccnz {name}")
        a(f"{name}_go:")
        if masked: a("s_mov_b64 exec, -1")
        if first_issued: a.vm_seq = sv
    def sentinel(regs):
        regs = list(regs)
        accs = [t0, t2]
        if len(regs) <= 3:
            a(f"v_max_u32 {t0}, v{regs[0]}, v{regs[1]}") if len(regs) == 2 else a(f"v_max3_u32 {t0}, v{regs[0]}, v{regs[1]}, v{regs[2]}")
        else:
            a(f"v_max_u32 {t0}, v{regs[0]}, v{regs[1]}"); a(f"v_max_u32 {t2}, v{regs[2]}, v{regs[3]}")
            for i in range(4, len(regs), 2):
                c = accs[(i >> 1) & 1]
                a(f"v_max3_u32 {c}, {c}, v{regs[i]}, v{regs[i+1]}")
            a(f"v_max_u32 {t0}, {t0}, {t2}")
        a(f"v_cmp_eq_u32 vcc, -1, {t0}")
    def red(op, r, steps):
        for s in steps:
            if s in (16, 32):
                a(f"v_mov_b32 {t1}, {r}"); a(f"v_permlane{s}_swap_b32 {r}, {t1}"); a(f"{op} {r}, {r}, {t1}")
            elif s == "hm": a(f"{op}_dpp {r}, {r}, {r} row_half_mirror {FULL}")
            elif s == "q1": a(f"{op}_dpp {r}, {r}, {r} {QP1}")
            elif s == "q2": a(f"{op}_dpp {r}, {r}, {r} {QP2}")
            else: a(f"{op}_dpp {r}, {r}, {r} row_ror:{s} {FULL}")
    def rnd(r):
        a(f"v_cvt_pk_bf16_f32 {r}, {r}, {r}"); a(f"v_and_b32 {r}, 0xffff0000, {r}")
    def recs():
        a(f"s_lshl_b32 {sRecA}, {sH}, 2"); a(f"s_add_u32 {sRecA}, {sRecA}, {sB}"); a(f"s_lshl_b32 {sRecA}, {sRecA}, 3")
        a(f"s_and_b32 {sT0}, {sR}, 3"); a(f"s_add_u32 {sRecA}, {sRecA}, {sT0}")
        a(f"s_lshl_b32 {sRecB}, {sX}, 6"); a(f"s_add_u32 {sRecB}, {sRecB}, {sR}"); a(f"s_add_u32 {sRecB}, {sRecB}, 512")
    def unit(P):
        a(f"s_mul_i32 {sT0}, {sR}, 37"); a(f"s_lshr_b32 {sT0}, {sT0}, 8")
        a(f"s_mul_i32 {sT1}, {sT0}, 7"); a(f"s_sub_u32 {sT1}, {sR}, {sT1}")
        a(f"s_lshl_b32 {sT2}, {sX}, 2"); a(f"s_add_u32 {sT0}, {sT0}, {sT2}")
        a(f"s_mul_i32 {sU}, {sT0}, {128*896}"); a(f"s_lshl_b32 {sT2}, {sT1}, 7"); a(f"s_add_u32 {sU}, {sU}, {sT2}")
        a(f"s_lshr_b32 {sG}, {sT0}, 1"); a(f"s_lshl_b32 {sG}, {sG}, 14"); a(f"s_and_b32 {sT2}, {sT0}, 1"); a(f"s_lshl_b32 {sT2}, {sT2}, 12")
        a(f"s_add_u32 {sG}, {sG}, {sT2}"); a(f"s_add_u32 {sG}, {sG}, {WS_PO + P*512*512}")
        a(f"s_lshl_b32 {sY}, {sT1}, 13"); a(f"s_lshl_b32 {sT2}, {sT0}, 6"); a(f"s_add_u32 {sY}, {sY}, {sT2}")
        a(f"s_add_u32 {sY}, {sY}, {WS_Y + P*112*2048}")
    def unit_v():
        a(f"v_lshrrev_b32 {t0}, 2, {vn}"); a(f"v_and_b32 {t2}, 3, {vn}")
        a(f"v_lshlrev_b32 {vGo}, 4, {vL}")
        a(f"v_mul_u32_u24 {vYo}, {28*2048}, {t0}"); a(f"v_lshl_add_u32 {vYo}, {vg}, 4, {vYo}")
        a(f"v_lshl_add_u32 {vTr}, {vg}, 3, {t0}"); a(f"v_lshlrev_b32 {vTr}, 7, {vTr}"); a(f"v_lshl_add_u32 {vTr}, {t2}, 3, {vTr}")

    def tag_load(): a(f"s_load_dwordx2 s[56:57], s[28:29], {WS_EP}")
    def tag_make():
        a(f"s_add_u32 s56, s56, {TAGC[0]}"); a(f"s_addc_u32 s57, s57, {TAGC[1]}"); a("s_lshr_b32 s58, s57, 4")
    def tag_chk(regs):
        for i, r in enumerate(regs):
            a(f"v_lshrrev_b32 {t1}, 4, v{r+1}"); a(f"v_xor_b32 {t1}, s58, {t1}"); a(f"v_xor_b32 {t2}, s56, v{r}")
            if i: a(f"v_or3_b32 {t0}, {t0}, {t1}, {t2}")
            else: a(f"v_or_b32 {t0}, {t1}, {t2}")
        a(f"v_cmp_ne_u32 vcc, 0, {t0}")

    a(f"s_cmp_ge_u32 {sWG}, 256")
    a("s_cbranch_scc1 L_end")
    stamp("start"); names["h"] = list(names["s"]); names["g"] = list(names["s"])
    a("s_load_dwordx16 s[4:19], s[0:1], 0")
    a("s_load_dwordx8 s[20:27], s[0:1], 64")
    a("s_load_dwordx2 s[28:29], s[0:1], 96")
    a(f"v_lshrrev_b32 {t2}, 6, v0")
    a(f"v_and_b32 {vL}, 63, v0")
    a(f"v_readfirstlane_b32 {sW}, {t2}")
    a(f"v_lshrrev_b32 {vg}, 4, {vL}")
    a(f"v_and_b32 {vn}, 15, {vL}")
    a(f"s_and_b32 {sX}, {sWG}, 7")
    a(f"s_lshr_b32 {sR}, {sWG}, 3")
    a(f"s_lshr_b32 {sT0}, {sR}, 4")
    a(f"s_lshl_b32 {sH}, {sX}, 1")
    a(f"s_add_u32 {sH}, {sH}, {sT0}")
    a(f"s_bfe_u32 {sB}, {sR}, 0x20002")
    a(f"s_cmp_ge_u32 {sW}, 4")
    a("s_cbranch_scc1 L_helper")

    a(f"v_lshlrev_b32 {vKo}, 4, {vn}")
    a(f"v_lshl_add_u32 {vKo}, {vg}, 9, {vKo}")
    a(f"v_lshl_add_u32 {vKo}, {t2}, 11, {vKo}")
    a(f"s_lshl_b32 s40, {sB}, 4"); a(f"s_add_u32 s40, s40, {sH}"); a("s_lshl_b32 s40, s40, 2")
    a(f"s_and_b32 s41, {sR}, 3"); a("s_add_u32 s40, s40, s41"); a("s_lshl_b32 s40, s40, 19")
    srd(32, None, None, 0x80000)
    sRot = "s95"
    rotate = rot or rotx
    a(f"s_mov_b32 {sOff}, 0")
    def advance(n):
        a(f"s_add_u32 {sOff}, {sOff}, 8192")
        if rotate and 128 <= n < 160: a(f"s_bitset0_b32 {sOff}, 16")
    a("s_waitcnt lgkmcnt(0)")
    a("s_add_u32 s32, s6, s40"); a("s_addc_u32 s33, s7, 0")
    ids = {}
    NTOT = 288
    def srd_of(n): return KA if n < 128 else KB if n < 144 else VB if n < 160 else VA
    RT = RP + NL
    def kslot(n): return n if n < RP else R + (n - RP) % 8 if n < RT else (n - RT) % R
    sLb = "s64"
    def issue(n):
        if n in (128, 144, 160): a(f"s_mov_b32 {sOff}, {sRot if rotate and n < 160 else 0}")
        if RP <= n < RT:
            a(f"s_add_u32 m0, {sLb}, {256 + (n - RP) * 1024 - 256 * (n & 1)}")
            ids[n] = a(f"buffer_load_dwordx4 {vKo}, {srd_of(n)}, {sOff} offen offset:{256*(n&1)} {pol} lds")
        else:
            ids[n] = a(f"buffer_load_dwordx4 {vr(slot(kslot(n)))}, {vKo}, {srd_of(n)}, {sOff} offen offset:{256*(n&1)} {pol}")
        if n & 1: advance(n)
    for n in range(D0): issue(n)
    issued = D0
    stamp("k0")
    a("s_add_u32 s36, s8, s40"); a("s_addc_u32 s37, s9, 0"); srd(36, None, None, 0x80000)
    a(f"s_lshr_b32 s44, {sR}, 3"); a("s_lshl_b32 s44, s44, 3"); a(f"s_add_u32 s44, s44, {sX}"); a("s_lshl_b32 s44, s44, 5")
    a(f"s_and_b32 s45, {sR}, 7"); a("s_add_u32 s44, s44, s45"); a("s_add_u32 s44, s44, 24"); a("s_lshl_b32 s44, s44, 16")
    a("s_add_u32 s40, s16, s44"); a("s_addc_u32 s41, s17, 0"); srd(40, None, None, 0x10000)
    a("s_add_u32 s44, s18, s44"); a("s_addc_u32 s45, s19, 0"); srd(44, None, None, 0x10000)
    srd(60, "s28", "s29", WS_END)
    recs(); unit(0)
    if rotate:
        a(f"s_mul_i32 {sRot}, {sR}, {rot}"); a(f"s_mul_i32 {sT0}, {sX}, {rotx}"); a(f"s_add_u32 {sRot}, {sRot}, {sT0}")
        a(f"s_and_b32 {sRot}, {sRot}, 7"); a(f"s_lshl_b32 {sRot}, {sRot}, 13")
    a(f"s_mov_b32 {sC}, {CSCALE}")
    a("s_mov_b32 s90, 0xcccccccc"); a("s_mov_b32 s91, 0xcccccccc")
    a("s_mov_b32 s92, 0xaaaaaaaa"); a("s_mov_b32 s93, 0xaaaaaaaa")
    a(f"v_bfe_u32 {t0}, {vL}, 1, 2")
    a(f"v_mov_b32 {t2}, 0xffff"); a(f"v_mov_b32 {t1}, 0xffff0000")
    a(f"v_cndmask_b32 {t2}, {t2}, {t1}, {sMk0}")
    for j in range(4):
        a(f"v_cmp_eq_u32 vcc, {j}, {t0}")
        a(f"v_cndmask_b32 {vM[j]}, 0, {t2}, vcc")
    a(f"v_lshlrev_b32 {t3}, 4, {vn}")
    a(f"s_mul_i32 {sLb}, {sW}, {NL * 1024}"); a(f"s_add_u32 {sLb}, {sLb}, {L_KB - 256}")
    landed = -1
    def throttled_issue():
        nonlocal issued, landed
        d = D0 if issued < ND0 else D
        if issued - d > landed:
            landed = issued - d; a.wait_vm(ids[landed])
        issue(issued); issued += 1
    while issued < RT:
        throttled_issue()
        if fine and issued in (D0 + 1, 16, 26, 36, 46, 56, 66): stamp(f"ki{issued}")
    stamp("ring_full")
    a("s_barrier")
    a(f"ds_read_b128 {vr(QA)}, {t3} offset:{L_Q+1024}"); a(f"ds_read_b128 {vr(QA+4)}, {t3} offset:{L_Q+1024+256}")
    for k in range(4): a(f"ds_read_b128 {vr(QB+4*k)}, {t3} offset:{L_Q+256*k}")
    a(f"v_mov_b32 {t0}, 0"); a(f"ds_read_b32 {t0}, {t0} offset:{L_LOC}")
    a("s_waitcnt lgkmcnt(0)")
    a(f"v_readfirstlane_b32 {sLocal}, {t0}")
    stamp("q_ready")
    def store2(tag, text):
        if not mlplain:
            a(text + " sc1"); return
        a(f"s_cmp_eq_u32 {sLocal}, 1"); a(f"s_cbranch_scc1 L_{tag}_l")
        a(text + " sc1"); a.vm_seq -= 1
        a(f"s_branch L_{tag}_d")
        a(f"L_{tag}_l:")
        a(text)
        a(f"L_{tag}_d:")

    def tree(j, acc, dst_fn):
        u = U[(j >> 1) & 1]
        a(f"v_add_f32_dpp {u}, {acc}, {acc} row_ror:8 row_mask:0xf bank_mask:{'0xc' if j & 1 else '0x3'}")
        if not j & 1: return
        v = V[(j >> 2) & 1]
        a(f"v_add_f32_dpp {v}, {u}, {u} row_half_mirror row_mask:0xf bank_mask:{'0xa' if j & 2 else '0x5'}")
        if not j & 2: return
        a(f"v_add_f32_dpp {v}, {v}, {v} {QP2}")
        if not j & 4: return
        x = X[(j >> 3) & 1]
        a(f"v_cndmask_b32 {x}, {V[0]}, {V[1]}, {sMk1}")
        a(f"v_add_f32_dpp {x}, {x}, {x} {QP1}")
        if not j & 8: return
        dst_fn()
    def procK(n, k):
        j = (n >> 1) & 15; hf = n & 1
        acc = T[j & 1]
        for e in range(4):
            a(f"v_dot2_f32_bf16 {acc}, v{slot(k)+e}, v{QA+4*hf+e}, {acc if (hf or e) else 0}")
        if not hf: return
        def dst():
            for e in range(3): a(f"v_mov_b32 v{SP+e}, v{SP+e+1}")
            a(f"v_cndmask_b32 v{SP+3}, {X[0]}, {X[1]}, {sMk0}")
        tree(j, acc, dst)
    def procKB(n, k):
        j = (n - 128) >> 1; hf = n & 1
        for hd in range(2):
            for e in range(4):
                a(f"v_dot2_f32_bf16 {T[hd]}, v{slot(k)+e}, v{QB+8*hd+4*hf+e}, {T[hd] if (hf or e) else 0}")
        if not hf: return
        for hd in range(2):
            tree(2 * j + hd, T[hd], lambda: a(f"v_cndmask_b32 {SB}, {X[0]}, {X[1]}, {sMk0}"))
    def procVB(n, k):
        j = (n - 144) >> 1; hf = n & 1
        if not hf:
            a(f"v_mov_b32_dpp {t0}, {SB} row_newbcast:{brev(j,3)} row_mask:0xf bank_mask:0x3")
            a(f"v_mov_b32_dpp {t0}, {SB} row_newbcast:{8+brev(j,3)} row_mask:0xf bank_mask:0xc")
            for e in range(4): a(f"v_and_b32 v{AOP+e}, {t0}, {vM[e]}")
        a(f"v_mfma_f32_16x16x32_bf16 {vr(ACCB+4*hf)}, {vr(AOP)}, {vr(slot(k))}, {vr(ACCB+4*hf) if j else 0}")
    def procV(n, k):
        j = (n >> 1) & 15; hf = n & 1
        if not hf:
            for e in range(4):
                a(f"v_and_b32_dpp v{AOP+e}, v{SP}, {vM[e]} row_newbcast:{brev(j,4)} {FULL}")
        a(f"v_mfma_f32_16x16x32_bf16 {vr(ACC+4*hf)}, {vr(AOP)}, {vr(slot(k))}, {vr(ACC+4*hf)}")
        if hf and j == 15:
            for e in range(3): a(f"v_mov_b32 v{SP+e}, v{SP+e+1}")
    p = 0; burst = 0
    AH = 4
    a(f"v_lshl_add_u32 {t3}, {vL}, 4, {sLb}")
    while not (p % 4 == 0 and issued - p == LG and p >= RT):
        if issued - p == LG: throttled_issue()
        n = p + AH
        if RP <= n < RT:
            assert n <= landed and kslot(n) < p
            a(f"ds_read_b128 {vr(slot(kslot(n)))}, {t3} offset:{256 + (n - RP) * 1024}")
        if RP <= p < RT: a(f"s_waitcnt lgkmcnt({min(AH, RT - 1 - p)})")
        assert p <= landed
        procK(p, kslot(p)); p += 1
        free = (issued - R < p) if issued >= RT + R else (issued - RT < p)
        if issued - p > LG and free and (burst < D or p % ratio == 0):
            throttled_issue(); burst += 1
        assert p <= 128 - LG
    P0 = p
    if gov:
        a(f"s_lshl_b32 {sT0}, {sW}, 2"); a(f"s_add_u32 {sT0}, {sT0}, {L_PRG}")
        a(f"v_mov_b32 {vPrA}, {sT0}"); a(f"v_mov_b32 {vPrg}, 0")
        a(f"s_mov_b32 {sTh[0]}, {int(th0)}")
    stamp("caught_up")
    nlad = [0]
    def throttle(j):
        if not gov:
            a(f"s_waitcnt vmcnt({int(th0)})"); return
        if j & 1:
            a("s_waitcnt lgkmcnt(0)")
            a(f"v_readfirstlane_b32 {sTh[0]}, v{TH}")
        nlad[0] += 1
        assert thmax <= THMAX
        for th in range(thmax, thmin - 1, -1):
            a(f"s_waitcnt vmcnt({th})")
            if th > thmin:
                a(f"s_cmp_ge_u32 {sTh[0]}, {th}"); a(f"s_cbranch_scc1 L_lad{nlad[0]}")
        a(f"L_lad{nlad[0]}:")
    def post(j):
        if not gov: return
        a(f"v_add_u32 {vPrg}, 1, {vPrg}")
        a(f"ds_write_b32 {vPrA}, {vPrg}")
        if not j & 1: a(f"ds_read_b32 v{TH}, {vPrA} offset:{L_TH - L_PRG}")
    def loop(name, n0, nend_, proc, head=None, lead=0):
        iters = (nend_ - n0) // 32
        a(f"s_mov_b32 {sCnt}, {iters}")
        a(f"{name}:")
        if head: head()
        for q in range(0, 32, 2):
            if q == 32 - LG - lead:
                a(f"s_sub_u32 {sCnt}, {sCnt}, 1"); a(f"s_cmp_eq_u32 {sCnt}, 0"); a(f"s_cbranch_scc1 {name}_x")
            throttle(q >> 1)
            for n in (n0 + q + LG, n0 + q + LG + 1):
                a(f"buffer_load_dwordx4 {vr(slot(kslot(n)))}, {vKo}, {srd_of(n0)}, {sOff} offen offset:{256*(n&1)} {pol}")
            advance(n0)
            post(q >> 1)
            proc(n0 + q, kslot(n0 + q)); proc(n0 + q + 1, kslot(n0 + q + 1))
        a(f"s_branch {name}")
    def loop_exit(name, nend_, lead=0):
        a(f"{name}_x:")
        for k in range(LG): ids[nend_ - LG - lead + k] = a.vm_seq - (LG - 1 - k)
    pl = (p + 31) // 32 * 32
    kloop = pl <= 64
    while p < (pl if kloop else 128 - LG):
        throttle(p >> 1); issue(p + LG); issue(p + LG + 1); post(p >> 1)
        procK(p, kslot(p)); procK(p + 1, kslot(p + 1)); p += 2
    if kloop:
        loop("L_k", p, 128, procK); loop_exit("L_k", 128)
    def softmaxA():
        if round_s:
            for e in range(4): rnd(f"v{SP+e}")
        a(f"v_max3_f32 {vm}, v{SP}, v{SP+1}, v{SP+2}"); a(f"v_max_f32 {vm}, {vm}, v{SP+3}")
        red("v_max_f32", vm, (8, 4, 2, 1, 16, 32))
        a(f"v_mul_f32 {vm}, {sC}, {vm}")
        for e in range(4): a(f"v_fma_f32 v{SP+e}, v{SP+e}, {sC}, -{vm}")
        for e in range(4): a(f"v_exp_f32 v{SP+e}, v{SP+e}")
        a(f"v_add_f32 {vl}, v{SP}, v{SP+1}"); a(f"v_add_f32 {t0}, v{SP+2}, v{SP+3}"); a(f"v_add_f32 {vl}, {vl}, {t0}")
        for e in range(4): a(f"v_cvt_pk_bf16_f32 v{SP+e}, v{SP+e}, v{SP+e}")
    def softmaxA2():
        red("v_add_f32", vl, (8, 4, 2, 1, 16, 32))
        for e in range(8): a(f"v_mov_b32 v{ACC+e}, 0")
        a(f"v_min_u32 {vm}, -2, {vm}"); a(f"v_min_u32 {vl}, -2, {vl}")
        a(f"s_lshl_b32 {sT0}, {sRecA}, 2"); a(f"s_add_u32 {sT0}, {sT0}, {sW}"); a(f"s_lshl_b32 {sT0}, {sT0}, 3"); a(f"s_add_u32 {sT0}, {sT0}, {WS_ML}")
        a("s_mov_b64 exec, 1")
        store2("mla", f"buffer_store_dwordx2 v[58:59], off, {WS}, {sT0}")
        a("s_mov_b64 exec, -1")
    def softmaxB():
        if round_s: rnd(SB)
        a(f"v_mul_f32 {SB}, {sC}, {SB}")
        a(f"v_max_f32_dpp {vmB}, {SB}, {SB} row_half_mirror {FULL}")
        red("v_max_f32", vmB, ("q1", "q2", 16, 32))
        a(f"v_sub_f32 {SB}, {SB}, {vmB}"); a(f"v_exp_f32 {SB}, {SB}")
        a(f"v_add_f32_dpp {vlB}, {SB}, {SB} row_half_mirror {FULL}")
        a(f"v_cvt_pk_bf16_f32 {SB}, {SB}, {SB}")
    def softmaxB2():
        red("v_add_f32", vlB, ("q1", "q2", 16, 32))
        a(f"v_min_u32 {vmB}, -2, {vmB}"); a(f"v_min_u32 {vlB}, -2, {vlB}")
        a(f"s_lshl_b32 {sT0}, {sRecB}, 2"); a(f"s_add_u32 {sT0}, {sT0}, {sW}"); a(f"s_lshl_b32 {sT0}, {sT0}, 3"); a(f"s_add_u32 {sT0}, {sT0}, {WS_ML}")
        a(f"v_lshlrev_b32 {t2}, 7, {vn}")
        a("s_mov_b64 exec, 0x101")
        store2("mlb", f"buffer_store_dwordx2 v[62:63], {t2}, {WS}, {sT0} offen")
        a("s_mov_b64 exec, -1")
    for n in range(128 - LG, 160):
        if not n & 1:
            throttle(n >> 1); issue(n + LG); issue(n + LG + 1); post(n >> 1)
        (procK if n < 128 else procKB if n < 144 else procVB)(n, kslot(n))
        if n == 127: stamp("K_done"); softmaxA()
        if n == 128: softmaxA2()
        if n == 130: unit_v()
        if n == 132:
            a(f"s_lshl_b32 {sT0}, {sW}, 5"); a(f"s_add_u32 {sT0}, {sT0}, {L_WOA}"); a(f"v_add_u32 {vTr}, {sT0}, {vTr}")
            a(f"s_lshl_b32 {sT0}, {sW}, 11"); a(f"s_add_u32 {sY}, {sY}, {sT0}")
            a(f"v_and_b32 {t0}, 1, {vg}"); a(f"v_lshlrev_b32 {t0}, 4, {t0}"); a(f"v_lshl_add_u32 {t0}, {vn}, 5, {t0}")
            a(f"s_lshl_b32 {sT0}, {sW}, 10"); a(f"s_add_u32 {sT0}, {sT0}, {L_PART}")
            a(f"v_add_u32 {vPa}, {sT0}, {t0}")
        if n == 143: softmaxB()
        if n == 145: softmaxB2()
    stamp("B_done")
    def vhead():
        a(f"s_cmp_eq_u32 {sCnt}, 3"); a("s_cbranch_scc1 L_ml_issue")
        a(f"s_cmp_eq_u32 {sCnt}, 2"); a("s_cbranch_scc1 L_ml_use")
        a("L_v_body:")
    lead = nend
    assert lead % 4 == 0 and lead <= 32 - LG
    loop("L_v", 160, NTOT, procV, vhead, lead)
    sv = a.vm_seq
    def ml_loads():
        a(f"buffer_load_dwordx2 {vr(MLG,2)}, {U[0]}, {WS}, {sT0} offen sc1")
        a(f"buffer_load_dwordx2 {vr(MLG+2,2)}, {U[1]}, {WS}, {sT1} offen sc1")
    a("L_ml_issue:")
    a(f"s_andn2_b32 {sT0}, {sRecA}, 7"); a(f"s_lshl_b32 {sT0}, {sT0}, 5"); a(f"s_add_u32 {sT0}, {sT0}, {WS_ML}")
    a(f"s_andn2_b32 {sT1}, {sRecB}, 7"); a(f"s_lshl_b32 {sT1}, {sT1}, 5"); a(f"s_add_u32 {sT1}, {sT1}, {WS_ML}")
    a(f"v_lshlrev_b32 {U[0]}, 3, {vn}")
    a(f"v_and_b32 {t0}, 31, {vL}"); a(f"v_lshlrev_b32 {t0}, 3, {t0}"); a(f"v_lshrrev_b32 {t1}, 5, {vL}"); a(f"v_lshl_add_u32 {U[1]}, {t1}, 10, {t0}")
    ml_loads()
    a("s_branch L_v_body")
    a("L_ml_use:")
    poll("L_ml", ml_loads, lambda: sentinel(range(MLG, MLG + 4)), sleep=2, first_issued=True)
    MA, MB = V
    a(f"v_max_f32_dpp {MA}, v{MLG}, v{MLG} row_ror:8 {FULL}"); a(f"v_max_f32_dpp {MB}, v{MLG+2}, v{MLG+2} row_ror:8 {FULL}")
    for s in (4, 2, 1):
        a(f"v_max_f32_dpp {MA}, {MA}, {MA} row_ror:{s} {FULL}"); a(f"v_max_f32_dpp {MB}, {MB}, {MB} row_ror:{s} {FULL}")
    red("v_max_f32", MB, (16,))
    a(f"v_mov_b32_dpp {t3}, {vmB} row_newbcast:0 row_mask:0x3 bank_mask:0xf")
    a(f"v_mov_b32_dpp {t3}, {vmB} row_newbcast:8 row_mask:0xc bank_mask:0xf")
    a(f"v_sub_f32 v{MLG}, v{MLG}, {MA}"); a(f"v_sub_f32 v{MLG+2}, v{MLG+2}, {MB}")
    a(f"v_sub_f32 {vfA}, {vm}, {MA}"); a(f"v_sub_f32 {t3}, {t3}, {MB}")
    a(f"v_exp_f32 v{MLG}, v{MLG}"); a(f"v_exp_f32 v{MLG+2}, v{MLG+2}"); a(f"v_exp_f32 {vfA}, {vfA}"); a(f"v_exp_f32 {t3}, {t3}")
    a(f"v_mul_f32 {MA}, v{MLG}, v{MLG+1}"); a(f"v_mul_f32 {MB}, v{MLG+2}, v{MLG+3}")
    for s in (8, 4, 2, 1):
        a(f"v_add_f32_dpp {MA}, {MA}, {MA} row_ror:{s} {FULL}"); a(f"v_add_f32_dpp {MB}, {MB}, {MB} row_ror:{s} {FULL}")
    red("v_add_f32", MB, (16,))
    a(f"v_rcp_f32 {MA}, {MA}"); a(f"v_rcp_f32 {MB}, {MB}")
    a(f"v_mul_f32 {vfA}, {vfA}, {MA}"); a(f"v_mul_f32 {t3}, {t3}, {MB}")
    for e in range(8): a(f"v_mul_f32 v{ACCB+e}, v{ACCB+e}, {t3}")
    a(f"v_lshrrev_b32 {t1}, 1, {vg}"); a(f"v_lshl_add_u32 {t0}, {t1}, 12, {vPa}")
    a(f"ds_write_b128 {t0}, {vr(ACCB)}"); a(f"ds_write_b128 {t0}, {vr(ACCB+4)} offset:512")
    a(f"v_lshl_add_u32 {vPa}, {t1}, 9, {vPa}")
    a(f"v_mov_b32 {t0}, {L_CNT}"); a(f"v_mov_b32 {t2}, 1")
    a("s_waitcnt lgkmcnt(0)")
    a("s_mov_b64 exec, 1")
    a(f"ds_add_u32 {t0}, {t2}")
    a("s_mov_b64 exec, -1")
    a("s_branch L_v_body")
    a.vm_seq = sv
    loop_exit("L_v", NTOT, lead)
    issued = NTOT - lead
    for n in range(NTOT - LG - lead, NTOT):
        a.wait_vm(ids[n])
        if issued < NTOT:
            issue(issued); issued += 1
        procV(n, kslot(n))
    stamp("stream_done")
    a("s_mov_b32 vcc_lo, 0"); a("s_mov_b32 vcc_hi, -1")
    for e in range(4): a(f"v_cndmask_b32 v{ACC+e}, v{ACC+e}, v{ACC+4+e}, vcc")
    for e in range(4): a(f"v_mul_f32 v{ACC+e}, v{ACC+e}, {vfA}")
    a(f"ds_write_b128 {vPa}, {vr(ACC)} offset:8192")
    a("s_waitcnt lgkmcnt(0)")
    a("s_barrier")
    a(f"s_cmp_ge_u32 {sR}, 28"); a("s_cbranch_scc1 L_s_fin")
    for k in range(4):
        a(f"ds_read_b64_tr_b16 {vr(WT+4*k,2)}, {vTr} offset:{4096*k}")
        a(f"ds_read_b64_tr_b16 {vr(WT+4*k+2,2)}, {vTr} offset:{4096*k+512}")
    def gA():
        for k in range(4): a(f"buffer_load_dwordx4 {vr(G+4*k)}, {vGo}, {WS}, {sG} offen offset:{1024*k} sc1")
    if light == 1:
        a("s_mov_b64 exec, 0xffff")
        poll("L_s2l", lambda: a(f"buffer_load_dword v{G}, {vGo}, {WS}, {sG} offen offset:{3*1024+768+12} sc1"), lambda: a(f"v_cmp_eq_u32 vcc, -1, v{G}"))
        a("s_mov_b64 exec, -1")
    poll("L_s2", gA, lambda: sentinel(range(G, G + 16)), masked=(light == 2))
    stamp("gathered")
    for k in range(4):
        a(f"v_mfma_f32_16x16x32_bf16 {vr(ACC)}, {vr(WT+4*k)}, {vr(G+4*k)}, {vr(ACC) if k else 0}")
    for qp in (QP1, QP2):
        for e in range(4): a(f"v_add_f32_dpp v{ACC+e}, v{ACC+e}, v{ACC+e} {qp}")
    for e in range(4): a(f"v_min_u32 v{ACC+e}, -2, v{ACC+e}")
    a("s_mov_b32 exec_lo, 0x11111111"); a("s_mov_b32 exec_hi, 0x11111111")
    a(f"buffer_store_dwordx4 {vr(ACC)}, {vYo}, {WS}, {sY} offen sc1")
    if stamps:
        a("s_branch L_s_fin2")
        a("L_s_fin:")
        names["s"].pop(); stamp("gathered")
        a("L_s_fin2:")
    else:
        a("L_s_fin:")
    if e5: a("s_barrier")
    finish("s")

    if gov:
        cur[0] = "g"
        a("L_gov:")
        vA4 = "v2"; vBo = "v3"; vPw = "v4"; vP = "v5"; vPp = "v6"; vB = "v7"; vTh = "v8"
        a(f"v_and_b32 {vA4}, 3, {vL}"); a(f"v_lshlrev_b32 {vA4}, 2, {vA4}")
        a(f"v_mov_b32 {vPp}, 0"); a(f"v_mov_b32 {vTh}, {int(th0)}")
        a(f"ds_write_b32 {vA4}, {vPp} offset:{L_PRG}"); a(f"ds_write_b32 {vA4}, {vTh} offset:{L_TH}")
        gc_ = gI // 2 if gc is None else gc
        sTg = sU; sPo = sRecA; sGa = sRecB
        a(f"s_mul_i32 {sG}, {sX}, 4352"); a(f"s_add_u32 {sG}, {sG}, {WS_GC}")
        a(f"v_lshlrev_b32 {vBo}, 2, {vL}")
        a(f"s_lshl_b32 {sT0}, {sR}, 2"); a(f"s_add_u32 {sOff}, {sG}, {sT0}")
        a(f"s_sub_u32 {sT0}, {sR}, 28")
        a(f"s_mul_i32 {sGa}, {sT0}, 4352"); a(f"s_add_u32 {sGa}, {sGa}, {WS_GC + 8*4352}")
        a(f"s_mul_i32 {sT1}, {sT0}, {8 // nlead}"); a(f"s_add_u32 {sT1}, {sT1}, {sX}"); a(f"s_and_b32 {sT1}, {sT1}, 7")
        a(f"s_mul_i32 {sTg}, {sT1}, {gI // 8}"); a(f"s_add_u32 {sTg}, {sTg}, {gI // 8}")
        a(f"s_cmp_lt_u32 {sT0}, {nlead if gx else 0}"); a(f"s_cselect_b32 {sTg}, {sTg}, -1")
        a(f"s_mov_b32 {sPo}, 0")
        a(f"s_and_b32 {sT0}, {sT0}, 7"); a(f"s_lshl_b32 {sCnt}, {sT0}, 12"); a(f"s_add_u32 {sCnt}, {sCnt}, {WS_FL + 128}")
        a(f"v_mov_b32 {vB}, 0")
        a("s_waitcnt lgkmcnt(0)")
        tag_load()
        if tlb:
            a(f"s_lshl_b32 s40, {sB}, 4"); a(f"s_add_u32 s40, s40, {sH}"); a("s_lshl_b32 s40, s40, 21")
            a(f"s_lshr_b32 s41, {sR}, 3"); a("s_lshl_b32 s41, s41, 3"); a(f"s_add_u32 s41, s41, {sX}"); a("s_lshl_b32 s41, s41, 21"); a("s_add_u32 s41, s41, 0x180000")
            a(f"s_mul_i32 s42, {sX}, {512*896}")
            for i, (pp, o) in enumerate(((12, 42), (22, 42), (16, 41), (18, 41), (8, 40))):
                a(f"s_add_u32 s{pp}, s{pp}, s{o}"); a(f"s_addc_u32 s{pp+1}, s{pp+1}, 0")
                a(f"s_load_dword s{44+i}, s[{pp}:{pp+1}], 0")
        srd(60, "s28", "s29", WS_END)
        a("s_waitcnt lgkmcnt(0)")
        tag_make()
        a("s_barrier")
        a(f"ds_read_b32 v10, {vB} offset:{L_LOC}")
        a("s_waitcnt lgkmcnt(0)")
        a(f"v_readfirstlane_b32 {sLocal}, v10")
        a(f"s_cmp_lg_u32 {sLocal}, 1"); a("s_cbranch_scc1 L_gend")
        poll("L_g0", lambda: a(f"ds_read_b32 {vPw}, {vA4} offset:{L_PRG}"), lambda: a(f"v_cmp_eq_u32 vcc, 0, {vPw}"), sleep=4)
        a(f"s_cmp_eq_u32 {sTg}, -1"); a("s_cbranch_scc1 L_gall_skip")
        poll("L_gall", lambda: a(f"buffer_load_dwordx2 v[10:11], off, {WS}, {sCnt} sc1"), lambda: tag_chk([10]), sleep=8)
        a("L_gall_skip:")
        stamp("start_gov")
        total = (NTOT - LG - lead - P0) // 2 * 4
        if stamps: a(f"s_mov_b32 {sY}, 0")
        a(f"s_mov_b32 {sSpin}, {spin}")
        a("L_gloop:")
        if gsleep: a(f"s_sleep {gsleep}")
        a(f"ds_read_b32 {vPw}, {vA4} offset:{L_PRG}")
        a(f"s_sub_u32 {sSpin}, {sSpin}, 1"); a(f"s_cmp_eq_u32 {sSpin}, 0"); a("s_cbranch_scc1 L_gend")
        a("s_waitcnt lgkmcnt(0)")
        a(f"v_add_u32_dpp {vP}, {vPw}, {vPw} {QP1}"); a(f"v_add_u32_dpp {vP}, {vP}, {vP} {QP2}")
        a("s_mov_b64 exec, 1")
        a(f"buffer_store_dword {vP}, off, {WS}, {sOff}")
        a(f"v_cmp_le_u32 vcc, {total - 4 * gstop}, {vP}")
        a("s_cbranch_vccnz L_gend")
        a("s_mov_b32 exec_lo, -1"); a("s_mov_b32 exec_hi, 1")
        a(f"buffer_load_dword {vB}, {vBo}, {WS}, {sG} offen sc1")
        a("s_mov_b64 exec, -1")
        a(f"v_add_u32 {t0}, {vP}, {vPp}"); a(f"v_mov_b32 {vPp}, {vP}"); a(f"v_cvt_f32_u32 {t0}, {t0}")
        a(f"v_mul_f32 {t0}, {f2u(-0.5 * gain)}, {t0}"); a(f"v_add_f32 {t0}, {f2u(th0 + 0.5)}, {t0}")
        if gw:
            a(f"v_lshlrev_b32 {vPw}, 2, {vPw}"); a(f"v_sub_u32 {vPw}, {vP}, {vPw}"); a(f"v_cvt_f32_i32 {vPw}, {vPw}")
            a(f"v_mul_f32 {vPw}, {f2u(gw)}, {vPw}"); a(f"v_add_f32 {t0}, {t0}, {vPw}")
        a("s_waitcnt vmcnt(0)")
        a(f"v_add_u32_dpp {t1}, {vB}, {vB} row_ror:8 {FULL}")
        a(f"v_readlane_b32 {sT3}, {vB}, 32")
        for sft in (4, 2, 1): a(f"v_add_u32_dpp {t1}, {t1}, {t1} row_ror:{sft} {FULL}")
        a(f"v_readlane_b32 {sT0}, {t1}, 0"); a(f"v_readlane_b32 {sT1}, {t1}, 16")
        a(f"v_cvt_f32_i32 v11, {sT3}")
        a(f"s_add_u32 {sT2}, {sT0}, {sT1}")
        a(f"v_cvt_f32_u32 v10, {sT2}")
        a(f"v_mul_f32 v10, {f2u(gain / 32)}, v10"); a(f"v_mul_f32 v11, {f2u(gain * gx / 256)}, v11")
        a(f"v_add_f32 {t0}, {t0}, v10"); a(f"v_add_f32 {t0}, {t0}, v11")
        if stamps:
            a(f"v_readfirstlane_b32 {sT0}, {t0}")
            a(f"s_lshr_b32 {sT1}, {sY}, 1"); a(f"s_add_u32 {sT1}, {sT1}, 3"); a(f"s_min_u32 m0, {sT1}, 30"); a(f"s_add_u32 {sY}, {sY}, 1"); a(f"v_writelane_b32 v254, {sT0}, m0")
            a(f"v_writelane_b32 v254, {sY}, 2")
        a(f"v_cvt_i32_f32 {vTh}, {t0}")
        a(f"v_med3_i32 {vTh}, {vTh}, {thmin}, {thmax}")
        a(f"ds_write_b32 {vA4}, {vTh} offset:{L_TH}")
        a(f"s_cmp_lt_u32 {sT2}, {sTg}"); a("s_cbranch_scc1 L_gloop")
        a(f"s_sub_u32 {sT0}, {sT2}, {sPo}")
        a(f"s_atomic_add {sT0}, s[28:29], {sGa} glc")
        a(f"s_add_u32 {sTg}, {sTg}, {gI}")
        a(f"s_sub_u32 {sT1}, {gc_}, {sT2}"); a(f"s_mul_i32 {sT1}, {sT1}, 7"); a(f"s_sub_u32 {sT1}, {sT1}, {sPo}")
        a(f"s_mov_b32 {sPo}, {sT2}")
        a("s_waitcnt lgkmcnt(0)")
        a(f"s_add_u32 {sT0}, {sT0}, {sT1}")
        a(f"v_mov_b32 v10, {sT0}")
        a("s_mov_b64 exec, 1")
        a(f"buffer_store_dword v10, off, {WS}, {sG} offset:128")
        a("s_mov_b64 exec, -1")
        a("s_branch L_gloop")
        a("L_gend:")
        if stamps:
            a("s_mov_b64 exec, -1")
            a("s_waitcnt lgkmcnt(0)")
            a("v_writelane_b32 v254, s96, 1"); a("v_readlane_b32 s96, v255, 0"); a("s_nop 3"); a("v_writelane_b32 v254, s96, 0")
            a("s_mov_b32 exec_hi, 0")
            a(f"s_mul_i32 {sT0}, {sWG}, {NW}"); a(f"s_add_u32 {sT0}, {sT0}, {sW}"); a(f"s_lshl_b32 {sT0}, {sT0}, 7"); a(f"s_add_u32 {sT0}, {sT0}, {WS_STAMP}")
            a(f"v_lshl_add_u32 {t0}, {vL}, 2, {sT0}")
            a(f"global_store_dword {t0}, v254, s[28:29]")
        a("s_endpgm")
    cur[0] = "h"
    a("L_helper:")
    if gov:
        a(f"s_cmp_eq_u32 {sW}, 5"); a("s_cbranch_scc1 L_gov")
    if codepf:
        a("s_getpc_b64 s[30:31]")
        a("L_pc:")
        a(f"s_sub_u32 s30, s30, L_pc-{NAME}_kernel"); a("s_subb_u32 s31, s31, 0")
        if pfsplit:
            a(f"s_lshl_b32 {sT1}, {sR}, 7")
            a(f"v_lshl_add_u32 {t0}, {vL}, 12, {sT1}")
            a(f"v_min_u32 {t0}, L_end-{NAME}_kernel, {t0}")
            a("s_mov_b64 exec, 0x7f")
            a(f"global_load_dword v2, {t0}, s[30:31]")
            a("s_mov_b64 exec, -1")
        else:
            a(f"v_lshlrev_b32 {t0}, 7, {vL}")
            a(f"v_add_u32 {t1}, 8192, {t0}")
            a(f"v_add_u32 {t2}, 16384, {t0}")
            a(f"v_min_u32 {t2}, L_end-{NAME}_kernel, {t2}")
            a(f"global_load_dword v2, {t1}, s[30:31]")
            a(f"global_load_dword v3, {t2}, s[30:31]")
            a(f"global_load_dword v9, {t0}, s[30:31]")
    XOP = 64; WOP = 96; QD = 208
    vWo = "v4"; vXo = "v5"; vL16 = "v6"; vL8 = "v7"
    a(f"v_lshrrev_b32 {t3}, 3, {vL}"); a(f"v_and_b32 {t2}, 7, {vL}"); a(f"v_lshlrev_b32 {t2}, 4, {t2}")
    a(f"v_lshl_add_u32 {vKo}, {t3}, 13, {t2}")
    a(f"v_mad_u32_u24 {vWo}, {t3}, 56, 0"); a(f"v_lshl_add_u32 {vWo}, {vWo}, 4, {t2}")
    a(f"v_and_b32 {vXo}, 3, {vL}"); a(f"v_mul_u32_u24 {vXo}, 896, {vXo}"); a(f"v_lshl_add_u32 {vXo}, {vg}, 4, {vXo}")
    a(f"s_bfe_u32 s44, {sR}, 0x10003")
    a(f"s_and_b32 s45, {sR}, 7"); a(f"s_lshl_b32 s46, {sX}, 3"); a("s_add_u32 s45, s45, s46")
    a(f"s_mul_i32 s46, s44, {224*8192}"); a("s_lshl_b32 s47, s45, 7"); a(f"s_add_u32 {sOff}, s46, s47")
    a(f"s_mul_i32 {sT2}, s44, 448")
    srd(32, None, None, 0x380000); srd(36, None, None, 3584)
    a(f"s_mov_b32 m0, {L_WQ}")
    a(f"s_cmp_eq_u32 {sT0}, 0")
    a("s_waitcnt lgkmcnt(0)")
    a("s_cselect_b32 s32, s10, s20"); a("s_cselect_b32 s33, s11, s21")
    a("s_cselect_b32 s36, s4, s14"); a("s_cselect_b32 s37, s5, s15")
    tag_load()
    idk = []
    if diag & 1: a("s_mov_b32 s34, 0")
    for k in range(7):
        a(f"buffer_load_dwordx4 {vr(XOP+4*k)}, {vXo}, {XS}, {sT2} offen offset:{64*k}")
        for j in range(4):
            r = a(f"buffer_load_dwordx4 {vKo}, {WQ}, {sOff} offen {pol} lds")
            if k < 6 or j < 3:
                a("s_add_u32 m0, m0, 1024"); a(f"s_add_u32 {sOff}, {sOff}, 65536")
        idk.append(r)
    stamp("wq_issued")
    a(f"s_lshl_b32 {sCnt}, {sT0}, 1"); a(f"s_add_u32 {sCnt}, {sCnt}, s44"); a(f"s_lshl_b32 {sCnt}, {sCnt}, 16")
    a("s_lshl_b32 s46, s45, 10"); a(f"s_add_u32 {sCnt}, {sCnt}, s46")
    srd(60, "s28", "s29", WS_END); srd(44, "s24", "s25", 7168)
    srd(48, "s12", "s13", 0x380000); srd(52, "s22", "s23", 0x380000)
    if diag & 2: a("s_mov_b32 s50, 0"); a("s_mov_b32 s54, 0")
    if diag & 4: a("s_mov_b32 s62, 0")
    if diag & 8: a("s_mov_b32 s50, 0")
    unit(1); unit_v()
    for i in range(4): a(f"v_mov_b32 v{AOP+i}, -1")
    a(f"v_lshlrev_b32 {vL16}, 4, {vL}"); a(f"v_lshlrev_b32 {vL8}, 3, {vL}")
    a(f"s_lshl_b32 {sT3}, {sWG}, 11"); a(f"s_add_u32 {sT3}, {sT3}, {WS_Y}")
    a(f"buffer_store_dwordx4 {vr(AOP)}, {vL16}, {WS}, {sT3} offen sc1")
    a(f"buffer_store_dwordx4 {vr(AOP)}, {vL16}, {WS}, {sT3} offen offset:1024 sc1")
    a(f"s_lshr_b32 {sT0}, {sR}, 4"); a(f"s_lshl_b32 {sT0}, {sT0}, 14"); a(f"s_lshl_b32 {sT1}, {sX}, 11"); a(f"s_add_u32 {sT0}, {sT0}, {sT1}")
    a(f"s_and_b32 {sT1}, {sR}, 15"); a(f"s_lshl_b32 {sT1}, {sT1}, 7"); a(f"s_add_u32 {sT0}, {sT0}, {sT1}"); a(f"s_add_u32 {sT0}, {sT0}, {WS_ML}")
    a("s_mov_b64 exec, 0xff")
    a(f"buffer_store_dwordx4 {vr(AOP)}, {vL16}, {WS}, {sT0} offen sc1")
    a("s_mov_b64 exec, -1")
    a(f"s_lshl_b32 {sRecA}, {sH}, 14"); a(f"s_add_u32 {sRecA}, {sRecA}, {WS_PO}")
    a(f"s_lshl_b32 {sRecB}, {sX}, 15"); a(f"s_add_u32 {sRecB}, {sRecB}, {WS_PO + 16*16384}")
    a(f"s_and_b32 {sT0}, {sR}, 15"); a(f"s_lshl_b32 {sT1}, {sT0}, 9"); a(f"s_add_u32 {sT1}, {sT1}, {sRecA}")
    a(f"s_lshl_b32 {sT2}, {sR}, 9"); a(f"s_add_u32 {sT2}, {sT2}, {sRecB}")
    a(f"v_and_b32 {t0}, 31, {vL}"); a(f"v_lshlrev_b32 {t0}, 4, {t0}"); a(f"v_lshrrev_b32 {t1}, 5, {vL}"); a(f"v_lshl_add_u32 {t0}, {t1}, 14, {t0}")
    a(f"buffer_store_dwordx4 {vr(AOP)}, {t0}, {WS}, {sT2} offen sc1")
    a("s_mov_b32 exec_hi, 0")
    a(f"buffer_store_dwordx4 {vr(AOP)}, {t0}, {WS}, {sT1} offen sc1")
    a("s_mov_b32 exec_hi, -1")
    a(f"s_lshl_b32 {sT0}, {sT0}, 4"); a(f"s_add_u32 {sRecA}, {sRecA}, {sT0}")
    a(f"s_lshr_b32 {sT0}, {sR}, 3"); a(f"s_lshl_b32 {sT0}, {sT0}, 6"); a(f"s_add_u32 {sRecB}, {sRecB}, {sT0}")
    a(f"s_and_b32 {sT0}, {sR}, 3"); a(f"s_lshl_b32 {sT0}, {sT0}, 4"); a(f"s_add_u32 {sRecB}, {sRecB}, {sT0}")
    a(f"s_bfe_u32 {sT0}, {sR}, 0x10002"); a(f"s_lshl_b32 {sT0}, {sT0}, 13"); a(f"s_add_u32 {sRecB}, {sRecB}, {sT0}")
    a(f"v_lshrrev_b32 {t0}, 1, {vL}"); a(f"v_lshlrev_b32 {t0}, 8, {t0}"); a(f"v_and_b32 {t1}, 1, {vL}"); a(f"v_lshl_add_u32 {vPa}, {t1}, 3, {t0}")
    a(f"v_mov_b32 {t0}, {L_CNT}"); a(f"v_mov_b32 {t1}, 0"); a(f"ds_write_b32 {t0}, {t1}")
    if gov:
        for i in range(4): a(f"v_mov_b32 v{8+i}, 0")
        a(f"s_mul_i32 {sT0}, {sWG}, 4352"); a(f"s_add_u32 {sT0}, {sT0}, {WS_GC}")
        a(f"s_cmp_lt_u32 {sWG}, 16"); a(f"s_cselect_b32 {sT0}, {sT0}, {OOB}")
        a("s_mov_b64 exec, 0xffff")
        a(f"buffer_store_dwordx4 v[8:11], {vL16}, {WS}, {sT0} offen sc1")
        a("s_mov_b64 exec, -1")
    if diag & 4: a(f"s_mov_b32 s62, {WS_END}")
    stamp("cleared")
    for k in range(8):
        if k < 7: a.wait_vm(idk[k])
        if k: a("s_waitcnt lgkmcnt(0)")
        if k < 7:
            for c in range(4):
                a(f"ds_read_b64_tr_b16 {vr(WOP+16*(k%3)+4*c,2)}, {vTr} offset:{L_WQ + k*4096 + 32*c}")
                a(f"ds_read_b64_tr_b16 {vr(WOP+16*(k%3)+4*c+2,2)}, {vTr} offset:{L_WQ + k*4096 + 32*c + 512}")
        if k:
            for c in range(4):
                a(f"v_mfma_f32_16x16x32_bf16 {vr(QD+4*c)}, {vr(WOP+16*((k-1)%3)+4*c)}, {vr(XOP+4*(k-1))}, {vr(QD+4*c) if k > 1 else 0}")
    for c in range(1, 4):
        for e in range(4):
            a(f"v_mov_b32_dpp v{QD+e}, v{QD+4*c+e} quad_perm:[0,1,2,3] row_mask:0xf bank_mask:{1<<c}")
    a(f"buffer_store_dwordx4 {vr(QD)}, {vL16}, {WS}, {sCnt} offen sc1")
    stamp("q_stored")
    tag_make()
    a(f"s_getreg_b32 {sT0}, hwreg(HW_REG_XCC_ID, 0, 4)")
    a("s_lshl_b32 s59, s58, 4"); a(f"s_or_b32 s59, s59, {sT0}")
    a("v_mov_b32 v8, s56"); a("v_mov_b32 v9, s59"); a("v_mov_b32 v10, s56"); a("v_mov_b32 v11, s59")
    a(f"s_lshl_b32 {sCnt}, {sX}, 12"); a(f"s_add_u32 {sCnt}, {sCnt}, {WS_FL}")
    a(f"s_lshl_b32 {sT1}, {sR}, 7"); a(f"s_add_u32 {sT1}, {sT1}, {sCnt}")
    a(f"v_lshlrev_b32 {t3}, 7, {vL}")
    a("s_waitcnt vmcnt(0)")
    stamp("acked")
    a("s_mov_b64 exec, 0xff")
    a(f"buffer_store_dwordx4 v[8:11], {vL16}, {WS}, {sT1} offen sc1")
    a("s_mov_b64 exec, -1")
    def wo_dma(j0, j1):
        for jj in range(j0, j1):
            P, j = jj >> 4, jj & 15
            if j == 0: a(f"s_mov_b32 {sOff}, {sU}")
            if jj >= wo_thr: a(f"s_waitcnt vmcnt({min(wo_thr, 4)-1})")
            a(f"buffer_load_dwordx4 {vWo}, {(WOA, WOB)[P]}, {sOff} offen {pol} lds")
            a("s_add_u32 m0, m0, 1024"); a(f"s_add_u32 {sOff}, {sOff}, {8*896}")
    a(f"s_mov_b32 m0, {L_WOA}")
    npre = wo_thr
    a(f"s_cmp_ge_u32 {sR}, 28"); a("s_cbranch_scc1 L_h_nopre")
    wo_dma(0, npre)
    a("L_h_nopre:")
    a("s_mov_b32 exec_hi, 0")
    poll("L_fl", lambda: a(f"buffer_load_dwordx2 v[12:13], {t3}, {WS}, {sCnt} offen sc1"), lambda: tag_chk([12]), sleep=hsleep, masked=True)
    stamp("go_seen")
    a(f"v_and_b32 {t0}, 3, {vL}"); a(f"v_lshlrev_b32 {t0}, 8, {t0}"); a(f"v_lshl_add_u32 {t0}, {vg}, 10, {t0}")
    a(f"v_bfe_u32 {t1}, {vL}, 2, 2"); a(f"v_lshl_add_u32 {t0}, {t1}, 6, {t0}")
    a(f"s_lshr_b32 {sT0}, {sR}, 3"); a(f"s_lshl_b32 {sT0}, {sT0}, 4"); a(f"s_lshl_b32 {sT1}, {sX}, 13"); a(f"s_add_u32 {sT0}, {sT0}, {sT1}")
    a(f"s_add_u32 {sT0}, {sT0}, 0x20000")
    a(f"s_lshl_b32 {sT2}, {sB}, 4"); a(f"s_lshl_b32 {sT1}, {sH}, 12"); a(f"s_add_u32 {sT2}, {sT2}, {sT1}")
    for u in (2, 0, 1):
        for kh in range(2):
            a(f"s_add_u32 {sT1}, {sT2 if u == 2 else sT0}, {kh * 0x10000 + (4096 if u == 1 else 0)}")
            a(f"buffer_load_dwordx4 {vr(64+8*u+4*kh)}, {t0}, {WS}, {sT1} offen sc1")
    a("v_cmp_ne_u32 vcc, s59, v13")
    a("s_cmp_eq_u32 vcc_lo, 0"); a(f"s_cselect_b32 {sLocal}, {2 if force_remote else 1}, 2")
    a(f"v_mov_b32 {t0}, {L_LOC}"); a(f"v_mov_b32 {t1}, {sLocal}"); a(f"ds_write_b32 {t0}, {t1}")
    a("s_waitcnt vmcnt(0)")
    for u in range(3):
        for e in range(4): a(f"v_add_f32 v{64+8*u+e}, v{64+8*u+e}, v{64+8*u+4+e}")
        for e in range(2): a(f"v_cvt_pk_bf16_f32 v{64+8*u+e}, v{64+8*u+2*e}, v{64+8*u+2*e+1}")
        a(f"ds_write_b64 {vL8}, {vr(64+8*u,2)} offset:{L_Q+512*u}")
    a("s_waitcnt lgkmcnt(0)")
    stamp("q_in_lds")
    a("s_barrier")
    a(f"s_cmp_ge_u32 {sR}, 28"); a("s_cbranch_scc1 L_h_nowo")
    wo_dma(npre, 32)
    a("s_waitcnt vmcnt(0)")
    WB = 64
    for k in range(4):
        for c in range(4):
            a(f"ds_read_b64_tr_b16 {vr(WB+16*k+4*c,2)}, {vTr} offset:{L_WOB + k*4096 + 32*c}")
            a(f"ds_read_b64_tr_b16 {vr(WB+16*k+4*c+2,2)}, {vTr} offset:{L_WOB + k*4096 + 32*c + 512}")
        a("s_waitcnt lgkmcnt(0)")
    a("L_h_nowo:")
    stamp("wo_done")
    a(f"v_mov_b32 {t3}, {L_CNT}")
    poll("L_cnt", lambda: a(f"ds_read_b32 v8, {t3}"), lambda: a("v_cmp_ne_u32 vcc, 4, v8"), sleep=16)
    stamp("B_in_lds")
    CB = 184
    def combine(u):
        for w in range(4): a(f"ds_read_b128 {vr(CB+4*w)}, {vL16} offset:{L_PART + 4096*u + 1024*w}")
        a("s_waitcnt lgkmcnt(0)" if stamps else "s_waitcnt lgkmcnt(2)")
        for e in range(4): a(f"v_add_f32 v{CB+e}, v{CB+e}, v{CB+4+e}")
        a("s_waitcnt lgkmcnt(0)")
        for e in range(4): a(f"v_add_f32 v{CB+8+e}, v{CB+8+e}, v{CB+12+e}")
        for e in range(4): a(f"v_add_f32 v{CB+e}, v{CB+e}, v{CB+8+e}")
        for e in range(2): a(f"v_cvt_pk_bf16_f32 v{CB+e}, v{CB+2*e}, v{CB+2*e+1}")
        for e in range(2): a(f"v_min_u32 v{CB+16+2*u+e}, -2, v{CB+e}")
    def publish(u, so):
        a(f"s_cbranch_scc1 L_h_local{u}")
        a(f"buffer_store_dwordx2 {vr(CB+16+2*u,2)}, {vPa}, {WS}, {so} offen sc1")
        a(f"s_branch L_h_pub{u}")
        a(f"L_h_local{u}:")
        a(f"buffer_store_dwordx2 {vr(CB+16+2*u,2)}, {vPa}, {WS}, {so} offen")
        a(f"L_h_pub{u}:")
    a(f"s_add_u32 {sT0}, {sRecB}, 16384")
    a(f"s_cmp_eq_u32 {sLocal}, 1")
    for u in range(2):
        combine(u); publish(u, (sRecB, sT0)[u])
    a(f"v_lshlrev_b32 {t3}, 7, {vL}")
    def all_ld():
        for i in range(4):
            a(f"s_mov_b32 {sT1}, {WS_FL + 8192*i}")
            a(f"buffer_load_dwordx2 v[{8+2*i}:{9+2*i}], {t3}, {WS}, {sT1} offen sc1")
    poll("L_all", all_ld, lambda: tag_chk([8, 10, 12, 14]), sleep=8)
    a(f"s_cmp_ge_u32 {sR}, 28"); a("s_cbranch_scc1 L_h_nos2")
    GB = 128
    a(f"s_add_u32 {sT0}, {sG}, 8192")
    def gB():
        for st in range(2):
            for k in range(4): a(f"buffer_load_dwordx4 {vr(GB+16*st+4*k)}, {vGo}, {WS}, {(sG, sT0)[st]} offen offset:{1024*k} sc1")
    poll("L_s2b", gB, lambda: sentinel(range(GB, GB + 32)), sleep=16, masked=(light == 2))
    for st in range(2):
        for k in range(4):
            for c in range(4):
                a(f"v_mfma_f32_16x16x32_bf16 {vr(QD+4*c)}, {vr(WB+16*k+4*c)}, {vr(GB+16*st+4*k)}, {vr(QD+4*c) if (st or k) else 0}")
    for qp in (QP1, QP2):
        for e in range(16): a(f"v_add_f32_dpp v{QD+e}, v{QD+e}, v{QD+e} {qp}")
    for c in range(1, 4):
        m = 0x11111111 << c
        a(f"s_mov_b32 vcc_lo, {m}"); a(f"s_mov_b32 vcc_hi, {m}")
        for e in range(4): a(f"v_cndmask_b32 v{QD+e}, v{QD+e}, v{QD+4*c+e}, vcc")
    for e in range(4): a(f"v_min_u32 v{QD+e}, -2, v{QD+e}")
    a(f"v_and_b32 {t0}, 3, {vL}"); a(f"v_lshl_add_u32 {t0}, {t0}, 11, {vYo}")
    a(f"buffer_store_dwordx4 {vr(QD)}, {t0}, {WS}, {sY} offen sc1")
    a("L_h_nos2:")
    a(f"s_mul_i32 {sT2}, {sWG}, 2341"); a(f"s_lshr_b32 {sT2}, {sT2}, 16")
    a(f"s_mul_i32 {sOff}, {sT2}, 28"); a(f"s_sub_u32 {sOff}, {sWG}, {sOff}"); a(f"s_lshl_b32 {sOff}, {sOff}, 5")
    a(f"s_and_b32 {sT0}, {sT2}, 3"); a(f"s_mul_i32 {sT0}, {sT0}, 1792"); a(f"s_add_u32 {sOff}, {sOff}, {sT0}")
    a(f"s_lshr_b32 {sT2}, {sT2}, 2"); a(f"s_mul_i32 {sT2}, {sT2}, 896"); a(f"s_add_u32 {sOff}, {sOff}, {sT2}")
    a(f"v_lshrrev_b32 {t1}, 1, {vg}"); a(f"v_and_b32 {t2}, 1, {vg}"); a(f"v_lshl_add_u32 {t1}, {t2}, 1, {t1}")
    a(f"v_lshl_add_u32 {t1}, {vn}, 2, {t1}"); a(f"v_lshlrev_b32 {t3}, 1, {t1}")
    stamp("B_s2_done")
    a(f"s_cmp_eq_u32 {sLocal}, 1")
    a("s_barrier")
    combine(2); publish(2, sRecA)
    stamp("published")
    if e5: a("s_barrier")
    a(f"s_cmp_ge_u32 {sWG}, 224"); a("s_cbranch_scc1 L_h_fin")
    F = 64
    def gY():
        for k in range(2): a(f"buffer_load_dwordx4 {vr(F+4*k)}, {vL16}, {WS}, {sT3} offen offset:{1024*k} sc1")
    poll("L_f", gY, lambda: sentinel(range(F, F + 8)), masked=(light == 2))
    for e in range(4): a(f"v_add_f32 v{F+e}, v{F+e}, v{F+4+e}")
    a(f"v_permlane32_swap_b32 v{F}, v{F+1}"); a(f"v_permlane32_swap_b32 v{F+2}, v{F+3}")
    a(f"v_add_f32 v{F}, v{F}, v{F+1}"); a(f"v_add_f32 v{F+2}, v{F+2}, v{F+3}")
    a(f"v_permlane16_swap_b32 v{F}, v{F+2}")
    a(f"v_add_f32 v{F}, v{F}, v{F+2}")
    red("v_add_f32", f"v{F}", (4, 8))
    a(f"v_cvt_pk_bf16_f32 v{F}, v{F}, v{F}")
    a("s_mov_b32 exec_lo, 0x000f000f"); a("s_mov_b32 exec_hi, 0x000f000f")
    a(f"buffer_store_short v{F}, {t3}, {OUT}, {sOff} offen")
    a(f"s_cmp_eq_u32 {sWG}, 0"); a(f"s_cselect_b32 {sT0}, {WS_EP}, {sG}"); a("s_cbranch_scc0 L_h_fin")
    a("v_mov_b32 v8, s56"); a("v_mov_b32 v9, s57")
    a("s_mov_b64 exec, 1")
    a(f"buffer_store_dwordx2 v[8:9], off, {WS}, {sT0}")
    a("L_h_fin:")
    if stamps: finish("h")
    a("L_end:")
    a("s_endpgm")
    a.pad()
    global STAMP_NAMES
    STAMP_NAMES = {k: v[:-1] for k, v in names.items()}
    head = HEADER + f"; @launch grid=(256,1,1) block=({64*NW},1,1) lds={L_KB + NL * 4096}\n"
    head += f'.amdgcn_target "amdgcn-amd-amdhsa--gfx950"\n.text\n.globl {NAME}_kernel\n.p2align 8\n.type {NAME}_kernel,@function\n{NAME}_kernel:\n'
    nv = RING + 4 * RP
    nv = 256 if stamps else max(nv, 224)
    assert not (stamps and RP > 47)
    tail = f'''.section .rodata,"a"
.p2align 6
.amdhsa_kernel {NAME}_kernel
  .amdhsa_next_free_vgpr {nv}
  .amdhsa_next_free_sgpr 102
  .amdhsa_accum_offset {nv}
  .amdhsa_group_segment_fixed_size 0
  .amdhsa_kernarg_size 104
  .amdhsa_user_sgpr_count 2
  .amdhsa_user_sgpr_kernarg_segment_ptr 1
  .amdhsa_system_sgpr_workgroup_id_x 1
  .amdhsa_float_denorm_mode_32 3
.end_amdhsa_kernel
'''
    return head + a.text() + tail

if __name__ == "__main__":
    kw = eval("dict(" + (sys.argv[2] if len(sys.argv) > 2 else "") + ")")
    open(sys.argv[1], "w").write(gen(**kw))
```

```python
import os, sys, struct
from asmlib import Asm
def f2u(x): return struct.unpack('<I', struct.pack('<f', x))[0]

NAME = "concat_heads__mha_block_cached__sliding_block_cached__decode"
_ref = "cdna_kernels/" + NAME + ".s.ref"
HEADER = open(_ref).read().split("; Override launch")[0] if os.path.exists(_ref) else ""

WS_QP = 0x0
WS_ML = 0x40000
WS_PO = 0x48000
WS_FL = 0xC8000
WS_GC = 0xD0000
WS_EP = 0xE4000
WS_Y = 0xE8000
WS_END = WS_Y + 224 * 2048
WS_STAMP = 0x400000
L_WQ = 0
L_WOA = 0
L_WOB = 16384
L_PART = 32768
L_Q = L_PART + 12288
L_CNT = L_Q + 1536
L_LOC = L_CNT + 4
L_PRG = L_CNT + 16
L_TH = L_CNT + 32
L_KB = L_CNT + 512
OOB = 0x40000000
TAGC = (0x9E3779B9, 0x7F4A7C15)
CSCALE = 0x3DB8AA3B
NW = 6

def brev(j, bits): return int(f"{j:0{bits}b}"[::-1], 2)
FULL = "row_mask:0xf bank_mask:0xf"
QP1 = "quad_perm:[1,0,3,2] " + FULL
QP2 = "quad_perm:[2,3,0,1] " + FULL

def gen(D=5, D0=5, ND0=12, RP=46, NL=16, ratio=6, stamps=False, fine=False, spin=1 << 19, pol="nt", force_remote=False,
        th0=4.1, thmin=2, thmax=6, gain=0.125, gw=0.04, gx=0.75, gstop=2, gI=1024, gc=None,
        nend=0, rot=1, rotx=4, tlb=True, wod=3, wob=0, g2=True, hk=6, hsleep=2, outw=True, ytag=True, ylay=1, ywarm=False, ydw=False, ytr=False, ybd=True):
    a = Asm()
    R = 16; LG = 8; THMAX = LG - 2; NTOT = 288; RT = RP + NL
    sWG = "s2"; sW = "s3"
    KA, VA, KB, VB, WQ, XS, WS, OUT, WOA, WOB = (f"s[{i}:{i+3}]" for i in (32, 36, 40, 44, 32, 36, 60, 44, 48, 52))
    sLb = "s64"
    sX, sR, sH, sB = "s72", "s73", "s74", "s75"
    sOff = "s76"; sCnt = "s77"; sT0 = "s78"; sT1 = "s79"; sT2 = "s80"; sT3 = "s81"
    sRecA = "s82"; sRecB = "s83"; sG = "s84"; sY = "s85"; sU = "s86"; sC = "s87"; sSpin = "s88"; sLocal = "s89"
    sMk1 = "s[90:91]"; sMk0 = "s[92:93]"; sTh = "s94"; sRot = "s95"
    vL = "v0"; vKo = "v1"; vM = [f"v{i}" for i in range(2, 6)]
    QA = 6; QB = 14; SP = 30; AOP = 34; ACC = 38
    T = ["v46", "v47"]; U = ["v48", "v49"]; V = ["v50", "v51"]; X = ["v52", "v53"]
    t0, t1, t2, t3 = "v54", "v55", "v56", "v57"
    vm, vl, vg, vn = "v58", "v59", "v60", "v61"
    vmB, vlB = "v62", "v63"
    RING = 64
    ACCB = 128; SB = "v136"; vfA = "v137"; MLG = 138; WT = 144; G = 160
    vGo = "v176"; vYo = "v177"; vTr = "v178"; vPa = "v179"; vPrg = "v180"; vPrA = "v181"; vTH = "v182"; vWo = "v183"; vYm = "v206"
    def slot(k): return RING + 4 * k
    def vr(i, n=4): return f"v[{i}:{i+n-1}]"
    names = {"s": [], "h": [], "g": []}
    cur = ["s"]
    def stamp(name):
        if not stamps: return
        nm = names[cur[0]]
        if nm:
            a("s_waitcnt lgkmcnt(0)")
            a(f"v_writelane_b32 v255, s96, {len(nm)-1}")
        nm.append(name)
        a("s_memrealtime s[96:97]")
    def finish():
        if stamps:
            a("s_mov_b64 exec, -1")
            stamp("end"); a("s_waitcnt vmcnt(0)"); stamp("acked"); stamp("x")
            a("s_mov_b32 exec_hi, 0")
            a(f"s_mul_i32 {sT0}, {sWG}, {NW}"); a(f"s_add_u32 {sT0}, {sT0}, {sW}"); a(f"s_lshl_b32 {sT0}, {sT0}, 7"); a(f"s_add_u32 {sT0}, {sT0}, {WS_STAMP}")
            a(f"v_lshl_add_u32 {t0}, {vL}, 2, {sT0}")
            a(f"global_store_dword {t0}, v255, s[28:29]")
        a("s_endpgm")
    def srd(i, lo, hi, size):
        if lo is not None: a(f"s_mov_b32 s{i}, {lo}"); a(f"s_mov_b32 s{i+1}, {hi}")
        a(f"s_mov_b32 s{i+2}, {size}"); a(f"s_mov_b32 s{i+3}, 0x20000")
    def poll(name, loads, check, sleep=0, first_issued=False, masked=False):
        sv = a.vm_seq
        a(f"s_mov_b32 {sSpin}, {spin}")
        if first_issued: a(f"s_branch {name}_chk")
        a(f"{name}:")
        if sleep: a(f"s_sleep {sleep}")
        loads()
        a(f"s_sub_u32 {sSpin}, {sSpin}, 1"); a(f"s_cmp_eq_u32 {sSpin}, 0")
        a("s_waitcnt vmcnt(0) lgkmcnt(0)")
        a(f"s_cbranch_scc1 {name}_go")
        if first_issued: a(f"{name}_chk:")
        check()
        if masked:
            a("s_and_b64 exec, exec, vcc")
            a(f"s_cbranch_scc1 {name}")
        else:
            a(f"s_cbranch_vccnz {name}")
        a(f"{name}_go:")
        if masked: a("s_mov_b64 exec, -1")
        if first_issued: a.vm_seq = sv
    def by_placement(tag, emit, have_scc=False):
        if not have_scc: a(f"s_cmp_eq_u32 {sLocal}, 1")
        a(f"s_cbranch_scc1 L_{tag}_l")
        sv = a.vm_seq
        emit(" sc1"); a.vm_seq = sv
        a(f"s_branch L_{tag}_d")
        a(f"L_{tag}_l:")
        emit("")
        a(f"L_{tag}_d:")
    def sentinel(regs):
        regs = list(regs); accs = [t0, t2]
        a(f"v_max_u32 {t0}, v{regs[0]}, v{regs[1]}"); a(f"v_max_u32 {t2}, v{regs[2]}, v{regs[3]}")
        for i in range(4, len(regs), 2):
            c = accs[(i >> 1) & 1]
            a(f"v_max3_u32 {c}, {c}, v{regs[i]}, v{regs[i+1]}")
        a(f"v_max_u32 {t0}, {t0}, {t2}")
        a(f"v_cmp_eq_u32 vcc, -1, {t0}")
    def red(op, r, steps):
        for s in steps:
            if s in (16, 32):
                a(f"v_mov_b32 {t1}, {r}"); a(f"v_permlane{s}_swap_b32 {r}, {t1}"); a(f"{op} {r}, {r}, {t1}")
            elif s == "q1": a(f"{op}_dpp {r}, {r}, {r} {QP1}")
            elif s == "q2": a(f"{op}_dpp {r}, {r}, {r} {QP2}")
            else: a(f"{op}_dpp {r}, {r}, {r} row_ror:{s} {FULL}")
    def rnd(r):
        a(f"v_cvt_pk_bf16_f32 {r}, {r}, {r}"); a(f"v_and_b32 {r}, 0xffff0000, {r}")
    def unit(P):
        a(f"s_mul_i32 {sT0}, {sR}, 37"); a(f"s_lshr_b32 {sT0}, {sT0}, 8")
        a(f"s_mul_i32 {sT1}, {sT0}, 7"); a(f"s_sub_u32 {sT1}, {sR}, {sT1}")
        a(f"s_lshl_b32 {sT2}, {sX}, 2"); a(f"s_add_u32 {sT0}, {sT0}, {sT2}")
        a(f"s_mul_i32 {sU}, {sT0}, {128*896}"); a(f"s_lshl_b32 {sT2}, {sT1}, 7"); a(f"s_add_u32 {sU}, {sU}, {sT2}")
        a(f"s_lshr_b32 {sG}, {sT0}, 1"); a(f"s_lshl_b32 {sG}, {sG}, 14"); a(f"s_and_b32 {sT2}, {sT0}, 1"); a(f"s_lshl_b32 {sT2}, {sT2}, 12")
        a(f"s_add_u32 {sG}, {sG}, {sT2}"); a(f"s_add_u32 {sG}, {sG}, {WS_PO + P*512*512}")
        a(f"s_lshl_b32 {sY}, {sT1}, {13 + ylay}"); a(f"s_lshl_b32 {sT2}, {sT0}, {6 + ylay}"); a(f"s_add_u32 {sY}, {sY}, {sT2}")
        a(f"s_add_u32 {sY}, {sY}, {WS_Y + P*112*2048}")
    def unit_v():
        a(f"v_lshrrev_b32 {t0}, 2, {vn}"); a(f"v_and_b32 {t2}, 3, {vn}")
        a(f"v_lshlrev_b32 {vGo}, 4, {vL}")
        if ylay:
            a(f"v_lshrrev_b32 {vYo}, {ylay}, {t0}"); a(f"v_mul_u32_u24 {vYo}, {28 * (2048 << ylay)}, {vYo}")
            a(f"v_and_b32 {vTr}, {(1 << ylay) - 1}, {t0}"); a(f"v_lshl_add_u32 {vYo}, {vTr}, 6, {vYo}")
        else:
            a(f"v_mul_u32_u24 {vYo}, {28*2048}, {t0}")
        a(f"v_lshl_add_u32 {vYo}, {vg}, 4, {vYo}")
        a(f"v_mov_b32 {vYm}, 0xfffff000")
        a(f"v_lshl_add_u32 {vTr}, {vg}, 3, {t0}"); a(f"v_lshlrev_b32 {vTr}, 7, {vTr}"); a(f"v_lshl_add_u32 {vTr}, {t2}, 3, {vTr}")
        a(f"v_lshrrev_b32 {t0}, 3, {vL}"); a(f"v_mul_u32_u24 {t0}, 896, {t0}"); a(f"v_and_b32 {t2}, 7, {vL}"); a(f"v_lshl_add_u32 {vWo}, {t2}, 4, {t0}")
    def tag_load(): a(f"s_load_dwordx2 s[56:57], s[28:29], {WS_EP}")
    def tag_make():
        a(f"s_add_u32 s56, s56, {TAGC[0]}"); a(f"s_addc_u32 s57, s57, {TAGC[1]}"); a("s_lshr_b32 s58, s57, 4")
        a(f"s_getreg_b32 {sT0}, hwreg(HW_REG_XCC_ID, 0, 4)")
        a("s_lshl_b32 s59, s58, 4"); a(f"s_or_b32 s59, s59, {sT0}")
    def tag_chk(regs):
        for i, r in enumerate(regs):
            a(f"v_lshrrev_b32 {t1}, 4, v{r+1}"); a(f"v_xor_b32 {t1}, s58, {t1}"); a(f"v_xor_b32 {t2}, s56, v{r}")
            if i: a(f"v_or3_b32 {t0}, {t0}, {t1}, {t2}")
            else: a(f"v_or_b32 {t0}, {t1}, {t2}")
        a(f"v_cmp_ne_u32 vcc, 0, {t0}")

    YT = ["s65", "s66", "s67", "s68"]
    def ytag_make():
        a(f"s_and_b32 {YT[0]}, s56, 0xfff"); a(f"s_bfe_u32 {YT[1]}, s56, 0xc000c")
        a(f"s_and_b32 {YT[2]}, s58, 0xfff"); a(f"s_bfe_u32 {YT[3]}, s58, 0xc000c")
    def y_seal(r):
        if not ytag:
            for e in range(4): a(f"v_min_u32 v{r+e}, -2, v{r+e}")
            return
        for e in range(4): a(f"v_add_u32 v{r+e}, 0x800, v{r+e}")
        for e in range(4): a(f"v_and_or_b32 v{r+e}, v{r+e}, {vYm}, {YT[e]}")
    YU = 2048 << ylay; YM = 64 << ylay

    a("s_load_dwordx16 s[4:19], s[0:1], 0")
    a("s_load_dwordx8 s[20:27], s[0:1], 64")
    a("s_load_dwordx2 s[28:29], s[0:1], 96")
    stamp("start"); names["h"] = list(names["s"]); names["g"] = list(names["s"])
    a(f"s_cmp_ge_u32 {sWG}, 256")
    a("s_cbranch_scc1 L_end")
    a(f"v_lshrrev_b32 {t2}, 6, v0")
    a(f"v_and_b32 {vL}, 63, v0")
    a(f"v_readfirstlane_b32 {sW}, {t2}")
    a(f"v_lshrrev_b32 {vg}, 4, {vL}")
    a(f"v_and_b32 {vn}, 15, {vL}")
    a(f"s_and_b32 {sX}, {sWG}, 7")
    a(f"s_lshr_b32 {sR}, {sWG}, 3")
    a(f"s_lshr_b32 {sT0}, {sWG}, 7")
    a(f"s_lshl1_add_u32 {sH}, {sX}, {sT0}")
    a(f"s_bfe_u32 {sB}, {sR}, 0x20002")
    a(f"s_cmp_ge_u32 {sW}, 4")
    a("s_cbranch_scc1 L_helper")

    a(f"v_lshl_add_u32 {vKo}, {t2}, 2, {vg}")
    a(f"v_lshl_add_u32 {vKo}, {vKo}, 5, {vn}")
    a(f"v_lshlrev_b32 {vKo}, 4, {vKo}")
    a(f"s_lshl4_add_u32 s40, {sB}, {sH}"); a(f"s_and_b32 s41, {sR}, 3"); a("s_lshl2_add_u32 s40, s40, s41"); a("s_lshl_b32 s40, s40, 19")
    srd(32, None, None, 0x80000)
    a(f"s_mov_b32 {sOff}, 0")
    rotate = rot or rotx
    def advance(n):
        a(f"s_addk_i32 {sOff}, 8192")
        if rotate and 128 <= n < 160: a(f"s_bitset0_b32 {sOff}, 16")
    a("s_waitcnt lgkmcnt(0)")
    a("s_add_u32 s32, s6, s40"); a("s_addc_u32 s33, s7, 0")
    ids = {}
    def srd_of(n): return KA if n < 128 else KB if n < 144 else VB if n < 160 else VA
    def kslot(n): return n if n < RP else R + (n - RP) % 8 if n < RT else (n - RT) % R
    def issue(n):
        if n in (128, 144, 160): a(f"s_mov_b32 {sOff}, {sRot if rotate and n < 160 else 0}")
        if RP <= n < RT:
            a(f"s_add_u32 m0, {sLb}, {256 + (n - RP) * 1024 - 256 * (n & 1)}")
            ids[n] = a(f"buffer_load_dwordx4 {vKo}, {srd_of(n)}, {sOff} offen offset:{256*(n&1)} {pol} lds")
        else:
            ids[n] = a(f"buffer_load_dwordx4 {vr(slot(kslot(n)))}, {vKo}, {srd_of(n)}, {sOff} offen offset:{256*(n&1)} {pol}")
        if n & 1: advance(n)
    for n in range(D0): issue(n)
    issued = D0
    stamp("k0")
    tag_load()
    a("s_add_u32 s36, s8, s40"); a("s_addc_u32 s37, s9, 0"); srd(36, None, None, 0x80000)
    a(f"s_lshl2_add_u32 {sRecA}, {sH}, {sB}"); a(f"s_lshl3_add_u32 {sRecA}, {sRecA}, s41")
    a(f"s_lshl_b32 {sRecB}, {sX}, 6"); a(f"s_add_u32 {sRecB}, {sRecB}, {sR}"); a(f"s_add_u32 {sRecB}, {sRecB}, 512")
    a(f"s_andn2_b32 s44, {sR}, 7"); a(f"s_add_u32 s44, s44, {sX}"); a("s_lshl_b32 s44, s44, 5")
    a(f"s_and_b32 s45, {sR}, 7"); a("s_add_u32 s44, s44, s45"); a("s_add_u32 s44, s44, 24"); a("s_lshl_b32 s44, s44, 16")
    a("s_add_u32 s40, s16, s44"); a("s_addc_u32 s41, s17, 0"); srd(40, None, None, 0x10000)
    a("s_add_u32 s44, s18, s44"); a("s_addc_u32 s45, s19, 0"); srd(44, None, None, 0x10000)
    srd(60, "s28", "s29", WS_END); srd(48, "s12", "s13", 0x380000)
    unit(0)
    a(f"s_mul_i32 {sT0}, {sW}, {4*8*896}"); a(f"s_add_u32 {sU}, {sU}, {sT0}")
    a(f"s_lshl_b32 {sT0}, {sW}, {11 + ylay}"); a(f"s_add_u32 {sY}, {sY}, {sT0}")
    a(f"s_cmp_ge_u32 {sR}, 28"); a(f"s_cselect_b32 {sU}, {OOB}, {sU}"); a(f"s_cselect_b32 {sG}, {OOB}, {sG}")
    if rotate:
        a(f"s_mul_i32 {sRot}, {sR}, {rot}"); a(f"s_mul_i32 {sT0}, {sX}, {rotx}"); a(f"s_add_u32 {sRot}, {sRot}, {sT0}")
        a(f"s_and_b32 {sRot}, {sRot}, 7"); a(f"s_lshl_b32 {sRot}, {sRot}, 13")
    a(f"s_mov_b32 {sC}, {CSCALE}")
    a("s_mov_b32 s90, 0xcccccccc"); a("s_mov_b32 s91, 0xcccccccc")
    a("s_mov_b32 s92, 0xaaaaaaaa"); a("s_mov_b32 s93, 0xaaaaaaaa")
    a(f"v_bfe_u32 {t0}, {vL}, 1, 2")
    a(f"v_mov_b32 {t2}, 0xffff"); a(f"v_mov_b32 {t1}, 0xffff0000")
    a(f"v_cndmask_b32 {t2}, {t2}, {t1}, {sMk0}")
    for j in range(4):
        a(f"v_cmp_eq_u32 vcc, {j}, {t0}")
        a(f"v_cndmask_b32 {vM[j]}, 0, {t2}, vcc")
    a(f"v_lshlrev_b32 {t3}, 4, {vn}"); a(f"v_mov_b32 {t0}, 0")
    a(f"s_mul_i32 {sLb}, {sW}, {NL * 1024}"); a(f"s_add_u32 {sLb}, {sLb}, {L_KB - 256}")
    landed = -1
    def throttled_issue():
        nonlocal issued, landed
        d = D0 if issued < ND0 else D
        if issued - d > landed:
            landed = issued - d; a.wait_vm(ids[landed])
        issue(issued); issued += 1
    while issued < RT:
        throttled_issue()
        if fine and issued in (D0 + 1, 16, 26, 36, 46, 56, 66): stamp(f"ki{issued}")
        if issued == 24:
            a("s_waitcnt lgkmcnt(0)"); tag_make(); ytag_make()
    stamp("ring_full")
    a("s_barrier")
    a(f"ds_read_b128 {vr(QA)}, {t3} offset:{L_Q+1024}"); a(f"ds_read_b128 {vr(QA+4)}, {t3} offset:{L_Q+1024+256}")
    for k in range(4): a(f"ds_read_b128 {vr(QB+4*k)}, {t3} offset:{L_Q+256*k}")
    a(f"ds_read_b32 {t0}, {t0} offset:{L_LOC}")
    a(f"v_lshl_add_u32 {t3}, {vL}, 4, {sLb}")
    a("s_waitcnt lgkmcnt(0)")
    a(f"v_readfirstlane_b32 {sLocal}, {t0}")
    stamp("q_ready")

    def tree(j, acc, dst_fn):
        u = U[(j >> 1) & 1]
        a(f"v_add_f32_dpp {u}, {acc}, {acc} row_ror:8 row_mask:0xf bank_mask:{'0xc' if j & 1 else '0x3'}")
        if not j & 1: return
        v = V[(j >> 2) & 1]
        a(f"v_add_f32_dpp {v}, {u}, {u} row_half_mirror row_mask:0xf bank_mask:{'0xa' if j & 2 else '0x5'}")
        if not j & 2: return
        a(f"v_add_f32_dpp {v}, {v}, {v} {QP2}")
        if not j & 4: return
        x = X[(j >> 3) & 1]
        a(f"v_cndmask_b32 {x}, {V[0]}, {V[1]}, {sMk1}")
        a(f"v_add_f32_dpp {x}, {x}, {x} {QP1}")
        if not j & 8: return
        dst_fn()
    def procK(n):
        k = kslot(n); j = (n >> 1) & 15; hf = n & 1
        acc = T[j & 1]
        for e in range(4):
            a(f"v_dot2_f32_bf16 {acc}, v{slot(k)+e}, v{QA+4*hf+e}, {acc if (hf or e) else 0}")
        if hf: tree(j, acc, lambda: a(f"v_cndmask_b32 v{SP+(n>>5)}, {X[0]}, {X[1]}, {sMk0}"))
    def procKB(n):
        k = kslot(n); j = (n - 128) >> 1; hf = n & 1
        for hd in range(2):
            for e in range(4):
                a(f"v_dot2_f32_bf16 {T[hd]}, v{slot(k)+e}, v{QB+8*hd+4*hf+e}, {T[hd] if (hf or e) else 0}")
        if not hf: return
        for hd in range(2):
            tree(2 * j + hd, T[hd], lambda: a(f"v_cndmask_b32 {SB}, {X[0]}, {X[1]}, {sMk0}"))
    def procVB(n):
        k = kslot(n); j = (n - 144) >> 1; hf = n & 1
        if not hf:
            a(f"v_mov_b32_dpp {t0}, {SB} row_newbcast:{brev(j,3)} row_mask:0xf bank_mask:0x3")
            a(f"v_mov_b32_dpp {t0}, {SB} row_newbcast:{8+brev(j,3)} row_mask:0xf bank_mask:0xc")
            for e in range(4): a(f"v_and_b32 v{AOP+e}, {t0}, {vM[e]}")
        a(f"v_mfma_f32_16x16x32_bf16 {vr(ACCB+4*hf)}, {vr(AOP)}, {vr(slot(k))}, {vr(ACCB+4*hf) if j else 0}")
    def procV(n, last=False):
        k = kslot(n); j = (n >> 1) & 15; hf = n & 1
        if not hf:
            for e in range(4):
                a(f"v_and_b32_dpp v{AOP+e}, v{SP}, {vM[e]} row_newbcast:{brev(j,4)} {FULL}")
        a(f"v_mfma_f32_16x16x32_bf16 {vr(ACC+4*hf)}, {vr(AOP)}, {vr(slot(k))}, {vr(ACC+4*hf)}")
        if hf and j == 15 and not last:
            for e in range(3): a(f"v_mov_b32 v{SP+e}, v{SP+e+1}")
    p = 0; burst = 0; AH = 4
    while not (p % 4 == 0 and issued - p == LG and p >= RT):
        if issued - p == LG: throttled_issue()
        n = p + AH
        if RP <= n < RT:
            assert n <= landed and kslot(n) < p
            a(f"ds_read_b128 {vr(slot(kslot(n)))}, {t3} offset:{256 + (n - RP) * 1024}")
        if RP <= p < RT: a(f"s_waitcnt lgkmcnt({min(AH, RT - 1 - p)})")
        assert p <= landed
        procK(p); p += 1
        free = (issued - R < p) if issued >= RT + R else (issued - RT < p)
        if issued - p > LG and free and (burst < D or p % ratio == 0):
            throttled_issue(); burst += 1
        assert p <= 128 - LG
    P0 = p
    lead = nend
    total = (NTOT - LG - lead - P0) // 2 * 4
    a(f"s_lshl2_add_u32 {sT0}, {sW}, {L_PRG}")
    a(f"v_mov_b32 {vPrA}, {sT0}"); a(f"v_mov_b32 {vPrg}, 0")
    a(f"s_mov_b32 {sTh}, {int(th0)}")
    stamp("caught_up")
    nlad = [0]
    def throttle(j):
        if j & 1:
            a("s_waitcnt lgkmcnt(0)")
            a(f"v_readfirstlane_b32 {sTh}, {vTH}")
        nlad[0] += 1
        assert thmax <= THMAX
        for th in range(thmax, thmin - 1, -1):
            a(f"s_waitcnt vmcnt({th})")
            if th > thmin:
                a(f"s_cmp_ge_u32 {sTh}, {th}"); a(f"s_cbranch_scc1 L_lad{nlad[0]}")
        a(f"L_lad{nlad[0]}:")
    def post(j):
        a(f"v_add_u32 {vPrg}, 1, {vPrg}")
        a(f"ds_write_b32 {vPrA}, {vPrg}")
        if not j & 1: a(f"ds_read_b32 {vTH}, {vPrA} offset:{L_TH - L_PRG}")
    def softmaxA():
        for e in range(4): rnd(f"v{SP+e}")
        a(f"v_max3_f32 {vm}, v{SP}, v{SP+1}, v{SP+2}"); a(f"v_max_f32 {vm}, {vm}, v{SP+3}")
        red("v_max_f32", vm, (8, 4, 2, 1, 16, 32))
        a(f"v_mul_f32 {vm}, {sC}, {vm}")
        for e in range(4): a(f"v_fma_f32 v{SP+e}, v{SP+e}, {sC}, -{vm}")
        for e in range(4): a(f"v_exp_f32 v{SP+e}, v{SP+e}")
        a(f"v_add_f32 {vl}, v{SP}, v{SP+1}"); a(f"v_add_f32 {t0}, v{SP+2}, v{SP+3}"); a(f"v_add_f32 {vl}, {vl}, {t0}")
        for e in range(4): a(f"v_cvt_pk_bf16_f32 v{SP+e}, v{SP+e}, v{SP+e}")
    def softmaxA2():
        red("v_add_f32", vl, (8, 4, 2, 1, 16, 32))
        for e in range(8): a(f"v_mov_b32 v{ACC+e}, 0")
        a(f"v_min_u32 {vm}, -2, {vm}"); a(f"v_min_u32 {vl}, -2, {vl}")
        a(f"s_lshl2_add_u32 {sT0}, {sRecA}, {sW}"); a(f"s_lshl3_add_u32 {sT0}, {sT0}, {WS_ML}")
        a("s_mov_b64 exec, 1")
        by_placement("mla", lambda b: a(f"buffer_store_dwordx2 v[58:59], off, {WS}, {sT0}{b}"))
        a("s_mov_b64 exec, -1")
    def softmaxB():
        rnd(SB)
        a(f"v_mul_f32 {SB}, {sC}, {SB}")
        a(f"v_max_f32_dpp {vmB}, {SB}, {SB} row_half_mirror {FULL}")
        red("v_max_f32", vmB, ("q1", "q2", 16, 32))
        a(f"v_sub_f32 {SB}, {SB}, {vmB}"); a(f"v_exp_f32 {SB}, {SB}")
        a(f"v_add_f32_dpp {vlB}, {SB}, {SB} row_half_mirror {FULL}")
        a(f"v_cvt_pk_bf16_f32 {SB}, {SB}, {SB}")
    def softmaxB2():
        red("v_add_f32", vlB, ("q1", "q2", 16, 32))
        a(f"v_min_u32 {vmB}, -2, {vmB}"); a(f"v_min_u32 {vlB}, -2, {vlB}")
        a(f"s_lshl2_add_u32 {sT0}, {sRecB}, {sW}"); a(f"s_lshl3_add_u32 {sT0}, {sT0}, {WS_ML}")
        a(f"v_lshlrev_b32 {t2}, 7, {vn}")
        a("s_mov_b64 exec, 0x101")
        by_placement("mlb", lambda b: a(f"buffer_store_dwordx2 v[62:63], {t2}, {WS}, {sT0} offen{b}"))
        a("s_mov_b64 exec, -1")
    for n in range(p, 160):
        if not n & 1:
            throttle(n >> 1); issue(n + LG); issue(n + LG + 1); post(n >> 1)
        (procK if n < 128 else procKB if n < 144 else procVB)(n)
        if n == 127: stamp("K_done"); softmaxA()
        if n == 129: softmaxA2()
        if n == 131: unit_v()
        if n == 133:
            a(f"s_lshl_b32 {sT0}, {sW}, 5"); a(f"v_add_u32 {vTr}, {sT0}, {vTr}")
            a(f"s_lshl_b32 {sLb}, {sW}, 12")
            if ydw:
                a(f"v_lshrrev_b32 {vYo}, {ylay}, {vg}"); a(f"v_mul_u32_u24 {vYo}, {28 * (2048 << ylay)}, {vYo}")
                a(f"v_and_b32 {t0}, {(16 << ylay) - 1}, {vL}"); a(f"v_lshl_add_u32 {vYo}, {t0}, 2, {vYo}")
                a(f"v_mov_b32 {t0}, {YT[0]}"); a(f"v_mov_b32 {t1}, {YT[1]}"); a(f"v_cndmask_b32 {t0}, {t0}, {t1}, {sMk0}")
                a(f"v_mov_b32 {t2}, {YT[2]}"); a(f"v_mov_b32 {t1}, {YT[3]}"); a(f"v_cndmask_b32 {t2}, {t2}, {t1}, {sMk0}")
                a(f"v_cndmask_b32 v207, {t0}, {t2}, {sMk1}")
            a(f"v_and_b32 {t0}, 1, {vg}"); a(f"v_lshlrev_b32 {t0}, 4, {t0}"); a(f"v_lshl_add_u32 {t0}, {vn}, 5, {t0}")
            a(f"s_lshl_b32 {sT0}, {sW}, 10"); a(f"s_add_u32 {sT0}, {sT0}, {L_PART}")
            a(f"v_add_u32 {vPa}, {sT0}, {t0}")
        if n == 143: softmaxB()
        if n == 145: softmaxB2()
    stamp("B_done")
    assert lead % 4 == 0 and lead <= 32 - LG
    a(f"s_mov_b32 {sCnt}, 4")
    a("L_v:")
    a(f"s_cmp_eq_u32 {sCnt}, 3"); a("s_cbranch_scc1 L_ml_issue")
    a(f"s_cmp_eq_u32 {sCnt}, 2"); a("s_cbranch_scc1 L_ml_use")
    a("L_v_body:")
    for n in range(160, 192, 2):
        if n == 192 - LG - lead:
            a(f"s_sub_u32 {sCnt}, {sCnt}, 1"); a(f"s_cmp_eq_u32 {sCnt}, 0"); a("s_cbranch_scc1 L_v_x")
        throttle(n >> 1); issue(n + LG); issue(n + LG + 1); post(n >> 1)
        procV(n); procV(n + 1)
    a("s_branch L_v")
    def ml_loads():
        a(f"buffer_load_dwordx2 {vr(MLG,2)}, {U[0]}, {WS}, {sT0} offen sc1")
        a(f"buffer_load_dwordx2 {vr(MLG+2,2)}, {U[1]}, {WS}, {sT1} offen sc1")
    a("L_ml_issue:")
    a(f"s_andn2_b32 {sT0}, {sRecA}, 7"); a(f"s_lshl_b32 {sT0}, {sT0}, 5"); a(f"s_add_u32 {sT0}, {sT0}, {WS_ML}")
    a(f"s_andn2_b32 {sT1}, {sRecB}, 7"); a(f"s_lshl_b32 {sT1}, {sT1}, 5"); a(f"s_add_u32 {sT1}, {sT1}, {WS_ML}")
    a(f"v_lshlrev_b32 {U[0]}, 3, {vn}")
    a(f"v_and_b32 {t0}, 31, {vL}"); a(f"v_lshlrev_b32 {t0}, 3, {t0}"); a(f"v_lshrrev_b32 {t1}, 5, {vL}"); a(f"v_lshl_add_u32 {U[1]}, {t1}, 10, {t0}")
    ml_loads()
    a("s_branch L_v_body")
    a("L_ml_use:")
    poll("L_ml", ml_loads, lambda: sentinel(range(MLG, MLG + 4)), sleep=2, first_issued=True)
    MA, MB = V
    a(f"v_max_f32_dpp {MA}, v{MLG}, v{MLG} row_ror:8 {FULL}"); a(f"v_max_f32_dpp {MB}, v{MLG+2}, v{MLG+2} row_ror:8 {FULL}")
    for s in (4, 2, 1):
        a(f"v_max_f32_dpp {MA}, {MA}, {MA} row_ror:{s} {FULL}"); a(f"v_max_f32_dpp {MB}, {MB}, {MB} row_ror:{s} {FULL}")
    red("v_max_f32", MB, (16,))
    a(f"v_mov_b32_dpp {t3}, {vmB} row_newbcast:0 row_mask:0x3 bank_mask:0xf")
    a(f"v_mov_b32_dpp {t3}, {vmB} row_newbcast:8 row_mask:0xc bank_mask:0xf")
    a(f"v_sub_f32 v{MLG}, v{MLG}, {MA}"); a(f"v_sub_f32 v{MLG+2}, v{MLG+2}, {MB}")
    a(f"v_sub_f32 {vfA}, {vm}, {MA}"); a(f"v_sub_f32 {t3}, {t3}, {MB}")
    a(f"v_exp_f32 v{MLG}, v{MLG}"); a(f"v_exp_f32 v{MLG+2}, v{MLG+2}"); a(f"v_exp_f32 {vfA}, {vfA}"); a(f"v_exp_f32 {t3}, {t3}")
    a(f"v_mul_f32 {MA}, v{MLG}, v{MLG+1}"); a(f"v_mul_f32 {MB}, v{MLG+2}, v{MLG+3}")
    for s in (8, 4, 2, 1):
        a(f"v_add_f32_dpp {MA}, {MA}, {MA} row_ror:{s} {FULL}"); a(f"v_add_f32_dpp {MB}, {MB}, {MB} row_ror:{s} {FULL}")
    red("v_add_f32", MB, (16,))
    a(f"v_rcp_f32 {MA}, {MA}"); a(f"v_rcp_f32 {MB}, {MB}")
    a(f"v_mul_f32 {vfA}, {vfA}, {MA}"); a(f"v_mul_f32 {t3}, {t3}, {MB}")
    for e in range(8): a(f"v_mul_f32 v{ACCB+e}, v{ACCB+e}, {t3}")
    a(f"v_lshrrev_b32 {t1}, 1, {vg}"); a(f"v_lshl_add_u32 {t0}, {t1}, 12, {vPa}")
    a(f"ds_write_b128 {t0}, {vr(ACCB)}"); a(f"ds_write_b128 {t0}, {vr(ACCB+4)} offset:512")
    a(f"v_lshl_add_u32 {vPa}, {t1}, 9, {vPa}")
    a(f"v_mov_b32 {t0}, {L_CNT}"); a(f"v_mov_b32 {t2}, 1")
    a("s_waitcnt lgkmcnt(0)")
    a("s_mov_b64 exec, 1")
    a(f"ds_add_u32 {t0}, {t2}")
    a("s_mov_b64 exec, -1")
    a("s_branch L_v_body")
    a("L_v_x:")
    for k in range(LG): ids[NTOT - LG - lead + k] = a.vm_seq - (LG - 1 - k)
    issued = NTOT - lead
    nwo = 0; skip = wod; id_wo = None
    def gA():
        for k in range(4): a(f"buffer_load_dwordx4 {vr(G+4*k)}, {vGo}, {WS}, {sG} offen offset:{1024*k} sc1")
    def wo_issue():
        nonlocal nwo, id_wo
        a(f"s_add_u32 m0, {sLb}, {L_WOA + 1024*nwo}")
        if nwo: a(f"s_add_u32 {sU}, {sU}, {8*896}")
        nwo += 1
        id_wo = a(f"buffer_load_dwordx4 {vWo}, {WOA}, {sU} offen {pol} lds")
    a("s_mov_b32 vcc_lo, 0"); a("s_mov_b32 vcc_hi, -1")
    for n in range(NTOT - LG - lead, NTOT):
        a.wait_vm(ids[n])
        if issued < NTOT:
            issue(issued); issued += 1
        elif nwo < 4:
            if skip: skip -= 1
            else: wo_issue()
        procV(n, last=True)
    while nwo < 4: wo_issue()
    stamp("stream_done")
    for e in range(4): a(f"v_cndmask_b32 v{ACC+e}, v{ACC+e}, v{ACC+4+e}, vcc")
    for e in range(4): a(f"v_mul_f32 v{ACC+e}, v{ACC+e}, {vfA}")
    a(f"ds_write_b128 {vPa}, {vr(ACC)} offset:8192")
    a("s_waitcnt lgkmcnt(0)")
    a("s_barrier")
    if g2:
        a("s_barrier")
        gA()
    a.wait_vm(id_wo)
    a("s_barrier")
    if fine: stamp("wo_in")
    a(f"s_cmp_ge_u32 {sR}, 28"); a("s_cbranch_scc1 L_s_fin")
    for k in range(4):
        a(f"ds_read_b64_tr_b16 {vr(WT+4*k,2)}, {vTr} offset:{L_WOA+4096*k}")
        a(f"ds_read_b64_tr_b16 {vr(WT+4*k+2,2)}, {vTr} offset:{L_WOA+4096*k+512}")
    if g2: a("s_waitcnt vmcnt(0)")
    poll("L_s2", gA, lambda: sentinel(range(G, G + 16)), masked=True, first_issued=g2)
    if g2: a("s_waitcnt lgkmcnt(0)")
    stamp("gathered")
    if ydw:
        for k in range(4):
            a(f"v_mfma_f32_16x16x32_bf16 {vr(ACC)}, {vr(G+4*k)}, {vr(WT+4*k)}, {vr(ACC) if k else 0}")
        a(f"v_add_f32 v{ACC}, v{ACC}, v{ACC+1}"); a(f"v_add_f32 v{ACC+2}, v{ACC+2}, v{ACC+3}"); a(f"v_add_f32 v{ACC}, v{ACC}, v{ACC+2}")
        a(f"v_add_u32 v{ACC}, 0x800, v{ACC}"); a(f"v_and_or_b32 v{ACC}, v{ACC}, {vYm}, v207")
        a(f"buffer_store_dword v{ACC}, {vYo}, {WS}, {sY} offen sc1")
    else:
        for k in range(4):
            a(f"v_mfma_f32_16x16x32_bf16 {vr(ACC)}, {vr(WT+4*k)}, {vr(G+4*k)}, {vr(ACC) if k else 0}")
        for qp in (QP1, QP2):
            for e in range(4): a(f"v_add_f32_dpp v{ACC+e}, v{ACC+e}, v{ACC+e} {qp}")
        y_seal(ACC)
        a("s_mov_b32 exec_lo, 0x11111111"); a("s_mov_b32 exec_hi, 0x11111111")
        a(f"buffer_store_dwordx4 {vr(ACC)}, {vYo}, {WS}, {sY} offen sc1")
    if stamps:
        a("s_branch L_s_fin2")
        a("L_s_fin:")
        names["s"].pop(); stamp("gathered")
        a("L_s_fin2:")
    else:
        a("L_s_fin:")
    a("s_barrier")
    finish()

    cur[0] = "g"
    a("L_gov:")
    vA4 = "v2"; vBo = "v3"; vPw = "v4"; vP = "v5"; vPp = "v6"; vB = "v7"; vTh = "v8"; vL16 = "v16"
    sTg = sU; sPo = sRecA; sGa = sRecB; sIn = sY
    NF = 224 >> ylay
    a(f"v_lshlrev_b32 {vL16}, 4, {vL}")
    a(f"s_lshl_b32 {sT1}, {sX}, 5"); a(f"s_add_u32 {sT1}, {sT1}, {sR}"); a(f"s_lshl_b32 {sT1}, {sT1}, 7"); a(f"s_add_u32 {sT1}, {sT1}, {WS_FL}")
    srd(60, None, None, WS_END)
    a("s_waitcnt lgkmcnt(0)")
    tag_load()
    a("s_mov_b32 s60, s28"); a("s_mov_b32 s61, s29")
    if not ytag:
        for i in range(4): a(f"v_mov_b32 v{AOP+i}, -1")
        a(f"s_lshl_b32 {sIn}, {sWG}, 11"); a(f"s_add_u32 {sIn}, {sIn}, {WS_Y}")
        a(f"buffer_store_dwordx4 {vr(AOP)}, {vL16}, {WS}, {sIn} offen sc1")
        a(f"buffer_store_dwordx4 {vr(AOP)}, {vL16}, {WS}, {sIn} offen offset:1024 sc1")
    a("s_mov_b64 exec, 0xff")
    a("s_waitcnt lgkmcnt(0)")
    tag_make()
    a("v_mov_b32 v8, s56"); a("v_mov_b32 v9, s59"); a("v_mov_b32 v10, s56"); a("v_mov_b32 v11, s59")
    if not ytag: a("s_waitcnt vmcnt(0)")
    a(f"buffer_store_dwordx4 v[8:11], {vL16}, {WS}, {sT1} offen sc1")
    a("s_mov_b64 exec, -1")
    ytag_make()
    a(f"s_lshl_b32 {sIn}, {sWG}, {11 + ylay}"); a(f"s_add_u32 {sIn}, {sIn}, {WS_Y}")
    stamp("hello")
    srd(44, "s24", "s25", 7168)
    if tlb:
        a(f"s_lshl4_add_u32 s40, {sB}, {sH}"); a("s_lshl_b32 s40, s40, 21")
        a(f"s_andn2_b32 s41, {sR}, 7"); a(f"s_add_u32 s41, s41, {sX}"); a("s_lshl_b32 s41, s41, 21"); a("s_add_u32 s41, s41, 0x180000")
        a(f"s_mul_i32 s42, {sX}, {512*896}")
        for i, (pp, o) in enumerate(((12, 42), (22, 42), (16, 41), (18, 41), (8, 40))):
            a(f"s_add_u32 s{pp}, s{pp}, s{o}"); a(f"s_addc_u32 s{pp+1}, s{pp+1}, 0")
            a(f"s_load_dword s{48+i}, s[{pp}:{pp+1}], 0")
    a(f"v_and_b32 {vA4}, 3, {vL}"); a(f"v_lshlrev_b32 {vA4}, 2, {vA4}")
    a(f"v_mov_b32 {vPp}, 0"); a(f"v_mov_b32 {vTh}, {int(th0)}"); a(f"v_mov_b32 {vB}, 0")
    a(f"ds_write_b32 {vA4}, {vPp} offset:{L_PRG}"); a(f"ds_write_b32 {vA4}, {vTh} offset:{L_TH}"); a(f"ds_write_b32 {vB}, {vB} offset:{L_CNT}")
    gc_ = gI // 2 if gc is None else gc
    a(f"s_mul_i32 {sG}, {sX}, 4352"); a(f"s_add_u32 {sG}, {sG}, {WS_GC}")
    a(f"v_lshlrev_b32 {vBo}, 2, {vL}")
    a(f"s_lshl2_add_u32 {sOff}, {sR}, {sG}")
    a(f"s_add_u32 {sGa}, {sG}, {8*4352}")
    a(f"s_mul_i32 {sTg}, {sX}, {gI // 8}"); a(f"s_add_u32 {sTg}, {sTg}, {gI // 8}")
    a(f"s_cmp_eq_u32 {sR}, {28 if gx else 99}"); a(f"s_cselect_b32 {sTg}, {sTg}, -1")
    sOut = sC
    a(f"s_mul_i32 {sT2}, {sWG}, 2341"); a(f"s_lshr_b32 {sT2}, {sT2}, 16")
    a(f"s_mul_i32 {sOut}, {sT2}, 28"); a(f"s_sub_u32 {sOut}, {sWG}, {sOut}"); a(f"s_lshl_b32 {sOut}, {sOut}, 5")
    a(f"s_and_b32 {sT0}, {sT2}, {3 >> ylay}"); a(f"s_mul_i32 {sT0}, {sT0}, {1792 << ylay}"); a(f"s_add_u32 {sOut}, {sOut}, {sT0}")
    a(f"s_lshr_b32 {sT2}, {sT2}, {2 - ylay}"); a(f"s_mul_i32 {sT2}, {sT2}, 896"); a(f"s_add_u32 {sOut}, {sOut}, {sT2}")
    a(f"v_lshrrev_b32 {t1}, 1, {vg}"); a(f"v_and_b32 {t2}, 1, {vg}"); a(f"v_lshl_add_u32 {t1}, {t2}, 1, {t1}")
    a(f"v_and_b32 {t2}, 3, {vn}"); a(f"v_lshl_add_u32 {t1}, {t2}, 2, {t1}"); a(f"v_lshlrev_b32 {t3}, 1, {t1}")
    a(f"v_lshrrev_b32 {t2}, 2, {vn}"); a(f"v_mul_u32_u24 {t2}, 1792, {t2}"); a(f"v_add_u32 {t3}, {t3}, {t2}")
    a("s_waitcnt lgkmcnt(0)")
    a("s_barrier")
    a(f"ds_read_b32 v10, {vB} offset:{L_LOC}")
    if ywarm:
        for k in range(2 << ylay): a(f"buffer_load_dwordx4 {vr(64+4*k)}, {vL16}, {WS}, {sIn} offen offset:{1024*(k%4)}")
    if outw:
        a("s_mov_b64 exec, 1"); a(f"buffer_load_dword v12, off, {OUT}, 0"); a("s_mov_b64 exec, -1")
    a("s_waitcnt lgkmcnt(0)")
    a(f"v_readfirstlane_b32 {sLocal}, v10")
    a(f"s_cmp_lg_u32 {sLocal}, 1"); a("s_cbranch_scc1 L_gend")
    poll("L_g0", lambda: a(f"ds_read_b32 {vPw}, {vA4} offset:{L_PRG}"), lambda: a(f"v_cmp_eq_u32 vcc, 0, {vPw}"), sleep=4)
    a(f"s_mov_b32 {sSpin}, {spin}")
    a("L_gloop:")
    a(f"ds_read_b32 {vPw}, {vA4} offset:{L_PRG}")
    a(f"s_sub_u32 {sSpin}, {sSpin}, 1"); a(f"s_cmp_eq_u32 {sSpin}, 0"); a("s_cbranch_scc1 L_gend")
    a("s_waitcnt lgkmcnt(0)")
    a(f"v_add_u32_dpp {vP}, {vPw}, {vPw} {QP1}"); a(f"v_add_u32_dpp {vP}, {vP}, {vP} {QP2}")
    a("s_mov_b64 exec, 1")
    a(f"buffer_store_dword {vP}, off, {WS}, {sOff}")
    a(f"v_cmp_le_u32 vcc, {total - 4 * gstop}, {vP}")
    a("s_cbranch_vccnz L_gend")
    a("s_mov_b32 exec_lo, -1"); a("s_mov_b32 exec_hi, 1")
    a(f"buffer_load_dword {vB}, {vBo}, {WS}, {sG} offen sc1")
    a("s_mov_b64 exec, -1")
    a(f"v_add_u32 {t0}, {vP}, {vPp}"); a(f"v_mov_b32 {vPp}, {vP}"); a(f"v_cvt_f32_u32 {t0}, {t0}")
    a(f"v_mul_f32 {t0}, {f2u(-0.5 * gain)}, {t0}"); a(f"v_add_f32 {t0}, {f2u(th0 + 0.5)}, {t0}")
    if gw:
        a(f"v_lshlrev_b32 {vPw}, 2, {vPw}"); a(f"v_sub_u32 {vPw}, {vP}, {vPw}"); a(f"v_cvt_f32_i32 {vPw}, {vPw}")
        a(f"v_mul_f32 {vPw}, {f2u(gw)}, {vPw}"); a(f"v_add_f32 {t0}, {t0}, {vPw}")
    a("s_waitcnt vmcnt(0)")
    a(f"v_add_u32_dpp {t1}, {vB}, {vB} row_ror:8 {FULL}")
    a(f"v_readlane_b32 {sT3}, {vB}, 32")
    for sft in (4, 2, 1): a(f"v_add_u32_dpp {t1}, {t1}, {t1} row_ror:{sft} {FULL}")
    a(f"v_readlane_b32 {sT0}, {t1}, 0"); a(f"v_readlane_b32 {sT1}, {t1}, 16")
    a(f"v_cvt_f32_i32 v11, {sT3}")
    a(f"s_add_u32 {sT2}, {sT0}, {sT1}")
    a(f"v_cvt_f32_u32 v10, {sT2}")
    a(f"v_mul_f32 v10, {f2u(gain / 32)}, v10"); a(f"v_mul_f32 v11, {f2u(gain * gx / 256)}, v11")
    a(f"v_add_f32 {t0}, {t0}, v10"); a(f"v_add_f32 {t0}, {t0}, v11")
    a(f"v_cvt_i32_f32 {vTh}, {t0}")
    a(f"v_med3_i32 {vTh}, {vTh}, {thmin}, {thmax}")
    a(f"ds_write_b32 {vA4}, {vTh} offset:{L_TH}")
    a(f"s_cmp_lt_u32 {sT2}, {sTg}"); a("s_cbranch_scc1 L_gloop")
    a(f"s_xor_b32 {sT0}, {sT2}, s56")
    for i in range(4): a(f"v_mov_b32 v{12+i}, {sT0}")
    a("s_mov_b64 exec, 0xff")
    a(f"buffer_store_dwordx4 v[12:15], {vL16}, {WS}, {sGa} offen sc1"); a("s_mov_b64 exec, -1")
    for i in range(1, 8):
        a(f"s_add_u32 {sT0}, {sX}, {i}"); a(f"s_and_b32 {sT0}, {sT0}, 7"); a(f"s_mul_i32 {sT0}, {sT0}, 4352"); a(f"s_add_u32 {sT0}, {sT0}, {WS_GC + 8*4352}")
        a(f"s_load_dword s{4+i}, s[28:29], {sT0} glc")
    a(f"s_add_u32 {sTg}, {sTg}, {gI}")
    a(f"s_sub_u32 {sT0}, {gc_}, {sT2}"); a(f"s_mul_i32 {sT0}, {sT0}, 7")
    a("s_waitcnt lgkmcnt(0)")
    for i in range(1, 8):
        a(f"s_xor_b32 s{4+i}, s{4+i}, s56"); a(f"s_cmp_lt_u32 s{4+i}, 0x4000"); a(f"s_cselect_b32 s{4+i}, s{4+i}, 0"); a(f"s_add_u32 {sT0}, {sT0}, s{4+i}")
    a(f"v_mov_b32 v10, {sT0}")
    a("s_mov_b64 exec, 1")
    a(f"buffer_store_dword v10, off, {WS}, {sG} offset:128")
    a("s_mov_b64 exec, -1")
    a("s_branch L_gloop")
    a("L_gend:")
    a("s_mov_b64 exec, -1")
    stamp("gov_end")
    a(f"s_add_u32 {sT1}, {sIn}, 4096")
    a(f"s_cmp_ge_u32 {sWG}, {NF}")
    for i in range(4 if g2 else 3): a("s_barrier")
    a("s_cbranch_scc1 L_g_fin")
    F = 64; NY = 2 << ylay
    def gY():
        for k in range(NY): a(f"buffer_load_dwordx4 {vr(F+4*k)}, {vL16}, {WS}, {sIn if k < 4 else sT1} offen offset:{1024*(k%4)} sc1")
    def y_chk():
        if not ytag: return sentinel(range(F, F + 4 * NY))
        for i in range(4 * NY): a(f"v_xor_b32 v{F+i}, {YT[i & 3]}, v{F+i}")
        a(f"v_or_b32 {t0}, v{F}, v{F+1}"); a(f"v_or_b32 {t2}, v{F+2}, v{F+3}")
        for i in range(4, 4 * NY, 2):
            c = (t0, t2)[(i >> 1) & 1]
            a(f"v_or3_b32 {c}, {c}, v{F+i}, v{F+i+1}")
        a(f"v_or_b32 {t0}, {t0}, {t2}"); a(f"v_and_b32 {t0}, 0xfff, {t0}"); a(f"v_cmp_ne_u32 vcc, 0, {t0}")
    poll("L_f", gY, y_chk, masked=True)
    st = 1
    while st < NY:
        for k in range(0, NY, 2 * st):
            for e in range(4): a(f"v_add_f32 v{F+4*k+e}, v{F+4*k+e}, v{F+4*(k+st)+e}")
        st *= 2
    a(f"v_permlane32_swap_b32 v{F}, v{F+1}"); a(f"v_permlane32_swap_b32 v{F+2}, v{F+3}")
    a(f"v_add_f32 v{F}, v{F}, v{F+1}"); a(f"v_add_f32 v{F+2}, v{F+2}, v{F+3}")
    a(f"v_permlane16_swap_b32 v{F}, v{F+2}")
    a(f"v_add_f32 v{F}, v{F}, v{F+2}")
    red("v_add_f32", f"v{F}", ((4, 8), (8,), ())[ylay])
    a(f"v_cvt_pk_bf16_f32 v{F}, v{F}, v{F}")
    em = (0x000f000f, 0x00ff00ff, 0xffffffff)[ylay]
    a(f"s_mov_b32 exec_lo, {em}"); a(f"s_mov_b32 exec_hi, {em}")
    a(f"buffer_store_short v{F}, {t3}, {OUT}, {sOut} offen")
    a(f"s_cmp_eq_u32 {sWG}, 0"); a("s_cbranch_scc0 L_g_fin")
    a("v_mov_b32 v8, s56"); a("v_mov_b32 v9, s57"); a(f"s_mov_b32 {sT0}, {WS_EP}")
    a("s_mov_b64 exec, 1")
    a(f"buffer_store_dwordx2 v[8:9], off, {WS}, {sT0} sc1")
    a("L_g_fin:")
    finish()

    cur[0] = "h"
    a("L_helper:")
    a(f"s_cmp_eq_u32 {sW}, 5"); a("s_cbranch_scc1 L_gov")
    a("s_getpc_b64 s[30:31]")
    a("L_pc:")
    a(f"s_sub_u32 s30, s30, L_pc-{NAME}_kernel"); a("s_subb_u32 s31, s31, 0")
    a(f"s_lshl_b32 {sT1}, {sR}, 7")
    a(f"v_lshl_add_u32 {t0}, {vL}, 12, {sT1}")
    a(f"v_min_u32 {t0}, L_end-{NAME}_kernel, {t0}")
    a("s_mov_b64 exec, 0x7f")
    a(f"global_load_dword v2, {t0}, s[30:31]")
    a("s_mov_b64 exec, -1")
    XOP = 64; WOP = 96; QD = 208
    vXo = "v5"; vL8 = "v7"; vQt = "v17"
    a(f"v_lshrrev_b32 {t3}, 3, {vL}"); a(f"v_and_b32 {t2}, 7, {vL}"); a(f"v_lshlrev_b32 {t2}, 4, {t2}")
    a(f"v_lshl_add_u32 {vKo}, {t3}, 13, {t2}")
    a(f"v_and_b32 {vXo}, 3, {vL}"); a(f"v_mul_u32_u24 {vXo}, 896, {vXo}"); a(f"v_lshl_add_u32 {vXo}, {vg}, 4, {vXo}")
    a(f"s_bfe_u32 s44, {sR}, 0x10003")
    a(f"s_and_b32 s45, {sR}, 7"); a(f"s_lshl3_add_u32 s45, {sX}, s45")
    a(f"s_mul_i32 s46, s44, {224*8192}"); a("s_lshl_b32 s47, s45, 7"); a(f"s_add_u32 {sOff}, s46, s47")
    a(f"s_mul_i32 {sT2}, s44, 448")
    srd(32, None, None, 0x380000); srd(36, None, None, 3584)
    a(f"s_mov_b32 m0, {L_WQ}")
    a(f"s_cmp_eq_u32 {sT0}, 0")
    a("s_waitcnt lgkmcnt(0)")
    a("s_cselect_b32 s32, s10, s20"); a("s_cselect_b32 s33, s11, s21")
    a("s_cselect_b32 s36, s4, s14"); a("s_cselect_b32 s37, s5, s15")
    tag_load()
    idk = []
    for k in range(7):
        a(f"buffer_load_dwordx4 {vr(XOP+4*k)}, {vXo}, {XS}, {sT2} offen offset:{64*k}")
        for j in range(4):
            r = a(f"buffer_load_dwordx4 {vKo}, {WQ}, {sOff} offen {pol} lds")
            if k < 6 or j < 3:
                a("s_add_u32 m0, m0, 1024"); a(f"s_add_u32 {sOff}, {sOff}, 65536")
        idk.append(r)
    stamp("wq_issued")
    sQs = "s64"; sMc = "s48"; sPa = "s49"; sPb = "s50"; sBz = "s51"; sRd = "s69"; sFl = "s70"
    a(f"s_lshl1_add_u32 {sQs}, {sT0}, s44"); a(f"s_lshl_b32 {sQs}, {sQs}, 16"); a("s_lshl_b32 s46, s45, 10"); a(f"s_add_u32 {sQs}, {sQs}, s46")
    a(f"s_lshl3_add_u32 {sMc}, {sT0}, {sX}"); a(f"s_and_b32 {sT3}, {sR}, 15"); a(f"s_lshl4_add_u32 {sMc}, {sMc}, {sT3}")
    a(f"s_lshl_b32 {sMc}, {sMc}, 7"); a(f"s_add_u32 {sMc}, {sMc}, {WS_ML}")
    srd(60, "s28", "s29", WS_END); srd(52, "s22", "s23", 0x380000)
    unit(1); unit_v()
    a(f"s_lshl_b32 {sRecA}, {sH}, 14"); a(f"s_add_u32 {sRecA}, {sRecA}, {WS_PO}")
    a(f"s_lshl_b32 {sRecB}, {sX}, 15"); a(f"s_add_u32 {sRecB}, {sRecB}, {WS_PO + 16*16384}")
    a(f"s_lshl_b32 {sPa}, {sT3}, 9"); a(f"s_add_u32 {sPa}, {sPa}, {sRecA}")
    a(f"s_lshl_b32 {sPb}, {sR}, 9"); a(f"s_add_u32 {sPb}, {sPb}, {sRecB}")
    a(f"v_and_b32 {t0}, 31, {vL}"); a(f"v_lshlrev_b32 {t0}, 4, {t0}"); a(f"v_lshrrev_b32 {t1}, 5, {vL}"); a(f"v_lshl_add_u32 v18, {t1}, 14, {t0}")
    a(f"s_lshl4_add_u32 {sRecA}, {sT3}, {sRecA}")
    a(f"s_lshr_b32 {sT0}, {sR}, 3"); a(f"s_and_b32 {sT1}, {sR}, 3"); a(f"s_lshl2_add_u32 {sT0}, {sT0}, {sT1}"); a(f"s_lshl4_add_u32 {sRecB}, {sT0}, {sRecB}")
    a(f"s_bfe_u32 {sT0}, {sR}, 0x10002"); a(f"s_lshl_b32 {sT0}, {sT0}, 13"); a(f"s_add_u32 {sRecB}, {sRecB}, {sT0}")
    a(f"v_lshrrev_b32 {t0}, 1, {vL}"); a(f"v_lshlrev_b32 {t0}, 8, {t0}"); a(f"v_and_b32 {t1}, 1, {vL}"); a(f"v_lshl_add_u32 {vPa}, {t1}, 3, {t0}")
    a(f"s_mul_i32 {sRd}, {sX}, 4352"); a(f"s_add_u32 {sRd}, {sRd}, {WS_GC}")
    a(f"s_cmp_eq_u32 {sR}, 0"); a(f"s_cselect_b32 {sBz}, {sRd}, {OOB}")
    a(f"s_lshl_b32 {sFl}, {sX}, 12"); a(f"s_add_u32 {sFl}, {sFl}, {WS_FL}")
    for i in range(4): a(f"v_mov_b32 v{AOP+i}, -1")
    for i in range(4): a(f"v_mov_b32 v{ACC+i}, 0")
    a(f"v_lshlrev_b32 {vL16}, 4, {vL}"); a(f"v_lshlrev_b32 {vL8}, 3, {vL}"); a(f"v_lshlrev_b32 {t3}, 7, {vL}")
    a(f"v_and_b32 {t0}, 3, {vn}"); a(f"v_lshlrev_b32 {t0}, 8, {t0}"); a(f"v_lshrrev_b32 {t1}, 2, {vn}")
    a(f"v_lshl_add_u32 {t0}, {t1}, 6, {t0}"); a(f"v_lshl_add_u32 {vQt}, {vg}, 4, {t0}")
    def hello_ld(): a(f"buffer_load_dwordx2 v[12:13], {t3}, {WS}, {sFl} offen sc1")
    for k in range(8):
        if k < 7: a.wait_vm(idk[k])
        if k == hk:
            a("s_mov_b32 exec_hi, 0"); hello_ld(); a("s_mov_b32 exec_hi, -1")
        if k: a("s_waitcnt lgkmcnt(0)")
        if k < 7:
            for c in range(4):
                a(f"ds_read_b64_tr_b16 {vr(WOP+16*(k%3)+4*c,2)}, {vTr} offset:{L_WQ + k*4096 + 32*c}")
                a(f"ds_read_b64_tr_b16 {vr(WOP+16*(k%3)+4*c+2,2)}, {vTr} offset:{L_WQ + k*4096 + 32*c + 512}")
        if k:
            for c in range(4):
                a(f"v_mfma_f32_16x16x32_bf16 {vr(QD+4*c)}, {vr(WOP+16*((k-1)%3)+4*c)}, {vr(XOP+4*(k-1))}, {vr(QD+4*c) if k > 1 else 0}")
    tag_make(); ytag_make()
    for c in range(1, 4):
        for e in range(4):
            a(f"v_mov_b32_dpp v{QD+e}, v{QD+4*c+e} quad_perm:[0,1,2,3] row_mask:0xf bank_mask:{1<<c}")
    a(f"ds_write_b128 {vQt}, {vr(QD)} offset:{L_PART}")
    a(f"ds_read_b128 {vr(QD)}, {vL16} offset:{L_PART}")
    stamp("q_done")
    a("s_waitcnt vmcnt(0) lgkmcnt(0)")
    a("s_mov_b32 exec_hi, 0")
    poll("L_fl", hello_ld, lambda: tag_chk([12]), sleep=16, masked=True, first_issued=True)
    a("v_cmp_ne_u32 vcc, s59, v13")
    a("s_cmp_eq_u32 vcc_lo, 0"); a(f"s_cselect_b32 {sLocal}, {2 if force_remote else 1}, 2")
    stamp("hello_seen")
    a("v_mov_b32 v8, s56"); a("v_mov_b32 v9, s59")
    a(f"s_lshl3_add_u32 {sT1}, {sR}, {sRd}")
    def first_stores(b):
        a(f"buffer_store_dwordx4 {vr(QD)}, {vL16}, {WS}, {sQs} offen{b}")
        a(f"buffer_store_dwordx4 {vr(AOP)}, v18, {WS}, {sPb} offen{b}")
        a("s_mov_b32 exec_hi, 0")
        a(f"buffer_store_dwordx4 {vr(AOP)}, v18, {WS}, {sPa} offen{b}")
        a("s_mov_b32 exec_lo, 0xffff")
        a(f"buffer_store_dwordx4 {vr(ACC)}, {vL16}, {WS}, {sBz} offen{b}")
        a("s_mov_b32 exec_lo, 0xff")
        a(f"buffer_store_dwordx4 {vr(AOP)}, {vL16}, {WS}, {sMc} offen{b}")
        a("s_mov_b32 exec_lo, 1")
        a("s_waitcnt vmcnt(0)")
        a(f"buffer_store_dwordx2 v[8:9], off, {WS}, {sT1} offset:256{b}")
    by_placement("first", first_stores)
    a("s_mov_b32 exec_lo, -1")
    stamp("ready")
    poll("L_rd", lambda: a(f"buffer_load_dwordx2 v[12:13], {vL8}, {WS}, {sRd} offen offset:256 sc1"), lambda: tag_chk([12]), sleep=hsleep, masked=True)
    stamp("go_seen")
    a(f"v_lshlrev_b32 {t0}, 4, {vn}"); a(f"v_lshl_add_u32 {t0}, {vg}, 10, {t0}")
    a(f"s_lshr_b32 {sT0}, {sR}, 3"); a(f"s_lshl_b32 {sT0}, {sT0}, 8"); a(f"s_lshl_b32 {sT1}, {sX}, 13"); a(f"s_add_u32 {sT0}, {sT0}, {sT1}")
    a(f"s_add_u32 {sT0}, {sT0}, 0x20000")
    a(f"s_lshl4_add_u32 {sT2}, {sH}, {sB}"); a(f"s_lshl_b32 {sT2}, {sT2}, 8")
    for u in (2, 0, 1):
        for kh in range(2):
            a(f"s_add_u32 {sT1}, {sT2 if u == 2 else sT0}, {kh * 0x10000 + (4096 if u == 1 else 0)}")
            a(f"buffer_load_dwordx4 {vr(64+8*u+4*kh)}, {t0}, {WS}, {sT1} offen sc1")
    a(f"v_mov_b32 {t0}, {L_LOC}"); a(f"v_mov_b32 {t1}, {sLocal}"); a(f"ds_write_b32 {t0}, {t1}")
    a("s_waitcnt vmcnt(0)")
    for u in range(3):
        for e in range(4): a(f"v_add_f32 v{64+8*u+e}, v{64+8*u+e}, v{64+8*u+4+e}")
        for e in range(2): a(f"v_cvt_pk_bf16_f32 v{64+8*u+e}, v{64+8*u+2*e}, v{64+8*u+2*e+1}")
        a(f"ds_write_b64 {vL8}, {vr(64+8*u,2)} offset:{L_Q+512*u}")
    a("s_waitcnt lgkmcnt(0)")
    stamp("q_in_lds")
    a("s_barrier")
    def all_ld():
        for i in range(4):
            a(f"s_mov_b32 {sT1}, {WS_FL + 8192*i}")
            a(f"buffer_load_dwordx2 v[{8+2*i}:{9+2*i}], {t3}, {WS}, {sT1} offen sc1")
    if not ytag: poll("L_all", all_ld, lambda: tag_chk([8, 10, 12, 14]), sleep=8)
    def wob_dma():
        a(f"s_mov_b32 m0, {L_WOB}")
        for j in range(16):
            a(f"buffer_load_dwordx4 {vWo}, {WOB}, {sU} offen {pol} lds")
            if j < 15: a("s_add_u32 m0, m0, 1024"); a(f"s_add_u32 {sU}, {sU}, {8*896}")
    a(f"v_mov_b32 {t3}, 0")
    poll("L_cnt", lambda: a(f"ds_read_b32 v8, {t3} offset:{L_CNT}"), lambda: a("v_cmp_ne_u32 vcc, 4, v8"), sleep=16)
    stamp("B_in_lds")
    CB = 184
    def combine(u):
        for w in range(4): a(f"ds_read_b128 {vr(CB+4*w)}, {vL16} offset:{L_PART + 4096*u + 1024*w}")
        a("s_waitcnt lgkmcnt(0)" if stamps else "s_waitcnt lgkmcnt(2)")
        for e in range(4): a(f"v_add_f32 v{CB+e}, v{CB+e}, v{CB+4+e}")
        a("s_waitcnt lgkmcnt(0)")
        for e in range(4): a(f"v_add_f32 v{CB+8+e}, v{CB+8+e}, v{CB+12+e}")
        for e in range(4): a(f"v_add_f32 v{CB+e}, v{CB+e}, v{CB+8+e}")
        for e in range(2): a(f"v_cvt_pk_bf16_f32 v{CB+e}, v{CB+2*e}, v{CB+2*e+1}")
        for e in range(2): a(f"v_min_u32 v{CB+16+2*u+e}, -2, v{CB+e}")
    def publish(u, so):
        by_placement(f"pub{u}", lambda b: a(f"buffer_store_dwordx2 {vr(CB+16+2*u,2)}, {vPa}, {WS}, {so} offen{b}"), have_scc=True)
    a(f"s_add_u32 {sT0}, {sRecB}, 16384")
    a(f"s_cmp_eq_u32 {sLocal}, 1")
    for u in range(2):
        combine(u); publish(u, (sRecB, sT0)[u])
    a(f"s_cmp_ge_u32 {sR}, 28"); a("s_cbranch_scc1 L_h_nos2")
    GB = 128; OB = 64
    a(f"s_add_u32 {sT0}, {sG}, 8192")
    def gB():
        for st in range(2):
            for k in range(4): a(f"buffer_load_dwordx4 {vr(GB+16*st+4*k)}, {vGo}, {WS}, {(sG, sT0)[st]} offen offset:{1024*k} sc1")
    poll("L_s2b", gB, lambda: sentinel(range(GB, GB + 32)), sleep=16, masked=True)
    for i in range(16):
        a(f"v_lshlrev_b32 v{160+i}, 16, v{GB+i}"); a(f"v_lshlrev_b32 {t0}, 16, v{GB+16+i}")
        a(f"v_and_b32 v{GB+i}, 0xffff0000, v{GB+i}"); a(f"v_and_b32 v{GB+16+i}, 0xffff0000, v{GB+16+i}")
        a(f"v_add_f32 v{160+i}, v{160+i}, {t0}"); a(f"v_add_f32 v{GB+i}, v{GB+i}, v{GB+16+i}")
    for qp in (QP1, QP2):
        for i in range(16):
            a(f"v_add_f32_dpp v{160+i}, v{160+i}, v{160+i} {qp}"); a(f"v_add_f32_dpp v{GB+i}, v{GB+i}, v{GB+i} {qp}")
    for i in range(16): a(f"v_cvt_pk_bf16_f32 v{GB+i}, v{160+i}, v{GB+i}")
    for c in range(4):
        m = 0x11111111 << c
        a(f"s_mov_b32 vcc_lo, {m}"); a(f"s_mov_b32 vcc_hi, {m}")
        for i in range(16): a(f"v_cndmask_b32 v{OB+16*c+i}, 0, v{GB+i}, vcc")
    if ytr:
        a(f"v_and_b32 {t0}, 3, {vL}"); a(f"v_lshlrev_b32 {t0}, 8, {t0}"); a(f"v_lshrrev_b32 {t1}, 2, {vn}")
        a(f"v_lshl_add_u32 {t0}, {t1}, 6, {t0}"); a(f"v_lshl_add_u32 {vQt}, {vg}, 4, {t0}")
        a(f"v_lshrrev_b32 {vYo}, {ylay}, {t1}"); a(f"v_mul_u32_u24 {vYo}, 28, {vYo}"); a(f"v_add_u32 {vYo}, {vYo}, {vg}"); a(f"v_lshlrev_b32 {vYo}, {11 + ylay}, {vYo}")
        a(f"v_and_b32 {t0}, {(4 << ylay) - 1}, {vL}"); a(f"v_lshl_add_u32 {vYo}, {t0}, 4, {vYo}")
    else:
        a(f"v_and_b32 {t0}, 3, {vL}"); a(f"v_lshl_add_u32 {vYo}, {t0}, {11 + ylay}, {vYo}")
    stamp("oB_ready")
    def prg_chk():
        a("v_add3_u32 v8, v8, v9, v10"); a("v_add_u32 v8, v8, v11"); a(f"v_cmp_gt_u32 vcc, {total - wob}, v8")
    poll("L_wob", lambda: a(f"ds_read_b128 v[8:11], {t3} offset:{L_PRG}"), prg_chk, sleep=1)
    wob_dma()
    if stamps:
        a("s_branch L_h_nos3")
        a("L_h_nos2:")
        names["h"].pop(); stamp("oB_ready")
        a("L_h_nos3:")
    else:
        a("L_h_nos2:")
    a(f"s_cmp_eq_u32 {sLocal}, 1")
    a("s_barrier")
    combine(2); publish(2, sRecA)
    stamp("published")
    a(f"s_cmp_ge_u32 {sR}, 28")
    if g2: a("s_barrier")
    a("s_barrier")
    a("s_cbranch_scc1 L_h_fin")
    a("s_waitcnt vmcnt(1)")
    WB = 128
    for k in range(5):
        if k: a("s_waitcnt lgkmcnt(0)")
        if k < 4:
            for c in range(4):
                a(f"ds_read_b64_tr_b16 {vr(WB+16*(k%3)+4*c,2)}, {vTr} offset:{L_WOB + k*4096 + 32*c}")
                a(f"ds_read_b64_tr_b16 {vr(WB+16*(k%3)+4*c+2,2)}, {vTr} offset:{L_WOB + k*4096 + 32*c + 512}")
        if k:
            for c in range(4):
                a(f"v_mfma_f32_16x16x32_bf16 {vr(QD)}, {vr(WB+16*((k-1)%3)+4*c)}, {vr(OB+16*c+4*(k-1))}, {vr(QD) if (k > 1 or c) else 0}")
    y_seal(QD)
    if ytr:
        a(f"ds_write_b128 {vQt}, {vr(QD)} offset:{L_PART}")
        a(f"ds_read_b128 {vr(QD)}, {vL16} offset:{L_PART}")
        a("s_waitcnt lgkmcnt(0)")
    if not ybd: a(f"buffer_store_dwordx4 {vr(QD)}, {vYo}, {WS}, {sY} offen sc1")
    a("L_h_fin:")
    stamp("yB")
    a("s_barrier")
    if ybd:
        a("s_cbranch_scc1 L_h_fin2")
        a(f"buffer_store_dwordx4 {vr(QD)}, {vYo}, {WS}, {sY} offen sc1")
        a("L_h_fin2:")
    if stamps: finish()
    a("L_end:")
    a("s_endpgm")
    a.pad()
    global STAMP_NAMES
    STAMP_NAMES = {k: v[:-1] for k, v in names.items()}
    head = HEADER + f"; @launch grid=(256,1,1) block=({64*NW},1,1) lds={L_KB + NL * 4096}\n"
    head += f'.amdgcn_target "amdgcn-amd-amdhsa--gfx950"\n.text\n.globl {NAME}_kernel\n.p2align 8\n.type {NAME}_kernel,@function\n{NAME}_kernel:\n'
    nv = 256 if stamps else max(RING + 4 * RP, 224)
    assert not (stamps and RP > 47)
    tail = f'''.section .rodata,"a"
.p2align 6
.amdhsa_kernel {NAME}_kernel
  .amdhsa_next_free_vgpr {nv}
  .amdhsa_next_free_sgpr 102
  .amdhsa_accum_offset {nv}
  .amdhsa_group_segment_fixed_size 0
  .amdhsa_kernarg_size 104
  .amdhsa_user_sgpr_count 2
  .amdhsa_user_sgpr_kernarg_segment_ptr 1
  .amdhsa_system_sgpr_workgroup_id_x 1
  .amdhsa_float_denorm_mode_32 3
.end_amdhsa_kernel
'''
    return head + a.text() + tail

if __name__ == "__main__":
    kw = eval("dict(" + (sys.argv[2] if len(sys.argv) > 2 else "") + ")")
    open(sys.argv[1], "w").write(gen(**kw))
```

```python
import os, sys, struct
from asmlib import Asm
def f2u(x): return struct.unpack('<I', struct.pack('<f', x))[0]

NAME = "concat_heads__mha_block_cached__sliding_block_cached__decode"
_ref = "cdna_kernels/" + NAME + ".s.ref"
HEADER = open(_ref).read().split("; Override launch")[0] if os.path.exists(_ref) else ""

WS_QP = 0x0
WS_ML = 0x40000
WS_PO = 0x48000
WS_FL = 0xC8000
WS_GC = 0xD0000
WS_EP = 0xE4000
WS_CH = 0xE5000
WS_Y = 0x100000
YG = 7 * 16384
WS_END = WS_Y + 8 * YG
WS_STAMP = 0x400000
L_WQ = 0
L_WOA = 0
L_WOB = 16384
L_PART = 32768
L_Q = L_PART + 12288
L_CNT = L_Q + 1536
L_LOC = L_CNT + 4
L_CH = L_CNT + 8
L_PRG = L_CNT + 16
L_TH = L_CNT + 32
L_KB = L_CNT + 512
OOB = 0x40000000
TAGC = (0x9E3779B9, 0x7F4A7C15)
CSCALE = 0x3DB8AA3B
NW = 6

def brev(j, bits): return int(f"{j:0{bits}b}"[::-1], 2)
FULL = "row_mask:0xf bank_mask:0xf"
QP1 = "quad_perm:[1,0,3,2] " + FULL
QP2 = "quad_perm:[2,3,0,1] " + FULL

def gen(D=5, D0=5, ND0=12, RP=46, NL=8, ratio=6, stamps=False, fine=False, spin=1 << 19, pol="nt", force_remote=False,
        th0=3.9, thmin=2, thmax=6, gain=0.125, gw=0.08, gx=0.75, gstop=2, gI=1536, gc=None,
        nend=0, rot=1, rotx=4, tlb=True, wod=4, wob=0, g2=True, hk=6, hsleep=2, outw=True, ywarm=0, ydw=True, ytr=True, ybd=True, pf2=0, d2c=True, wobl=True, nowo=0, fdel=0, fsl=0, near=None, nrace=4, outsc=False, fack=1, c0=6, dith=0.0, DE=8, wobs=None, wobn=2, bpipe=True):
    if wobs is not None: wobl = False; wob = -wobn
    ytag = True; ylay = 0; wbl = 0; noyb = False
    a = Asm()
    R = 16; LG = 8; THMAX = LG - 2; NTOT = 288; RT = RP + NL
    sWG = "s2"; sW = "s3"
    KA, VA, KB, VB, WQ, XS, WS, OUT, WOA, WOB = (f"s[{i}:{i+3}]" for i in (32, 36, 40, 44, 32, 36, 60, 44, 48, 52))
    sLb = "s64"
    sX, sR, sH, sB = "s72", "s73", "s74", "s75"
    sOff = "s76"; sCnt = "s77"; sT0 = "s78"; sT1 = "s79"; sT2 = "s80"; sT3 = "s81"
    sRecA = "s82"; sRecB = "s83"; sG = "s84"; sY = "s85"; sU = "s86"; sC = "s87"; sSpin = "s88"; sLocal = "s89"
    sMk1 = "s[90:91]"; sMk0 = "s[92:93]"; sTh = "s94"; sRot = "s95"
    vL = "v0"; vKo = "v1"; vM = [f"v{i}" for i in range(2, 6)]
    QA = 6; QB = 14; SP = 30; AOP = 34; ACC = 38
    T = ["v46", "v47"]; U = ["v48", "v49"]; V = ["v50", "v51"]; X = ["v52", "v53"]
    t0, t1, t2, t3 = "v54", "v55", "v56", "v57"
    vm, vl, vg, vn = "v58", "v59", "v60", "v61"
    vmB, vlB = "v62", "v63"
    RING = 64
    ACCB = 128; SB = "v136"; vfA = "v137"; MLG = 138; WT = 144; G = 160
    vGo = "v176"; vYo = "v177"; vTr = "v178"; vPa = "v179"; vPrg = "v180"; vPrA = "v181"; vTH = "v182"; vWo = "v183"; vYm = "v206"
    def slot(k): return RING + 4 * k
    def vr(i, n=4): return f"v[{i}:{i+n-1}]"
    names = {"s": [], "h": [], "g": []}
    cur = ["s"]
    def stamp(name):
        if not stamps: return
        nm = names[cur[0]]
        if nm:
            a("s_waitcnt lgkmcnt(0)")
            a(f"v_writelane_b32 v255, s96, {len(nm)-1}")
        nm.append(name)
        a("s_memrealtime s[96:97]")
    def finish():
        if stamps:
            a("s_mov_b64 exec, -1")
            stamp("end"); a("s_waitcnt vmcnt(0)"); stamp("acked"); stamp("x")
            a("s_mov_b32 exec_hi, 0")
            a(f"s_mul_i32 {sT0}, {sWG}, {NW}"); a(f"s_add_u32 {sT0}, {sT0}, {sW}"); a(f"s_lshl_b32 {sT0}, {sT0}, 7"); a(f"s_add_u32 {sT0}, {sT0}, {WS_STAMP}")
            a(f"v_lshl_add_u32 {t0}, {vL}, 2, {sT0}")
            a(f"global_store_dword {t0}, v255, s[28:29]")
        a("s_endpgm")
    def srd(i, lo, hi, size):
        if lo is not None: a(f"s_mov_b32 s{i}, {lo}"); a(f"s_mov_b32 s{i+1}, {hi}")
        a(f"s_mov_b32 s{i+2}, {size}"); a(f"s_mov_b32 s{i+3}, 0x20000")
    def poll(name, loads, check, sleep=0, first_issued=False, masked=False):
        sv = a.vm_seq
        a(f"s_mov_b32 {sSpin}, {spin}")
        if first_issued: a(f"s_branch {name}_chk")
        a(f"{name}:")
        if sleep: a(f"s_sleep {sleep}")
        loads()
        a(f"s_sub_u32 {sSpin}, {sSpin}, 1"); a(f"s_cmp_eq_u32 {sSpin}, 0")
        a("s_waitcnt vmcnt(0) lgkmcnt(0)")
        a(f"s_cbranch_scc1 {name}_go")
        if first_issued: a(f"{name}_chk:")
        check()
        if masked:
            a("s_and_b64 exec, exec, vcc")
            a(f"s_cbranch_scc1 {name}")
        else:
            a(f"s_cbranch_vccnz {name}")
        a(f"{name}_go:")
        if masked: a("s_mov_b64 exec, -1")
        if first_issued: a.vm_seq = sv
    def by_placement(tag, emit, have_scc=False):
        if not have_scc: a(f"s_cmp_eq_u32 {sLocal}, 1")
        a(f"s_cbranch_scc1 L_{tag}_l")
        sv = a.vm_seq
        emit(" sc1"); a.vm_seq = sv
        a(f"s_branch L_{tag}_d")
        a(f"L_{tag}_l:")
        emit("")
        a(f"L_{tag}_d:")
    def sentinel(regs):
        regs = list(regs); accs = [t0, t2]
        a(f"v_max_u32 {t0}, v{regs[0]}, v{regs[1]}"); a(f"v_max_u32 {t2}, v{regs[2]}, v{regs[3]}")
        for i in range(4, len(regs), 2):
            c = accs[(i >> 1) & 1]
            a(f"v_max3_u32 {c}, {c}, v{regs[i]}, v{regs[i+1]}")
        a(f"v_max_u32 {t0}, {t0}, {t2}")
        a(f"v_cmp_eq_u32 vcc, -1, {t0}")
    def red(op, r, steps):
        for s in steps:
            if s in (16, 32):
                a(f"v_mov_b32 {t1}, {r}"); a(f"v_permlane{s}_swap_b32 {r}, {t1}"); a(f"{op} {r}, {r}, {t1}")
            elif s == "q1": a(f"{op}_dpp {r}, {r}, {r} {QP1}")
            elif s == "q2": a(f"{op}_dpp {r}, {r}, {r} {QP2}")
            else: a(f"{op}_dpp {r}, {r}, {r} row_ror:{s} {FULL}")
    def rnd(r):
        a(f"v_cvt_pk_bf16_f32 {r}, {r}, {r}"); a(f"v_and_b32 {r}, 0xffff0000, {r}")
    def unit(P):
        a(f"s_mul_i32 {sT0}, {sR}, 37"); a(f"s_lshr_b32 {sT0}, {sT0}, 8")
        a(f"s_mul_i32 {sT1}, {sT0}, 7"); a(f"s_sub_u32 {sT1}, {sR}, {sT1}")
        a(f"s_lshl_b32 {sT2}, {sX}, 2"); a(f"s_add_u32 {sT0}, {sT0}, {sT2}")
        a(f"s_mul_i32 {sU}, {sT0}, {128*896}"); a(f"s_lshl_b32 {sT2}, {sT1}, 7"); a(f"s_add_u32 {sU}, {sU}, {sT2}")
        a(f"s_lshr_b32 {sG}, {sT0}, 1"); a(f"s_lshl_b32 {sG}, {sG}, 14"); a(f"s_and_b32 {sT2}, {sT0}, 1"); a(f"s_lshl_b32 {sT2}, {sT2}, 12")
        a(f"s_add_u32 {sG}, {sG}, {sT2}"); a(f"s_add_u32 {sG}, {sG}, {WS_PO + P*512*512}")
        a(f"s_lshl_b32 {sY}, {sT1}, 14"); a(f"s_lshl_b32 {sT2}, {sT0}, 6"); a(f"s_add_u32 {sY}, {sY}, {sT2}")
        a(f"s_add_u32 {sY}, {sY}, {WS_Y + P*4*YG}")
    def unit_v():
        a(f"v_lshrrev_b32 {t0}, 2, {vn}"); a(f"v_and_b32 {t2}, 3, {vn}")
        a(f"v_lshlrev_b32 {vGo}, 4, {vL}")
        a(f"v_mov_b32 {vYm}, 0xfffff000"); a(f"v_mov_b32 {vYo}, 0")
        a(f"v_lshl_add_u32 {vTr}, {vg}, 3, {t0}"); a(f"v_lshlrev_b32 {vTr}, 7, {vTr}"); a(f"v_lshl_add_u32 {vTr}, {t2}, 3, {vTr}")
        a(f"v_lshrrev_b32 {t0}, 3, {vL}"); a(f"v_mul_u32_u24 {t0}, 896, {t0}"); a(f"v_and_b32 {t2}, 7, {vL}"); a(f"v_lshl_add_u32 {vWo}, {t2}, 4, {t0}")
    sCh = "s71"
    def y_base(vb, P):
        a(f"v_mul_u32_u24 {vYo}, {YG}, {vb}")
        a(f"s_lshr_b32 {sT0}, {sCh}, {4*P}"); a(f"v_bfe_u32 {t2}, {sT0}, {vb}, 1"); a(f"v_lshl_add_u32 {vYo}, {t2}, 13, {vYo}")
    def tag_load(): a(f"s_load_dwordx2 s[56:57], s[28:29], {WS_EP}")
    def tag_make():
        a(f"s_add_u32 s56, s56, {TAGC[0]}"); a(f"s_addc_u32 s57, s57, {TAGC[1]}"); a("s_lshr_b32 s58, s57, 4")
        a(f"s_getreg_b32 {sT0}, hwreg(HW_REG_XCC_ID, 0, 4)")
        a("s_lshl_b32 s59, s58, 4"); a(f"s_or_b32 s59, s59, {sT0}")
    def tag_chk(regs):
        for i, r in enumerate(regs):
            a(f"v_lshrrev_b32 {t1}, 4, v{r+1}"); a(f"v_xor_b32 {t1}, s58, {t1}"); a(f"v_xor_b32 {t2}, s56, v{r}")
            if i: a(f"v_or3_b32 {t0}, {t0}, {t1}, {t2}")
            else: a(f"v_or_b32 {t0}, {t1}, {t2}")
        a(f"v_cmp_ne_u32 vcc, 0, {t0}")

    YT = ["s65", "s66", "s67", "s68"]
    def ytag_make():
        a(f"s_and_b32 {YT[0]}, s56, 0xfff"); a(f"s_bfe_u32 {YT[1]}, s56, 0xc000c")
        a(f"s_and_b32 {YT[2]}, s58, 0xfff"); a(f"s_bfe_u32 {YT[3]}, s58, 0xc000c")
    def y_seal(r):
        if not ytag:
            for e in range(4): a(f"v_min_u32 v{r+e}, -2, v{r+e}")
            return
        for e in range(4): a(f"v_add_u32 v{r+e}, 0x800, v{r+e}")
        for e in range(4): a(f"v_and_or_b32 v{r+e}, v{r+e}, {vYm}, {YT[e]}")
    YU = 2048 << ylay; YM = 64 << ylay

    a("s_load_dwordx16 s[4:19], s[0:1], 0")
    a("s_load_dwordx8 s[20:27], s[0:1], 64")
    a("s_load_dwordx2 s[28:29], s[0:1], 96")
    stamp("start"); names["h"] = list(names["s"]); names["g"] = list(names["s"])
    a(f"s_cmp_ge_u32 {sWG}, 256")
    a("s_cbranch_scc1 L_end")
    a(f"v_lshrrev_b32 {t2}, 6, v0")
    a(f"v_and_b32 {vL}, 63, v0")
    a(f"v_readfirstlane_b32 {sW}, {t2}")
    a(f"v_lshrrev_b32 {vg}, 4, {vL}")
    a(f"v_and_b32 {vn}, 15, {vL}")
    a(f"s_and_b32 {sX}, {sWG}, 7")
    a(f"s_lshr_b32 {sR}, {sWG}, 3")
    a(f"s_lshr_b32 {sT0}, {sWG}, 7")
    a(f"s_lshl1_add_u32 {sH}, {sX}, {sT0}")
    a(f"s_bfe_u32 {sB}, {sR}, 0x20002")
    a(f"s_cmp_ge_u32 {sW}, 4")
    a("s_cbranch_scc1 L_helper")

    a(f"v_lshl_add_u32 {vKo}, {t2}, 2, {vg}")
    a(f"v_lshl_add_u32 {vKo}, {vKo}, 5, {vn}")
    a(f"v_lshlrev_b32 {vKo}, 4, {vKo}")
    a(f"s_lshl4_add_u32 s40, {sB}, {sH}"); a(f"s_and_b32 s41, {sR}, 3"); a("s_lshl2_add_u32 s40, s40, s41"); a("s_lshl_b32 s40, s40, 19")
    srd(32, None, None, 0x80000)
    a(f"s_mov_b32 {sOff}, 0")
    rotate = rot or rotx
    def advance(n):
        a(f"s_addk_i32 {sOff}, 8192")
        if rotate and 128 <= n < 160: a(f"s_bitset0_b32 {sOff}, 16")
    a("s_waitcnt lgkmcnt(0)")
    a("s_add_u32 s32, s6, s40"); a("s_addc_u32 s33, s7, 0")
    ids = {}
    def srd_of(n): return KA if n < 128 else KB if n < 144 else VB if n < 160 else VA
    def kslot(n): return n if n < RP else R + (n - RP) % 8 if n < RT else (n - RT) % R
    def issue(n):
        if n in (128, 144, 160): a(f"s_mov_b32 {sOff}, {sRot if rotate and n < 160 else 0}")
        if RP <= n < RT:
            a(f"s_add_u32 m0, {sLb}, {256 + (n - RP) * 1024 - 256 * (n & 1)}")
            ids[n] = a(f"buffer_load_dwordx4 {vKo}, {srd_of(n)}, {sOff} offen offset:{256*(n&1)} {pol} lds")
        else:
            ids[n] = a(f"buffer_load_dwordx4 {vr(slot(kslot(n)))}, {vKo}, {srd_of(n)}, {sOff} offen offset:{256*(n&1)} {pol}")
        if n & 1: advance(n)
    for n in range(D0): issue(n)
    issued = D0
    stamp("k0")
    tag_load()
    a("s_add_u32 s36, s8, s40"); a("s_addc_u32 s37, s9, 0"); srd(36, None, None, 0x80000)
    a(f"s_lshl2_add_u32 {sRecA}, {sH}, {sB}"); a(f"s_lshl3_add_u32 {sRecA}, {sRecA}, s41")
    a(f"s_lshl_b32 {sRecB}, {sX}, 6"); a(f"s_add_u32 {sRecB}, {sRecB}, {sR}"); a(f"s_add_u32 {sRecB}, {sRecB}, 512")
    a(f"s_andn2_b32 s44, {sR}, 7"); a(f"s_add_u32 s44, s44, {sX}"); a("s_lshl_b32 s44, s44, 5")
    a(f"s_and_b32 s45, {sR}, 7"); a("s_add_u32 s44, s44, s45"); a("s_add_u32 s44, s44, 24"); a("s_lshl_b32 s44, s44, 16")
    a("s_add_u32 s40, s16, s44"); a("s_addc_u32 s41, s17, 0"); srd(40, None, None, 0x10000)
    a("s_add_u32 s44, s18, s44"); a("s_addc_u32 s45, s19, 0"); srd(44, None, None, 0x10000)
    srd(60, "s28", "s29", WS_END); srd(48, "s12", "s13", 0 if nowo & 1 else 0x380000)
    unit(0)
    a(f"s_mul_i32 {sT0}, {sW}, {4*8*896}"); a(f"s_add_u32 {sU}, {sU}, {sT0}")
    a(f"s_lshl_b32 {sT0}, {sW}, 11"); a(f"s_add_u32 {sY}, {sY}, {sT0}")
    a(f"s_cmp_ge_u32 {sR}, 28"); a(f"s_cselect_b32 {sU}, {OOB}, {sU}"); a(f"s_cselect_b32 {sG}, {OOB}, {sG}")
    if rotate:
        a(f"s_mul_i32 {sRot}, {sR}, {rot}"); a(f"s_mul_i32 {sT0}, {sX}, {rotx}"); a(f"s_add_u32 {sRot}, {sRot}, {sT0}")
        a(f"s_and_b32 {sRot}, {sRot}, 7"); a(f"s_lshl_b32 {sRot}, {sRot}, 13")
    a(f"s_mov_b32 {sC}, {CSCALE}")
    a("s_mov_b32 s90, 0xcccccccc"); a("s_mov_b32 s91, 0xcccccccc")
    a("s_mov_b32 s92, 0xaaaaaaaa"); a("s_mov_b32 s93, 0xaaaaaaaa")
    a(f"v_bfe_u32 {t0}, {vL}, 1, 2")
    a(f"v_mov_b32 {t2}, 0xffff"); a(f"v_mov_b32 {t1}, 0xffff0000")
    a(f"v_cndmask_b32 {t2}, {t2}, {t1}, {sMk0}")
    for j in range(4):
        a(f"v_cmp_eq_u32 vcc, {j}, {t0}")
        a(f"v_cndmask_b32 {vM[j]}, 0, {t2}, vcc")
    a(f"v_lshlrev_b32 {t3}, 4, {vn}"); a(f"v_mov_b32 {t0}, {L_LOC}")
    a(f"s_mul_i32 {sLb}, {sW}, {NL * 1024}"); a(f"s_add_u32 {sLb}, {sLb}, {L_KB - 256}")
    landed = -1
    def throttled_issue():
        nonlocal issued, landed
        d = D0 if issued < ND0 else D
        if issued - d > landed:
            landed = issued - d; a.wait_vm(ids[landed])
        issue(issued); issued += 1
    while issued < RT:
        throttled_issue()
        if fine and issued in (D0 + 1, 16, 26, 36, 46, 56, 66): stamp(f"ki{issued}")
        if issued == 24:
            a("s_waitcnt lgkmcnt(0)"); tag_make(); ytag_make()
    stamp("ring_full")
    a("s_barrier")
    a(f"ds_read_b128 {vr(QA)}, {t3} offset:{L_Q+1024}"); a(f"ds_read_b128 {vr(QA+4)}, {t3} offset:{L_Q+1024+256}")
    for k in range(4): a(f"ds_read_b128 {vr(QB+4*k)}, {t3} offset:{L_Q+256*k}")
    a(f"ds_read2_b32 v[54:55], {t0} offset0:0 offset1:1")
    a(f"v_lshl_add_u32 {t3}, {vL}, 4, {sLb}")
    a("s_waitcnt lgkmcnt(0)")
    a(f"v_readfirstlane_b32 {sLocal}, {t0}"); a(f"v_readfirstlane_b32 {sCh}, {t1}")
    stamp("q_ready")

    def tree(j, acc, dst_fn):
        u = U[(j >> 1) & 1]
        a(f"v_add_f32_dpp {u}, {acc}, {acc} row_ror:8 row_mask:0xf bank_mask:{'0xc' if j & 1 else '0x3'}")
        if not j & 1: return
        v = V[(j >> 2) & 1]
        a(f"v_add_f32_dpp {v}, {u}, {u} row_half_mirror row_mask:0xf bank_mask:{'0xa' if j & 2 else '0x5'}")
        if not j & 2: return
        a(f"v_add_f32_dpp {v}, {v}, {v} {QP2}")
        if not j & 4: return
        x = X[(j >> 3) & 1]
        a(f"v_cndmask_b32 {x}, {V[0]}, {V[1]}, {sMk1}")
        a(f"v_add_f32_dpp {x}, {x}, {x} {QP1}")
        if not j & 8: return
        dst_fn()
    def dots(acc, kr, qr, first):
        if d2c and first: a(f"v_mov_b32 {acc}, 0")
        for e in range(4):
            if d2c: a(f"v_dot2c_f32_bf16 {acc}, v{kr+e}, v{qr+e}")
            else: a(f"v_dot2_f32_bf16 {acc}, v{kr+e}, v{qr+e}, {0 if first and not e else acc}")
    def procK(n):
        k = kslot(n); j = (n >> 1) & 15; hf = n & 1
        acc = T[j & 1]
        dots(acc, slot(k), QA + 4 * hf, not hf)
        if hf: tree(j, acc, lambda: a(f"v_cndmask_b32 v{SP+(n>>5)}, {X[0]}, {X[1]}, {sMk0}"))
    def procKB(n):
        k = kslot(n); j = (n - 128) >> 1; hf = n & 1
        for hd in range(2):
            dots(T[hd], slot(k), QB + 8 * hd + 4 * hf, not hf)
        if not hf: return
        for hd in range(2):
            tree(2 * j + hd, T[hd], lambda: a(f"v_cndmask_b32 {SB}, {X[0]}, {X[1]}, {sMk0}"))
    def procVB(n):
        k = kslot(n); j = (n - 144) >> 1; hf = n & 1
        if not hf:
            a(f"v_mov_b32_dpp {t0}, {SB} row_newbcast:{brev(j,3)} row_mask:0xf bank_mask:0x3")
            a(f"v_mov_b32_dpp {t0}, {SB} row_newbcast:{8+brev(j,3)} row_mask:0xf bank_mask:0xc")
            for e in range(4): a(f"v_and_b32 v{AOP+e}, {t0}, {vM[e]}")
        a(f"v_mfma_f32_16x16x32_bf16 {vr(ACCB+4*hf)}, {vr(AOP)}, {vr(slot(k))}, {vr(ACCB+4*hf) if j else 0}")
    def procV(n, last=False):
        k = kslot(n); j = (n >> 1) & 15; hf = n & 1
        if not hf:
            for e in range(4):
                a(f"v_and_b32_dpp v{AOP+e}, v{SP}, {vM[e]} row_newbcast:{brev(j,4)} {FULL}")
        a(f"v_mfma_f32_16x16x32_bf16 {vr(ACC+4*hf)}, {vr(AOP)}, {vr(slot(k))}, {vr(ACC+4*hf)}")
        if hf and j == 15 and not last:
            for e in range(3): a(f"v_mov_b32 v{SP+e}, v{SP+e+1}")
    p = 0; burst = 0; AH = 4
    while not (p % 4 == 0 and issued - p == LG and p >= RT):
        if issued - p == LG: throttled_issue()
        n = p + AH
        if RP <= n < RT:
            assert n <= landed and kslot(n) < p
            a(f"ds_read_b128 {vr(slot(kslot(n)))}, {t3} offset:{256 + (n - RP) * 1024}")
        if RP <= p < RT: a(f"s_waitcnt lgkmcnt({min(AH, RT - 1 - p)})")
        assert p <= landed
        procK(p); p += 1
        free = (issued - R < p) if issued >= RT + R else (issued - RT < p)
        if issued - p > LG and free and (burst < D or p % ratio == 0):
            throttled_issue(); burst += 1
        assert p <= 128 - LG
    P0 = p
    lead = nend
    total = (NTOT - LG - lead - P0) // 2 * 4
    a(f"s_lshl2_add_u32 {sT0}, {sW}, {L_PRG}")
    a(f"v_mov_b32 {vPrA}, {sT0}"); a(f"v_mov_b32 {vPrg}, 0")
    a(f"s_mov_b32 {sTh}, {int(th0)}")
    stamp("caught_up")
    nlad = [0]
    def throttle(j):
        if j & 1:
            a("s_waitcnt lgkmcnt(0)")
            a(f"v_readfirstlane_b32 {sTh}, {vTH}")
        nlad[0] += 1
        assert thmax <= THMAX
        for th in range(thmax, thmin - 1, -1):
            a(f"s_waitcnt vmcnt({th})")
            if th > thmin:
                a(f"s_cmp_ge_u32 {sTh}, {th}"); a(f"s_cbranch_scc1 L_lad{nlad[0]}")
        a(f"L_lad{nlad[0]}:")
    def post(j):
        a(f"v_add_u32 {vPrg}, 1, {vPrg}")
        a(f"ds_write_b32 {vPrA}, {vPrg}")
        if not j & 1: a(f"ds_read_b32 {vTH}, {vPrA} offset:{L_TH - L_PRG}")
    def softmaxA():
        for e in range(4): rnd(f"v{SP+e}")
        a(f"v_max3_f32 {vm}, v{SP}, v{SP+1}, v{SP+2}"); a(f"v_max_f32 {vm}, {vm}, v{SP+3}")
        red("v_max_f32", vm, (8, 4, 2, 1, 16, 32))
        a(f"v_mul_f32 {vm}, {sC}, {vm}")
        for e in range(4): a(f"v_fma_f32 v{SP+e}, v{SP+e}, {sC}, -{vm}")
        for e in range(4): a(f"v_exp_f32 v{SP+e}, v{SP+e}")
        a(f"v_add_f32 {vl}, v{SP}, v{SP+1}"); a(f"v_add_f32 {t0}, v{SP+2}, v{SP+3}"); a(f"v_add_f32 {vl}, {vl}, {t0}")
        for e in range(4): a(f"v_cvt_pk_bf16_f32 v{SP+e}, v{SP+e}, v{SP+e}")
    def softmaxA2():
        red("v_add_f32", vl, (8, 4, 2, 1, 16, 32))
        for e in range(8): a(f"v_mov_b32 v{ACC+e}, 0")
        a(f"v_min_u32 {vm}, -2, {vm}"); a(f"v_min_u32 {vl}, -2, {vl}")
        a(f"s_lshl2_add_u32 {sT0}, {sRecA}, {sW}"); a(f"s_lshl3_add_u32 {sT0}, {sT0}, {WS_ML}")
        a("s_mov_b64 exec, 1")
        by_placement("mla", lambda b: a(f"buffer_store_dwordx2 v[58:59], off, {WS}, {sT0}{b}"))
        a("s_mov_b64 exec, -1")
    def softmaxB():
        rnd(SB)
        a(f"v_mul_f32 {SB}, {sC}, {SB}")
        a(f"v_max_f32_dpp {vmB}, {SB}, {SB} row_half_mirror {FULL}")
        red("v_max_f32", vmB, ("q1", "q2", 16, 32))
        a(f"v_sub_f32 {SB}, {SB}, {vmB}"); a(f"v_exp_f32 {SB}, {SB}")
        a(f"v_add_f32_dpp {vlB}, {SB}, {SB} row_half_mirror {FULL}")
        a(f"v_cvt_pk_bf16_f32 {SB}, {SB}, {SB}")
    def softmaxB2():
        red("v_add_f32", vlB, ("q1", "q2", 16, 32))
        a(f"v_min_u32 {vmB}, -2, {vmB}"); a(f"v_min_u32 {vlB}, -2, {vlB}")
        a(f"s_lshl2_add_u32 {sT0}, {sRecB}, {sW}"); a(f"s_lshl3_add_u32 {sT0}, {sT0}, {WS_ML}")
        a(f"v_lshlrev_b32 {t2}, 7, {vn}")
        a("s_mov_b64 exec, 0x101")
        by_placement("mlb", lambda b: a(f"buffer_store_dwordx2 v[62:63], {t2}, {WS}, {sT0} offen{b}"))
        a("s_mov_b64 exec, -1")
    for n in range(p, 160):
        if not n & 1:
            throttle(n >> 1); issue(n + LG); issue(n + LG + 1); post(n >> 1)
        (procK if n < 128 else procKB if n < 144 else procVB)(n)
        if n == 127: stamp("K_done"); softmaxA()
        if n == 129: softmaxA2()
        if n == 131: unit_v()
        if n == 133:
            a(f"s_lshl_b32 {sT0}, {sW}, 5"); a(f"v_add_u32 {vTr}, {sT0}, {vTr}")
            a(f"s_lshl_b32 {sLb}, {sW}, 12")
            if ydw:
                y_base(vg, 0); a(f"v_lshl_add_u32 {vYo}, {vn}, 2, {vYo}")
                a(f"v_mov_b32 {t0}, {YT[0]}"); a(f"v_mov_b32 {t1}, {YT[1]}"); a(f"v_cndmask_b32 {t0}, {t0}, {t1}, {sMk0}")
                a(f"v_mov_b32 {t2}, {YT[2]}"); a(f"v_mov_b32 {t1}, {YT[3]}"); a(f"v_cndmask_b32 {t2}, {t2}, {t1}, {sMk0}")
                a(f"v_cndmask_b32 v207, {t0}, {t2}, {sMk1}")
            else:
                a(f"v_lshrrev_b32 {t0}, 2, {vn}"); y_base(t0, 0); a(f"v_lshl_add_u32 {vYo}, {vg}, 4, {vYo}")
            a(f"v_and_b32 {t0}, 1, {vg}"); a(f"v_lshlrev_b32 {t0}, 4, {t0}"); a(f"v_lshl_add_u32 {t0}, {vn}, 5, {t0}")
            a(f"s_lshl_b32 {sT0}, {sW}, 10"); a(f"s_add_u32 {sT0}, {sT0}, {L_PART}")
            a(f"v_add_u32 {vPa}, {sT0}, {t0}")
        if n == 143: softmaxB()
        if n == 145: softmaxB2()
    stamp("B_done")
    assert lead % 4 == 0 and lead <= 32 - LG
    a(f"s_mov_b32 {sCnt}, 4")
    a("L_v:")
    a(f"s_cmp_eq_u32 {sCnt}, 3"); a("s_cbranch_scc1 L_ml_issue")
    a(f"s_cmp_eq_u32 {sCnt}, 2"); a("s_cbranch_scc1 L_ml_use")
    a("L_v_body:")
    for n in range(160, 192, 2):
        if n == 192 - LG - lead:
            a(f"s_sub_u32 {sCnt}, {sCnt}, 1"); a(f"s_cmp_eq_u32 {sCnt}, 0"); a("s_cbranch_scc1 L_v_x")
        throttle(n >> 1); issue(n + LG); issue(n + LG + 1); post(n >> 1)
        procV(n); procV(n + 1)
    a("s_branch L_v")
    def ml_loads():
        a(f"buffer_load_dwordx2 {vr(MLG,2)}, {U[0]}, {WS}, {sT0} offen sc1")
        a(f"buffer_load_dwordx2 {vr(MLG+2,2)}, {U[1]}, {WS}, {sT1} offen sc1")
    a("L_ml_issue:")
    a(f"s_andn2_b32 {sT0}, {sRecA}, 7"); a(f"s_lshl_b32 {sT0}, {sT0}, 5"); a(f"s_add_u32 {sT0}, {sT0}, {WS_ML}")
    a(f"s_andn2_b32 {sT1}, {sRecB}, 7"); a(f"s_lshl_b32 {sT1}, {sT1}, 5"); a(f"s_add_u32 {sT1}, {sT1}, {WS_ML}")
    a(f"v_lshlrev_b32 {U[0]}, 3, {vn}")
    a(f"v_and_b32 {t0}, 31, {vL}"); a(f"v_lshlrev_b32 {t0}, 3, {t0}"); a(f"v_lshrrev_b32 {t1}, 5, {vL}"); a(f"v_lshl_add_u32 {U[1]}, {t1}, 10, {t0}")
    ml_loads()
    a("s_branch L_v_body")
    a("L_ml_use:")
    poll("L_ml", ml_loads, lambda: sentinel(range(MLG, MLG + 4)), sleep=2, first_issued=True)
    MA, MB = V
    a(f"v_max_f32_dpp {MA}, v{MLG}, v{MLG} row_ror:8 {FULL}"); a(f"v_max_f32_dpp {MB}, v{MLG+2}, v{MLG+2} row_ror:8 {FULL}")
    for s in (4, 2, 1):
        a(f"v_max_f32_dpp {MA}, {MA}, {MA} row_ror:{s} {FULL}"); a(f"v_max_f32_dpp {MB}, {MB}, {MB} row_ror:{s} {FULL}")
    red("v_max_f32", MB, (16,))
    a(f"v_mov_b32_dpp {t3}, {vmB} row_newbcast:0 row_mask:0x3 bank_mask:0xf")
    a(f"v_mov_b32_dpp {t3}, {vmB} row_newbcast:8 row_mask:0xc bank_mask:0xf")
    a(f"v_sub_f32 v{MLG}, v{MLG}, {MA}"); a(f"v_sub_f32 v{MLG+2}, v{MLG+2}, {MB}")
    a(f"v_sub_f32 {vfA}, {vm}, {MA}"); a(f"v_sub_f32 {t3}, {t3}, {MB}")
    a(f"v_exp_f32 v{MLG}, v{MLG}"); a(f"v_exp_f32 v{MLG+2}, v{MLG+2}"); a(f"v_exp_f32 {vfA}, {vfA}"); a(f"v_exp_f32 {t3}, {t3}")
    a(f"v_mul_f32 {MA}, v{MLG}, v{MLG+1}"); a(f"v_mul_f32 {MB}, v{MLG+2}, v{MLG+3}")
    for s in (8, 4, 2, 1):
        a(f"v_add_f32_dpp {MA}, {MA}, {MA} row_ror:{s} {FULL}"); a(f"v_add_f32_dpp {MB}, {MB}, {MB} row_ror:{s} {FULL}")
    red("v_add_f32", MB, (16,))
    a(f"v_rcp_f32 {MA}, {MA}"); a(f"v_rcp_f32 {MB}, {MB}")
    a(f"v_mul_f32 {vfA}, {vfA}, {MA}"); a(f"v_mul_f32 {t3}, {t3}, {MB}")
    for e in range(8): a(f"v_mul_f32 v{ACCB+e}, v{ACCB+e}, {t3}")
    a(f"v_lshrrev_b32 {t1}, 1, {vg}"); a(f"v_lshl_add_u32 {t0}, {t1}, 12, {vPa}")
    a(f"ds_write_b128 {t0}, {vr(ACCB)}"); a(f"ds_write_b128 {t0}, {vr(ACCB+4)} offset:512")
    a(f"v_lshl_add_u32 {vPa}, {t1}, 9, {vPa}")
    a(f"v_mov_b32 {t0}, {L_CNT}"); a(f"v_mov_b32 {t2}, 1")
    a("s_waitcnt lgkmcnt(0)")
    a("s_mov_b64 exec, 1")
    a(f"ds_add_u32 {t0}, {t2}")
    a("s_mov_b64 exec, -1")
    a("s_branch L_v_body")
    a("L_v_x:")
    stamp("v_x")
    for k in range(LG): ids[NTOT - LG - lead + k] = a.vm_seq - (LG - 1 - k)
    issued = NTOT - lead
    nwo = 0; skip = wod; id_wo = None
    def gA():
        for k in range(4): a(f"buffer_load_dwordx4 {vr(G+4*k)}, {vGo}, {WS}, {sG} offen offset:{1024*k} sc1")
    def wo_issue():
        nonlocal nwo, id_wo
        a(f"s_add_u32 m0, {sLb}, {L_WOA + 1024*nwo}")
        if nwo: a(f"s_add_u32 {sU}, {sU}, {8*896}")
        nwo += 1
        id_wo = a(f"buffer_load_dwordx4 {vWo}, {WOA}, {sU} offen {pol} lds")
    a("s_mov_b32 vcc_lo, 0"); a("s_mov_b32 vcc_hi, -1")
    for n in range(NTOT - LG - lead, NTOT):
        a.wait_vm(ids[n])
        if issued < NTOT:
            while issued < NTOT and issued - n <= DE:
                issue(issued); issued += 1
        elif nwo < 4:
            if skip: skip -= 1
            else: wo_issue()
        if wobs is not None and n == NTOT - LG + wobs: post(1)
        procV(n, last=True)
    while nwo < 4: wo_issue()
    stamp("stream_done")
    for e in range(4): a(f"v_cndmask_b32 v{ACC+e}, v{ACC+e}, v{ACC+4+e}, vcc")
    for e in range(4): a(f"v_mul_f32 v{ACC+e}, v{ACC+e}, {vfA}")
    a(f"ds_write_b128 {vPa}, {vr(ACC)} offset:8192")
    a("s_waitcnt lgkmcnt(0)")
    a("s_barrier")
    if g2:
        a("s_barrier")
        gA()
    a.wait_vm(id_wo)
    a("s_barrier")
    if fine: stamp("wo_in")
    a(f"s_cmp_ge_u32 {sR}, 28"); a("s_cbranch_scc1 L_s_fin")
    for k in range(4):
        a(f"ds_read_b64_tr_b16 {vr(WT+4*k,2)}, {vTr} offset:{L_WOA+4096*k}")
        a(f"ds_read_b64_tr_b16 {vr(WT+4*k+2,2)}, {vTr} offset:{L_WOA+4096*k+512}")
    if g2: a("s_waitcnt vmcnt(0)")
    poll("L_s2", gA, lambda: sentinel(range(G, G + 16)), masked=True, first_issued=g2)
    if g2: a("s_waitcnt lgkmcnt(0)")
    stamp("gathered")
    if ydw:
        for k in range(4):
            a(f"v_mfma_f32_16x16x32_bf16 {vr(ACC)}, {vr(G+4*k)}, {vr(WT+4*k)}, {vr(ACC) if k else 0}")
        a(f"v_add_f32 v{ACC}, v{ACC}, v{ACC+1}"); a(f"v_add_f32 v{ACC+2}, v{ACC+2}, v{ACC+3}"); a(f"v_add_f32 v{ACC}, v{ACC}, v{ACC+2}")
        a(f"v_add_u32 v{ACC}, 0x800, v{ACC}"); a(f"v_and_or_b32 v{ACC}, v{ACC}, {vYm}, v207")
        a(f"buffer_store_dword v{ACC}, {vYo}, {WS}, {sY} offen sc1")
    else:
        for k in range(4):
            a(f"v_mfma_f32_16x16x32_bf16 {vr(ACC)}, {vr(WT+4*k)}, {vr(G+4*k)}, {vr(ACC) if k else 0}")
        for qp in (QP1, QP2):
            for e in range(4): a(f"v_add_f32_dpp v{ACC+e}, v{ACC+e}, v{ACC+e} {qp}")
        y_seal(ACC)
        a("s_mov_b32 exec_lo, 0x11111111"); a("s_mov_b32 exec_hi, 0x11111111")
        a(f"buffer_store_dwordx4 {vr(ACC)}, {vYo}, {WS}, {sY} offen sc1")
    if stamps:
        a("s_branch L_s_fin2")
        a("L_s_fin:")
        names["s"].pop(); stamp("gathered")
        a("L_s_fin2:")
    else:
        a("L_s_fin:")
    a("s_barrier")
    if fack:
        if stamps: stamp("y")
        a("s_waitcnt vmcnt(0)"); a("s_barrier")
    finish()

    cur[0] = "g"
    a("L_gov:")
    vA4 = "v2"; vBo = "v3"; vPw = "v4"; vP = "v5"; vPp = "v6"; vB = "v7"; vTh = "v8"; vL16 = "v16"
    sTg = sU; sPo = sRecA; sGa = sRecB; sIn = sY
    NF = 224 >> ylay
    a(f"v_lshlrev_b32 {vL16}, 4, {vL}")
    a(f"s_lshl_b32 {sT1}, {sX}, 5"); a(f"s_add_u32 {sT1}, {sT1}, {sR}"); a(f"s_lshl_b32 {sT1}, {sT1}, 7"); a(f"s_add_u32 {sT1}, {sT1}, {WS_FL}")
    srd(60, None, None, WS_END)
    a("s_waitcnt lgkmcnt(0)")
    tag_load()
    a("s_mov_b32 s60, s28"); a("s_mov_b32 s61, s29")
    if not ytag:
        for i in range(4): a(f"v_mov_b32 v{AOP+i}, -1")
        a(f"s_lshl_b32 {sIn}, {sWG}, 11"); a(f"s_add_u32 {sIn}, {sIn}, {WS_Y}")
        a(f"buffer_store_dwordx4 {vr(AOP)}, {vL16}, {WS}, {sIn} offen sc1")
        a(f"buffer_store_dwordx4 {vr(AOP)}, {vL16}, {WS}, {sIn} offen offset:1024 sc1")
    a("s_mov_b64 exec, 0xff")
    a("s_waitcnt lgkmcnt(0)")
    tag_make()
    a("v_mov_b32 v8, s56"); a("v_mov_b32 v9, s59"); a("v_mov_b32 v10, s56"); a("v_mov_b32 v11, s59")
    if not ytag: a("s_waitcnt vmcnt(0)")
    a(f"buffer_store_dwordx4 v[8:11], {vL16}, {WS}, {sT1} offen sc1")
    a("s_mov_b64 exec, -1")
    ytag_make()
    a(f"s_mul_i32 {sIn}, {sX}, {YG}"); a(f"s_add_u32 {sIn}, {sIn}, {WS_Y}")
    a(f"s_cmp_lg_u32 {sR}, 0"); a("s_cbranch_scc1 L_norace")
    a(f"s_add_u32 s4, s28, {sIn}"); a("s_addc_u32 s5, s29, 0")
    a("s_load_dword s6, s[4:5], 0 glc"); a("s_load_dword s7, s[4:5], 8192 glc")
    a(f"s_mov_b32 {sT1}, 0")
    a("s_waitcnt lgkmcnt(0)")
    for i in range(nrace):
        a("s_not_b32 s10, s6"); a("s_not_b32 s11, s7")
        for h in ((0, 1), (1, 0))[i & 1]: a(f"s_load_dword s{10+h}, s[4:5], {8192*h} glc")
        a("s_waitcnt lgkmcnt(1)")
        a("s_sleep 1")
        a("s_mov_b64 s[14:15], s[10:11]")
        a("s_waitcnt lgkmcnt(0)")
        a("s_cmp_eq_u32 s15, s7"); a(f"s_addc_u32 {sT1}, {sT1}, 0"); a("s_cmp_eq_u32 s14, s6"); a(f"s_subb_u32 {sT1}, {sT1}, 0")
    a(f"s_sub_i32 {sT2}, 0, {sT1}"); a("s_bitcmp1_b32 s59, 2"); a(f"s_cselect_b32 {sT1}, {sT2}, {sT1}")
    a(f"s_cmp_gt_i32 {sT1}, 0"); a(f"s_cselect_b32 {sT2}, 2, 0"); a(f"s_cmp_lt_i32 {sT1}, 0"); a(f"s_cselect_b32 {sT2}, 1, {sT2}")
    if near is not None: a(f"s_mov_b32 {sT2}, {1 + near}")
    a(f"s_and_b32 {sT1}, s59, 4"); a(f"s_or_b32 {sT1}, {sT1}, {sT2}")
    a(f"s_lshl4_add_u32 {sT1}, s58, {sT1}")
    a(f"v_mov_b32 v12, s56"); a(f"v_mov_b32 v13, {sT1}"); a(f"v_mov_b32 v14, s56"); a(f"v_mov_b32 v15, {sT1}")
    a(f"s_lshl_b32 {sT1}, {sX}, 7"); a(f"s_add_u32 {sT1}, {sT1}, {WS_CH}")
    a("s_mov_b64 exec, 0xff")
    a(f"buffer_store_dwordx4 v[12:15], {vL16}, {WS}, {sT1} offen sc1")
    a("s_mov_b64 exec, -1")
    a("L_norace:")
    a(f"s_lshr_b32 {sT0}, {sR}, 2"); a(f"s_lshl_b32 {sT0}, {sT0}, 14"); a(f"s_add_u32 {sIn}, {sIn}, {sT0}")
    a(f"s_and_b32 {sT0}, {sR}, 3"); a(f"s_lshl_b32 {sT0}, {sT0}, 11"); a(f"s_add_u32 {sIn}, {sIn}, {sT0}")
    stamp("hello")
    srd(44, "s24", "s25", 7168)
    if tlb:
        a(f"s_lshl4_add_u32 s40, {sB}, {sH}"); a("s_lshl_b32 s40, s40, 21")
        a(f"s_andn2_b32 s41, {sR}, 7"); a(f"s_add_u32 s41, s41, {sX}"); a("s_lshl_b32 s41, s41, 21"); a("s_add_u32 s41, s41, 0x180000")
        a(f"s_mul_i32 s42, {sX}, {512*896}")
        for i, (pp, o) in enumerate(((12, 42), (22, 42), (16, 41), (18, 41), (8, 40))):
            a(f"s_add_u32 s{pp}, s{pp}, s{o}"); a(f"s_addc_u32 s{pp+1}, s{pp+1}, 0")
            a(f"s_load_dword s{48+i}, s[{pp}:{pp+1}], 0")
    a(f"v_and_b32 {vA4}, 3, {vL}"); a(f"v_lshlrev_b32 {vA4}, 2, {vA4}")
    a(f"v_mov_b32 {vPp}, 0"); a(f"v_mov_b32 {vTh}, {int(th0)}"); a(f"v_mov_b32 {vB}, 0")
    a(f"ds_write_b32 {vA4}, {vPp} offset:{L_PRG}"); a(f"ds_write_b32 {vA4}, {vTh} offset:{L_TH}"); a(f"ds_write_b32 {vB}, {vB} offset:{L_CNT}")
    gc_ = gI // 2 if gc is None else gc
    a(f"s_mul_i32 {sG}, {sX}, 4352"); a(f"s_add_u32 {sG}, {sG}, {WS_GC}")
    a(f"v_lshlrev_b32 {vBo}, 2, {vL}")
    a(f"s_lshl2_add_u32 {sOff}, {sR}, {sG}")
    a(f"s_add_u32 {sGa}, {sG}, {8*4352}")
    a(f"s_mul_i32 {sTg}, {sX}, {gI // 8}"); a(f"s_add_u32 {sTg}, {sTg}, {gI // 8}")
    a(f"s_cmp_eq_u32 {sR}, {28 if gx else 99}"); a(f"s_cselect_b32 {sTg}, {sTg}, -1")
    sOut = sC
    a(f"s_and_b32 {sT0}, {sX}, 3"); a(f"s_mul_i32 {sOut}, {sT0}, 1792"); a(f"s_lshr_b32 {sT0}, {sX}, 2"); a(f"s_mul_i32 {sT0}, {sT0}, 896")
    a(f"s_add_u32 {sOut}, {sOut}, {sT0}"); a(f"s_lshl_b32 {sT0}, {sR}, 5"); a(f"s_add_u32 {sOut}, {sOut}, {sT0}")
    a(f"v_lshrrev_b32 {t1}, 1, {vg}"); a(f"v_and_b32 {t2}, 1, {vg}"); a(f"v_lshl_add_u32 {t1}, {t2}, 1, {t1}")
    a(f"v_and_b32 {t2}, 3, {vn}"); a(f"v_lshl_add_u32 {t1}, {t2}, 2, {t1}"); a(f"v_lshlrev_b32 {t3}, 1, {t1}")
    a(f"v_lshrrev_b32 {t2}, 2, {vn}"); a(f"v_mul_u32_u24 {t2}, 1792, {t2}"); a(f"v_add_u32 {t3}, {t3}, {t2}")
    a("s_waitcnt lgkmcnt(0)")
    a("s_barrier")
    a(f"ds_read_b32 v10, {vB} offset:{L_LOC}"); a(f"ds_read_b32 v11, {vB} offset:{L_CH}")
    if outw:
        a("s_mov_b64 exec, 1"); a(f"buffer_load_dword v12, off, {OUT}, 0"); a("s_mov_b64 exec, -1")
    a("s_waitcnt lgkmcnt(0)")
    a(f"v_readfirstlane_b32 {sLocal}, v10"); a(f"v_readfirstlane_b32 {sCh}, v11")
    a(f"s_lshr_b32 {sT0}, {sCh}, {sX}"); a(f"s_and_b32 {sT0}, {sT0}, 1"); a(f"s_lshl_b32 {sT0}, {sT0}, 13"); a(f"s_add_u32 {sIn}, {sIn}, {sT0}")
    if stamps: a(f"v_writelane_b32 v255, {sCh}, 30")
    if ywarm:
        a(f"s_cmp_ge_u32 {sR}, 28"); a("s_cbranch_scc1 L_nowarm")
        a(f"s_add_u32 s4, s28, {sIn}"); a("s_addc_u32 s5, s29, 0")
        for k in range(32 // ywarm):
            a(f"s_load_dword s6, s[4:5], {64*ywarm*k} glc")
            if k % 8 == 7: a("s_waitcnt lgkmcnt(0)")
        a("L_nowarm:")
    a(f"s_cmp_lg_u32 {sLocal}, 1"); a("s_cbranch_scc1 L_gend")
    poll("L_g0", lambda: a(f"ds_read_b32 {vPw}, {vA4} offset:{L_PRG}"), lambda: a(f"v_cmp_eq_u32 vcc, 0, {vPw}"), sleep=4)
    a(f"s_mov_b32 {sSpin}, {spin}")
    a("L_gloop:")
    a(f"ds_read_b32 {vPw}, {vA4} offset:{L_PRG}")
    a(f"s_sub_u32 {sSpin}, {sSpin}, 1"); a(f"s_cmp_eq_u32 {sSpin}, 0"); a("s_cbranch_scc1 L_gend")
    a("s_waitcnt lgkmcnt(0)")
    a(f"v_add_u32_dpp {vP}, {vPw}, {vPw} {QP1}"); a(f"v_add_u32_dpp {vP}, {vP}, {vP} {QP2}")
    a("s_mov_b64 exec, 1")
    a(f"buffer_store_dword {vP}, off, {WS}, {sOff}")
    a(f"v_cmp_le_u32 vcc, {total - 4 * gstop}, {vP}")
    a("s_cbranch_vccnz L_gend")
    a("s_mov_b32 exec_lo, -1"); a("s_mov_b32 exec_hi, 1")
    a(f"buffer_load_dword {vB}, {vBo}, {WS}, {sG} offen sc1")
    a("s_mov_b64 exec, -1")
    if c0 is None:
        a(f"v_add_u32 {t0}, {vP}, {vPp}"); a(f"v_mov_b32 {vPp}, {vP}"); a(f"v_cvt_f32_u32 {t0}, {t0}")
        a(f"v_mul_f32 {t0}, {f2u(-0.5 * gain)}, {t0}"); a(f"v_add_f32 {t0}, {f2u(th0 + 0.5)}, {t0}")
    else:
        a(f"v_cvt_f32_u32 {t0}, {vP}")
        a(f"v_mul_f32 {t0}, {f2u(-gain)}, {t0}"); a(f"v_add_f32 {t0}, {f2u(th0 + 0.5 + gain * c0)}, {t0}")
    if dith:
        a(f"v_add_u32 v12, {sSpin}, {vL}"); a("v_and_b32 v12, 3, v12"); a("v_cvt_f32_u32 v12, v12")
        a(f"v_mul_f32 v12, {f2u(0.25 * dith)}, v12"); a(f"v_add_f32 v12, {f2u(-0.375 * dith)}, v12"); a(f"v_add_f32 {t0}, {t0}, v12")
    if gw:
        a(f"v_lshlrev_b32 {vPw}, 2, {vPw}"); a(f"v_sub_u32 {vPw}, {vP}, {vPw}"); a(f"v_cvt_f32_i32 {vPw}, {vPw}")
        a(f"v_mul_f32 {vPw}, {f2u(gw)}, {vPw}"); a(f"v_add_f32 {t0}, {t0}, {vPw}")
    a("s_waitcnt vmcnt(0)")
    a(f"v_add_u32_dpp {t1}, {vB}, {vB} row_ror:8 {FULL}")
    a(f"v_readlane_b32 {sT3}, {vB}, 32")
    for sft in (4, 2, 1): a(f"v_add_u32_dpp {t1}, {t1}, {t1} row_ror:{sft} {FULL}")
    a(f"v_readlane_b32 {sT0}, {t1}, 0"); a(f"v_readlane_b32 {sT1}, {t1}, 16")
    a(f"v_cvt_f32_i32 v11, {sT3}")
    a(f"s_add_u32 {sT2}, {sT0}, {sT1}")
    a(f"v_cvt_f32_u32 v10, {sT2}")
    a(f"v_mul_f32 v10, {f2u(gain / 32)}, v10"); a(f"v_mul_f32 v11, {f2u(gain * gx / 256)}, v11")
    a(f"v_add_f32 {t0}, {t0}, v10"); a(f"v_add_f32 {t0}, {t0}, v11")
    a(f"v_cvt_i32_f32 {vTh}, {t0}")
    a(f"v_med3_i32 {vTh}, {vTh}, {thmin}, {thmax}")
    a(f"ds_write_b32 {vA4}, {vTh} offset:{L_TH}")
    a(f"s_cmp_lt_u32 {sT2}, {sTg}"); a("s_cbranch_scc1 L_gloop")
    a(f"s_xor_b32 {sT0}, {sT2}, s56")
    for i in range(4): a(f"v_mov_b32 v{12+i}, {sT0}")
    a("s_mov_b64 exec, 0xff")
    a(f"buffer_store_dwordx4 v[12:15], {vL16}, {WS}, {sGa} offen sc1"); a("s_mov_b64 exec, -1")
    for i in range(1, 8):
        a(f"s_add_u32 {sT0}, {sX}, {i}"); a(f"s_and_b32 {sT0}, {sT0}, 7"); a(f"s_mul_i32 {sT0}, {sT0}, 4352"); a(f"s_add_u32 {sT0}, {sT0}, {WS_GC + 8*4352}")
        a(f"s_load_dword s{4+i}, s[28:29], {sT0} glc")
    a(f"s_add_u32 {sTg}, {sTg}, {gI}")
    a(f"s_sub_u32 {sT0}, {gc_}, {sT2}"); a(f"s_mul_i32 {sT0}, {sT0}, 7")
    a("s_waitcnt lgkmcnt(0)")
    for i in range(1, 8):
        a(f"s_xor_b32 s{4+i}, s{4+i}, s56"); a(f"s_cmp_lt_u32 s{4+i}, 0x4000"); a(f"s_cselect_b32 s{4+i}, s{4+i}, 0"); a(f"s_add_u32 {sT0}, {sT0}, s{4+i}")
    a(f"v_mov_b32 v10, {sT0}")
    a("s_mov_b64 exec, 1")
    a(f"buffer_store_dword v10, off, {WS}, {sG} offset:128")
    a("s_mov_b64 exec, -1")
    a("s_branch L_gloop")
    a("L_gend:")
    a("s_mov_b64 exec, -1")
    stamp("gov_end")
    a(f"s_add_u32 {sT1}, {sIn}, 4096")
    a(f"s_cmp_ge_u32 {sR}, 28")
    for i in range((4 if g2 else 3) + (1 if fack else 0)): a("s_barrier")
    a("s_cbranch_scc1 L_g_fin")
    F = 64; NY = 2 << ylay
    def gY():
        for k in range(NY): a(f"buffer_load_dwordx4 {vr(F+4*k)}, {vL16}, {WS}, {sIn if k < 4 else sT1} offen offset:{1024*(k%4)} sc1")
    def y_chk():
        if not ytag: return sentinel(range(F, F + 4 * NY))
        for i in range(4 * NY): a(f"v_xor_b32 v{F+i}, {YT[i & 3]}, v{F+i}")
        a(f"v_or_b32 {t0}, v{F}, v{F+1}"); a(f"v_or_b32 {t2}, v{F+2}, v{F+3}")
        for i in range(4, 4 * NY, 2):
            c = (t0, t2)[(i >> 1) & 1]
            a(f"v_or3_b32 {c}, {c}, v{F+i}, v{F+i+1}")
        a(f"v_or_b32 {t0}, {t0}, {t2}"); a(f"v_and_b32 {t0}, 0xfff, {t0}"); a(f"v_cmp_ne_u32 vcc, 0, {t0}")
    if fdel: a(f"s_sleep {fdel}")
    poll("L_f", gY, y_chk, masked=True, sleep=fsl)
    st = 1
    while st < NY:
        for k in range(0, NY, 2 * st):
            for e in range(4): a(f"v_add_f32 v{F+4*k+e}, v{F+4*k+e}, v{F+4*(k+st)+e}")
        st *= 2
    a(f"v_permlane32_swap_b32 v{F}, v{F+1}"); a(f"v_permlane32_swap_b32 v{F+2}, v{F+3}")
    a(f"v_add_f32 v{F}, v{F}, v{F+1}"); a(f"v_add_f32 v{F+2}, v{F+2}, v{F+3}")
    a(f"v_permlane16_swap_b32 v{F}, v{F+2}")
    a(f"v_add_f32 v{F}, v{F}, v{F+2}")
    red("v_add_f32", f"v{F}", ((4, 8), (8,), ())[ylay])
    a(f"v_cvt_pk_bf16_f32 v{F}, v{F}, v{F}")
    em = (0x000f000f, 0x00ff00ff, 0xffffffff)[ylay]
    a(f"s_mov_b32 exec_lo, {em}"); a(f"s_mov_b32 exec_hi, {em}")
    a(f"buffer_store_short v{F}, {t3}, {OUT}, {sOut} offen{' sc1' if outsc else ''}")
    a(f"s_cmp_eq_u32 {sWG}, 0"); a("s_cbranch_scc0 L_g_fin")
    a("v_mov_b32 v8, s56"); a("v_mov_b32 v9, s57"); a(f"s_mov_b32 {sT0}, {WS_EP}")
    a("s_mov_b64 exec, 1")
    a(f"buffer_store_dwordx2 v[8:9], off, {WS}, {sT0} sc1")
    a("L_g_fin:")
    finish()

    cur[0] = "h"
    a("L_helper:")
    a(f"s_cmp_eq_u32 {sW}, 5"); a("s_cbranch_scc1 L_gov")
    a("s_getpc_b64 s[30:31]")
    a("L_pc:")
    a(f"s_sub_u32 s30, s30, L_pc-{NAME}_kernel"); a("s_subb_u32 s31, s31, 0")
    a(f"s_lshl_b32 {sT1}, {sR}, 7")
    a(f"v_lshl_add_u32 {t0}, {vL}, 12, {sT1}")
    a(f"v_min_u32 {t0}, L_end-{NAME}_kernel, {t0}")
    a("s_mov_b64 exec, 0x7f")
    a(f"global_load_dword v2, {t0}, s[30:31]")
    a("s_mov_b64 exec, -1")
    XOP = 64; WOP = 96; QD = 208
    vXo = "v5"; vL8 = "v7"; vQt = "v17"
    a(f"v_lshrrev_b32 {t3}, 3, {vL}"); a(f"v_and_b32 {t2}, 7, {vL}"); a(f"v_lshlrev_b32 {t2}, 4, {t2}")
    a(f"v_lshl_add_u32 {vKo}, {t3}, 13, {t2}")
    a(f"v_and_b32 {vXo}, 3, {vL}"); a(f"v_mul_u32_u24 {vXo}, 896, {vXo}"); a(f"v_lshl_add_u32 {vXo}, {vg}, 4, {vXo}")
    a(f"s_bfe_u32 s44, {sR}, 0x10003")
    a(f"s_and_b32 s45, {sR}, 7"); a(f"s_lshl3_add_u32 s45, {sX}, s45")
    a(f"s_mul_i32 s46, s44, {224*8192}"); a("s_lshl_b32 s47, s45, 7"); a(f"s_add_u32 {sOff}, s46, s47")
    a(f"s_mul_i32 {sT2}, s44, 448")
    srd(32, None, None, 0x380000); srd(36, None, None, 3584)
    a(f"s_mov_b32 m0, {L_WQ}")
    a(f"s_cmp_eq_u32 {sT0}, 0")
    a("s_waitcnt lgkmcnt(0)")
    a("s_cselect_b32 s32, s10, s20"); a("s_cselect_b32 s33, s11, s21")
    a("s_cselect_b32 s36, s4, s14"); a("s_cselect_b32 s37, s5, s15")
    tag_load()
    idk = []
    for k in range(7):
        a(f"buffer_load_dwordx4 {vr(XOP+4*k)}, {vXo}, {XS}, {sT2} offen offset:{64*k}")
        for j in range(4):
            r = a(f"buffer_load_dwordx4 {vKo}, {WQ}, {sOff} offen {pol} lds")
            if k < 6 or j < 3:
                a("s_add_u32 m0, m0, 1024"); a(f"s_add_u32 {sOff}, {sOff}, 65536")
        idk.append(r)
    stamp("wq_issued")
    sQs = "s64"; sMc = "s48"; sPa = "s49"; sPb = "s50"; sBz = "s51"; sRd = "s69"; sFl = "s70"
    a(f"s_lshl1_add_u32 {sQs}, {sT0}, s44"); a(f"s_lshl_b32 {sQs}, {sQs}, 16"); a("s_lshl_b32 s46, s45, 10"); a(f"s_add_u32 {sQs}, {sQs}, s46")
    a(f"s_lshl3_add_u32 {sMc}, {sT0}, {sX}"); a(f"s_and_b32 {sT3}, {sR}, 15"); a(f"s_lshl4_add_u32 {sMc}, {sMc}, {sT3}")
    a(f"s_lshl_b32 {sMc}, {sMc}, 7"); a(f"s_add_u32 {sMc}, {sMc}, {WS_ML}")
    srd(60, "s28", "s29", WS_END); srd(52, "s22", "s23", 0x380000)
    unit(1); unit_v()
    a(f"s_lshl_b32 {sRecA}, {sH}, 14"); a(f"s_add_u32 {sRecA}, {sRecA}, {WS_PO}")
    a(f"s_lshl_b32 {sRecB}, {sX}, 15"); a(f"s_add_u32 {sRecB}, {sRecB}, {WS_PO + 16*16384}")
    a(f"s_lshl_b32 {sPa}, {sT3}, 9"); a(f"s_add_u32 {sPa}, {sPa}, {sRecA}")
    a(f"s_lshl_b32 {sPb}, {sR}, 9"); a(f"s_add_u32 {sPb}, {sPb}, {sRecB}")
    a(f"v_and_b32 {t0}, 31, {vL}"); a(f"v_lshlrev_b32 {t0}, 4, {t0}"); a(f"v_lshrrev_b32 {t1}, 5, {vL}"); a(f"v_lshl_add_u32 v18, {t1}, 14, {t0}")
    a(f"s_lshl4_add_u32 {sRecA}, {sT3}, {sRecA}")
    a(f"s_lshr_b32 {sT0}, {sR}, 3"); a(f"s_and_b32 {sT1}, {sR}, 3"); a(f"s_lshl2_add_u32 {sT0}, {sT0}, {sT1}"); a(f"s_lshl4_add_u32 {sRecB}, {sT0}, {sRecB}")
    a(f"s_bfe_u32 {sT0}, {sR}, 0x10002"); a(f"s_lshl_b32 {sT0}, {sT0}, 13"); a(f"s_add_u32 {sRecB}, {sRecB}, {sT0}")
    a(f"v_lshrrev_b32 {t0}, 1, {vL}"); a(f"v_lshlrev_b32 {t0}, 8, {t0}"); a(f"v_and_b32 {t1}, 1, {vL}"); a(f"v_lshl_add_u32 {vPa}, {t1}, 3, {t0}")
    a(f"s_mul_i32 {sRd}, {sX}, 4352"); a(f"s_add_u32 {sRd}, {sRd}, {WS_GC}")
    a(f"s_cmp_eq_u32 {sR}, 0"); a(f"s_cselect_b32 {sBz}, {sRd}, {OOB}")
    a(f"s_lshl_b32 {sFl}, {sX}, 12"); a(f"s_add_u32 {sFl}, {sFl}, {WS_FL}")
    for i in range(4): a(f"v_mov_b32 v{AOP+i}, -1")
    for i in range(4): a(f"v_mov_b32 v{ACC+i}, 0")
    a(f"v_lshlrev_b32 {vL16}, 4, {vL}"); a(f"v_lshlrev_b32 {vL8}, 3, {vL}"); a(f"v_lshlrev_b32 {t3}, 7, {vL}")
    a(f"v_and_b32 {t0}, 3, {vn}"); a(f"v_lshlrev_b32 {t0}, 8, {t0}"); a(f"v_lshrrev_b32 {t1}, 2, {vn}")
    a(f"v_lshl_add_u32 {t0}, {t1}, 6, {t0}"); a(f"v_lshl_add_u32 {vQt}, {vg}, 4, {t0}")
    def hello_ld(): a(f"buffer_load_dwordx2 v[12:13], {t3}, {WS}, {sFl} offen sc1")
    for k in range(8):
        if k < 7: a.wait_vm(idk[k])
        if k == hk:
            a("s_mov_b32 exec_hi, 0"); hello_ld(); a("s_mov_b32 exec_hi, -1")
        if k: a("s_waitcnt lgkmcnt(0)")
        if k < 7:
            for c in range(4):
                a(f"ds_read_b64_tr_b16 {vr(WOP+16*(k%3)+4*c,2)}, {vTr} offset:{L_WQ + k*4096 + 32*c}")
                a(f"ds_read_b64_tr_b16 {vr(WOP+16*(k%3)+4*c+2,2)}, {vTr} offset:{L_WQ + k*4096 + 32*c + 512}")
        if k:
            for c in range(4):
                a(f"v_mfma_f32_16x16x32_bf16 {vr(QD+4*c)}, {vr(WOP+16*((k-1)%3)+4*c)}, {vr(XOP+4*(k-1))}, {vr(QD+4*c) if k > 1 else 0}")
    tag_make(); ytag_make()
    for c in range(1, 4):
        for e in range(4):
            a(f"v_mov_b32_dpp v{QD+e}, v{QD+4*c+e} quad_perm:[0,1,2,3] row_mask:0xf bank_mask:{1<<c}")
    a(f"ds_write_b128 {vQt}, {vr(QD)} offset:{L_PART}")
    a(f"ds_read_b128 {vr(QD)}, {vL16} offset:{L_PART}")
    stamp("q_done")
    a("s_waitcnt vmcnt(0) lgkmcnt(0)")
    a("s_mov_b32 exec_hi, 0")
    poll("L_fl", hello_ld, lambda: tag_chk([12]), sleep=16, masked=True, first_issued=True)
    a("v_cmp_ne_u32 vcc, s59, v13")
    a("s_cmp_eq_u32 vcc_lo, 0"); a(f"s_cselect_b32 {sLocal}, {2 if force_remote else 1}, 2")
    stamp("hello_seen")
    a("v_mov_b32 v8, s56"); a("v_mov_b32 v9, s59")
    a(f"s_lshl3_add_u32 {sT1}, {sR}, {sRd}")
    def first_stores(b):
        a(f"buffer_store_dwordx4 {vr(QD)}, {vL16}, {WS}, {sQs} offen{b}")
        a(f"buffer_store_dwordx4 {vr(AOP)}, v18, {WS}, {sPb} offen{b}")
        a("s_mov_b32 exec_hi, 0")
        a(f"buffer_store_dwordx4 {vr(AOP)}, v18, {WS}, {sPa} offen{b}")
        a("s_mov_b32 exec_lo, 0xffff")
        a(f"buffer_store_dwordx4 {vr(ACC)}, {vL16}, {WS}, {sBz} offen{b}")
        a("s_mov_b32 exec_lo, 0xff")
        a(f"buffer_store_dwordx4 {vr(AOP)}, {vL16}, {WS}, {sMc} offen{b}")
        a("s_mov_b32 exec_lo, 1")
        a("s_waitcnt vmcnt(0)")
        a(f"buffer_store_dwordx2 v[8:9], off, {WS}, {sT1} offset:256{b}")
    by_placement("first", first_stores)
    a("s_mov_b32 exec_lo, -1")
    stamp("ready")
    poll("L_rd", lambda: a(f"buffer_load_dwordx2 v[12:13], {vL8}, {WS}, {sRd} offen offset:256 sc1"), lambda: tag_chk([12]), sleep=hsleep, masked=True)
    stamp("go_seen")
    a(f"v_lshlrev_b32 {t0}, 4, {vn}"); a(f"v_lshl_add_u32 {t0}, {vg}, 10, {t0}")
    a(f"s_lshr_b32 {sT0}, {sR}, 3"); a(f"s_lshl_b32 {sT0}, {sT0}, 8"); a(f"s_lshl_b32 {sT1}, {sX}, 13"); a(f"s_add_u32 {sT0}, {sT0}, {sT1}")
    a(f"s_add_u32 {sT0}, {sT0}, 0x20000")
    a(f"s_lshl4_add_u32 {sT2}, {sH}, {sB}"); a(f"s_lshl_b32 {sT2}, {sT2}, 8")
    for u in (2, 0, 1):
        for kh in range(2):
            a(f"s_add_u32 {sT1}, {sT2 if u == 2 else sT0}, {kh * 0x10000 + (4096 if u == 1 else 0)}")
            a(f"buffer_load_dwordx4 {vr(64+8*u+4*kh)}, {t0}, {WS}, {sT1} offen sc1")
    a(f"s_mov_b32 {sT1}, {WS_CH}")
    a("s_mov_b64 exec, 0xff")
    poll("L_ch", lambda: a(f"buffer_load_dwordx2 v[12:13], {t3}, {WS}, {sT1} offen sc1"), lambda: tag_chk([12]), masked=True, sleep=1)
    for bit, dst in ((1, sT0), (2, sT1), (4, sCh)):
        a(f"v_and_b32 v12, {bit}, v13"); a("v_cmp_ne_u32 vcc, 0, v12"); a(f"s_and_b32 {dst}, vcc_lo, 0xff")
    a(f"s_bcnt1_i32_b32 {sT0}, {sT0}"); a(f"s_bcnt1_i32_b32 {sT1}, {sT1}")
    a(f"s_cmp_gt_u32 {sT1}, {sT0}"); a(f"s_cselect_b32 {sT0}, 0xff, 0"); a(f"s_xor_b32 {sCh}, {sCh}, {sT0}")
    a(f"v_mov_b32 {t0}, {L_LOC}"); a(f"v_mov_b32 {t1}, {sLocal}"); a(f"v_mov_b32 {t2}, {sCh}"); a(f"ds_write2_b32 {t0}, {t1}, {t2} offset0:0 offset1:1")
    for u in range(3):
        for e in range(4): a(f"v_add_f32 v{64+8*u+e}, v{64+8*u+e}, v{64+8*u+4+e}")
        for e in range(2): a(f"v_cvt_pk_bf16_f32 v{64+8*u+e}, v{64+8*u+2*e}, v{64+8*u+2*e+1}")
        a(f"ds_write_b64 {vL8}, {vr(64+8*u,2)} offset:{L_Q+512*u}")
    a("s_waitcnt lgkmcnt(0)")
    stamp("q_in_lds")
    a("s_barrier")
    def code_touch():
        a(f"s_lshl_b32 {sT1}, {sR}, 7")
        a(f"v_lshl_add_u32 {t0}, {vL}, 12, {sT1}")
        a(f"v_min_u32 {t0}, L_end-{NAME}_kernel, {t0}")
        a("s_mov_b64 exec, 0x7f")
        a(f"global_load_dword v2, {t0}, s[30:31] sc1")
        a("s_mov_b64 exec, -1")
    if pf2 & 1: code_touch()
    if wbl == 1:
        a(f"s_cmp_lg_u32 {sR}, 31"); a("s_cbranch_scc1 L_nowb"); a("buffer_wbl2 sc1"); a("L_nowb:")
    def all_ld():
        for i in range(4):
            a(f"s_mov_b32 {sT1}, {WS_FL + 8192*i}")
            a(f"buffer_load_dwordx2 v[{8+2*i}:{9+2*i}], {t3}, {WS}, {sT1} offen sc1")
    if not ytag: poll("L_all", all_ld, lambda: tag_chk([8, 10, 12, 14]), sleep=8)
    def wob_dma():
        a(f"s_mov_b32 m0, {L_WOB}")
        for j in range(16):
            a(f"buffer_load_dwordx4 {vWo}, {WOB}, {sU} offen {pol} lds")
            if j < 15: a("s_add_u32 m0, m0, 1024"); a(f"s_add_u32 {sU}, {sU}, {8*896}")
    a(f"v_mov_b32 {t3}, 0")
    poll("L_cnt", lambda: a(f"ds_read_b32 v8, {t3} offset:{L_CNT}"), lambda: a("v_cmp_ne_u32 vcc, 4, v8"), sleep=16)
    stamp("B_in_lds")
    if pf2 & 2: code_touch()
    CB = 184
    def combine(u):
        for w in range(4): a(f"ds_read_b128 {vr(CB+4*w)}, {vL16} offset:{L_PART + 4096*u + 1024*w}")
        a("s_waitcnt lgkmcnt(0)" if stamps else "s_waitcnt lgkmcnt(2)")
        for e in range(4): a(f"v_add_f32 v{CB+e}, v{CB+e}, v{CB+4+e}")
        a("s_waitcnt lgkmcnt(0)")
        for e in range(4): a(f"v_add_f32 v{CB+8+e}, v{CB+8+e}, v{CB+12+e}")
        for e in range(4): a(f"v_add_f32 v{CB+e}, v{CB+e}, v{CB+8+e}")
        for e in range(2): a(f"v_cvt_pk_bf16_f32 v{CB+e}, v{CB+2*e}, v{CB+2*e+1}")
        for e in range(2): a(f"v_min_u32 v{CB+16+2*u+e}, -2, v{CB+e}")
    def publish(u, so):
        by_placement(f"pub{u}", lambda b: a(f"buffer_store_dwordx2 {vr(CB+16+2*u,2)}, {vPa}, {WS}, {so} offen{b}"), have_scc=True)
    a(f"s_add_u32 {sT0}, {sRecB}, 16384")
    a(f"s_cmp_eq_u32 {sLocal}, 1")
    for u in range(2):
        combine(u); publish(u, (sRecB, sT0)[u])
    a(f"s_cmp_ge_u32 {sR}, 28"); a("s_cbranch_scc1 L_h_nos2")
    GB = 128; OB = 64
    a(f"s_add_u32 {sT0}, {sG}, 8192")
    def gB():
        for st in range(2):
            for k in range(4): a(f"buffer_load_dwordx4 {vr(GB+16*st+4*k)}, {vGo}, {WS}, {(sG, sT0)[st]} offen offset:{1024*k} sc1")
    poll("L_s2b", gB, lambda: sentinel(range(GB, GB + 32)), sleep=16, masked=True)
    for i in range(16):
        a(f"v_lshlrev_b32 v{160+i}, 16, v{GB+i}"); a(f"v_lshlrev_b32 {t0}, 16, v{GB+16+i}")
        a(f"v_and_b32 v{GB+i}, 0xffff0000, v{GB+i}"); a(f"v_and_b32 v{GB+16+i}, 0xffff0000, v{GB+16+i}")
        a(f"v_add_f32 v{160+i}, v{160+i}, {t0}"); a(f"v_add_f32 v{GB+i}, v{GB+i}, v{GB+16+i}")
    for qp in (QP1, QP2):
        for i in range(16):
            a(f"v_add_f32_dpp v{160+i}, v{160+i}, v{160+i} {qp}"); a(f"v_add_f32_dpp v{GB+i}, v{GB+i}, v{GB+i} {qp}")
    for i in range(16): a(f"v_cvt_pk_bf16_f32 v{GB+i}, v{160+i}, v{GB+i}")
    for c in range(4):
        m = 0x11111111 << c
        a(f"s_mov_b32 vcc_lo, {m}"); a(f"s_mov_b32 vcc_hi, {m}")
        for i in range(16): a(f"v_cndmask_b32 v{OB+16*c+i}, 0, v{GB+i}, vcc")
    if ytr:
        a(f"v_and_b32 {t0}, 3, {vL}"); a(f"v_lshlrev_b32 {t0}, 8, {t0}"); a(f"v_lshrrev_b32 {t1}, 2, {vn}")
        a(f"v_lshl_add_u32 {t0}, {t1}, 6, {t0}"); a(f"v_lshl_add_u32 {vQt}, {vg}, 4, {t0}")
        y_base(t1, 1); a(f"v_lshl_add_u32 {vYo}, {vg}, 11, {vYo}"); a(f"v_and_b32 {t0}, 3, {vL}"); a(f"v_lshl_add_u32 {vYo}, {t0}, 4, {vYo}")
    else:
        a(f"v_lshrrev_b32 {t1}, 2, {vn}"); y_base(t1, 1); a(f"v_lshl_add_u32 {vYo}, {vg}, 4, {vYo}")
        a(f"v_and_b32 {t0}, 3, {vL}"); a(f"v_lshl_add_u32 {vYo}, {t0}, 11, {vYo}")
    stamp("oB_ready")
    def prg_chk():
        a("v_add3_u32 v8, v8, v9, v10"); a("v_add_u32 v8, v8, v11"); a(f"v_cmp_gt_u32 vcc, {total - wob}, v8")
    if nowo & 2: a("s_mov_b32 s54, 0")
    if not wobl:
        poll("L_wob", lambda: a(f"ds_read_b128 v[8:11], {t3} offset:{L_PRG}"), prg_chk, sleep=1)
        wob_dma()
    if stamps:
        a("s_branch L_h_nos3")
        a("L_h_nos2:")
        names["h"].pop(); stamp("oB_ready")
        a("L_h_nos3:")
    else:
        a("L_h_nos2:")
    a(f"s_cmp_eq_u32 {sLocal}, 1")
    a("s_barrier")
    combine(2); publish(2, sRecA)
    stamp("published")
    if wobl:
        a(f"s_cmp_ge_u32 {sR}, 28"); a("s_cbranch_scc1 L_h_nowob"); wob_dma(); a("L_h_nowob:")
    if wbl == 2:
        a(f"s_cmp_lg_u32 {sR}, 31"); a("s_cbranch_scc1 L_nowb"); a("buffer_wbl2 sc1"); a("L_nowb:")
    a(f"s_cmp_ge_u32 {sR}, 28")
    if g2: a("s_barrier")
    a("s_barrier")
    a("s_cbranch_scc1 L_h_fin")
    if not bpipe: a(f"s_waitcnt vmcnt({0 if wobl else 1})")
    WB = 128
    for k in range(5):
        if bpipe and k < 4: a(f"s_waitcnt vmcnt({12 - 4 * k + (0 if wobl else 1)})")
        if k: a("s_waitcnt lgkmcnt(0)")
        if k < 4:
            for c in range(4):
                a(f"ds_read_b64_tr_b16 {vr(WB+16*(k%3)+4*c,2)}, {vTr} offset:{L_WOB + k*4096 + 32*c}")
                a(f"ds_read_b64_tr_b16 {vr(WB+16*(k%3)+4*c+2,2)}, {vTr} offset:{L_WOB + k*4096 + 32*c + 512}")
        if k:
            for c in range(4):
                a(f"v_mfma_f32_16x16x32_bf16 {vr(QD)}, {vr(WB+16*((k-1)%3)+4*c)}, {vr(OB+16*c+4*(k-1))}, {vr(QD) if (k > 1 or c) else 0}")
    y_seal(QD)
    if ytr:
        a(f"ds_write_b128 {vQt}, {vr(QD)} offset:{L_PART}")
        a(f"ds_read_b128 {vr(QD)}, {vL16} offset:{L_PART}")
        a("s_waitcnt lgkmcnt(0)")
    if not ybd: a(f"buffer_store_dwordx4 {vr(QD)}, {vYo}, {WS}, {sY} offen sc1")
    a("L_h_fin:")
    stamp("yB")
    a("s_barrier")
    if ybd:
        a("s_cbranch_scc1 L_h_fin2")
        if not noyb: a(f"buffer_store_dwordx4 {vr(QD)}, {vYo}, {WS}, {sY} offen sc1")
        a("L_h_fin2:")
    if fack == 2: a("s_waitcnt vmcnt(0)")
    if fack: a("s_barrier")
    if stamps: finish()
    a("L_end:")
    a("s_endpgm")
    a.pad()
    global STAMP_NAMES
    STAMP_NAMES = {k: v[:-1] for k, v in names.items()}
    head = HEADER + f"; @launch grid=(256,1,1) block=({64*NW},1,1) lds={L_KB + NL * 4096}\n"
    head += f'.amdgcn_target "amdgcn-amd-amdhsa--gfx950"\n.text\n.globl {NAME}_kernel\n.p2align 8\n.type {NAME}_kernel,@function\n{NAME}_kernel:\n'
    nv = 256 if stamps else max(RING + 4 * RP, 224)
    assert not (stamps and RP > 47)
    tail = f'''.section .rodata,"a"
.p2align 6
.amdhsa_kernel {NAME}_kernel
  .amdhsa_next_free_vgpr {nv}
  .amdhsa_next_free_sgpr 102
  .amdhsa_accum_offset {nv}
  .amdhsa_group_segment_fixed_size 0
  .amdhsa_kernarg_size 104
  .amdhsa_user_sgpr_count 2
  .amdhsa_user_sgpr_kernarg_segment_ptr 1
  .amdhsa_system_sgpr_workgroup_id_x 1
  .amdhsa_float_denorm_mode_32 3
.end_amdhsa_kernel
'''
    return head + a.text() + tail

if __name__ == "__main__":
    kw = eval("dict(" + (sys.argv[2] if len(sys.argv) > 2 else "") + ")")
    open(sys.argv[1], "w").write(gen(**kw))
```

```python
import os, sys, struct
from asmlib import Asm
def f2u(x): return struct.unpack('<I', struct.pack('<f', x))[0]

NAME = "concat_heads__mha_block_cached__sliding_block_cached__decode"
_ref = "cdna_kernels/" + NAME + ".s.ref"
HEADER = open(_ref).read().split("; Override launch")[0] if os.path.exists(_ref) else ""

WS_QP = 0x0
WS_ML = 0x40000
WS_PO = 0x48000
WS_FL = 0xC8000
WS_GC = 0xD0000
WS_EP = 0xE4000
WS_CH = 0xE5000
WS_Y = 0x100000
YG = 7 * 16384
WS_END = WS_Y + 8 * YG
WS_STAMP = 0x400000
L_WQ = 0
L_WOA = 0
L_WOB = 16384
L_PART = 32768
L_Q = L_PART + 12288
L_CNT = L_Q + 1536
L_LOC = L_CNT + 4
L_CH = L_CNT + 8
L_PRG = L_CNT + 16
L_TH = L_CNT + 32
L_KB = L_CNT + 512
OOB = 0x40000000
TAGC = (0x9E3779B9, 0x7F4A7C15)
CSCALE = 0x3DB8AA3B
NW = 6

def brev(j, bits): return int(f"{j:0{bits}b}"[::-1], 2)
FULL = "row_mask:0xf bank_mask:0xf"
QP1 = "quad_perm:[1,0,3,2] " + FULL
QP2 = "quad_perm:[2,3,0,1] " + FULL

def gen(D=5, D0=5, ND0=12, RP=46, NL=8, ratio=6, stamps=False, fine=False, spin=1 << 19, pol="nt", force_remote=False,
        th0=3.9, thmin=2, gain=0.125, gw=0.08, gx=0.75, gstop=3, gI=1536, gc=None, c0=6,
        rot=1, rotx=4, tlb=True, wod=4, wpos=1, g2=True, hk=6, hsleep=2, near=None, nrace=4, ml0=4, ml1=7, nowo=0, swz=True, vt=0, pf=2, bx=0):
    a = Asm()
    LG = 8; thmax = LG - 2; NTOT = 288; RT = RP + NL
    sWG = "s2"; sW = "s3"
    KA, VA, KB, VB, WQ, XS, WS, OUT, WOA, WOB = (f"s[{i}:{i+3}]" for i in (32, 36, 40, 44, 32, 36, 60, 44, 48, 52))
    sLb = "s64"
    sX, sR, sH, sB = "s72", "s73", "s74", "s75"
    sOff = "s76"; sCnt = "s77"; sT0 = "s78"; sT1 = "s79"; sT2 = "s80"; sT3 = "s81"
    sRecA = "s82"; sRecB = "s83"; sG = "s84"; sY = "s85"; sU = "s86"; sC = "s87"; sSpin = "s88"; sLocal = "s89"
    sMk1 = "s[90:91]"; sMk0 = "s[92:93]"; sTh = "s94"; sRot = "s95"
    vL = "v0"; vKo = "v1"; vM = [f"v{i}" for i in range(2, 6)]
    QA = 6; QB = 14; SP = 30; AOP = 34; ACC = 38
    T = ["v46", "v47"]; U = ["v48", "v49"]; V = ["v50", "v51"]; X = ["v52", "v53"]
    t0, t1, t2, t3 = "v54", "v55", "v56", "v57"
    vm, vl, vg, vn = "v58", "v59", "v60", "v61"
    vmB, vlB = "v62", "v63"
    RING = 64
    OBS = 96; WTB = 112; ACCB = 128; SB = "v136"; vfA = "v137"; MLG = 138; WT = 144; G = 160
    vGo = "v176"; vYo = "v177"; vTr = "v178"; vPa = "v179"; vPrg = "v180"; vPrA = "v181"; vTH = "v182"; vWo = "v183"; vYm = "v206"; vYt = "v207"; vYb = "v184"; vWo2 = "v185"
    def slot(k): return RING + 4 * k
    def vr(i, n=4): return f"v[{i}:{i+n-1}]"
    names = {"s": [], "h": [], "g": []}
    cur = ["s"]
    def stamp(name):
        if not stamps: return
        nm = names[cur[0]]
        if nm:
            a("s_waitcnt lgkmcnt(0)")
            a(f"v_writelane_b32 v255, s96, {len(nm)-1}")
        nm.append(name)
        a("s_memrealtime s[96:97]")
    def finish():
        if stamps:
            a("s_mov_b64 exec, -1")
            stamp("end"); a("s_waitcnt vmcnt(0)"); stamp("acked"); stamp("x")
            a("s_mov_b32 exec_hi, 0")
            a(f"s_mul_i32 {sT0}, {sWG}, {NW}"); a(f"s_add_u32 {sT0}, {sT0}, {sW}"); a(f"s_lshl_b32 {sT0}, {sT0}, 7"); a(f"s_add_u32 {sT0}, {sT0}, {WS_STAMP}")
            a(f"v_lshl_add_u32 {t0}, {vL}, 2, {sT0}")
            a(f"global_store_dword {t0}, v255, s[28:29]")
        a("s_endpgm")
    def srd(i, lo, hi, size):
        if lo is not None: a(f"s_mov_b32 s{i}, {lo}"); a(f"s_mov_b32 s{i+1}, {hi}")
        a(f"s_mov_b32 s{i+2}, {size}"); a(f"s_mov_b32 s{i+3}, 0x20000")
    def poll(name, loads, check, sleep=0, first_issued=False, masked=False):
        sv = a.vm_seq
        a(f"s_mov_b32 {sSpin}, {spin}")
        if first_issued: a(f"s_branch {name}_chk")
        a(f"{name}:")
        if sleep: a(f"s_sleep {sleep}")
        loads()
        a(f"s_sub_u32 {sSpin}, {sSpin}, 1"); a(f"s_cmp_eq_u32 {sSpin}, 0")
        a("s_waitcnt vmcnt(0) lgkmcnt(0)")
        a(f"s_cbranch_scc1 {name}_go")
        if first_issued: a(f"{name}_chk:")
        check()
        if masked:
            a("s_and_b64 exec, exec, vcc")
            a(f"s_cbranch_scc1 {name}")
        else:
            a(f"s_cbranch_vccnz {name}")
        a(f"{name}_go:")
        if masked: a("s_mov_b64 exec, -1")
        if first_issued: a.vm_seq = sv
    def by_placement(tag, emit, have_scc=False):
        if not have_scc: a(f"s_cmp_eq_u32 {sLocal}, 1")
        a(f"s_cbranch_scc1 L_{tag}_l")
        sv = a.vm_seq
        emit(" sc1"); a.vm_seq = sv
        a(f"s_branch L_{tag}_d")
        a(f"L_{tag}_l:")
        emit("")
        a(f"L_{tag}_d:")
    def sentinel(regs):
        regs = list(regs); accs = [t0, t2]
        a(f"v_max_u32 {t0}, v{regs[0]}, v{regs[1]}"); a(f"v_max_u32 {t2}, v{regs[2]}, v{regs[3]}")
        for i in range(4, len(regs), 2):
            c = accs[(i >> 1) & 1]
            a(f"v_max3_u32 {c}, {c}, v{regs[i]}, v{regs[i+1]}")
        a(f"v_max_u32 {t0}, {t0}, {t2}")
        a(f"v_cmp_eq_u32 vcc, -1, {t0}")
    def red(op, r, steps):
        for s in steps:
            if s in (16, 32):
                a(f"v_mov_b32 {t1}, {r}"); a(f"v_permlane{s}_swap_b32 {r}, {t1}"); a(f"{op} {r}, {r}, {t1}")
            elif s == "q1": a(f"{op}_dpp {r}, {r}, {r} {QP1}")
            elif s == "q2": a(f"{op}_dpp {r}, {r}, {r} {QP2}")
            else: a(f"{op}_dpp {r}, {r}, {r} row_ror:{s} {FULL}")
    def rnd(r):
        a(f"v_cvt_pk_bf16_f32 {r}, {r}, {r}"); a(f"v_and_b32 {r}, 0xffff0000, {r}")
    def unit(P):
        a(f"s_mul_i32 {sT0}, {sR}, 37"); a(f"s_lshr_b32 {sT0}, {sT0}, 8")
        a(f"s_mul_i32 {sT1}, {sT0}, 7"); a(f"s_sub_u32 {sT1}, {sR}, {sT1}")
        a(f"s_lshl_b32 {sT2}, {sX}, 2"); a(f"s_add_u32 {sT0}, {sT0}, {sT2}")
        a(f"s_mul_i32 {sU}, {sT0}, {128*896}"); a(f"s_lshl_b32 {sT2}, {sT1}, 7"); a(f"s_add_u32 {sU}, {sU}, {sT2}")
        a(f"s_lshr_b32 {sG}, {sT0}, 1"); a(f"s_lshl_b32 {sG}, {sG}, 14"); a(f"s_and_b32 {sT2}, {sT0}, 1"); a(f"s_lshl_b32 {sT2}, {sT2}, 12")
        a(f"s_add_u32 {sG}, {sG}, {sT2}"); a(f"s_add_u32 {sG}, {sG}, {WS_PO + P*512*512}")
        a(f"s_lshl_b32 {sY}, {sT1}, 14"); a(f"s_lshl_b32 {sT2}, {sT0}, 6"); a(f"s_add_u32 {sY}, {sY}, {sT2}")
        a(f"s_add_u32 {sY}, {sY}, {WS_Y}")
    def unit_v():
        a(f"v_lshrrev_b32 {t0}, 2, {vn}"); a(f"v_and_b32 {t2}, 3, {vn}")
        a(f"v_lshlrev_b32 {vGo}, 4, {vL}")
        a(f"v_lshl_add_u32 {vTr}, {vg}, 3, {t0}"); a(f"v_lshlrev_b32 {vTr}, 7, {vTr}"); a(f"v_lshl_add_u32 {vTr}, {t2}, 3, {vTr}")
        a(f"v_lshrrev_b32 {t0}, 3, {vL}"); a(f"v_mul_u32_u24 {t0}, 896, {t0}"); a(f"v_and_b32 {t2}, 7, {vL}"); a(f"v_lshl_add_u32 {vWo}, {t2}, 4, {t0}")
    sCh = "s71"
    def y_base(dst, P):
        a(f"v_add_u32 {t0}, {4*P}, {vg}"); a(f"v_mul_u32_u24 {dst}, {YG}, {t0}")
        a(f"v_bfe_u32 {t2}, {sCh}, {t0}, 1"); a(f"v_lshl_add_u32 {dst}, {t2}, 13, {dst}"); a(f"v_lshl_add_u32 {dst}, {vn}, 2, {dst}")
    def tag_load(): a(f"s_load_dwordx2 s[56:57], s[28:29], {WS_EP}")
    def tag_make():
        a(f"s_add_u32 s56, s56, {TAGC[0]}"); a(f"s_addc_u32 s57, s57, {TAGC[1]}"); a("s_lshr_b32 s58, s57, 4")
        a(f"s_getreg_b32 {sT0}, hwreg(HW_REG_XCC_ID, 0, 4)")
        a("s_lshl_b32 s59, s58, 4"); a(f"s_or_b32 s59, s59, {sT0}")
    def tag_chk(regs):
        for i, r in enumerate(regs):
            a(f"v_lshrrev_b32 {t1}, 4, v{r+1}"); a(f"v_xor_b32 {t1}, s58, {t1}"); a(f"v_xor_b32 {t2}, s56, v{r}")
            if i: a(f"v_or3_b32 {t0}, {t0}, {t1}, {t2}")
            else: a(f"v_or_b32 {t0}, {t1}, {t2}")
        a(f"v_cmp_ne_u32 vcc, 0, {t0}")

    YT = ["s65", "s66", "s67", "s68"]
    def ytag_make():
        a(f"s_and_b32 {YT[0]}, s56, 0xfff"); a(f"s_bfe_u32 {YT[1]}, s56, 0xc000c")
        a(f"s_and_b32 {YT[2]}, s58, 0xfff"); a(f"s_bfe_u32 {YT[3]}, s58, 0xc000c")
    def y_seal(r):
        a(f"v_add_u32 v{r}, 0x800, v{r}"); a(f"v_and_or_b32 v{r}, v{r}, {vYm}, {vYt}")

    a("s_load_dwordx16 s[4:19], s[0:1], 0")
    a("s_load_dwordx8 s[20:27], s[0:1], 64")
    a("s_load_dwordx2 s[28:29], s[0:1], 96")
    stamp("start"); names["h"] = list(names["s"]); names["g"] = list(names["s"])
    a(f"s_cmp_ge_u32 {sWG}, 256")
    a("s_cbranch_scc1 L_end")
    a(f"v_lshrrev_b32 {t2}, 6, v0")
    a(f"v_and_b32 {vL}, 63, v0")
    a(f"v_readfirstlane_b32 {sW}, {t2}")
    a(f"v_lshrrev_b32 {vg}, 4, {vL}")
    a(f"v_and_b32 {vn}, 15, {vL}")
    a(f"s_and_b32 {sX}, {sWG}, 7")
    a(f"s_lshr_b32 {sR}, {sWG}, 3")
    a(f"s_lshr_b32 {sT0}, {sWG}, 7")
    a(f"s_lshl1_add_u32 {sH}, {sX}, {sT0}")
    a(f"s_bfe_u32 {sB}, {sR}, 0x20002")
    a(f"s_cmp_ge_u32 {sW}, 4")
    a("s_cbranch_scc1 L_helper")

    a(f"v_lshl_add_u32 {vKo}, {t2}, 2, {vg}")
    a(f"v_lshl_add_u32 {vKo}, {vKo}, 5, {vn}")
    a(f"v_lshlrev_b32 {vKo}, 4, {vKo}")
    a(f"s_lshl4_add_u32 s40, {sB}, {sH}"); a(f"s_and_b32 s41, {sR}, 3"); a("s_lshl2_add_u32 s40, s40, s41"); a("s_lshl_b32 s40, s40, 19")
    srd(32, None, None, 0x80000)
    a(f"s_mov_b32 {sOff}, 0")
    sMask = "s70"
    def advance(n, masked=False):
        a(f"s_addk_i32 {sOff}, 8192")
        if masked: a(f"s_and_b32 {sOff}, {sOff}, {sMask}")
        elif 128 <= n < 160: a(f"s_bitset0_b32 {sOff}, 16")
    def backlog(P0, do_issue, do_proc):
        p = 0; burst = 0; iss = RT
        while not (p % 8 == 0 and iss - p == LG and p >= RT):
            do_proc(p); p += 1
            free = iss - RT < p if (P0 is None or iss < P0) else (p > 23 and iss < P0 + LG)
            if iss - p < LG or (iss - p > LG and free and (burst < D or p % ratio == 0)):
                assert free
                do_issue(); iss += 1; burst += 1
        return p
    P0 = backlog(None, lambda: None, lambda p: None)
    assert P0 - RT <= 16 and P0 <= 112
    a("s_waitcnt lgkmcnt(0)")
    a("s_add_u32 s32, s6, s40"); a("s_addc_u32 s33, s7, 0")
    ids = {}
    def srd_of(n): return KA if n < 128 else KB if n < 144 else VB if n < 160 else VA
    def kslot(n):
        if n >= P0: return n % 8
        if n >= RT: return 8 + n - RT
        if n >= RP: return 24 + (n - RP) % 8
        return 8 + n if n < 16 else n - 16 if n < 24 else n
    def issue(n, masked=False):
        if n in (144, 160): a(f"s_mov_b32 {sOff}, {sRot if n < 160 else 0}")
        if RP <= n < RT:
            a(f"s_add_u32 m0, {sLb}, {256 + (n - RP) * 1024 - 256 * (n & 1)}")
            ids[n] = a(f"buffer_load_dwordx4 {vKo}, {srd_of(n)}, {sOff} offen offset:{256*(n&1)} {pol} lds")
        else:
            ids[n] = a(f"buffer_load_dwordx4 {vr(slot(kslot(n)))}, {vKo}, {srd_of(n)}, {sOff} offen offset:{256*(n&1)} {pol}")
        if n & 1: advance(n, masked)
    for n in range(D0): issue(n)
    issued = D0
    stamp("k0")
    tag_load()
    a("s_add_u32 s36, s8, s40"); a("s_addc_u32 s37, s9, 0"); srd(36, None, None, 0x80000)
    a(f"s_lshl2_add_u32 {sRecA}, {sH}, {sB}"); a(f"s_lshl3_add_u32 {sRecA}, {sRecA}, s41")
    a(f"s_lshl_b32 {sRecB}, {sX}, 6"); a(f"s_add_u32 {sRecB}, {sRecB}, {sR}"); a(f"s_add_u32 {sRecB}, {sRecB}, 512")
    a(f"s_andn2_b32 s44, {sR}, 7"); a(f"s_add_u32 s44, s44, {sX}"); a(f"s_xor_b32 s44, s44, {bx}"); a("s_lshl_b32 s44, s44, 5")
    a(f"s_and_b32 s45, {sR}, 7"); a("s_add_u32 s44, s44, s45"); a("s_add_u32 s44, s44, 24"); a("s_lshl_b32 s44, s44, 16")
    a("s_add_u32 s40, s16, s44"); a("s_addc_u32 s41, s17, 0"); srd(40, None, None, 0x10000)
    a("s_add_u32 s44, s18, s44"); a("s_addc_u32 s45, s19, 0"); srd(44, None, None, 0x10000)
    srd(60, "s28", "s29", WS_END); srd(48, "s12", "s13", 0 if nowo & 1 else 0x380000); srd(52, "s22", "s23", 0 if nowo & 2 else 0x380000)
    unit(0)
    a(f"s_mul_i32 {sT0}, {sW}, {4*8*896}"); a(f"s_add_u32 {sU}, {sU}, {sT0}")
    a(f"s_lshl_b32 {sT0}, {sW}, 11"); a(f"s_add_u32 {sY}, {sY}, {sT0}")
    sUB = "s69"
    a(f"s_xor_b32 {sT0}, {sX}, {bx}"); a(f"s_sub_i32 {sT0}, {sT0}, {sX}"); a(f"s_mul_i32 {sT0}, {sT0}, {512*896}"); a(f"s_add_u32 {sUB}, {sU}, {sT0}")
    a(f"s_cmp_ge_u32 {sR}, 28"); a(f"s_cselect_b32 {sU}, {OOB}, {sU}"); a(f"s_cselect_b32 {sUB}, {OOB}, {sUB}"); a(f"s_cselect_b32 {sG}, {OOB}, {sG}")
    if True:
        a(f"s_mul_i32 {sRot}, {sR}, {rot}"); a(f"s_mul_i32 {sT0}, {sX}, {rotx}"); a(f"s_add_u32 {sRot}, {sRot}, {sT0}")
        a(f"s_and_b32 {sRot}, {sRot}, 7"); a(f"s_lshl_b32 {sRot}, {sRot}, 13")
    a(f"s_mov_b32 {sC}, {CSCALE}")
    a("s_mov_b32 s90, 0xcccccccc"); a("s_mov_b32 s91, 0xcccccccc")
    a("s_mov_b32 s92, 0xaaaaaaaa"); a("s_mov_b32 s93, 0xaaaaaaaa")
    a("s_and_b64 s[98:99], s[90:91], s[92:93]"); a(f"s_mov_b32 {sMask}, -1")
    a(f"v_bfe_u32 {t0}, {vL}, 1, 2")
    a(f"v_mov_b32 {t2}, 0xffff"); a(f"v_mov_b32 {t1}, 0xffff0000")
    a(f"v_cndmask_b32 {t2}, {t2}, {t1}, {sMk0}")
    for j in range(4):
        a(f"v_cmp_eq_u32 vcc, {j}, {t0}")
        a(f"v_cndmask_b32 {vM[j]}, 0, {t2}, vcc")
    a(f"v_lshlrev_b32 {t3}, 4, {vn}"); a(f"v_mov_b32 {t0}, {L_LOC}")
    a(f"s_mul_i32 {sLb}, {sW}, {NL * 1024}"); a(f"s_add_u32 {sLb}, {sLb}, {L_KB - 256}")
    landed = -1
    def throttled_issue():
        nonlocal issued, landed
        d = D0 if issued < ND0 else D
        if issued - d > landed:
            landed = issued - d; a.wait_vm(ids[landed])
        issue(issued); issued += 1
    while issued < RT:
        throttled_issue()
        if fine and issued in (D0 + 1, 16, 26, 36, 46, 56, 66): stamp(f"ki{issued}")
        if issued == 24:
            a("s_waitcnt lgkmcnt(0)"); tag_make(); ytag_make()
    stamp("ring_full")
    a("s_barrier")
    a(f"ds_read_b128 {vr(QA)}, {t3} offset:{L_Q+1024}"); a(f"ds_read_b128 {vr(QA+4)}, {t3} offset:{L_Q+1024+256}")
    for k in range(4): a(f"ds_read_b128 {vr(QB+4*k)}, {t3} offset:{L_Q+256*k}")
    a(f"ds_read2_b32 v[54:55], {t0} offset0:0 offset1:1")
    a(f"v_lshl_add_u32 {t3}, {vL}, 4, {sLb}")
    a("s_waitcnt lgkmcnt(0)")
    a(f"v_readfirstlane_b32 {sLocal}, {t0}"); a(f"v_readfirstlane_b32 {sCh}, {t1}")
    stamp("q_ready")

    def tree(j, acc, dst_fn):
        u = U[(j >> 1) & 1]
        a(f"v_add_f32_dpp {u}, {acc}, {acc} row_ror:8 row_mask:0xf bank_mask:{'0xc' if j & 1 else '0x3'}")
        if not j & 1: return
        v = V[(j >> 2) & 1]
        a(f"v_add_f32_dpp {v}, {u}, {u} row_half_mirror row_mask:0xf bank_mask:{'0xa' if j & 2 else '0x5'}")
        if not j & 2: return
        a(f"v_add_f32_dpp {v}, {v}, {v} {QP2}")
        if not j & 4: return
        x = X[(j >> 3) & 1]
        a(f"v_cndmask_b32 {x}, {V[0]}, {V[1]}, {sMk1}")
        a(f"v_add_f32_dpp {x}, {x}, {x} {QP1}")
        if not j & 8: return
        dst_fn()
    def dots(acc, kr, qr, first):
        if first: a(f"v_mov_b32 {acc}, 0")
        for e in range(4): a(f"v_dot2c_f32_bf16 {acc}, v{kr+e}, v{qr+e}")
    ROT = "quad_perm:[1,2,3,0] " + FULL
    def procK(n, looped=False):
        k = kslot(n); i = (n >> 1) & 3; hf = n & 1
        acc = T[i & 1]
        dots(acc, slot(k), QA + 4 * hf, not hf)
        if not hf: return
        a(f"v_add_f32_dpp {U[0]}, {acc}, {acc} row_ror:8 row_mask:0xf bank_mask:{'0xc' if i & 1 else '0x3'}")
        if not i & 1: return
        a(f"v_add_f32_dpp {V[0]}, {U[0]}, {U[0]} row_half_mirror row_mask:0xf bank_mask:{'0xa' if i & 2 else '0x5'}")
        if not i & 2: return
        r = SP + (0 if looped else ((n >> 3) - P0 // 8) & 3)
        a(f"v_mov_b32_dpp {X[0]}, v{r} {ROT}")
        a(f"v_add_f32_dpp {V[0]}, {V[0]}, {V[0]} {QP2}")
        if looped:
            for e in range(3): a(f"v_mov_b32 v{SP+e}, v{SP+e+1}")
        a(f"v_add_f32_dpp {V[0]}, {V[0]}, {V[0]} {QP1}")
        a(f"v_cndmask_b32 v{SP+3 if looped else r}, {X[0]}, {V[0]}, s[98:99]")
    def procKB(n):
        k = kslot(n); j = (n - 128) >> 1; hf = n & 1
        for hd in range(2):
            dots(T[hd], slot(k), QB + 8 * hd + 4 * hf, not hf)
        if not hf: return
        for hd in range(2):
            tree(2 * j + hd, T[hd], lambda: a(f"v_cndmask_b32 {SB}, {X[0]}, {X[1]}, {sMk0}"))
    def procVB(n):
        k = kslot(n); j = (n - 144) >> 1; hf = n & 1
        if not hf:
            a(f"v_mov_b32_dpp {t0}, {SB} row_newbcast:{brev(j,3)} row_mask:0xf bank_mask:0x3")
            a(f"v_mov_b32_dpp {t0}, {SB} row_newbcast:{8+brev(j,3)} row_mask:0xf bank_mask:0xc")
            for e in range(4): a(f"v_and_b32 v{AOP+e}, {t0}, {vM[e]}")
        a(f"v_mfma_f32_16x16x32_bf16 {vr(ACCB+4*hf)}, {vr(AOP)}, {vr(slot(k))}, {vr(ACCB+4*hf) if j else 0}")
    def procV(n, last=False):
        k = kslot(n); i = (n >> 1) & 3; hf = n & 1
        if not hf:
            for e in range(4):
                a(f"v_and_b32_dpp v{AOP+e}, v{SP}, {vM[e]} row_newbcast:{8*(i&1) + 4*(i>>1)} {FULL}")
        a(f"v_mfma_f32_16x16x32_bf16 {vr(ACC+4*hf)}, {vr(AOP)}, {vr(slot(k))}, {vr(ACC+4*hf)}")
        if hf and i == 3 and not last:
            a(f"v_mov_b32_dpp {X[0]}, v{SP} {ROT}")
            for e in range(3): a(f"v_mov_b32 v{SP+e}, v{SP+e+1}")
            a(f"v_mov_b32 v{SP+3}, {X[0]}")
    AH = 4
    def backlog_proc(p):
        n = p + AH
        if RP <= n < RT:
            assert n <= landed and p > 31
            a(f"ds_read_b128 {vr(slot(kslot(n)))}, {t3} offset:{256 + (n - RP) * 1024}")
        if RP <= p < RT: a(f"s_waitcnt lgkmcnt({min(AH, RT - 1 - p)})")
        assert p <= landed
        procK(p)
    assert backlog(P0, throttled_issue, backlog_proc) == P0
    total = (NTOT - LG - P0) // 2 * 4
    a(f"s_lshl2_add_u32 {sT0}, {sW}, {L_PRG}")
    a(f"v_mov_b32 {vPrA}, {sT0}"); a(f"v_mov_b32 {vPrg}, 0")
    a(f"s_mov_b32 {sTh}, {int(th0 + 0.5)}")
    stamp("caught_up")
    nlad = [0]
    def pair(n, proc, extra=None, masked=False):
        j = n >> 1
        if j & 1:
            a(f"s_waitcnt vmcnt({thmax}) lgkmcnt(0)")
            a(f"v_readfirstlane_b32 {sTh}, {vTH}")
        else:
            a(f"s_waitcnt vmcnt({thmax})")
        proc(n); proc(n + 1)
        nlad[0] += 1
        for th in range(thmax, thmin, -1):
            a(f"s_cmp_ge_u32 {sTh}, {th}"); a(f"s_cbranch_scc1 L_lad{nlad[0]}")
            a(f"s_waitcnt vmcnt({th - 1})")
        a(f"L_lad{nlad[0]}:")
        issue(n + LG, masked); issue(n + LG + 1, masked)
        a(f"v_add_u32 {vPrg}, 1, {vPrg}")
        a(f"ds_write_b32 {vPrA}, {vPrg}")
        if not j & 1: a(f"ds_read_b32 {vTH}, {vPrA} offset:{L_TH - L_PRG}")
        if extra: extra()
    a(f"s_mov_b32 {sCnt}, {16 - P0 // 8}")
    a("L_k:")
    a(f"s_sub_u32 {sCnt}, {sCnt}, 1"); a(f"s_cmp_eq_u32 {sCnt}, 0")
    a("s_cselect_b32 s32, s40, s32"); a("s_cselect_b32 s33, s41, s33"); a("s_cselect_b32 s34, s42, s34")
    a(f"s_cselect_b32 {sOff}, {sRot}, {sOff}"); a(f"s_cselect_b32 {sMask}, 0xffff, {sMask}")
    for n in range(P0, P0 + 8, 2): pair(n, lambda m: procK(m, True), masked=True)
    a(f"s_cmp_lg_u32 {sCnt}, 0"); a("s_cbranch_scc1 L_k")
    stamp("K_done")
    def softmaxA():
        for e in range(4): rnd(f"v{SP+e}")
        a(f"v_max3_f32 {vm}, v{SP}, v{SP+1}, v{SP+2}"); a(f"v_max_f32 {vm}, {vm}, v{SP+3}")
        red("v_max_f32", vm, (8, 4, 2, 1, 16, 32))
        a(f"v_mul_f32 {vm}, {sC}, {vm}")
        for e in range(4): a(f"v_fma_f32 v{SP+e}, v{SP+e}, {sC}, -{vm}")
        for e in range(4): a(f"v_exp_f32 v{SP+e}, v{SP+e}")
        a(f"v_add_f32 {vl}, v{SP}, v{SP+1}"); a(f"v_add_f32 {t0}, v{SP+2}, v{SP+3}"); a(f"v_add_f32 {vl}, {vl}, {t0}")
        for e in range(4): a(f"v_cvt_pk_bf16_f32 v{SP+e}, v{SP+e}, v{SP+e}")
    def softmaxA2():
        red("v_add_f32", vl, (8, 4, 2, 1, 16, 32))
        for e in range(8): a(f"v_mov_b32 v{ACC+e}, 0")
        a(f"v_min_u32 {vm}, -2, {vm}"); a(f"v_min_u32 {vl}, -2, {vl}")
        a(f"s_lshl2_add_u32 {sT0}, {sRecA}, {sW}"); a(f"s_lshl3_add_u32 {sT0}, {sT0}, {WS_ML}")
        a("s_mov_b64 exec, 1")
        by_placement("mla", lambda b: a(f"buffer_store_dwordx2 v[58:59], off, {WS}, {sT0}{b}"))
        a("s_mov_b64 exec, -1")
    def softmaxB():
        rnd(SB)
        a(f"v_mul_f32 {SB}, {sC}, {SB}")
        a(f"v_max_f32_dpp {vmB}, {SB}, {SB} row_half_mirror {FULL}")
        red("v_max_f32", vmB, ("q1", "q2", 16, 32))
        a(f"v_sub_f32 {SB}, {SB}, {vmB}"); a(f"v_exp_f32 {SB}, {SB}")
        a(f"v_add_f32_dpp {vlB}, {SB}, {SB} row_half_mirror {FULL}")
        a(f"v_cvt_pk_bf16_f32 {SB}, {SB}, {SB}")
    def softmaxB2():
        red("v_add_f32", vlB, ("q1", "q2", 16, 32))
        a(f"v_min_u32 {vmB}, -2, {vmB}"); a(f"v_min_u32 {vlB}, -2, {vlB}")
        a(f"s_lshl2_add_u32 {sT0}, {sRecB}, {sW}"); a(f"s_lshl3_add_u32 {sT0}, {sT0}, {WS_ML}")
        a(f"v_lshlrev_b32 {t2}, 7, {vn}")
        a("s_mov_b64 exec, 0x101")
        by_placement("mlb", lambda b: a(f"buffer_store_dwordx2 v[62:63], {t2}, {WS}, {sT0} offen{b}"))
        a("s_mov_b64 exec, -1")
    def addresses():
        if swz:
            a(f"v_bfe_u32 {t0}, {vL}, 3, 2"); a(f"v_xor_b32 {t0}, {sW}, {t0}"); a(f"v_lshl_add_u32 {vTr}, {t0}, 5, {vTr}")
            a(f"v_and_b32 {t0}, 16, {vL}"); a(f"v_lshlrev_b32 {t0}, 1, {t0}"); a(f"v_xor_b32 {vWo}, {t0}, {vWo}"); a(f"v_xor_b32 {vWo2}, 64, {vWo}")
        else:
            a(f"s_lshl_b32 {sT0}, {sW}, 5"); a(f"v_add_u32 {vTr}, {sT0}, {vTr}"); a(f"v_mov_b32 {vWo2}, {vWo}")
        a(f"s_lshl_b32 {sLb}, {sW}, 12")
        y_base(vYo, 0); y_base(vYb, 1)
        a(f"v_mov_b32 {vYm}, 0xfffff000")
        a(f"v_mov_b32 {t0}, {YT[0]}"); a(f"v_mov_b32 {t1}, {YT[1]}"); a(f"v_cndmask_b32 {t0}, {t0}, {t1}, {sMk0}")
        a(f"v_mov_b32 {t2}, {YT[2]}"); a(f"v_mov_b32 {t1}, {YT[3]}"); a(f"v_cndmask_b32 {t2}, {t2}, {t1}, {sMk0}")
        a(f"v_cndmask_b32 {vYt}, {t0}, {t2}, {sMk1}")
        a(f"v_and_b32 {t0}, 1, {vg}"); a(f"v_lshlrev_b32 {t0}, 4, {t0}"); a(f"v_lshl_add_u32 {t0}, {vn}, 5, {t0}")
        a(f"s_lshl_b32 {sT0}, {sW}, 10"); a(f"s_add_u32 {sT0}, {sT0}, {L_PART}")
        a(f"v_add_u32 {vPa}, {sT0}, {t0}")
    extras = {128: softmaxA, 130: softmaxA2, 132: unit_v, 134: addresses, 142: softmaxB, 144: softmaxB2}
    for n in range(128, 160, 2): pair(n, procKB if n < 144 else procVB, extras.get(n))
    stamp("B_done")
    a(f"s_mov_b32 {sCnt}, 0")
    a("L_v:")
    a(f"s_cmp_eq_u32 {sCnt}, {ml0}"); a("s_cbranch_scc1 L_ml_issue")
    a(f"s_cmp_eq_u32 {sCnt}, {ml1}"); a("s_cbranch_scc1 L_ml_use")
    a("L_v_body:")
    for n in range(160, 168, 2): pair(n, procV)
    a(f"s_add_u32 {sCnt}, {sCnt}, 1"); a(f"s_cmp_lt_u32 {sCnt}, 15"); a("s_cbranch_scc1 L_v")
    a("s_branch L_v_x")
    def ml_loads():
        a(f"buffer_load_dwordx2 {vr(MLG,2)}, {U[0]}, {WS}, {sT0} offen sc1")
        a(f"buffer_load_dwordx2 {vr(MLG+2,2)}, {U[1]}, {WS}, {sT1} offen sc1")
    a("L_ml_issue:")
    a(f"s_andn2_b32 {sT0}, {sRecA}, 7"); a(f"s_lshl_b32 {sT0}, {sT0}, 5"); a(f"s_add_u32 {sT0}, {sT0}, {WS_ML}")
    a(f"s_andn2_b32 {sT1}, {sRecB}, 7"); a(f"s_lshl_b32 {sT1}, {sT1}, 5"); a(f"s_add_u32 {sT1}, {sT1}, {WS_ML}")
    a(f"v_lshlrev_b32 {U[0]}, 3, {vn}")
    a(f"v_and_b32 {t0}, 31, {vL}"); a(f"v_lshlrev_b32 {t0}, 3, {t0}"); a(f"v_lshrrev_b32 {t1}, 5, {vL}"); a(f"v_lshl_add_u32 {U[1]}, {t1}, 10, {t0}")
    ml_loads()
    a("s_branch L_v_body")
    a("L_ml_use:")
    poll("L_ml", ml_loads, lambda: sentinel(range(MLG, MLG + 4)), sleep=2, first_issued=True)
    MA, MB = V
    a(f"v_max_f32_dpp {MA}, v{MLG}, v{MLG} row_ror:8 {FULL}"); a(f"v_max_f32_dpp {MB}, v{MLG+2}, v{MLG+2} row_ror:8 {FULL}")
    for s in (4, 2, 1):
        a(f"v_max_f32_dpp {MA}, {MA}, {MA} row_ror:{s} {FULL}"); a(f"v_max_f32_dpp {MB}, {MB}, {MB} row_ror:{s} {FULL}")
    red("v_max_f32", MB, (16,))
    a(f"v_mov_b32_dpp {t3}, {vmB} row_newbcast:0 row_mask:0x3 bank_mask:0xf")
    a(f"v_mov_b32_dpp {t3}, {vmB} row_newbcast:8 row_mask:0xc bank_mask:0xf")
    a(f"v_sub_f32 v{MLG}, v{MLG}, {MA}"); a(f"v_sub_f32 v{MLG+2}, v{MLG+2}, {MB}")
    a(f"v_sub_f32 {vfA}, {vm}, {MA}"); a(f"v_sub_f32 {t3}, {t3}, {MB}")
    a(f"v_exp_f32 v{MLG}, v{MLG}"); a(f"v_exp_f32 v{MLG+2}, v{MLG+2}"); a(f"v_exp_f32 {vfA}, {vfA}"); a(f"v_exp_f32 {t3}, {t3}")
    a(f"v_mul_f32 {MA}, v{MLG}, v{MLG+1}"); a(f"v_mul_f32 {MB}, v{MLG+2}, v{MLG+3}")
    for s in (8, 4, 2, 1):
        a(f"v_add_f32_dpp {MA}, {MA}, {MA} row_ror:{s} {FULL}"); a(f"v_add_f32_dpp {MB}, {MB}, {MB} row_ror:{s} {FULL}")
    red("v_add_f32", MB, (16,))
    a(f"v_rcp_f32 {MA}, {MA}"); a(f"v_rcp_f32 {MB}, {MB}")
    a(f"v_mul_f32 {vfA}, {vfA}, {MA}"); a(f"v_mul_f32 {t3}, {t3}, {MB}")
    for e in range(8): a(f"v_mul_f32 v{ACCB+e}, v{ACCB+e}, {t3}")
    a(f"v_lshrrev_b32 {t1}, 1, {vg}"); a(f"v_lshl_add_u32 {t0}, {t1}, 12, {vPa}")
    a(f"ds_write_b128 {t0}, {vr(ACCB)}"); a(f"ds_write_b128 {t0}, {vr(ACCB+4)} offset:512")
    a(f"v_lshl_add_u32 {vPa}, {t1}, 9, {vPa}")
    a(f"v_mov_b32 {t0}, {L_CNT}"); a(f"v_mov_b32 {t2}, 1")
    a("s_waitcnt lgkmcnt(0)")
    a("s_mov_b64 exec, 1")
    a(f"ds_add_u32 {t0}, {t2}")
    a("s_mov_b64 exec, -1")
    a("s_branch L_v_body")
    a("L_v_x:")
    stamp("v_x")
    for k in range(LG): ids[NTOT - LG + k] = a.vm_seq - (LG - 1 - k)
    nwo = 0; id_wo = None
    def gA():
        for k in range(4): a(f"buffer_load_dwordx4 {vr(G+4*k)}, {vGo}, {WS}, {sG} offen offset:{1024*k} sc1")
    def wo_issue():
        nonlocal nwo, id_wo
        a(f"s_add_u32 m0, {sLb}, {(L_WOA, L_WOB)[nwo >> 2] + 1024*(nwo & 3)}")
        a(f"s_add_u32 {sT0}, {(sU, sUB)[nwo >> 2]}, {8*896*(nwo & 3)}")
        id_wo = a(f"buffer_load_dwordx4 {(vWo, vWo2)[nwo & 1]}, {(WOA, WOB)[nwo >> 2]}, {sT0} offen {pol} lds")
        nwo += 1
    a("s_mov_b32 vcc_lo, 0"); a("s_mov_b32 vcc_hi, -1")
    for n in range(NTOT - LG, NTOT):
        a.wait_vm(ids[n])
        if n - (NTOT - LG) >= wod: wo_issue()
        procV(n, last=True)
    stamp("stream_done")
    for e in range(4): a(f"v_cndmask_b32 v{ACC+e}, v{ACC+e}, v{ACC+4+e}, vcc")
    for e in range(4): a(f"v_mul_f32 v{ACC+e}, v{ACC+e}, {vfA}")
    a(f"ds_write_b128 {vPa}, {vr(ACC)} offset:8192")
    while wpos == 0 and nwo < 8: wo_issue()
    a("s_waitcnt lgkmcnt(0)")
    a("s_barrier")
    while wpos == 1 and nwo < 8: wo_issue()
    for k in range(4): a(f"ds_read_b128 {vr(OBS+4*k)}, {vGo} offset:{L_PART + 1024*k}")
    if g2:
        a("s_barrier")
        while wpos == 2 and nwo < 8: wo_issue()
        gA()
        while nwo < 8: wo_issue()
    a.wait_vm(id_wo)
    a("s_barrier")
    if fine: stamp("wo_in")
    a(f"s_cmp_ge_u32 {sR}, 28"); a("s_cbranch_scc1 L_s_fin")
    a("s_waitcnt lgkmcnt(0)")
    for dst, src in ((WTB, L_WOB), (WT, L_WOA)):
        for k in range(4):
            if src == L_WOA and k == 3: a("s_waitcnt lgkmcnt(6)")
            a(f"ds_read_b64_tr_b16 {vr(dst+4*k,2)}, {vTr} offset:{src+4096*k}")
            a(f"ds_read_b64_tr_b16 {vr(dst+4*k+2,2)}, {vTr} offset:{src+4096*k+512}")
    for k in range(4):
        a(f"v_mfma_f32_16x16x32_bf16 {vr(ACC+4)}, {vr(OBS+4*k)}, {vr(WTB+4*k)}, {vr(ACC+4) if k else 0}")
    if g2: a("s_waitcnt vmcnt(0)")
    poll("L_s2", gA, lambda: sentinel(range(G, G + 16)), masked=True, first_issued=g2)
    if g2: a("s_waitcnt lgkmcnt(0)")
    stamp("gathered")
    for k in range(4):
        a(f"v_mfma_f32_16x16x32_bf16 {vr(ACC)}, {vr(G+4*k)}, {vr(WT+4*k)}, {vr(ACC) if k else 0}")
    y_seal(ACC + 4)
    a(f"buffer_store_dword v{ACC+4}, {vYb}, {WS}, {sY} offen sc1")
    a(f"v_add_f32 v{ACC}, v{ACC}, v{ACC+1}"); a(f"v_add_f32 v{ACC+2}, v{ACC+2}, v{ACC+3}"); a(f"v_add_f32 v{ACC}, v{ACC}, v{ACC+2}")
    y_seal(ACC)
    a(f"buffer_store_dword v{ACC}, {vYo}, {WS}, {sY} offen sc1")
    if stamps:
        a("s_branch L_s_fin2")
        a("L_s_fin:")
        names["s"].pop(); stamp("gathered")
        a("L_s_fin2:")
    else:
        a("L_s_fin:")
    stamp("y")
    a("s_waitcnt vmcnt(0)")
    a("s_barrier")
    finish()

    cur[0] = "g"
    a("L_gov:")
    vA4 = "v2"; vBo = "v3"; vPw = "v4"; vP = "v5"; vPp = "v6"; vB = "v7"; vTh = "v8"; vL16 = "v16"
    sTg = sU; sPo = sRecA; sGa = sRecB; sIn = sY
    a(f"v_lshlrev_b32 {vL16}, 4, {vL}")
    a(f"s_lshl_b32 {sT1}, {sX}, 5"); a(f"s_add_u32 {sT1}, {sT1}, {sR}"); a(f"s_lshl_b32 {sT1}, {sT1}, 7"); a(f"s_add_u32 {sT1}, {sT1}, {WS_FL}")
    srd(60, None, None, WS_END)
    a("s_waitcnt lgkmcnt(0)")
    tag_load()
    a("s_mov_b32 s60, s28"); a("s_mov_b32 s61, s29")
    a("s_mov_b64 exec, 0xff")
    a("s_waitcnt lgkmcnt(0)")
    tag_make()
    a("v_mov_b32 v8, s56"); a("v_mov_b32 v9, s59"); a("v_mov_b32 v10, s56"); a("v_mov_b32 v11, s59")
    a(f"buffer_store_dwordx4 v[8:11], {vL16}, {WS}, {sT1} offen sc1")
    a("s_mov_b64 exec, -1")
    ytag_make()
    a(f"s_mul_i32 {sIn}, {sX}, {YG}"); a(f"s_add_u32 {sIn}, {sIn}, {WS_Y}")
    a(f"s_cmp_lg_u32 {sR}, 0"); a("s_cbranch_scc1 L_norace")
    a(f"s_add_u32 s4, s28, {sIn}"); a("s_addc_u32 s5, s29, 0")
    a("s_load_dword s6, s[4:5], 0 glc"); a("s_load_dword s7, s[4:5], 8192 glc")
    a(f"s_mov_b32 {sT1}, 0")
    a("s_waitcnt lgkmcnt(0)")
    for i in range(nrace):
        a("s_not_b32 s10, s6"); a("s_not_b32 s11, s7")
        for h in ((0, 1), (1, 0))[i & 1]: a(f"s_load_dword s{10+h}, s[4:5], {8192*h} glc")
        a("s_waitcnt lgkmcnt(1)")
        a("s_sleep 1")
        a("s_mov_b64 s[14:15], s[10:11]")
        a("s_waitcnt lgkmcnt(0)")
        a("s_cmp_eq_u32 s15, s7"); a(f"s_addc_u32 {sT1}, {sT1}, 0"); a("s_cmp_eq_u32 s14, s6"); a(f"s_subb_u32 {sT1}, {sT1}, 0")
    a(f"s_sub_i32 {sT2}, 0, {sT1}"); a("s_bitcmp1_b32 s59, 2"); a(f"s_cselect_b32 {sT1}, {sT2}, {sT1}")
    a(f"s_cmp_gt_i32 {sT1}, 0"); a(f"s_cselect_b32 {sT2}, 2, 0"); a(f"s_cmp_lt_i32 {sT1}, 0"); a(f"s_cselect_b32 {sT2}, 1, {sT2}")
    if near is not None: a(f"s_mov_b32 {sT2}, {1 + near}")
    a(f"s_and_b32 {sT1}, s59, 4"); a(f"s_or_b32 {sT1}, {sT1}, {sT2}")
    a(f"s_lshl4_add_u32 {sT1}, s58, {sT1}")
    a(f"v_mov_b32 v12, s56"); a(f"v_mov_b32 v13, {sT1}"); a(f"v_mov_b32 v14, s56"); a(f"v_mov_b32 v15, {sT1}")
    a(f"s_lshl_b32 {sT1}, {sX}, 7"); a(f"s_add_u32 {sT1}, {sT1}, {WS_CH}")
    a("s_mov_b64 exec, 0xff")
    a(f"buffer_store_dwordx4 v[12:15], {vL16}, {WS}, {sT1} offen sc1")
    a("s_mov_b64 exec, -1")
    a("L_norace:")
    a(f"s_lshr_b32 {sT0}, {sR}, 2"); a(f"s_lshl_b32 {sT0}, {sT0}, 14"); a(f"s_add_u32 {sIn}, {sIn}, {sT0}")
    a(f"s_and_b32 {sT0}, {sR}, 3"); a(f"s_lshl_b32 {sT0}, {sT0}, 11"); a(f"s_add_u32 {sIn}, {sIn}, {sT0}")
    stamp("hello")
    srd(44, "s24", "s25", 7168)
    if tlb:
        a(f"s_lshl4_add_u32 s40, {sB}, {sH}"); a("s_lshl_b32 s40, s40, 21")
        a(f"s_andn2_b32 s41, {sR}, 7"); a(f"s_add_u32 s41, s41, {sX}"); a(f"s_xor_b32 s41, s41, {bx}"); a("s_lshl_b32 s41, s41, 21"); a("s_add_u32 s41, s41, 0x180000")
        a(f"s_mul_i32 s42, {sX}, {512*896}")
        for i, (pp, o) in enumerate(((12, 42), (22, 42), (16, 41), (18, 41), (8, 40))):
            a(f"s_add_u32 s{pp}, s{pp}, s{o}"); a(f"s_addc_u32 s{pp+1}, s{pp+1}, 0")
            a(f"s_load_dword s{48+i}, s[{pp}:{pp+1}], 0")
    a(f"v_and_b32 {vA4}, 3, {vL}"); a(f"v_lshlrev_b32 {vA4}, 2, {vA4}")
    a(f"v_mov_b32 {vPp}, 0"); a(f"v_mov_b32 {vTh}, {int(th0 + 0.5)}"); a(f"v_mov_b32 {vB}, 0")
    a(f"ds_write_b32 {vA4}, {vPp} offset:{L_PRG}"); a(f"ds_write_b32 {vA4}, {vTh} offset:{L_TH}"); a(f"ds_write_b32 {vB}, {vB} offset:{L_CNT}")
    gc_ = gI // 2 if gc is None else gc
    a(f"s_mul_i32 {sG}, {sX}, 4352"); a(f"s_add_u32 {sG}, {sG}, {WS_GC}")
    a(f"v_lshlrev_b32 {vBo}, 2, {vL}")
    a(f"s_lshl2_add_u32 {sOff}, {sR}, {sG}")
    a(f"s_add_u32 {sGa}, {sG}, {8*4352}")
    a(f"s_mul_i32 {sTg}, {sX}, {gI // 8}"); a(f"s_add_u32 {sTg}, {sTg}, {gI // 8}")
    a(f"s_cmp_eq_u32 {sR}, {28 if gx else 99}"); a(f"s_cselect_b32 {sTg}, {sTg}, -1")
    sOut = sC
    a(f"s_and_b32 {sT0}, {sX}, 3"); a(f"s_mul_i32 {sOut}, {sT0}, 1792"); a(f"s_lshr_b32 {sT0}, {sX}, 2"); a(f"s_mul_i32 {sT0}, {sT0}, 896")
    a(f"s_add_u32 {sOut}, {sOut}, {sT0}"); a(f"s_lshl_b32 {sT0}, {sR}, 5"); a(f"s_add_u32 {sOut}, {sOut}, {sT0}")
    a(f"v_lshrrev_b32 {t1}, 1, {vg}"); a(f"v_and_b32 {t2}, 1, {vg}"); a(f"v_lshl_add_u32 {t1}, {t2}, 1, {t1}")
    a(f"v_and_b32 {t2}, 3, {vn}"); a(f"v_lshl_add_u32 {t1}, {t2}, 2, {t1}"); a(f"v_lshlrev_b32 {t3}, 1, {t1}")
    a("s_waitcnt lgkmcnt(0)")
    a("s_barrier")
    a(f"ds_read_b32 v10, {vB} offset:{L_LOC}"); a(f"ds_read_b32 v11, {vB} offset:{L_CH}")
    a("s_waitcnt lgkmcnt(0)")
    a(f"v_readfirstlane_b32 {sLocal}, v10"); a(f"v_readfirstlane_b32 {sCh}, v11")
    a(f"s_lshr_b32 {sT0}, {sCh}, {sX}"); a(f"s_and_b32 {sT0}, {sT0}, 1"); a(f"s_lshl_b32 {sT0}, {sT0}, 13"); a(f"s_add_u32 {sIn}, {sIn}, {sT0}")
    if stamps: a(f"v_writelane_b32 v255, {sCh}, 30")
    a(f"s_cmp_lg_u32 {sLocal}, 1"); a("s_cbranch_scc1 L_gend")
    poll("L_g0", lambda: a(f"ds_read_b32 {vPw}, {vA4} offset:{L_PRG}"), lambda: a(f"v_cmp_eq_u32 vcc, 0, {vPw}"), sleep=4)
    a(f"s_mov_b32 {sSpin}, {spin}")
    a("L_gloop:")
    a(f"ds_read_b32 {vPw}, {vA4} offset:{L_PRG}")
    a(f"s_sub_u32 {sSpin}, {sSpin}, 1"); a(f"s_cmp_eq_u32 {sSpin}, 0"); a("s_cbranch_scc1 L_gend")
    a("s_waitcnt lgkmcnt(0)")
    a(f"v_add_u32_dpp {vP}, {vPw}, {vPw} {QP1}"); a(f"v_add_u32_dpp {vP}, {vP}, {vP} {QP2}")
    a("s_mov_b64 exec, 1")
    a(f"buffer_store_dword {vP}, off, {WS}, {sOff}")
    a(f"v_cmp_le_u32 vcc, {total - 4 * gstop}, {vP}")
    a("s_cbranch_vccnz L_gend")
    a("s_mov_b32 exec_lo, -1"); a("s_mov_b32 exec_hi, 1")
    a(f"buffer_load_dword {vB}, {vBo}, {WS}, {sG} offen sc1")
    a("s_mov_b64 exec, -1")
    a(f"v_cvt_f32_u32 {t0}, {vP}")
    a(f"v_mul_f32 {t0}, {f2u(-gain)}, {t0}"); a(f"v_add_f32 {t0}, {f2u(th0 + 0.5 + gain * c0)}, {t0}")
    if gw:
        a(f"v_lshlrev_b32 {vPw}, 2, {vPw}"); a(f"v_sub_u32 {vPw}, {vP}, {vPw}"); a(f"v_cvt_f32_i32 {vPw}, {vPw}")
        a(f"v_mul_f32 {vPw}, {f2u(gw)}, {vPw}"); a(f"v_add_f32 {t0}, {t0}, {vPw}")
    a("s_waitcnt vmcnt(0)")
    a(f"v_add_u32_dpp {t1}, {vB}, {vB} row_ror:8 {FULL}")
    a(f"v_readlane_b32 {sT3}, {vB}, 32")
    for sft in (4, 2, 1): a(f"v_add_u32_dpp {t1}, {t1}, {t1} row_ror:{sft} {FULL}")
    a(f"v_readlane_b32 {sT0}, {t1}, 0"); a(f"v_readlane_b32 {sT1}, {t1}, 16")
    a(f"v_cvt_f32_i32 v11, {sT3}")
    a(f"s_add_u32 {sT2}, {sT0}, {sT1}")
    a(f"v_cvt_f32_u32 v10, {sT2}")
    a(f"v_mul_f32 v10, {f2u(gain / 32)}, v10"); a(f"v_mul_f32 v11, {f2u(gain * gx / 256)}, v11")
    a(f"v_add_f32 {t0}, {t0}, v10"); a(f"v_add_f32 {t0}, {t0}, v11")
    a(f"v_cvt_i32_f32 {vTh}, {t0}")
    a(f"v_med3_i32 {vTh}, {vTh}, {thmin}, {thmax}")
    a(f"ds_write_b32 {vA4}, {vTh} offset:{L_TH}")
    a(f"s_cmp_lt_u32 {sT2}, {sTg}"); a("s_cbranch_scc1 L_gloop")
    a(f"s_xor_b32 {sT0}, {sT2}, s56")
    for i in range(4): a(f"v_mov_b32 v{12+i}, {'s57' if i & 1 else sT0}")
    a("s_mov_b64 exec, 0xff")
    a(f"buffer_store_dwordx4 v[12:15], {vL16}, {WS}, {sGa} offen sc1"); a("s_mov_b64 exec, -1")
    for i in range(1, 8):
        a(f"s_add_u32 {sT0}, {sX}, {i}"); a(f"s_and_b32 {sT0}, {sT0}, 7"); a(f"s_mul_i32 {sT0}, {sT0}, 4352"); a(f"s_add_u32 {sT0}, {sT0}, {WS_GC + 8*4352}")
        a(f"s_load_dwordx2 s[{4+2*i}:{5+2*i}], s[28:29], {sT0} glc")
    a(f"s_add_u32 {sTg}, {sTg}, {gI}")
    a(f"s_sub_u32 {sT0}, {gc_}, {sT2}"); a(f"s_mul_i32 {sT0}, {sT0}, 7")
    a("s_waitcnt lgkmcnt(0)")
    for i in range(1, 8):
        a(f"s_xor_b64 s[{4+2*i}:{5+2*i}], s[{4+2*i}:{5+2*i}], s[56:57]"); a(f"s_lshr_b64 s[4:5], s[{4+2*i}:{5+2*i}], 14")
        a(f"s_cselect_b32 s{4+2*i}, 0, s{4+2*i}"); a(f"s_add_u32 {sT0}, {sT0}, s{4+2*i}")
    a(f"v_mov_b32 v10, {sT0}")
    a("s_mov_b64 exec, 1")
    a(f"buffer_store_dword v10, off, {WS}, {sG} offset:128")
    a("s_mov_b64 exec, -1")
    a("s_branch L_gloop")
    a("L_gend:")
    a("s_mov_b64 exec, -1")
    stamp("gov_end")
    a(f"s_cmp_ge_u32 {sR}, 28")
    for i in range(4 if g2 else 3): a("s_barrier")
    a("s_cbranch_scc1 L_g_fin")
    F = 64
    def gY():
        for k in range(2): a(f"buffer_load_dwordx4 {vr(F+4*k)}, {vL16}, {WS}, {sIn} offen offset:{1024*k} sc1")
    def y_chk():
        for i in range(8): a(f"v_xor_b32 v{F+i}, {YT[i & 3]}, v{F+i}")
        a(f"v_or3_b32 {t0}, v{F}, v{F+1}, v{F+2}"); a(f"v_or3_b32 {t2}, v{F+3}, v{F+4}, v{F+5}")
        a(f"v_or3_b32 {t0}, {t0}, v{F+6}, v{F+7}"); a(f"v_or_b32 {t0}, {t0}, {t2}")
        a(f"v_and_b32 {t0}, 0xfff, {t0}"); a(f"v_cmp_ne_u32 vcc, 0, {t0}")
    poll("L_f", gY, y_chk, masked=True)
    for e in range(4): a(f"v_add_f32 v{F+e}, v{F+e}, v{F+4+e}")
    a(f"v_permlane32_swap_b32 v{F}, v{F+1}"); a(f"v_permlane32_swap_b32 v{F+2}, v{F+3}")
    a(f"v_add_f32 v{F}, v{F}, v{F+1}"); a(f"v_add_f32 v{F+2}, v{F+2}, v{F+3}")
    a(f"v_permlane16_swap_b32 v{F}, v{F+2}")
    a(f"v_add_f32 v{F}, v{F}, v{F+2}")
    red("v_add_f32", f"v{F}", (4, 8))
    a(f"v_cvt_pk_bf16_f32 v{F}, v{F}, v{F}")
    a("s_mov_b32 exec_lo, 0x000f000f"); a("s_mov_b32 exec_hi, 0x000f000f")
    a(f"buffer_store_short v{F}, {t3}, {OUT}, {sOut} offen")
    a(f"s_cmp_eq_u32 {sWG}, 0"); a("s_cbranch_scc0 L_g_fin")
    a("v_mov_b32 v8, s56"); a("v_mov_b32 v9, s57"); a(f"s_mov_b32 {sT0}, {WS_EP}")
    a("s_mov_b64 exec, 1")
    a(f"buffer_store_dwordx2 v[8:9], off, {WS}, {sT0} sc1")
    a("L_g_fin:")
    finish()

    cur[0] = "h"
    a("L_helper:")
    a(f"s_cmp_eq_u32 {sW}, 5"); a("s_cbranch_scc1 L_gov")
    def code_pull(tagl, reg, st):
        a("s_getpc_b64 s[30:31]")
        a(f"{tagl}:")
        a(f"s_sub_u32 s30, s30, {tagl}-{NAME}_kernel"); a("s_subb_u32 s31, s31, 0")
        a(f"s_lshl_b32 {sT1}, {sR}, {st}")
        a(f"v_lshl_add_u32 {t0}, {vL}, {st + 5}, {sT1}")
        a(f"v_min_u32 {t0}, L_end-{NAME}_kernel, {t0}")
        a(f"s_mov_b64 exec, {0x1f if st == 7 else 0x3ff}")
        a(f"global_load_dword {reg}, {t0}, s[30:31]")
        a("s_mov_b64 exec, -1")
    if pf == 1: code_pull("L_pc", "v2", 7)
    if pf == 2: code_pull("L_pc", "v2", 6)
    XOP = 64; WOP = 96; QD = 208
    vXo = "v5"; vL8 = "v7"; vQt = "v17"
    a(f"v_lshrrev_b32 {t3}, 3, {vL}"); a(f"v_and_b32 {t2}, 7, {vL}"); a(f"v_lshlrev_b32 {t2}, 4, {t2}")
    a(f"v_lshl_add_u32 {vKo}, {t3}, 13, {t2}")
    a(f"v_and_b32 {vXo}, 3, {vL}"); a(f"v_mul_u32_u24 {vXo}, 896, {vXo}"); a(f"v_lshl_add_u32 {vXo}, {vg}, 4, {vXo}")
    a(f"s_bfe_u32 s44, {sR}, 0x10003")
    a(f"s_and_b32 s45, {sR}, 7"); a(f"s_lshl3_add_u32 s45, {sX}, s45")
    a(f"s_mul_i32 s46, {sT0}, {8*bx}"); a("s_xor_b32 s47, s45, s46")
    a(f"s_mul_i32 s46, s44, {224*8192}"); a("s_lshl_b32 s47, s47, 7"); a(f"s_add_u32 {sOff}, s46, s47")
    a(f"s_mul_i32 {sT2}, s44, 448")
    srd(32, None, None, 0x380000); srd(36, None, None, 3584)
    a(f"s_mov_b32 m0, {L_WQ}")
    a(f"s_cmp_eq_u32 {sT0}, 0")
    a("s_waitcnt lgkmcnt(0)")
    a("s_cselect_b32 s32, s10, s20"); a("s_cselect_b32 s33, s11, s21")
    a("s_cselect_b32 s36, s4, s14"); a("s_cselect_b32 s37, s5, s15")
    tag_load()
    idk = []
    for k in range(7):
        a(f"buffer_load_dwordx4 {vr(XOP+4*k)}, {vXo}, {XS}, {sT2} offen offset:{64*k}")
        for j in range(4):
            r = a(f"buffer_load_dwordx4 {vKo}, {WQ}, {sOff} offen {pol} lds")
            if k < 6 or j < 3:
                a("s_add_u32 m0, m0, 1024"); a(f"s_add_u32 {sOff}, {sOff}, 65536")
        idk.append(r)
    stamp("wq_issued")
    sQs = "s64"; sMc = "s48"; sPa = "s49"; sPb = "s50"; sBz = "s51"; sRd = "s69"; sFl = "s70"
    a(f"s_lshl1_add_u32 {sQs}, {sT0}, s44"); a(f"s_lshl_b32 {sQs}, {sQs}, 16"); a("s_lshl_b32 s46, s45, 10"); a(f"s_add_u32 {sQs}, {sQs}, s46")
    a(f"s_lshl3_add_u32 {sMc}, {sT0}, {sX}"); a(f"s_and_b32 {sT3}, {sR}, 15"); a(f"s_lshl4_add_u32 {sMc}, {sMc}, {sT3}")
    a(f"s_lshl_b32 {sMc}, {sMc}, 7"); a(f"s_add_u32 {sMc}, {sMc}, {WS_ML}")
    srd(60, "s28", "s29", WS_END)
    unit(1); unit_v()
    a(f"s_lshl_b32 {sRecA}, {sH}, 14"); a(f"s_add_u32 {sRecA}, {sRecA}, {WS_PO}")
    a(f"s_lshl_b32 {sRecB}, {sX}, 15"); a(f"s_add_u32 {sRecB}, {sRecB}, {WS_PO + 16*16384}")
    a(f"s_lshl_b32 {sPa}, {sT3}, 9"); a(f"s_add_u32 {sPa}, {sPa}, {sRecA}")
    a(f"s_lshl_b32 {sPb}, {sR}, 9"); a(f"s_add_u32 {sPb}, {sPb}, {sRecB}")
    a(f"v_and_b32 {t0}, 31, {vL}"); a(f"v_lshlrev_b32 {t0}, 4, {t0}"); a(f"v_lshrrev_b32 {t1}, 5, {vL}"); a(f"v_lshl_add_u32 v18, {t1}, 14, {t0}")
    a(f"s_lshl4_add_u32 {sRecA}, {sT3}, {sRecA}")
    a(f"s_lshr_b32 {sT0}, {sR}, 3"); a(f"s_and_b32 {sT1}, {sR}, 3"); a(f"s_lshl2_add_u32 {sT0}, {sT0}, {sT1}"); a(f"s_lshl4_add_u32 {sRecB}, {sT0}, {sRecB}")
    a(f"s_bfe_u32 {sT0}, {sR}, 0x10002"); a(f"s_lshl_b32 {sT0}, {sT0}, 13"); a(f"s_add_u32 {sRecB}, {sRecB}, {sT0}")
    a(f"v_lshrrev_b32 {t0}, 1, {vL}"); a(f"v_lshlrev_b32 {t0}, 8, {t0}"); a(f"v_and_b32 {t1}, 1, {vL}"); a(f"v_lshl_add_u32 {vPa}, {t1}, 3, {t0}")
    a(f"s_mul_i32 {sRd}, {sX}, 4352"); a(f"s_add_u32 {sRd}, {sRd}, {WS_GC}")
    a(f"s_cmp_eq_u32 {sR}, 0"); a(f"s_cselect_b32 {sBz}, {sRd}, {OOB}")
    a(f"s_lshl_b32 {sFl}, {sX}, 12"); a(f"s_add_u32 {sFl}, {sFl}, {WS_FL}")
    for i in range(4): a(f"v_mov_b32 v{AOP+i}, -1")
    for i in range(4): a(f"v_mov_b32 v{ACC+i}, 0")
    a(f"v_lshlrev_b32 {vL16}, 4, {vL}"); a(f"v_lshlrev_b32 {vL8}, 3, {vL}"); a(f"v_lshlrev_b32 {t3}, 7, {vL}")
    a(f"v_and_b32 {t0}, 3, {vn}"); a(f"v_lshlrev_b32 {t0}, 8, {t0}"); a(f"v_lshrrev_b32 {t1}, 2, {vn}")
    a(f"v_lshl_add_u32 {t0}, {t1}, 6, {t0}"); a(f"v_lshl_add_u32 {vQt}, {vg}, 4, {t0}")
    def hello_ld(): a(f"buffer_load_dwordx2 v[12:13], {t3}, {WS}, {sFl} offen sc1")
    for k in range(8):
        if k < 7: a.wait_vm(idk[k])
        if k == hk:
            a("s_mov_b32 exec_hi, 0"); hello_ld(); a("s_mov_b32 exec_hi, -1")
        if k: a("s_waitcnt lgkmcnt(0)")
        if k < 7:
            for c in range(4):
                a(f"ds_read_b64_tr_b16 {vr(WOP+16*(k%3)+4*c,2)}, {vTr} offset:{L_WQ + k*4096 + 32*c}")
                a(f"ds_read_b64_tr_b16 {vr(WOP+16*(k%3)+4*c+2,2)}, {vTr} offset:{L_WQ + k*4096 + 32*c + 512}")
        if k:
            for c in range(4):
                a(f"v_mfma_f32_16x16x32_bf16 {vr(QD+4*c)}, {vr(WOP+16*((k-1)%3)+4*c)}, {vr(XOP+4*(k-1))}, {vr(QD+4*c) if k > 1 else 0}")
    tag_make()
    for c in range(1, 4):
        for e in range(4):
            a(f"v_mov_b32_dpp v{QD+e}, v{QD+4*c+e} quad_perm:[0,1,2,3] row_mask:0xf bank_mask:{1<<c}")
    a(f"ds_write_b128 {vQt}, {vr(QD)} offset:{L_PART}")
    a(f"ds_read_b128 {vr(QD)}, {vL16} offset:{L_PART}")
    stamp("q_done")
    a("s_waitcnt vmcnt(0) lgkmcnt(0)")
    a("s_mov_b32 exec_hi, 0")
    poll("L_fl", hello_ld, lambda: tag_chk([12]), sleep=16, masked=True, first_issued=True)
    a("v_cmp_ne_u32 vcc, s59, v13")
    a("s_cmp_eq_u32 vcc_lo, 0"); a(f"s_cselect_b32 {sLocal}, {2 if force_remote else 1}, 2")
    stamp("hello_seen")
    a("v_mov_b32 v8, s56"); a("v_mov_b32 v9, s59")
    a(f"s_lshl3_add_u32 {sT1}, {sR}, {sRd}")
    def first_stores(b):
        a(f"buffer_store_dwordx4 {vr(QD)}, {vL16}, {WS}, {sQs} offen{b}")
        a(f"buffer_store_dwordx4 {vr(AOP)}, v18, {WS}, {sPb} offen{b}")
        a("s_mov_b32 exec_hi, 0")
        a(f"buffer_store_dwordx4 {vr(AOP)}, v18, {WS}, {sPa} offen{b}")
        a("s_mov_b32 exec_lo, 0xffff")
        a(f"buffer_store_dwordx4 {vr(ACC)}, {vL16}, {WS}, {sBz} offen{b}")
        a("s_mov_b32 exec_lo, 0xff")
        a(f"buffer_store_dwordx4 {vr(AOP)}, {vL16}, {WS}, {sMc} offen{b}")
        a("s_mov_b32 exec_lo, 1")
        a("s_waitcnt vmcnt(0)")
        a(f"buffer_store_dwordx2 v[8:9], off, {WS}, {sT1} offset:256{b}")
    by_placement("first", first_stores)
    a("s_mov_b32 exec_lo, -1")
    stamp("ready")
    poll("L_rd", lambda: a(f"buffer_load_dwordx2 v[12:13], {vL8}, {WS}, {sRd} offen offset:256 sc1"), lambda: tag_chk([12]), sleep=hsleep, masked=True)
    stamp("go_seen")
    a(f"v_lshlrev_b32 {t0}, 4, {vn}"); a(f"v_lshl_add_u32 {t0}, {vg}, 10, {t0}")
    a(f"s_lshr_b32 {sT0}, {sR}, 3"); a(f"s_lshl_b32 {sT0}, {sT0}, 8"); a(f"s_lshl_b32 {sT1}, {sX}, 13"); a(f"s_add_u32 {sT0}, {sT0}, {sT1}")
    a(f"s_add_u32 {sT0}, {sT0}, 0x20000")
    a(f"s_lshl4_add_u32 {sT2}, {sH}, {sB}"); a(f"s_lshl_b32 {sT2}, {sT2}, 8")
    for u in (2, 0, 1):
        for kh in range(2):
            a(f"s_add_u32 {sT1}, {sT2 if u == 2 else sT0}, {kh * 0x10000 + (4096 if u == 1 else 0)}")
            a(f"buffer_load_dwordx4 {vr(64+8*u+4*kh)}, {t0}, {WS}, {sT1} offen sc1")
    a(f"s_mov_b32 {sT1}, {WS_CH}")
    a("s_mov_b64 exec, 0xff")
    poll("L_ch", lambda: a(f"buffer_load_dwordx2 v[12:13], {t3}, {WS}, {sT1} offen sc1"), lambda: tag_chk([12]), masked=True, sleep=1)
    for bit, dst in ((1, sT0), (2, sT1), (4, sCh)):
        a(f"v_and_b32 v12, {bit}, v13"); a("v_cmp_ne_u32 vcc, 0, v12"); a(f"s_and_b32 {dst}, vcc_lo, 0xff")
    a(f"s_bcnt1_i32_b32 {sT0}, {sT0}"); a(f"s_bcnt1_i32_b32 {sT1}, {sT1}")
    a(f"s_cmp_gt_u32 {sT1}, {sT0}"); a(f"s_cselect_b32 {sT0}, 0xff, 0"); a(f"s_xor_b32 {sCh}, {sCh}, {sT0}")
    a(f"v_mov_b32 {t0}, {L_LOC}"); a(f"v_mov_b32 {t1}, {sLocal}"); a(f"v_mov_b32 {t2}, {sCh}"); a(f"ds_write2_b32 {t0}, {t1}, {t2} offset0:0 offset1:1")
    for u in range(3):
        for e in range(4): a(f"v_add_f32 v{64+8*u+e}, v{64+8*u+e}, v{64+8*u+4+e}")
        for e in range(2): a(f"v_cvt_pk_bf16_f32 v{64+8*u+e}, v{64+8*u+2*e}, v{64+8*u+2*e+1}")
        a(f"ds_write_b64 {vL8}, {vr(64+8*u,2)} offset:{L_Q+512*u}")
    a("s_waitcnt lgkmcnt(0)")
    stamp("q_in_lds")
    a("s_barrier")
    a(f"v_mov_b32 {t3}, 0")
    poll("L_cnt", lambda: a(f"ds_read_b32 v8, {t3} offset:{L_CNT}"), lambda: a("v_cmp_ne_u32 vcc, 4, v8"), sleep=16)
    stamp("B_in_lds")
    CB = 184
    def combine(u):
        for w in range(4): a(f"ds_read_b128 {vr(CB+4*w)}, {vL16} offset:{L_PART + 4096*u + 1024*w}")
        a("s_waitcnt lgkmcnt(0)" if stamps else "s_waitcnt lgkmcnt(2)")
        for e in range(4): a(f"v_add_f32 v{CB+e}, v{CB+e}, v{CB+4+e}")
        a("s_waitcnt lgkmcnt(0)")
        for e in range(4): a(f"v_add_f32 v{CB+8+e}, v{CB+8+e}, v{CB+12+e}")
        for e in range(4): a(f"v_add_f32 v{CB+e}, v{CB+e}, v{CB+8+e}")
        for e in range(2): a(f"v_cvt_pk_bf16_f32 v{CB+e}, v{CB+2*e}, v{CB+2*e+1}")
        for e in range(2): a(f"v_min_u32 v{CB+16+2*u+e}, -2, v{CB+e}")
    def publish(u, so):
        by_placement(f"pub{u}", lambda b: a(f"buffer_store_dwordx2 {vr(CB+16+2*u,2)}, {vPa}, {WS}, {so} offen{b}"), have_scc=True)
    a(f"s_add_u32 {sT0}, {sRecB}, 16384")
    a(f"s_cmp_eq_u32 {sLocal}, 1")
    for u in range(2):
        combine(u); publish(u, (sRecB, sT0)[u])
    a(f"s_cmp_ge_u32 {sR}, 28"); a("s_cbranch_scc1 L_h_nos2")
    GB = 128; OB = 64
    a(f"s_add_u32 {sT0}, {sG}, 8192")
    def gB():
        for st in range(2):
            for k in range(4): a(f"buffer_load_dwordx4 {vr(GB+16*st+4*k)}, {vGo}, {WS}, {(sG, sT0)[st]} offen offset:{1024*k} sc1")
    poll("L_s2b", gB, lambda: sentinel(range(GB, GB + 32)), sleep=16, masked=True)
    for i in range(16):
        a(f"v_lshlrev_b32 v{160+i}, 16, v{GB+i}"); a(f"v_lshlrev_b32 {t0}, 16, v{GB+16+i}")
        a(f"v_and_b32 v{GB+i}, 0xffff0000, v{GB+i}"); a(f"v_and_b32 v{GB+16+i}, 0xffff0000, v{GB+16+i}")
        a(f"v_add_f32 v{160+i}, v{160+i}, {t0}"); a(f"v_add_f32 v{GB+i}, v{GB+i}, v{GB+16+i}")
    for qp in (QP1, QP2):
        for i in range(16):
            a(f"v_add_f32_dpp v{160+i}, v{160+i}, v{160+i} {qp}"); a(f"v_add_f32_dpp v{GB+i}, v{GB+i}, v{GB+i} {qp}")
    for i in range(16): a(f"v_cvt_pk_bf16_f32 v{GB+i}, v{160+i}, v{GB+i}")
    for k in range(4): a(f"ds_write_b128 {vL16}, {vr(GB+4*k)} offset:{L_PART + 1024*k}")
    a("L_h_nos2:")
    stamp("oB_ready")
    a(f"s_cmp_eq_u32 {sLocal}, 1")
    a("s_waitcnt lgkmcnt(0)")
    a("s_barrier")
    combine(2); publish(2, sRecA)
    stamp("published")
    for i in range(3 if g2 else 2): a("s_barrier")
    if stamps: finish()
    a("L_end:")
    a("s_endpgm")
    a.pad()
    global STAMP_NAMES
    STAMP_NAMES = {k: v[:-1] for k, v in names.items()}
    head = HEADER + f"; @launch grid=(256,1,1) block=({64*NW},1,1) lds={L_KB + NL * 4096}\n"
    head += f'.amdgcn_target "amdgcn-amd-amdhsa--gfx950"\n.text\n.globl {NAME}_kernel\n.p2align 8\n.type {NAME}_kernel,@function\n{NAME}_kernel:\n'
    nv = 256 if stamps else max(RING + 4 * RP, 224)
    assert not (stamps and RP > 47)
    tail = f'''.section .rodata,"a"
.p2align 6
.amdhsa_kernel {NAME}_kernel
  .amdhsa_next_free_vgpr {nv}
  .amdhsa_next_free_sgpr 102
  .amdhsa_accum_offset {nv}
  .amdhsa_group_segment_fixed_size 0
  .amdhsa_kernarg_size 104
  .amdhsa_user_sgpr_count 2
  .amdhsa_user_sgpr_kernarg_segment_ptr 1
  .amdhsa_system_sgpr_workgroup_id_x 1
  .amdhsa_float_denorm_mode_32 3
.end_amdhsa_kernel
'''
    return head + a.text() + tail

if __name__ == "__main__":
    kw = eval("dict(" + (sys.argv[2] if len(sys.argv) > 2 else "") + ")")
    open(sys.argv[1], "w").write(gen(**kw))
```

```python
import os, sys, struct
from asmlib import Asm
def f2u(x): return struct.unpack('<I', struct.pack('<f', x))[0]

NAME = "concat_heads__mha_block_cached__sliding_block_cached__decode"
_ref = "cdna_kernels/" + NAME + ".s.ref"
HEADER = open(_ref).read().split("; Override launch")[0] if os.path.exists(_ref) else ""

WS_QP = 0x0
WS_ML = 0x40000
WS_PO = 0x48000
WS_FL = 0xC8000
WS_GC = 0xD0000
WS_EP = 0xE4000
WS_CH = 0xE5000
WS_Y = 0x100000
YG = 7 * 16384
WS_END = WS_Y + 8 * YG
WS_STAMP = 0x400000
L_WQ = 0
L_WOA = 0
L_WOB = 16384
L_PART = 32768
L_Q = L_PART + 12288
L_CNT = L_Q + 1536
L_LOC = L_CNT + 4
L_CH = L_CNT + 8
L_PRG = L_CNT + 16
L_TH = L_CNT + 32
L_KB = L_CNT + 512
OOB = 0x40000000
TAGC = (0x9E3779B9, 0x7F4A7C15)
CSCALE = 0x3DB8AA3B
NW = 6

def brev(j, bits): return int(f"{j:0{bits}b}"[::-1], 2)
FULL = "row_mask:0xf bank_mask:0xf"
QP1 = "quad_perm:[1,0,3,2] " + FULL
QP2 = "quad_perm:[2,3,0,1] " + FULL

def gen(D=5, D0=5, ND0=12, RP=46, NL=8, ratio=6, stamps=False, fine=False, spin=1 << 19, pol="nt", force_remote=False,
        th0=4.15, thmin=3, gain=0.125, gw=0.08, gx=0.75, gstop=3, gI=1536, gc=None, c0=6,
        rot=1, rotx=4, rotm=1, tlb=True, wod=4, wpos=1, g2=True, hk=6, hsleep=2, near=None, nrace=4, ml0=4, ml1=7, nowo=0, swz=True, vt=0, pf=2, bx=0, ila=2, ilb=1, rp=4, rph=0, lay=0, kv=0, wqt=0, pbar=0):
    a = Asm()
    LG = 8; thmax = LG - 2; NTOT = 288; RT = RP + NL
    sWG = "s2"; sW = "s3"
    KA, VA, KB, VB, WQ, XS, WS, OUT, WOA, WOB = (f"s[{i}:{i+3}]" for i in (32, 36, 40, 44, 32, 36, 60, 44, 48, 52))
    sLb = "s64"
    sX, sR, sH, sB = "s72", "s73", "s74", "s75"
    sOff = "s76"; sCnt = "s77"; sT0 = "s78"; sT1 = "s79"; sT2 = "s80"; sT3 = "s81"
    sRecA = "s82"; sRecB = "s83"; sG = "s84"; sY = "s85"; sU = "s86"; sC = "s87"; sSpin = "s88"; sLocal = "s89"
    sMk1 = "s[90:91]"; sMk0 = "s[92:93]"; sTh = "s94"; sRot = "s95"
    vL = "v0"; vKo = "v1"; vM = [f"v{i}" for i in range(2, 6)]
    QA = 6; QB = 14; SP = 30; AOP = 34; ACC = 38
    T = ["v46", "v47"]; U = ["v48", "v49"]; V = ["v50", "v51"]; X = ["v52", "v53"]
    t0, t1, t2, t3 = "v54", "v55", "v56", "v57"
    vm, vl, vg, vn = "v58", "v59", "v60", "v61"
    vmB, vlB = "v62", "v63"
    RING = 64
    OBS = 96; WTB = 112; ACCB = 128; SB = "v136"; vfA = "v137"; MLG = 138; WT = 144; G = 160
    vGo = "v176"; vYo = "v177"; vTr = "v178"; vPa = "v179"; vPrg = "v180"; vPrA = "v181"; vTH = "v182"; vWo = "v183"; vYm = "v206"; vYt = "v207"; vYb = "v184"; vWo2 = "v185"
    def slot(k): return RING + 4 * k
    def vr(i, n=4): return f"v[{i}:{i+n-1}]"
    names = {"s": [], "h": [], "g": []}
    cur = ["s"]
    def stamp(name):
        if not stamps: return
        nm = names[cur[0]]
        if nm:
            a("s_waitcnt lgkmcnt(0)")
            a(f"v_writelane_b32 v255, s96, {len(nm)-1}")
        nm.append(name)
        a("s_memrealtime s[96:97]")
    def finish():
        if stamps:
            a("s_mov_b64 exec, -1")
            stamp("end"); a("s_waitcnt vmcnt(0)"); stamp("acked"); stamp("x")
            a("s_mov_b32 exec_hi, 0")
            a(f"s_mul_i32 {sT0}, {sWG}, {NW}"); a(f"s_add_u32 {sT0}, {sT0}, {sW}"); a(f"s_lshl_b32 {sT0}, {sT0}, 7"); a(f"s_add_u32 {sT0}, {sT0}, {WS_STAMP}")
            a(f"v_lshl_add_u32 {t0}, {vL}, 2, {sT0}")
            a(f"global_store_dword {t0}, v255, s[28:29]")
        a("s_endpgm")
    def srd(i, lo, hi, size):
        if lo is not None: a(f"s_mov_b32 s{i}, {lo}"); a(f"s_mov_b32 s{i+1}, {hi}")
        a(f"s_mov_b32 s{i+2}, {size}"); a(f"s_mov_b32 s{i+3}, 0x20000")
    def poll(name, loads, check, sleep=0, first_issued=False, masked=False):
        sv = a.vm_seq
        a(f"s_mov_b32 {sSpin}, {spin}")
        if first_issued: a(f"s_branch {name}_chk")
        a(f"{name}:")
        if sleep: a(f"s_sleep {sleep}")
        loads()
        a(f"s_sub_u32 {sSpin}, {sSpin}, 1"); a(f"s_cmp_eq_u32 {sSpin}, 0")
        a("s_waitcnt vmcnt(0) lgkmcnt(0)")
        a(f"s_cbranch_scc1 {name}_go")
        if first_issued: a(f"{name}_chk:")
        check()
        if masked:
            a("s_and_b64 exec, exec, vcc")
            a(f"s_cbranch_scc1 {name}")
        else:
            a(f"s_cbranch_vccnz {name}")
        a(f"{name}_go:")
        if masked: a("s_mov_b64 exec, -1")
        if first_issued: a.vm_seq = sv
    def by_placement(tag, emit, have_scc=False):
        if not have_scc: a(f"s_cmp_eq_u32 {sLocal}, 1")
        a(f"s_cbranch_scc1 L_{tag}_l")
        sv = a.vm_seq
        emit(" sc1"); a.vm_seq = sv
        a(f"s_branch L_{tag}_d")
        a(f"L_{tag}_l:")
        emit("")
        a(f"L_{tag}_d:")
    def sentinel(regs):
        regs = list(regs); accs = [t0, t2]
        a(f"v_max_u32 {t0}, v{regs[0]}, v{regs[1]}"); a(f"v_max_u32 {t2}, v{regs[2]}, v{regs[3]}")
        for i in range(4, len(regs), 2):
            c = accs[(i >> 1) & 1]
            a(f"v_max3_u32 {c}, {c}, v{regs[i]}, v{regs[i+1]}")
        a(f"v_max_u32 {t0}, {t0}, {t2}")
        a(f"v_cmp_eq_u32 vcc, -1, {t0}")
    def red(op, r, steps):
        for s in steps:
            if s in (16, 32):
                a(f"v_mov_b32 {t1}, {r}"); a(f"v_permlane{s}_swap_b32 {r}, {t1}"); a(f"{op} {r}, {r}, {t1}")
            elif s == "q1": a(f"{op}_dpp {r}, {r}, {r} {QP1}")
            elif s == "q2": a(f"{op}_dpp {r}, {r}, {r} {QP2}")
            else: a(f"{op}_dpp {r}, {r}, {r} row_ror:{s} {FULL}")
    def rnd(r):
        a(f"v_cvt_pk_bf16_f32 {r}, {r}, {r}"); a(f"v_and_b32 {r}, 0xffff0000, {r}")
    def unit(P):
        a(f"s_mul_i32 {sT0}, {sR}, 37"); a(f"s_lshr_b32 {sT0}, {sT0}, 8")
        a(f"s_mul_i32 {sT1}, {sT0}, 7"); a(f"s_sub_u32 {sT1}, {sR}, {sT1}")
        a(f"s_lshl_b32 {sT2}, {sX}, 2"); a(f"s_add_u32 {sT0}, {sT0}, {sT2}")
        a(f"s_mul_i32 {sU}, {sT0}, {128*896}"); a(f"s_lshl_b32 {sT2}, {sT1}, 7"); a(f"s_add_u32 {sU}, {sU}, {sT2}")
        a(f"s_lshr_b32 {sG}, {sT0}, 1"); a(f"s_lshl_b32 {sG}, {sG}, 14"); a(f"s_and_b32 {sT2}, {sT0}, 1"); a(f"s_lshl_b32 {sT2}, {sT2}, 12")
        a(f"s_add_u32 {sG}, {sG}, {sT2}"); a(f"s_add_u32 {sG}, {sG}, {WS_PO + P*512*512}")
        a(f"s_lshl_b32 {sY}, {sT1}, 14"); a(f"s_lshl_b32 {sT2}, {sT0}, 6"); a(f"s_add_u32 {sY}, {sY}, {sT2}")
        a(f"s_add_u32 {sY}, {sY}, {WS_Y}")
    def unit_v():
        a(f"v_lshrrev_b32 {t0}, 2, {vn}"); a(f"v_and_b32 {t2}, 3, {vn}")
        a(f"v_lshlrev_b32 {vGo}, 4, {vL}")
        a(f"v_lshl_add_u32 {vTr}, {vg}, 3, {t0}"); a(f"v_lshlrev_b32 {vTr}, 7, {vTr}"); a(f"v_lshl_add_u32 {vTr}, {t2}, 3, {vTr}")
        a(f"v_lshrrev_b32 {t0}, 3, {vL}"); a(f"v_mul_u32_u24 {t0}, 896, {t0}"); a(f"v_and_b32 {t2}, 7, {vL}"); a(f"v_lshl_add_u32 {vWo}, {t2}, 4, {t0}")
    sCh = "s71"
    def y_base(dst, P):
        a(f"v_add_u32 {t0}, {4*P}, {vg}"); a(f"v_mul_u32_u24 {dst}, {YG}, {t0}")
        a(f"v_bfe_u32 {t2}, {sCh}, {t0}, 1"); a(f"v_lshl_add_u32 {dst}, {t2}, 13, {dst}"); a(f"v_lshl_add_u32 {dst}, {vn}, 2, {dst}")
    def tag_load(): a(f"s_load_dwordx2 s[56:57], s[28:29], {WS_EP}")
    def tag_make():
        a(f"s_add_u32 s56, s56, {TAGC[0]}"); a(f"s_addc_u32 s57, s57, {TAGC[1]}"); a("s_lshr_b32 s58, s57, 4")
        a(f"s_getreg_b32 {sT0}, hwreg(HW_REG_XCC_ID, 0, 4)")
        a("s_lshl_b32 s59, s58, 4"); a(f"s_or_b32 s59, s59, {sT0}")
    def tag_chk(regs):
        for i, r in enumerate(regs):
            a(f"v_lshrrev_b32 {t1}, 4, v{r+1}"); a(f"v_xor_b32 {t1}, s58, {t1}"); a(f"v_xor_b32 {t2}, s56, v{r}")
            if i: a(f"v_or3_b32 {t0}, {t0}, {t1}, {t2}")
            else: a(f"v_or_b32 {t0}, {t1}, {t2}")
        a(f"v_cmp_ne_u32 vcc, 0, {t0}")

    YT = ["s65", "s66", "s67", "s68"]
    def ytag_make():
        a(f"s_and_b32 {YT[0]}, s56, 0xfff"); a(f"s_bfe_u32 {YT[1]}, s56, 0xc000c")
        a(f"s_and_b32 {YT[2]}, s58, 0xfff"); a(f"s_bfe_u32 {YT[3]}, s58, 0xc000c")
    def y_seal(r):
        a(f"v_add_u32 v{r}, 0x800, v{r}"); a(f"v_and_or_b32 v{r}, v{r}, {vYm}, {vYt}")

    a("s_load_dwordx16 s[4:19], s[0:1], 0")
    a("s_load_dwordx8 s[20:27], s[0:1], 64")
    a("s_load_dwordx2 s[28:29], s[0:1], 96")
    stamp("start"); names["h"] = list(names["s"]); names["g"] = list(names["s"])
    a(f"s_cmp_ge_u32 {sWG}, 256")
    a("s_cbranch_scc1 L_end")
    a(f"v_lshrrev_b32 {t2}, 6, v0")
    a(f"v_and_b32 {vL}, 63, v0")
    a(f"v_readfirstlane_b32 {sW}, {t2}")
    a(f"v_lshrrev_b32 {vg}, 4, {vL}")
    a(f"v_and_b32 {vn}, 15, {vL}")
    a(f"s_and_b32 {sX}, {sWG}, 7")
    a(f"s_lshr_b32 {sR}, {sWG}, 3")
    a(f"s_lshr_b32 {sT0}, {sWG}, 7")
    a(f"s_lshl1_add_u32 {sH}, {sX}, {sT0}")
    a(f"s_bfe_u32 {sB}, {sR}, 0x20002")
    a(f"s_cmp_ge_u32 {sW}, 4")
    a("s_cbranch_scc1 L_helper")

    a(f"v_lshl_add_u32 {vKo}, {t2}, 2, {vg}")
    a(f"v_lshl_add_u32 {vKo}, {vKo}, 5, {vn}")
    a(f"v_lshlrev_b32 {vKo}, 4, {vKo}")
    HA = 3 << (13 + ila); HB = 7 << (13 + ilb)
    a(f"s_lshl4_add_u32 s40, {sB}, {sH}"); a(f"s_and_b32 s41, {sR}, 3")
    if ila == 6:
        a("s_lshl2_add_u32 s40, s40, s41"); a("s_lshl_b32 s40, s40, 19")
    else:
        a(f"s_lshl_b32 s40, s40, {8 - ila}"); a("s_add_u32 s40, s40, s41"); a(f"s_lshl_b32 s40, s40, {13 + ila}")
    NRA = 0x200000 - HA; MA_ = 0x1fffff & ~HA
    if lay:
        nb = 3 + lay
        HA = (((1 << nb) - 1) << (13 + ila)) | ((15 << 21) if lay == 1 else (7 << 22))
        NRA = 0x8000000 - HA; MA_ = 0x7ffffff & ~HA
        a(f"s_and_b32 s40, {sR}, {(1 << nb) - 1}"); a(f"s_lshl_b32 s40, s40, {13 + ila}")
        a(f"s_lshl_b32 s42, {sH if lay == 1 else sX}, {20 + lay}"); a("s_add_u32 s40, s40, s42")
    srd(32, None, None, NRA)
    cur_off = [0]
    sMask = "s70"; sHole = "s100"; sRa = "s101"
    rota = rp or rph
    if rp << ila == 16 and not rph:
        a(f"s_lshl_b32 {sRa}, {sB}, 19")
    elif rota:
        a(f"s_mul_i32 {sRa}, {sB}, {rp}"); a(f"s_mul_i32 {sOff}, {sH}, {rph}"); a(f"s_add_u32 {sRa}, {sRa}, {sOff}")
        a(f"s_lshl_b32 {sRa}, {sRa}, {15 + ila}"); a(f"s_and_b32 {sRa}, {sRa}, 0x1fffff")
    a(f"s_mov_b32 {sOff}, {sRa if rota else 0}")
    def advance(n, masked=False):
        if masked:
            a(f"s_or_b32 {sOff}, {sOff}, {sHole}"); a(f"s_addk_i32 {sOff}, 8192"); a(f"s_and_b32 {sOff}, {sOff}, {sMask}")
        else:
            nx = ((cur_off[0] | HA) + 8192) & ~HA
            d = nx - cur_off[0]; cur_off[0] = nx
            if d == 8192: a(f"s_addk_i32 {sOff}, 8192")
            else:
                a(f"s_add_u32 {sOff}, {sOff}, {d}")
                if rota: a(f"s_bitset0_b32 {sOff}, 21")
    def backlog(P0, do_issue, do_proc):
        p = 0; burst = 0; iss = RT
        while not (p % 8 == 0 and iss - p == LG and p >= RT):
            do_proc(p); p += 1
            free = iss - RT < p if (P0 is None or iss < P0) else (p > 23 and iss < P0 + LG)
            if iss - p < LG or (iss - p > LG and free and (burst < D or p % ratio == 0)):
                assert free
                do_issue(); iss += 1; burst += 1
        return p
    P0 = backlog(None, lambda: None, lambda p: None)
    assert P0 - RT <= 16 and P0 <= 112
    a("s_waitcnt lgkmcnt(0)")
    a(f"s_add_u32 s32, s{6+2*kv}, s40"); a(f"s_addc_u32 s33, s{7+2*kv}, 0")
    ids = {}
    def srd_of(n): return KA if n < 128 else KB if n < 144 else VB if n < 160 else VA
    def kslot(n):
        if n >= P0: return n % 8
        if n >= RT: return 8 + n - RT
        if n >= RP: return 24 + (n - RP) % 8
        return 8 + n if n < 16 else n - 16 if n < 24 else n
    def issue(n, masked=False):
        if n == 144: a(f"s_mov_b32 {sOff}, {sRot}")
        if n == 160:
            a(f"s_mov_b32 {sOff}, {sRa if rota else 0}"); a(f"s_mov_b32 {sHole}, {HA}"); a(f"s_mov_b32 {sMask}, {MA_}")
        masked = masked or n >= 128
        if RP <= n < RT:
            a(f"s_add_u32 m0, {sLb}, {256 + (n - RP) * 1024 - 256 * (n & 1)}")
            ids[n] = a(f"buffer_load_dwordx4 {vKo}, {srd_of(n)}, {sOff} offen offset:{256*(n&1)} {pol} lds")
        else:
            ids[n] = a(f"buffer_load_dwordx4 {vr(slot(kslot(n)))}, {vKo}, {srd_of(n)}, {sOff} offen offset:{256*(n&1)} {pol}")
        if n & 1: advance(n, masked)
    for n in range(D0): issue(n)
    issued = D0
    stamp("k0")
    tag_load()
    a(f"s_add_u32 s36, s{8-2*kv}, s40"); a(f"s_addc_u32 s37, s{9-2*kv}, 0"); srd(36, None, None, NRA)
    a(f"s_lshl2_add_u32 {sRecA}, {sH}, {sB}"); a(f"s_lshl3_add_u32 {sRecA}, {sRecA}, s41")
    a(f"s_lshl_b32 {sRecB}, {sX}, 6"); a(f"s_add_u32 {sRecB}, {sRecB}, {sR}"); a(f"s_add_u32 {sRecB}, {sRecB}, 512")
    a(f"s_andn2_b32 s44, {sR}, 7"); a(f"s_add_u32 s44, s44, {sX}"); a(f"s_xor_b32 s44, s44, {bx}"); a("s_lshl_b32 s44, s44, 21")
    a(f"s_and_b32 s45, {sR}, 7"); a(f"s_lshl_b32 s45, s45, {13 + ilb}"); a("s_add_u32 s44, s44, s45"); a("s_add_u32 s44, s44, 0x180000")
    a("s_add_u32 s40, s16, s44"); a("s_addc_u32 s41, s17, 0"); srd(40, None, None, 0x80000 - HB)
    a("s_add_u32 s44, s18, s44"); a("s_addc_u32 s45, s19, 0"); srd(44, None, None, 0x80000 - HB)
    srd(60, "s28", "s29", WS_END); srd(48, "s12", "s13", 0 if nowo & 1 else 0x380000); srd(52, "s22", "s23", 0 if nowo & 2 else 0x380000)
    unit(0)
    a(f"s_mul_i32 {sT0}, {sW}, {4*8*896}"); a(f"s_add_u32 {sU}, {sU}, {sT0}")
    a(f"s_lshl_b32 {sT0}, {sW}, 11"); a(f"s_add_u32 {sY}, {sY}, {sT0}")
    sUB = "s69"
    a(f"s_xor_b32 {sT0}, {sX}, {bx}"); a(f"s_sub_i32 {sT0}, {sT0}, {sX}"); a(f"s_mul_i32 {sT0}, {sT0}, {512*896}"); a(f"s_add_u32 {sUB}, {sU}, {sT0}")
    a(f"s_cmp_ge_u32 {sR}, 28"); a(f"s_cselect_b32 {sU}, {OOB}, {sU}"); a(f"s_cselect_b32 {sUB}, {OOB}, {sUB}"); a(f"s_cselect_b32 {sG}, {OOB}, {sG}")
    if True:
        a(f"s_mul_i32 {sRot}, {sR}, {rot}"); a(f"s_mul_i32 {sT0}, {sX}, {rotx}"); a(f"s_add_u32 {sRot}, {sRot}, {sT0}")
        a(f"s_and_b32 {sRot}, {sRot}, {rotm}")
        a(f"s_lshr_b32 {sT0}, {sRot}, {ilb}"); a(f"s_mul_i32 {sT0}, {sT0}, {7 << ilb}"); a(f"s_add_u32 {sRot}, {sRot}, {sT0}"); a(f"s_lshl_b32 {sRot}, {sRot}, 13")
    a(f"s_mov_b32 {sC}, {CSCALE}")
    a("s_mov_b32 s90, 0xcccccccc"); a("s_mov_b32 s91, 0xcccccccc")
    a("s_mov_b32 s92, 0xaaaaaaaa"); a("s_mov_b32 s93, 0xaaaaaaaa")
    a("s_and_b64 s[98:99], s[90:91], s[92:93]"); a(f"s_mov_b32 {sHole}, {HA}"); a(f"s_mov_b32 {sMask}, {MA_}")
    a(f"v_bfe_u32 {t0}, {vL}, 1, 2")
    a(f"v_mov_b32 {t2}, 0xffff"); a(f"v_mov_b32 {t1}, 0xffff0000")
    a(f"v_cndmask_b32 {t2}, {t2}, {t1}, {sMk0}")
    for j in range(4):
        a(f"v_cmp_eq_u32 vcc, {j}, {t0}")
        a(f"v_cndmask_b32 {vM[j]}, 0, {t2}, vcc")
    a(f"v_lshlrev_b32 {t3}, 4, {vn}"); a(f"v_mov_b32 {t0}, {L_LOC}")
    a(f"s_mul_i32 {sLb}, {sW}, {NL * 1024}"); a(f"s_add_u32 {sLb}, {sLb}, {L_KB - 256}")
    landed = -1
    def throttled_issue():
        nonlocal issued, landed
        d = D0 if issued < ND0 else D
        if issued - d > landed:
            landed = issued - d; a.wait_vm(ids[landed])
        issue(issued); issued += 1
    while issued < RT - pbar:
        throttled_issue()
        if fine and issued in (D0 + 1, 16, 26, 36, 46, 56, 66): stamp(f"ki{issued}")
        if issued == 24:
            a("s_waitcnt lgkmcnt(0)"); tag_make(); ytag_make()
    stamp("ring_full")
    a("s_barrier")
    a(f"ds_read_b128 {vr(QA)}, {t3} offset:{L_Q+1024}"); a(f"ds_read_b128 {vr(QA+4)}, {t3} offset:{L_Q+1024+256}")
    for k in range(4): a(f"ds_read_b128 {vr(QB+4*k)}, {t3} offset:{L_Q+256*k}")
    a(f"ds_read2_b32 v[54:55], {t0} offset0:0 offset1:1")
    while issued < RT: throttled_issue()
    a(f"v_lshl_add_u32 {t3}, {vL}, 4, {sLb}")
    a("s_waitcnt lgkmcnt(0)")
    a(f"v_readfirstlane_b32 {sLocal}, {t0}"); a(f"v_readfirstlane_b32 {sCh}, {t1}")
    stamp("q_ready")

    def tree(j, acc, dst_fn):
        u = U[(j >> 1) & 1]
        a(f"v_add_f32_dpp {u}, {acc}, {acc} row_ror:8 row_mask:0xf bank_mask:{'0xc' if j & 1 else '0x3'}")
        if not j & 1: return
        v = V[(j >> 2) & 1]
        a(f"v_add_f32_dpp {v}, {u}, {u} row_half_mirror row_mask:0xf bank_mask:{'0xa' if j & 2 else '0x5'}")
        if not j & 2: return
        a(f"v_add_f32_dpp {v}, {v}, {v} {QP2}")
        if not j & 4: return
        x = X[(j >> 3) & 1]
        a(f"v_cndmask_b32 {x}, {V[0]}, {V[1]}, {sMk1}")
        a(f"v_add_f32_dpp {x}, {x}, {x} {QP1}")
        if not j & 8: return
        dst_fn()
    def dots(acc, kr, qr, first):
        if first: a(f"v_mov_b32 {acc}, 0")
        for e in range(4): a(f"v_dot2c_f32_bf16 {acc}, v{kr+e}, v{qr+e}")
    ROT = "quad_perm:[1,2,3,0] " + FULL
    def procK(n, looped=False):
        k = kslot(n); i = (n >> 1) & 3; hf = n & 1
        acc = T[i & 1]
        dots(acc, slot(k), QA + 4 * hf, not hf)
        if not hf: return
        a(f"v_add_f32_dpp {U[0]}, {acc}, {acc} row_ror:8 row_mask:0xf bank_mask:{'0xc' if i & 1 else '0x3'}")
        if not i & 1: return
        a(f"v_add_f32_dpp {V[0]}, {U[0]}, {U[0]} row_half_mirror row_mask:0xf bank_mask:{'0xa' if i & 2 else '0x5'}")
        if not i & 2: return
        r = SP + (0 if looped else ((n >> 3) - P0 // 8) & 3)
        a(f"v_mov_b32_dpp {X[0]}, v{r} {ROT}")
        a(f"v_add_f32_dpp {V[0]}, {V[0]}, {V[0]} {QP2}")
        if looped:
            for e in range(3): a(f"v_mov_b32 v{SP+e}, v{SP+e+1}")
        a(f"v_add_f32_dpp {V[0]}, {V[0]}, {V[0]} {QP1}")
        a(f"v_cndmask_b32 v{SP+3 if looped else r}, {X[0]}, {V[0]}, s[98:99]")
    def procKB(n):
        k = kslot(n); j = (n - 128) >> 1; hf = n & 1
        for hd in range(2):
            dots(T[hd], slot(k), QB + 8 * hd + 4 * hf, not hf)
        if not hf: return
        for hd in range(2):
            tree(2 * j + hd, T[hd], lambda: a(f"v_cndmask_b32 {SB}, {X[0]}, {X[1]}, {sMk0}"))
    def procVB(n):
        k = kslot(n); j = (n - 144) >> 1; hf = n & 1
        if not hf:
            a(f"v_mov_b32_dpp {t0}, {SB} row_newbcast:{brev(j,3)} row_mask:0xf bank_mask:0x3")
            a(f"v_mov_b32_dpp {t0}, {SB} row_newbcast:{8+brev(j,3)} row_mask:0xf bank_mask:0xc")
            for e in range(4): a(f"v_and_b32 v{AOP+e}, {t0}, {vM[e]}")
        a(f"v_mfma_f32_16x16x32_bf16 {vr(ACCB+4*hf)}, {vr(AOP)}, {vr(slot(k))}, {vr(ACCB+4*hf) if j else 0}")
    def procV(n, last=False):
        k = kslot(n); i = (n >> 1) & 3; hf = n & 1
        if not hf:
            for e in range(4):
                a(f"v_and_b32_dpp v{AOP+e}, v{SP}, {vM[e]} row_newbcast:{8*(i&1) + 4*(i>>1)} {FULL}")
        a(f"v_mfma_f32_16x16x32_bf16 {vr(ACC+4*hf)}, {vr(AOP)}, {vr(slot(k))}, {vr(ACC+4*hf)}")
        if hf and i == 3 and not last:
            a(f"v_mov_b32_dpp {X[0]}, v{SP} {ROT}")
            for e in range(3): a(f"v_mov_b32 v{SP+e}, v{SP+e+1}")
            a(f"v_mov_b32 v{SP+3}, {X[0]}")
    AH = 4
    def backlog_proc(p):
        n = p + AH
        if RP <= n < RT:
            assert n <= landed and p > 31
            a(f"ds_read_b128 {vr(slot(kslot(n)))}, {t3} offset:{256 + (n - RP) * 1024}")
        if RP <= p < RT: a(f"s_waitcnt lgkmcnt({min(AH, RT - 1 - p)})")
        assert p <= landed
        procK(p)
    assert backlog(P0, throttled_issue, backlog_proc) == P0
    total = (NTOT - LG - P0) // 2 * 4
    a(f"s_lshl2_add_u32 {sT0}, {sW}, {L_PRG}")
    a(f"v_mov_b32 {vPrA}, {sT0}"); a(f"v_mov_b32 {vPrg}, 0")
    a(f"s_mov_b32 {sTh}, {int(th0 + 0.5)}")
    stamp("caught_up")
    nlad = [0]
    def pair(n, proc, extra=None, masked=False):
        j = n >> 1
        if j & 1:
            a(f"s_waitcnt vmcnt({thmax}) lgkmcnt(0)")
            a(f"v_readfirstlane_b32 {sTh}, {vTH}")
        else:
            a(f"s_waitcnt vmcnt({thmax})")
        proc(n); proc(n + 1)
        nlad[0] += 1
        for th in range(thmax, thmin, -1):
            a(f"s_cmp_ge_u32 {sTh}, {th}"); a(f"s_cbranch_scc1 L_lad{nlad[0]}")
            a(f"s_waitcnt vmcnt({th - 1})")
        a(f"L_lad{nlad[0]}:")
        issue(n + LG, masked); issue(n + LG + 1, masked)
        a(f"v_add_u32 {vPrg}, 1, {vPrg}")
        a(f"ds_write_b32 {vPrA}, {vPrg}")
        if not j & 1: a(f"ds_read_b32 {vTH}, {vPrA} offset:{L_TH - L_PRG}")
        if extra: extra()
    a(f"s_mov_b32 {sCnt}, {16 - P0 // 8}")
    a("L_k:")
    a(f"s_sub_u32 {sCnt}, {sCnt}, 1"); a(f"s_cmp_eq_u32 {sCnt}, 0")
    a("s_cselect_b32 s32, s40, s32"); a("s_cselect_b32 s33, s41, s33"); a("s_cselect_b32 s34, s42, s34")
    a(f"s_cselect_b32 {sOff}, {sRot}, {sOff}"); a(f"s_cselect_b32 {sMask}, {0x7ffff & ~HB}, {sMask}"); a(f"s_cselect_b32 {sHole}, {HB}, {sHole}")
    for n in range(P0, P0 + 8, 2): pair(n, lambda m: procK(m, True), masked=True)
    a(f"s_cmp_lg_u32 {sCnt}, 0"); a("s_cbranch_scc1 L_k")
    stamp("K_done")
    def softmaxA():
        for e in range(4): rnd(f"v{SP+e}")
        a(f"v_max3_f32 {vm}, v{SP}, v{SP+1}, v{SP+2}"); a(f"v_max_f32 {vm}, {vm}, v{SP+3}")
        red("v_max_f32", vm, (8, 4, 2, 1, 16, 32))
        a(f"v_mul_f32 {vm}, {sC}, {vm}")
        for e in range(4): a(f"v_fma_f32 v{SP+e}, v{SP+e}, {sC}, -{vm}")
        for e in range(4): a(f"v_exp_f32 v{SP+e}, v{SP+e}")
        a(f"v_add_f32 {vl}, v{SP}, v{SP+1}"); a(f"v_add_f32 {t0}, v{SP+2}, v{SP+3}"); a(f"v_add_f32 {vl}, {vl}, {t0}")
        for e in range(4): a(f"v_cvt_pk_bf16_f32 v{SP+e}, v{SP+e}, v{SP+e}")
    def softmaxA2():
        red("v_add_f32", vl, (8, 4, 2, 1, 16, 32))
        for e in range(8): a(f"v_mov_b32 v{ACC+e}, 0")
        a(f"v_min_u32 {vm}, -2, {vm}"); a(f"v_min_u32 {vl}, -2, {vl}")
        a(f"s_lshl2_add_u32 {sT0}, {sRecA}, {sW}"); a(f"s_lshl3_add_u32 {sT0}, {sT0}, {WS_ML}")
        a("s_mov_b64 exec, 1")
        by_placement("mla", lambda b: a(f"buffer_store_dwordx2 v[58:59], off, {WS}, {sT0}{b}"))
        a("s_mov_b64 exec, -1")
    def softmaxB():
        rnd(SB)
        a(f"v_mul_f32 {SB}, {sC}, {SB}")
        a(f"v_max_f32_dpp {vmB}, {SB}, {SB} row_half_mirror {FULL}")
        red("v_max_f32", vmB, ("q1", "q2", 16, 32))
        a(f"v_sub_f32 {SB}, {SB}, {vmB}"); a(f"v_exp_f32 {SB}, {SB}")
        a(f"v_add_f32_dpp {vlB}, {SB}, {SB} row_half_mirror {FULL}")
        a(f"v_cvt_pk_bf16_f32 {SB}, {SB}, {SB}")
    def softmaxB2():
        red("v_add_f32", vlB, ("q1", "q2", 16, 32))
        a(f"v_min_u32 {vmB}, -2, {vmB}"); a(f"v_min_u32 {vlB}, -2, {vlB}")
        a(f"s_lshl2_add_u32 {sT0}, {sRecB}, {sW}"); a(f"s_lshl3_add_u32 {sT0}, {sT0}, {WS_ML}")
        a(f"v_lshlrev_b32 {t2}, 7, {vn}")
        a("s_mov_b64 exec, 0x101")
        by_placement("mlb", lambda b: a(f"buffer_store_dwordx2 v[62:63], {t2}, {WS}, {sT0} offen{b}"))
        a("s_mov_b64 exec, -1")
    def addresses():
        if swz:
            a(f"v_bfe_u32 {t0}, {vL}, 3, 2"); a(f"v_xor_b32 {t0}, {sW}, {t0}"); a(f"v_lshl_add_u32 {vTr}, {t0}, 5, {vTr}")
            a(f"v_and_b32 {t0}, 16, {vL}"); a(f"v_lshlrev_b32 {t0}, 1, {t0}"); a(f"v_xor_b32 {vWo}, {t0}, {vWo}"); a(f"v_xor_b32 {vWo2}, 64, {vWo}")
        else:
            a(f"s_lshl_b32 {sT0}, {sW}, 5"); a(f"v_add_u32 {vTr}, {sT0}, {vTr}"); a(f"v_mov_b32 {vWo2}, {vWo}")
        a(f"s_lshl_b32 {sLb}, {sW}, 12")
        y_base(vYo, 0); y_base(vYb, 1)
        a(f"v_mov_b32 {vYm}, 0xfffff000")
        a(f"v_mov_b32 {t0}, {YT[0]}"); a(f"v_mov_b32 {t1}, {YT[1]}"); a(f"v_cndmask_b32 {t0}, {t0}, {t1}, {sMk0}")
        a(f"v_mov_b32 {t2}, {YT[2]}"); a(f"v_mov_b32 {t1}, {YT[3]}"); a(f"v_cndmask_b32 {t2}, {t2}, {t1}, {sMk0}")
        a(f"v_cndmask_b32 {vYt}, {t0}, {t2}, {sMk1}")
        a(f"v_and_b32 {t0}, 1, {vg}"); a(f"v_lshlrev_b32 {t0}, 4, {t0}"); a(f"v_lshl_add_u32 {t0}, {vn}, 5, {t0}")
        a(f"s_lshl_b32 {sT0}, {sW}, 10"); a(f"s_add_u32 {sT0}, {sT0}, {L_PART}")
        a(f"v_add_u32 {vPa}, {sT0}, {t0}")
    extras = {128: softmaxA, 130: softmaxA2, 132: unit_v, 134: addresses, 142: softmaxB, 144: softmaxB2}
    for n in range(128, 160, 2): pair(n, procKB if n < 144 else procVB, extras.get(n))
    stamp("B_done")
    a(f"s_mov_b32 {sCnt}, 0")
    a("L_v:")
    a(f"s_cmp_eq_u32 {sCnt}, {ml0}"); a("s_cbranch_scc1 L_ml_issue")
    a(f"s_cmp_eq_u32 {sCnt}, {ml1}"); a("s_cbranch_scc1 L_ml_use")
    if stamps:
        a(f"s_cmp_eq_u32 {sCnt}, 11"); a("s_cbranch_scc1 L_st11")
    a("L_v_body:")
    for n in range(160, 168, 2): pair(n, procV)
    a(f"s_add_u32 {sCnt}, {sCnt}, 1"); a(f"s_cmp_lt_u32 {sCnt}, 15"); a("s_cbranch_scc1 L_v")
    a("s_branch L_v_x")
    def ml_loads():
        a(f"buffer_load_dwordx2 {vr(MLG,2)}, {U[0]}, {WS}, {sT0} offen sc1")
        a(f"buffer_load_dwordx2 {vr(MLG+2,2)}, {U[1]}, {WS}, {sT1} offen sc1")
    a("L_ml_issue:")
    stamp("v4")
    a(f"s_andn2_b32 {sT0}, {sRecA}, 7"); a(f"s_lshl_b32 {sT0}, {sT0}, 5"); a(f"s_add_u32 {sT0}, {sT0}, {WS_ML}")
    a(f"s_andn2_b32 {sT1}, {sRecB}, 7"); a(f"s_lshl_b32 {sT1}, {sT1}, 5"); a(f"s_add_u32 {sT1}, {sT1}, {WS_ML}")
    a(f"v_lshlrev_b32 {U[0]}, 3, {vn}")
    a(f"v_and_b32 {t0}, 31, {vL}"); a(f"v_lshlrev_b32 {t0}, 3, {t0}"); a(f"v_lshrrev_b32 {t1}, 5, {vL}"); a(f"v_lshl_add_u32 {U[1]}, {t1}, 10, {t0}")
    ml_loads()
    a("s_branch L_v_body")
    a("L_ml_use:")
    stamp("v7")
    poll("L_ml", ml_loads, lambda: sentinel(range(MLG, MLG + 4)), sleep=2, first_issued=True)
    MA, MB = V
    a(f"v_max_f32_dpp {MA}, v{MLG}, v{MLG} row_ror:8 {FULL}"); a(f"v_max_f32_dpp {MB}, v{MLG+2}, v{MLG+2} row_ror:8 {FULL}")
    for s in (4, 2, 1):
        a(f"v_max_f32_dpp {MA}, {MA}, {MA} row_ror:{s} {FULL}"); a(f"v_max_f32_dpp {MB}, {MB}, {MB} row_ror:{s} {FULL}")
    red("v_max_f32", MB, (16,))
    a(f"v_mov_b32_dpp {t3}, {vmB} row_newbcast:0 row_mask:0x3 bank_mask:0xf")
    a(f"v_mov_b32_dpp {t3}, {vmB} row_newbcast:8 row_mask:0xc bank_mask:0xf")
    a(f"v_sub_f32 v{MLG}, v{MLG}, {MA}"); a(f"v_sub_f32 v{MLG+2}, v{MLG+2}, {MB}")
    a(f"v_sub_f32 {vfA}, {vm}, {MA}"); a(f"v_sub_f32 {t3}, {t3}, {MB}")
    a(f"v_exp_f32 v{MLG}, v{MLG}"); a(f"v_exp_f32 v{MLG+2}, v{MLG+2}"); a(f"v_exp_f32 {vfA}, {vfA}"); a(f"v_exp_f32 {t3}, {t3}")
    a(f"v_mul_f32 {MA}, v{MLG}, v{MLG+1}"); a(f"v_mul_f32 {MB}, v{MLG+2}, v{MLG+3}")
    for s in (8, 4, 2, 1):
        a(f"v_add_f32_dpp {MA}, {MA}, {MA} row_ror:{s} {FULL}"); a(f"v_add_f32_dpp {MB}, {MB}, {MB} row_ror:{s} {FULL}")
    red("v_add_f32", MB, (16,))
    a(f"v_rcp_f32 {MA}, {MA}"); a(f"v_rcp_f32 {MB}, {MB}")
    a(f"v_mul_f32 {vfA}, {vfA}, {MA}"); a(f"v_mul_f32 {t3}, {t3}, {MB}")
    for e in range(8): a(f"v_mul_f32 v{ACCB+e}, v{ACCB+e}, {t3}")
    a(f"v_lshrrev_b32 {t1}, 1, {vg}"); a(f"v_lshl_add_u32 {t0}, {t1}, 12, {vPa}")
    a(f"ds_write_b128 {t0}, {vr(ACCB)}"); a(f"ds_write_b128 {t0}, {vr(ACCB+4)} offset:512")
    a(f"v_lshl_add_u32 {vPa}, {t1}, 9, {vPa}")
    a(f"v_mov_b32 {t0}, {L_CNT}"); a(f"v_mov_b32 {t2}, 1")
    a("s_waitcnt lgkmcnt(0)")
    a("s_mov_b64 exec, 1")
    a(f"ds_add_u32 {t0}, {t2}")
    a("s_mov_b64 exec, -1")
    a("s_branch L_v_body")
    if stamps:
        a("L_st11:"); stamp("v11"); a("s_branch L_v_body")
    a("L_v_x:")
    stamp("v_x")
    for k in range(LG): ids[NTOT - LG + k] = a.vm_seq - (LG - 1 - k)
    nwo = 0; id_wo = None
    def gA():
        for k in range(4): a(f"buffer_load_dwordx4 {vr(G+4*k)}, {vGo}, {WS}, {sG} offen offset:{1024*k} sc1")
    def wo_issue():
        nonlocal nwo, id_wo
        a(f"s_add_u32 m0, {sLb}, {(L_WOA, L_WOB)[nwo >> 2] + 1024*(nwo & 3)}")
        a(f"s_add_u32 {sT0}, {(sU, sUB)[nwo >> 2]}, {8*896*(nwo & 3)}")
        id_wo = a(f"buffer_load_dwordx4 {(vWo, vWo2)[nwo & 1]}, {(WOA, WOB)[nwo >> 2]}, {sT0} offen {pol} lds")
        nwo += 1
    a("s_mov_b32 vcc_lo, 0"); a("s_mov_b32 vcc_hi, -1")
    for n in range(NTOT - LG, NTOT):
        a.wait_vm(ids[n])
        if n - (NTOT - LG) >= wod: wo_issue()
        procV(n, last=True)
    stamp("stream_done")
    for e in range(4): a(f"v_cndmask_b32 v{ACC+e}, v{ACC+e}, v{ACC+4+e}, vcc")
    for e in range(4): a(f"v_mul_f32 v{ACC+e}, v{ACC+e}, {vfA}")
    a(f"ds_write_b128 {vPa}, {vr(ACC)} offset:8192")
    while wpos == 0 and nwo < 8: wo_issue()
    a("s_waitcnt lgkmcnt(0)")
    a("s_barrier")
    while wpos == 1 and nwo < 8: wo_issue()
    for k in range(4): a(f"ds_read_b128 {vr(OBS+4*k)}, {vGo} offset:{L_PART + 1024*k}")
    if g2:
        a("s_barrier")
        while wpos == 2 and nwo < 8: wo_issue()
        gA()
        while nwo < 8: wo_issue()
    a.wait_vm(id_wo)
    a("s_barrier")
    if fine: stamp("wo_in")
    a(f"s_cmp_ge_u32 {sR}, 28"); a("s_cbranch_scc1 L_s_fin")
    a("s_waitcnt lgkmcnt(0)")
    for dst, src in ((WTB, L_WOB), (WT, L_WOA)):
        for k in range(4):
            if src == L_WOA and k == 3: a("s_waitcnt lgkmcnt(6)")
            a(f"ds_read_b64_tr_b16 {vr(dst+4*k,2)}, {vTr} offset:{src+4096*k}")
            a(f"ds_read_b64_tr_b16 {vr(dst+4*k+2,2)}, {vTr} offset:{src+4096*k+512}")
    for k in range(4):
        a(f"v_mfma_f32_16x16x32_bf16 {vr(ACC+4)}, {vr(OBS+4*k)}, {vr(WTB+4*k)}, {vr(ACC+4) if k else 0}")
    if g2: a("s_waitcnt vmcnt(0)")
    poll("L_s2", gA, lambda: sentinel(range(G, G + 16)), masked=True, first_issued=g2)
    if g2: a("s_waitcnt lgkmcnt(0)")
    stamp("gathered")
    for k in range(4):
        a(f"v_mfma_f32_16x16x32_bf16 {vr(ACC)}, {vr(G+4*k)}, {vr(WT+4*k)}, {vr(ACC) if k else 0}")
    y_seal(ACC + 4)
    a(f"buffer_store_dword v{ACC+4}, {vYb}, {WS}, {sY} offen sc1")
    a(f"v_add_f32 v{ACC}, v{ACC}, v{ACC+1}"); a(f"v_add_f32 v{ACC+2}, v{ACC+2}, v{ACC+3}"); a(f"v_add_f32 v{ACC}, v{ACC}, v{ACC+2}")
    y_seal(ACC)
    a(f"buffer_store_dword v{ACC}, {vYo}, {WS}, {sY} offen sc1")
    if stamps:
        a("s_branch L_s_fin2")
        a("L_s_fin:")
        names["s"].pop(); stamp("gathered")
        a("L_s_fin2:")
    else:
        a("L_s_fin:")
    stamp("y")
    a("s_waitcnt vmcnt(0)")
    a("s_barrier")
    finish()

    cur[0] = "g"
    a("L_gov:")
    vA4 = "v2"; vBo = "v3"; vPw = "v4"; vP = "v5"; vPp = "v6"; vB = "v7"; vTh = "v8"; vL16 = "v16"
    sTg = sU; sPo = sRecA; sGa = sRecB; sIn = sY
    a(f"v_lshlrev_b32 {vL16}, 4, {vL}")
    a(f"s_lshl_b32 {sT1}, {sX}, 5"); a(f"s_add_u32 {sT1}, {sT1}, {sR}"); a(f"s_lshl_b32 {sT1}, {sT1}, 7"); a(f"s_add_u32 {sT1}, {sT1}, {WS_FL}")
    srd(60, None, None, WS_END)
    a("s_waitcnt lgkmcnt(0)")
    tag_load()
    a("s_mov_b32 s60, s28"); a("s_mov_b32 s61, s29")
    a("s_mov_b64 exec, 0xff")
    a("s_waitcnt lgkmcnt(0)")
    tag_make()
    a("v_mov_b32 v8, s56"); a("v_mov_b32 v9, s59"); a("v_mov_b32 v10, s56"); a("v_mov_b32 v11, s59")
    a(f"buffer_store_dwordx4 v[8:11], {vL16}, {WS}, {sT1} offen sc1")
    a("s_mov_b64 exec, -1")
    ytag_make()
    a(f"s_mul_i32 {sIn}, {sX}, {YG}"); a(f"s_add_u32 {sIn}, {sIn}, {WS_Y}")
    a(f"s_cmp_lg_u32 {sR}, 0"); a("s_cbranch_scc1 L_norace")
    a(f"s_add_u32 s4, s28, {sIn}"); a("s_addc_u32 s5, s29, 0")
    a("s_load_dword s6, s[4:5], 0 glc"); a("s_load_dword s7, s[4:5], 8192 glc")
    a(f"s_mov_b32 {sT1}, 0")
    a("s_waitcnt lgkmcnt(0)")
    for i in range(nrace):
        a("s_not_b32 s10, s6"); a("s_not_b32 s11, s7")
        for h in ((0, 1), (1, 0))[i & 1]: a(f"s_load_dword s{10+h}, s[4:5], {8192*h} glc")
        a("s_waitcnt lgkmcnt(1)")
        a("s_sleep 1")
        a("s_mov_b64 s[14:15], s[10:11]")
        a("s_waitcnt lgkmcnt(0)")
        a("s_cmp_eq_u32 s15, s7"); a(f"s_addc_u32 {sT1}, {sT1}, 0"); a("s_cmp_eq_u32 s14, s6"); a(f"s_subb_u32 {sT1}, {sT1}, 0")
    a(f"s_sub_i32 {sT2}, 0, {sT1}"); a("s_bitcmp1_b32 s59, 2"); a(f"s_cselect_b32 {sT1}, {sT2}, {sT1}")
    a(f"s_cmp_gt_i32 {sT1}, 0"); a(f"s_cselect_b32 {sT2}, 2, 0"); a(f"s_cmp_lt_i32 {sT1}, 0"); a(f"s_cselect_b32 {sT2}, 1, {sT2}")
    if near is not None: a(f"s_mov_b32 {sT2}, {1 + near}")
    a(f"s_and_b32 {sT1}, s59, 4"); a(f"s_or_b32 {sT1}, {sT1}, {sT2}")
    a(f"s_lshl4_add_u32 {sT1}, s58, {sT1}")
    a(f"v_mov_b32 v12, s56"); a(f"v_mov_b32 v13, {sT1}"); a(f"v_mov_b32 v14, s56"); a(f"v_mov_b32 v15, {sT1}")
    a(f"s_lshl_b32 {sT1}, {sX}, 7"); a(f"s_add_u32 {sT1}, {sT1}, {WS_CH}")
    a("s_mov_b64 exec, 0xff")
    a(f"buffer_store_dwordx4 v[12:15], {vL16}, {WS}, {sT1} offen sc1")
    a("s_mov_b64 exec, -1")
    a("L_norace:")
    a(f"s_lshr_b32 {sT0}, {sR}, 2"); a(f"s_lshl_b32 {sT0}, {sT0}, 14"); a(f"s_add_u32 {sIn}, {sIn}, {sT0}")
    a(f"s_and_b32 {sT0}, {sR}, 3"); a(f"s_lshl_b32 {sT0}, {sT0}, 11"); a(f"s_add_u32 {sIn}, {sIn}, {sT0}")
    stamp("hello")
    srd(44, "s24", "s25", 7168)
    if tlb:
        a(f"s_lshl4_add_u32 s40, {sB}, {sH}"); a("s_lshl_b32 s40, s40, 21")
        a(f"s_andn2_b32 s41, {sR}, 7"); a(f"s_add_u32 s41, s41, {sX}"); a(f"s_xor_b32 s41, s41, {bx}"); a("s_lshl_b32 s41, s41, 21"); a("s_add_u32 s41, s41, 0x180000")
        a(f"s_mul_i32 s42, {sX}, {512*896}")
        for i, (pp, o) in enumerate(((12, 42), (22, 42), (16, 41), (18, 41), (8, 40))):
            a(f"s_add_u32 s{pp}, s{pp}, s{o}"); a(f"s_addc_u32 s{pp+1}, s{pp+1}, 0")
            a(f"s_load_dword s{48+i}, s[{pp}:{pp+1}], 0")
    a(f"v_and_b32 {vA4}, 3, {vL}"); a(f"v_lshlrev_b32 {vA4}, 2, {vA4}")
    a(f"v_mov_b32 {vPp}, 0"); a(f"v_mov_b32 {vTh}, {int(th0 + 0.5)}"); a(f"v_mov_b32 {vB}, 0")
    a(f"ds_write_b32 {vA4}, {vPp} offset:{L_PRG}"); a(f"ds_write_b32 {vA4}, {vTh} offset:{L_TH}"); a(f"ds_write_b32 {vB}, {vB} offset:{L_CNT}")
    gc_ = gI // 2 if gc is None else gc
    a(f"s_mul_i32 {sG}, {sX}, 4352"); a(f"s_add_u32 {sG}, {sG}, {WS_GC}")
    a(f"v_lshlrev_b32 {vBo}, 2, {vL}")
    a(f"s_lshl2_add_u32 {sOff}, {sR}, {sG}")
    a(f"s_add_u32 {sGa}, {sG}, {8*4352}")
    a(f"s_mul_i32 {sTg}, {sX}, {gI // 8}"); a(f"s_add_u32 {sTg}, {sTg}, {gI // 8}")
    a(f"s_cmp_eq_u32 {sR}, {28 if gx else 99}"); a(f"s_cselect_b32 {sTg}, {sTg}, -1")
    sOut = sC
    a(f"s_and_b32 {sT0}, {sX}, 3"); a(f"s_mul_i32 {sOut}, {sT0}, 1792"); a(f"s_lshr_b32 {sT0}, {sX}, 2"); a(f"s_mul_i32 {sT0}, {sT0}, 896")
    a(f"s_add_u32 {sOut}, {sOut}, {sT0}"); a(f"s_lshl_b32 {sT0}, {sR}, 5"); a(f"s_add_u32 {sOut}, {sOut}, {sT0}")
    a(f"v_lshrrev_b32 {t1}, 1, {vg}"); a(f"v_and_b32 {t2}, 1, {vg}"); a(f"v_lshl_add_u32 {t1}, {t2}, 1, {t1}")
    a(f"v_and_b32 {t2}, 3, {vn}"); a(f"v_lshl_add_u32 {t1}, {t2}, 2, {t1}"); a(f"v_lshlrev_b32 {t3}, 1, {t1}")
    a("s_waitcnt lgkmcnt(0)")
    a("s_barrier")
    a(f"ds_read_b32 v10, {vB} offset:{L_LOC}"); a(f"ds_read_b32 v11, {vB} offset:{L_CH}")
    a("s_waitcnt lgkmcnt(0)")
    a(f"v_readfirstlane_b32 {sLocal}, v10"); a(f"v_readfirstlane_b32 {sCh}, v11")
    a(f"s_lshr_b32 {sT0}, {sCh}, {sX}"); a(f"s_and_b32 {sT0}, {sT0}, 1"); a(f"s_lshl_b32 {sT0}, {sT0}, 13"); a(f"s_add_u32 {sIn}, {sIn}, {sT0}")
    if stamps: a(f"v_writelane_b32 v255, {sCh}, 30")
    a(f"s_cmp_lg_u32 {sLocal}, 1"); a("s_cbranch_scc1 L_gend")
    poll("L_g0", lambda: a(f"ds_read_b32 {vPw}, {vA4} offset:{L_PRG}"), lambda: a(f"v_cmp_eq_u32 vcc, 0, {vPw}"), sleep=4)
    a(f"s_mov_b32 {sSpin}, {spin}")
    a("L_gloop:")
    a(f"ds_read_b32 {vPw}, {vA4} offset:{L_PRG}")
    a(f"s_sub_u32 {sSpin}, {sSpin}, 1"); a(f"s_cmp_eq_u32 {sSpin}, 0"); a("s_cbranch_scc1 L_gend")
    a("s_waitcnt lgkmcnt(0)")
    a(f"v_add_u32_dpp {vP}, {vPw}, {vPw} {QP1}"); a(f"v_add_u32_dpp {vP}, {vP}, {vP} {QP2}")
    a("s_mov_b64 exec, 1")
    a(f"buffer_store_dword {vP}, off, {WS}, {sOff}")
    a(f"v_cmp_le_u32 vcc, {total - 4 * gstop}, {vP}")
    a("s_cbranch_vccnz L_gend")
    a("s_mov_b32 exec_lo, -1"); a("s_mov_b32 exec_hi, 1")
    a(f"buffer_load_dword {vB}, {vBo}, {WS}, {sG} offen sc1")
    a("s_mov_b64 exec, -1")
    a(f"v_cvt_f32_u32 {t0}, {vP}")
    a(f"v_mul_f32 {t0}, {f2u(-gain)}, {t0}"); a(f"v_add_f32 {t0}, {f2u(th0 + 0.5 + gain * c0)}, {t0}")
    if gw:
        a(f"v_lshlrev_b32 {vPw}, 2, {vPw}"); a(f"v_sub_u32 {vPw}, {vP}, {vPw}"); a(f"v_cvt_f32_i32 {vPw}, {vPw}")
        a(f"v_mul_f32 {vPw}, {f2u(gw)}, {vPw}"); a(f"v_add_f32 {t0}, {t0}, {vPw}")
    a("s_waitcnt vmcnt(0)")
    a(f"v_add_u32_dpp {t1}, {vB}, {vB} row_ror:8 {FULL}")
    a(f"v_readlane_b32 {sT3}, {vB}, 32")
    for sft in (4, 2, 1): a(f"v_add_u32_dpp {t1}, {t1}, {t1} row_ror:{sft} {FULL}")
    a(f"v_readlane_b32 {sT0}, {t1}, 0"); a(f"v_readlane_b32 {sT1}, {t1}, 16")
    a(f"v_cvt_f32_i32 v11, {sT3}")
    a(f"s_add_u32 {sT2}, {sT0}, {sT1}")
    a(f"v_cvt_f32_u32 v10, {sT2}")
    a(f"v_mul_f32 v10, {f2u(gain / 32)}, v10"); a(f"v_mul_f32 v11, {f2u(gain * gx / 256)}, v11")
    a(f"v_add_f32 {t0}, {t0}, v10"); a(f"v_add_f32 {t0}, {t0}, v11")
    a(f"v_cvt_i32_f32 {vTh}, {t0}")
    a(f"v_med3_i32 {vTh}, {vTh}, {thmin}, {thmax}")
    a(f"ds_write_b32 {vA4}, {vTh} offset:{L_TH}")
    a(f"s_cmp_lt_u32 {sT2}, {sTg}"); a("s_cbranch_scc1 L_gloop")
    a(f"s_xor_b32 {sT0}, {sT2}, s56")
    for i in range(4): a(f"v_mov_b32 v{12+i}, {'s57' if i & 1 else sT0}")
    a("s_mov_b64 exec, 0xff")
    a(f"buffer_store_dwordx4 v[12:15], {vL16}, {WS}, {sGa} offen sc1"); a("s_mov_b64 exec, -1")
    for i in range(1, 8):
        a(f"s_add_u32 {sT0}, {sX}, {i}"); a(f"s_and_b32 {sT0}, {sT0}, 7"); a(f"s_mul_i32 {sT0}, {sT0}, 4352"); a(f"s_add_u32 {sT0}, {sT0}, {WS_GC + 8*4352}")
        a(f"s_load_dwordx2 s[{4+2*i}:{5+2*i}], s[28:29], {sT0} glc")
    a(f"s_add_u32 {sTg}, {sTg}, {gI}")
    a(f"s_sub_u32 {sT0}, {gc_}, {sT2}"); a(f"s_mul_i32 {sT0}, {sT0}, 7")
    a("s_waitcnt lgkmcnt(0)")
    for i in range(1, 8):
        a(f"s_xor_b64 s[{4+2*i}:{5+2*i}], s[{4+2*i}:{5+2*i}], s[56:57]"); a(f"s_lshr_b64 s[4:5], s[{4+2*i}:{5+2*i}], 14")
        a(f"s_cselect_b32 s{4+2*i}, 0, s{4+2*i}"); a(f"s_add_u32 {sT0}, {sT0}, s{4+2*i}")
    a(f"v_mov_b32 v10, {sT0}")
    a("s_mov_b64 exec, 1")
    a(f"buffer_store_dword v10, off, {WS}, {sG} offset:128")
    a("s_mov_b64 exec, -1")
    a("s_branch L_gloop")
    a("L_gend:")
    a("s_mov_b64 exec, -1")
    stamp("gov_end")
    a(f"s_cmp_ge_u32 {sR}, 28")
    for i in range(4 if g2 else 3): a("s_barrier")
    a("s_cbranch_scc1 L_g_fin")
    F = 64
    def gY():
        for k in range(2): a(f"buffer_load_dwordx4 {vr(F+4*k)}, {vL16}, {WS}, {sIn} offen offset:{1024*k} sc1")
    def y_chk():
        for i in range(8): a(f"v_xor_b32 v{F+i}, {YT[i & 3]}, v{F+i}")
        a(f"v_or3_b32 {t0}, v{F}, v{F+1}, v{F+2}"); a(f"v_or3_b32 {t2}, v{F+3}, v{F+4}, v{F+5}")
        a(f"v_or3_b32 {t0}, {t0}, v{F+6}, v{F+7}"); a(f"v_or_b32 {t0}, {t0}, {t2}")
        a(f"v_and_b32 {t0}, 0xfff, {t0}"); a(f"v_cmp_ne_u32 vcc, 0, {t0}")
    poll("L_f", gY, y_chk, masked=True)
    for e in range(4): a(f"v_add_f32 v{F+e}, v{F+e}, v{F+4+e}")
    a(f"v_permlane32_swap_b32 v{F}, v{F+1}"); a(f"v_permlane32_swap_b32 v{F+2}, v{F+3}")
    a(f"v_add_f32 v{F}, v{F}, v{F+1}"); a(f"v_add_f32 v{F+2}, v{F+2}, v{F+3}")
    a(f"v_permlane16_swap_b32 v{F}, v{F+2}")
    a(f"v_add_f32 v{F}, v{F}, v{F+2}")
    red("v_add_f32", f"v{F}", (4, 8))
    a(f"v_cvt_pk_bf16_f32 v{F}, v{F}, v{F}")
    a("s_mov_b32 exec_lo, 0x000f000f"); a("s_mov_b32 exec_hi, 0x000f000f")
    a(f"buffer_store_short v{F}, {t3}, {OUT}, {sOut} offen")
    a(f"s_cmp_eq_u32 {sWG}, 0"); a("s_cbranch_scc0 L_g_fin")
    a("v_mov_b32 v8, s56"); a("v_mov_b32 v9, s57"); a(f"s_mov_b32 {sT0}, {WS_EP}")
    a("s_mov_b64 exec, 1")
    a(f"buffer_store_dwordx2 v[8:9], off, {WS}, {sT0} sc1")
    a("L_g_fin:")
    finish()

    cur[0] = "h"
    a("L_helper:")
    a(f"s_cmp_eq_u32 {sW}, 5"); a("s_cbranch_scc1 L_gov")
    def code_pull(tagl, reg, st):
        a("s_getpc_b64 s[30:31]")
        a(f"{tagl}:")
        a(f"s_sub_u32 s30, s30, {tagl}-{NAME}_kernel"); a("s_subb_u32 s31, s31, 0")
        a(f"s_lshl_b32 {sT1}, {sR}, {st}")
        a(f"v_lshl_add_u32 {t0}, {vL}, {st + 5}, {sT1}")
        a(f"v_min_u32 {t0}, L_end-{NAME}_kernel, {t0}")
        a(f"s_mov_b64 exec, {0x1f if st == 7 else 0x3ff}")
        a(f"global_load_dword {reg}, {t0}, s[30:31]")
        a("s_mov_b64 exec, -1")
    if pf == 1: code_pull("L_pc", "v2", 7)
    if pf == 2: code_pull("L_pc", "v2", 6)
    XOP = 64; WOP = 96; QD = 208
    vXo = "v5"; vL8 = "v7"; vQt = "v17"
    a(f"v_lshrrev_b32 {t3}, 3, {vL}"); a(f"v_and_b32 {t2}, 7, {vL}"); a(f"v_lshlrev_b32 {t2}, 4, {t2}")
    a(f"v_lshl_add_u32 {vKo}, {t3}, 13, {t2}")
    a(f"v_and_b32 {vXo}, 3, {vL}"); a(f"v_mul_u32_u24 {vXo}, 896, {vXo}"); a(f"v_lshl_add_u32 {vXo}, {vg}, 4, {vXo}")
    a(f"s_bfe_u32 s44, {sR}, 0x10003")
    a(f"s_and_b32 s45, {sR}, 7"); a(f"s_lshl3_add_u32 s45, {sX}, s45")
    a(f"s_mul_i32 s46, {sT0}, {8*bx}"); a("s_xor_b32 s47, s45, s46")
    a(f"s_mul_i32 s46, s44, {224*8192}"); a("s_lshl_b32 s47, s47, 7"); a(f"s_add_u32 {sOff}, s46, s47")
    a(f"s_mul_i32 {sT2}, s44, 448")
    srd(32, None, None, 0 if nowo & 4 else 0x380000); srd(36, None, None, 3584)
    a(f"s_mov_b32 m0, {L_WQ}")
    a(f"s_cmp_eq_u32 {sT0}, 0")
    a("s_waitcnt lgkmcnt(0)")
    a("s_cselect_b32 s32, s10, s20"); a("s_cselect_b32 s33, s11, s21")
    a("s_cselect_b32 s36, s4, s14"); a("s_cselect_b32 s37, s5, s15")
    tag_load()
    idk = []
    for k in range(7):
        a(f"buffer_load_dwordx4 {vr(XOP+4*k)}, {vXo}, {XS}, {sT2} offen offset:{64*k}")
        if wqt and k >= wqt: a.wait_vm(idk[k - wqt])
        for j in range(4):
            r = a(f"buffer_load_dwordx4 {vKo}, {WQ}, {sOff} offen {pol} lds")
            if k < 6 or j < 3:
                a("s_add_u32 m0, m0, 1024"); a(f"s_add_u32 {sOff}, {sOff}, 65536")
        idk.append(r)
    stamp("wq_issued")
    sQs = "s64"; sMc = "s48"; sPa = "s49"; sPb = "s50"; sBz = "s51"; sRd = "s69"; sFl = "s70"
    a(f"s_lshl1_add_u32 {sQs}, {sT0}, s44"); a(f"s_lshl_b32 {sQs}, {sQs}, 16"); a("s_lshl_b32 s46, s45, 10"); a(f"s_add_u32 {sQs}, {sQs}, s46")
    a(f"s_lshl3_add_u32 {sMc}, {sT0}, {sX}"); a(f"s_and_b32 {sT3}, {sR}, 15"); a(f"s_lshl4_add_u32 {sMc}, {sMc}, {sT3}")
    a(f"s_lshl_b32 {sMc}, {sMc}, 7"); a(f"s_add_u32 {sMc}, {sMc}, {WS_ML}")
    srd(60, "s28", "s29", WS_END)
    unit(1); unit_v()
    a(f"s_lshl_b32 {sRecA}, {sH}, 14"); a(f"s_add_u32 {sRecA}, {sRecA}, {WS_PO}")
    a(f"s_lshl_b32 {sRecB}, {sX}, 15"); a(f"s_add_u32 {sRecB}, {sRecB}, {WS_PO + 16*16384}")
    a(f"s_lshl_b32 {sPa}, {sT3}, 9"); a(f"s_add_u32 {sPa}, {sPa}, {sRecA}")
    a(f"s_lshl_b32 {sPb}, {sR}, 9"); a(f"s_add_u32 {sPb}, {sPb}, {sRecB}")
    a(f"v_and_b32 {t0}, 31, {vL}"); a(f"v_lshlrev_b32 {t0}, 4, {t0}"); a(f"v_lshrrev_b32 {t1}, 5, {vL}"); a(f"v_lshl_add_u32 v18, {t1}, 14, {t0}")
    a(f"s_lshl4_add_u32 {sRecA}, {sT3}, {sRecA}")
    a(f"s_lshr_b32 {sT0}, {sR}, 3"); a(f"s_and_b32 {sT1}, {sR}, 3"); a(f"s_lshl2_add_u32 {sT0}, {sT0}, {sT1}"); a(f"s_lshl4_add_u32 {sRecB}, {sT0}, {sRecB}")
    a(f"s_bfe_u32 {sT0}, {sR}, 0x10002"); a(f"s_lshl_b32 {sT0}, {sT0}, 13"); a(f"s_add_u32 {sRecB}, {sRecB}, {sT0}")
    a(f"v_lshrrev_b32 {t0}, 1, {vL}"); a(f"v_lshlrev_b32 {t0}, 8, {t0}"); a(f"v_and_b32 {t1}, 1, {vL}"); a(f"v_lshl_add_u32 {vPa}, {t1}, 3, {t0}")
    a(f"s_mul_i32 {sRd}, {sX}, 4352"); a(f"s_add_u32 {sRd}, {sRd}, {WS_GC}")
    a(f"s_cmp_eq_u32 {sR}, 0"); a(f"s_cselect_b32 {sBz}, {sRd}, {OOB}")
    a(f"s_lshl_b32 {sFl}, {sX}, 12"); a(f"s_add_u32 {sFl}, {sFl}, {WS_FL}")
    for i in range(4): a(f"v_mov_b32 v{AOP+i}, -1")
    for i in range(4): a(f"v_mov_b32 v{ACC+i}, 0")
    a(f"v_lshlrev_b32 {vL16}, 4, {vL}"); a(f"v_lshlrev_b32 {vL8}, 3, {vL}"); a(f"v_lshlrev_b32 {t3}, 7, {vL}")
    a(f"v_and_b32 {t0}, 3, {vn}"); a(f"v_lshlrev_b32 {t0}, 8, {t0}"); a(f"v_lshrrev_b32 {t1}, 2, {vn}")
    a(f"v_lshl_add_u32 {t0}, {t1}, 6, {t0}"); a(f"v_lshl_add_u32 {vQt}, {vg}, 4, {t0}")
    def hello_ld(): a(f"buffer_load_dwordx2 v[12:13], {t3}, {WS}, {sFl} offen sc1")
    for k in range(8):
        if k < 7: a.wait_vm(idk[k])
        if k == hk:
            a("s_mov_b32 exec_hi, 0"); hello_ld(); a("s_mov_b32 exec_hi, -1")
        if k: a("s_waitcnt lgkmcnt(0)")
        if k < 7:
            for c in range(4):
                a(f"ds_read_b64_tr_b16 {vr(WOP+16*(k%3)+4*c,2)}, {vTr} offset:{L_WQ + k*4096 + 32*c}")
                a(f"ds_read_b64_tr_b16 {vr(WOP+16*(k%3)+4*c+2,2)}, {vTr} offset:{L_WQ + k*4096 + 32*c + 512}")
        if k:
            for c in range(4):
                a(f"v_mfma_f32_16x16x32_bf16 {vr(QD+4*c)}, {vr(WOP+16*((k-1)%3)+4*c)}, {vr(XOP+4*(k-1))}, {vr(QD+4*c) if k > 1 else 0}")
    tag_make()
    for c in range(1, 4):
        for e in range(4):
            a(f"v_mov_b32_dpp v{QD+e}, v{QD+4*c+e} quad_perm:[0,1,2,3] row_mask:0xf bank_mask:{1<<c}")
    a(f"ds_write_b128 {vQt}, {vr(QD)} offset:{L_PART}")
    a(f"ds_read_b128 {vr(QD)}, {vL16} offset:{L_PART}")
    stamp("q_done")
    a("s_waitcnt vmcnt(0) lgkmcnt(0)")
    a("s_mov_b32 exec_hi, 0")
    poll("L_fl", hello_ld, lambda: tag_chk([12]), sleep=16, masked=True, first_issued=True)
    a("v_cmp_ne_u32 vcc, s59, v13")
    a("s_cmp_eq_u32 vcc_lo, 0"); a(f"s_cselect_b32 {sLocal}, {2 if force_remote else 1}, 2")
    stamp("hello_seen")
    a("v_mov_b32 v8, s56"); a("v_mov_b32 v9, s59")
    a(f"s_lshl3_add_u32 {sT1}, {sR}, {sRd}")
    def first_stores(b):
        a(f"buffer_store_dwordx4 {vr(QD)}, {vL16}, {WS}, {sQs} offen{b}")
        a(f"buffer_store_dwordx4 {vr(AOP)}, v18, {WS}, {sPb} offen{b}")
        a("s_mov_b32 exec_hi, 0")
        a(f"buffer_store_dwordx4 {vr(AOP)}, v18, {WS}, {sPa} offen{b}")
        a("s_mov_b32 exec_lo, 0xffff")
        a(f"buffer_store_dwordx4 {vr(ACC)}, {vL16}, {WS}, {sBz} offen{b}")
        a("s_mov_b32 exec_lo, 0xff")
        a(f"buffer_store_dwordx4 {vr(AOP)}, {vL16}, {WS}, {sMc} offen{b}")
        a("s_mov_b32 exec_lo, 1")
        a("s_waitcnt vmcnt(0)")
        a(f"buffer_store_dwordx2 v[8:9], off, {WS}, {sT1} offset:256{b}")
    by_placement("first", first_stores)
    a("s_mov_b32 exec_lo, -1")
    stamp("ready")
    poll("L_rd", lambda: a(f"buffer_load_dwordx2 v[12:13], {vL8}, {WS}, {sRd} offen offset:256 sc1"), lambda: tag_chk([12]), sleep=hsleep, masked=True)
    stamp("go_seen")
    a(f"v_lshlrev_b32 {t0}, 4, {vn}"); a(f"v_lshl_add_u32 {t0}, {vg}, 10, {t0}")
    a(f"s_lshr_b32 {sT0}, {sR}, 3"); a(f"s_lshl_b32 {sT0}, {sT0}, 8"); a(f"s_lshl_b32 {sT1}, {sX}, 13"); a(f"s_add_u32 {sT0}, {sT0}, {sT1}")
    a(f"s_add_u32 {sT0}, {sT0}, 0x20000")
    a(f"s_lshl4_add_u32 {sT2}, {sH}, {sB}"); a(f"s_lshl_b32 {sT2}, {sT2}, 8")
    for u in (2, 0, 1):
        for kh in range(2):
            a(f"s_add_u32 {sT1}, {sT2 if u == 2 else sT0}, {kh * 0x10000 + (4096 if u == 1 else 0)}")
            a(f"buffer_load_dwordx4 {vr(64+8*u+4*kh)}, {t0}, {WS}, {sT1} offen sc1")
    a(f"s_mov_b32 {sT1}, {WS_CH}")
    a("s_mov_b64 exec, 0xff")
    poll("L_ch", lambda: a(f"buffer_load_dwordx2 v[12:13], {t3}, {WS}, {sT1} offen sc1"), lambda: tag_chk([12]), masked=True, sleep=1)
    for bit, dst in ((1, sT0), (2, sT1), (4, sCh)):
        a(f"v_and_b32 v12, {bit}, v13"); a("v_cmp_ne_u32 vcc, 0, v12"); a(f"s_and_b32 {dst}, vcc_lo, 0xff")
    a(f"s_bcnt1_i32_b32 {sT0}, {sT0}"); a(f"s_bcnt1_i32_b32 {sT1}, {sT1}")
    a(f"s_cmp_gt_u32 {sT1}, {sT0}"); a(f"s_cselect_b32 {sT0}, 0xff, 0"); a(f"s_xor_b32 {sCh}, {sCh}, {sT0}")
    a(f"v_mov_b32 {t0}, {L_LOC}"); a(f"v_mov_b32 {t1}, {sLocal}"); a(f"v_mov_b32 {t2}, {sCh}"); a(f"ds_write2_b32 {t0}, {t1}, {t2} offset0:0 offset1:1")
    for u in range(3):
        for e in range(4): a(f"v_add_f32 v{64+8*u+e}, v{64+8*u+e}, v{64+8*u+4+e}")
        for e in range(2): a(f"v_cvt_pk_bf16_f32 v{64+8*u+e}, v{64+8*u+2*e}, v{64+8*u+2*e+1}")
        a(f"ds_write_b64 {vL8}, {vr(64+8*u,2)} offset:{L_Q+512*u}")
    a("s_waitcnt lgkmcnt(0)")
    stamp("q_in_lds")
    a("s_barrier")
    a(f"v_mov_b32 {t3}, 0")
    poll("L_cnt", lambda: a(f"ds_read_b32 v8, {t3} offset:{L_CNT}"), lambda: a("v_cmp_ne_u32 vcc, 4, v8"), sleep=16)
    stamp("B_in_lds")
    CB = 184
    def combine(u):
        for w in range(4): a(f"ds_read_b128 {vr(CB+4*w)}, {vL16} offset:{L_PART + 4096*u + 1024*w}")
        a("s_waitcnt lgkmcnt(0)" if stamps else "s_waitcnt lgkmcnt(2)")
        for e in range(4): a(f"v_add_f32 v{CB+e}, v{CB+e}, v{CB+4+e}")
        a("s_waitcnt lgkmcnt(0)")
        for e in range(4): a(f"v_add_f32 v{CB+8+e}, v{CB+8+e}, v{CB+12+e}")
        for e in range(4): a(f"v_add_f32 v{CB+e}, v{CB+e}, v{CB+8+e}")
        for e in range(2): a(f"v_cvt_pk_bf16_f32 v{CB+e}, v{CB+2*e}, v{CB+2*e+1}")
        for e in range(2): a(f"v_min_u32 v{CB+16+2*u+e}, -2, v{CB+e}")
    def publish(u, so):
        by_placement(f"pub{u}", lambda b: a(f"buffer_store_dwordx2 {vr(CB+16+2*u,2)}, {vPa}, {WS}, {so} offen{b}"), have_scc=True)
    a(f"s_add_u32 {sT0}, {sRecB}, 16384")
    a(f"s_cmp_eq_u32 {sLocal}, 1")
    for u in range(2):
        combine(u); publish(u, (sRecB, sT0)[u])
    a(f"s_cmp_ge_u32 {sR}, 28"); a("s_cbranch_scc1 L_h_nos2")
    GB = 128; OB = 64
    a(f"s_add_u32 {sT0}, {sG}, 8192")
    def gB():
        for st in range(2):
            for k in range(4): a(f"buffer_load_dwordx4 {vr(GB+16*st+4*k)}, {vGo}, {WS}, {(sG, sT0)[st]} offen offset:{1024*k} sc1")
    poll("L_s2b", gB, lambda: sentinel(range(GB, GB + 32)), sleep=16, masked=True)
    for i in range(16):
        a(f"v_lshlrev_b32 v{160+i}, 16, v{GB+i}"); a(f"v_lshlrev_b32 {t0}, 16, v{GB+16+i}")
        a(f"v_and_b32 v{GB+i}, 0xffff0000, v{GB+i}"); a(f"v_and_b32 v{GB+16+i}, 0xffff0000, v{GB+16+i}")
        a(f"v_add_f32 v{160+i}, v{160+i}, {t0}"); a(f"v_add_f32 v{GB+i}, v{GB+i}, v{GB+16+i}")
    for qp in (QP1, QP2):
        for i in range(16):
            a(f"v_add_f32_dpp v{160+i}, v{160+i}, v{160+i} {qp}"); a(f"v_add_f32_dpp v{GB+i}, v{GB+i}, v{GB+i} {qp}")
    for i in range(16): a(f"v_cvt_pk_bf16_f32 v{GB+i}, v{160+i}, v{GB+i}")
    for k in range(4): a(f"ds_write_b128 {vL16}, {vr(GB+4*k)} offset:{L_PART + 1024*k}")
    a("L_h_nos2:")
    stamp("oB_ready")
    a(f"s_cmp_eq_u32 {sLocal}, 1")
    a("s_waitcnt lgkmcnt(0)")
    a("s_barrier")
    combine(2); publish(2, sRecA)
    stamp("published")
    for i in range(3 if g2 else 2): a("s_barrier")
    if stamps: finish()
    a("L_end:")
    a("s_endpgm")
    a.pad()
    global STAMP_NAMES
    STAMP_NAMES = {k: v[:-1] for k, v in names.items()}
    head = HEADER + f"; @launch grid=(256,1,1) block=({64*NW},1,1) lds={L_KB + NL * 4096}\n"
    head += f'.amdgcn_target "amdgcn-amd-amdhsa--gfx950"\n.text\n.globl {NAME}_kernel\n.p2align 8\n.type {NAME}_kernel,@function\n{NAME}_kernel:\n'
    nv = 256 if stamps else max(RING + 4 * RP, 224)
    assert not (stamps and RP > 47)
    tail = f'''.section .rodata,"a"
.p2align 6
.amdhsa_kernel {NAME}_kernel
  .amdhsa_next_free_vgpr {nv}
  .amdhsa_next_free_sgpr 102
  .amdhsa_accum_offset {nv}
  .amdhsa_group_segment_fixed_size 0
  .amdhsa_kernarg_size 104
  .amdhsa_user_sgpr_count 2
  .amdhsa_user_sgpr_kernarg_segment_ptr 1
  .amdhsa_system_sgpr_workgroup_id_x 1
  .amdhsa_float_denorm_mode_32 3
.end_amdhsa_kernel
'''
    return head + a.text() + tail

if __name__ == "__main__":
    kw = eval("dict(" + (sys.argv[2] if len(sys.argv) > 2 else "") + ")")
    open(sys.argv[1], "w").write(gen(**kw))
```

```python
import os, sys, struct
from asmlib import Asm
def f2u(x): return struct.unpack('<I', struct.pack('<f', x))[0]

NAME = "concat_heads__mha_block_cached__sliding_block_cached__decode"
_ref = "cdna_kernels/" + NAME + ".s.ref"
HEADER = open(_ref).read().split("; Override launch")[0] if os.path.exists(_ref) else ""

WS_QP = 0x0
WS_ML = 0x40000
WS_PO = 0x48000
WS_FL = 0xC8000
WS_GC = 0xD0000
WS_EP = 0xE4000
WS_CH = 0xE5000
WS_Y = 0x100000
YG = 7 * 16384
WS_END = WS_Y + 8 * YG
WS_STAMP = 0x400000
L_WQ = 0
L_WOA = 0
L_WOB = 16384
L_PART = 32768
L_Q = L_PART + 12288
L_CNT = L_Q + 1536
L_LOC = L_CNT + 4
L_CH = L_CNT + 8
L_PRG = L_CNT + 16
L_TH = L_CNT + 32
L_KB = L_CNT + 512
OOB = 0x40000000
TAGC = (0x9E3779B9, 0x7F4A7C15)
CSCALE = 0x3DB8AA3B
NW = 6

def brev(j, bits): return int(f"{j:0{bits}b}"[::-1], 2)
FULL = "row_mask:0xf bank_mask:0xf"
QP1 = "quad_perm:[1,0,3,2] " + FULL
QP2 = "quad_perm:[2,3,0,1] " + FULL

def gen(D=5, D0=5, ND0=12, RP=46, NL=12, ratio=6, stamps=False, fine=False, spin=1 << 19, pol="nt", force_remote=False,
        th0=4.15, thmin=3, gain=0.125, gw=0.08, gx=0.75, gstop=3, gI=1536, gc=1130, c0=6,
        rot=1, rotx=4, rotm=1, tlb=False, wod=2, wpos=0, g2=True, hk=6, hsleep=2, near=None, nrace=4, ml0=4, ml1=6, nowo=0, swz=True, vt=0, pf=2, bx=0, ila=2, ilb=1, rp=4, rph=0, lay=0, kv=0, wqt=0, pbar=4, xm=1, wg=None, wk=1.0, wcap=8, wfake=0, wbe=0, hb=None, rx=None, vtw=False, krot=5, krp=3, cbd=0, nox=False, wt=None, wtw=True, LG=16, thmax=12, nboost=24, xa=(), xb=(), kup=2.0, kat=2.0):
    a = Asm()
    NTOT = 288; RT = RP + NL; thmax = min(thmax, LG - 2)
    sWG = "s2"; sW = "s3"
    KA, VA, KB, VB, WQ, XS, WS, OUT, WOA, WOB = (f"s[{i}:{i+3}]" for i in (32, 36, 40, 44, 32, 36, 60, 44, 48, 52))
    sLb = "s64"
    sX, sR, sH, sB = "s72", "s73", "s74", "s75"
    sOff = "s76"; sCnt = "s77"; sT0 = "s78"; sT1 = "s79"; sT2 = "s80"; sT3 = "s81"
    sRecA = "s82"; sRecB = "s83"; sG = "s84"; sY = "s85"; sU = "s86"; sC = "s87"; sSpin = "s88"; sLocal = "s89"
    sMk1 = "s[90:91]"; sMk0 = "s[92:93]"; sTh = "s94"; sRot = "s95"
    vL = "v0"; vKo = "v1"; vM = [f"v{i}" for i in range(2, 6)]
    QA = 6; QB = 14; SP = 30; AOP = 34; ACC = 38
    T = ["v46", "v47"]; U = ["v48", "v49"]; V = ["v50", "v51"]; X = ["v52", "v53"]
    t0, t1, t2, t3 = "v54", "v55", "v56", "v57"
    vm, vl, vg, vn = "v58", "v59", "v60", "v61"
    vmB, vlB = "v62", "v63"
    RING = 64
    OBS = 96; WTB = 112; ACCB = 128; SB = "v136"; vfA = "v137"; MLG = 138; WT = 144; G = 160
    vGo = "v176"; vYo = "v177"; vTr = "v178"; vPa = "v179"; vPrg = "v180"; vPrA = "v181"; vTH = "v182"; vWo = "v183"; vYm = "v206"; vYt = "v207"; vYb = "v184"; vWo2 = "v185"
    def slot(k): return RING + 4 * k
    def vr(i, n=4): return f"v[{i}:{i+n-1}]"
    names = {"s": [], "h": [], "g": []}
    cur = ["s"]
    def stamp(name):
        if not stamps: return
        nm = names[cur[0]]
        if nm:
            a("s_waitcnt lgkmcnt(0)")
            a(f"v_writelane_b32 v255, s96, {len(nm)-1}")
        nm.append(name)
        a("s_memrealtime s[96:97]")
    def finish():
        if stamps:
            a("s_mov_b64 exec, -1")
            stamp("end"); a("s_waitcnt vmcnt(0)"); stamp("acked"); stamp("x")
            a("s_mov_b32 exec_hi, 0")
            a(f"s_mul_i32 {sT0}, {sWG}, {NW}"); a(f"s_add_u32 {sT0}, {sT0}, {sW}"); a(f"s_lshl_b32 {sT0}, {sT0}, 7"); a(f"s_add_u32 {sT0}, {sT0}, {WS_STAMP}")
            a(f"v_lshl_add_u32 {t0}, {vL}, 2, {sT0}")
            a(f"global_store_dword {t0}, v255, s[28:29]")
        a("s_endpgm")
    def srd(i, lo, hi, size):
        if lo is not None: a(f"s_mov_b32 s{i}, {lo}"); a(f"s_mov_b32 s{i+1}, {hi}")
        a(f"s_mov_b32 s{i+2}, {size}"); a(f"s_mov_b32 s{i+3}, 0x20000")
    def poll(name, loads, check, sleep=0, first_issued=False, masked=False):
        sv = a.vm_seq
        a(f"s_mov_b32 {sSpin}, {spin}")
        if first_issued: a(f"s_branch {name}_chk")
        a(f"{name}:")
        if sleep: a(f"s_sleep {sleep}")
        loads()
        a(f"s_sub_u32 {sSpin}, {sSpin}, 1"); a(f"s_cmp_eq_u32 {sSpin}, 0")
        a("s_waitcnt vmcnt(0) lgkmcnt(0)")
        a(f"s_cbranch_scc1 {name}_go")
        if first_issued: a(f"{name}_chk:")
        check()
        if masked:
            a("s_and_b64 exec, exec, vcc")
            a(f"s_cbranch_scc1 {name}")
        else:
            a(f"s_cbranch_vccnz {name}")
        a(f"{name}_go:")
        if masked: a("s_mov_b64 exec, -1")
        if first_issued: a.vm_seq = sv
    def by_placement(tag, emit, have_scc=False):
        if not have_scc: a(f"s_cmp_eq_u32 {sLocal}, 1")
        a(f"s_cbranch_scc1 L_{tag}_l")
        sv = a.vm_seq
        emit(" sc1"); a.vm_seq = sv
        a(f"s_branch L_{tag}_d")
        a(f"L_{tag}_l:")
        emit("")
        a(f"L_{tag}_d:")
    def sentinel(regs):
        regs = list(regs); accs = [t0, t2]
        a(f"v_max_u32 {t0}, v{regs[0]}, v{regs[1]}"); a(f"v_max_u32 {t2}, v{regs[2]}, v{regs[3]}")
        for i in range(4, len(regs), 2):
            c = accs[(i >> 1) & 1]
            a(f"v_max3_u32 {c}, {c}, v{regs[i]}, v{regs[i+1]}")
        a(f"v_max_u32 {t0}, {t0}, {t2}")
        a(f"v_cmp_eq_u32 vcc, -1, {t0}")
    def red(op, r, steps):
        for s in steps:
            if s in (16, 32):
                a(f"v_mov_b32 {t1}, {r}"); a(f"v_permlane{s}_swap_b32 {r}, {t1}"); a(f"{op} {r}, {r}, {t1}")
            elif s == "q1": a(f"{op}_dpp {r}, {r}, {r} {QP1}")
            elif s == "q2": a(f"{op}_dpp {r}, {r}, {r} {QP2}")
            else: a(f"{op}_dpp {r}, {r}, {r} row_ror:{s} {FULL}")
    def rnd(r):
        a(f"v_cvt_pk_bf16_f32 {r}, {r}, {r}"); a(f"v_and_b32 {r}, 0xffff0000, {r}")
    def unit(P):
        a(f"s_mul_i32 {sT0}, {sR}, 37"); a(f"s_lshr_b32 {sT0}, {sT0}, 8")
        a(f"s_mul_i32 {sT1}, {sT0}, 7"); a(f"s_sub_u32 {sT1}, {sR}, {sT1}")
        a(f"s_lshl_b32 {sT2}, {sX}, 2"); a(f"s_add_u32 {sT0}, {sT0}, {sT2}")
        a(f"s_mul_i32 {sU}, {sT0}, {128*896}"); a(f"s_lshl_b32 {sT2}, {sT1}, 7"); a(f"s_add_u32 {sU}, {sU}, {sT2}")
        a(f"s_lshr_b32 {sG}, {sT0}, 1"); a(f"s_lshl_b32 {sG}, {sG}, 14"); a(f"s_and_b32 {sT2}, {sT0}, 1"); a(f"s_lshl_b32 {sT2}, {sT2}, 12")
        a(f"s_add_u32 {sG}, {sG}, {sT2}"); a(f"s_add_u32 {sG}, {sG}, {WS_PO + P*512*512}")
        a(f"s_lshl_b32 {sY}, {sT1}, 14"); a(f"s_lshl_b32 {sT2}, {sT0}, 6"); a(f"s_add_u32 {sY}, {sY}, {sT2}")
        a(f"s_add_u32 {sY}, {sY}, {WS_Y}")
    def unit_v():
        a(f"v_lshrrev_b32 {t0}, 2, {vn}"); a(f"v_and_b32 {t2}, 3, {vn}")
        a(f"v_lshlrev_b32 {vGo}, 4, {vL}")
        a(f"v_lshl_add_u32 {vTr}, {vg}, 3, {t0}"); a(f"v_lshlrev_b32 {vTr}, 7, {vTr}"); a(f"v_lshl_add_u32 {vTr}, {t2}, 3, {vTr}")
        a(f"v_lshrrev_b32 {t0}, 3, {vL}"); a(f"v_mul_u32_u24 {t0}, 896, {t0}"); a(f"v_and_b32 {t2}, 7, {vL}"); a(f"v_lshl_add_u32 {vWo}, {t2}, 4, {t0}")
    sCh = "s71"
    def y_base(dst, P):
        a(f"v_add_u32 {t0}, {4*P}, {vg}"); a(f"v_mul_u32_u24 {dst}, {YG}, {t0}")
        a(f"v_bfe_u32 {t2}, {sCh}, {t0}, 1"); a(f"v_lshl_add_u32 {dst}, {t2}, 13, {dst}"); a(f"v_lshl_add_u32 {dst}, {vn}, 2, {dst}")
    def tag_load(): a(f"s_load_dwordx2 s[56:57], s[28:29], {WS_EP}")
    def tag_make():
        a(f"s_add_u32 s56, s56, {TAGC[0]}"); a(f"s_addc_u32 s57, s57, {TAGC[1]}"); a("s_lshr_b32 s58, s57, 4")
        a(f"s_getreg_b32 {sT0}, hwreg(HW_REG_XCC_ID, 0, 4)")
        a("s_lshl_b32 s59, s58, 4"); a(f"s_or_b32 s59, s59, {sT0}")
    def tag_chk(regs):
        for i, r in enumerate(regs):
            a(f"v_lshrrev_b32 {t1}, 4, v{r+1}"); a(f"v_xor_b32 {t1}, s58, {t1}"); a(f"v_xor_b32 {t2}, s56, v{r}")
            if i: a(f"v_or3_b32 {t0}, {t0}, {t1}, {t2}")
            else: a(f"v_or_b32 {t0}, {t1}, {t2}")
        a(f"v_cmp_ne_u32 vcc, 0, {t0}")

    YT = ["s65", "s66", "s67", "s68"]
    def ytag_make():
        a(f"s_and_b32 {YT[0]}, s56, 0xfff"); a(f"s_bfe_u32 {YT[1]}, s56, 0xc000c")
        a(f"s_and_b32 {YT[2]}, s58, 0xfff"); a(f"s_bfe_u32 {YT[3]}, s58, 0xc000c")
    def y_seal(r):
        a(f"v_add_u32 v{r}, 0x800, v{r}"); a(f"v_and_or_b32 v{r}, v{r}, {vYm}, {vYt}")

    a("s_load_dwordx16 s[4:19], s[0:1], 0")
    a("s_load_dwordx8 s[20:27], s[0:1], 64")
    a("s_load_dwordx2 s[28:29], s[0:1], 96")
    stamp("start"); names["h"] = list(names["s"]); names["g"] = list(names["s"])
    a(f"s_cmp_ge_u32 {sWG}, 256")
    a("s_cbranch_scc1 L_end")
    a(f"v_lshrrev_b32 {t2}, 6, v0")
    a(f"v_and_b32 {vL}, 63, v0")
    a(f"v_readfirstlane_b32 {sW}, {t2}")
    a(f"v_lshrrev_b32 {vg}, 4, {vL}")
    a(f"v_and_b32 {vn}, 15, {vL}")
    a(f"s_and_b32 {sX}, {sWG}, 7")
    a(f"s_lshr_b32 {sR}, {sWG}, 3")
    a(f"s_lshr_b32 {sT0}, {sWG}, 7")
    a(f"s_lshl1_add_u32 {sH}, {sX}, {sT0}")
    a(f"s_bfe_u32 {sB}, {sR}, 0x20002")
    a(f"s_cmp_ge_u32 {sW}, 4")
    a("s_cbranch_scc1 L_helper")

    a(f"v_lshl_add_u32 {vKo}, {t2}, 2, {vg}")
    a(f"v_lshl_add_u32 {vKo}, {vKo}, 5, {vn}")
    a(f"v_lshlrev_b32 {vKo}, 4, {vKo}")
    HA = 3 << (13 + ila); HB = 7 << (13 + ilb)
    a(f"s_lshl4_add_u32 s40, {sB}, {sH}"); a(f"s_and_b32 s41, {sR}, 3")
    if hb:
        HA = (1 << hb[0]) | (1 << hb[1])
        a("s_lshl_b32 s40, s40, 21"); a("s_and_b32 s42, s41, 1"); a(f"s_lshl_b32 s42, s42, {hb[0]}"); a("s_add_u32 s40, s40, s42")
        a("s_lshr_b32 s42, s41, 1"); a(f"s_lshl_b32 s42, s42, {hb[1]}"); a("s_add_u32 s40, s40, s42")
    elif ila == 6:
        a("s_lshl2_add_u32 s40, s40, s41"); a("s_lshl_b32 s40, s40, 19")
    else:
        a(f"s_lshl_b32 s40, s40, {8 - ila}"); a("s_add_u32 s40, s40, s41"); a(f"s_lshl_b32 s40, s40, {13 + ila}")
    NRA = 0x200000 - HA; MA_ = 0x1fffff & ~HA
    if lay:
        nb = 3 + lay
        HA = (((1 << nb) - 1) << (13 + ila)) | ((15 << 21) if lay == 1 else (7 << 22))
        NRA = 0x8000000 - HA; MA_ = 0x7ffffff & ~HA
        a(f"s_and_b32 s40, {sR}, {(1 << nb) - 1}"); a(f"s_lshl_b32 s40, s40, {13 + ila}")
        a(f"s_lshl_b32 s42, {sH if lay == 1 else sX}, {20 + lay}"); a("s_add_u32 s40, s40, s42")
    srd(32, None, None, NRA)
    cur_off = [0]
    sMask = "s70"; sHole = "s100"; sRa = "s101"
    rota = rp or rph
    if rx:
        a(f"s_mul_i32 {sRa}, {sB}, {rx[0]}"); a(f"s_mul_i32 {sOff}, {sH}, {rx[1]}"); a(f"s_add_u32 {sRa}, {sRa}, {sOff}")
        a(f"s_lshr_b32 {sRa}, {sRa}, {rx[2]}"); a(f"s_and_b32 {sRa}, {sRa}, 3"); a(f"s_lshl_b32 {sRa}, {sRa}, 19")
    elif rp << ila == 16 and not rph:
        a(f"s_lshl_b32 {sRa}, {sB}, 19")
    elif rota:
        a(f"s_mul_i32 {sRa}, {sB}, {rp}"); a(f"s_mul_i32 {sOff}, {sH}, {rph}"); a(f"s_add_u32 {sRa}, {sRa}, {sOff}")
        a(f"s_lshl_b32 {sRa}, {sRa}, {15 + ila}"); a(f"s_and_b32 {sRa}, {sRa}, 0x1fffff")
    a(f"s_mov_b32 {sOff}, {sRa if rota else 0}")
    sXo = "s4"; sXa = "s5"; sXb = "s10"; sEff = "s11"
    def xor_make(dst, spec):
        a(f"s_mov_b32 {dst}, 0")
        for bit, src in spec:
            a(f"s_bitcmp1_b32 {sWG}, {src}"); a(f"s_cselect_b32 {sT1}, {1 << bit}, 0"); a(f"s_xor_b32 {dst}, {dst}, {sT1}")
    def advance(n, masked=False):
        if masked:
            a(f"s_or_b32 {sOff}, {sOff}, {sHole}"); a(f"s_addk_i32 {sOff}, 8192"); a(f"s_and_b32 {sOff}, {sOff}, {sMask}")
        else:
            nx = ((cur_off[0] | HA) + 8192) & ~HA
            d = nx - cur_off[0]; cur_off[0] = nx
            if d == 8192: a(f"s_addk_i32 {sOff}, 8192")
            else:
                a(f"s_add_u32 {sOff}, {sOff}, {d}")
                if rota: a(f"s_bitset0_b32 {sOff}, 21")
    def backlog(P0, do_issue, do_proc):
        p = 0; burst = 0; iss = RT
        while not (p % LG == 0 and iss - p == LG and p >= RT):
            do_proc(p); p += 1
            free = iss - RT < p and (P0 is None or iss < P0 + LG)
            if iss - p < LG or (iss - p > LG and free and (burst < D or p % ratio == 0)):
                assert free
                do_issue(); iss += 1; burst += 1
        return p
    P0 = backlog(None, lambda: None, lambda p: None)
    assert P0 - RT <= 16 and P0 <= 112
    a("s_waitcnt lgkmcnt(0)")
    a(f"s_add_u32 s32, s{6+2*kv}, s40"); a(f"s_addc_u32 s33, s{7+2*kv}, 0")
    if xa: xor_make(sXa, xa); a(f"s_mov_b32 {sXo}, {sXa}")
    ids = {}
    def srd_of(n): return KA if n < 128 else KB if n < 144 else VB if n < 160 else VA
    def kslot(n):
        if n >= P0: return n % LG
        if n >= RT: return LG + n - RT
        if n >= RP: return 32 + (n - RP) % 8
        NT = P0 - RT
        return LG + n if n < NT else n - NT if n < NT + LG else n
    def issue(n, masked=False):
        if n == 144: a(f"s_mov_b32 {sOff}, {sRot}")
        if n == 160:
            a(f"s_mov_b32 {sOff}, {sRa if rota else 0}"); a(f"s_mov_b32 {sHole}, {HA}"); a(f"s_mov_b32 {sMask}, {MA_}")
            if xa or xb: a(f"s_mov_b32 {sXo}, {sXa if xa else 0}")
        masked = masked or n >= 128
        so = sOff
        if xa or (xb and masked and n < 160):
            so = sEff
            if not n & 1: a(f"s_xor_b32 {sEff}, {sOff}, {sXo}")
        if RP <= n < RT:
            a(f"s_add_u32 m0, {sLb}, {256 + (n - RP) * 1024 - 256 * (n & 1)}")
            ids[n] = a(f"buffer_load_dwordx4 {vKo}, {srd_of(n)}, {so} offen offset:{256*(n&1)} {pol} lds")
        else:
            ids[n] = a(f"buffer_load_dwordx4 {vr(slot(kslot(n)))}, {vKo}, {srd_of(n)}, {so} offen offset:{256*(n&1)} {pol}")
        if n & 1: advance(n, masked)
    for n in range(D0): issue(n)
    issued = D0
    stamp("k0")
    tag_load()
    a(f"s_add_u32 s36, s{8-2*kv}, s40"); a(f"s_addc_u32 s37, s{9-2*kv}, 0"); srd(36, None, None, NRA)
    a(f"s_lshl2_add_u32 {sRecA}, {sH}, {sB}"); a(f"s_lshl3_add_u32 {sRecA}, {sRecA}, s41")
    a(f"s_lshl_b32 {sRecB}, {sX}, 6"); a(f"s_add_u32 {sRecB}, {sRecB}, {sR}"); a(f"s_add_u32 {sRecB}, {sRecB}, 512")
    a(f"s_andn2_b32 s44, {sR}, 7"); a(f"s_add_u32 s44, s44, {sX}"); a(f"s_xor_b32 s44, s44, {bx}"); a("s_lshl_b32 s44, s44, 21")
    a(f"s_and_b32 s45, {sR}, 7"); a(f"s_lshl_b32 s45, s45, {13 + ilb}"); a("s_add_u32 s44, s44, s45"); a("s_add_u32 s44, s44, 0x180000")
    a("s_add_u32 s40, s16, s44"); a("s_addc_u32 s41, s17, 0"); srd(40, None, None, 0x80000 - HB)
    a("s_add_u32 s44, s18, s44"); a("s_addc_u32 s45, s19, 0"); srd(44, None, None, 0x80000 - HB)
    srd(60, "s28", "s29", WS_END); srd(48, "s12", "s13", 0 if nowo & 1 else 0x380000); srd(52, "s22", "s23", 0 if nowo & 2 else 0x380000)
    unit(0)
    a(f"s_mul_i32 {sT0}, {sW}, {4*8*896}"); a(f"s_add_u32 {sU}, {sU}, {sT0}")
    a(f"s_lshl_b32 {sT0}, {sW}, 11"); a(f"s_add_u32 {sY}, {sY}, {sT0}")
    sUB = "s69"
    a(f"s_xor_b32 {sT0}, {sX}, {bx}"); a(f"s_sub_i32 {sT0}, {sT0}, {sX}"); a(f"s_mul_i32 {sT0}, {sT0}, {512*896}"); a(f"s_add_u32 {sUB}, {sU}, {sT0}")
    a(f"s_cmp_ge_u32 {sR}, 28"); a(f"s_cselect_b32 {sU}, {OOB}, {sU}"); a(f"s_cselect_b32 {sUB}, {OOB}, {sUB}"); a(f"s_cselect_b32 {sG}, {OOB}, {sG}")
    if True:
        a(f"s_mul_i32 {sRot}, {sR}, {rot}"); a(f"s_mul_i32 {sT0}, {sX}, {rotx}"); a(f"s_add_u32 {sRot}, {sRot}, {sT0}")
        a(f"s_and_b32 {sRot}, {sRot}, {rotm}")
        a(f"s_lshr_b32 {sT0}, {sRot}, {ilb}"); a(f"s_mul_i32 {sT0}, {sT0}, {7 << ilb}"); a(f"s_add_u32 {sRot}, {sRot}, {sT0}"); a(f"s_lshl_b32 {sRot}, {sRot}, 13")
    if xa or xb: xor_make(sXb, xb)
    if xb and not xa: a(f"s_mov_b32 {sXo}, 0")
    a(f"s_mov_b32 {sC}, {CSCALE}")
    a("s_mov_b32 s90, 0xcccccccc"); a("s_mov_b32 s91, 0xcccccccc")
    a("s_mov_b32 s92, 0xaaaaaaaa"); a("s_mov_b32 s93, 0xaaaaaaaa")
    a("s_and_b64 s[98:99], s[90:91], s[92:93]"); a(f"s_mov_b32 {sHole}, {HA}"); a(f"s_mov_b32 {sMask}, {MA_}")
    a(f"v_bfe_u32 {t0}, {vL}, 1, 2")
    a(f"v_mov_b32 {t2}, 0xffff"); a(f"v_mov_b32 {t1}, 0xffff0000")
    a(f"v_cndmask_b32 {t2}, {t2}, {t1}, {sMk0}")
    for j in range(4):
        a(f"v_cmp_eq_u32 vcc, {j}, {t0}")
        a(f"v_cndmask_b32 {vM[j]}, 0, {t2}, vcc")
    a(f"v_lshlrev_b32 {t3}, 4, {vn}"); a(f"v_mov_b32 {t0}, {L_LOC}")
    a(f"s_mul_i32 {sLb}, {sW}, {NL * 1024}"); a(f"s_add_u32 {sLb}, {sLb}, {L_KB - 256}")
    if nboost:
        a(f"s_and_b32 {sT0}, {sR}, 7"); a(f"s_cmp_eq_u32 {sT0}, 3"); a("s_cselect_b64 vcc, -1, 0")
    landed = -1
    def throttled_issue():
        nonlocal issued, landed
        d = D0 if issued < ND0 else D
        if issued - d > landed:
            if 14 <= issued < 14 + nboost:
                landed = max(landed, issued - d - 1); a.wait_vm(ids[issued - d - 1])
                a(f"s_cbranch_vccnz L_boost{issued}"); a.wait_vm(ids[issued - d]); a(f"L_boost{issued}:")
            else:
                landed = issued - d; a.wait_vm(ids[landed])
        issue(issued); issued += 1
    while issued < RT - pbar:
        throttled_issue()
        if fine and issued in (D0 + 1, 16, 26, 36, 46, 56, 66): stamp(f"ki{issued}")
        if issued == 24:
            a("s_waitcnt lgkmcnt(0)"); tag_make(); ytag_make()
    stamp("ring_full")
    a("s_barrier")
    a(f"ds_read_b128 {vr(QA)}, {t3} offset:{L_Q+1024}"); a(f"ds_read_b128 {vr(QA+4)}, {t3} offset:{L_Q+1024+256}")
    for k in range(4): a(f"ds_read_b128 {vr(QB+4*k)}, {t3} offset:{L_Q+256*k}")
    a(f"ds_read2_b32 v[54:55], {t0} offset0:0 offset1:1")
    while issued < RT: throttled_issue()
    a(f"v_lshl_add_u32 {t3}, {vL}, 4, {sLb}")
    a("s_waitcnt lgkmcnt(0)")
    a(f"v_readfirstlane_b32 {sLocal}, {t0}"); a(f"v_readfirstlane_b32 {sCh}, {t1}")
    stamp("q_ready")

    def tree(j, acc, dst_fn):
        u = U[(j >> 1) & 1]
        a(f"v_add_f32_dpp {u}, {acc}, {acc} row_ror:8 row_mask:0xf bank_mask:{'0xc' if j & 1 else '0x3'}")
        if not j & 1: return
        v = V[(j >> 2) & 1]
        a(f"v_add_f32_dpp {v}, {u}, {u} row_half_mirror row_mask:0xf bank_mask:{'0xa' if j & 2 else '0x5'}")
        if not j & 2: return
        a(f"v_add_f32_dpp {v}, {v}, {v} {QP2}")
        if not j & 4: return
        x = X[(j >> 3) & 1]
        a(f"v_cndmask_b32 {x}, {V[0]}, {V[1]}, {sMk1}")
        a(f"v_add_f32_dpp {x}, {x}, {x} {QP1}")
        if not j & 8: return
        dst_fn()
    def dots(acc, kr, qr, first):
        if first: a(f"v_mov_b32 {acc}, 0")
        for e in range(4): a(f"v_dot2c_f32_bf16 {acc}, v{kr+e}, v{qr+e}")
    ROT = "quad_perm:[1,2,3,0] " + FULL
    def procK(n, looped=False):
        k = kslot(n); i = (n >> 1) & 3; hf = n & 1
        acc = T[i & 1]
        dots(acc, slot(k), QA + 4 * hf, not hf)
        if not hf: return
        a(f"v_add_f32_dpp {U[0]}, {acc}, {acc} row_ror:8 row_mask:0xf bank_mask:{'0xc' if i & 1 else '0x3'}")
        if not i & 1: return
        a(f"v_add_f32_dpp {V[0]}, {U[0]}, {U[0]} row_half_mirror row_mask:0xf bank_mask:{'0xa' if i & 2 else '0x5'}")
        if not i & 2: return
        r = SP + (0 if looped else ((n >> 3) - P0 // 8) & 3)
        a(f"v_mov_b32_dpp {X[0]}, v{r} {ROT}")
        a(f"v_add_f32_dpp {V[0]}, {V[0]}, {V[0]} {QP2}")
        if looped:
            for e in range(3): a(f"v_mov_b32 v{SP+e}, v{SP+e+1}")
        a(f"v_add_f32_dpp {V[0]}, {V[0]}, {V[0]} {QP1}")
        a(f"v_cndmask_b32 v{SP+3 if looped else r}, {X[0]}, {V[0]}, s[98:99]")
    def procKB(n):
        k = kslot(n); j = (n - 128) >> 1; hf = n & 1
        for hd in range(2):
            dots(T[hd], slot(k), QB + 8 * hd + 4 * hf, not hf)
        if not hf: return
        for hd in range(2):
            tree(2 * j + hd, T[hd], lambda: a(f"v_cndmask_b32 {SB}, {X[0]}, {X[1]}, {sMk0}"))
    def procVB(n):
        k = kslot(n); j = (n - 144) >> 1; hf = n & 1
        if not hf:
            a(f"v_mov_b32_dpp {t0}, {SB} row_newbcast:{brev(j,3)} row_mask:0xf bank_mask:0x3")
            a(f"v_mov_b32_dpp {t0}, {SB} row_newbcast:{8+brev(j,3)} row_mask:0xf bank_mask:0xc")
            for e in range(4): a(f"v_and_b32 v{AOP+e}, {t0}, {vM[e]}")
        a(f"v_mfma_f32_16x16x32_bf16 {vr(ACCB+4*hf)}, {vr(AOP)}, {vr(slot(k))}, {vr(ACCB+4*hf) if j else 0}")
    def procV(n, last=False):
        k = kslot(n); i = (n >> 1) & 3; hf = n & 1
        if not hf:
            for e in range(4):
                a(f"v_and_b32_dpp v{AOP+e}, v{SP}, {vM[e]} row_newbcast:{8*(i&1) + 4*(i>>1)} {FULL}")
        a(f"v_mfma_f32_16x16x32_bf16 {vr(ACC+4*hf)}, {vr(AOP)}, {vr(slot(k))}, {vr(ACC+4*hf)}")
        if hf and i == 3 and not last:
            a(f"v_mov_b32_dpp {X[0]}, v{SP} {ROT}")
            for e in range(3): a(f"v_mov_b32 v{SP+e}, v{SP+e+1}")
            a(f"v_mov_b32 v{SP+3}, {X[0]}")
    AH = 4
    def backlog_proc(p):
        n = p + AH
        if RP <= n < RT:
            assert n <= landed and p > 39
            a(f"ds_read_b128 {vr(slot(kslot(n)))}, {t3} offset:{256 + (n - RP) * 1024}")
        if RP <= p < RT: a(f"s_waitcnt lgkmcnt({min(AH, RT - 1 - p)})")
        assert p <= landed
        procK(p)
    assert backlog(P0, throttled_issue, backlog_proc) == P0
    total = (NTOT - LG - P0) // 2 * 4
    a(f"s_lshl2_add_u32 {sT0}, {sW}, {L_PRG}")
    a(f"v_mov_b32 {vPrA}, {sT0}"); a(f"v_mov_b32 {vPrg}, 0")
    a(f"s_mov_b32 {sTh}, {int(th0 + 0.5)}")
    stamp("caught_up")
    nlad = [0]
    def pair(n, proc, extra=None, masked=False):
        j = n >> 1
        if j & 1:
            a(f"s_waitcnt vmcnt({LG - 2}) lgkmcnt(0)")
            a(f"v_readfirstlane_b32 {sTh}, {vTH}")
        else:
            a(f"s_waitcnt vmcnt({LG - 2})")
        proc(n); proc(n + 1)
        if thmax < LG - 2: a(f"s_waitcnt vmcnt({thmax})")
        nlad[0] += 1
        for th in range(thmax, thmin, -1):
            a(f"s_cmp_ge_u32 {sTh}, {th}"); a(f"s_cbranch_scc1 L_lad{nlad[0]}")
            a(f"s_waitcnt vmcnt({th - 1})")
        a(f"L_lad{nlad[0]}:")
        issue(n + LG, masked); issue(n + LG + 1, masked)
        a(f"v_add_u32 {vPrg}, 1, {vPrg}")
        a(f"ds_write_b32 {vPrA}, {vPrg}")
        if not j & 1: a(f"ds_read_b32 {vTH}, {vPrA} offset:{L_TH - L_PRG}")
        if extra: extra()
    a(f"s_mov_b32 {sCnt}, {(128 - P0) // LG}")
    a("L_k:")
    a(f"s_sub_u32 {sCnt}, {sCnt}, 1"); a(f"s_cmp_eq_u32 {sCnt}, 0")
    a("s_cselect_b32 s32, s40, s32"); a("s_cselect_b32 s33, s41, s33"); a("s_cselect_b32 s34, s42, s34")
    a(f"s_cselect_b32 {sOff}, {sRot}, {sOff}"); a(f"s_cselect_b32 {sMask}, {0x7ffff & ~HB}, {sMask}"); a(f"s_cselect_b32 {sHole}, {HB}, {sHole}")
    if xa or xb: a(f"s_cselect_b32 {sXo}, {sXb}, {sXo}")
    for n in range(P0, P0 + LG, 2): pair(n, lambda m: procK(m, True), masked=True)
    a(f"s_cmp_lg_u32 {sCnt}, 0"); a("s_cbranch_scc1 L_k")
    stamp("K_done")
    def softmaxA():
        for e in range(4): rnd(f"v{SP+e}")
        a(f"v_max3_f32 {vm}, v{SP}, v{SP+1}, v{SP+2}"); a(f"v_max_f32 {vm}, {vm}, v{SP+3}")
        red("v_max_f32", vm, (8, 4, 2, 1, 16, 32))
        a(f"v_mul_f32 {vm}, {sC}, {vm}")
        for e in range(4): a(f"v_fma_f32 v{SP+e}, v{SP+e}, {sC}, -{vm}")
        for e in range(4): a(f"v_exp_f32 v{SP+e}, v{SP+e}")
        a(f"v_add_f32 {vl}, v{SP}, v{SP+1}"); a(f"v_add_f32 {t0}, v{SP+2}, v{SP+3}"); a(f"v_add_f32 {vl}, {vl}, {t0}")
        for e in range(4): a(f"v_cvt_pk_bf16_f32 v{SP+e}, v{SP+e}, v{SP+e}")
    def softmaxA2():
        red("v_add_f32", vl, (8, 4, 2, 1, 16, 32))
        for e in range(8): a(f"v_mov_b32 v{ACC+e}, 0")
        a(f"v_min_u32 {vm}, -2, {vm}"); a(f"v_min_u32 {vl}, -2, {vl}")
        a(f"s_lshl2_add_u32 {sT0}, {sRecA}, {sW}"); a(f"s_lshl3_add_u32 {sT0}, {sT0}, {WS_ML}")
        a("s_mov_b64 exec, 1")
        by_placement("mla", lambda b: a(f"buffer_store_dwordx2 v[58:59], off, {WS}, {sT0}{b}"))
        a("s_mov_b64 exec, -1")
    def softmaxB():
        rnd(SB)
        a(f"v_mul_f32 {SB}, {sC}, {SB}")
        a(f"v_max_f32_dpp {vmB}, {SB}, {SB} row_half_mirror {FULL}")
        red("v_max_f32", vmB, ("q1", "q2", 16, 32))
        a(f"v_sub_f32 {SB}, {SB}, {vmB}"); a(f"v_exp_f32 {SB}, {SB}")
        a(f"v_add_f32_dpp {vlB}, {SB}, {SB} row_half_mirror {FULL}")
        a(f"v_cvt_pk_bf16_f32 {SB}, {SB}, {SB}")
    def softmaxB2():
        red("v_add_f32", vlB, ("q1", "q2", 16, 32))
        a(f"v_min_u32 {vmB}, -2, {vmB}"); a(f"v_min_u32 {vlB}, -2, {vlB}")
        a(f"s_lshl2_add_u32 {sT0}, {sRecB}, {sW}"); a(f"s_lshl3_add_u32 {sT0}, {sT0}, {WS_ML}")
        a(f"v_lshlrev_b32 {t2}, 7, {vn}")
        a("s_mov_b64 exec, 0x101")
        by_placement("mlb", lambda b: a(f"buffer_store_dwordx2 v[62:63], {t2}, {WS}, {sT0} offen{b}"))
        a("s_mov_b64 exec, -1")
    def addresses():
        if swz:
            a(f"v_bfe_u32 {t0}, {vL}, 3, 2"); a(f"v_xor_b32 {t0}, {sW}, {t0}"); a(f"v_lshl_add_u32 {vTr}, {t0}, 5, {vTr}")
            a(f"v_and_b32 {t0}, 16, {vL}"); a(f"v_lshlrev_b32 {t0}, 1, {t0}"); a(f"v_xor_b32 {vWo}, {t0}, {vWo}"); a(f"v_xor_b32 {vWo2}, 64, {vWo}")
        else:
            a(f"s_lshl_b32 {sT0}, {sW}, 5"); a(f"v_add_u32 {vTr}, {sT0}, {vTr}"); a(f"v_mov_b32 {vWo2}, {vWo}")
        a(f"s_lshl_b32 {sLb}, {sW}, 12")
        if wfake == 1:
            a(f"v_lshlrev_b32 {vWo}, 4, {vL}"); a(f"v_mov_b32 {vWo2}, {vWo}")
            a(f"s_mul_i32 {sU}, {sX}, 28"); a(f"s_add_u32 {sU}, {sU}, {sR}"); a(f"s_lshl2_add_u32 {sU}, {sU}, {sW}"); a(f"s_lshl_b32 {sU}, {sU}, 12")
            a(f"s_cmp_ge_u32 {sR}, 28"); a(f"s_cselect_b32 {sU}, {OOB}, {sU}"); a(f"s_mov_b32 {sUB}, {sU}")
        if wfake == 2:
            a(f"v_mul_u32_u24 {vWo}, 896, {vg}"); a(f"v_lshl_add_u32 {vWo}, {vn}, 4, {vWo}")
            a(f"s_and_b32 {sT0}, {sR}, 3"); a(f"s_cmp_eq_u32 {sT0}, 3"); a(f"s_cselect_b32 {sT1}, 8, 16")
            a(f"v_cmp_gt_u32 vcc, {sT1}, {vn}"); a(f"v_mov_b32 {t0}, {OOB}"); a(f"v_cndmask_b32 {vWo}, {t0}, {vWo}, vcc"); a(f"v_mov_b32 {vWo2}, {vWo}")
            a(f"s_bfe_u32 {sU}, {sR}, 0x20002"); a(f"s_lshl2_add_u32 {sU}, {sX}, {sU}"); a(f"s_lshl2_add_u32 {sU}, {sU}, {sW}"); a(f"s_mul_i32 {sU}, {sU}, {32*896}")
            a(f"s_lshl_b32 {sT0}, {sT0}, 8"); a(f"s_add_u32 {sU}, {sU}, {sT0}"); a(f"s_add_u32 {sUB}, {sU}, {16*896}")
            a(f"s_cmp_ge_u32 {sR}, 16"); a("s_cselect_b32 s48, s52, s48"); a("s_cselect_b32 s49, s53, s49"); a("s_mov_b32 s52, s48"); a("s_mov_b32 s53, s49")
        y_base(vYo, 0); y_base(vYb, 1)
        a(f"v_mov_b32 {vYm}, 0xfffff000")
        a(f"v_mov_b32 {t0}, {YT[0]}"); a(f"v_mov_b32 {t1}, {YT[1]}"); a(f"v_cndmask_b32 {t0}, {t0}, {t1}, {sMk0}")
        a(f"v_mov_b32 {t2}, {YT[2]}"); a(f"v_mov_b32 {t1}, {YT[3]}"); a(f"v_cndmask_b32 {t2}, {t2}, {t1}, {sMk0}")
        a(f"v_cndmask_b32 {vYt}, {t0}, {t2}, {sMk1}")
        a(f"v_and_b32 {t0}, 1, {vg}"); a(f"v_lshlrev_b32 {t0}, 4, {t0}"); a(f"v_lshl_add_u32 {t0}, {vn}, 5, {t0}")
        a(f"s_lshl_b32 {sT0}, {sW}, 10"); a(f"s_add_u32 {sT0}, {sT0}, {L_PART}")
        a(f"v_add_u32 {vPa}, {sT0}, {t0}")
    nwo = 0; id_wo = None
    def gA():
        for k in range(4): a(f"buffer_load_dwordx4 {vr(G+4*k)}, {vGo}, {WS}, {sG} offen offset:{1024*k} sc1")
    def wo_issue():
        nonlocal nwo, id_wo
        j = (nwo - wbe) % 8
        a(f"s_add_u32 m0, {sLb}, {(L_WOA, L_WOB)[j >> 2] + 1024*(j & 3)}")
        a(f"s_add_u32 {sT0}, {(sU, sUB)[j >> 2]}, {(8*896, 1024, 4*896)[wfake]*(j & 3)}")
        id_wo = a(f"buffer_load_dwordx4 {(vWo, vWo2)[j & 1]}, {(WOA, WOB)[j >> 2]}, {sT0} offen {pol} lds")
        nwo += 1
    extras = {128: softmaxA, 130: softmaxA2, 132: unit_v, 134: addresses, 142: softmaxB, 144: softmaxB2}
    for i in range(wbe): extras[146 + 2 * (i % 7)] = (lambda f: (lambda: (f and f(), wo_issue())))(extras.get(146 + 2 * (i % 7)))
    for n in range(128, 160, 2): pair(n, procKB if n < 144 else procVB, extras.get(n))
    stamp("B_done")
    a(f"s_mov_b32 {sCnt}, 0")
    a("L_v:")
    a(f"s_cmp_eq_u32 {sCnt}, {ml0}"); a("s_cbranch_scc1 L_ml_issue")
    a(f"s_cmp_eq_u32 {sCnt}, {ml1}"); a("s_cbranch_scc1 L_ml_use")
    if stamps:
        a(f"s_cmp_eq_u32 {sCnt}, 10"); a("s_cbranch_scc1 L_st11")
    a("L_v_body:")
    for n in range(160, 160 + LG, 2): pair(n, procV)
    a(f"s_add_u32 {sCnt}, {sCnt}, {LG // 8}"); a(f"s_cmp_lt_u32 {sCnt}, {16 - LG // 8}"); a("s_cbranch_scc1 L_v")
    a("s_branch L_v_x")
    def ml_loads():
        a(f"buffer_load_dwordx2 {vr(MLG,2)}, {U[0]}, {WS}, {sT0} offen sc1")
        a(f"buffer_load_dwordx2 {vr(MLG+2,2)}, {U[1]}, {WS}, {sT1} offen sc1")
    a("L_ml_issue:")
    stamp("v4")
    a(f"s_andn2_b32 {sT0}, {sRecA}, 7"); a(f"s_lshl_b32 {sT0}, {sT0}, 5"); a(f"s_add_u32 {sT0}, {sT0}, {WS_ML}")
    a(f"s_andn2_b32 {sT1}, {sRecB}, 7"); a(f"s_lshl_b32 {sT1}, {sT1}, 5"); a(f"s_add_u32 {sT1}, {sT1}, {WS_ML}")
    a(f"v_lshlrev_b32 {U[0]}, 3, {vn}")
    a(f"v_and_b32 {t0}, 31, {vL}"); a(f"v_lshlrev_b32 {t0}, 3, {t0}"); a(f"v_lshrrev_b32 {t1}, 5, {vL}"); a(f"v_lshl_add_u32 {U[1]}, {t1}, 10, {t0}")
    ml_loads()
    a("s_branch L_v_body")
    a("L_ml_use:")
    stamp("v7")
    poll("L_ml", ml_loads, lambda: sentinel(range(MLG, MLG + 4)), sleep=2, first_issued=True)
    MA, MB = V
    a(f"v_max_f32_dpp {MA}, v{MLG}, v{MLG} row_ror:8 {FULL}"); a(f"v_max_f32_dpp {MB}, v{MLG+2}, v{MLG+2} row_ror:8 {FULL}")
    for s in (4, 2, 1):
        a(f"v_max_f32_dpp {MA}, {MA}, {MA} row_ror:{s} {FULL}"); a(f"v_max_f32_dpp {MB}, {MB}, {MB} row_ror:{s} {FULL}")
    red("v_max_f32", MB, (16,))
    a(f"v_mov_b32_dpp {t3}, {vmB} row_newbcast:0 row_mask:0x3 bank_mask:0xf")
    a(f"v_mov_b32_dpp {t3}, {vmB} row_newbcast:8 row_mask:0xc bank_mask:0xf")
    a(f"v_sub_f32 v{MLG}, v{MLG}, {MA}"); a(f"v_sub_f32 v{MLG+2}, v{MLG+2}, {MB}")
    a(f"v_sub_f32 {vfA}, {vm}, {MA}"); a(f"v_sub_f32 {t3}, {t3}, {MB}")
    a(f"v_exp_f32 v{MLG}, v{MLG}"); a(f"v_exp_f32 v{MLG+2}, v{MLG+2}"); a(f"v_exp_f32 {vfA}, {vfA}"); a(f"v_exp_f32 {t3}, {t3}")
    a(f"v_mul_f32 {MA}, v{MLG}, v{MLG+1}"); a(f"v_mul_f32 {MB}, v{MLG+2}, v{MLG+3}")
    for s in (8, 4, 2, 1):
        a(f"v_add_f32_dpp {MA}, {MA}, {MA} row_ror:{s} {FULL}"); a(f"v_add_f32_dpp {MB}, {MB}, {MB} row_ror:{s} {FULL}")
    red("v_add_f32", MB, (16,))
    a(f"v_rcp_f32 {MA}, {MA}"); a(f"v_rcp_f32 {MB}, {MB}")
    a(f"v_mul_f32 {vfA}, {vfA}, {MA}"); a(f"v_mul_f32 {t3}, {t3}, {MB}")
    for e in range(8): a(f"v_mul_f32 v{ACCB+e}, v{ACCB+e}, {t3}")
    a(f"v_lshrrev_b32 {t1}, 1, {vg}"); a(f"v_lshl_add_u32 {t0}, {t1}, 12, {vPa}")
    a(f"ds_write_b128 {t0}, {vr(ACCB)}"); a(f"ds_write_b128 {t0}, {vr(ACCB+4)} offset:512")
    a(f"v_lshl_add_u32 {vPa}, {t1}, 9, {vPa}")
    a(f"v_mov_b32 {t0}, {L_CNT}"); a(f"v_mov_b32 {t2}, 1")
    a("s_waitcnt lgkmcnt(0)")
    a("s_mov_b64 exec, 1")
    a(f"ds_add_u32 {t0}, {t2}")
    a("s_mov_b64 exec, -1")
    a("s_branch L_v_body")
    if stamps:
        a("L_st11:"); stamp("v11"); a("s_branch L_v_body")
    a("L_v_x:")
    stamp("v_x")
    for k in range(LG): ids[NTOT - LG + k] = a.vm_seq - (LG - 1 - k)
    a("s_mov_b32 vcc_lo, 0"); a("s_mov_b32 vcc_hi, -1")
    for n in range(NTOT - LG, NTOT):
        a.wait_vm(ids[n])
        if wg is None and n - (NTOT - 8) >= wod and nwo < 8: wo_issue()
        if wg is not None and n & 1:
            a(f"v_add_u32 {vPrg}, 1, {vPrg}"); a(f"ds_write_b32 {vPrA}, {vPrg}")
        procV(n, last=n >= NTOT - 8)
    if wg is not None: nwo = 8
    stamp("stream_done")
    for e in range(4): a(f"v_cndmask_b32 v{ACC+e}, v{ACC+e}, v{ACC+4+e}, vcc")
    for e in range(4): a(f"v_mul_f32 v{ACC+e}, v{ACC+e}, {vfA}")
    a(f"ds_write_b128 {vPa}, {vr(ACC)} offset:8192")
    while wpos == 0 and nwo < 8: wo_issue()
    a("s_waitcnt lgkmcnt(0)")
    a("s_barrier")
    while wpos == 1 and nwo < 8: wo_issue()
    for k in range(4): a(f"ds_read_b128 {vr(OBS+4*k)}, {vGo} offset:{L_PART + 1024*k}")
    if g2:
        a("s_barrier")
        while wpos == 2 and nwo < 8: wo_issue()
        gA()
        while nwo < 8: wo_issue()
    if wg is None and wbe < 8: a.wait_vm(id_wo)
    a("s_barrier")
    if fine: stamp("wo_in")
    a(f"s_cmp_ge_u32 {sR}, 28"); a("s_cbranch_scc1 L_s_fin")
    a("s_waitcnt lgkmcnt(0)")
    for dst, src in ((WTB, L_WOB), (WT, L_WOA)):
        for k in range(4):
            if src == L_WOA and k == 3: a("s_waitcnt lgkmcnt(6)")
            a(f"ds_read_b64_tr_b16 {vr(dst+4*k,2)}, {vTr} offset:{src+4096*k}")
            a(f"ds_read_b64_tr_b16 {vr(dst+4*k+2,2)}, {vTr} offset:{src+4096*k+512}")
    for k in range(4):
        a(f"v_mfma_f32_16x16x32_bf16 {vr(ACC+4)}, {vr(OBS+4*k)}, {vr(WTB+4*k)}, {vr(ACC+4) if k else 0}")
    if g2: a("s_waitcnt vmcnt(0)")
    poll("L_s2", gA, lambda: sentinel(range(G, G + 16)), masked=True, first_issued=g2)
    if g2: a("s_waitcnt lgkmcnt(0)")
    stamp("gathered")
    for k in range(4):
        a(f"v_mfma_f32_16x16x32_bf16 {vr(ACC)}, {vr(G+4*k)}, {vr(WT+4*k)}, {vr(ACC) if k else 0}")
    y_seal(ACC + 4)
    a(f"buffer_store_dword v{ACC+4}, {vYb}, {WS}, {sY} offen sc1")
    a(f"v_add_f32 v{ACC}, v{ACC}, v{ACC+1}"); a(f"v_add_f32 v{ACC+2}, v{ACC+2}, v{ACC+3}"); a(f"v_add_f32 v{ACC}, v{ACC}, v{ACC+2}")
    y_seal(ACC)
    a(f"buffer_store_dword v{ACC}, {vYo}, {WS}, {sY} offen sc1")
    if stamps:
        a("s_branch L_s_fin2")
        a("L_s_fin:")
        names["s"].pop(); stamp("gathered")
        a("L_s_fin2:")
    else:
        a("L_s_fin:")
    stamp("y")
    a("s_waitcnt vmcnt(0)")
    a("s_barrier")
    finish()

    cur[0] = "g"
    a("L_gov:")
    vA4 = "v2"; vBo = "v3"; vPw = "v4"; vP = "v5"; vPp = "v6"; vB = "v7"; vTh = "v8"; vL16 = "v16"
    sTg = sU; sPo = sRecA; sGa = sRecB; sIn = sY
    a(f"v_lshlrev_b32 {vL16}, 4, {vL}")
    a(f"s_lshl_b32 {sT1}, {sX}, 5"); a(f"s_add_u32 {sT1}, {sT1}, {sR}"); a(f"s_lshl_b32 {sT1}, {sT1}, 7"); a(f"s_add_u32 {sT1}, {sT1}, {WS_FL}")
    srd(60, None, None, WS_END)
    a("s_waitcnt lgkmcnt(0)")
    tag_load()
    a("s_mov_b32 s60, s28"); a("s_mov_b32 s61, s29")
    a("s_mov_b64 exec, 0xff")
    a("s_waitcnt lgkmcnt(0)")
    tag_make()
    a("v_mov_b32 v8, s56"); a("v_mov_b32 v9, s59"); a("v_mov_b32 v10, s56"); a("v_mov_b32 v11, s59")
    a(f"buffer_store_dwordx4 v[8:11], {vL16}, {WS}, {sT1} offen sc1")
    a("s_mov_b64 exec, -1")
    ytag_make()
    a(f"s_mul_i32 {sIn}, {sX}, {YG}"); a(f"s_add_u32 {sIn}, {sIn}, {WS_Y}")
    a(f"s_cmp_lg_u32 {sR}, 0"); a("s_cbranch_scc1 L_norace")
    a(f"s_add_u32 s4, s28, {sIn}"); a("s_addc_u32 s5, s29, 0")
    a("s_load_dword s6, s[4:5], 0 glc"); a("s_load_dword s7, s[4:5], 8192 glc")
    a(f"s_mov_b32 {sT1}, 0")
    a("s_waitcnt lgkmcnt(0)")
    for i in range(nrace):
        a("s_not_b32 s10, s6"); a("s_not_b32 s11, s7")
        for h in ((0, 1), (1, 0))[i & 1]: a(f"s_load_dword s{10+h}, s[4:5], {8192*h} glc")
        a("s_waitcnt lgkmcnt(1)")
        a("s_sleep 1")
        a("s_mov_b64 s[14:15], s[10:11]")
        a("s_waitcnt lgkmcnt(0)")
        a("s_cmp_eq_u32 s15, s7"); a(f"s_addc_u32 {sT1}, {sT1}, 0"); a("s_cmp_eq_u32 s14, s6"); a(f"s_subb_u32 {sT1}, {sT1}, 0")
    a(f"s_sub_i32 {sT2}, 0, {sT1}"); a("s_bitcmp1_b32 s59, 2"); a(f"s_cselect_b32 {sT1}, {sT2}, {sT1}")
    a(f"s_cmp_gt_i32 {sT1}, 0"); a(f"s_cselect_b32 {sT2}, 2, 0"); a(f"s_cmp_lt_i32 {sT1}, 0"); a(f"s_cselect_b32 {sT2}, 1, {sT2}")
    if near is not None: a(f"s_mov_b32 {sT2}, {1 + near}")
    a(f"s_and_b32 {sT1}, s59, 4"); a(f"s_or_b32 {sT1}, {sT1}, {sT2}")
    a(f"s_lshl4_add_u32 {sT1}, s58, {sT1}")
    a(f"v_mov_b32 v12, s56"); a(f"v_mov_b32 v13, {sT1}"); a(f"v_mov_b32 v14, s56"); a(f"v_mov_b32 v15, {sT1}")
    a(f"s_lshl_b32 {sT1}, {sX}, 7"); a(f"s_add_u32 {sT1}, {sT1}, {WS_CH}")
    a("s_mov_b64 exec, 0xff")
    a(f"buffer_store_dwordx4 v[12:15], {vL16}, {WS}, {sT1} offen sc1")
    a("s_mov_b64 exec, -1")
    a("L_norace:")
    a(f"s_lshr_b32 {sT0}, {sR}, 2"); a(f"s_lshl_b32 {sT0}, {sT0}, 14"); a(f"s_add_u32 {sIn}, {sIn}, {sT0}")
    a(f"s_and_b32 {sT0}, {sR}, 3"); a(f"s_lshl_b32 {sT0}, {sT0}, 11"); a(f"s_add_u32 {sIn}, {sIn}, {sT0}")
    if stamps: a("v_mov_b32 v254, 0"); a("v_mov_b32 v253, 0")
    stamp("hello")
    srd(44, "s24", "s25", 7168)
    if wg is not None:
        srd(4, "s12", "s13", 0 if nowo & 1 else 0x380000); srd(24, "s22", "s23", 0 if nowo & 2 else 0x380000)
        a("s_mov_b64 s[90:91], s[4:5]")
        a(f"s_mul_i32 {sT0}, {sR}, 37"); a(f"s_lshr_b32 {sT0}, {sT0}, 8"); a(f"s_mul_i32 {sT1}, {sT0}, 7"); a(f"s_sub_u32 {sT1}, {sR}, {sT1}")
        a(f"s_lshl2_add_u32 {sT0}, {sX}, {sT0}"); a(f"s_mul_i32 s70, {sT0}, {128*896}"); a(f"s_lshl_b32 {sT1}, {sT1}, 7"); a(f"s_add_u32 s70, s70, {sT1}")
        a(f"v_lshrrev_b32 {t0}, 3, {vL}"); a(f"v_mul_u32_u24 {t0}, 896, {t0}"); a(f"v_and_b32 {t2}, 7, {vL}"); a(f"v_lshl_add_u32 {vWo}, {t2}, 4, {t0}")
        a(f"v_and_b32 {t0}, 16, {vL}"); a(f"v_lshlrev_b32 {t0}, 1, {t0}"); a(f"v_xor_b32 {vWo}, {t0}, {vWo}"); a(f"v_xor_b32 {vWo2}, 64, {vWo}")
        a(f"v_mov_b32 v18, {total - wg}")
    if tlb:
        a(f"s_lshl4_add_u32 s40, {sB}, {sH}"); a("s_lshl_b32 s40, s40, 21")
        a(f"s_andn2_b32 s41, {sR}, 7"); a(f"s_add_u32 s41, s41, {sX}"); a(f"s_xor_b32 s41, s41, {bx}"); a("s_lshl_b32 s41, s41, 21"); a("s_add_u32 s41, s41, 0x180000")
        a(f"s_mul_i32 s42, {sX}, {512*896}")
        for i, (pp, o) in enumerate(((12, 42), (22, 42), (16, 41), (18, 41), (8, 40))):
            a(f"s_add_u32 s{pp}, s{pp}, s{o}"); a(f"s_addc_u32 s{pp+1}, s{pp+1}, 0")
            a(f"s_load_dword s{48+i}, s[{pp}:{pp+1}], 0")
    a(f"v_and_b32 {vA4}, 3, {vL}"); a(f"v_lshlrev_b32 {vA4}, 2, {vA4}")
    a(f"v_mov_b32 {vPp}, 0"); a(f"v_mov_b32 {vTh}, {int(th0 + 0.5)}"); a(f"v_mov_b32 {vB}, 0")
    a(f"ds_write_b32 {vA4}, {vPp} offset:{L_PRG}"); a(f"ds_write_b32 {vA4}, {vTh} offset:{L_TH}"); a(f"ds_write_b32 {vB}, {vB} offset:{L_CNT}")
    gc_ = gI // 2 if gc is None else gc
    a(f"s_mul_i32 {sG}, {sX}, 4352"); a(f"s_add_u32 {sG}, {sG}, {WS_GC}")
    a(f"v_lshlrev_b32 {vBo}, 2, {vL}")
    a(f"s_lshl2_add_u32 {sOff}, {sR}, {sG}")
    a(f"s_add_u32 {sGa}, {sG}, {8*4352}")
    a(f"s_mul_i32 {sTg}, {sX}, {gI // 8}"); a(f"s_add_u32 {sTg}, {sTg}, {gI // 8}")
    a(f"s_cmp_eq_u32 {sR}, {28 if gx else 99}"); a(f"s_cselect_b32 {sTg}, {sTg}, -1")
    sOut = sC
    a(f"s_and_b32 {sT0}, {sX}, 3"); a(f"s_mul_i32 {sOut}, {sT0}, 1792"); a(f"s_lshr_b32 {sT0}, {sX}, 2"); a(f"s_mul_i32 {sT0}, {sT0}, 896")
    a(f"s_add_u32 {sOut}, {sOut}, {sT0}"); a(f"s_lshl_b32 {sT0}, {sR}, 5"); a(f"s_add_u32 {sOut}, {sOut}, {sT0}")
    a(f"v_lshrrev_b32 {t1}, 1, {vg}"); a(f"v_and_b32 {t2}, 1, {vg}"); a(f"v_lshl_add_u32 {t1}, {t2}, 1, {t1}")
    a(f"v_and_b32 {t2}, 3, {vn}"); a(f"v_lshl_add_u32 {t1}, {t2}, 2, {t1}"); a(f"v_lshlrev_b32 {t3}, 1, {t1}")
    a("s_waitcnt lgkmcnt(0)")
    a("s_barrier")
    a(f"ds_read_b32 v10, {vB} offset:{L_LOC}"); a(f"ds_read_b32 v11, {vB} offset:{L_CH}")
    a("s_waitcnt lgkmcnt(0)")
    a(f"v_readfirstlane_b32 {sLocal}, v10"); a(f"v_readfirstlane_b32 {sCh}, v11")
    a(f"s_lshr_b32 {sT0}, {sCh}, {sX}"); a(f"s_and_b32 {sT0}, {sT0}, 1"); a(f"s_lshl_b32 {sT0}, {sT0}, 13"); a(f"s_add_u32 {sIn}, {sIn}, {sT0}")
    if stamps:
        a(f"v_writelane_b32 v255, {sCh}, 30"); a(f"s_getreg_b32 {sT0}, hwreg(HW_REG_HW_ID)"); a(f"v_writelane_b32 v255, {sT0}, 27")
    a(f"s_cmp_lg_u32 {sLocal}, 1"); a("s_cbranch_scc1 L_gend")
    poll("L_g0", lambda: a(f"ds_read_b32 {vPw}, {vA4} offset:{L_PRG}"), lambda: a(f"v_cmp_eq_u32 vcc, 0, {vPw}"), sleep=4)
    if xm:
        for i in range(1, 8):
            a(f"s_add_u32 {sT0}, {sX}, {i}"); a(f"s_and_b32 {sT0}, {sT0}, 7")
            a(f"s_mul_i32 s{31+i}, {sT0}, 4352"); a(f"s_add_u32 s{31+i}, s{31+i}, {WS_GC + 8*4352}")
            a(f"s_mul_i32 s{47+i}, {sT0}, {gI // 8}"); a(f"s_sub_u32 s{47+i}, s{47+i}, {gI - gI // 8}")
        a(f"s_sub_u32 {sPo}, {sTg}, {gI}")
    a(f"s_mov_b32 {sSpin}, {spin}")
    a("L_gloop:")
    a(f"ds_read_b32 {vPw}, {vA4} offset:{L_PRG}")
    a(f"s_sub_u32 {sSpin}, {sSpin}, 1"); a(f"s_cmp_eq_u32 {sSpin}, 0"); a("s_cbranch_scc1 L_gend")
    a("s_waitcnt lgkmcnt(0)")
    a(f"v_add_u32_dpp {vP}, {vPw}, {vPw} {QP1}"); a(f"v_add_u32_dpp {vP}, {vP}, {vP} {QP2}")
    a("s_mov_b64 exec, 1")
    a(f"buffer_store_dword {vP}, off, {WS}, {sOff}")
    a(f"v_cmp_le_u32 vcc, {total - 4 * gstop}, {vP}")
    a("s_cbranch_vccnz L_gend")
    a("s_mov_b32 exec_lo, -1"); a("s_mov_b32 exec_hi, 1")
    a(f"buffer_load_dword {vB}, {vBo}, {WS}, {sG} offen sc1")
    a("s_mov_b64 exec, -1")
    if xm:
        a(f"s_cmp_eq_u32 {sTg}, -1"); a("s_cbranch_scc1 L_gnl")
        for i in range(1, 8): a(f"s_load_dwordx2 s[{4+2*i}:{5+2*i}], s[28:29], s{31+i} glc")
        a("L_gnl:")
    a(f"v_cvt_f32_u32 {t0}, {vP}")
    a(f"v_mul_f32 {t0}, {f2u(-gain)}, {t0}"); a(f"v_add_f32 {t0}, {f2u(th0 + 0.5 + gain * c0)}, {t0}")
    if gw:
        a(f"v_lshlrev_b32 {vPw}, 2, {vPw}"); a(f"v_sub_u32 {vPw}, {vP}, {vPw}"); a(f"v_cvt_f32_i32 {vPw}, {vPw}")
        a(f"v_mul_f32 {vPw}, {f2u(gw)}, {vPw}"); a(f"v_add_f32 {t0}, {t0}, {vPw}")
    a("s_waitcnt vmcnt(0)")
    a(f"v_add_u32_dpp {t1}, {vB}, {vB} row_ror:8 {FULL}")
    a(f"v_readlane_b32 {sT3}, {vB}, 32")
    for sft in (4, 2, 1): a(f"v_add_u32_dpp {t1}, {t1}, {t1} row_ror:{sft} {FULL}")
    a(f"v_readlane_b32 {sT0}, {t1}, 0"); a(f"v_readlane_b32 {sT1}, {t1}, 16")
    a(f"v_cvt_f32_i32 v11, {sT3}")
    a(f"s_add_u32 {sT2}, {sT0}, {sT1}")
    a(f"v_cvt_f32_u32 v10, {sT2}")
    if wg is not None:
        a(f"v_cvt_f32_u32 v17, {vP}"); a(f"v_mul_f32 v18, {f2u(-wk / 32)}, v10"); a(f"v_mul_f32 v19, {f2u(-wk / 256)}, v11")
        a(f"v_mul_f32 v17, {f2u(wk)}, v17"); a("v_add_f32 v18, v18, v19"); a("v_add_f32 v18, v18, v17")
        a(f"v_add_f32 v18, {f2u(total - wg - wk * c0)}, v18"); a("v_cvt_i32_f32 v18, v18"); a(f"v_min_i32 v18, {total + wcap}, v18")
    a(f"v_mul_f32 v10, {f2u(gain / 32)}, v10"); a(f"v_mul_f32 v11, {f2u(gain * gx / 256)}, v11")
    a(f"v_add_f32 {t0}, {t0}, v10"); a(f"v_add_f32 {t0}, {t0}, v11")
    if kup:
        a(f"v_add_f32 v10, {f2u(-(th0 + kat))}, {t0}"); a("v_max_f32 v10, 0, v10"); a(f"v_mul_f32 v10, {f2u(kup)}, v10"); a(f"v_add_f32 {t0}, {t0}, v10")
    a(f"v_cvt_i32_f32 {vTh}, {t0}")
    a(f"v_med3_i32 {vTh}, {vTh}, {thmin}, {thmax}")
    a(f"ds_write_b32 {vA4}, {vTh} offset:{L_TH}")
    if stamps: a(f"v_add_u32 v254, v254, {vTh}"); a("v_add_u32 v253, 1, v253")
    if xm:
        a(f"s_cmp_eq_u32 {sTg}, -1"); a("s_cbranch_scc1 L_gloop")
        a(f"s_sub_u32 {sT0}, {gc_}, {sT2}"); a(f"s_lshl3_add_u32 {sT0}, {sT0}, {sPo}")
        a("s_waitcnt lgkmcnt(0)")
        for i in range(1, 8):
            a(f"s_xor_b64 s[{4+2*i}:{5+2*i}], s[{4+2*i}:{5+2*i}], s[56:57]"); a(f"s_lshr_b64 s[4:5], s[{4+2*i}:{5+2*i}], 14")
            a(f"s_cselect_b32 s{4+2*i}, s{47+i}, s{4+2*i}"); a(f"s_add_u32 {sT0}, {sT0}, s{4+2*i}")
        a(f"v_mov_b32 v10, {sT0}")
        a("s_mov_b64 exec, 1")
        a(f"buffer_store_dword v10, off, {WS}, {sG} offset:128")
        a("s_mov_b64 exec, -1")
        a(f"s_cmp_lt_u32 {sT2}, {sTg}"); a("s_cbranch_scc1 L_gloop")
        a(f"s_xor_b32 {sT0}, {sT2}, s56")
        for i in range(4): a(f"v_mov_b32 v{12+i}, {'s57' if i & 1 else sT0}")
        a("s_mov_b64 exec, 0xff")
        a(f"buffer_store_dwordx4 v[12:15], {vL16}, {WS}, {sGa} offen sc1"); a("s_mov_b64 exec, -1")
        a(f"s_add_u32 {sTg}, {sTg}, {gI}"); a(f"s_mov_b32 {sPo}, {sT2}")
        a("s_branch L_gloop")
    else:
        a(f"s_cmp_lt_u32 {sT2}, {sTg}"); a("s_cbranch_scc1 L_gloop")
        a(f"s_xor_b32 {sT0}, {sT2}, s56")
        for i in range(4): a(f"v_mov_b32 v{12+i}, {'s57' if i & 1 else sT0}")
        a("s_mov_b64 exec, 0xff")
        a(f"buffer_store_dwordx4 v[12:15], {vL16}, {WS}, {sGa} offen sc1"); a("s_mov_b64 exec, -1")
        for i in range(1, 8):
            a(f"s_add_u32 {sT0}, {sX}, {i}"); a(f"s_and_b32 {sT0}, {sT0}, 7"); a(f"s_mul_i32 {sT0}, {sT0}, 4352"); a(f"s_add_u32 {sT0}, {sT0}, {WS_GC + 8*4352}")
            a(f"s_load_dwordx2 s[{4+2*i}:{5+2*i}], s[28:29], {sT0} glc")
        a(f"s_add_u32 {sTg}, {sTg}, {gI}")
        a(f"s_sub_u32 {sT0}, {gc_}, {sT2}"); a(f"s_mul_i32 {sT0}, {sT0}, 7")
        a("s_waitcnt lgkmcnt(0)")
        for i in range(1, 8):
            a(f"s_xor_b64 s[{4+2*i}:{5+2*i}], s[{4+2*i}:{5+2*i}], s[56:57]"); a(f"s_lshr_b64 s[4:5], s[{4+2*i}:{5+2*i}], 14")
            a(f"s_cselect_b32 s{4+2*i}, 0, s{4+2*i}"); a(f"s_add_u32 {sT0}, {sT0}, s{4+2*i}")
        a(f"v_mov_b32 v10, {sT0}")
        a("s_mov_b64 exec, 1")
        a(f"buffer_store_dword v10, off, {WS}, {sG} offset:128")
        a("s_mov_b64 exec, -1")
        a("s_branch L_gloop")
    a("L_gend:")
    a("s_mov_b64 exec, -1")
    if stamps:
        a(f"v_readfirstlane_b32 {sT0}, v254"); a(f"v_readfirstlane_b32 {sT1}, v253"); a("s_nop 3")
        a(f"v_writelane_b32 v255, {sT0}, 28"); a(f"v_writelane_b32 v255, {sT1}, 29")
    stamp("gov_end")
    if wg is not None:
        a(f"s_cmp_ge_u32 {sR}, 28"); a("s_cbranch_scc1 L_gnowo")
        def pchk():
            a(f"v_add_u32_dpp {vP}, {vPw}, {vPw} {QP1}"); a(f"v_add_u32_dpp {vP}, {vP}, {vP} {QP2}"); a(f"v_cmp_gt_i32 vcc, v18, {vP}")
        srd(4, "s90", "s91", 0 if nowo & 1 else 0x380000)
        poll("L_gw", lambda: a(f"ds_read_b32 {vPw}, {vA4} offset:{L_PRG}"), pchk)
        a(f"s_mov_b32 m0, {L_WOA}")
        for j in range(32):
            a(f"s_add_u32 {sT0}, s70, {8*896*(j & 15)}")
            a(f"buffer_load_dwordx4 {(vWo, vWo2)[j & 1]}, {('s[4:7]', 's[24:27]')[j >> 4]}, {sT0} offen {pol} lds")
            if j < 31: a("s_add_u32 m0, m0, 1024")
        a("L_gnowo:")
        stamp("wo_issued")
    a(f"s_cmp_ge_u32 {sR}, 28")
    for i in range(4 if g2 else 3):
        if wg is not None and i == (2 if g2 else 1): a("s_waitcnt vmcnt(0)")
        a("s_barrier")
    a("s_cbranch_scc1 L_g_fin")
    F = 64
    def gY():
        for k in range(2): a(f"buffer_load_dwordx4 {vr(F+4*k)}, {vL16}, {WS}, {sIn} offen offset:{1024*k} sc1")
    def y_chk():
        for i in range(8): a(f"v_xor_b32 v{F+i}, {YT[i & 3]}, v{F+i}")
        a(f"v_or3_b32 {t0}, v{F}, v{F+1}, v{F+2}"); a(f"v_or3_b32 {t2}, v{F+3}, v{F+4}, v{F+5}")
        a(f"v_or3_b32 {t0}, {t0}, v{F+6}, v{F+7}"); a(f"v_or_b32 {t0}, {t0}, {t2}")
        a(f"v_and_b32 {t0}, 0xfff, {t0}"); a(f"v_cmp_ne_u32 vcc, 0, {t0}")
    poll("L_f", gY, y_chk, masked=True)
    for e in range(4): a(f"v_add_f32 v{F+e}, v{F+e}, v{F+4+e}")
    a(f"v_permlane32_swap_b32 v{F}, v{F+1}"); a(f"v_permlane32_swap_b32 v{F+2}, v{F+3}")
    a(f"v_add_f32 v{F}, v{F}, v{F+1}"); a(f"v_add_f32 v{F+2}, v{F+2}, v{F+3}")
    a(f"v_permlane16_swap_b32 v{F}, v{F+2}")
    a(f"v_add_f32 v{F}, v{F}, v{F+2}")
    red("v_add_f32", f"v{F}", (4, 8))
    a(f"v_cvt_pk_bf16_f32 v{F}, v{F}, v{F}")
    a("s_mov_b32 exec_lo, 0x000f000f"); a("s_mov_b32 exec_hi, 0x000f000f")
    a(f"buffer_store_short v{F}, {t3}, {OUT}, {sOut} offen")
    a(f"s_cmp_eq_u32 {sWG}, 0"); a("s_cbranch_scc0 L_g_fin")
    a("v_mov_b32 v8, s56"); a("v_mov_b32 v9, s57"); a(f"s_mov_b32 {sT0}, {WS_EP}")
    a("s_mov_b64 exec, 1")
    a(f"buffer_store_dwordx2 v[8:9], off, {WS}, {sT0} sc1")
    a("L_g_fin:")
    finish()

    cur[0] = "h"
    a("L_helper:")
    a(f"s_cmp_eq_u32 {sW}, 5"); a("s_cbranch_scc1 L_gov")
    def code_pull(tagl, reg, st):
        a("s_getpc_b64 s[30:31]")
        a(f"{tagl}:")
        a(f"s_sub_u32 s30, s30, {tagl}-{NAME}_kernel"); a("s_subb_u32 s31, s31, 0")
        a(f"s_lshl_b32 {sT1}, {sR}, {st}")
        a(f"v_lshl_add_u32 {t0}, {vL}, {st + 5}, {sT1}")
        a(f"v_min_u32 {t0}, L_end-{NAME}_kernel, {t0}")
        a(f"s_mov_b64 exec, {0x1f if st == 7 else 0xfff}")
        a(f"global_load_dword {reg}, {t0}, s[30:31]")
        a("s_mov_b64 exec, -1")
    if pf == 1: code_pull("L_pc", "v2", 7)
    if pf == 2: code_pull("L_pc", "v2", 6)
    XOP = 64; WOP = 96; QD = 208
    vXo = "v5"; vL8 = "v7"; vQt = "v17"
    a(f"v_lshrrev_b32 {t3}, 3, {vL}"); a(f"v_and_b32 {t2}, 7, {vL}"); a(f"v_lshlrev_b32 {t2}, 4, {t2}")
    a(f"v_lshl_add_u32 {vKo}, {t3}, 13, {t2}")
    a(f"v_and_b32 {vXo}, 3, {vL}"); a(f"v_mul_u32_u24 {vXo}, 896, {vXo}"); a(f"v_lshl_add_u32 {vXo}, {vg}, 4, {vXo}")
    a(f"s_bfe_u32 s44, {sR}, 0x10003")
    a(f"s_add_u32 s45, {sR}, {cbd}"); a("s_and_b32 s45, s45, 7"); a(f"s_lshl3_add_u32 s45, {sX}, s45")
    a(f"s_mul_i32 s46, {sT0}, {8*bx}"); a("s_xor_b32 s47, s45, s46")
    a(f"s_mul_i32 s46, s44, {224*8192}"); a("s_lshl_b32 s47, s47, 7"); a(f"s_add_u32 {sOff}, s46, s47")
    a(f"s_mul_i32 {sT2}, s44, 448")
    srd(32, None, None, 0 if nowo & 4 else 0x380000); srd(36, None, None, 0 if nox else 3584)
    a(f"s_mov_b32 m0, {L_WQ}")
    a(f"s_cmp_eq_u32 {sT0}, 0")
    a("s_waitcnt lgkmcnt(0)")
    a("s_cselect_b32 s32, s10, s20"); a("s_cselect_b32 s33, s11, s21")
    a("s_cselect_b32 s36, s4, s14"); a("s_cselect_b32 s37, s5, s15")
    tag_load()
    idk = []
    if wt is not None:
        a(f"v_lshlrev_b32 {t0}, 13, {t3}"); a(f"v_lshl_add_u32 {t0}, {t2}, 3, {t0}")
        a(f"s_and_b32 s40, {sR}, 15"); a(f"s_mul_i32 s40, s40, {28*8192}"); a(f"s_lshl_b32 s41, {sX}, 10"); a("s_add_u32 s40, s40, s41")
        for i in range(4):
            if i == 3: a("s_mov_b32 exec_hi, 0")
            a(f"buffer_load_dword v{8+i}, {t0}, {WQ}, s40 offen {wt}")
            if i < 3: a("s_add_u32 s40, s40, 65536")
        a("s_mov_b32 exec_hi, -1")
        if wtw: a("s_waitcnt vmcnt(0)")
        stamp("touched")
    if krot or krp:
        a(f"s_mul_i32 s40, s44, {krot}"); a(f"s_mul_i32 s41, {sT0}, {krp}"); a("s_add_u32 s40, s40, s41")
        a("s_cmp_ge_u32 s40, 7"); a("s_cselect_b32 s41, 7, 0"); a("s_sub_u32 s40, s40, s41")
        a("s_lshl_b32 s41, s40, 18"); a(f"s_add_u32 {sOff}, {sOff}, s41"); a("s_lshl_b32 s41, s40, 6"); a(f"s_add_u32 {sT2}, {sT2}, s41")
    for k in range(7):
        a(f"buffer_load_dwordx4 {vr(XOP+4*k)}, {vXo}, {XS}, {sT2} offen offset:{0 if krot or krp else 64*k}")
        if wqt and k >= wqt: a.wait_vm(idk[k - wqt])
        for j in range(4):
            r = a(f"buffer_load_dwordx4 {vKo}, {WQ}, {sOff} offen {pol} lds")
            if k < 6 or j < 3:
                a("s_add_u32 m0, m0, 1024"); a(f"s_add_u32 {sOff}, {sOff}, 65536")
        if (krot or krp) and k < 6:
            a(f"s_cmp_eq_u32 s40, {6 - k}"); a(f"s_cselect_b32 s41, {7 << 18}, 0"); a(f"s_cselect_b32 s42, {-6 << 6}, 64")
            a(f"s_sub_u32 {sOff}, {sOff}, s41"); a(f"s_add_i32 {sT2}, {sT2}, s42")
        idk.append(r)
    stamp("wq_issued")
    sQs = "s64"; sMc = "s48"; sPa = "s49"; sPb = "s50"; sBz = "s51"; sRd = "s69"; sFl = "s70"
    a(f"s_lshl1_add_u32 {sQs}, {sT0}, s44"); a(f"s_lshl_b32 {sQs}, {sQs}, 16"); a("s_lshl_b32 s46, s45, 10"); a(f"s_add_u32 {sQs}, {sQs}, s46")
    a(f"s_lshl3_add_u32 {sMc}, {sT0}, {sX}"); a(f"s_and_b32 {sT3}, {sR}, 15"); a(f"s_lshl4_add_u32 {sMc}, {sMc}, {sT3}")
    a(f"s_lshl_b32 {sMc}, {sMc}, 7"); a(f"s_add_u32 {sMc}, {sMc}, {WS_ML}")
    srd(60, "s28", "s29", WS_END)
    unit(1); unit_v()
    a(f"s_lshl_b32 {sRecA}, {sH}, 14"); a(f"s_add_u32 {sRecA}, {sRecA}, {WS_PO}")
    a(f"s_lshl_b32 {sRecB}, {sX}, 15"); a(f"s_add_u32 {sRecB}, {sRecB}, {WS_PO + 16*16384}")
    a(f"s_lshl_b32 {sPa}, {sT3}, 9"); a(f"s_add_u32 {sPa}, {sPa}, {sRecA}")
    a(f"s_lshl_b32 {sPb}, {sR}, 9"); a(f"s_add_u32 {sPb}, {sPb}, {sRecB}")
    a(f"v_and_b32 {t0}, 31, {vL}"); a(f"v_lshlrev_b32 {t0}, 4, {t0}"); a(f"v_lshrrev_b32 {t1}, 5, {vL}"); a(f"v_lshl_add_u32 v18, {t1}, 14, {t0}")
    a(f"s_lshl4_add_u32 {sRecA}, {sT3}, {sRecA}")
    a(f"s_lshr_b32 {sT0}, {sR}, 3"); a(f"s_and_b32 {sT1}, {sR}, 3"); a(f"s_lshl2_add_u32 {sT0}, {sT0}, {sT1}"); a(f"s_lshl4_add_u32 {sRecB}, {sT0}, {sRecB}")
    a(f"s_bfe_u32 {sT0}, {sR}, 0x10002"); a(f"s_lshl_b32 {sT0}, {sT0}, 13"); a(f"s_add_u32 {sRecB}, {sRecB}, {sT0}")
    a(f"v_lshrrev_b32 {t0}, 1, {vL}"); a(f"v_lshlrev_b32 {t0}, 8, {t0}"); a(f"v_and_b32 {t1}, 1, {vL}"); a(f"v_lshl_add_u32 {vPa}, {t1}, 3, {t0}")
    a(f"s_mul_i32 {sRd}, {sX}, 4352"); a(f"s_add_u32 {sRd}, {sRd}, {WS_GC}")
    a(f"s_cmp_eq_u32 {sR}, 0"); a(f"s_cselect_b32 {sBz}, {sRd}, {OOB}")
    a(f"s_lshl_b32 {sFl}, {sX}, 12"); a(f"s_add_u32 {sFl}, {sFl}, {WS_FL}")
    for i in range(4): a(f"v_mov_b32 v{AOP+i}, -1")
    for i in range(4): a(f"v_mov_b32 v{ACC+i}, 0")
    a(f"v_lshlrev_b32 {vL16}, 4, {vL}"); a(f"v_lshlrev_b32 {vL8}, 3, {vL}"); a(f"v_lshlrev_b32 {t3}, 7, {vL}")
    a(f"v_and_b32 {t0}, 3, {vn}"); a(f"v_lshlrev_b32 {t0}, 8, {t0}"); a(f"v_lshrrev_b32 {t1}, 2, {vn}")
    a(f"v_lshl_add_u32 {t0}, {t1}, 6, {t0}"); a(f"v_lshl_add_u32 {vQt}, {vg}, 4, {t0}")
    def hello_ld(): a(f"buffer_load_dwordx2 v[12:13], {t3}, {WS}, {sFl} offen sc1")
    for k in range(8):
        if k < 7: a.wait_vm(idk[k])
        if k == hk:
            a("s_mov_b32 exec_hi, 0"); hello_ld(); a("s_mov_b32 exec_hi, -1")
        if k: a("s_waitcnt lgkmcnt(0)")
        if k < 7:
            for c in range(4):
                a(f"ds_read_b64_tr_b16 {vr(WOP+16*(k%3)+4*c,2)}, {vTr} offset:{L_WQ + k*4096 + 32*c}")
                a(f"ds_read_b64_tr_b16 {vr(WOP+16*(k%3)+4*c+2,2)}, {vTr} offset:{L_WQ + k*4096 + 32*c + 512}")
        if k:
            for c in range(4):
                a(f"v_mfma_f32_16x16x32_bf16 {vr(QD+4*c)}, {vr(WOP+16*((k-1)%3)+4*c)}, {vr(XOP+4*(k-1))}, {vr(QD+4*c) if k > 1 else 0}")
    tag_make()
    for c in range(1, 4):
        for e in range(4):
            a(f"v_mov_b32_dpp v{QD+e}, v{QD+4*c+e} quad_perm:[0,1,2,3] row_mask:0xf bank_mask:{1<<c}")
    a(f"ds_write_b128 {vQt}, {vr(QD)} offset:{L_PART}")
    a(f"ds_read_b128 {vr(QD)}, {vL16} offset:{L_PART}")
    stamp("q_done")
    a("s_waitcnt vmcnt(0) lgkmcnt(0)")
    a("s_mov_b32 exec_hi, 0")
    poll("L_fl", hello_ld, lambda: tag_chk([12]), sleep=16, masked=True, first_issued=True)
    a("v_cmp_ne_u32 vcc, s59, v13")
    a("s_cmp_eq_u32 vcc_lo, 0"); a(f"s_cselect_b32 {sLocal}, {2 if force_remote else 1}, 2")
    stamp("hello_seen")
    a("v_mov_b32 v8, s56"); a("v_mov_b32 v9, s59")
    a(f"s_lshl3_add_u32 {sT1}, {sR}, {sRd}")
    def first_stores(b):
        a(f"buffer_store_dwordx4 {vr(QD)}, {vL16}, {WS}, {sQs} offen{b}")
        a(f"buffer_store_dwordx4 {vr(AOP)}, v18, {WS}, {sPb} offen{b}")
        a("s_mov_b32 exec_hi, 0")
        a(f"buffer_store_dwordx4 {vr(AOP)}, v18, {WS}, {sPa} offen{b}")
        a("s_mov_b32 exec_lo, 0xffff")
        a(f"buffer_store_dwordx4 {vr(ACC)}, {vL16}, {WS}, {sBz} offen{b}")
        a("s_mov_b32 exec_lo, 0xff")
        a(f"buffer_store_dwordx4 {vr(AOP)}, {vL16}, {WS}, {sMc} offen{b}")
        a("s_mov_b32 exec_lo, 1")
        a("s_waitcnt vmcnt(0)")
        a(f"buffer_store_dwordx2 v[8:9], off, {WS}, {sT1} offset:256{b}")
    by_placement("first", first_stores)
    a("s_mov_b32 exec_lo, -1")
    stamp("ready")
    poll("L_rd", lambda: a(f"buffer_load_dwordx2 v[12:13], {vL8}, {WS}, {sRd} offen offset:256 sc1"), lambda: tag_chk([12]), sleep=hsleep, masked=True)
    stamp("go_seen")
    a(f"v_lshlrev_b32 {t0}, 4, {vn}"); a(f"v_lshl_add_u32 {t0}, {vg}, 10, {t0}")
    a(f"s_lshr_b32 {sT0}, {sR}, 3"); a(f"s_lshl_b32 {sT0}, {sT0}, 8"); a(f"s_lshl_b32 {sT1}, {sX}, 13"); a(f"s_add_u32 {sT0}, {sT0}, {sT1}")
    a(f"s_add_u32 {sT0}, {sT0}, 0x20000")
    a(f"s_lshl4_add_u32 {sT2}, {sH}, {sB}"); a(f"s_lshl_b32 {sT2}, {sT2}, 8")
    for u in (2, 0, 1):
        for kh in range(2):
            a(f"s_add_u32 {sT1}, {sT2 if u == 2 else sT0}, {kh * 0x10000 + (4096 if u == 1 else 0)}")
            a(f"buffer_load_dwordx4 {vr(64+8*u+4*kh)}, {t0}, {WS}, {sT1} offen sc1")
    a(f"s_mov_b32 {sT1}, {WS_CH}")
    a("s_mov_b64 exec, 0xff")
    poll("L_ch", lambda: a(f"buffer_load_dwordx2 v[12:13], {t3}, {WS}, {sT1} offen sc1"), lambda: tag_chk([12]), masked=True, sleep=1)
    for bit, dst in ((1, sT0), (2, sT1), (4, sCh)):
        a(f"v_and_b32 v12, {bit}, v13"); a("v_cmp_ne_u32 vcc, 0, v12"); a(f"s_and_b32 {dst}, vcc_lo, 0xff")
    a(f"s_bcnt1_i32_b32 {sT0}, {sT0}"); a(f"s_bcnt1_i32_b32 {sT1}, {sT1}")
    a(f"s_cmp_gt_u32 {sT1}, {sT0}"); a(f"s_cselect_b32 {sT0}, 0xff, 0"); a(f"s_xor_b32 {sCh}, {sCh}, {sT0}")
    a(f"v_mov_b32 {t0}, {L_LOC}"); a(f"v_mov_b32 {t1}, {sLocal}"); a(f"v_mov_b32 {t2}, {sCh}"); a(f"ds_write2_b32 {t0}, {t1}, {t2} offset0:0 offset1:1")
    for u in range(3):
        for e in range(4): a(f"v_add_f32 v{64+8*u+e}, v{64+8*u+e}, v{64+8*u+4+e}")
        for e in range(2): a(f"v_cvt_pk_bf16_f32 v{64+8*u+e}, v{64+8*u+2*e}, v{64+8*u+2*e+1}")
        a(f"ds_write_b64 {vL8}, {vr(64+8*u,2)} offset:{L_Q+512*u}")
    a("s_waitcnt lgkmcnt(0)")
    stamp("q_in_lds")
    a("s_barrier")
    a(f"v_mov_b32 {t3}, 0")
    if vt:
        a(f"s_lshl4_add_u32 s40, {sB}, {sH}"); a("s_lshl_b32 s40, s40, 21")
        a(f"s_andn2_b32 s41, {sR}, 7"); a(f"s_add_u32 s41, s41, {sX}"); a("s_lshl_b32 s41, s41, 21"); a("s_add_u32 s41, s41, 0x180000")
        for pp, o in ((16, "s41"), (18, "s41"), (8, "s40"), (12, sU), (22, sU)):
            a(f"s_add_u32 s{pp}, s{pp}, {o}"); a(f"s_addc_u32 s{pp+1}, s{pp+1}, 0")
        if vt > 1:
            a(f"s_mul_i32 {sT0}, {sR}, {vt - 1}")
            def vchk():
                a("v_add3_u32 v8, v8, v9, v10"); a("v_add_u32 v8, v8, v11"); a(f"v_cmp_ge_u32 vcc, {sT0}, v8")
            poll("L_vt", lambda: a(f"ds_read_b128 v[8:11], {t3} offset:{L_PRG}"), vchk, sleep=2)
        a("s_mov_b64 exec, 1")
        for i, pp in enumerate((16, 18, 8)): a(f"global_load_dword v{12+i}, {t3}, s[{pp}:{pp+1}] {pol}")
        if vtw:
            a(f"s_cmp_ge_u32 {sR}, 28"); a("s_cbranch_scc1 L_vt_nw")
            for i, pp in enumerate((12, 22)): a(f"global_load_dword v{20+i}, {t3}, s[{pp}:{pp+1}] {pol}")
            a("L_vt_nw:")
        a("s_mov_b64 exec, -1")
    poll("L_cnt", lambda: a(f"ds_read_b32 v8, {t3} offset:{L_CNT}"), lambda: a("v_cmp_ne_u32 vcc, 4, v8"), sleep=16)
    stamp("B_in_lds")
    CB = 184
    def combine(u):
        for w in range(4): a(f"ds_read_b128 {vr(CB+4*w)}, {vL16} offset:{L_PART + 4096*u + 1024*w}")
        a("s_waitcnt lgkmcnt(0)" if stamps else "s_waitcnt lgkmcnt(2)")
        for e in range(4): a(f"v_add_f32 v{CB+e}, v{CB+e}, v{CB+4+e}")
        a("s_waitcnt lgkmcnt(0)")
        for e in range(4): a(f"v_add_f32 v{CB+8+e}, v{CB+8+e}, v{CB+12+e}")
        for e in range(4): a(f"v_add_f32 v{CB+e}, v{CB+e}, v{CB+8+e}")
        for e in range(2): a(f"v_cvt_pk_bf16_f32 v{CB+e}, v{CB+2*e}, v{CB+2*e+1}")
        for e in range(2): a(f"v_min_u32 v{CB+16+2*u+e}, -2, v{CB+e}")
    def publish(u, so):
        by_placement(f"pub{u}", lambda b: a(f"buffer_store_dwordx2 {vr(CB+16+2*u,2)}, {vPa}, {WS}, {so} offen{b}"), have_scc=True)
    a(f"s_add_u32 {sT0}, {sRecB}, 16384")
    a(f"s_cmp_eq_u32 {sLocal}, 1")
    for u in range(2):
        combine(u); publish(u, (sRecB, sT0)[u])
    a(f"s_cmp_ge_u32 {sR}, 28"); a("s_cbranch_scc1 L_h_nos2")
    GB = 128; OB = 64
    a(f"s_add_u32 {sT0}, {sG}, 8192")
    def gB():
        for st in range(2):
            for k in range(4): a(f"buffer_load_dwordx4 {vr(GB+16*st+4*k)}, {vGo}, {WS}, {(sG, sT0)[st]} offen offset:{1024*k} sc1")
    poll("L_s2b", gB, lambda: sentinel(range(GB, GB + 32)), sleep=16, masked=True)
    for i in range(16):
        a(f"v_lshlrev_b32 v{160+i}, 16, v{GB+i}"); a(f"v_lshlrev_b32 {t0}, 16, v{GB+16+i}")
        a(f"v_and_b32 v{GB+i}, 0xffff0000, v{GB+i}"); a(f"v_and_b32 v{GB+16+i}, 0xffff0000, v{GB+16+i}")
        a(f"v_add_f32 v{160+i}, v{160+i}, {t0}"); a(f"v_add_f32 v{GB+i}, v{GB+i}, v{GB+16+i}")
    for qp in (QP1, QP2):
        for i in range(16):
            a(f"v_add_f32_dpp v{160+i}, v{160+i}, v{160+i} {qp}"); a(f"v_add_f32_dpp v{GB+i}, v{GB+i}, v{GB+i} {qp}")
    for i in range(16): a(f"v_cvt_pk_bf16_f32 v{GB+i}, v{160+i}, v{GB+i}")
    for k in range(4): a(f"ds_write_b128 {vL16}, {vr(GB+4*k)} offset:{L_PART + 1024*k}")
    a("L_h_nos2:")
    stamp("oB_ready")
    a(f"s_cmp_eq_u32 {sLocal}, 1")
    a("s_waitcnt lgkmcnt(0)")
    a("s_barrier")
    combine(2); publish(2, sRecA)
    stamp("published")
    for i in range(3 if g2 else 2): a("s_barrier")
    if stamps: finish()
    a("L_end:")
    a("s_endpgm")
    a.pad()
    global STAMP_NAMES
    STAMP_NAMES = {k: v[:-1] for k, v in names.items()}
    head = HEADER + f"; @launch grid=(256,1,1) block=({64*NW},1,1) lds={L_KB + NL * 4096}\n"
    head += f'.amdgcn_target "amdgcn-amd-amdhsa--gfx950"\n.text\n.globl {NAME}_kernel\n.p2align 8\n.type {NAME}_kernel,@function\n{NAME}_kernel:\n'
    nv = 256 if stamps else max(RING + 4 * RP, 224)
    assert not (stamps and RP > 47)
    tail = f'''.section .rodata,"a"
.p2align 6
.amdhsa_kernel {NAME}_kernel
  .amdhsa_next_free_vgpr {nv}
  .amdhsa_next_free_sgpr 102
  .amdhsa_accum_offset {nv}
  .amdhsa_group_segment_fixed_size 0
  .amdhsa_kernarg_size 104
  .amdhsa_user_sgpr_count 2
  .amdhsa_user_sgpr_kernarg_segment_ptr 1
  .amdhsa_system_sgpr_workgroup_id_x 1
  .amdhsa_float_denorm_mode_32 3
.end_amdhsa_kernel
'''
    return head + a.text() + tail

if __name__ == "__main__":
    kw = eval("dict(" + (sys.argv[2] if len(sys.argv) > 2 else "") + ")")
    open(sys.argv[1], "w").write(gen(**kw))
```

```python
import os, sys, struct
from asmlib import Asm
def f2u(x): return struct.unpack('<I', struct.pack('<f', x))[0]

NAME = "concat_heads__mha_block_cached__sliding_block_cached__decode"
_ref = "cdna_kernels/" + NAME + ".s.ref"
HEADER = open(_ref).read().split("; Override launch")[0] if os.path.exists(_ref) else ""

WS_QP = 0x0
WS_ML = 0x40000
WS_PO = 0x48000
WS_FL = 0xC8000
WS_GC = 0xD0000
WS_EP = 0xE4000
WS_CH = 0xE5000
WS_Y = 0x100000
YG = 7 * 16384
WS_END = WS_Y + 8 * YG
WS_STAMP = 0x400000
L_WQ = 0
L_WOA = 0
L_WOB = 16384
L_PART = 32768
L_Q = L_PART + 12288
L_CNT = L_Q + 1536
L_LOC = L_CNT + 4
L_CH = L_CNT + 8
L_PRG = L_CNT + 16
L_TH = L_CNT + 32
L_KB = L_CNT + 512
OOB = 0x40000000
TAGC = (0x9E3779B9, 0x7F4A7C15)
CSCALE = 0x3DB8AA3B
NW = 6

def brev(j, bits): return int(f"{j:0{bits}b}"[::-1], 2)
FULL = "row_mask:0xf bank_mask:0xf"
QP1 = "quad_perm:[1,0,3,2] " + FULL
QP2 = "quad_perm:[2,3,0,1] " + FULL

def gen(D=5, D0=5, ND0=12, RP=46, NL=12, ratio=6, stamps=False, fine=False, spin=1 << 19, pol="nt", force_remote=False,
        th0=4.15, thmin=3, gain=0.125, gw=0.08, gx=0.75, gstop=3, gI=1536, gc=1130, c0=6,
        rot=1, rotx=4, rotm=1, tlb=False, wod=2, wpos=0, g2=True, hk=6, hsleep=2, near=None, nrace=4, ml0=4, ml1=6, nowo=0, swz=True, vt=0, pf=2, bx=0, ila=2, ilb=1, rp=4, rph=0, lay=0, kv=0, wqt=0, pbar=4, xm=1, wg=None, wk=1.0, wcap=8, wfake=0, wbe=0, hb=None, rx=None, vtw=False, krot=5, krp=3, cbd=0, nox=False, wt=None, wtw=True, LG=16, thmax=12, nboost=24, xa=(), xb=(), kup=2.0, kat=2.0, probe=None):
    a = Asm()
    NTOT = 288; RT = RP + NL; thmax = min(thmax, LG - 2)
    sWG = "s2"; sW = "s3"
    KA, VA, KB, VB, WQ, XS, WS, OUT, WOA, WOB = (f"s[{i}:{i+3}]" for i in (32, 36, 40, 44, 32, 36, 60, 44, 48, 52))
    sLb = "s64"
    sX, sR, sH, sB = "s72", "s73", "s74", "s75"
    sOff = "s76"; sCnt = "s77"; sT0 = "s78"; sT1 = "s79"; sT2 = "s80"; sT3 = "s81"
    sRecA = "s82"; sRecB = "s83"; sG = "s84"; sY = "s85"; sU = "s86"; sC = "s87"; sSpin = "s88"; sLocal = "s89"
    sMk1 = "s[90:91]"; sMk0 = "s[92:93]"; sTh = "s94"; sRot = "s95"
    vL = "v0"; vKo = "v1"; vM = [f"v{i}" for i in range(2, 6)]
    QA = 6; QB = 14; SP = 30; AOP = 34; ACC = 38
    T = ["v46", "v47"]; U = ["v48", "v49"]; V = ["v50", "v51"]; X = ["v52", "v53"]
    t0, t1, t2, t3 = "v54", "v55", "v56", "v57"
    vm, vl, vg, vn = "v58", "v59", "v60", "v61"
    vmB, vlB = "v62", "v63"
    RING = 64
    OBS = 96; WTB = 112; ACCB = 128; SB = "v136"; vfA = "v137"; MLG = 138; WT = 144; G = 160
    vGo = "v176"; vYo = "v177"; vTr = "v178"; vPa = "v179"; vPrg = "v180"; vPrA = "v181"; vTH = "v182"; vWo = "v183"; vYm = "v206"; vYt = "v207"; vYb = "v184"; vWo2 = "v185"
    def slot(k): return RING + 4 * k
    def vr(i, n=4): return f"v[{i}:{i+n-1}]"
    names = {"s": [], "h": [], "g": []}
    cur = ["s"]
    def stamp(name):
        if probe and name == "start": a("s_memrealtime s[96:97]")
        if probe and (cur[0], name) == probe[:2]: a("s_memrealtime s[20:21]"); a("s_waitcnt lgkmcnt(0)")
        if not stamps: return
        nm = names[cur[0]]
        if nm:
            a("s_waitcnt lgkmcnt(0)")
            a(f"v_writelane_b32 v255, s96, {len(nm)-1}")
        nm.append(name)
        a("s_memrealtime s[96:97]")
    def finish():
        if probe and cur[0] == probe[0]:
            if probe[1] == "end": a("s_memrealtime s[20:21]"); a("s_waitcnt lgkmcnt(0)")
            a("s_sub_u32 s20, s20, s96"); a(f"s_mul_i32 s20, s20, {probe[2]}"); a(f"s_add_u32 s20, s20, {probe[4]}")
            if probe[3] is not None: a(f"s_cmp_eq_u32 {sR}, {probe[3]}"); a("s_cselect_b32 s20, s20, 0")
            a("s_min_u32 s20, s20, 40000")
            a("L_probe:"); a("s_memrealtime s[22:23]"); a("s_waitcnt lgkmcnt(0)"); a("s_sub_u32 s22, s22, s96"); a("s_cmp_lt_u32 s22, s20"); a("s_cbranch_scc1 L_probe")
        if stamps:
            a("s_mov_b64 exec, -1")
            stamp("end"); a("s_waitcnt vmcnt(0)"); stamp("acked"); stamp("x")
            a("s_mov_b32 exec_hi, 0")
            a(f"s_mul_i32 {sT0}, {sWG}, {NW}"); a(f"s_add_u32 {sT0}, {sT0}, {sW}"); a(f"s_lshl_b32 {sT0}, {sT0}, 7"); a(f"s_add_u32 {sT0}, {sT0}, {WS_STAMP}")
            a(f"v_lshl_add_u32 {t0}, {vL}, 2, {sT0}")
            a(f"global_store_dword {t0}, v255, s[28:29]")
        a("s_endpgm")
    def srd(i, lo, hi, size):
        if lo is not None: a(f"s_mov_b32 s{i}, {lo}"); a(f"s_mov_b32 s{i+1}, {hi}")
        a(f"s_mov_b32 s{i+2}, {size}"); a(f"s_mov_b32 s{i+3}, 0x20000")
    def poll(name, loads, check, sleep=0, first_issued=False, masked=False):
        sv = a.vm_seq
        a(f"s_mov_b32 {sSpin}, {spin}")
        if first_issued: a(f"s_branch {name}_chk")
        a(f"{name}:")
        if sleep: a(f"s_sleep {sleep}")
        loads()
        a(f"s_sub_u32 {sSpin}, {sSpin}, 1"); a(f"s_cmp_eq_u32 {sSpin}, 0")
        a("s_waitcnt vmcnt(0) lgkmcnt(0)")
        a(f"s_cbranch_scc1 {name}_go")
        if first_issued: a(f"{name}_chk:")
        check()
        if masked:
            a("s_and_b64 exec, exec, vcc")
            a(f"s_cbranch_scc1 {name}")
        else:
            a(f"s_cbranch_vccnz {name}")
        a(f"{name}_go:")
        if masked: a("s_mov_b64 exec, -1")
        if first_issued: a.vm_seq = sv
    def by_placement(tag, emit, have_scc=False):
        if not have_scc: a(f"s_cmp_eq_u32 {sLocal}, 1")
        a(f"s_cbranch_scc1 L_{tag}_l")
        sv = a.vm_seq
        emit(" sc1"); a.vm_seq = sv
        a(f"s_branch L_{tag}_d")
        a(f"L_{tag}_l:")
        emit("")
        a(f"L_{tag}_d:")
    def sentinel(regs):
        regs = list(regs); accs = [t0, t2]
        a(f"v_max_u32 {t0}, v{regs[0]}, v{regs[1]}"); a(f"v_max_u32 {t2}, v{regs[2]}, v{regs[3]}")
        for i in range(4, len(regs), 2):
            c = accs[(i >> 1) & 1]
            a(f"v_max3_u32 {c}, {c}, v{regs[i]}, v{regs[i+1]}")
        a(f"v_max_u32 {t0}, {t0}, {t2}")
        a(f"v_cmp_eq_u32 vcc, -1, {t0}")
    def red(op, r, steps):
        for s in steps:
            if s in (16, 32):
                a(f"v_mov_b32 {t1}, {r}"); a(f"v_permlane{s}_swap_b32 {r}, {t1}"); a(f"{op} {r}, {r}, {t1}")
            elif s == "q1": a(f"{op}_dpp {r}, {r}, {r} {QP1}")
            elif s == "q2": a(f"{op}_dpp {r}, {r}, {r} {QP2}")
            else: a(f"{op}_dpp {r}, {r}, {r} row_ror:{s} {FULL}")
    def rnd(r):
        a(f"v_cvt_pk_bf16_f32 {r}, {r}, {r}"); a(f"v_and_b32 {r}, 0xffff0000, {r}")
    def unit(P):
        a(f"s_mul_i32 {sT0}, {sR}, 37"); a(f"s_lshr_b32 {sT0}, {sT0}, 8")
        a(f"s_mul_i32 {sT1}, {sT0}, 7"); a(f"s_sub_u32 {sT1}, {sR}, {sT1}")
        a(f"s_lshl_b32 {sT2}, {sX}, 2"); a(f"s_add_u32 {sT0}, {sT0}, {sT2}")
        a(f"s_mul_i32 {sU}, {sT0}, {128*896}"); a(f"s_lshl_b32 {sT2}, {sT1}, 7"); a(f"s_add_u32 {sU}, {sU}, {sT2}")
        a(f"s_lshr_b32 {sG}, {sT0}, 1"); a(f"s_lshl_b32 {sG}, {sG}, 14"); a(f"s_and_b32 {sT2}, {sT0}, 1"); a(f"s_lshl_b32 {sT2}, {sT2}, 12")
        a(f"s_add_u32 {sG}, {sG}, {sT2}"); a(f"s_add_u32 {sG}, {sG}, {WS_PO + P*512*512}")
        a(f"s_lshl_b32 {sY}, {sT1}, 14"); a(f"s_lshl_b32 {sT2}, {sT0}, 6"); a(f"s_add_u32 {sY}, {sY}, {sT2}")
        a(f"s_add_u32 {sY}, {sY}, {WS_Y}")
    def unit_v():
        a(f"v_lshrrev_b32 {t0}, 2, {vn}"); a(f"v_and_b32 {t2}, 3, {vn}")
        a(f"v_lshlrev_b32 {vGo}, 4, {vL}")
        a(f"v_lshl_add_u32 {vTr}, {vg}, 3, {t0}"); a(f"v_lshlrev_b32 {vTr}, 7, {vTr}"); a(f"v_lshl_add_u32 {vTr}, {t2}, 3, {vTr}")
        a(f"v_lshrrev_b32 {t0}, 3, {vL}"); a(f"v_mul_u32_u24 {t0}, 896, {t0}"); a(f"v_and_b32 {t2}, 7, {vL}"); a(f"v_lshl_add_u32 {vWo}, {t2}, 4, {t0}")
    sCh = "s71"
    def y_base(dst, P):
        a(f"v_add_u32 {t0}, {4*P}, {vg}"); a(f"v_mul_u32_u24 {dst}, {YG}, {t0}")
        a(f"v_bfe_u32 {t2}, {sCh}, {t0}, 1"); a(f"v_lshl_add_u32 {dst}, {t2}, 13, {dst}"); a(f"v_lshl_add_u32 {dst}, {vn}, 2, {dst}")
    def tag_load(): a(f"s_load_dwordx2 s[56:57], s[28:29], {WS_EP}")
    def tag_make():
        a(f"s_add_u32 s56, s56, {TAGC[0]}"); a(f"s_addc_u32 s57, s57, {TAGC[1]}"); a("s_lshr_b32 s58, s57, 4")
        a(f"s_getreg_b32 {sT0}, hwreg(HW_REG_XCC_ID, 0, 4)")
        a("s_lshl_b32 s59, s58, 4"); a(f"s_or_b32 s59, s59, {sT0}")
    def tag_chk(regs):
        for i, r in enumerate(regs):
            a(f"v_lshrrev_b32 {t1}, 4, v{r+1}"); a(f"v_xor_b32 {t1}, s58, {t1}"); a(f"v_xor_b32 {t2}, s56, v{r}")
            if i: a(f"v_or3_b32 {t0}, {t0}, {t1}, {t2}")
            else: a(f"v_or_b32 {t0}, {t1}, {t2}")
        a(f"v_cmp_ne_u32 vcc, 0, {t0}")

    YT = ["s65", "s66", "s67", "s68"]
    def ytag_make():
        a(f"s_and_b32 {YT[0]}, s56, 0xfff"); a(f"s_bfe_u32 {YT[1]}, s56, 0xc000c")
        a(f"s_and_b32 {YT[2]}, s58, 0xfff"); a(f"s_bfe_u32 {YT[3]}, s58, 0xc000c")
    def y_seal(r):
        a(f"v_add_u32 v{r}, 0x800, v{r}"); a(f"v_and_or_b32 v{r}, v{r}, {vYm}, {vYt}")

    a("s_load_dwordx16 s[4:19], s[0:1], 0")
    a("s_load_dwordx8 s[20:27], s[0:1], 64")
    a("s_load_dwordx2 s[28:29], s[0:1], 96")
    stamp("start"); names["h"] = list(names["s"]); names["g"] = list(names["s"])
    a(f"s_cmp_ge_u32 {sWG}, 256")
    a("s_cbranch_scc1 L_end")
    a(f"v_lshrrev_b32 {t2}, 6, v0")
    a(f"v_and_b32 {vL}, 63, v0")
    a(f"v_readfirstlane_b32 {sW}, {t2}")
    a(f"v_lshrrev_b32 {vg}, 4, {vL}")
    a(f"v_and_b32 {vn}, 15, {vL}")
    a(f"s_and_b32 {sX}, {sWG}, 7")
    a(f"s_lshr_b32 {sR}, {sWG}, 3")
    a(f"s_lshr_b32 {sT0}, {sWG}, 7")
    a(f"s_lshl1_add_u32 {sH}, {sX}, {sT0}")
    a(f"s_bfe_u32 {sB}, {sR}, 0x20002")
    a(f"s_cmp_ge_u32 {sW}, 4")
    a("s_cbranch_scc1 L_helper")

    a(f"v_lshl_add_u32 {vKo}, {t2}, 2, {vg}")
    a(f"v_lshl_add_u32 {vKo}, {vKo}, 5, {vn}")
    a(f"v_lshlrev_b32 {vKo}, 4, {vKo}")
    HA = 3 << (13 + ila); HB = 7 << (13 + ilb)
    a(f"s_lshl4_add_u32 s40, {sB}, {sH}"); a(f"s_and_b32 s41, {sR}, 3")
    if hb:
        HA = (1 << hb[0]) | (1 << hb[1])
        a("s_lshl_b32 s40, s40, 21"); a("s_and_b32 s42, s41, 1"); a(f"s_lshl_b32 s42, s42, {hb[0]}"); a("s_add_u32 s40, s40, s42")
        a("s_lshr_b32 s42, s41, 1"); a(f"s_lshl_b32 s42, s42, {hb[1]}"); a("s_add_u32 s40, s40, s42")
    elif ila == 6:
        a("s_lshl2_add_u32 s40, s40, s41"); a("s_lshl_b32 s40, s40, 19")
    else:
        a(f"s_lshl_b32 s40, s40, {8 - ila}"); a("s_add_u32 s40, s40, s41"); a(f"s_lshl_b32 s40, s40, {13 + ila}")
    NRA = 0x200000 - HA; MA_ = 0x1fffff & ~HA
    if lay:
        nb = 3 + lay
        HA = (((1 << nb) - 1) << (13 + ila)) | ((15 << 21) if lay == 1 else (7 << 22))
        NRA = 0x8000000 - HA; MA_ = 0x7ffffff & ~HA
        a(f"s_and_b32 s40, {sR}, {(1 << nb) - 1}"); a(f"s_lshl_b32 s40, s40, {13 + ila}")
        a(f"s_lshl_b32 s42, {sH if lay == 1 else sX}, {20 + lay}"); a("s_add_u32 s40, s40, s42")
    srd(32, None, None, NRA)
    cur_off = [0]
    sMask = "s70"; sHole = "s100"; sRa = "s101"
    rota = rp or rph
    if rx:
        a(f"s_mul_i32 {sRa}, {sB}, {rx[0]}"); a(f"s_mul_i32 {sOff}, {sH}, {rx[1]}"); a(f"s_add_u32 {sRa}, {sRa}, {sOff}")
        a(f"s_lshr_b32 {sRa}, {sRa}, {rx[2]}"); a(f"s_and_b32 {sRa}, {sRa}, 3"); a(f"s_lshl_b32 {sRa}, {sRa}, 19")
    elif rp << ila == 16 and not rph:
        a(f"s_lshl_b32 {sRa}, {sB}, 19")
    elif rota:
        a(f"s_mul_i32 {sRa}, {sB}, {rp}"); a(f"s_mul_i32 {sOff}, {sH}, {rph}"); a(f"s_add_u32 {sRa}, {sRa}, {sOff}")
        a(f"s_lshl_b32 {sRa}, {sRa}, {15 + ila}"); a(f"s_and_b32 {sRa}, {sRa}, 0x1fffff")
    a(f"s_mov_b32 {sOff}, {sRa if rota else 0}")
    sXo = "s4"; sXa = "s5"; sXb = "s10"; sEff = "s11"
    def xor_make(dst, spec):
        a(f"s_mov_b32 {dst}, 0")
        for bit, src in spec:
            a(f"s_bitcmp1_b32 {sWG}, {src}"); a(f"s_cselect_b32 {sT1}, {1 << bit}, 0"); a(f"s_xor_b32 {dst}, {dst}, {sT1}")
    def advance(n, masked=False):
        if masked:
            a(f"s_or_b32 {sOff}, {sOff}, {sHole}"); a(f"s_addk_i32 {sOff}, 8192"); a(f"s_and_b32 {sOff}, {sOff}, {sMask}")
        else:
            nx = ((cur_off[0] | HA) + 8192) & ~HA
            d = nx - cur_off[0]; cur_off[0] = nx
            if d == 8192: a(f"s_addk_i32 {sOff}, 8192")
            else:
                a(f"s_add_u32 {sOff}, {sOff}, {d}")
                if rota: a(f"s_bitset0_b32 {sOff}, 21")
    def backlog(P0, do_issue, do_proc):
        p = 0; burst = 0; iss = RT
        while not (p % LG == 0 and iss - p == LG and p >= RT):
            do_proc(p); p += 1
            free = iss - RT < p and (P0 is None or iss < P0 + LG)
            if iss - p < LG or (iss - p > LG and free and (burst < D or p % ratio == 0)):
                assert free
                do_issue(); iss += 1; burst += 1
        return p
    P0 = backlog(None, lambda: None, lambda p: None)
    assert P0 - RT <= 16 and P0 <= 112
    a("s_waitcnt lgkmcnt(0)")
    a(f"s_add_u32 s32, s{6+2*kv}, s40"); a(f"s_addc_u32 s33, s{7+2*kv}, 0")
    if xa: xor_make(sXa, xa); a(f"s_mov_b32 {sXo}, {sXa}")
    ids = {}
    def srd_of(n): return KA if n < 128 else KB if n < 144 else VB if n < 160 else VA
    def kslot(n):
        if n >= P0: return n % LG
        if n >= RT: return LG + n - RT
        if n >= RP: return 32 + (n - RP) % 8
        NT = P0 - RT
        return LG + n if n < NT else n - NT if n < NT + LG else n
    def issue(n, masked=False):
        if n == 144: a(f"s_mov_b32 {sOff}, {sRot}")
        if n == 160:
            a(f"s_mov_b32 {sOff}, {sRa if rota else 0}"); a(f"s_mov_b32 {sHole}, {HA}"); a(f"s_mov_b32 {sMask}, {MA_}")
            if xa or xb: a(f"s_mov_b32 {sXo}, {sXa if xa else 0}")
        masked = masked or n >= 128
        so = sOff
        if xa or (xb and masked and n < 160):
            so = sEff
            if not n & 1: a(f"s_xor_b32 {sEff}, {sOff}, {sXo}")
        if RP <= n < RT:
            a(f"s_add_u32 m0, {sLb}, {256 + (n - RP) * 1024 - 256 * (n & 1)}")
            ids[n] = a(f"buffer_load_dwordx4 {vKo}, {srd_of(n)}, {so} offen offset:{256*(n&1)} {pol} lds")
        else:
            ids[n] = a(f"buffer_load_dwordx4 {vr(slot(kslot(n)))}, {vKo}, {srd_of(n)}, {so} offen offset:{256*(n&1)} {pol}")
        if n & 1: advance(n, masked)
    for n in range(D0): issue(n)
    issued = D0
    stamp("k0")
    tag_load()
    a(f"s_add_u32 s36, s{8-2*kv}, s40"); a(f"s_addc_u32 s37, s{9-2*kv}, 0"); srd(36, None, None, NRA)
    a(f"s_lshl2_add_u32 {sRecA}, {sH}, {sB}"); a(f"s_lshl3_add_u32 {sRecA}, {sRecA}, s41")
    a(f"s_lshl_b32 {sRecB}, {sX}, 6"); a(f"s_add_u32 {sRecB}, {sRecB}, {sR}"); a(f"s_add_u32 {sRecB}, {sRecB}, 512")
    a(f"s_andn2_b32 s44, {sR}, 7"); a(f"s_add_u32 s44, s44, {sX}"); a(f"s_xor_b32 s44, s44, {bx}"); a("s_lshl_b32 s44, s44, 21")
    a(f"s_and_b32 s45, {sR}, 7"); a(f"s_lshl_b32 s45, s45, {13 + ilb}"); a("s_add_u32 s44, s44, s45"); a("s_add_u32 s44, s44, 0x180000")
    a("s_add_u32 s40, s16, s44"); a("s_addc_u32 s41, s17, 0"); srd(40, None, None, 0x80000 - HB)
    a("s_add_u32 s44, s18, s44"); a("s_addc_u32 s45, s19, 0"); srd(44, None, None, 0x80000 - HB)
    srd(60, "s28", "s29", WS_END); srd(48, "s12", "s13", 0 if nowo & 1 else 0x380000); srd(52, "s22", "s23", 0 if nowo & 2 else 0x380000)
    unit(0)
    a(f"s_mul_i32 {sT0}, {sW}, {4*8*896}"); a(f"s_add_u32 {sU}, {sU}, {sT0}")
    a(f"s_lshl_b32 {sT0}, {sW}, 11"); a(f"s_add_u32 {sY}, {sY}, {sT0}")
    sUB = "s69"
    a(f"s_xor_b32 {sT0}, {sX}, {bx}"); a(f"s_sub_i32 {sT0}, {sT0}, {sX}"); a(f"s_mul_i32 {sT0}, {sT0}, {512*896}"); a(f"s_add_u32 {sUB}, {sU}, {sT0}")
    a(f"s_cmp_ge_u32 {sR}, 28"); a(f"s_cselect_b32 {sU}, {OOB}, {sU}"); a(f"s_cselect_b32 {sUB}, {OOB}, {sUB}"); a(f"s_cselect_b32 {sG}, {OOB}, {sG}")
    if True:
        a(f"s_mul_i32 {sRot}, {sR}, {rot}"); a(f"s_mul_i32 {sT0}, {sX}, {rotx}"); a(f"s_add_u32 {sRot}, {sRot}, {sT0}")
        a(f"s_and_b32 {sRot}, {sRot}, {rotm}")
        a(f"s_lshr_b32 {sT0}, {sRot}, {ilb}"); a(f"s_mul_i32 {sT0}, {sT0}, {7 << ilb}"); a(f"s_add_u32 {sRot}, {sRot}, {sT0}"); a(f"s_lshl_b32 {sRot}, {sRot}, 13")
    if xa or xb: xor_make(sXb, xb)
    if xb and not xa: a(f"s_mov_b32 {sXo}, 0")
    a(f"s_mov_b32 {sC}, {CSCALE}")
    a("s_mov_b32 s90, 0xcccccccc"); a("s_mov_b32 s91, 0xcccccccc")
    a("s_mov_b32 s92, 0xaaaaaaaa"); a("s_mov_b32 s93, 0xaaaaaaaa")
    a("s_and_b64 s[98:99], s[90:91], s[92:93]"); a(f"s_mov_b32 {sHole}, {HA}"); a(f"s_mov_b32 {sMask}, {MA_}")
    a(f"v_bfe_u32 {t0}, {vL}, 1, 2")
    a(f"v_mov_b32 {t2}, 0xffff"); a(f"v_mov_b32 {t1}, 0xffff0000")
    a(f"v_cndmask_b32 {t2}, {t2}, {t1}, {sMk0}")
    for j in range(4):
        a(f"v_cmp_eq_u32 vcc, {j}, {t0}")
        a(f"v_cndmask_b32 {vM[j]}, 0, {t2}, vcc")
    a(f"v_lshlrev_b32 {t3}, 4, {vn}"); a(f"v_mov_b32 {t0}, {L_LOC}")
    a(f"s_mul_i32 {sLb}, {sW}, {NL * 1024}"); a(f"s_add_u32 {sLb}, {sLb}, {L_KB - 256}")
    if nboost:
        a(f"s_and_b32 {sT0}, {sR}, 7"); a(f"s_cmp_eq_u32 {sT0}, 3"); a("s_cselect_b64 vcc, -1, 0")
    landed = -1
    def throttled_issue():
        nonlocal issued, landed
        d = D0 if issued < ND0 else D
        if issued - d > landed:
            if 14 <= issued < 14 + nboost:
                landed = max(landed, issued - d - 1); a.wait_vm(ids[issued - d - 1])
                a(f"s_cbranch_vccnz L_boost{issued}"); a.wait_vm(ids[issued - d]); a(f"L_boost{issued}:")
            else:
                landed = issued - d; a.wait_vm(ids[landed])
        issue(issued); issued += 1
    while issued < RT - pbar:
        throttled_issue()
        if (fine or probe) and issued in (D0 + 1, 16, 26, 36, 46, 56, 66): stamp(f"ki{issued}")
        if issued == 24:
            a("s_waitcnt lgkmcnt(0)"); tag_make(); ytag_make()
    stamp("ring_full")
    a("s_barrier")
    a(f"ds_read_b128 {vr(QA)}, {t3} offset:{L_Q+1024}"); a(f"ds_read_b128 {vr(QA+4)}, {t3} offset:{L_Q+1024+256}")
    for k in range(4): a(f"ds_read_b128 {vr(QB+4*k)}, {t3} offset:{L_Q+256*k}")
    a(f"ds_read2_b32 v[54:55], {t0} offset0:0 offset1:1")
    while issued < RT: throttled_issue()
    a(f"v_lshl_add_u32 {t3}, {vL}, 4, {sLb}")
    a("s_waitcnt lgkmcnt(0)")
    a(f"v_readfirstlane_b32 {sLocal}, {t0}"); a(f"v_readfirstlane_b32 {sCh}, {t1}")
    stamp("q_ready")

    def tree(j, acc, dst_fn):
        u = U[(j >> 1) & 1]
        a(f"v_add_f32_dpp {u}, {acc}, {acc} row_ror:8 row_mask:0xf bank_mask:{'0xc' if j & 1 else '0x3'}")
        if not j & 1: return
        v = V[(j >> 2) & 1]
        a(f"v_add_f32_dpp {v}, {u}, {u} row_half_mirror row_mask:0xf bank_mask:{'0xa' if j & 2 else '0x5'}")
        if not j & 2: return
        a(f"v_add_f32_dpp {v}, {v}, {v} {QP2}")
        if not j & 4: return
        x = X[(j >> 3) & 1]
        a(f"v_cndmask_b32 {x}, {V[0]}, {V[1]}, {sMk1}")
        a(f"v_add_f32_dpp {x}, {x}, {x} {QP1}")
        if not j & 8: return
        dst_fn()
    def dots(acc, kr, qr, first):
        if first: a(f"v_mov_b32 {acc}, 0")
        for e in range(4): a(f"v_dot2c_f32_bf16 {acc}, v{kr+e}, v{qr+e}")
    ROT = "quad_perm:[1,2,3,0] " + FULL
    def procK(n, looped=False):
        k = kslot(n); i = (n >> 1) & 3; hf = n & 1
        acc = T[i & 1]
        dots(acc, slot(k), QA + 4 * hf, not hf)
        if not hf: return
        a(f"v_add_f32_dpp {U[0]}, {acc}, {acc} row_ror:8 row_mask:0xf bank_mask:{'0xc' if i & 1 else '0x3'}")
        if not i & 1: return
        a(f"v_add_f32_dpp {V[0]}, {U[0]}, {U[0]} row_half_mirror row_mask:0xf bank_mask:{'0xa' if i & 2 else '0x5'}")
        if not i & 2: return
        r = SP + (0 if looped else ((n >> 3) - P0 // 8) & 3)
        a(f"v_mov_b32_dpp {X[0]}, v{r} {ROT}")
        a(f"v_add_f32_dpp {V[0]}, {V[0]}, {V[0]} {QP2}")
        if looped:
            for e in range(3): a(f"v_mov_b32 v{SP+e}, v{SP+e+1}")
        a(f"v_add_f32_dpp {V[0]}, {V[0]}, {V[0]} {QP1}")
        a(f"v_cndmask_b32 v{SP+3 if looped else r}, {X[0]}, {V[0]}, s[98:99]")
    def procKB(n):
        k = kslot(n); j = (n - 128) >> 1; hf = n & 1
        for hd in range(2):
            dots(T[hd], slot(k), QB + 8 * hd + 4 * hf, not hf)
        if not hf: return
        for hd in range(2):
            tree(2 * j + hd, T[hd], lambda: a(f"v_cndmask_b32 {SB}, {X[0]}, {X[1]}, {sMk0}"))
    def procVB(n):
        k = kslot(n); j = (n - 144) >> 1; hf = n & 1
        if not hf:
            a(f"v_mov_b32_dpp {t0}, {SB} row_newbcast:{brev(j,3)} row_mask:0xf bank_mask:0x3")
            a(f"v_mov_b32_dpp {t0}, {SB} row_newbcast:{8+brev(j,3)} row_mask:0xf bank_mask:0xc")
            for e in range(4): a(f"v_and_b32 v{AOP+e}, {t0}, {vM[e]}")
        a(f"v_mfma_f32_16x16x32_bf16 {vr(ACCB+4*hf)}, {vr(AOP)}, {vr(slot(k))}, {vr(ACCB+4*hf) if j else 0}")
    def procV(n, last=False):
        k = kslot(n); i = (n >> 1) & 3; hf = n & 1
        if not hf:
            for e in range(4):
                a(f"v_and_b32_dpp v{AOP+e}, v{SP}, {vM[e]} row_newbcast:{8*(i&1) + 4*(i>>1)} {FULL}")
        a(f"v_mfma_f32_16x16x32_bf16 {vr(ACC+4*hf)}, {vr(AOP)}, {vr(slot(k))}, {vr(ACC+4*hf)}")
        if hf and i == 3 and not last:
            a(f"v_mov_b32_dpp {X[0]}, v{SP} {ROT}")
            for e in range(3): a(f"v_mov_b32 v{SP+e}, v{SP+e+1}")
            a(f"v_mov_b32 v{SP+3}, {X[0]}")
    AH = 4
    def backlog_proc(p):
        n = p + AH
        if RP <= n < RT:
            assert n <= landed and p > 39
            a(f"ds_read_b128 {vr(slot(kslot(n)))}, {t3} offset:{256 + (n - RP) * 1024}")
        if RP <= p < RT: a(f"s_waitcnt lgkmcnt({min(AH, RT - 1 - p)})")
        assert p <= landed
        procK(p)
    assert backlog(P0, throttled_issue, backlog_proc) == P0
    total = (NTOT - LG - P0) // 2 * 4
    a(f"s_lshl2_add_u32 {sT0}, {sW}, {L_PRG}")
    a(f"v_mov_b32 {vPrA}, {sT0}"); a(f"v_mov_b32 {vPrg}, 0")
    a(f"s_mov_b32 {sTh}, {int(th0 + 0.5)}")
    stamp("caught_up")
    nlad = [0]
    def pair(n, proc, extra=None, masked=False):
        j = n >> 1
        if j & 1:
            a(f"s_waitcnt vmcnt({LG - 2}) lgkmcnt(0)")
            a(f"v_readfirstlane_b32 {sTh}, {vTH}")
        else:
            a(f"s_waitcnt vmcnt({LG - 2})")
        proc(n); proc(n + 1)
        if thmax < LG - 2: a(f"s_waitcnt vmcnt({thmax})")
        nlad[0] += 1
        for th in range(thmax, thmin, -1):
            a(f"s_cmp_ge_u32 {sTh}, {th}"); a(f"s_cbranch_scc1 L_lad{nlad[0]}")
            a(f"s_waitcnt vmcnt({th - 1})")
        a(f"L_lad{nlad[0]}:")
        issue(n + LG, masked); issue(n + LG + 1, masked)
        a(f"v_add_u32 {vPrg}, 1, {vPrg}")
        a(f"ds_write_b32 {vPrA}, {vPrg}")
        if not j & 1: a(f"ds_read_b32 {vTH}, {vPrA} offset:{L_TH - L_PRG}")
        if extra: extra()
    a(f"s_mov_b32 {sCnt}, {(128 - P0) // LG}")
    a("L_k:")
    a(f"s_sub_u32 {sCnt}, {sCnt}, 1"); a(f"s_cmp_eq_u32 {sCnt}, 0")
    a("s_cselect_b32 s32, s40, s32"); a("s_cselect_b32 s33, s41, s33"); a("s_cselect_b32 s34, s42, s34")
    a(f"s_cselect_b32 {sOff}, {sRot}, {sOff}"); a(f"s_cselect_b32 {sMask}, {0x7ffff & ~HB}, {sMask}"); a(f"s_cselect_b32 {sHole}, {HB}, {sHole}")
    if xa or xb: a(f"s_cselect_b32 {sXo}, {sXb}, {sXo}")
    for n in range(P0, P0 + LG, 2): pair(n, lambda m: procK(m, True), masked=True)
    a(f"s_cmp_lg_u32 {sCnt}, 0"); a("s_cbranch_scc1 L_k")
    stamp("K_done")
    def softmaxA():
        for e in range(4): rnd(f"v{SP+e}")
        a(f"v_max3_f32 {vm}, v{SP}, v{SP+1}, v{SP+2}"); a(f"v_max_f32 {vm}, {vm}, v{SP+3}")
        red("v_max_f32", vm, (8, 4, 2, 1, 16, 32))
        a(f"v_mul_f32 {vm}, {sC}, {vm}")
        for e in range(4): a(f"v_fma_f32 v{SP+e}, v{SP+e}, {sC}, -{vm}")
        for e in range(4): a(f"v_exp_f32 v{SP+e}, v{SP+e}")
        a(f"v_add_f32 {vl}, v{SP}, v{SP+1}"); a(f"v_add_f32 {t0}, v{SP+2}, v{SP+3}"); a(f"v_add_f32 {vl}, {vl}, {t0}")
        for e in range(4): a(f"v_cvt_pk_bf16_f32 v{SP+e}, v{SP+e}, v{SP+e}")
    def softmaxA2():
        red("v_add_f32", vl, (8, 4, 2, 1, 16, 32))
        for e in range(8): a(f"v_mov_b32 v{ACC+e}, 0")
        a(f"v_min_u32 {vm}, -2, {vm}"); a(f"v_min_u32 {vl}, -2, {vl}")
        a(f"s_lshl2_add_u32 {sT0}, {sRecA}, {sW}"); a(f"s_lshl3_add_u32 {sT0}, {sT0}, {WS_ML}")
        a("s_mov_b64 exec, 1")
        by_placement("mla", lambda b: a(f"buffer_store_dwordx2 v[58:59], off, {WS}, {sT0}{b}"))
        a("s_mov_b64 exec, -1")
    def softmaxB():
        rnd(SB)
        a(f"v_mul_f32 {SB}, {sC}, {SB}")
        a(f"v_max_f32_dpp {vmB}, {SB}, {SB} row_half_mirror {FULL}")
        red("v_max_f32", vmB, ("q1", "q2", 16, 32))
        a(f"v_sub_f32 {SB}, {SB}, {vmB}"); a(f"v_exp_f32 {SB}, {SB}")
        a(f"v_add_f32_dpp {vlB}, {SB}, {SB} row_half_mirror {FULL}")
        a(f"v_cvt_pk_bf16_f32 {SB}, {SB}, {SB}")
    def softmaxB2():
        red("v_add_f32", vlB, ("q1", "q2", 16, 32))
        a(f"v_min_u32 {vmB}, -2, {vmB}"); a(f"v_min_u32 {vlB}, -2, {vlB}")
        a(f"s_lshl2_add_u32 {sT0}, {sRecB}, {sW}"); a(f"s_lshl3_add_u32 {sT0}, {sT0}, {WS_ML}")
        a(f"v_lshlrev_b32 {t2}, 7, {vn}")
        a("s_mov_b64 exec, 0x101")
        by_placement("mlb", lambda b: a(f"buffer_store_dwordx2 v[62:63], {t2}, {WS}, {sT0} offen{b}"))
        a("s_mov_b64 exec, -1")
    def addresses():
        if swz:
            a(f"v_bfe_u32 {t0}, {vL}, 3, 2"); a(f"v_xor_b32 {t0}, {sW}, {t0}"); a(f"v_lshl_add_u32 {vTr}, {t0}, 5, {vTr}")
            a(f"v_and_b32 {t0}, 16, {vL}"); a(f"v_lshlrev_b32 {t0}, 1, {t0}"); a(f"v_xor_b32 {vWo}, {t0}, {vWo}"); a(f"v_xor_b32 {vWo2}, 64, {vWo}")
        else:
            a(f"s_lshl_b32 {sT0}, {sW}, 5"); a(f"v_add_u32 {vTr}, {sT0}, {vTr}"); a(f"v_mov_b32 {vWo2}, {vWo}")
        a(f"s_lshl_b32 {sLb}, {sW}, 12")
        if wfake == 1:
            a(f"v_lshlrev_b32 {vWo}, 4, {vL}"); a(f"v_mov_b32 {vWo2}, {vWo}")
            a(f"s_mul_i32 {sU}, {sX}, 28"); a(f"s_add_u32 {sU}, {sU}, {sR}"); a(f"s_lshl2_add_u32 {sU}, {sU}, {sW}"); a(f"s_lshl_b32 {sU}, {sU}, 12")
            a(f"s_cmp_ge_u32 {sR}, 28"); a(f"s_cselect_b32 {sU}, {OOB}, {sU}"); a(f"s_mov_b32 {sUB}, {sU}")
        if wfake == 2:
            a(f"v_mul_u32_u24 {vWo}, 896, {vg}"); a(f"v_lshl_add_u32 {vWo}, {vn}, 4, {vWo}")
            a(f"s_and_b32 {sT0}, {sR}, 3"); a(f"s_cmp_eq_u32 {sT0}, 3"); a(f"s_cselect_b32 {sT1}, 8, 16")
            a(f"v_cmp_gt_u32 vcc, {sT1}, {vn}"); a(f"v_mov_b32 {t0}, {OOB}"); a(f"v_cndmask_b32 {vWo}, {t0}, {vWo}, vcc"); a(f"v_mov_b32 {vWo2}, {vWo}")
            a(f"s_bfe_u32 {sU}, {sR}, 0x20002"); a(f"s_lshl2_add_u32 {sU}, {sX}, {sU}"); a(f"s_lshl2_add_u32 {sU}, {sU}, {sW}"); a(f"s_mul_i32 {sU}, {sU}, {32*896}")
            a(f"s_lshl_b32 {sT0}, {sT0}, 8"); a(f"s_add_u32 {sU}, {sU}, {sT0}"); a(f"s_add_u32 {sUB}, {sU}, {16*896}")
            a(f"s_cmp_ge_u32 {sR}, 16"); a("s_cselect_b32 s48, s52, s48"); a("s_cselect_b32 s49, s53, s49"); a("s_mov_b32 s52, s48"); a("s_mov_b32 s53, s49")
        y_base(vYo, 0); y_base(vYb, 1)
        a(f"v_mov_b32 {vYm}, 0xfffff000")
        a(f"v_mov_b32 {t0}, {YT[0]}"); a(f"v_mov_b32 {t1}, {YT[1]}"); a(f"v_cndmask_b32 {t0}, {t0}, {t1}, {sMk0}")
        a(f"v_mov_b32 {t2}, {YT[2]}"); a(f"v_mov_b32 {t1}, {YT[3]}"); a(f"v_cndmask_b32 {t2}, {t2}, {t1}, {sMk0}")
        a(f"v_cndmask_b32 {vYt}, {t0}, {t2}, {sMk1}")
        a(f"v_and_b32 {t0}, 1, {vg}"); a(f"v_lshlrev_b32 {t0}, 4, {t0}"); a(f"v_lshl_add_u32 {t0}, {vn}, 5, {t0}")
        a(f"s_lshl_b32 {sT0}, {sW}, 10"); a(f"s_add_u32 {sT0}, {sT0}, {L_PART}")
        a(f"v_add_u32 {vPa}, {sT0}, {t0}")
    nwo = 0; id_wo = None
    def gA():
        for k in range(4): a(f"buffer_load_dwordx4 {vr(G+4*k)}, {vGo}, {WS}, {sG} offen offset:{1024*k} sc1")
    def wo_issue():
        nonlocal nwo, id_wo
        j = (nwo - wbe) % 8
        a(f"s_add_u32 m0, {sLb}, {(L_WOA, L_WOB)[j >> 2] + 1024*(j & 3)}")
        a(f"s_add_u32 {sT0}, {(sU, sUB)[j >> 2]}, {(8*896, 1024, 4*896)[wfake]*(j & 3)}")
        id_wo = a(f"buffer_load_dwordx4 {(vWo, vWo2)[j & 1]}, {(WOA, WOB)[j >> 2]}, {sT0} offen {pol} lds")
        nwo += 1
    extras = {128: softmaxA, 130: softmaxA2, 132: unit_v, 134: addresses, 142: softmaxB, 144: softmaxB2}
    for i in range(wbe): extras[146 + 2 * (i % 7)] = (lambda f: (lambda: (f and f(), wo_issue())))(extras.get(146 + 2 * (i % 7)))
    for n in range(128, 160, 2): pair(n, procKB if n < 144 else procVB, extras.get(n))
    stamp("B_done")
    a(f"s_mov_b32 {sCnt}, 0")
    a("L_v:")
    a(f"s_cmp_eq_u32 {sCnt}, {ml0}"); a("s_cbranch_scc1 L_ml_issue")
    a(f"s_cmp_eq_u32 {sCnt}, {ml1}"); a("s_cbranch_scc1 L_ml_use")
    if stamps:
        a(f"s_cmp_eq_u32 {sCnt}, 10"); a("s_cbranch_scc1 L_st11")
    a("L_v_body:")
    for n in range(160, 160 + LG, 2): pair(n, procV)
    a(f"s_add_u32 {sCnt}, {sCnt}, {LG // 8}"); a(f"s_cmp_lt_u32 {sCnt}, {16 - LG // 8}"); a("s_cbranch_scc1 L_v")
    a("s_branch L_v_x")
    def ml_loads():
        a(f"buffer_load_dwordx2 {vr(MLG,2)}, {U[0]}, {WS}, {sT0} offen sc1")
        a(f"buffer_load_dwordx2 {vr(MLG+2,2)}, {U[1]}, {WS}, {sT1} offen sc1")
    a("L_ml_issue:")
    stamp("v4")
    a(f"s_andn2_b32 {sT0}, {sRecA}, 7"); a(f"s_lshl_b32 {sT0}, {sT0}, 5"); a(f"s_add_u32 {sT0}, {sT0}, {WS_ML}")
    a(f"s_andn2_b32 {sT1}, {sRecB}, 7"); a(f"s_lshl_b32 {sT1}, {sT1}, 5"); a(f"s_add_u32 {sT1}, {sT1}, {WS_ML}")
    a(f"v_lshlrev_b32 {U[0]}, 3, {vn}")
    a(f"v_and_b32 {t0}, 31, {vL}"); a(f"v_lshlrev_b32 {t0}, 3, {t0}"); a(f"v_lshrrev_b32 {t1}, 5, {vL}"); a(f"v_lshl_add_u32 {U[1]}, {t1}, 10, {t0}")
    ml_loads()
    a("s_branch L_v_body")
    a("L_ml_use:")
    stamp("v7")
    poll("L_ml", ml_loads, lambda: sentinel(range(MLG, MLG + 4)), sleep=2, first_issued=True)
    MA, MB = V
    a(f"v_max_f32_dpp {MA}, v{MLG}, v{MLG} row_ror:8 {FULL}"); a(f"v_max_f32_dpp {MB}, v{MLG+2}, v{MLG+2} row_ror:8 {FULL}")
    for s in (4, 2, 1):
        a(f"v_max_f32_dpp {MA}, {MA}, {MA} row_ror:{s} {FULL}"); a(f"v_max_f32_dpp {MB}, {MB}, {MB} row_ror:{s} {FULL}")
    red("v_max_f32", MB, (16,))
    a(f"v_mov_b32_dpp {t3}, {vmB} row_newbcast:0 row_mask:0x3 bank_mask:0xf")
    a(f"v_mov_b32_dpp {t3}, {vmB} row_newbcast:8 row_mask:0xc bank_mask:0xf")
    a(f"v_sub_f32 v{MLG}, v{MLG}, {MA}"); a(f"v_sub_f32 v{MLG+2}, v{MLG+2}, {MB}")
    a(f"v_sub_f32 {vfA}, {vm}, {MA}"); a(f"v_sub_f32 {t3}, {t3}, {MB}")
    a(f"v_exp_f32 v{MLG}, v{MLG}"); a(f"v_exp_f32 v{MLG+2}, v{MLG+2}"); a(f"v_exp_f32 {vfA}, {vfA}"); a(f"v_exp_f32 {t3}, {t3}")
    a(f"v_mul_f32 {MA}, v{MLG}, v{MLG+1}"); a(f"v_mul_f32 {MB}, v{MLG+2}, v{MLG+3}")
    for s in (8, 4, 2, 1):
        a(f"v_add_f32_dpp {MA}, {MA}, {MA} row_ror:{s} {FULL}"); a(f"v_add_f32_dpp {MB}, {MB}, {MB} row_ror:{s} {FULL}")
    red("v_add_f32", MB, (16,))
    a(f"v_rcp_f32 {MA}, {MA}"); a(f"v_rcp_f32 {MB}, {MB}")
    a(f"v_mul_f32 {vfA}, {vfA}, {MA}"); a(f"v_mul_f32 {t3}, {t3}, {MB}")
    for e in range(8): a(f"v_mul_f32 v{ACCB+e}, v{ACCB+e}, {t3}")
    a(f"v_lshrrev_b32 {t1}, 1, {vg}"); a(f"v_lshl_add_u32 {t0}, {t1}, 12, {vPa}")
    a(f"ds_write_b128 {t0}, {vr(ACCB)}"); a(f"ds_write_b128 {t0}, {vr(ACCB+4)} offset:512")
    a(f"v_lshl_add_u32 {vPa}, {t1}, 9, {vPa}")
    a(f"v_mov_b32 {t0}, {L_CNT}"); a(f"v_mov_b32 {t2}, 1")
    a("s_waitcnt lgkmcnt(0)")
    a("s_mov_b64 exec, 1")
    a(f"ds_add_u32 {t0}, {t2}")
    a("s_mov_b64 exec, -1")
    a("s_branch L_v_body")
    if stamps:
        a("L_st11:"); stamp("v11"); a("s_branch L_v_body")
    a("L_v_x:")
    stamp("v_x")
    for k in range(LG): ids[NTOT - LG + k] = a.vm_seq - (LG - 1 - k)
    a("s_mov_b32 vcc_lo, 0"); a("s_mov_b32 vcc_hi, -1")
    for n in range(NTOT - LG, NTOT):
        a.wait_vm(ids[n])
        if wg is None and n - (NTOT - 8) >= wod and nwo < 8: wo_issue()
        if wg is not None and n & 1:
            a(f"v_add_u32 {vPrg}, 1, {vPrg}"); a(f"ds_write_b32 {vPrA}, {vPrg}")
        procV(n, last=n >= NTOT - 8)
    if wg is not None: nwo = 8
    stamp("stream_done")
    for e in range(4): a(f"v_cndmask_b32 v{ACC+e}, v{ACC+e}, v{ACC+4+e}, vcc")
    for e in range(4): a(f"v_mul_f32 v{ACC+e}, v{ACC+e}, {vfA}")
    a(f"ds_write_b128 {vPa}, {vr(ACC)} offset:8192")
    while wpos == 0 and nwo < 8: wo_issue()
    a("s_waitcnt lgkmcnt(0)")
    a("s_barrier")
    while wpos == 1 and nwo < 8: wo_issue()
    for k in range(4): a(f"ds_read_b128 {vr(OBS+4*k)}, {vGo} offset:{L_PART + 1024*k}")
    if g2:
        a("s_barrier")
        while wpos == 2 and nwo < 8: wo_issue()
        gA()
        while nwo < 8: wo_issue()
    if wg is None and wbe < 8: a.wait_vm(id_wo)
    a("s_barrier")
    if fine: stamp("wo_in")
    a(f"s_cmp_ge_u32 {sR}, 28"); a("s_cbranch_scc1 L_s_fin")
    a("s_waitcnt lgkmcnt(0)")
    for dst, src in ((WTB, L_WOB), (WT, L_WOA)):
        for k in range(4):
            if src == L_WOA and k == 3: a("s_waitcnt lgkmcnt(6)")
            a(f"ds_read_b64_tr_b16 {vr(dst+4*k,2)}, {vTr} offset:{src+4096*k}")
            a(f"ds_read_b64_tr_b16 {vr(dst+4*k+2,2)}, {vTr} offset:{src+4096*k+512}")
    for k in range(4):
        a(f"v_mfma_f32_16x16x32_bf16 {vr(ACC+4)}, {vr(OBS+4*k)}, {vr(WTB+4*k)}, {vr(ACC+4) if k else 0}")
    if g2: a("s_waitcnt vmcnt(0)")
    poll("L_s2", gA, lambda: sentinel(range(G, G + 16)), masked=True, first_issued=g2)
    if g2: a("s_waitcnt lgkmcnt(0)")
    stamp("gathered")
    for k in range(4):
        a(f"v_mfma_f32_16x16x32_bf16 {vr(ACC)}, {vr(G+4*k)}, {vr(WT+4*k)}, {vr(ACC) if k else 0}")
    y_seal(ACC + 4)
    a(f"buffer_store_dword v{ACC+4}, {vYb}, {WS}, {sY} offen sc1")
    a(f"v_add_f32 v{ACC}, v{ACC}, v{ACC+1}"); a(f"v_add_f32 v{ACC+2}, v{ACC+2}, v{ACC+3}"); a(f"v_add_f32 v{ACC}, v{ACC}, v{ACC+2}")
    y_seal(ACC)
    a(f"buffer_store_dword v{ACC}, {vYo}, {WS}, {sY} offen sc1")
    if stamps:
        a("s_branch L_s_fin2")
        a("L_s_fin:")
        names["s"].pop(); stamp("gathered")
        a("L_s_fin2:")
    else:
        a("L_s_fin:")
    stamp("y")
    a("s_waitcnt vmcnt(0)")
    a("s_barrier")
    finish()

    cur[0] = "g"
    a("L_gov:")
    vA4 = "v2"; vBo = "v3"; vPw = "v4"; vP = "v5"; vPp = "v6"; vB = "v7"; vTh = "v8"; vL16 = "v16"
    sTg = sU; sPo = sRecA; sGa = sRecB; sIn = sY
    a(f"v_lshlrev_b32 {vL16}, 4, {vL}")
    a(f"s_lshl_b32 {sT1}, {sX}, 5"); a(f"s_add_u32 {sT1}, {sT1}, {sR}"); a(f"s_lshl_b32 {sT1}, {sT1}, 7"); a(f"s_add_u32 {sT1}, {sT1}, {WS_FL}")
    srd(60, None, None, WS_END)
    a("s_waitcnt lgkmcnt(0)")
    tag_load()
    a("s_mov_b32 s60, s28"); a("s_mov_b32 s61, s29")
    a("s_mov_b64 exec, 0xff")
    a("s_waitcnt lgkmcnt(0)")
    tag_make()
    a("v_mov_b32 v8, s56"); a("v_mov_b32 v9, s59"); a("v_mov_b32 v10, s56"); a("v_mov_b32 v11, s59")
    a(f"buffer_store_dwordx4 v[8:11], {vL16}, {WS}, {sT1} offen sc1")
    a("s_mov_b64 exec, -1")
    ytag_make()
    a(f"s_mul_i32 {sIn}, {sX}, {YG}"); a(f"s_add_u32 {sIn}, {sIn}, {WS_Y}")
    a(f"s_cmp_lg_u32 {sR}, 0"); a("s_cbranch_scc1 L_norace")
    a(f"s_add_u32 s4, s28, {sIn}"); a("s_addc_u32 s5, s29, 0")
    a("s_load_dword s6, s[4:5], 0 glc"); a("s_load_dword s7, s[4:5], 8192 glc")
    a(f"s_mov_b32 {sT1}, 0")
    a("s_waitcnt lgkmcnt(0)")
    for i in range(nrace):
        a("s_not_b32 s10, s6"); a("s_not_b32 s11, s7")
        for h in ((0, 1), (1, 0))[i & 1]: a(f"s_load_dword s{10+h}, s[4:5], {8192*h} glc")
        a("s_waitcnt lgkmcnt(1)")
        a("s_sleep 1")
        a("s_mov_b64 s[14:15], s[10:11]")
        a("s_waitcnt lgkmcnt(0)")
        a("s_cmp_eq_u32 s15, s7"); a(f"s_addc_u32 {sT1}, {sT1}, 0"); a("s_cmp_eq_u32 s14, s6"); a(f"s_subb_u32 {sT1}, {sT1}, 0")
    a(f"s_sub_i32 {sT2}, 0, {sT1}"); a("s_bitcmp1_b32 s59, 2"); a(f"s_cselect_b32 {sT1}, {sT2}, {sT1}")
    a(f"s_cmp_gt_i32 {sT1}, 0"); a(f"s_cselect_b32 {sT2}, 2, 0"); a(f"s_cmp_lt_i32 {sT1}, 0"); a(f"s_cselect_b32 {sT2}, 1, {sT2}")
    if near is not None: a(f"s_mov_b32 {sT2}, {1 + near}")
    a(f"s_and_b32 {sT1}, s59, 4"); a(f"s_or_b32 {sT1}, {sT1}, {sT2}")
    a(f"s_lshl4_add_u32 {sT1}, s58, {sT1}")
    a(f"v_mov_b32 v12, s56"); a(f"v_mov_b32 v13, {sT1}"); a(f"v_mov_b32 v14, s56"); a(f"v_mov_b32 v15, {sT1}")
    a(f"s_lshl_b32 {sT1}, {sX}, 7"); a(f"s_add_u32 {sT1}, {sT1}, {WS_CH}")
    a("s_mov_b64 exec, 0xff")
    a(f"buffer_store_dwordx4 v[12:15], {vL16}, {WS}, {sT1} offen sc1")
    a("s_mov_b64 exec, -1")
    a("L_norace:")
    a(f"s_lshr_b32 {sT0}, {sR}, 2"); a(f"s_lshl_b32 {sT0}, {sT0}, 14"); a(f"s_add_u32 {sIn}, {sIn}, {sT0}")
    a(f"s_and_b32 {sT0}, {sR}, 3"); a(f"s_lshl_b32 {sT0}, {sT0}, 11"); a(f"s_add_u32 {sIn}, {sIn}, {sT0}")
    if stamps: a("v_mov_b32 v254, 0"); a("v_mov_b32 v253, 0")
    stamp("hello")
    srd(44, "s24", "s25", 7168)
    if wg is not None:
        srd(4, "s12", "s13", 0 if nowo & 1 else 0x380000); srd(24, "s22", "s23", 0 if nowo & 2 else 0x380000)
        a("s_mov_b64 s[90:91], s[4:5]")
        a(f"s_mul_i32 {sT0}, {sR}, 37"); a(f"s_lshr_b32 {sT0}, {sT0}, 8"); a(f"s_mul_i32 {sT1}, {sT0}, 7"); a(f"s_sub_u32 {sT1}, {sR}, {sT1}")
        a(f"s_lshl2_add_u32 {sT0}, {sX}, {sT0}"); a(f"s_mul_i32 s70, {sT0}, {128*896}"); a(f"s_lshl_b32 {sT1}, {sT1}, 7"); a(f"s_add_u32 s70, s70, {sT1}")
        a(f"v_lshrrev_b32 {t0}, 3, {vL}"); a(f"v_mul_u32_u24 {t0}, 896, {t0}"); a(f"v_and_b32 {t2}, 7, {vL}"); a(f"v_lshl_add_u32 {vWo}, {t2}, 4, {t0}")
        a(f"v_and_b32 {t0}, 16, {vL}"); a(f"v_lshlrev_b32 {t0}, 1, {t0}"); a(f"v_xor_b32 {vWo}, {t0}, {vWo}"); a(f"v_xor_b32 {vWo2}, 64, {vWo}")
        a(f"v_mov_b32 v18, {total - wg}")
    if tlb:
        a(f"s_lshl4_add_u32 s40, {sB}, {sH}"); a("s_lshl_b32 s40, s40, 21")
        a(f"s_andn2_b32 s41, {sR}, 7"); a(f"s_add_u32 s41, s41, {sX}"); a(f"s_xor_b32 s41, s41, {bx}"); a("s_lshl_b32 s41, s41, 21"); a("s_add_u32 s41, s41, 0x180000")
        a(f"s_mul_i32 s42, {sX}, {512*896}")
        for i, (pp, o) in enumerate(((12, 42), (22, 42), (16, 41), (18, 41), (8, 40))):
            a(f"s_add_u32 s{pp}, s{pp}, s{o}"); a(f"s_addc_u32 s{pp+1}, s{pp+1}, 0")
            a(f"s_load_dword s{48+i}, s[{pp}:{pp+1}], 0")
    a(f"v_and_b32 {vA4}, 3, {vL}"); a(f"v_lshlrev_b32 {vA4}, 2, {vA4}")
    a(f"v_mov_b32 {vPp}, 0"); a(f"v_mov_b32 {vTh}, {int(th0 + 0.5)}"); a(f"v_mov_b32 {vB}, 0")
    a(f"ds_write_b32 {vA4}, {vPp} offset:{L_PRG}"); a(f"ds_write_b32 {vA4}, {vTh} offset:{L_TH}"); a(f"ds_write_b32 {vB}, {vB} offset:{L_CNT}")
    gc_ = gI // 2 if gc is None else gc
    a(f"s_mul_i32 {sG}, {sX}, 4352"); a(f"s_add_u32 {sG}, {sG}, {WS_GC}")
    a(f"v_lshlrev_b32 {vBo}, 2, {vL}")
    a(f"s_lshl2_add_u32 {sOff}, {sR}, {sG}")
    a(f"s_add_u32 {sGa}, {sG}, {8*4352}")
    a(f"s_mul_i32 {sTg}, {sX}, {gI // 8}"); a(f"s_add_u32 {sTg}, {sTg}, {gI // 8}")
    a(f"s_cmp_eq_u32 {sR}, {28 if gx else 99}"); a(f"s_cselect_b32 {sTg}, {sTg}, -1")
    sOut = sC
    a(f"s_and_b32 {sT0}, {sX}, 3"); a(f"s_mul_i32 {sOut}, {sT0}, 1792"); a(f"s_lshr_b32 {sT0}, {sX}, 2"); a(f"s_mul_i32 {sT0}, {sT0}, 896")
    a(f"s_add_u32 {sOut}, {sOut}, {sT0}"); a(f"s_lshl_b32 {sT0}, {sR}, 5"); a(f"s_add_u32 {sOut}, {sOut}, {sT0}")
    a(f"v_lshrrev_b32 {t1}, 1, {vg}"); a(f"v_and_b32 {t2}, 1, {vg}"); a(f"v_lshl_add_u32 {t1}, {t2}, 1, {t1}")
    a(f"v_and_b32 {t2}, 3, {vn}"); a(f"v_lshl_add_u32 {t1}, {t2}, 2, {t1}"); a(f"v_lshlrev_b32 {t3}, 1, {t1}")
    a("s_waitcnt lgkmcnt(0)")
    a("s_barrier")
    a(f"ds_read_b32 v10, {vB} offset:{L_LOC}"); a(f"ds_read_b32 v11, {vB} offset:{L_CH}")
    a("s_waitcnt lgkmcnt(0)")
    a(f"v_readfirstlane_b32 {sLocal}, v10"); a(f"v_readfirstlane_b32 {sCh}, v11")
    a(f"s_lshr_b32 {sT0}, {sCh}, {sX}"); a(f"s_and_b32 {sT0}, {sT0}, 1"); a(f"s_lshl_b32 {sT0}, {sT0}, 13"); a(f"s_add_u32 {sIn}, {sIn}, {sT0}")
    if stamps:
        a(f"v_writelane_b32 v255, {sCh}, 30"); a(f"s_getreg_b32 {sT0}, hwreg(HW_REG_HW_ID)"); a(f"v_writelane_b32 v255, {sT0}, 27")
    a(f"s_cmp_lg_u32 {sLocal}, 1"); a("s_cbranch_scc1 L_gend")
    poll("L_g0", lambda: a(f"ds_read_b32 {vPw}, {vA4} offset:{L_PRG}"), lambda: a(f"v_cmp_eq_u32 vcc, 0, {vPw}"), sleep=4)
    if xm:
        for i in range(1, 8):
            a(f"s_add_u32 {sT0}, {sX}, {i}"); a(f"s_and_b32 {sT0}, {sT0}, 7")
            a(f"s_mul_i32 s{31+i}, {sT0}, 4352"); a(f"s_add_u32 s{31+i}, s{31+i}, {WS_GC + 8*4352}")
            a(f"s_mul_i32 s{47+i}, {sT0}, {gI // 8}"); a(f"s_sub_u32 s{47+i}, s{47+i}, {gI - gI // 8}")
        a(f"s_sub_u32 {sPo}, {sTg}, {gI}")
    a(f"s_mov_b32 {sSpin}, {spin}")
    a("L_gloop:")
    a(f"ds_read_b32 {vPw}, {vA4} offset:{L_PRG}")
    a(f"s_sub_u32 {sSpin}, {sSpin}, 1"); a(f"s_cmp_eq_u32 {sSpin}, 0"); a("s_cbranch_scc1 L_gend")
    a("s_waitcnt lgkmcnt(0)")
    a(f"v_add_u32_dpp {vP}, {vPw}, {vPw} {QP1}"); a(f"v_add_u32_dpp {vP}, {vP}, {vP} {QP2}")
    a("s_mov_b64 exec, 1")
    a(f"buffer_store_dword {vP}, off, {WS}, {sOff}")
    a(f"v_cmp_le_u32 vcc, {total - 4 * gstop}, {vP}")
    a("s_cbranch_vccnz L_gend")
    a("s_mov_b32 exec_lo, -1"); a("s_mov_b32 exec_hi, 1")
    a(f"buffer_load_dword {vB}, {vBo}, {WS}, {sG} offen sc1")
    a("s_mov_b64 exec, -1")
    if xm:
        a(f"s_cmp_eq_u32 {sTg}, -1"); a("s_cbranch_scc1 L_gnl")
        for i in range(1, 8): a(f"s_load_dwordx2 s[{4+2*i}:{5+2*i}], s[28:29], s{31+i} glc")
        a("L_gnl:")
    a(f"v_cvt_f32_u32 {t0}, {vP}")
    a(f"v_mul_f32 {t0}, {f2u(-gain)}, {t0}"); a(f"v_add_f32 {t0}, {f2u(th0 + 0.5 + gain * c0)}, {t0}")
    if gw:
        a(f"v_lshlrev_b32 {vPw}, 2, {vPw}"); a(f"v_sub_u32 {vPw}, {vP}, {vPw}"); a(f"v_cvt_f32_i32 {vPw}, {vPw}")
        a(f"v_mul_f32 {vPw}, {f2u(gw)}, {vPw}"); a(f"v_add_f32 {t0}, {t0}, {vPw}")
    a("s_waitcnt vmcnt(0)")
    a(f"v_add_u32_dpp {t1}, {vB}, {vB} row_ror:8 {FULL}")
    a(f"v_readlane_b32 {sT3}, {vB}, 32")
    for sft in (4, 2, 1): a(f"v_add_u32_dpp {t1}, {t1}, {t1} row_ror:{sft} {FULL}")
    a(f"v_readlane_b32 {sT0}, {t1}, 0"); a(f"v_readlane_b32 {sT1}, {t1}, 16")
    a(f"v_cvt_f32_i32 v11, {sT3}")
    a(f"s_add_u32 {sT2}, {sT0}, {sT1}")
    a(f"v_cvt_f32_u32 v10, {sT2}")
    if wg is not None:
        a(f"v_cvt_f32_u32 v17, {vP}"); a(f"v_mul_f32 v18, {f2u(-wk / 32)}, v10"); a(f"v_mul_f32 v19, {f2u(-wk / 256)}, v11")
        a(f"v_mul_f32 v17, {f2u(wk)}, v17"); a("v_add_f32 v18, v18, v19"); a("v_add_f32 v18, v18, v17")
        a(f"v_add_f32 v18, {f2u(total - wg - wk * c0)}, v18"); a("v_cvt_i32_f32 v18, v18"); a(f"v_min_i32 v18, {total + wcap}, v18")
    a(f"v_mul_f32 v10, {f2u(gain / 32)}, v10"); a(f"v_mul_f32 v11, {f2u(gain * gx / 256)}, v11")
    a(f"v_add_f32 {t0}, {t0}, v10"); a(f"v_add_f32 {t0}, {t0}, v11")
    if kup:
        a(f"v_add_f32 v10, {f2u(-(th0 + kat))}, {t0}"); a("v_max_f32 v10, 0, v10"); a(f"v_mul_f32 v10, {f2u(kup)}, v10"); a(f"v_add_f32 {t0}, {t0}, v10")
    a(f"v_cvt_i32_f32 {vTh}, {t0}")
    a(f"v_med3_i32 {vTh}, {vTh}, {thmin}, {thmax}")
    a(f"ds_write_b32 {vA4}, {vTh} offset:{L_TH}")
    if stamps: a(f"v_add_u32 v254, v254, {vTh}"); a("v_add_u32 v253, 1, v253")
    if xm:
        a(f"s_cmp_eq_u32 {sTg}, -1"); a("s_cbranch_scc1 L_gloop")
        a(f"s_sub_u32 {sT0}, {gc_}, {sT2}"); a(f"s_lshl3_add_u32 {sT0}, {sT0}, {sPo}")
        a("s_waitcnt lgkmcnt(0)")
        for i in range(1, 8):
            a(f"s_xor_b64 s[{4+2*i}:{5+2*i}], s[{4+2*i}:{5+2*i}], s[56:57]"); a(f"s_lshr_b64 s[4:5], s[{4+2*i}:{5+2*i}], 14")
            a(f"s_cselect_b32 s{4+2*i}, s{47+i}, s{4+2*i}"); a(f"s_add_u32 {sT0}, {sT0}, s{4+2*i}")
        a(f"v_mov_b32 v10, {sT0}")
        a("s_mov_b64 exec, 1")
        a(f"buffer_store_dword v10, off, {WS}, {sG} offset:128")
        a("s_mov_b64 exec, -1")
        a(f"s_cmp_lt_u32 {sT2}, {sTg}"); a("s_cbranch_scc1 L_gloop")
        a(f"s_xor_b32 {sT0}, {sT2}, s56")
        for i in range(4): a(f"v_mov_b32 v{12+i}, {'s57' if i & 1 else sT0}")
        a("s_mov_b64 exec, 0xff")
        a(f"buffer_store_dwordx4 v[12:15], {vL16}, {WS}, {sGa} offen sc1"); a("s_mov_b64 exec, -1")
        a(f"s_add_u32 {sTg}, {sTg}, {gI}"); a(f"s_mov_b32 {sPo}, {sT2}")
        a("s_branch L_gloop")
    else:
        a(f"s_cmp_lt_u32 {sT2}, {sTg}"); a("s_cbranch_scc1 L_gloop")
        a(f"s_xor_b32 {sT0}, {sT2}, s56")
        for i in range(4): a(f"v_mov_b32 v{12+i}, {'s57' if i & 1 else sT0}")
        a("s_mov_b64 exec, 0xff")
        a(f"buffer_store_dwordx4 v[12:15], {vL16}, {WS}, {sGa} offen sc1"); a("s_mov_b64 exec, -1")
        for i in range(1, 8):
            a(f"s_add_u32 {sT0}, {sX}, {i}"); a(f"s_and_b32 {sT0}, {sT0}, 7"); a(f"s_mul_i32 {sT0}, {sT0}, 4352"); a(f"s_add_u32 {sT0}, {sT0}, {WS_GC + 8*4352}")
            a(f"s_load_dwordx2 s[{4+2*i}:{5+2*i}], s[28:29], {sT0} glc")
        a(f"s_add_u32 {sTg}, {sTg}, {gI}")
        a(f"s_sub_u32 {sT0}, {gc_}, {sT2}"); a(f"s_mul_i32 {sT0}, {sT0}, 7")
        a("s_waitcnt lgkmcnt(0)")
        for i in range(1, 8):
            a(f"s_xor_b64 s[{4+2*i}:{5+2*i}], s[{4+2*i}:{5+2*i}], s[56:57]"); a(f"s_lshr_b64 s[4:5], s[{4+2*i}:{5+2*i}], 14")
            a(f"s_cselect_b32 s{4+2*i}, 0, s{4+2*i}"); a(f"s_add_u32 {sT0}, {sT0}, s{4+2*i}")
        a(f"v_mov_b32 v10, {sT0}")
        a("s_mov_b64 exec, 1")
        a(f"buffer_store_dword v10, off, {WS}, {sG} offset:128")
        a("s_mov_b64 exec, -1")
        a("s_branch L_gloop")
    a("L_gend:")
    a("s_mov_b64 exec, -1")
    if stamps:
        a(f"v_readfirstlane_b32 {sT0}, v254"); a(f"v_readfirstlane_b32 {sT1}, v253"); a("s_nop 3")
        a(f"v_writelane_b32 v255, {sT0}, 28"); a(f"v_writelane_b32 v255, {sT1}, 29")
    stamp("gov_end")
    if wg is not None:
        a(f"s_cmp_ge_u32 {sR}, 28"); a("s_cbranch_scc1 L_gnowo")
        def pchk():
            a(f"v_add_u32_dpp {vP}, {vPw}, {vPw} {QP1}"); a(f"v_add_u32_dpp {vP}, {vP}, {vP} {QP2}"); a(f"v_cmp_gt_i32 vcc, v18, {vP}")
        srd(4, "s90", "s91", 0 if nowo & 1 else 0x380000)
        poll("L_gw", lambda: a(f"ds_read_b32 {vPw}, {vA4} offset:{L_PRG}"), pchk)
        a(f"s_mov_b32 m0, {L_WOA}")
        for j in range(32):
            a(f"s_add_u32 {sT0}, s70, {8*896*(j & 15)}")
            a(f"buffer_load_dwordx4 {(vWo, vWo2)[j & 1]}, {('s[4:7]', 's[24:27]')[j >> 4]}, {sT0} offen {pol} lds")
            if j < 31: a("s_add_u32 m0, m0, 1024")
        a("L_gnowo:")
        stamp("wo_issued")
    a(f"s_cmp_ge_u32 {sR}, 28")
    for i in range(4 if g2 else 3):
        if wg is not None and i == (2 if g2 else 1): a("s_waitcnt vmcnt(0)")
        a("s_barrier")
    a("s_cbranch_scc1 L_g_fin")
    F = 64
    def gY():
        for k in range(2): a(f"buffer_load_dwordx4 {vr(F+4*k)}, {vL16}, {WS}, {sIn} offen offset:{1024*k} sc1")
    def y_chk():
        for i in range(8): a(f"v_xor_b32 v{F+i}, {YT[i & 3]}, v{F+i}")
        a(f"v_or3_b32 {t0}, v{F}, v{F+1}, v{F+2}"); a(f"v_or3_b32 {t2}, v{F+3}, v{F+4}, v{F+5}")
        a(f"v_or3_b32 {t0}, {t0}, v{F+6}, v{F+7}"); a(f"v_or_b32 {t0}, {t0}, {t2}")
        a(f"v_and_b32 {t0}, 0xfff, {t0}"); a(f"v_cmp_ne_u32 vcc, 0, {t0}")
    poll("L_f", gY, y_chk, masked=True)
    for e in range(4): a(f"v_add_f32 v{F+e}, v{F+e}, v{F+4+e}")
    a(f"v_permlane32_swap_b32 v{F}, v{F+1}"); a(f"v_permlane32_swap_b32 v{F+2}, v{F+3}")
    a(f"v_add_f32 v{F}, v{F}, v{F+1}"); a(f"v_add_f32 v{F+2}, v{F+2}, v{F+3}")
    a(f"v_permlane16_swap_b32 v{F}, v{F+2}")
    a(f"v_add_f32 v{F}, v{F}, v{F+2}")
    red("v_add_f32", f"v{F}", (4, 8))
    a(f"v_cvt_pk_bf16_f32 v{F}, v{F}, v{F}")
    a("s_mov_b32 exec_lo, 0x000f000f"); a("s_mov_b32 exec_hi, 0x000f000f")
    a(f"buffer_store_short v{F}, {t3}, {OUT}, {sOut} offen")
    a(f"s_cmp_eq_u32 {sWG}, 0"); a("s_cbranch_scc0 L_g_fin")
    a("v_mov_b32 v8, s56"); a("v_mov_b32 v9, s57"); a(f"s_mov_b32 {sT0}, {WS_EP}")
    a("s_mov_b64 exec, 1")
    a(f"buffer_store_dwordx2 v[8:9], off, {WS}, {sT0} sc1")
    a("L_g_fin:")
    finish()

    cur[0] = "h"
    a("L_helper:")
    a(f"s_cmp_eq_u32 {sW}, 5"); a("s_cbranch_scc1 L_gov")
    def code_pull(tagl, reg, st):
        a("s_getpc_b64 s[30:31]")
        a(f"{tagl}:")
        a(f"s_sub_u32 s30, s30, {tagl}-{NAME}_kernel"); a("s_subb_u32 s31, s31, 0")
        a(f"s_lshl_b32 {sT1}, {sR}, {st}")
        a(f"v_lshl_add_u32 {t0}, {vL}, {st + 5}, {sT1}")
        a(f"v_min_u32 {t0}, L_end-{NAME}_kernel, {t0}")
        a(f"s_mov_b64 exec, {0x1f if st == 7 else 0xfff}")
        a(f"global_load_dword {reg}, {t0}, s[30:31]")
        a("s_mov_b64 exec, -1")
    if pf == 1: code_pull("L_pc", "v2", 7)
    if pf == 2: code_pull("L_pc", "v2", 6)
    XOP = 64; WOP = 96; QD = 208
    vXo = "v5"; vL8 = "v7"; vQt = "v17"
    a(f"v_lshrrev_b32 {t3}, 3, {vL}"); a(f"v_and_b32 {t2}, 7, {vL}"); a(f"v_lshlrev_b32 {t2}, 4, {t2}")
    a(f"v_lshl_add_u32 {vKo}, {t3}, 13, {t2}")
    a(f"v_and_b32 {vXo}, 3, {vL}"); a(f"v_mul_u32_u24 {vXo}, 896, {vXo}"); a(f"v_lshl_add_u32 {vXo}, {vg}, 4, {vXo}")
    a(f"s_bfe_u32 s44, {sR}, 0x10003")
    a(f"s_add_u32 s45, {sR}, {cbd}"); a("s_and_b32 s45, s45, 7"); a(f"s_lshl3_add_u32 s45, {sX}, s45")
    a(f"s_mul_i32 s46, {sT0}, {8*bx}"); a("s_xor_b32 s47, s45, s46")
    a(f"s_mul_i32 s46, s44, {224*8192}"); a("s_lshl_b32 s47, s47, 7"); a(f"s_add_u32 {sOff}, s46, s47")
    a(f"s_mul_i32 {sT2}, s44, 448")
    srd(32, None, None, 0 if nowo & 4 else 0x380000); srd(36, None, None, 0 if nox else 3584)
    a(f"s_mov_b32 m0, {L_WQ}")
    a(f"s_cmp_eq_u32 {sT0}, 0")
    a("s_waitcnt lgkmcnt(0)")
    a("s_cselect_b32 s32, s10, s20"); a("s_cselect_b32 s33, s11, s21")
    a("s_cselect_b32 s36, s4, s14"); a("s_cselect_b32 s37, s5, s15")
    tag_load()
    idk = []
    if wt is not None:
        a(f"v_lshlrev_b32 {t0}, 13, {t3}"); a(f"v_lshl_add_u32 {t0}, {t2}, 3, {t0}")
        a(f"s_and_b32 s40, {sR}, 15"); a(f"s_mul_i32 s40, s40, {28*8192}"); a(f"s_lshl_b32 s41, {sX}, 10"); a("s_add_u32 s40, s40, s41")
        for i in range(4):
            if i == 3: a("s_mov_b32 exec_hi, 0")
            a(f"buffer_load_dword v{8+i}, {t0}, {WQ}, s40 offen {wt}")
            if i < 3: a("s_add_u32 s40, s40, 65536")
        a("s_mov_b32 exec_hi, -1")
        if wtw: a("s_waitcnt vmcnt(0)")
        stamp("touched")
    if krot or krp:
        a(f"s_mul_i32 s40, s44, {krot}"); a(f"s_mul_i32 s41, {sT0}, {krp}"); a("s_add_u32 s40, s40, s41")
        a("s_cmp_ge_u32 s40, 7"); a("s_cselect_b32 s41, 7, 0"); a("s_sub_u32 s40, s40, s41")
        a("s_lshl_b32 s41, s40, 18"); a(f"s_add_u32 {sOff}, {sOff}, s41"); a("s_lshl_b32 s41, s40, 6"); a(f"s_add_u32 {sT2}, {sT2}, s41")
    for k in range(7):
        a(f"buffer_load_dwordx4 {vr(XOP+4*k)}, {vXo}, {XS}, {sT2} offen offset:{0 if krot or krp else 64*k}")
        if wqt and k >= wqt: a.wait_vm(idk[k - wqt])
        for j in range(4):
            r = a(f"buffer_load_dwordx4 {vKo}, {WQ}, {sOff} offen {pol} lds")
            if k < 6 or j < 3:
                a("s_add_u32 m0, m0, 1024"); a(f"s_add_u32 {sOff}, {sOff}, 65536")
        if (krot or krp) and k < 6:
            a(f"s_cmp_eq_u32 s40, {6 - k}"); a(f"s_cselect_b32 s41, {7 << 18}, 0"); a(f"s_cselect_b32 s42, {-6 << 6}, 64")
            a(f"s_sub_u32 {sOff}, {sOff}, s41"); a(f"s_add_i32 {sT2}, {sT2}, s42")
        idk.append(r)
    stamp("wq_issued")
    sQs = "s64"; sMc = "s48"; sPa = "s49"; sPb = "s50"; sBz = "s51"; sRd = "s69"; sFl = "s70"
    a(f"s_lshl1_add_u32 {sQs}, {sT0}, s44"); a(f"s_lshl_b32 {sQs}, {sQs}, 16"); a("s_lshl_b32 s46, s45, 10"); a(f"s_add_u32 {sQs}, {sQs}, s46")
    a(f"s_lshl3_add_u32 {sMc}, {sT0}, {sX}"); a(f"s_and_b32 {sT3}, {sR}, 15"); a(f"s_lshl4_add_u32 {sMc}, {sMc}, {sT3}")
    a(f"s_lshl_b32 {sMc}, {sMc}, 7"); a(f"s_add_u32 {sMc}, {sMc}, {WS_ML}")
    srd(60, "s28", "s29", WS_END)
    unit(1); unit_v()
    a(f"s_lshl_b32 {sRecA}, {sH}, 14"); a(f"s_add_u32 {sRecA}, {sRecA}, {WS_PO}")
    a(f"s_lshl_b32 {sRecB}, {sX}, 15"); a(f"s_add_u32 {sRecB}, {sRecB}, {WS_PO + 16*16384}")
    a(f"s_lshl_b32 {sPa}, {sT3}, 9"); a(f"s_add_u32 {sPa}, {sPa}, {sRecA}")
    a(f"s_lshl_b32 {sPb}, {sR}, 9"); a(f"s_add_u32 {sPb}, {sPb}, {sRecB}")
    a(f"v_and_b32 {t0}, 31, {vL}"); a(f"v_lshlrev_b32 {t0}, 4, {t0}"); a(f"v_lshrrev_b32 {t1}, 5, {vL}"); a(f"v_lshl_add_u32 v18, {t1}, 14, {t0}")
    a(f"s_lshl4_add_u32 {sRecA}, {sT3}, {sRecA}")
    a(f"s_lshr_b32 {sT0}, {sR}, 3"); a(f"s_and_b32 {sT1}, {sR}, 3"); a(f"s_lshl2_add_u32 {sT0}, {sT0}, {sT1}"); a(f"s_lshl4_add_u32 {sRecB}, {sT0}, {sRecB}")
    a(f"s_bfe_u32 {sT0}, {sR}, 0x10002"); a(f"s_lshl_b32 {sT0}, {sT0}, 13"); a(f"s_add_u32 {sRecB}, {sRecB}, {sT0}")
    a(f"v_lshrrev_b32 {t0}, 1, {vL}"); a(f"v_lshlrev_b32 {t0}, 8, {t0}"); a(f"v_and_b32 {t1}, 1, {vL}"); a(f"v_lshl_add_u32 {vPa}, {t1}, 3, {t0}")
    a(f"s_mul_i32 {sRd}, {sX}, 4352"); a(f"s_add_u32 {sRd}, {sRd}, {WS_GC}")
    a(f"s_cmp_eq_u32 {sR}, 0"); a(f"s_cselect_b32 {sBz}, {sRd}, {OOB}")
    a(f"s_lshl_b32 {sFl}, {sX}, 12"); a(f"s_add_u32 {sFl}, {sFl}, {WS_FL}")
    for i in range(4): a(f"v_mov_b32 v{AOP+i}, -1")
    for i in range(4): a(f"v_mov_b32 v{ACC+i}, 0")
    a(f"v_lshlrev_b32 {vL16}, 4, {vL}"); a(f"v_lshlrev_b32 {vL8}, 3, {vL}"); a(f"v_lshlrev_b32 {t3}, 7, {vL}")
    a(f"v_and_b32 {t0}, 3, {vn}"); a(f"v_lshlrev_b32 {t0}, 8, {t0}"); a(f"v_lshrrev_b32 {t1}, 2, {vn}")
    a(f"v_lshl_add_u32 {t0}, {t1}, 6, {t0}"); a(f"v_lshl_add_u32 {vQt}, {vg}, 4, {t0}")
    def hello_ld(): a(f"buffer_load_dwordx2 v[12:13], {t3}, {WS}, {sFl} offen sc1")
    for k in range(8):
        if k < 7: a.wait_vm(idk[k])
        if k == hk:
            a("s_mov_b32 exec_hi, 0"); hello_ld(); a("s_mov_b32 exec_hi, -1")
        if k: a("s_waitcnt lgkmcnt(0)")
        if k < 7:
            for c in range(4):
                a(f"ds_read_b64_tr_b16 {vr(WOP+16*(k%3)+4*c,2)}, {vTr} offset:{L_WQ + k*4096 + 32*c}")
                a(f"ds_read_b64_tr_b16 {vr(WOP+16*(k%3)+4*c+2,2)}, {vTr} offset:{L_WQ + k*4096 + 32*c + 512}")
        if k:
            for c in range(4):
                a(f"v_mfma_f32_16x16x32_bf16 {vr(QD+4*c)}, {vr(WOP+16*((k-1)%3)+4*c)}, {vr(XOP+4*(k-1))}, {vr(QD+4*c) if k > 1 else 0}")
    tag_make()
    for c in range(1, 4):
        for e in range(4):
            a(f"v_mov_b32_dpp v{QD+e}, v{QD+4*c+e} quad_perm:[0,1,2,3] row_mask:0xf bank_mask:{1<<c}")
    a(f"ds_write_b128 {vQt}, {vr(QD)} offset:{L_PART}")
    a(f"ds_read_b128 {vr(QD)}, {vL16} offset:{L_PART}")
    stamp("q_done")
    a("s_waitcnt vmcnt(0) lgkmcnt(0)")
    a("s_mov_b32 exec_hi, 0")
    poll("L_fl", hello_ld, lambda: tag_chk([12]), sleep=16, masked=True, first_issued=True)
    a("v_cmp_ne_u32 vcc, s59, v13")
    a("s_cmp_eq_u32 vcc_lo, 0"); a(f"s_cselect_b32 {sLocal}, {2 if force_remote else 1}, 2")
    stamp("hello_seen")
    a("v_mov_b32 v8, s56"); a("v_mov_b32 v9, s59")
    a(f"s_lshl3_add_u32 {sT1}, {sR}, {sRd}")
    def first_stores(b):
        a(f"buffer_store_dwordx4 {vr(QD)}, {vL16}, {WS}, {sQs} offen{b}")
        a(f"buffer_store_dwordx4 {vr(AOP)}, v18, {WS}, {sPb} offen{b}")
        a("s_mov_b32 exec_hi, 0")
        a(f"buffer_store_dwordx4 {vr(AOP)}, v18, {WS}, {sPa} offen{b}")
        a("s_mov_b32 exec_lo, 0xffff")
        a(f"buffer_store_dwordx4 {vr(ACC)}, {vL16}, {WS}, {sBz} offen{b}")
        a("s_mov_b32 exec_lo, 0xff")
        a(f"buffer_store_dwordx4 {vr(AOP)}, {vL16}, {WS}, {sMc} offen{b}")
        a("s_mov_b32 exec_lo, 1")
        a("s_waitcnt vmcnt(0)")
        a(f"buffer_store_dwordx2 v[8:9], off, {WS}, {sT1} offset:256{b}")
    by_placement("first", first_stores)
    a("s_mov_b32 exec_lo, -1")
    stamp("ready")
    poll("L_rd", lambda: a(f"buffer_load_dwordx2 v[12:13], {vL8}, {WS}, {sRd} offen offset:256 sc1"), lambda: tag_chk([12]), sleep=hsleep, masked=True)
    stamp("go_seen")
    a(f"v_lshlrev_b32 {t0}, 4, {vn}"); a(f"v_lshl_add_u32 {t0}, {vg}, 10, {t0}")
    a(f"s_lshr_b32 {sT0}, {sR}, 3"); a(f"s_lshl_b32 {sT0}, {sT0}, 8"); a(f"s_lshl_b32 {sT1}, {sX}, 13"); a(f"s_add_u32 {sT0}, {sT0}, {sT1}")
    a(f"s_add_u32 {sT0}, {sT0}, 0x20000")
    a(f"s_lshl4_add_u32 {sT2}, {sH}, {sB}"); a(f"s_lshl_b32 {sT2}, {sT2}, 8")
    for u in (2, 0, 1):
        for kh in range(2):
            a(f"s_add_u32 {sT1}, {sT2 if u == 2 else sT0}, {kh * 0x10000 + (4096 if u == 1 else 0)}")
            a(f"buffer_load_dwordx4 {vr(64+8*u+4*kh)}, {t0}, {WS}, {sT1} offen sc1")
    a(f"s_mov_b32 {sT1}, {WS_CH}")
    a("s_mov_b64 exec, 0xff")
    poll("L_ch", lambda: a(f"buffer_load_dwordx2 v[12:13], {t3}, {WS}, {sT1} offen sc1"), lambda: tag_chk([12]), masked=True, sleep=1)
    for bit, dst in ((1, sT0), (2, sT1), (4, sCh)):
        a(f"v_and_b32 v12, {bit}, v13"); a("v_cmp_ne_u32 vcc, 0, v12"); a(f"s_and_b32 {dst}, vcc_lo, 0xff")
    a(f"s_bcnt1_i32_b32 {sT0}, {sT0}"); a(f"s_bcnt1_i32_b32 {sT1}, {sT1}")
    a(f"s_cmp_gt_u32 {sT1}, {sT0}"); a(f"s_cselect_b32 {sT0}, 0xff, 0"); a(f"s_xor_b32 {sCh}, {sCh}, {sT0}")
    a(f"v_mov_b32 {t0}, {L_LOC}"); a(f"v_mov_b32 {t1}, {sLocal}"); a(f"v_mov_b32 {t2}, {sCh}"); a(f"ds_write2_b32 {t0}, {t1}, {t2} offset0:0 offset1:1")
    for u in range(3):
        for e in range(4): a(f"v_add_f32 v{64+8*u+e}, v{64+8*u+e}, v{64+8*u+4+e}")
        for e in range(2): a(f"v_cvt_pk_bf16_f32 v{64+8*u+e}, v{64+8*u+2*e}, v{64+8*u+2*e+1}")
        a(f"ds_write_b64 {vL8}, {vr(64+8*u,2)} offset:{L_Q+512*u}")
    a("s_waitcnt lgkmcnt(0)")
    stamp("q_in_lds")
    a("s_barrier")
    a(f"v_mov_b32 {t3}, 0")
    if vt:
        a(f"s_lshl4_add_u32 s40, {sB}, {sH}"); a("s_lshl_b32 s40, s40, 21")
        a(f"s_andn2_b32 s41, {sR}, 7"); a(f"s_add_u32 s41, s41, {sX}"); a("s_lshl_b32 s41, s41, 21"); a("s_add_u32 s41, s41, 0x180000")
        for pp, o in ((16, "s41"), (18, "s41"), (8, "s40"), (12, sU), (22, sU)):
            a(f"s_add_u32 s{pp}, s{pp}, {o}"); a(f"s_addc_u32 s{pp+1}, s{pp+1}, 0")
        if vt > 1:
            a(f"s_mul_i32 {sT0}, {sR}, {vt - 1}")
            def vchk():
                a("v_add3_u32 v8, v8, v9, v10"); a("v_add_u32 v8, v8, v11"); a(f"v_cmp_ge_u32 vcc, {sT0}, v8")
            poll("L_vt", lambda: a(f"ds_read_b128 v[8:11], {t3} offset:{L_PRG}"), vchk, sleep=2)
        a("s_mov_b64 exec, 1")
        for i, pp in enumerate((16, 18, 8)): a(f"global_load_dword v{12+i}, {t3}, s[{pp}:{pp+1}] {pol}")
        if vtw:
            a(f"s_cmp_ge_u32 {sR}, 28"); a("s_cbranch_scc1 L_vt_nw")
            for i, pp in enumerate((12, 22)): a(f"global_load_dword v{20+i}, {t3}, s[{pp}:{pp+1}] {pol}")
            a("L_vt_nw:")
        a("s_mov_b64 exec, -1")
    poll("L_cnt", lambda: a(f"ds_read_b32 v8, {t3} offset:{L_CNT}"), lambda: a("v_cmp_ne_u32 vcc, 4, v8"), sleep=16)
    stamp("B_in_lds")
    CB = 184
    def combine(u):
        for w in range(4): a(f"ds_read_b128 {vr(CB+4*w)}, {vL16} offset:{L_PART + 4096*u + 1024*w}")
        a("s_waitcnt lgkmcnt(0)" if stamps else "s_waitcnt lgkmcnt(2)")
        for e in range(4): a(f"v_add_f32 v{CB+e}, v{CB+e}, v{CB+4+e}")
        a("s_waitcnt lgkmcnt(0)")
        for e in range(4): a(f"v_add_f32 v{CB+8+e}, v{CB+8+e}, v{CB+12+e}")
        for e in range(4): a(f"v_add_f32 v{CB+e}, v{CB+e}, v{CB+8+e}")
        for e in range(2): a(f"v_cvt_pk_bf16_f32 v{CB+e}, v{CB+2*e}, v{CB+2*e+1}")
        for e in range(2): a(f"v_min_u32 v{CB+16+2*u+e}, -2, v{CB+e}")
    def publish(u, so):
        by_placement(f"pub{u}", lambda b: a(f"buffer_store_dwordx2 {vr(CB+16+2*u,2)}, {vPa}, {WS}, {so} offen{b}"), have_scc=True)
    a(f"s_add_u32 {sT0}, {sRecB}, 16384")
    a(f"s_cmp_eq_u32 {sLocal}, 1")
    for u in range(2):
        combine(u); publish(u, (sRecB, sT0)[u])
    a(f"s_cmp_ge_u32 {sR}, 28"); a("s_cbranch_scc1 L_h_nos2")
    GB = 128; OB = 64
    a(f"s_add_u32 {sT0}, {sG}, 8192")
    def gB():
        for st in range(2):
            for k in range(4): a(f"buffer_load_dwordx4 {vr(GB+16*st+4*k)}, {vGo}, {WS}, {(sG, sT0)[st]} offen offset:{1024*k} sc1")
    poll("L_s2b", gB, lambda: sentinel(range(GB, GB + 32)), sleep=16, masked=True)
    for i in range(16):
        a(f"v_lshlrev_b32 v{160+i}, 16, v{GB+i}"); a(f"v_lshlrev_b32 {t0}, 16, v{GB+16+i}")
        a(f"v_and_b32 v{GB+i}, 0xffff0000, v{GB+i}"); a(f"v_and_b32 v{GB+16+i}, 0xffff0000, v{GB+16+i}")
        a(f"v_add_f32 v{160+i}, v{160+i}, {t0}"); a(f"v_add_f32 v{GB+i}, v{GB+i}, v{GB+16+i}")
    for qp in (QP1, QP2):
        for i in range(16):
            a(f"v_add_f32_dpp v{160+i}, v{160+i}, v{160+i} {qp}"); a(f"v_add_f32_dpp v{GB+i}, v{GB+i}, v{GB+i} {qp}")
    for i in range(16): a(f"v_cvt_pk_bf16_f32 v{GB+i}, v{160+i}, v{GB+i}")
    for k in range(4): a(f"ds_write_b128 {vL16}, {vr(GB+4*k)} offset:{L_PART + 1024*k}")
    a("L_h_nos2:")
    stamp("oB_ready")
    a(f"s_cmp_eq_u32 {sLocal}, 1")
    a("s_waitcnt lgkmcnt(0)")
    a("s_barrier")
    combine(2); publish(2, sRecA)
    stamp("published")
    for i in range(3 if g2 else 2): a("s_barrier")
    if stamps or probe: finish()
    a("L_end:")
    a("s_endpgm")
    a.pad()
    global STAMP_NAMES
    STAMP_NAMES = {k: v[:-1] for k, v in names.items()}
    head = HEADER + f"; @launch grid=(256,1,1) block=({64*NW},1,1) lds={L_KB + NL * 4096}\n"
    head += f'.amdgcn_target "amdgcn-amd-amdhsa--gfx950"\n.text\n.globl {NAME}_kernel\n.p2align 8\n.type {NAME}_kernel,@function\n{NAME}_kernel:\n'
    nv = 256 if stamps else max(RING + 4 * RP, 224)
    assert not (stamps and RP > 47)
    tail = f'''.section .rodata,"a"
.p2align 6
.amdhsa_kernel {NAME}_kernel
  .amdhsa_next_free_vgpr {nv}
  .amdhsa_next_free_sgpr 102
  .amdhsa_accum_offset {nv}
  .amdhsa_group_segment_fixed_size 0
  .amdhsa_kernarg_size 104
  .amdhsa_user_sgpr_count 2
  .amdhsa_user_sgpr_kernarg_segment_ptr 1
  .amdhsa_system_sgpr_workgroup_id_x 1
  .amdhsa_float_denorm_mode_32 3
.end_amdhsa_kernel
'''
    return head + a.text() + tail

if __name__ == "__main__":
    kw = eval("dict(" + (sys.argv[2] if len(sys.argv) > 2 else "") + ")")
    open(sys.argv[1], "w").write(gen(**kw))
```

```python
import os, sys, struct
from asmlib import Asm
def f2u(x): return struct.unpack('<I', struct.pack('<f', x))[0]

NAME = "concat_heads__mha_block_cached__sliding_block_cached__decode"
_ref = "cdna_kernels/" + NAME + ".s.ref"
HEADER = open(_ref).read().split("; Override launch")[0] if os.path.exists(_ref) else ""

WS_QP = 0x0
WS_ML = 0x40000
WS_PO = 0x48000
WS_FL = 0xC8000
WS_GC = 0xD0000
WS_EP = 0xE4000
WS_CH = 0xE5000
WS_Y = 0x100000
YG = 7 * 16384
WS_END = WS_Y + 8 * YG
WS_STAMP = 0x400000
L_WQ = 0
L_WOA = 0
L_WOB = 16384
L_PART = 32768
L_Q = L_PART + 12288
L_CNT = L_Q + 1536
L_LOC = L_CNT + 4
L_CH = L_CNT + 8
L_PRG = L_CNT + 16
L_TH = L_CNT + 32
L_KB = L_CNT + 512
OOB = 0x40000000
TAGC = (0x9E3779B9, 0x7F4A7C15)
CSCALE = 0x3DB8AA3B
NW = 6

def brev(j, bits): return int(f"{j:0{bits}b}"[::-1], 2)
FULL = "row_mask:0xf bank_mask:0xf"
QP1 = "quad_perm:[1,0,3,2] " + FULL
QP2 = "quad_perm:[2,3,0,1] " + FULL

def gen(D=5, D0=5, ND0=12, RP=46, NL=12, ratio=6, stamps=False, fine=False, spin=1 << 19, pol="nt", force_remote=False,
        th0=4.15, thmin=3, gain=0.125, gw=0.08, gx=0.75, gstop=3, gI=1536, gc=1130, c0=6,
        rot=1, rotx=4, rotm=1, tlb=False, wod=2, wpos=0, g2=True, hk=6, hsleep=2, near=None, nrace=4, ml0=4, ml1=6, nowo=0, swz=True, vt=0, pf=2, bx=0, ila=2, ilb=1, rp=4, rph=0, lay=0, kv=0, wqt=0, pbar=4, xm=1, wg=None, wk=1.0, wcap=8, wfake=0, wbe=0, hb=None, rx=None, vtw=False, krot=5, krp=3, cbd=0, nox=False, wt=None, wtw=True, LG=16, thmax=12, nboost=24, xa=(), xb=(), kup=2.0, kat=2.0, probe=None):
    a = Asm()
    NTOT = 288; RT = RP + NL; thmax = min(thmax, LG - 2)
    sWG = "s2"; sW = "s3"
    KA, VA, KB, VB, WQ, XS, WS, OUT, WOA, WOB = (f"s[{i}:{i+3}]" for i in (32, 36, 40, 44, 32, 36, 60, 44, 48, 52))
    sLb = "s64"
    sX, sR, sH, sB = "s72", "s73", "s74", "s75"
    sOff = "s76"; sCnt = "s77"; sT0 = "s78"; sT1 = "s79"; sT2 = "s80"; sT3 = "s81"
    sRecA = "s82"; sRecB = "s83"; sG = "s84"; sY = "s85"; sU = "s86"; sC = "s87"; sSpin = "s88"; sLocal = "s89"
    sMk1 = "s[90:91]"; sMk0 = "s[92:93]"; sTh = "s94"; sRot = "s95"
    vL = "v0"; vKo = "v1"; vM = [f"v{i}" for i in range(2, 6)]
    QA = 6; QB = 14; SP = 30; AOP = 34; ACC = 38
    T = ["v46", "v47"]; U = ["v48", "v49"]; V = ["v50", "v51"]; X = ["v52", "v53"]
    t0, t1, t2, t3 = "v54", "v55", "v56", "v57"
    vm, vl, vg, vn = "v58", "v59", "v60", "v61"
    vmB, vlB = "v62", "v63"
    RING = 64
    OBS = 96; WTB = 112; ACCB = 128; SB = "v136"; vfA = "v137"; MLG = 138; WT = 144; G = 160
    vGo = "v176"; vYo = "v177"; vTr = "v178"; vPa = "v179"; vPrg = "v180"; vPrA = "v181"; vTH = "v182"; vWo = "v183"; vYm = "v206"; vYt = "v207"; vYb = "v184"; vWo2 = "v185"
    def slot(k): return RING + 4 * k
    def vr(i, n=4): return f"v[{i}:{i+n-1}]"
    names = {"s": [], "h": [], "g": []}
    cur = ["s"]
    def stamp(name):
        if probe and name == "start": a("s_memrealtime s[96:97]")
        if probe and len(probe) > 5 and (cur[0], name) == (probe[0], probe[5]): a("s_memrealtime s[26:27]"); a("s_waitcnt lgkmcnt(0)")
        if probe and (cur[0], name) == probe[:2]: a("s_memrealtime s[20:21]"); a("s_waitcnt lgkmcnt(0)")
        if not stamps: return
        nm = names[cur[0]]
        if nm:
            a("s_waitcnt lgkmcnt(0)")
            a(f"v_writelane_b32 v255, s96, {len(nm)-1}")
        nm.append(name)
        a("s_memrealtime s[96:97]")
    def finish():
        if probe and cur[0] == probe[0]:
            if probe[1] == "end": a("s_memrealtime s[20:21]"); a("s_waitcnt lgkmcnt(0)")
            a(f"s_sub_u32 s20, s20, {'s26' if len(probe) > 5 else 's96'}"); a(f"s_mul_i32 s20, s20, {probe[2]}"); a(f"s_add_u32 s20, s20, {probe[4]}")
            if probe[3] is not None: a(f"s_cmp_eq_u32 {sR if probe[3] < 32 else sWG}, {probe[3]}"); a("s_cselect_b32 s20, s20, 0")
            a("s_min_u32 s20, s20, 40000")
            a("L_probe:"); a("s_memrealtime s[22:23]"); a("s_waitcnt lgkmcnt(0)"); a("s_sub_u32 s22, s22, s96"); a("s_cmp_lt_u32 s22, s20"); a("s_cbranch_scc1 L_probe")
        if stamps:
            a("s_mov_b64 exec, -1")
            stamp("end"); a("s_waitcnt vmcnt(0)"); stamp("acked"); stamp("x")
            a("s_mov_b32 exec_hi, 0")
            a(f"s_mul_i32 {sT0}, {sWG}, {NW}"); a(f"s_add_u32 {sT0}, {sT0}, {sW}"); a(f"s_lshl_b32 {sT0}, {sT0}, 7"); a(f"s_add_u32 {sT0}, {sT0}, {WS_STAMP}")
            a(f"v_lshl_add_u32 {t0}, {vL}, 2, {sT0}")
            a(f"global_store_dword {t0}, v255, s[28:29]")
        a("s_endpgm")
    def srd(i, lo, hi, size):
        if lo is not None: a(f"s_mov_b32 s{i}, {lo}"); a(f"s_mov_b32 s{i+1}, {hi}")
        a(f"s_mov_b32 s{i+2}, {size}"); a(f"s_mov_b32 s{i+3}, 0x20000")
    def poll(name, loads, check, sleep=0, first_issued=False, masked=False):
        sv = a.vm_seq
        a(f"s_mov_b32 {sSpin}, {spin}")
        if first_issued: a(f"s_branch {name}_chk")
        a(f"{name}:")
        if sleep: a(f"s_sleep {sleep}")
        loads()
        a(f"s_sub_u32 {sSpin}, {sSpin}, 1"); a(f"s_cmp_eq_u32 {sSpin}, 0")
        a("s_waitcnt vmcnt(0) lgkmcnt(0)")
        a(f"s_cbranch_scc1 {name}_go")
        if first_issued: a(f"{name}_chk:")
        check()
        if masked:
            a("s_and_b64 exec, exec, vcc")
            a(f"s_cbranch_scc1 {name}")
        else:
            a(f"s_cbranch_vccnz {name}")
        a(f"{name}_go:")
        if masked: a("s_mov_b64 exec, -1")
        if first_issued: a.vm_seq = sv
    def by_placement(tag, emit, have_scc=False):
        if not have_scc: a(f"s_cmp_eq_u32 {sLocal}, 1")
        a(f"s_cbranch_scc1 L_{tag}_l")
        sv = a.vm_seq
        emit(" sc1"); a.vm_seq = sv
        a(f"s_branch L_{tag}_d")
        a(f"L_{tag}_l:")
        emit("")
        a(f"L_{tag}_d:")
    def sentinel(regs):
        regs = list(regs); accs = [t0, t2]
        a(f"v_max_u32 {t0}, v{regs[0]}, v{regs[1]}"); a(f"v_max_u32 {t2}, v{regs[2]}, v{regs[3]}")
        for i in range(4, len(regs), 2):
            c = accs[(i >> 1) & 1]
            a(f"v_max3_u32 {c}, {c}, v{regs[i]}, v{regs[i+1]}")
        a(f"v_max_u32 {t0}, {t0}, {t2}")
        a(f"v_cmp_eq_u32 vcc, -1, {t0}")
    def red(op, r, steps):
        for s in steps:
            if s in (16, 32):
                a(f"v_mov_b32 {t1}, {r}"); a(f"v_permlane{s}_swap_b32 {r}, {t1}"); a(f"{op} {r}, {r}, {t1}")
            elif s == "q1": a(f"{op}_dpp {r}, {r}, {r} {QP1}")
            elif s == "q2": a(f"{op}_dpp {r}, {r}, {r} {QP2}")
            else: a(f"{op}_dpp {r}, {r}, {r} row_ror:{s} {FULL}")
    def rnd(r):
        a(f"v_cvt_pk_bf16_f32 {r}, {r}, {r}"); a(f"v_and_b32 {r}, 0xffff0000, {r}")
    def unit(P):
        a(f"s_mul_i32 {sT0}, {sR}, 37"); a(f"s_lshr_b32 {sT0}, {sT0}, 8")
        a(f"s_mul_i32 {sT1}, {sT0}, 7"); a(f"s_sub_u32 {sT1}, {sR}, {sT1}")
        a(f"s_lshl_b32 {sT2}, {sX}, 2"); a(f"s_add_u32 {sT0}, {sT0}, {sT2}")
        a(f"s_mul_i32 {sU}, {sT0}, {128*896}"); a(f"s_lshl_b32 {sT2}, {sT1}, 7"); a(f"s_add_u32 {sU}, {sU}, {sT2}")
        a(f"s_lshr_b32 {sG}, {sT0}, 1"); a(f"s_lshl_b32 {sG}, {sG}, 14"); a(f"s_and_b32 {sT2}, {sT0}, 1"); a(f"s_lshl_b32 {sT2}, {sT2}, 12")
        a(f"s_add_u32 {sG}, {sG}, {sT2}"); a(f"s_add_u32 {sG}, {sG}, {WS_PO + P*512*512}")
        a(f"s_lshl_b32 {sY}, {sT1}, 14"); a(f"s_lshl_b32 {sT2}, {sT0}, 6"); a(f"s_add_u32 {sY}, {sY}, {sT2}")
        a(f"s_add_u32 {sY}, {sY}, {WS_Y}")
    def unit_v():
        a(f"v_lshrrev_b32 {t0}, 2, {vn}"); a(f"v_and_b32 {t2}, 3, {vn}")
        a(f"v_lshlrev_b32 {vGo}, 4, {vL}")
        a(f"v_lshl_add_u32 {vTr}, {vg}, 3, {t0}"); a(f"v_lshlrev_b32 {vTr}, 7, {vTr}"); a(f"v_lshl_add_u32 {vTr}, {t2}, 3, {vTr}")
        a(f"v_lshrrev_b32 {t0}, 3, {vL}"); a(f"v_mul_u32_u24 {t0}, 896, {t0}"); a(f"v_and_b32 {t2}, 7, {vL}"); a(f"v_lshl_add_u32 {vWo}, {t2}, 4, {t0}")
    sCh = "s71"
    def y_base(dst, P):
        a(f"v_add_u32 {t0}, {4*P}, {vg}"); a(f"v_mul_u32_u24 {dst}, {YG}, {t0}")
        a(f"v_bfe_u32 {t2}, {sCh}, {t0}, 1"); a(f"v_lshl_add_u32 {dst}, {t2}, 13, {dst}"); a(f"v_lshl_add_u32 {dst}, {vn}, 2, {dst}")
    def tag_load(): a(f"s_load_dwordx2 s[56:57], s[28:29], {WS_EP}")
    def tag_make():
        a(f"s_add_u32 s56, s56, {TAGC[0]}"); a(f"s_addc_u32 s57, s57, {TAGC[1]}"); a("s_lshr_b32 s58, s57, 4")
        a(f"s_getreg_b32 {sT0}, hwreg(HW_REG_XCC_ID, 0, 4)")
        a("s_lshl_b32 s59, s58, 4"); a(f"s_or_b32 s59, s59, {sT0}")
    def tag_chk(regs):
        for i, r in enumerate(regs):
            a(f"v_lshrrev_b32 {t1}, 4, v{r+1}"); a(f"v_xor_b32 {t1}, s58, {t1}"); a(f"v_xor_b32 {t2}, s56, v{r}")
            if i: a(f"v_or3_b32 {t0}, {t0}, {t1}, {t2}")
            else: a(f"v_or_b32 {t0}, {t1}, {t2}")
        a(f"v_cmp_ne_u32 vcc, 0, {t0}")

    YT = ["s65", "s66", "s67", "s68"]
    def ytag_make():
        a(f"s_and_b32 {YT[0]}, s56, 0xfff"); a(f"s_bfe_u32 {YT[1]}, s56, 0xc000c")
        a(f"s_and_b32 {YT[2]}, s58, 0xfff"); a(f"s_bfe_u32 {YT[3]}, s58, 0xc000c")
    def y_seal(r):
        a(f"v_add_u32 v{r}, 0x800, v{r}"); a(f"v_and_or_b32 v{r}, v{r}, {vYm}, {vYt}")

    a("s_load_dwordx16 s[4:19], s[0:1], 0")
    a("s_load_dwordx8 s[20:27], s[0:1], 64")
    a("s_load_dwordx2 s[28:29], s[0:1], 96")
    stamp("start"); names["h"] = list(names["s"]); names["g"] = list(names["s"])
    a(f"s_cmp_ge_u32 {sWG}, 256")
    a("s_cbranch_scc1 L_end")
    a(f"v_lshrrev_b32 {t2}, 6, v0")
    a(f"v_and_b32 {vL}, 63, v0")
    a(f"v_readfirstlane_b32 {sW}, {t2}")
    a(f"v_lshrrev_b32 {vg}, 4, {vL}")
    a(f"v_and_b32 {vn}, 15, {vL}")
    a(f"s_and_b32 {sX}, {sWG}, 7")
    a(f"s_lshr_b32 {sR}, {sWG}, 3")
    a(f"s_lshr_b32 {sT0}, {sWG}, 7")
    a(f"s_lshl1_add_u32 {sH}, {sX}, {sT0}")
    a(f"s_bfe_u32 {sB}, {sR}, 0x20002")
    a(f"s_cmp_ge_u32 {sW}, 4")
    a("s_cbranch_scc1 L_helper")

    a(f"v_lshl_add_u32 {vKo}, {t2}, 2, {vg}")
    a(f"v_lshl_add_u32 {vKo}, {vKo}, 5, {vn}")
    a(f"v_lshlrev_b32 {vKo}, 4, {vKo}")
    HA = 3 << (13 + ila); HB = 7 << (13 + ilb)
    a(f"s_lshl4_add_u32 s40, {sB}, {sH}"); a(f"s_and_b32 s41, {sR}, 3")
    if hb:
        HA = (1 << hb[0]) | (1 << hb[1])
        a("s_lshl_b32 s40, s40, 21"); a("s_and_b32 s42, s41, 1"); a(f"s_lshl_b32 s42, s42, {hb[0]}"); a("s_add_u32 s40, s40, s42")
        a("s_lshr_b32 s42, s41, 1"); a(f"s_lshl_b32 s42, s42, {hb[1]}"); a("s_add_u32 s40, s40, s42")
    elif ila == 6:
        a("s_lshl2_add_u32 s40, s40, s41"); a("s_lshl_b32 s40, s40, 19")
    else:
        a(f"s_lshl_b32 s40, s40, {8 - ila}"); a("s_add_u32 s40, s40, s41"); a(f"s_lshl_b32 s40, s40, {13 + ila}")
    NRA = 0x200000 - HA; MA_ = 0x1fffff & ~HA
    if lay:
        nb = 3 + lay
        HA = (((1 << nb) - 1) << (13 + ila)) | ((15 << 21) if lay == 1 else (7 << 22))
        NRA = 0x8000000 - HA; MA_ = 0x7ffffff & ~HA
        a(f"s_and_b32 s40, {sR}, {(1 << nb) - 1}"); a(f"s_lshl_b32 s40, s40, {13 + ila}")
        a(f"s_lshl_b32 s42, {sH if lay == 1 else sX}, {20 + lay}"); a("s_add_u32 s40, s40, s42")
    srd(32, None, None, NRA)
    cur_off = [0]
    sMask = "s70"; sHole = "s100"; sRa = "s101"
    rota = rp or rph
    if rx:
        a(f"s_mul_i32 {sRa}, {sB}, {rx[0]}"); a(f"s_mul_i32 {sOff}, {sH}, {rx[1]}"); a(f"s_add_u32 {sRa}, {sRa}, {sOff}")
        a(f"s_lshr_b32 {sRa}, {sRa}, {rx[2]}"); a(f"s_and_b32 {sRa}, {sRa}, 3"); a(f"s_lshl_b32 {sRa}, {sRa}, 19")
    elif rp << ila == 16 and not rph:
        a(f"s_lshl_b32 {sRa}, {sB}, 19")
    elif rota:
        a(f"s_mul_i32 {sRa}, {sB}, {rp}"); a(f"s_mul_i32 {sOff}, {sH}, {rph}"); a(f"s_add_u32 {sRa}, {sRa}, {sOff}")
        a(f"s_lshl_b32 {sRa}, {sRa}, {15 + ila}"); a(f"s_and_b32 {sRa}, {sRa}, 0x1fffff")
    a(f"s_mov_b32 {sOff}, {sRa if rota else 0}")
    sXo = "s4"; sXa = "s5"; sXb = "s10"; sEff = "s11"
    def xor_make(dst, spec):
        a(f"s_mov_b32 {dst}, 0")
        for bit, src in spec:
            a(f"s_bitcmp1_b32 {sWG}, {src}"); a(f"s_cselect_b32 {sT1}, {1 << bit}, 0"); a(f"s_xor_b32 {dst}, {dst}, {sT1}")
    def advance(n, masked=False):
        if masked:
            a(f"s_or_b32 {sOff}, {sOff}, {sHole}"); a(f"s_addk_i32 {sOff}, 8192"); a(f"s_and_b32 {sOff}, {sOff}, {sMask}")
        else:
            nx = ((cur_off[0] | HA) + 8192) & ~HA
            d = nx - cur_off[0]; cur_off[0] = nx
            if d == 8192: a(f"s_addk_i32 {sOff}, 8192")
            else:
                a(f"s_add_u32 {sOff}, {sOff}, {d}")
                if rota: a(f"s_bitset0_b32 {sOff}, 21")
    def backlog(P0, do_issue, do_proc):
        p = 0; burst = 0; iss = RT
        while not (p % LG == 0 and iss - p == LG and p >= RT):
            do_proc(p); p += 1
            free = iss - RT < p and (P0 is None or iss < P0 + LG)
            if iss - p < LG or (iss - p > LG and free and (burst < D or p % ratio == 0)):
                assert free
                do_issue(); iss += 1; burst += 1
        return p
    P0 = backlog(None, lambda: None, lambda p: None)
    assert P0 - RT <= 16 and P0 <= 112
    a("s_waitcnt lgkmcnt(0)")
    a(f"s_add_u32 s32, s{6+2*kv}, s40"); a(f"s_addc_u32 s33, s{7+2*kv}, 0")
    if xa: xor_make(sXa, xa); a(f"s_mov_b32 {sXo}, {sXa}")
    ids = {}
    def srd_of(n): return KA if n < 128 else KB if n < 144 else VB if n < 160 else VA
    def kslot(n):
        if n >= P0: return n % LG
        if n >= RT: return LG + n - RT
        if n >= RP: return 32 + (n - RP) % 8
        NT = P0 - RT
        return LG + n if n < NT else n - NT if n < NT + LG else n
    def issue(n, masked=False):
        if n == 144: a(f"s_mov_b32 {sOff}, {sRot}")
        if n == 160:
            a(f"s_mov_b32 {sOff}, {sRa if rota else 0}"); a(f"s_mov_b32 {sHole}, {HA}"); a(f"s_mov_b32 {sMask}, {MA_}")
            if xa or xb: a(f"s_mov_b32 {sXo}, {sXa if xa else 0}")
        masked = masked or n >= 128
        so = sOff
        if xa or (xb and masked and n < 160):
            so = sEff
            if not n & 1: a(f"s_xor_b32 {sEff}, {sOff}, {sXo}")
        if RP <= n < RT:
            a(f"s_add_u32 m0, {sLb}, {256 + (n - RP) * 1024 - 256 * (n & 1)}")
            ids[n] = a(f"buffer_load_dwordx4 {vKo}, {srd_of(n)}, {so} offen offset:{256*(n&1)} {pol} lds")
        else:
            ids[n] = a(f"buffer_load_dwordx4 {vr(slot(kslot(n)))}, {vKo}, {srd_of(n)}, {so} offen offset:{256*(n&1)} {pol}")
        if n & 1: advance(n, masked)
    for n in range(D0): issue(n)
    issued = D0
    stamp("k0")
    tag_load()
    a(f"s_add_u32 s36, s{8-2*kv}, s40"); a(f"s_addc_u32 s37, s{9-2*kv}, 0"); srd(36, None, None, NRA)
    a(f"s_lshl2_add_u32 {sRecA}, {sH}, {sB}"); a(f"s_lshl3_add_u32 {sRecA}, {sRecA}, s41")
    a(f"s_lshl_b32 {sRecB}, {sX}, 6"); a(f"s_add_u32 {sRecB}, {sRecB}, {sR}"); a(f"s_add_u32 {sRecB}, {sRecB}, 512")
    a(f"s_andn2_b32 s44, {sR}, 7"); a(f"s_add_u32 s44, s44, {sX}"); a(f"s_xor_b32 s44, s44, {bx}"); a("s_lshl_b32 s44, s44, 21")
    a(f"s_and_b32 s45, {sR}, 7"); a(f"s_lshl_b32 s45, s45, {13 + ilb}"); a("s_add_u32 s44, s44, s45"); a("s_add_u32 s44, s44, 0x180000")
    a("s_add_u32 s40, s16, s44"); a("s_addc_u32 s41, s17, 0"); srd(40, None, None, 0x80000 - HB)
    a("s_add_u32 s44, s18, s44"); a("s_addc_u32 s45, s19, 0"); srd(44, None, None, 0x80000 - HB)
    srd(60, "s28", "s29", WS_END); srd(48, "s12", "s13", 0 if nowo & 1 else 0x380000); srd(52, "s22", "s23", 0 if nowo & 2 else 0x380000)
    unit(0)
    a(f"s_mul_i32 {sT0}, {sW}, {4*8*896}"); a(f"s_add_u32 {sU}, {sU}, {sT0}")
    a(f"s_lshl_b32 {sT0}, {sW}, 11"); a(f"s_add_u32 {sY}, {sY}, {sT0}")
    sUB = "s69"
    a(f"s_xor_b32 {sT0}, {sX}, {bx}"); a(f"s_sub_i32 {sT0}, {sT0}, {sX}"); a(f"s_mul_i32 {sT0}, {sT0}, {512*896}"); a(f"s_add_u32 {sUB}, {sU}, {sT0}")
    a(f"s_cmp_ge_u32 {sR}, 28"); a(f"s_cselect_b32 {sU}, {OOB}, {sU}"); a(f"s_cselect_b32 {sUB}, {OOB}, {sUB}"); a(f"s_cselect_b32 {sG}, {OOB}, {sG}")
    if True:
        a(f"s_mul_i32 {sRot}, {sR}, {rot}"); a(f"s_mul_i32 {sT0}, {sX}, {rotx}"); a(f"s_add_u32 {sRot}, {sRot}, {sT0}")
        a(f"s_and_b32 {sRot}, {sRot}, {rotm}")
        a(f"s_lshr_b32 {sT0}, {sRot}, {ilb}"); a(f"s_mul_i32 {sT0}, {sT0}, {7 << ilb}"); a(f"s_add_u32 {sRot}, {sRot}, {sT0}"); a(f"s_lshl_b32 {sRot}, {sRot}, 13")
    if xa or xb: xor_make(sXb, xb)
    if xb and not xa: a(f"s_mov_b32 {sXo}, 0")
    a(f"s_mov_b32 {sC}, {CSCALE}")
    a("s_mov_b32 s90, 0xcccccccc"); a("s_mov_b32 s91, 0xcccccccc")
    a("s_mov_b32 s92, 0xaaaaaaaa"); a("s_mov_b32 s93, 0xaaaaaaaa")
    a("s_and_b64 s[98:99], s[90:91], s[92:93]"); a(f"s_mov_b32 {sHole}, {HA}"); a(f"s_mov_b32 {sMask}, {MA_}")
    a(f"v_bfe_u32 {t0}, {vL}, 1, 2")
    a(f"v_mov_b32 {t2}, 0xffff"); a(f"v_mov_b32 {t1}, 0xffff0000")
    a(f"v_cndmask_b32 {t2}, {t2}, {t1}, {sMk0}")
    for j in range(4):
        a(f"v_cmp_eq_u32 vcc, {j}, {t0}")
        a(f"v_cndmask_b32 {vM[j]}, 0, {t2}, vcc")
    a(f"v_lshlrev_b32 {t3}, 4, {vn}"); a(f"v_mov_b32 {t0}, {L_LOC}")
    a(f"s_mul_i32 {sLb}, {sW}, {NL * 1024}"); a(f"s_add_u32 {sLb}, {sLb}, {L_KB - 256}")
    if nboost:
        a(f"s_and_b32 {sT0}, {sR}, 7"); a(f"s_cmp_eq_u32 {sT0}, 3"); a("s_cselect_b64 vcc, -1, 0")
    landed = -1
    def throttled_issue():
        nonlocal issued, landed
        d = D0 if issued < ND0 else D
        if issued - d > landed:
            if 14 <= issued < 14 + nboost:
                landed = max(landed, issued - d - 1); a.wait_vm(ids[issued - d - 1])
                a(f"s_cbranch_vccnz L_boost{issued}"); a.wait_vm(ids[issued - d]); a(f"L_boost{issued}:")
            else:
                landed = issued - d; a.wait_vm(ids[landed])
        issue(issued); issued += 1
    while issued < RT - pbar:
        throttled_issue()
        if (fine or probe) and issued in (D0 + 1, 16, 26, 36, 46, 56, 66): stamp(f"ki{issued}")
        if issued == 24:
            a("s_waitcnt lgkmcnt(0)"); tag_make(); ytag_make()
    stamp("ring_full")
    a("s_barrier")
    if probe or fine: stamp("bar")
    a(f"ds_read_b128 {vr(QA)}, {t3} offset:{L_Q+1024}"); a(f"ds_read_b128 {vr(QA+4)}, {t3} offset:{L_Q+1024+256}")
    for k in range(4): a(f"ds_read_b128 {vr(QB+4*k)}, {t3} offset:{L_Q+256*k}")
    a(f"ds_read2_b32 v[54:55], {t0} offset0:0 offset1:1")
    while issued < RT: throttled_issue()
    a(f"v_lshl_add_u32 {t3}, {vL}, 4, {sLb}")
    a("s_waitcnt lgkmcnt(0)")
    a(f"v_readfirstlane_b32 {sLocal}, {t0}"); a(f"v_readfirstlane_b32 {sCh}, {t1}")
    stamp("q_ready")

    def tree(j, acc, dst_fn):
        u = U[(j >> 1) & 1]
        a(f"v_add_f32_dpp {u}, {acc}, {acc} row_ror:8 row_mask:0xf bank_mask:{'0xc' if j & 1 else '0x3'}")
        if not j & 1: return
        v = V[(j >> 2) & 1]
        a(f"v_add_f32_dpp {v}, {u}, {u} row_half_mirror row_mask:0xf bank_mask:{'0xa' if j & 2 else '0x5'}")
        if not j & 2: return
        a(f"v_add_f32_dpp {v}, {v}, {v} {QP2}")
        if not j & 4: return
        x = X[(j >> 3) & 1]
        a(f"v_cndmask_b32 {x}, {V[0]}, {V[1]}, {sMk1}")
        a(f"v_add_f32_dpp {x}, {x}, {x} {QP1}")
        if not j & 8: return
        dst_fn()
    def dots(acc, kr, qr, first):
        if first: a(f"v_mov_b32 {acc}, 0")
        for e in range(4): a(f"v_dot2c_f32_bf16 {acc}, v{kr+e}, v{qr+e}")
    ROT = "quad_perm:[1,2,3,0] " + FULL
    def procK(n, looped=False):
        k = kslot(n); i = (n >> 1) & 3; hf = n & 1
        acc = T[i & 1]
        dots(acc, slot(k), QA + 4 * hf, not hf)
        if not hf: return
        a(f"v_add_f32_dpp {U[0]}, {acc}, {acc} row_ror:8 row_mask:0xf bank_mask:{'0xc' if i & 1 else '0x3'}")
        if not i & 1: return
        a(f"v_add_f32_dpp {V[0]}, {U[0]}, {U[0]} row_half_mirror row_mask:0xf bank_mask:{'0xa' if i & 2 else '0x5'}")
        if not i & 2: return
        r = SP + (0 if looped else ((n >> 3) - P0 // 8) & 3)
        a(f"v_mov_b32_dpp {X[0]}, v{r} {ROT}")
        a(f"v_add_f32_dpp {V[0]}, {V[0]}, {V[0]} {QP2}")
        if looped:
            for e in range(3): a(f"v_mov_b32 v{SP+e}, v{SP+e+1}")
        a(f"v_add_f32_dpp {V[0]}, {V[0]}, {V[0]} {QP1}")
        a(f"v_cndmask_b32 v{SP+3 if looped else r}, {X[0]}, {V[0]}, s[98:99]")
    def procKB(n):
        k = kslot(n); j = (n - 128) >> 1; hf = n & 1
        for hd in range(2):
            dots(T[hd], slot(k), QB + 8 * hd + 4 * hf, not hf)
        if not hf: return
        for hd in range(2):
            tree(2 * j + hd, T[hd], lambda: a(f"v_cndmask_b32 {SB}, {X[0]}, {X[1]}, {sMk0}"))
    def procVB(n):
        k = kslot(n); j = (n - 144) >> 1; hf = n & 1
        if not hf:
            a(f"v_mov_b32_dpp {t0}, {SB} row_newbcast:{brev(j,3)} row_mask:0xf bank_mask:0x3")
            a(f"v_mov_b32_dpp {t0}, {SB} row_newbcast:{8+brev(j,3)} row_mask:0xf bank_mask:0xc")
            for e in range(4): a(f"v_and_b32 v{AOP+e}, {t0}, {vM[e]}")
        a(f"v_mfma_f32_16x16x32_bf16 {vr(ACCB+4*hf)}, {vr(AOP)}, {vr(slot(k))}, {vr(ACCB+4*hf) if j else 0}")
    def procV(n, last=False):
        k = kslot(n); i = (n >> 1) & 3; hf = n & 1
        if not hf:
            for e in range(4):
                a(f"v_and_b32_dpp v{AOP+e}, v{SP}, {vM[e]} row_newbcast:{8*(i&1) + 4*(i>>1)} {FULL}")
        a(f"v_mfma_f32_16x16x32_bf16 {vr(ACC+4*hf)}, {vr(AOP)}, {vr(slot(k))}, {vr(ACC+4*hf)}")
        if hf and i == 3 and not last:
            a(f"v_mov_b32_dpp {X[0]}, v{SP} {ROT}")
            for e in range(3): a(f"v_mov_b32 v{SP+e}, v{SP+e+1}")
            a(f"v_mov_b32 v{SP+3}, {X[0]}")
    AH = 4
    def backlog_proc(p):
        n = p + AH
        if RP <= n < RT:
            assert n <= landed and p > 39
            a(f"ds_read_b128 {vr(slot(kslot(n)))}, {t3} offset:{256 + (n - RP) * 1024}")
        if RP <= p < RT: a(f"s_waitcnt lgkmcnt({min(AH, RT - 1 - p)})")
        assert p <= landed
        procK(p)
    assert backlog(P0, throttled_issue, backlog_proc) == P0
    total = (NTOT - LG - P0) // 2 * 4
    a(f"s_lshl2_add_u32 {sT0}, {sW}, {L_PRG}")
    a(f"v_mov_b32 {vPrA}, {sT0}"); a(f"v_mov_b32 {vPrg}, 0")
    a(f"s_mov_b32 {sTh}, {int(th0 + 0.5)}")
    stamp("caught_up")
    nlad = [0]
    def pair(n, proc, extra=None, masked=False):
        j = n >> 1
        if j & 1:
            a(f"s_waitcnt vmcnt({LG - 2}) lgkmcnt(0)")
            a(f"v_readfirstlane_b32 {sTh}, {vTH}")
        else:
            a(f"s_waitcnt vmcnt({LG - 2})")
        proc(n); proc(n + 1)
        if thmax < LG - 2: a(f"s_waitcnt vmcnt({thmax})")
        nlad[0] += 1
        for th in range(thmax, thmin, -1):
            a(f"s_cmp_ge_u32 {sTh}, {th}"); a(f"s_cbranch_scc1 L_lad{nlad[0]}")
            a(f"s_waitcnt vmcnt({th - 1})")
        a(f"L_lad{nlad[0]}:")
        issue(n + LG, masked); issue(n + LG + 1, masked)
        a(f"v_add_u32 {vPrg}, 1, {vPrg}")
        a(f"ds_write_b32 {vPrA}, {vPrg}")
        if not j & 1: a(f"ds_read_b32 {vTH}, {vPrA} offset:{L_TH - L_PRG}")
        if extra: extra()
    a(f"s_mov_b32 {sCnt}, {(128 - P0) // LG}")
    a("L_k:")
    a(f"s_sub_u32 {sCnt}, {sCnt}, 1"); a(f"s_cmp_eq_u32 {sCnt}, 0")
    a("s_cselect_b32 s32, s40, s32"); a("s_cselect_b32 s33, s41, s33"); a("s_cselect_b32 s34, s42, s34")
    a(f"s_cselect_b32 {sOff}, {sRot}, {sOff}"); a(f"s_cselect_b32 {sMask}, {0x7ffff & ~HB}, {sMask}"); a(f"s_cselect_b32 {sHole}, {HB}, {sHole}")
    if xa or xb: a(f"s_cselect_b32 {sXo}, {sXb}, {sXo}")
    for n in range(P0, P0 + LG, 2): pair(n, lambda m: procK(m, True), masked=True)
    a(f"s_cmp_lg_u32 {sCnt}, 0"); a("s_cbranch_scc1 L_k")
    stamp("K_done")
    def softmaxA():
        for e in range(4): rnd(f"v{SP+e}")
        a(f"v_max3_f32 {vm}, v{SP}, v{SP+1}, v{SP+2}"); a(f"v_max_f32 {vm}, {vm}, v{SP+3}")
        red("v_max_f32", vm, (8, 4, 2, 1, 16, 32))
        a(f"v_mul_f32 {vm}, {sC}, {vm}")
        for e in range(4): a(f"v_fma_f32 v{SP+e}, v{SP+e}, {sC}, -{vm}")
        for e in range(4): a(f"v_exp_f32 v{SP+e}, v{SP+e}")
        a(f"v_add_f32 {vl}, v{SP}, v{SP+1}"); a(f"v_add_f32 {t0}, v{SP+2}, v{SP+3}"); a(f"v_add_f32 {vl}, {vl}, {t0}")
        for e in range(4): a(f"v_cvt_pk_bf16_f32 v{SP+e}, v{SP+e}, v{SP+e}")
    def softmaxA2():
        red("v_add_f32", vl, (8, 4, 2, 1, 16, 32))
        for e in range(8): a(f"v_mov_b32 v{ACC+e}, 0")
        a(f"v_min_u32 {vm}, -2, {vm}"); a(f"v_min_u32 {vl}, -2, {vl}")
        a(f"s_lshl2_add_u32 {sT0}, {sRecA}, {sW}"); a(f"s_lshl3_add_u32 {sT0}, {sT0}, {WS_ML}")
        a("s_mov_b64 exec, 1")
        by_placement("mla", lambda b: a(f"buffer_store_dwordx2 v[58:59], off, {WS}, {sT0}{b}"))
        a("s_mov_b64 exec, -1")
    def softmaxB():
        rnd(SB)
        a(f"v_mul_f32 {SB}, {sC}, {SB}")
        a(f"v_max_f32_dpp {vmB}, {SB}, {SB} row_half_mirror {FULL}")
        red("v_max_f32", vmB, ("q1", "q2", 16, 32))
        a(f"v_sub_f32 {SB}, {SB}, {vmB}"); a(f"v_exp_f32 {SB}, {SB}")
        a(f"v_add_f32_dpp {vlB}, {SB}, {SB} row_half_mirror {FULL}")
        a(f"v_cvt_pk_bf16_f32 {SB}, {SB}, {SB}")
    def softmaxB2():
        red("v_add_f32", vlB, ("q1", "q2", 16, 32))
        a(f"v_min_u32 {vmB}, -2, {vmB}"); a(f"v_min_u32 {vlB}, -2, {vlB}")
        a(f"s_lshl2_add_u32 {sT0}, {sRecB}, {sW}"); a(f"s_lshl3_add_u32 {sT0}, {sT0}, {WS_ML}")
        a(f"v_lshlrev_b32 {t2}, 7, {vn}")
        a("s_mov_b64 exec, 0x101")
        by_placement("mlb", lambda b: a(f"buffer_store_dwordx2 v[62:63], {t2}, {WS}, {sT0} offen{b}"))
        a("s_mov_b64 exec, -1")
    def addresses():
        if swz:
            a(f"v_bfe_u32 {t0}, {vL}, 3, 2"); a(f"v_xor_b32 {t0}, {sW}, {t0}"); a(f"v_lshl_add_u32 {vTr}, {t0}, 5, {vTr}")
            a(f"v_and_b32 {t0}, 16, {vL}"); a(f"v_lshlrev_b32 {t0}, 1, {t0}"); a(f"v_xor_b32 {vWo}, {t0}, {vWo}"); a(f"v_xor_b32 {vWo2}, 64, {vWo}")
        else:
            a(f"s_lshl_b32 {sT0}, {sW}, 5"); a(f"v_add_u32 {vTr}, {sT0}, {vTr}"); a(f"v_mov_b32 {vWo2}, {vWo}")
        a(f"s_lshl_b32 {sLb}, {sW}, 12")
        if wfake == 1:
            a(f"v_lshlrev_b32 {vWo}, 4, {vL}"); a(f"v_mov_b32 {vWo2}, {vWo}")
            a(f"s_mul_i32 {sU}, {sX}, 28"); a(f"s_add_u32 {sU}, {sU}, {sR}"); a(f"s_lshl2_add_u32 {sU}, {sU}, {sW}"); a(f"s_lshl_b32 {sU}, {sU}, 12")
            a(f"s_cmp_ge_u32 {sR}, 28"); a(f"s_cselect_b32 {sU}, {OOB}, {sU}"); a(f"s_mov_b32 {sUB}, {sU}")
        if wfake == 2:
            a(f"v_mul_u32_u24 {vWo}, 896, {vg}"); a(f"v_lshl_add_u32 {vWo}, {vn}, 4, {vWo}")
            a(f"s_and_b32 {sT0}, {sR}, 3"); a(f"s_cmp_eq_u32 {sT0}, 3"); a(f"s_cselect_b32 {sT1}, 8, 16")
            a(f"v_cmp_gt_u32 vcc, {sT1}, {vn}"); a(f"v_mov_b32 {t0}, {OOB}"); a(f"v_cndmask_b32 {vWo}, {t0}, {vWo}, vcc"); a(f"v_mov_b32 {vWo2}, {vWo}")
            a(f"s_bfe_u32 {sU}, {sR}, 0x20002"); a(f"s_lshl2_add_u32 {sU}, {sX}, {sU}"); a(f"s_lshl2_add_u32 {sU}, {sU}, {sW}"); a(f"s_mul_i32 {sU}, {sU}, {32*896}")
            a(f"s_lshl_b32 {sT0}, {sT0}, 8"); a(f"s_add_u32 {sU}, {sU}, {sT0}"); a(f"s_add_u32 {sUB}, {sU}, {16*896}")
            a(f"s_cmp_ge_u32 {sR}, 16"); a("s_cselect_b32 s48, s52, s48"); a("s_cselect_b32 s49, s53, s49"); a("s_mov_b32 s52, s48"); a("s_mov_b32 s53, s49")
        y_base(vYo, 0); y_base(vYb, 1)
        a(f"v_mov_b32 {vYm}, 0xfffff000")
        a(f"v_mov_b32 {t0}, {YT[0]}"); a(f"v_mov_b32 {t1}, {YT[1]}"); a(f"v_cndmask_b32 {t0}, {t0}, {t1}, {sMk0}")
        a(f"v_mov_b32 {t2}, {YT[2]}"); a(f"v_mov_b32 {t1}, {YT[3]}"); a(f"v_cndmask_b32 {t2}, {t2}, {t1}, {sMk0}")
        a(f"v_cndmask_b32 {vYt}, {t0}, {t2}, {sMk1}")
        a(f"v_and_b32 {t0}, 1, {vg}"); a(f"v_lshlrev_b32 {t0}, 4, {t0}"); a(f"v_lshl_add_u32 {t0}, {vn}, 5, {t0}")
        a(f"s_lshl_b32 {sT0}, {sW}, 10"); a(f"s_add_u32 {sT0}, {sT0}, {L_PART}")
        a(f"v_add_u32 {vPa}, {sT0}, {t0}")
    nwo = 0; id_wo = None
    def gA():
        for k in range(4): a(f"buffer_load_dwordx4 {vr(G+4*k)}, {vGo}, {WS}, {sG} offen offset:{1024*k} sc1")
    def wo_issue():
        nonlocal nwo, id_wo
        j = (nwo - wbe) % 8
        a(f"s_add_u32 m0, {sLb}, {(L_WOA, L_WOB)[j >> 2] + 1024*(j & 3)}")
        a(f"s_add_u32 {sT0}, {(sU, sUB)[j >> 2]}, {(8*896, 1024, 4*896)[wfake]*(j & 3)}")
        id_wo = a(f"buffer_load_dwordx4 {(vWo, vWo2)[j & 1]}, {(WOA, WOB)[j >> 2]}, {sT0} offen {pol} lds")
        nwo += 1
    extras = {128: softmaxA, 130: softmaxA2, 132: unit_v, 134: addresses, 142: softmaxB, 144: softmaxB2}
    for i in range(wbe): extras[146 + 2 * (i % 7)] = (lambda f: (lambda: (f and f(), wo_issue())))(extras.get(146 + 2 * (i % 7)))
    for n in range(128, 160, 2): pair(n, procKB if n < 144 else procVB, extras.get(n))
    stamp("B_done")
    a(f"s_mov_b32 {sCnt}, 0")
    a("L_v:")
    a(f"s_cmp_eq_u32 {sCnt}, {ml0}"); a("s_cbranch_scc1 L_ml_issue")
    a(f"s_cmp_eq_u32 {sCnt}, {ml1}"); a("s_cbranch_scc1 L_ml_use")
    if stamps:
        a(f"s_cmp_eq_u32 {sCnt}, 10"); a("s_cbranch_scc1 L_st11")
    a("L_v_body:")
    for n in range(160, 160 + LG, 2): pair(n, procV)
    a(f"s_add_u32 {sCnt}, {sCnt}, {LG // 8}"); a(f"s_cmp_lt_u32 {sCnt}, {16 - LG // 8}"); a("s_cbranch_scc1 L_v")
    a("s_branch L_v_x")
    def ml_loads():
        a(f"buffer_load_dwordx2 {vr(MLG,2)}, {U[0]}, {WS}, {sT0} offen sc1")
        a(f"buffer_load_dwordx2 {vr(MLG+2,2)}, {U[1]}, {WS}, {sT1} offen sc1")
    a("L_ml_issue:")
    stamp("v4")
    a(f"s_andn2_b32 {sT0}, {sRecA}, 7"); a(f"s_lshl_b32 {sT0}, {sT0}, 5"); a(f"s_add_u32 {sT0}, {sT0}, {WS_ML}")
    a(f"s_andn2_b32 {sT1}, {sRecB}, 7"); a(f"s_lshl_b32 {sT1}, {sT1}, 5"); a(f"s_add_u32 {sT1}, {sT1}, {WS_ML}")
    a(f"v_lshlrev_b32 {U[0]}, 3, {vn}")
    a(f"v_and_b32 {t0}, 31, {vL}"); a(f"v_lshlrev_b32 {t0}, 3, {t0}"); a(f"v_lshrrev_b32 {t1}, 5, {vL}"); a(f"v_lshl_add_u32 {U[1]}, {t1}, 10, {t0}")
    ml_loads()
    a("s_branch L_v_body")
    a("L_ml_use:")
    stamp("v7")
    poll("L_ml", ml_loads, lambda: sentinel(range(MLG, MLG + 4)), sleep=2, first_issued=True)
    MA, MB = V
    a(f"v_max_f32_dpp {MA}, v{MLG}, v{MLG} row_ror:8 {FULL}"); a(f"v_max_f32_dpp {MB}, v{MLG+2}, v{MLG+2} row_ror:8 {FULL}")
    for s in (4, 2, 1):
        a(f"v_max_f32_dpp {MA}, {MA}, {MA} row_ror:{s} {FULL}"); a(f"v_max_f32_dpp {MB}, {MB}, {MB} row_ror:{s} {FULL}")
    red("v_max_f32", MB, (16,))
    a(f"v_mov_b32_dpp {t3}, {vmB} row_newbcast:0 row_mask:0x3 bank_mask:0xf")
    a(f"v_mov_b32_dpp {t3}, {vmB} row_newbcast:8 row_mask:0xc bank_mask:0xf")
    a(f"v_sub_f32 v{MLG}, v{MLG}, {MA}"); a(f"v_sub_f32 v{MLG+2}, v{MLG+2}, {MB}")
    a(f"v_sub_f32 {vfA}, {vm}, {MA}"); a(f"v_sub_f32 {t3}, {t3}, {MB}")
    a(f"v_exp_f32 v{MLG}, v{MLG}"); a(f"v_exp_f32 v{MLG+2}, v{MLG+2}"); a(f"v_exp_f32 {vfA}, {vfA}"); a(f"v_exp_f32 {t3}, {t3}")
    a(f"v_mul_f32 {MA}, v{MLG}, v{MLG+1}"); a(f"v_mul_f32 {MB}, v{MLG+2}, v{MLG+3}")
    for s in (8, 4, 2, 1):
        a(f"v_add_f32_dpp {MA}, {MA}, {MA} row_ror:{s} {FULL}"); a(f"v_add_f32_dpp {MB}, {MB}, {MB} row_ror:{s} {FULL}")
    red("v_add_f32", MB, (16,))
    a(f"v_rcp_f32 {MA}, {MA}"); a(f"v_rcp_f32 {MB}, {MB}")
    a(f"v_mul_f32 {vfA}, {vfA}, {MA}"); a(f"v_mul_f32 {t3}, {t3}, {MB}")
    for e in range(8): a(f"v_mul_f32 v{ACCB+e}, v{ACCB+e}, {t3}")
    a(f"v_lshrrev_b32 {t1}, 1, {vg}"); a(f"v_lshl_add_u32 {t0}, {t1}, 12, {vPa}")
    a(f"ds_write_b128 {t0}, {vr(ACCB)}"); a(f"ds_write_b128 {t0}, {vr(ACCB+4)} offset:512")
    a(f"v_lshl_add_u32 {vPa}, {t1}, 9, {vPa}")
    a(f"v_mov_b32 {t0}, {L_CNT}"); a(f"v_mov_b32 {t2}, 1")
    a("s_waitcnt lgkmcnt(0)")
    a("s_mov_b64 exec, 1")
    a(f"ds_add_u32 {t0}, {t2}")
    a("s_mov_b64 exec, -1")
    a("s_branch L_v_body")
    if stamps:
        a("L_st11:"); stamp("v11"); a("s_branch L_v_body")
    a("L_v_x:")
    stamp("v_x")
    for k in range(LG): ids[NTOT - LG + k] = a.vm_seq - (LG - 1 - k)
    a("s_mov_b32 vcc_lo, 0"); a("s_mov_b32 vcc_hi, -1")
    for n in range(NTOT - LG, NTOT):
        a.wait_vm(ids[n])
        if wg is None and n - (NTOT - 8) >= wod and nwo < 8: wo_issue()
        if wg is not None and n & 1:
            a(f"v_add_u32 {vPrg}, 1, {vPrg}"); a(f"ds_write_b32 {vPrA}, {vPrg}")
        procV(n, last=n >= NTOT - 8)
    if wg is not None: nwo = 8
    stamp("stream_done")
    for e in range(4): a(f"v_cndmask_b32 v{ACC+e}, v{ACC+e}, v{ACC+4+e}, vcc")
    for e in range(4): a(f"v_mul_f32 v{ACC+e}, v{ACC+e}, {vfA}")
    a(f"ds_write_b128 {vPa}, {vr(ACC)} offset:8192")
    while wpos == 0 and nwo < 8: wo_issue()
    a("s_waitcnt lgkmcnt(0)")
    a("s_barrier")
    while wpos == 1 and nwo < 8: wo_issue()
    for k in range(4): a(f"ds_read_b128 {vr(OBS+4*k)}, {vGo} offset:{L_PART + 1024*k}")
    if g2:
        a("s_barrier")
        while wpos == 2 and nwo < 8: wo_issue()
        gA()
        while nwo < 8: wo_issue()
    if wg is None and wbe < 8: a.wait_vm(id_wo)
    a("s_barrier")
    if fine: stamp("wo_in")
    a(f"s_cmp_ge_u32 {sR}, 28"); a("s_cbranch_scc1 L_s_fin")
    a("s_waitcnt lgkmcnt(0)")
    for dst, src in ((WTB, L_WOB), (WT, L_WOA)):
        for k in range(4):
            if src == L_WOA and k == 3: a("s_waitcnt lgkmcnt(6)")
            a(f"ds_read_b64_tr_b16 {vr(dst+4*k,2)}, {vTr} offset:{src+4096*k}")
            a(f"ds_read_b64_tr_b16 {vr(dst+4*k+2,2)}, {vTr} offset:{src+4096*k+512}")
    for k in range(4):
        a(f"v_mfma_f32_16x16x32_bf16 {vr(ACC+4)}, {vr(OBS+4*k)}, {vr(WTB+4*k)}, {vr(ACC+4) if k else 0}")
    if g2: a("s_waitcnt vmcnt(0)")
    poll("L_s2", gA, lambda: sentinel(range(G, G + 16)), masked=True, first_issued=g2)
    if g2: a("s_waitcnt lgkmcnt(0)")
    stamp("gathered")
    for k in range(4):
        a(f"v_mfma_f32_16x16x32_bf16 {vr(ACC)}, {vr(G+4*k)}, {vr(WT+4*k)}, {vr(ACC) if k else 0}")
    y_seal(ACC + 4)
    a(f"buffer_store_dword v{ACC+4}, {vYb}, {WS}, {sY} offen sc1")
    a(f"v_add_f32 v{ACC}, v{ACC}, v{ACC+1}"); a(f"v_add_f32 v{ACC+2}, v{ACC+2}, v{ACC+3}"); a(f"v_add_f32 v{ACC}, v{ACC}, v{ACC+2}")
    y_seal(ACC)
    a(f"buffer_store_dword v{ACC}, {vYo}, {WS}, {sY} offen sc1")
    if stamps:
        a("s_branch L_s_fin2")
        a("L_s_fin:")
        names["s"].pop(); stamp("gathered")
        a("L_s_fin2:")
    else:
        a("L_s_fin:")
    stamp("y")
    a("s_waitcnt vmcnt(0)")
    a("s_barrier")
    finish()

    cur[0] = "g"
    a("L_gov:")
    vA4 = "v2"; vBo = "v3"; vPw = "v4"; vP = "v5"; vPp = "v6"; vB = "v7"; vTh = "v8"; vL16 = "v16"
    sTg = sU; sPo = sRecA; sGa = sRecB; sIn = sY
    a(f"v_lshlrev_b32 {vL16}, 4, {vL}")
    a(f"s_lshl_b32 {sT1}, {sX}, 5"); a(f"s_add_u32 {sT1}, {sT1}, {sR}"); a(f"s_lshl_b32 {sT1}, {sT1}, 7"); a(f"s_add_u32 {sT1}, {sT1}, {WS_FL}")
    srd(60, None, None, WS_END)
    a("s_waitcnt lgkmcnt(0)")
    tag_load()
    a("s_mov_b32 s60, s28"); a("s_mov_b32 s61, s29")
    a("s_mov_b64 exec, 0xff")
    a("s_waitcnt lgkmcnt(0)")
    tag_make()
    a("v_mov_b32 v8, s56"); a("v_mov_b32 v9, s59"); a("v_mov_b32 v10, s56"); a("v_mov_b32 v11, s59")
    a(f"buffer_store_dwordx4 v[8:11], {vL16}, {WS}, {sT1} offen sc1")
    a("s_mov_b64 exec, -1")
    ytag_make()
    a(f"s_mul_i32 {sIn}, {sX}, {YG}"); a(f"s_add_u32 {sIn}, {sIn}, {WS_Y}")
    a(f"s_cmp_lg_u32 {sR}, 0"); a("s_cbranch_scc1 L_norace")
    a(f"s_add_u32 s4, s28, {sIn}"); a("s_addc_u32 s5, s29, 0")
    a("s_load_dword s6, s[4:5], 0 glc"); a("s_load_dword s7, s[4:5], 8192 glc")
    a(f"s_mov_b32 {sT1}, 0")
    a("s_waitcnt lgkmcnt(0)")
    for i in range(nrace):
        a("s_not_b32 s10, s6"); a("s_not_b32 s11, s7")
        for h in ((0, 1), (1, 0))[i & 1]: a(f"s_load_dword s{10+h}, s[4:5], {8192*h} glc")
        a("s_waitcnt lgkmcnt(1)")
        a("s_sleep 1")
        a("s_mov_b64 s[14:15], s[10:11]")
        a("s_waitcnt lgkmcnt(0)")
        a("s_cmp_eq_u32 s15, s7"); a(f"s_addc_u32 {sT1}, {sT1}, 0"); a("s_cmp_eq_u32 s14, s6"); a(f"s_subb_u32 {sT1}, {sT1}, 0")
    a(f"s_sub_i32 {sT2}, 0, {sT1}"); a("s_bitcmp1_b32 s59, 2"); a(f"s_cselect_b32 {sT1}, {sT2}, {sT1}")
    a(f"s_cmp_gt_i32 {sT1}, 0"); a(f"s_cselect_b32 {sT2}, 2, 0"); a(f"s_cmp_lt_i32 {sT1}, 0"); a(f"s_cselect_b32 {sT2}, 1, {sT2}")
    if near is not None: a(f"s_mov_b32 {sT2}, {1 + near}")
    a(f"s_and_b32 {sT1}, s59, 4"); a(f"s_or_b32 {sT1}, {sT1}, {sT2}")
    a(f"s_lshl4_add_u32 {sT1}, s58, {sT1}")
    a(f"v_mov_b32 v12, s56"); a(f"v_mov_b32 v13, {sT1}"); a(f"v_mov_b32 v14, s56"); a(f"v_mov_b32 v15, {sT1}")
    a(f"s_lshl_b32 {sT1}, {sX}, 7"); a(f"s_add_u32 {sT1}, {sT1}, {WS_CH}")
    a("s_mov_b64 exec, 0xff")
    a(f"buffer_store_dwordx4 v[12:15], {vL16}, {WS}, {sT1} offen sc1")
    a("s_mov_b64 exec, -1")
    a("L_norace:")
    a(f"s_lshr_b32 {sT0}, {sR}, 2"); a(f"s_lshl_b32 {sT0}, {sT0}, 14"); a(f"s_add_u32 {sIn}, {sIn}, {sT0}")
    a(f"s_and_b32 {sT0}, {sR}, 3"); a(f"s_lshl_b32 {sT0}, {sT0}, 11"); a(f"s_add_u32 {sIn}, {sIn}, {sT0}")
    if stamps: a("v_mov_b32 v254, 0"); a("v_mov_b32 v253, 0")
    stamp("hello")
    srd(44, "s24", "s25", 7168)
    if wg is not None:
        srd(4, "s12", "s13", 0 if nowo & 1 else 0x380000); srd(24, "s22", "s23", 0 if nowo & 2 else 0x380000)
        a("s_mov_b64 s[90:91], s[4:5]")
        a(f"s_mul_i32 {sT0}, {sR}, 37"); a(f"s_lshr_b32 {sT0}, {sT0}, 8"); a(f"s_mul_i32 {sT1}, {sT0}, 7"); a(f"s_sub_u32 {sT1}, {sR}, {sT1}")
        a(f"s_lshl2_add_u32 {sT0}, {sX}, {sT0}"); a(f"s_mul_i32 s70, {sT0}, {128*896}"); a(f"s_lshl_b32 {sT1}, {sT1}, 7"); a(f"s_add_u32 s70, s70, {sT1}")
        a(f"v_lshrrev_b32 {t0}, 3, {vL}"); a(f"v_mul_u32_u24 {t0}, 896, {t0}"); a(f"v_and_b32 {t2}, 7, {vL}"); a(f"v_lshl_add_u32 {vWo}, {t2}, 4, {t0}")
        a(f"v_and_b32 {t0}, 16, {vL}"); a(f"v_lshlrev_b32 {t0}, 1, {t0}"); a(f"v_xor_b32 {vWo}, {t0}, {vWo}"); a(f"v_xor_b32 {vWo2}, 64, {vWo}")
        a(f"v_mov_b32 v18, {total - wg}")
    if tlb:
        a(f"s_lshl4_add_u32 s40, {sB}, {sH}"); a("s_lshl_b32 s40, s40, 21")
        a(f"s_andn2_b32 s41, {sR}, 7"); a(f"s_add_u32 s41, s41, {sX}"); a(f"s_xor_b32 s41, s41, {bx}"); a("s_lshl_b32 s41, s41, 21"); a("s_add_u32 s41, s41, 0x180000")
        a(f"s_mul_i32 s42, {sX}, {512*896}")
        for i, (pp, o) in enumerate(((12, 42), (22, 42), (16, 41), (18, 41), (8, 40))):
            a(f"s_add_u32 s{pp}, s{pp}, s{o}"); a(f"s_addc_u32 s{pp+1}, s{pp+1}, 0")
            a(f"s_load_dword s{48+i}, s[{pp}:{pp+1}], 0")
    a(f"v_and_b32 {vA4}, 3, {vL}"); a(f"v_lshlrev_b32 {vA4}, 2, {vA4}")
    a(f"v_mov_b32 {vPp}, 0"); a(f"v_mov_b32 {vTh}, {int(th0 + 0.5)}"); a(f"v_mov_b32 {vB}, 0")
    a(f"ds_write_b32 {vA4}, {vPp} offset:{L_PRG}"); a(f"ds_write_b32 {vA4}, {vTh} offset:{L_TH}"); a(f"ds_write_b32 {vB}, {vB} offset:{L_CNT}")
    gc_ = gI // 2 if gc is None else gc
    a(f"s_mul_i32 {sG}, {sX}, 4352"); a(f"s_add_u32 {sG}, {sG}, {WS_GC}")
    a(f"v_lshlrev_b32 {vBo}, 2, {vL}")
    a(f"s_lshl2_add_u32 {sOff}, {sR}, {sG}")
    a(f"s_add_u32 {sGa}, {sG}, {8*4352}")
    a(f"s_mul_i32 {sTg}, {sX}, {gI // 8}"); a(f"s_add_u32 {sTg}, {sTg}, {gI // 8}")
    a(f"s_cmp_eq_u32 {sR}, {28 if gx else 99}"); a(f"s_cselect_b32 {sTg}, {sTg}, -1")
    sOut = sC
    a(f"s_and_b32 {sT0}, {sX}, 3"); a(f"s_mul_i32 {sOut}, {sT0}, 1792"); a(f"s_lshr_b32 {sT0}, {sX}, 2"); a(f"s_mul_i32 {sT0}, {sT0}, 896")
    a(f"s_add_u32 {sOut}, {sOut}, {sT0}"); a(f"s_lshl_b32 {sT0}, {sR}, 5"); a(f"s_add_u32 {sOut}, {sOut}, {sT0}")
    a(f"v_lshrrev_b32 {t1}, 1, {vg}"); a(f"v_and_b32 {t2}, 1, {vg}"); a(f"v_lshl_add_u32 {t1}, {t2}, 1, {t1}")
    a(f"v_and_b32 {t2}, 3, {vn}"); a(f"v_lshl_add_u32 {t1}, {t2}, 2, {t1}"); a(f"v_lshlrev_b32 {t3}, 1, {t1}")
    a("s_waitcnt lgkmcnt(0)")
    a("s_barrier")
    a(f"ds_read_b32 v10, {vB} offset:{L_LOC}"); a(f"ds_read_b32 v11, {vB} offset:{L_CH}")
    a("s_waitcnt lgkmcnt(0)")
    a(f"v_readfirstlane_b32 {sLocal}, v10"); a(f"v_readfirstlane_b32 {sCh}, v11")
    a(f"s_lshr_b32 {sT0}, {sCh}, {sX}"); a(f"s_and_b32 {sT0}, {sT0}, 1"); a(f"s_lshl_b32 {sT0}, {sT0}, 13"); a(f"s_add_u32 {sIn}, {sIn}, {sT0}")
    if stamps:
        a(f"v_writelane_b32 v255, {sCh}, 30"); a(f"s_getreg_b32 {sT0}, hwreg(HW_REG_HW_ID)"); a(f"v_writelane_b32 v255, {sT0}, 27")
    a(f"s_cmp_lg_u32 {sLocal}, 1"); a("s_cbranch_scc1 L_gend")
    poll("L_g0", lambda: a(f"ds_read_b32 {vPw}, {vA4} offset:{L_PRG}"), lambda: a(f"v_cmp_eq_u32 vcc, 0, {vPw}"), sleep=4)
    if xm:
        for i in range(1, 8):
            a(f"s_add_u32 {sT0}, {sX}, {i}"); a(f"s_and_b32 {sT0}, {sT0}, 7")
            a(f"s_mul_i32 s{31+i}, {sT0}, 4352"); a(f"s_add_u32 s{31+i}, s{31+i}, {WS_GC + 8*4352}")
            a(f"s_mul_i32 s{47+i}, {sT0}, {gI // 8}"); a(f"s_sub_u32 s{47+i}, s{47+i}, {gI - gI // 8}")
        a(f"s_sub_u32 {sPo}, {sTg}, {gI}")
    a(f"s_mov_b32 {sSpin}, {spin}")
    a("L_gloop:")
    a(f"ds_read_b32 {vPw}, {vA4} offset:{L_PRG}")
    a(f"s_sub_u32 {sSpin}, {sSpin}, 1"); a(f"s_cmp_eq_u32 {sSpin}, 0"); a("s_cbranch_scc1 L_gend")
    a("s_waitcnt lgkmcnt(0)")
    a(f"v_add_u32_dpp {vP}, {vPw}, {vPw} {QP1}"); a(f"v_add_u32_dpp {vP}, {vP}, {vP} {QP2}")
    a("s_mov_b64 exec, 1")
    a(f"buffer_store_dword {vP}, off, {WS}, {sOff}")
    a(f"v_cmp_le_u32 vcc, {total - 4 * gstop}, {vP}")
    a("s_cbranch_vccnz L_gend")
    a("s_mov_b32 exec_lo, -1"); a("s_mov_b32 exec_hi, 1")
    a(f"buffer_load_dword {vB}, {vBo}, {WS}, {sG} offen sc1")
    a("s_mov_b64 exec, -1")
    if xm:
        a(f"s_cmp_eq_u32 {sTg}, -1"); a("s_cbranch_scc1 L_gnl")
        for i in range(1, 8): a(f"s_load_dwordx2 s[{4+2*i}:{5+2*i}], s[28:29], s{31+i} glc")
        a("L_gnl:")
    a(f"v_cvt_f32_u32 {t0}, {vP}")
    a(f"v_mul_f32 {t0}, {f2u(-gain)}, {t0}"); a(f"v_add_f32 {t0}, {f2u(th0 + 0.5 + gain * c0)}, {t0}")
    if gw:
        a(f"v_lshlrev_b32 {vPw}, 2, {vPw}"); a(f"v_sub_u32 {vPw}, {vP}, {vPw}"); a(f"v_cvt_f32_i32 {vPw}, {vPw}")
        a(f"v_mul_f32 {vPw}, {f2u(gw)}, {vPw}"); a(f"v_add_f32 {t0}, {t0}, {vPw}")
    a("s_waitcnt vmcnt(0)")
    a(f"v_add_u32_dpp {t1}, {vB}, {vB} row_ror:8 {FULL}")
    a(f"v_readlane_b32 {sT3}, {vB}, 32")
    for sft in (4, 2, 1): a(f"v_add_u32_dpp {t1}, {t1}, {t1} row_ror:{sft} {FULL}")
    a(f"v_readlane_b32 {sT0}, {t1}, 0"); a(f"v_readlane_b32 {sT1}, {t1}, 16")
    a(f"v_cvt_f32_i32 v11, {sT3}")
    a(f"s_add_u32 {sT2}, {sT0}, {sT1}")
    a(f"v_cvt_f32_u32 v10, {sT2}")
    if wg is not None:
        a(f"v_cvt_f32_u32 v17, {vP}"); a(f"v_mul_f32 v18, {f2u(-wk / 32)}, v10"); a(f"v_mul_f32 v19, {f2u(-wk / 256)}, v11")
        a(f"v_mul_f32 v17, {f2u(wk)}, v17"); a("v_add_f32 v18, v18, v19"); a("v_add_f32 v18, v18, v17")
        a(f"v_add_f32 v18, {f2u(total - wg - wk * c0)}, v18"); a("v_cvt_i32_f32 v18, v18"); a(f"v_min_i32 v18, {total + wcap}, v18")
    a(f"v_mul_f32 v10, {f2u(gain / 32)}, v10"); a(f"v_mul_f32 v11, {f2u(gain * gx / 256)}, v11")
    a(f"v_add_f32 {t0}, {t0}, v10"); a(f"v_add_f32 {t0}, {t0}, v11")
    if kup:
        a(f"v_add_f32 v10, {f2u(-(th0 + kat))}, {t0}"); a("v_max_f32 v10, 0, v10"); a(f"v_mul_f32 v10, {f2u(kup)}, v10"); a(f"v_add_f32 {t0}, {t0}, v10")
    a(f"v_cvt_i32_f32 {vTh}, {t0}")
    a(f"v_med3_i32 {vTh}, {vTh}, {thmin}, {thmax}")
    a(f"ds_write_b32 {vA4}, {vTh} offset:{L_TH}")
    if stamps: a(f"v_add_u32 v254, v254, {vTh}"); a("v_add_u32 v253, 1, v253")
    if xm:
        a(f"s_cmp_eq_u32 {sTg}, -1"); a("s_cbranch_scc1 L_gloop")
        a(f"s_sub_u32 {sT0}, {gc_}, {sT2}"); a(f"s_lshl3_add_u32 {sT0}, {sT0}, {sPo}")
        a("s_waitcnt lgkmcnt(0)")
        for i in range(1, 8):
            a(f"s_xor_b64 s[{4+2*i}:{5+2*i}], s[{4+2*i}:{5+2*i}], s[56:57]"); a(f"s_lshr_b64 s[4:5], s[{4+2*i}:{5+2*i}], 14")
            a(f"s_cselect_b32 s{4+2*i}, s{47+i}, s{4+2*i}"); a(f"s_add_u32 {sT0}, {sT0}, s{4+2*i}")
        a(f"v_mov_b32 v10, {sT0}")
        a("s_mov_b64 exec, 1")
        a(f"buffer_store_dword v10, off, {WS}, {sG} offset:128")
        a("s_mov_b64 exec, -1")
        a(f"s_cmp_lt_u32 {sT2}, {sTg}"); a("s_cbranch_scc1 L_gloop")
        a(f"s_xor_b32 {sT0}, {sT2}, s56")
        for i in range(4): a(f"v_mov_b32 v{12+i}, {'s57' if i & 1 else sT0}")
        a("s_mov_b64 exec, 0xff")
        a(f"buffer_store_dwordx4 v[12:15], {vL16}, {WS}, {sGa} offen sc1"); a("s_mov_b64 exec, -1")
        a(f"s_add_u32 {sTg}, {sTg}, {gI}"); a(f"s_mov_b32 {sPo}, {sT2}")
        a("s_branch L_gloop")
    else:
        a(f"s_cmp_lt_u32 {sT2}, {sTg}"); a("s_cbranch_scc1 L_gloop")
        a(f"s_xor_b32 {sT0}, {sT2}, s56")
        for i in range(4): a(f"v_mov_b32 v{12+i}, {'s57' if i & 1 else sT0}")
        a("s_mov_b64 exec, 0xff")
        a(f"buffer_store_dwordx4 v[12:15], {vL16}, {WS}, {sGa} offen sc1"); a("s_mov_b64 exec, -1")
        for i in range(1, 8):
            a(f"s_add_u32 {sT0}, {sX}, {i}"); a(f"s_and_b32 {sT0}, {sT0}, 7"); a(f"s_mul_i32 {sT0}, {sT0}, 4352"); a(f"s_add_u32 {sT0}, {sT0}, {WS_GC + 8*4352}")
            a(f"s_load_dwordx2 s[{4+2*i}:{5+2*i}], s[28:29], {sT0} glc")
        a(f"s_add_u32 {sTg}, {sTg}, {gI}")
        a(f"s_sub_u32 {sT0}, {gc_}, {sT2}"); a(f"s_mul_i32 {sT0}, {sT0}, 7")
        a("s_waitcnt lgkmcnt(0)")
        for i in range(1, 8):
            a(f"s_xor_b64 s[{4+2*i}:{5+2*i}], s[{4+2*i}:{5+2*i}], s[56:57]"); a(f"s_lshr_b64 s[4:5], s[{4+2*i}:{5+2*i}], 14")
            a(f"s_cselect_b32 s{4+2*i}, 0, s{4+2*i}"); a(f"s_add_u32 {sT0}, {sT0}, s{4+2*i}")
        a(f"v_mov_b32 v10, {sT0}")
        a("s_mov_b64 exec, 1")
        a(f"buffer_store_dword v10, off, {WS}, {sG} offset:128")
        a("s_mov_b64 exec, -1")
        a("s_branch L_gloop")
    a("L_gend:")
    a("s_mov_b64 exec, -1")
    if stamps:
        a(f"v_readfirstlane_b32 {sT0}, v254"); a(f"v_readfirstlane_b32 {sT1}, v253"); a("s_nop 3")
        a(f"v_writelane_b32 v255, {sT0}, 28"); a(f"v_writelane_b32 v255, {sT1}, 29")
    stamp("gov_end")
    if wg is not None:
        a(f"s_cmp_ge_u32 {sR}, 28"); a("s_cbranch_scc1 L_gnowo")
        def pchk():
            a(f"v_add_u32_dpp {vP}, {vPw}, {vPw} {QP1}"); a(f"v_add_u32_dpp {vP}, {vP}, {vP} {QP2}"); a(f"v_cmp_gt_i32 vcc, v18, {vP}")
        srd(4, "s90", "s91", 0 if nowo & 1 else 0x380000)
        poll("L_gw", lambda: a(f"ds_read_b32 {vPw}, {vA4} offset:{L_PRG}"), pchk)
        a(f"s_mov_b32 m0, {L_WOA}")
        for j in range(32):
            a(f"s_add_u32 {sT0}, s70, {8*896*(j & 15)}")
            a(f"buffer_load_dwordx4 {(vWo, vWo2)[j & 1]}, {('s[4:7]', 's[24:27]')[j >> 4]}, {sT0} offen {pol} lds")
            if j < 31: a("s_add_u32 m0, m0, 1024")
        a("L_gnowo:")
        stamp("wo_issued")
    a(f"s_cmp_ge_u32 {sR}, 28")
    for i in range(4 if g2 else 3):
        if wg is not None and i == (2 if g2 else 1): a("s_waitcnt vmcnt(0)")
        a("s_barrier")
    a("s_cbranch_scc1 L_g_fin")
    F = 64
    def gY():
        for k in range(2): a(f"buffer_load_dwordx4 {vr(F+4*k)}, {vL16}, {WS}, {sIn} offen offset:{1024*k} sc1")
    def y_chk():
        for i in range(8): a(f"v_xor_b32 v{F+i}, {YT[i & 3]}, v{F+i}")
        a(f"v_or3_b32 {t0}, v{F}, v{F+1}, v{F+2}"); a(f"v_or3_b32 {t2}, v{F+3}, v{F+4}, v{F+5}")
        a(f"v_or3_b32 {t0}, {t0}, v{F+6}, v{F+7}"); a(f"v_or_b32 {t0}, {t0}, {t2}")
        a(f"v_and_b32 {t0}, 0xfff, {t0}"); a(f"v_cmp_ne_u32 vcc, 0, {t0}")
    poll("L_f", gY, y_chk, masked=True)
    for e in range(4): a(f"v_add_f32 v{F+e}, v{F+e}, v{F+4+e}")
    a(f"v_permlane32_swap_b32 v{F}, v{F+1}"); a(f"v_permlane32_swap_b32 v{F+2}, v{F+3}")
    a(f"v_add_f32 v{F}, v{F}, v{F+1}"); a(f"v_add_f32 v{F+2}, v{F+2}, v{F+3}")
    a(f"v_permlane16_swap_b32 v{F}, v{F+2}")
    a(f"v_add_f32 v{F}, v{F}, v{F+2}")
    red("v_add_f32", f"v{F}", (4, 8))
    a(f"v_cvt_pk_bf16_f32 v{F}, v{F}, v{F}")
    a("s_mov_b32 exec_lo, 0x000f000f"); a("s_mov_b32 exec_hi, 0x000f000f")
    a(f"buffer_store_short v{F}, {t3}, {OUT}, {sOut} offen")
    a(f"s_cmp_eq_u32 {sWG}, 0"); a("s_cbranch_scc0 L_g_fin")
    a("v_mov_b32 v8, s56"); a("v_mov_b32 v9, s57"); a(f"s_mov_b32 {sT0}, {WS_EP}")
    a("s_mov_b64 exec, 1")
    a(f"buffer_store_dwordx2 v[8:9], off, {WS}, {sT0} sc1")
    a("L_g_fin:")
    finish()

    cur[0] = "h"
    a("L_helper:")
    a(f"s_cmp_eq_u32 {sW}, 5"); a("s_cbranch_scc1 L_gov")
    def code_pull(tagl, reg, st):
        a("s_getpc_b64 s[30:31]")
        a(f"{tagl}:")
        a(f"s_sub_u32 s30, s30, {tagl}-{NAME}_kernel"); a("s_subb_u32 s31, s31, 0")
        a(f"s_lshl_b32 {sT1}, {sR}, {st}")
        a(f"v_lshl_add_u32 {t0}, {vL}, {st + 5}, {sT1}")
        a(f"v_min_u32 {t0}, L_end-{NAME}_kernel, {t0}")
        a(f"s_mov_b64 exec, {0x1f if st == 7 else 0xfff}")
        a(f"global_load_dword {reg}, {t0}, s[30:31]")
        a("s_mov_b64 exec, -1")
    if pf == 1: code_pull("L_pc", "v2", 7)
    if pf == 2: code_pull("L_pc", "v2", 6)
    XOP = 64; WOP = 96; QD = 208
    vXo = "v5"; vL8 = "v7"; vQt = "v17"
    a(f"v_lshrrev_b32 {t3}, 3, {vL}"); a(f"v_and_b32 {t2}, 7, {vL}"); a(f"v_lshlrev_b32 {t2}, 4, {t2}")
    a(f"v_lshl_add_u32 {vKo}, {t3}, 13, {t2}")
    a(f"v_and_b32 {vXo}, 3, {vL}"); a(f"v_mul_u32_u24 {vXo}, 896, {vXo}"); a(f"v_lshl_add_u32 {vXo}, {vg}, 4, {vXo}")
    a(f"s_bfe_u32 s44, {sR}, 0x10003")
    a(f"s_add_u32 s45, {sR}, {cbd}"); a("s_and_b32 s45, s45, 7"); a(f"s_lshl3_add_u32 s45, {sX}, s45")
    a(f"s_mul_i32 s46, {sT0}, {8*bx}"); a("s_xor_b32 s47, s45, s46")
    a(f"s_mul_i32 s46, s44, {224*8192}"); a("s_lshl_b32 s47, s47, 7"); a(f"s_add_u32 {sOff}, s46, s47")
    a(f"s_mul_i32 {sT2}, s44, 448")
    srd(32, None, None, 0 if nowo & 4 else 0x380000); srd(36, None, None, 0 if nox else 3584)
    a(f"s_mov_b32 m0, {L_WQ}")
    a(f"s_cmp_eq_u32 {sT0}, 0")
    a("s_waitcnt lgkmcnt(0)")
    a("s_cselect_b32 s32, s10, s20"); a("s_cselect_b32 s33, s11, s21")
    a("s_cselect_b32 s36, s4, s14"); a("s_cselect_b32 s37, s5, s15")
    tag_load()
    idk = []
    if wt is not None:
        a(f"v_lshlrev_b32 {t0}, 13, {t3}"); a(f"v_lshl_add_u32 {t0}, {t2}, 3, {t0}")
        a(f"s_and_b32 s40, {sR}, 15"); a(f"s_mul_i32 s40, s40, {28*8192}"); a(f"s_lshl_b32 s41, {sX}, 10"); a("s_add_u32 s40, s40, s41")
        for i in range(4):
            if i == 3: a("s_mov_b32 exec_hi, 0")
            a(f"buffer_load_dword v{8+i}, {t0}, {WQ}, s40 offen {wt}")
            if i < 3: a("s_add_u32 s40, s40, 65536")
        a("s_mov_b32 exec_hi, -1")
        if wtw: a("s_waitcnt vmcnt(0)")
        stamp("touched")
    if krot or krp:
        a(f"s_mul_i32 s40, s44, {krot}"); a(f"s_mul_i32 s41, {sT0}, {krp}"); a("s_add_u32 s40, s40, s41")
        a("s_cmp_ge_u32 s40, 7"); a("s_cselect_b32 s41, 7, 0"); a("s_sub_u32 s40, s40, s41")
        a("s_lshl_b32 s41, s40, 18"); a(f"s_add_u32 {sOff}, {sOff}, s41"); a("s_lshl_b32 s41, s40, 6"); a(f"s_add_u32 {sT2}, {sT2}, s41")
    for k in range(7):
        a(f"buffer_load_dwordx4 {vr(XOP+4*k)}, {vXo}, {XS}, {sT2} offen offset:{0 if krot or krp else 64*k}")
        if wqt and k >= wqt: a.wait_vm(idk[k - wqt])
        for j in range(4):
            r = a(f"buffer_load_dwordx4 {vKo}, {WQ}, {sOff} offen {pol} lds")
            if k < 6 or j < 3:
                a("s_add_u32 m0, m0, 1024"); a(f"s_add_u32 {sOff}, {sOff}, 65536")
        if (krot or krp) and k < 6:
            a(f"s_cmp_eq_u32 s40, {6 - k}"); a(f"s_cselect_b32 s41, {7 << 18}, 0"); a(f"s_cselect_b32 s42, {-6 << 6}, 64")
            a(f"s_sub_u32 {sOff}, {sOff}, s41"); a(f"s_add_i32 {sT2}, {sT2}, s42")
        idk.append(r)
    stamp("wq_issued")
    sQs = "s64"; sMc = "s48"; sPa = "s49"; sPb = "s50"; sBz = "s51"; sRd = "s69"; sFl = "s70"
    a(f"s_lshl1_add_u32 {sQs}, {sT0}, s44"); a(f"s_lshl_b32 {sQs}, {sQs}, 16"); a("s_lshl_b32 s46, s45, 10"); a(f"s_add_u32 {sQs}, {sQs}, s46")
    a(f"s_lshl3_add_u32 {sMc}, {sT0}, {sX}"); a(f"s_and_b32 {sT3}, {sR}, 15"); a(f"s_lshl4_add_u32 {sMc}, {sMc}, {sT3}")
    a(f"s_lshl_b32 {sMc}, {sMc}, 7"); a(f"s_add_u32 {sMc}, {sMc}, {WS_ML}")
    srd(60, "s28", "s29", WS_END)
    unit(1); unit_v()
    a(f"s_lshl_b32 {sRecA}, {sH}, 14"); a(f"s_add_u32 {sRecA}, {sRecA}, {WS_PO}")
    a(f"s_lshl_b32 {sRecB}, {sX}, 15"); a(f"s_add_u32 {sRecB}, {sRecB}, {WS_PO + 16*16384}")
    a(f"s_lshl_b32 {sPa}, {sT3}, 9"); a(f"s_add_u32 {sPa}, {sPa}, {sRecA}")
    a(f"s_lshl_b32 {sPb}, {sR}, 9"); a(f"s_add_u32 {sPb}, {sPb}, {sRecB}")
    a(f"v_and_b32 {t0}, 31, {vL}"); a(f"v_lshlrev_b32 {t0}, 4, {t0}"); a(f"v_lshrrev_b32 {t1}, 5, {vL}"); a(f"v_lshl_add_u32 v18, {t1}, 14, {t0}")
    a(f"s_lshl4_add_u32 {sRecA}, {sT3}, {sRecA}")
    a(f"s_lshr_b32 {sT0}, {sR}, 3"); a(f"s_and_b32 {sT1}, {sR}, 3"); a(f"s_lshl2_add_u32 {sT0}, {sT0}, {sT1}"); a(f"s_lshl4_add_u32 {sRecB}, {sT0}, {sRecB}")
    a(f"s_bfe_u32 {sT0}, {sR}, 0x10002"); a(f"s_lshl_b32 {sT0}, {sT0}, 13"); a(f"s_add_u32 {sRecB}, {sRecB}, {sT0}")
    a(f"v_lshrrev_b32 {t0}, 1, {vL}"); a(f"v_lshlrev_b32 {t0}, 8, {t0}"); a(f"v_and_b32 {t1}, 1, {vL}"); a(f"v_lshl_add_u32 {vPa}, {t1}, 3, {t0}")
    a(f"s_mul_i32 {sRd}, {sX}, 4352"); a(f"s_add_u32 {sRd}, {sRd}, {WS_GC}")
    a(f"s_cmp_eq_u32 {sR}, 0"); a(f"s_cselect_b32 {sBz}, {sRd}, {OOB}")
    a(f"s_lshl_b32 {sFl}, {sX}, 12"); a(f"s_add_u32 {sFl}, {sFl}, {WS_FL}")
    for i in range(4): a(f"v_mov_b32 v{AOP+i}, -1")
    for i in range(4): a(f"v_mov_b32 v{ACC+i}, 0")
    a(f"v_lshlrev_b32 {vL16}, 4, {vL}"); a(f"v_lshlrev_b32 {vL8}, 3, {vL}"); a(f"v_lshlrev_b32 {t3}, 7, {vL}")
    a(f"v_and_b32 {t0}, 3, {vn}"); a(f"v_lshlrev_b32 {t0}, 8, {t0}"); a(f"v_lshrrev_b32 {t1}, 2, {vn}")
    a(f"v_lshl_add_u32 {t0}, {t1}, 6, {t0}"); a(f"v_lshl_add_u32 {vQt}, {vg}, 4, {t0}")
    def hello_ld(): a(f"buffer_load_dwordx2 v[12:13], {t3}, {WS}, {sFl} offen sc1")
    for k in range(8):
        if k < 7: a.wait_vm(idk[k])
        if k == hk:
            a("s_mov_b32 exec_hi, 0"); hello_ld(); a("s_mov_b32 exec_hi, -1")
        if k: a("s_waitcnt lgkmcnt(0)")
        if k < 7:
            for c in range(4):
                a(f"ds_read_b64_tr_b16 {vr(WOP+16*(k%3)+4*c,2)}, {vTr} offset:{L_WQ + k*4096 + 32*c}")
                a(f"ds_read_b64_tr_b16 {vr(WOP+16*(k%3)+4*c+2,2)}, {vTr} offset:{L_WQ + k*4096 + 32*c + 512}")
        if k:
            for c in range(4):
                a(f"v_mfma_f32_16x16x32_bf16 {vr(QD+4*c)}, {vr(WOP+16*((k-1)%3)+4*c)}, {vr(XOP+4*(k-1))}, {vr(QD+4*c) if k > 1 else 0}")
    tag_make()
    for c in range(1, 4):
        for e in range(4):
            a(f"v_mov_b32_dpp v{QD+e}, v{QD+4*c+e} quad_perm:[0,1,2,3] row_mask:0xf bank_mask:{1<<c}")
    a(f"ds_write_b128 {vQt}, {vr(QD)} offset:{L_PART}")
    a(f"ds_read_b128 {vr(QD)}, {vL16} offset:{L_PART}")
    stamp("q_done")
    a("s_waitcnt vmcnt(0) lgkmcnt(0)")
    a("s_mov_b32 exec_hi, 0")
    poll("L_fl", hello_ld, lambda: tag_chk([12]), sleep=16, masked=True, first_issued=True)
    a("v_cmp_ne_u32 vcc, s59, v13")
    a("s_cmp_eq_u32 vcc_lo, 0"); a(f"s_cselect_b32 {sLocal}, {2 if force_remote else 1}, 2")
    stamp("hello_seen")
    a("v_mov_b32 v8, s56"); a("v_mov_b32 v9, s59")
    a(f"s_lshl3_add_u32 {sT1}, {sR}, {sRd}")
    def first_stores(b):
        a(f"buffer_store_dwordx4 {vr(QD)}, {vL16}, {WS}, {sQs} offen{b}")
        a(f"buffer_store_dwordx4 {vr(AOP)}, v18, {WS}, {sPb} offen{b}")
        a("s_mov_b32 exec_hi, 0")
        a(f"buffer_store_dwordx4 {vr(AOP)}, v18, {WS}, {sPa} offen{b}")
        a("s_mov_b32 exec_lo, 0xffff")
        a(f"buffer_store_dwordx4 {vr(ACC)}, {vL16}, {WS}, {sBz} offen{b}")
        a("s_mov_b32 exec_lo, 0xff")
        a(f"buffer_store_dwordx4 {vr(AOP)}, {vL16}, {WS}, {sMc} offen{b}")
        a("s_mov_b32 exec_lo, 1")
        a("s_waitcnt vmcnt(0)")
        a(f"buffer_store_dwordx2 v[8:9], off, {WS}, {sT1} offset:256{b}")
    by_placement("first", first_stores)
    a("s_mov_b32 exec_lo, -1")
    stamp("ready")
    poll("L_rd", lambda: a(f"buffer_load_dwordx2 v[12:13], {vL8}, {WS}, {sRd} offen offset:256 sc1"), lambda: tag_chk([12]), sleep=hsleep, masked=True)
    stamp("go_seen")
    a(f"v_lshlrev_b32 {t0}, 4, {vn}"); a(f"v_lshl_add_u32 {t0}, {vg}, 10, {t0}")
    a(f"s_lshr_b32 {sT0}, {sR}, 3"); a(f"s_lshl_b32 {sT0}, {sT0}, 8"); a(f"s_lshl_b32 {sT1}, {sX}, 13"); a(f"s_add_u32 {sT0}, {sT0}, {sT1}")
    a(f"s_add_u32 {sT0}, {sT0}, 0x20000")
    a(f"s_lshl4_add_u32 {sT2}, {sH}, {sB}"); a(f"s_lshl_b32 {sT2}, {sT2}, 8")
    for u in (2, 0, 1):
        for kh in range(2):
            a(f"s_add_u32 {sT1}, {sT2 if u == 2 else sT0}, {kh * 0x10000 + (4096 if u == 1 else 0)}")
            a(f"buffer_load_dwordx4 {vr(64+8*u+4*kh)}, {t0}, {WS}, {sT1} offen sc1")
    a(f"s_mov_b32 {sT1}, {WS_CH}")
    a("s_mov_b64 exec, 0xff")
    poll("L_ch", lambda: a(f"buffer_load_dwordx2 v[12:13], {t3}, {WS}, {sT1} offen sc1"), lambda: tag_chk([12]), masked=True, sleep=1)
    for bit, dst in ((1, sT0), (2, sT1), (4, sCh)):
        a(f"v_and_b32 v12, {bit}, v13"); a("v_cmp_ne_u32 vcc, 0, v12"); a(f"s_and_b32 {dst}, vcc_lo, 0xff")
    a(f"s_bcnt1_i32_b32 {sT0}, {sT0}"); a(f"s_bcnt1_i32_b32 {sT1}, {sT1}")
    a(f"s_cmp_gt_u32 {sT1}, {sT0}"); a(f"s_cselect_b32 {sT0}, 0xff, 0"); a(f"s_xor_b32 {sCh}, {sCh}, {sT0}")
    a(f"v_mov_b32 {t0}, {L_LOC}"); a(f"v_mov_b32 {t1}, {sLocal}"); a(f"v_mov_b32 {t2}, {sCh}"); a(f"ds_write2_b32 {t0}, {t1}, {t2} offset0:0 offset1:1")
    for u in range(3):
        for e in range(4): a(f"v_add_f32 v{64+8*u+e}, v{64+8*u+e}, v{64+8*u+4+e}")
        for e in range(2): a(f"v_cvt_pk_bf16_f32 v{64+8*u+e}, v{64+8*u+2*e}, v{64+8*u+2*e+1}")
        a(f"ds_write_b64 {vL8}, {vr(64+8*u,2)} offset:{L_Q+512*u}")
    a("s_waitcnt lgkmcnt(0)")
    stamp("q_in_lds")
    a("s_barrier")
    a(f"v_mov_b32 {t3}, 0")
    if vt:
        a(f"s_lshl4_add_u32 s40, {sB}, {sH}"); a("s_lshl_b32 s40, s40, 21")
        a(f"s_andn2_b32 s41, {sR}, 7"); a(f"s_add_u32 s41, s41, {sX}"); a("s_lshl_b32 s41, s41, 21"); a("s_add_u32 s41, s41, 0x180000")
        for pp, o in ((16, "s41"), (18, "s41"), (8, "s40"), (12, sU), (22, sU)):
            a(f"s_add_u32 s{pp}, s{pp}, {o}"); a(f"s_addc_u32 s{pp+1}, s{pp+1}, 0")
        if vt > 1:
            a(f"s_mul_i32 {sT0}, {sR}, {vt - 1}")
            def vchk():
                a("v_add3_u32 v8, v8, v9, v10"); a("v_add_u32 v8, v8, v11"); a(f"v_cmp_ge_u32 vcc, {sT0}, v8")
            poll("L_vt", lambda: a(f"ds_read_b128 v[8:11], {t3} offset:{L_PRG}"), vchk, sleep=2)
        a("s_mov_b64 exec, 1")
        for i, pp in enumerate((16, 18, 8)): a(f"global_load_dword v{12+i}, {t3}, s[{pp}:{pp+1}] {pol}")
        if vtw:
            a(f"s_cmp_ge_u32 {sR}, 28"); a("s_cbranch_scc1 L_vt_nw")
            for i, pp in enumerate((12, 22)): a(f"global_load_dword v{20+i}, {t3}, s[{pp}:{pp+1}] {pol}")
            a("L_vt_nw:")
        a("s_mov_b64 exec, -1")
    poll("L_cnt", lambda: a(f"ds_read_b32 v8, {t3} offset:{L_CNT}"), lambda: a("v_cmp_ne_u32 vcc, 4, v8"), sleep=16)
    stamp("B_in_lds")
    CB = 184
    def combine(u):
        for w in range(4): a(f"ds_read_b128 {vr(CB+4*w)}, {vL16} offset:{L_PART + 4096*u + 1024*w}")
        a("s_waitcnt lgkmcnt(0)" if stamps else "s_waitcnt lgkmcnt(2)")
        for e in range(4): a(f"v_add_f32 v{CB+e}, v{CB+e}, v{CB+4+e}")
        a("s_waitcnt lgkmcnt(0)")
        for e in range(4): a(f"v_add_f32 v{CB+8+e}, v{CB+8+e}, v{CB+12+e}")
        for e in range(4): a(f"v_add_f32 v{CB+e}, v{CB+e}, v{CB+8+e}")
        for e in range(2): a(f"v_cvt_pk_bf16_f32 v{CB+e}, v{CB+2*e}, v{CB+2*e+1}")
        for e in range(2): a(f"v_min_u32 v{CB+16+2*u+e}, -2, v{CB+e}")
    def publish(u, so):
        by_placement(f"pub{u}", lambda b: a(f"buffer_store_dwordx2 {vr(CB+16+2*u,2)}, {vPa}, {WS}, {so} offen{b}"), have_scc=True)
    a(f"s_add_u32 {sT0}, {sRecB}, 16384")
    a(f"s_cmp_eq_u32 {sLocal}, 1")
    for u in range(2):
        combine(u); publish(u, (sRecB, sT0)[u])
    a(f"s_cmp_ge_u32 {sR}, 28"); a("s_cbranch_scc1 L_h_nos2")
    GB = 128; OB = 64
    a(f"s_add_u32 {sT0}, {sG}, 8192")
    def gB():
        for st in range(2):
            for k in range(4): a(f"buffer_load_dwordx4 {vr(GB+16*st+4*k)}, {vGo}, {WS}, {(sG, sT0)[st]} offen offset:{1024*k} sc1")
    poll("L_s2b", gB, lambda: sentinel(range(GB, GB + 32)), sleep=16, masked=True)
    for i in range(16):
        a(f"v_lshlrev_b32 v{160+i}, 16, v{GB+i}"); a(f"v_lshlrev_b32 {t0}, 16, v{GB+16+i}")
        a(f"v_and_b32 v{GB+i}, 0xffff0000, v{GB+i}"); a(f"v_and_b32 v{GB+16+i}, 0xffff0000, v{GB+16+i}")
        a(f"v_add_f32 v{160+i}, v{160+i}, {t0}"); a(f"v_add_f32 v{GB+i}, v{GB+i}, v{GB+16+i}")
    for qp in (QP1, QP2):
        for i in range(16):
            a(f"v_add_f32_dpp v{160+i}, v{160+i}, v{160+i} {qp}"); a(f"v_add_f32_dpp v{GB+i}, v{GB+i}, v{GB+i} {qp}")
    for i in range(16): a(f"v_cvt_pk_bf16_f32 v{GB+i}, v{160+i}, v{GB+i}")
    for k in range(4): a(f"ds_write_b128 {vL16}, {vr(GB+4*k)} offset:{L_PART + 1024*k}")
    a("L_h_nos2:")
    stamp("oB_ready")
    a(f"s_cmp_eq_u32 {sLocal}, 1")
    a("s_waitcnt lgkmcnt(0)")
    a("s_barrier")
    combine(2); publish(2, sRecA)
    stamp("published")
    for i in range(3 if g2 else 2): a("s_barrier")
    if stamps or probe: finish()
    a("L_end:")
    a("s_endpgm")
    a.pad()
    global STAMP_NAMES
    STAMP_NAMES = {k: v[:-1] for k, v in names.items()}
    head = HEADER + f"; @launch grid=(256,1,1) block=({64*NW},1,1) lds={L_KB + NL * 4096}\n"
    head += f'.amdgcn_target "amdgcn-amd-amdhsa--gfx950"\n.text\n.globl {NAME}_kernel\n.p2align 8\n.type {NAME}_kernel,@function\n{NAME}_kernel:\n'
    nv = 256 if stamps else max(RING + 4 * RP, 224)
    assert not (stamps and RP > 47)
    tail = f'''.section .rodata,"a"
.p2align 6
.amdhsa_kernel {NAME}_kernel
  .amdhsa_next_free_vgpr {nv}
  .amdhsa_next_free_sgpr 102
  .amdhsa_accum_offset {nv}
  .amdhsa_group_segment_fixed_size 0
  .amdhsa_kernarg_size 104
  .amdhsa_user_sgpr_count 2
  .amdhsa_user_sgpr_kernarg_segment_ptr 1
  .amdhsa_system_sgpr_workgroup_id_x 1
  .amdhsa_float_denorm_mode_32 3
.end_amdhsa_kernel
'''
    return head + a.text() + tail

if __name__ == "__main__":
    kw = eval("dict(" + (sys.argv[2] if len(sys.argv) > 2 else "") + ")")
    open(sys.argv[1], "w").write(gen(**kw))
```

```python
import os, sys, struct
from asmlib import Asm
def f2u(x): return struct.unpack('<I', struct.pack('<f', x))[0]

NAME = "concat_heads__mha_block_cached__sliding_block_cached__decode"
_ref = "cdna_kernels/" + NAME + ".s.ref"
HEADER = open(_ref).read().split("; Override launch")[0] if os.path.exists(_ref) else ""

WS_QP = 0x0
WS_ML = 0x40000
WS_PO = 0x48000
WS_FL = 0xC8000
WS_GC = 0xD0000
WS_EP = 0xE4000
WS_CH = 0xE5000
WS_Y = 0x100000
YG = 7 * 16384
WS_END = WS_Y + 8 * YG
WS_STAMP = 0x400000
L_WQ = 0
L_WOA = 0
L_WOB = 16384
L_PART = 32768
L_Q = L_PART + 12288
L_CNT = L_Q + 1536
L_LOC = L_CNT + 4
L_CH = L_CNT + 8
L_PRG = L_CNT + 16
L_TH = L_CNT + 32
L_KB = L_CNT + 512
OOB = 0x40000000
TAGC = (0x9E3779B9, 0x7F4A7C15)
CSCALE = 0x3DB8AA3B
NW = 6


DOC = """;
; constant; the seed is moved on at the end) or by a sentinel written earlier in the same launch.  Every
;
"""

def brev(j, bits): return int(f"{j:0{bits}b}"[::-1], 2)
FULL = "row_mask:0xf bank_mask:0xf"
QP1 = "quad_perm:[1,0,3,2] " + FULL
QP2 = "quad_perm:[2,3,0,1] " + FULL

def gen(D=5, D0=5, ND0=12, RP=46, NL=12, ratio=6, stamps=False, fine=False, spin=1 << 19, pol="nt", force_remote=False,
        th0=4.15, thmin=3, gain=0.125, gw=0.08, gx=0.75, gstop=3, gI=1536, gc=1130, c0=6,
        rot=1, rotx=4, rotm=1, tlb=False, wod=2, wpos=0, g2=True, hk=6, hsleep=2, near=None, nrace=4, ml0=4, ml1=6, nowo=0, swz=True, vt=0, pf=2, bx=0, ila=2, ilb=1, rp=4, rph=0, lay=0, kv=0, wqt=0, pbar=4, xm=1, wg=None, wk=1.0, wcap=8, wfake=0, wbe=0, hb=None, rx=None, vtw=False, krot=5, krp=3, cbd=0, nox=False, wt=None, wtw=True, LG=16, thmax=12, nboost=24, xa=(), xb=(), kup=2.0, kat=2.0, probe=None):
    a = Asm()
    NTOT = 288; RT = RP + NL; thmax = min(thmax, LG - 2)
    sWG = "s2"; sW = "s3"
    KA, VA, KB, VB, WQ, XS, WS, OUT, WOA, WOB = (f"s[{i}:{i+3}]" for i in (32, 36, 40, 44, 32, 36, 60, 44, 48, 52))
    sLb = "s64"
    sX, sR, sH, sB = "s72", "s73", "s74", "s75"
    sOff = "s76"; sCnt = "s77"; sT0 = "s78"; sT1 = "s79"; sT2 = "s80"; sT3 = "s81"
    sRecA = "s82"; sRecB = "s83"; sG = "s84"; sY = "s85"; sU = "s86"; sC = "s87"; sSpin = "s88"; sLocal = "s89"
    sMk1 = "s[90:91]"; sMk0 = "s[92:93]"; sTh = "s94"; sRot = "s95"
    vL = "v0"; vKo = "v1"; vM = [f"v{i}" for i in range(2, 6)]
    QA = 6; QB = 14; SP = 30; AOP = 34; ACC = 38
    T = ["v46", "v47"]; U = ["v48", "v49"]; V = ["v50", "v51"]; X = ["v52", "v53"]
    t0, t1, t2, t3 = "v54", "v55", "v56", "v57"
    vm, vl, vg, vn = "v58", "v59", "v60", "v61"
    vmB, vlB = "v62", "v63"
    RING = 64
    OBS = 96; WTB = 112; ACCB = 128; SB = "v136"; vfA = "v137"; MLG = 138; WT = 144; G = 160
    vGo = "v176"; vYo = "v177"; vTr = "v178"; vPa = "v179"; vPrg = "v180"; vPrA = "v181"; vTH = "v182"; vWo = "v183"; vYm = "v206"; vYt = "v207"; vYb = "v184"; vWo2 = "v185"
    def slot(k): return RING + 4 * k
    def vr(i, n=4): return f"v[{i}:{i+n-1}]"
    names = {"s": [], "h": [], "g": []}
    cur = ["s"]
    def stamp(name):
        if probe and name == "start": a("s_memrealtime s[96:97]")
        if probe and len(probe) > 5 and (cur[0], name) == (probe[0], probe[5]): a("s_memrealtime s[26:27]"); a("s_waitcnt lgkmcnt(0)")
        if probe and (cur[0], name) == probe[:2]: a("s_memrealtime s[20:21]"); a("s_waitcnt lgkmcnt(0)")
        if not stamps: return
        nm = names[cur[0]]
        if nm:
            a("s_waitcnt lgkmcnt(0)")
            a(f"v_writelane_b32 v255, s96, {len(nm)-1}")
        nm.append(name)
        a("s_memrealtime s[96:97]")
    def finish():
        if probe and cur[0] == probe[0]:
            if probe[1] == "end": a("s_memrealtime s[20:21]"); a("s_waitcnt lgkmcnt(0)")
            a(f"s_sub_u32 s20, s20, {'s26' if len(probe) > 5 else 's96'}"); a(f"s_mul_i32 s20, s20, {probe[2]}"); a(f"s_add_u32 s20, s20, {probe[4]}")
            if probe[3] is not None: a(f"s_cmp_eq_u32 {sR if probe[3] < 32 else sWG}, {probe[3]}"); a("s_cselect_b32 s20, s20, 0")
            a("s_min_u32 s20, s20, 40000")
            a("L_probe:"); a("s_memrealtime s[22:23]"); a("s_waitcnt lgkmcnt(0)"); a("s_sub_u32 s22, s22, s96"); a("s_cmp_lt_u32 s22, s20"); a("s_cbranch_scc1 L_probe")
        if stamps:
            a("s_mov_b64 exec, -1")
            stamp("end"); a("s_waitcnt vmcnt(0)"); stamp("acked"); stamp("x")
            a("s_mov_b32 exec_hi, 0")
            a(f"s_mul_i32 {sT0}, {sWG}, {NW}"); a(f"s_add_u32 {sT0}, {sT0}, {sW}"); a(f"s_lshl_b32 {sT0}, {sT0}, 7"); a(f"s_add_u32 {sT0}, {sT0}, {WS_STAMP}")
            a(f"v_lshl_add_u32 {t0}, {vL}, 2, {sT0}")
            a(f"global_store_dword {t0}, v255, s[28:29]")
        a("s_endpgm")
    def srd(i, lo, hi, size):
        if lo is not None: a(f"s_mov_b32 s{i}, {lo}"); a(f"s_mov_b32 s{i+1}, {hi}")
        a(f"s_mov_b32 s{i+2}, {size}"); a(f"s_mov_b32 s{i+3}, 0x20000")
    def poll(name, loads, check, sleep=0, first_issued=False, masked=False):
        sv = a.vm_seq
        a(f"s_mov_b32 {sSpin}, {spin}")
        if first_issued: a(f"s_branch {name}_chk")
        a(f"{name}:")
        if sleep: a(f"s_sleep {sleep}")
        loads()
        a(f"s_sub_u32 {sSpin}, {sSpin}, 1"); a(f"s_cmp_eq_u32 {sSpin}, 0")
        a("s_waitcnt vmcnt(0) lgkmcnt(0)")
        a(f"s_cbranch_scc1 {name}_go")
        if first_issued: a(f"{name}_chk:")
        check()
        if masked:
            a("s_and_b64 exec, exec, vcc")
            a(f"s_cbranch_scc1 {name}")
        else:
            a(f"s_cbranch_vccnz {name}")
        a(f"{name}_go:")
        if masked: a("s_mov_b64 exec, -1")
        if first_issued: a.vm_seq = sv
    def by_placement(tag, emit, have_scc=False):
        if not have_scc: a(f"s_cmp_eq_u32 {sLocal}, 1")
        a(f"s_cbranch_scc1 L_{tag}_l")
        sv = a.vm_seq
        emit(" sc1"); a.vm_seq = sv
        a(f"s_branch L_{tag}_d")
        a(f"L_{tag}_l:")
        emit("")
        a(f"L_{tag}_d:")
    def sentinel(regs):
        regs = list(regs); accs = [t0, t2]
        a(f"v_max_u32 {t0}, v{regs[0]}, v{regs[1]}"); a(f"v_max_u32 {t2}, v{regs[2]}, v{regs[3]}")
        for i in range(4, len(regs), 2):
            c = accs[(i >> 1) & 1]
            a(f"v_max3_u32 {c}, {c}, v{regs[i]}, v{regs[i+1]}")
        a(f"v_max_u32 {t0}, {t0}, {t2}")
        a(f"v_cmp_eq_u32 vcc, -1, {t0}")
    def red(op, r, steps):
        for s in steps:
            if s in (16, 32):
                a(f"v_mov_b32 {t1}, {r}"); a(f"v_permlane{s}_swap_b32 {r}, {t1}"); a(f"{op} {r}, {r}, {t1}")
            elif s == "q1": a(f"{op}_dpp {r}, {r}, {r} {QP1}")
            elif s == "q2": a(f"{op}_dpp {r}, {r}, {r} {QP2}")
            else: a(f"{op}_dpp {r}, {r}, {r} row_ror:{s} {FULL}")
    def rnd(r):
        a(f"v_cvt_pk_bf16_f32 {r}, {r}, {r}"); a(f"v_and_b32 {r}, 0xffff0000, {r}")
    def unit(P):
        a(f"s_mul_i32 {sT0}, {sR}, 37"); a(f"s_lshr_b32 {sT0}, {sT0}, 8")
        a(f"s_mul_i32 {sT1}, {sT0}, 7"); a(f"s_sub_u32 {sT1}, {sR}, {sT1}")
        a(f"s_lshl_b32 {sT2}, {sX}, 2"); a(f"s_add_u32 {sT0}, {sT0}, {sT2}")
        a(f"s_mul_i32 {sU}, {sT0}, {128*896}"); a(f"s_lshl_b32 {sT2}, {sT1}, 7"); a(f"s_add_u32 {sU}, {sU}, {sT2}")
        a(f"s_lshr_b32 {sG}, {sT0}, 1"); a(f"s_lshl_b32 {sG}, {sG}, 14"); a(f"s_and_b32 {sT2}, {sT0}, 1"); a(f"s_lshl_b32 {sT2}, {sT2}, 12")
        a(f"s_add_u32 {sG}, {sG}, {sT2}"); a(f"s_add_u32 {sG}, {sG}, {WS_PO + P*512*512}")
        a(f"s_lshl_b32 {sY}, {sT1}, 14"); a(f"s_lshl_b32 {sT2}, {sT0}, 6"); a(f"s_add_u32 {sY}, {sY}, {sT2}")
        a(f"s_add_u32 {sY}, {sY}, {WS_Y}")
    def unit_v():
        a(f"v_lshrrev_b32 {t0}, 2, {vn}"); a(f"v_and_b32 {t2}, 3, {vn}")
        a(f"v_lshlrev_b32 {vGo}, 4, {vL}")
        a(f"v_lshl_add_u32 {vTr}, {vg}, 3, {t0}"); a(f"v_lshlrev_b32 {vTr}, 7, {vTr}"); a(f"v_lshl_add_u32 {vTr}, {t2}, 3, {vTr}")
        a(f"v_lshrrev_b32 {t0}, 3, {vL}"); a(f"v_mul_u32_u24 {t0}, 896, {t0}"); a(f"v_and_b32 {t2}, 7, {vL}"); a(f"v_lshl_add_u32 {vWo}, {t2}, 4, {t0}")
    sCh = "s71"
    def y_base(dst, P):
        a(f"v_add_u32 {t0}, {4*P}, {vg}"); a(f"v_mul_u32_u24 {dst}, {YG}, {t0}")
        a(f"v_bfe_u32 {t2}, {sCh}, {t0}, 1"); a(f"v_lshl_add_u32 {dst}, {t2}, 13, {dst}"); a(f"v_lshl_add_u32 {dst}, {vn}, 2, {dst}")
    def tag_load(): a(f"s_load_dwordx2 s[56:57], s[28:29], {WS_EP}")
    def tag_make():
        a(f"s_add_u32 s56, s56, {TAGC[0]}"); a(f"s_addc_u32 s57, s57, {TAGC[1]}"); a("s_lshr_b32 s58, s57, 4")
        a(f"s_getreg_b32 {sT0}, hwreg(HW_REG_XCC_ID, 0, 4)")
        a("s_lshl_b32 s59, s58, 4"); a(f"s_or_b32 s59, s59, {sT0}")
    def tag_chk(regs):
        for i, r in enumerate(regs):
            a(f"v_lshrrev_b32 {t1}, 4, v{r+1}"); a(f"v_xor_b32 {t1}, s58, {t1}"); a(f"v_xor_b32 {t2}, s56, v{r}")
            if i: a(f"v_or3_b32 {t0}, {t0}, {t1}, {t2}")
            else: a(f"v_or_b32 {t0}, {t1}, {t2}")
        a(f"v_cmp_ne_u32 vcc, 0, {t0}")

    YT = ["s65", "s66", "s67", "s68"]
    def ytag_make():
        a(f"s_and_b32 {YT[0]}, s56, 0xfff"); a(f"s_bfe_u32 {YT[1]}, s56, 0xc000c")
        a(f"s_and_b32 {YT[2]}, s58, 0xfff"); a(f"s_bfe_u32 {YT[3]}, s58, 0xc000c")
    def y_seal(r):
        a(f"v_add_u32 v{r}, 0x800, v{r}"); a(f"v_and_or_b32 v{r}, v{r}, {vYm}, {vYt}")

    a("s_load_dwordx16 s[4:19], s[0:1], 0")
    a("s_load_dwordx8 s[20:27], s[0:1], 64")
    a("s_load_dwordx2 s[28:29], s[0:1], 96")
    stamp("start"); names["h"] = list(names["s"]); names["g"] = list(names["s"])
    a(f"s_cmp_ge_u32 {sWG}, 256")
    a("s_cbranch_scc1 L_end")
    a(f"v_lshrrev_b32 {t2}, 6, v0")
    a(f"v_and_b32 {vL}, 63, v0")
    a(f"v_readfirstlane_b32 {sW}, {t2}")
    a(f"v_lshrrev_b32 {vg}, 4, {vL}")
    a(f"v_and_b32 {vn}, 15, {vL}")
    a(f"s_and_b32 {sX}, {sWG}, 7")
    a(f"s_lshr_b32 {sR}, {sWG}, 3")
    a(f"s_lshr_b32 {sT0}, {sWG}, 7")
    a(f"s_lshl1_add_u32 {sH}, {sX}, {sT0}")
    a(f"s_bfe_u32 {sB}, {sR}, 0x20002")
    a(f"s_cmp_ge_u32 {sW}, 4")
    a("s_cbranch_scc1 L_helper")

    a(f"v_lshl_add_u32 {vKo}, {t2}, 2, {vg}")
    a(f"v_lshl_add_u32 {vKo}, {vKo}, 5, {vn}")
    a(f"v_lshlrev_b32 {vKo}, 4, {vKo}")
    HA = 3 << (13 + ila); HB = 7 << (13 + ilb)
    a(f"s_lshl4_add_u32 s40, {sB}, {sH}"); a(f"s_and_b32 s41, {sR}, 3")
    if hb:
        HA = (1 << hb[0]) | (1 << hb[1])
        a("s_lshl_b32 s40, s40, 21"); a("s_and_b32 s42, s41, 1"); a(f"s_lshl_b32 s42, s42, {hb[0]}"); a("s_add_u32 s40, s40, s42")
        a("s_lshr_b32 s42, s41, 1"); a(f"s_lshl_b32 s42, s42, {hb[1]}"); a("s_add_u32 s40, s40, s42")
    elif ila == 6:
        a("s_lshl2_add_u32 s40, s40, s41"); a("s_lshl_b32 s40, s40, 19")
    else:
        a(f"s_lshl_b32 s40, s40, {8 - ila}"); a("s_add_u32 s40, s40, s41"); a(f"s_lshl_b32 s40, s40, {13 + ila}")
    NRA = 0x200000 - HA; MA_ = 0x1fffff & ~HA
    if lay:
        nb = 3 + lay
        HA = (((1 << nb) - 1) << (13 + ila)) | ((15 << 21) if lay == 1 else (7 << 22))
        NRA = 0x8000000 - HA; MA_ = 0x7ffffff & ~HA
        a(f"s_and_b32 s40, {sR}, {(1 << nb) - 1}"); a(f"s_lshl_b32 s40, s40, {13 + ila}")
        a(f"s_lshl_b32 s42, {sH if lay == 1 else sX}, {20 + lay}"); a("s_add_u32 s40, s40, s42")
    srd(32, None, None, NRA)
    cur_off = [0]
    sMask = "s70"; sHole = "s100"; sRa = "s101"
    rota = rp or rph
    if rx:
        a(f"s_mul_i32 {sRa}, {sB}, {rx[0]}"); a(f"s_mul_i32 {sOff}, {sH}, {rx[1]}"); a(f"s_add_u32 {sRa}, {sRa}, {sOff}")
        a(f"s_lshr_b32 {sRa}, {sRa}, {rx[2]}"); a(f"s_and_b32 {sRa}, {sRa}, 3"); a(f"s_lshl_b32 {sRa}, {sRa}, 19")
    elif rp << ila == 16 and not rph:
        a(f"s_lshl_b32 {sRa}, {sB}, 19")
    elif rota:
        a(f"s_mul_i32 {sRa}, {sB}, {rp}"); a(f"s_mul_i32 {sOff}, {sH}, {rph}"); a(f"s_add_u32 {sRa}, {sRa}, {sOff}")
        a(f"s_lshl_b32 {sRa}, {sRa}, {15 + ila}"); a(f"s_and_b32 {sRa}, {sRa}, 0x1fffff")
    a(f"s_mov_b32 {sOff}, {sRa if rota else 0}")
    sXo = "s4"; sXa = "s5"; sXb = "s10"; sEff = "s11"
    def xor_make(dst, spec):
        a(f"s_mov_b32 {dst}, 0")
        for bit, src in spec:
            a(f"s_bitcmp1_b32 {sWG}, {src}"); a(f"s_cselect_b32 {sT1}, {1 << bit}, 0"); a(f"s_xor_b32 {dst}, {dst}, {sT1}")
    def advance(n, masked=False):
        if masked:
            a(f"s_or_b32 {sOff}, {sOff}, {sHole}"); a(f"s_addk_i32 {sOff}, 8192"); a(f"s_and_b32 {sOff}, {sOff}, {sMask}")
        else:
            nx = ((cur_off[0] | HA) + 8192) & ~HA
            d = nx - cur_off[0]; cur_off[0] = nx
            if d == 8192: a(f"s_addk_i32 {sOff}, 8192")
            else:
                a(f"s_add_u32 {sOff}, {sOff}, {d}")
                if rota: a(f"s_bitset0_b32 {sOff}, 21")
    def backlog(P0, do_issue, do_proc):
        p = 0; burst = 0; iss = RT
        while not (p % LG == 0 and iss - p == LG and p >= RT):
            do_proc(p); p += 1
            free = iss - RT < p and (P0 is None or iss < P0 + LG)
            if iss - p < LG or (iss - p > LG and free and (burst < D or p % ratio == 0)):
                assert free
                do_issue(); iss += 1; burst += 1
        return p
    P0 = backlog(None, lambda: None, lambda p: None)
    assert P0 - RT <= 16 and P0 <= 112
    a("s_waitcnt lgkmcnt(0)")
    a(f"s_add_u32 s32, s{6+2*kv}, s40"); a(f"s_addc_u32 s33, s{7+2*kv}, 0")
    if xa: xor_make(sXa, xa); a(f"s_mov_b32 {sXo}, {sXa}")
    ids = {}
    def srd_of(n): return KA if n < 128 else KB if n < 144 else VB if n < 160 else VA
    def kslot(n):
        if n >= P0: return n % LG
        if n >= RT: return LG + n - RT
        if n >= RP: return 32 + (n - RP) % 8
        NT = P0 - RT
        return LG + n if n < NT else n - NT if n < NT + LG else n
    def issue(n, masked=False):
        if n == 144: a(f"s_mov_b32 {sOff}, {sRot}")
        if n == 160:
            a(f"s_mov_b32 {sOff}, {sRa if rota else 0}"); a(f"s_mov_b32 {sHole}, {HA}"); a(f"s_mov_b32 {sMask}, {MA_}")
            if xa or xb: a(f"s_mov_b32 {sXo}, {sXa if xa else 0}")
        masked = masked or n >= 128
        so = sOff
        if xa or (xb and masked and n < 160):
            so = sEff
            if not n & 1: a(f"s_xor_b32 {sEff}, {sOff}, {sXo}")
        if RP <= n < RT:
            a(f"s_add_u32 m0, {sLb}, {256 + (n - RP) * 1024 - 256 * (n & 1)}")
            ids[n] = a(f"buffer_load_dwordx4 {vKo}, {srd_of(n)}, {so} offen offset:{256*(n&1)} {pol} lds")
        else:
            ids[n] = a(f"buffer_load_dwordx4 {vr(slot(kslot(n)))}, {vKo}, {srd_of(n)}, {so} offen offset:{256*(n&1)} {pol}")
        if n & 1: advance(n, masked)
    for n in range(D0): issue(n)
    issued = D0
    stamp("k0")
    tag_load()
    a(f"s_add_u32 s36, s{8-2*kv}, s40"); a(f"s_addc_u32 s37, s{9-2*kv}, 0"); srd(36, None, None, NRA)
    a(f"s_lshl2_add_u32 {sRecA}, {sH}, {sB}"); a(f"s_lshl3_add_u32 {sRecA}, {sRecA}, s41")
    a(f"s_lshl_b32 {sRecB}, {sX}, 6"); a(f"s_add_u32 {sRecB}, {sRecB}, {sR}"); a(f"s_add_u32 {sRecB}, {sRecB}, 512")
    a(f"s_andn2_b32 s44, {sR}, 7"); a(f"s_add_u32 s44, s44, {sX}"); a(f"s_xor_b32 s44, s44, {bx}"); a("s_lshl_b32 s44, s44, 21")
    a(f"s_and_b32 s45, {sR}, 7"); a(f"s_lshl_b32 s45, s45, {13 + ilb}"); a("s_add_u32 s44, s44, s45"); a("s_add_u32 s44, s44, 0x180000")
    a("s_add_u32 s40, s16, s44"); a("s_addc_u32 s41, s17, 0"); srd(40, None, None, 0x80000 - HB)
    a("s_add_u32 s44, s18, s44"); a("s_addc_u32 s45, s19, 0"); srd(44, None, None, 0x80000 - HB)
    srd(60, "s28", "s29", WS_END); srd(48, "s12", "s13", 0 if nowo & 1 else 0x380000); srd(52, "s22", "s23", 0 if nowo & 2 else 0x380000)
    unit(0)
    a(f"s_mul_i32 {sT0}, {sW}, {4*8*896}"); a(f"s_add_u32 {sU}, {sU}, {sT0}")
    a(f"s_lshl_b32 {sT0}, {sW}, 11"); a(f"s_add_u32 {sY}, {sY}, {sT0}")
    sUB = "s69"
    a(f"s_xor_b32 {sT0}, {sX}, {bx}"); a(f"s_sub_i32 {sT0}, {sT0}, {sX}"); a(f"s_mul_i32 {sT0}, {sT0}, {512*896}"); a(f"s_add_u32 {sUB}, {sU}, {sT0}")
    a(f"s_cmp_ge_u32 {sR}, 28"); a(f"s_cselect_b32 {sU}, {OOB}, {sU}"); a(f"s_cselect_b32 {sUB}, {OOB}, {sUB}"); a(f"s_cselect_b32 {sG}, {OOB}, {sG}")
    if True:
        a(f"s_mul_i32 {sRot}, {sR}, {rot}"); a(f"s_mul_i32 {sT0}, {sX}, {rotx}"); a(f"s_add_u32 {sRot}, {sRot}, {sT0}")
        a(f"s_and_b32 {sRot}, {sRot}, {rotm}")
        a(f"s_lshr_b32 {sT0}, {sRot}, {ilb}"); a(f"s_mul_i32 {sT0}, {sT0}, {7 << ilb}"); a(f"s_add_u32 {sRot}, {sRot}, {sT0}"); a(f"s_lshl_b32 {sRot}, {sRot}, 13")
    if xa or xb: xor_make(sXb, xb)
    if xb and not xa: a(f"s_mov_b32 {sXo}, 0")
    a(f"s_mov_b32 {sC}, {CSCALE}")
    a("s_mov_b32 s90, 0xcccccccc"); a("s_mov_b32 s91, 0xcccccccc")
    a("s_mov_b32 s92, 0xaaaaaaaa"); a("s_mov_b32 s93, 0xaaaaaaaa")
    a("s_and_b64 s[98:99], s[90:91], s[92:93]"); a(f"s_mov_b32 {sHole}, {HA}"); a(f"s_mov_b32 {sMask}, {MA_}")
    a(f"v_bfe_u32 {t0}, {vL}, 1, 2")
    a(f"v_mov_b32 {t2}, 0xffff"); a(f"v_mov_b32 {t1}, 0xffff0000")
    a(f"v_cndmask_b32 {t2}, {t2}, {t1}, {sMk0}")
    for j in range(4):
        a(f"v_cmp_eq_u32 vcc, {j}, {t0}")
        a(f"v_cndmask_b32 {vM[j]}, 0, {t2}, vcc")
    a(f"v_lshlrev_b32 {t3}, 4, {vn}"); a(f"v_mov_b32 {t0}, {L_LOC}")
    a(f"s_mul_i32 {sLb}, {sW}, {NL * 1024}"); a(f"s_add_u32 {sLb}, {sLb}, {L_KB - 256}")
    if nboost:
        a(f"s_and_b32 {sT0}, {sR}, 7"); a(f"s_cmp_eq_u32 {sT0}, 3"); a("s_cselect_b64 vcc, -1, 0")
    landed = -1
    def throttled_issue():
        nonlocal issued, landed
        d = D0 if issued < ND0 else D
        if issued - d > landed:
            if 14 <= issued < 14 + nboost:
                landed = max(landed, issued - d - 1); a.wait_vm(ids[issued - d - 1])
                a(f"s_cbranch_vccnz L_boost{issued}"); a.wait_vm(ids[issued - d]); a(f"L_boost{issued}:")
            else:
                landed = issued - d; a.wait_vm(ids[landed])
        issue(issued); issued += 1
    while issued < RT - pbar:
        throttled_issue()
        if (fine or probe) and issued in (D0 + 1, 16, 26, 36, 46, 56, 66): stamp(f"ki{issued}")
        if issued == 24:
            a("s_waitcnt lgkmcnt(0)"); tag_make(); ytag_make()
    stamp("ring_full")
    a("s_barrier")
    if probe or fine: stamp("bar")
    a(f"ds_read_b128 {vr(QA)}, {t3} offset:{L_Q+1024}"); a(f"ds_read_b128 {vr(QA+4)}, {t3} offset:{L_Q+1024+256}")
    for k in range(4): a(f"ds_read_b128 {vr(QB+4*k)}, {t3} offset:{L_Q+256*k}")
    a(f"ds_read2_b32 v[54:55], {t0} offset0:0 offset1:1")
    while issued < RT: throttled_issue()
    a(f"v_lshl_add_u32 {t3}, {vL}, 4, {sLb}")
    a("s_waitcnt lgkmcnt(0)")
    a(f"v_readfirstlane_b32 {sLocal}, {t0}"); a(f"v_readfirstlane_b32 {sCh}, {t1}")
    stamp("q_ready")

    def tree(j, acc, dst_fn):
        u = U[(j >> 1) & 1]
        a(f"v_add_f32_dpp {u}, {acc}, {acc} row_ror:8 row_mask:0xf bank_mask:{'0xc' if j & 1 else '0x3'}")
        if not j & 1: return
        v = V[(j >> 2) & 1]
        a(f"v_add_f32_dpp {v}, {u}, {u} row_half_mirror row_mask:0xf bank_mask:{'0xa' if j & 2 else '0x5'}")
        if not j & 2: return
        a(f"v_add_f32_dpp {v}, {v}, {v} {QP2}")
        if not j & 4: return
        x = X[(j >> 3) & 1]
        a(f"v_cndmask_b32 {x}, {V[0]}, {V[1]}, {sMk1}")
        a(f"v_add_f32_dpp {x}, {x}, {x} {QP1}")
        if not j & 8: return
        dst_fn()
    def dots(acc, kr, qr, first):
        if first: a(f"v_mov_b32 {acc}, 0")
        for e in range(4): a(f"v_dot2c_f32_bf16 {acc}, v{kr+e}, v{qr+e}")
    ROT = "quad_perm:[1,2,3,0] " + FULL
    def procK(n, looped=False):
        k = kslot(n); i = (n >> 1) & 3; hf = n & 1
        acc = T[i & 1]
        dots(acc, slot(k), QA + 4 * hf, not hf)
        if not hf: return
        a(f"v_add_f32_dpp {U[0]}, {acc}, {acc} row_ror:8 row_mask:0xf bank_mask:{'0xc' if i & 1 else '0x3'}")
        if not i & 1: return
        a(f"v_add_f32_dpp {V[0]}, {U[0]}, {U[0]} row_half_mirror row_mask:0xf bank_mask:{'0xa' if i & 2 else '0x5'}")
        if not i & 2: return
        r = SP + (0 if looped else ((n >> 3) - P0 // 8) & 3)
        a(f"v_mov_b32_dpp {X[0]}, v{r} {ROT}")
        a(f"v_add_f32_dpp {V[0]}, {V[0]}, {V[0]} {QP2}")
        if looped:
            for e in range(3): a(f"v_mov_b32 v{SP+e}, v{SP+e+1}")
        a(f"v_add_f32_dpp {V[0]}, {V[0]}, {V[0]} {QP1}")
        a(f"v_cndmask_b32 v{SP+3 if looped else r}, {X[0]}, {V[0]}, s[98:99]")
    def procKB(n):
        k = kslot(n); j = (n - 128) >> 1; hf = n & 1
        for hd in range(2):
            dots(T[hd], slot(k), QB + 8 * hd + 4 * hf, not hf)
        if not hf: return
        for hd in range(2):
            tree(2 * j + hd, T[hd], lambda: a(f"v_cndmask_b32 {SB}, {X[0]}, {X[1]}, {sMk0}"))
    def procVB(n):
        k = kslot(n); j = (n - 144) >> 1; hf = n & 1
        if not hf:
            a(f"v_mov_b32_dpp {t0}, {SB} row_newbcast:{brev(j,3)} row_mask:0xf bank_mask:0x3")
            a(f"v_mov_b32_dpp {t0}, {SB} row_newbcast:{8+brev(j,3)} row_mask:0xf bank_mask:0xc")
            for e in range(4): a(f"v_and_b32 v{AOP+e}, {t0}, {vM[e]}")
        a(f"v_mfma_f32_16x16x32_bf16 {vr(ACCB+4*hf)}, {vr(AOP)}, {vr(slot(k))}, {vr(ACCB+4*hf) if j else 0}")
    def procV(n, last=False):
        k = kslot(n); i = (n >> 1) & 3; hf = n & 1
        if not hf:
            for e in range(4):
                a(f"v_and_b32_dpp v{AOP+e}, v{SP}, {vM[e]} row_newbcast:{8*(i&1) + 4*(i>>1)} {FULL}")
        a(f"v_mfma_f32_16x16x32_bf16 {vr(ACC+4*hf)}, {vr(AOP)}, {vr(slot(k))}, {vr(ACC+4*hf)}")
        if hf and i == 3 and not last:
            a(f"v_mov_b32_dpp {X[0]}, v{SP} {ROT}")
            for e in range(3): a(f"v_mov_b32 v{SP+e}, v{SP+e+1}")
            a(f"v_mov_b32 v{SP+3}, {X[0]}")
    AH = 4
    def backlog_proc(p):
        n = p + AH
        if RP <= n < RT:
            assert n <= landed and p > 39
            a(f"ds_read_b128 {vr(slot(kslot(n)))}, {t3} offset:{256 + (n - RP) * 1024}")
        if RP <= p < RT: a(f"s_waitcnt lgkmcnt({min(AH, RT - 1 - p)})")
        assert p <= landed
        procK(p)
    assert backlog(P0, throttled_issue, backlog_proc) == P0
    total = (NTOT - LG - P0) // 2 * 4
    a(f"s_lshl2_add_u32 {sT0}, {sW}, {L_PRG}")
    a(f"v_mov_b32 {vPrA}, {sT0}"); a(f"v_mov_b32 {vPrg}, 0")
    a(f"s_mov_b32 {sTh}, {int(th0 + 0.5)}")
    stamp("caught_up")
    nlad = [0]
    def pair(n, proc, extra=None, masked=False):
        j = n >> 1
        if j & 1:
            a(f"s_waitcnt vmcnt({LG - 2}) lgkmcnt(0)")
            a(f"v_readfirstlane_b32 {sTh}, {vTH}")
        else:
            a(f"s_waitcnt vmcnt({LG - 2})")
        proc(n); proc(n + 1)
        if thmax < LG - 2: a(f"s_waitcnt vmcnt({thmax})")
        nlad[0] += 1
        for th in range(thmax, thmin, -1):
            a(f"s_cmp_ge_u32 {sTh}, {th}"); a(f"s_cbranch_scc1 L_lad{nlad[0]}")
            a(f"s_waitcnt vmcnt({th - 1})")
        a(f"L_lad{nlad[0]}:")
        issue(n + LG, masked); issue(n + LG + 1, masked)
        a(f"v_add_u32 {vPrg}, 1, {vPrg}")
        a(f"ds_write_b32 {vPrA}, {vPrg}")
        if not j & 1: a(f"ds_read_b32 {vTH}, {vPrA} offset:{L_TH - L_PRG}")
        if extra: extra()
    a(f"s_mov_b32 {sCnt}, {(128 - P0) // LG}")
    a("L_k:")
    a(f"s_sub_u32 {sCnt}, {sCnt}, 1"); a(f"s_cmp_eq_u32 {sCnt}, 0")
    a("s_cselect_b32 s32, s40, s32"); a("s_cselect_b32 s33, s41, s33"); a("s_cselect_b32 s34, s42, s34")
    a(f"s_cselect_b32 {sOff}, {sRot}, {sOff}"); a(f"s_cselect_b32 {sMask}, {0x7ffff & ~HB}, {sMask}"); a(f"s_cselect_b32 {sHole}, {HB}, {sHole}")
    if xa or xb: a(f"s_cselect_b32 {sXo}, {sXb}, {sXo}")
    for n in range(P0, P0 + LG, 2): pair(n, lambda m: procK(m, True), masked=True)
    a(f"s_cmp_lg_u32 {sCnt}, 0"); a("s_cbranch_scc1 L_k")
    stamp("K_done")
    def softmaxA():
        for e in range(4): rnd(f"v{SP+e}")
        a(f"v_max3_f32 {vm}, v{SP}, v{SP+1}, v{SP+2}"); a(f"v_max_f32 {vm}, {vm}, v{SP+3}")
        red("v_max_f32", vm, (8, 4, 2, 1, 16, 32))
        a(f"v_mul_f32 {vm}, {sC}, {vm}")
        for e in range(4): a(f"v_fma_f32 v{SP+e}, v{SP+e}, {sC}, -{vm}")
        for e in range(4): a(f"v_exp_f32 v{SP+e}, v{SP+e}")
        a(f"v_add_f32 {vl}, v{SP}, v{SP+1}"); a(f"v_add_f32 {t0}, v{SP+2}, v{SP+3}"); a(f"v_add_f32 {vl}, {vl}, {t0}")
        for e in range(4): a(f"v_cvt_pk_bf16_f32 v{SP+e}, v{SP+e}, v{SP+e}")
    def softmaxA2():
        red("v_add_f32", vl, (8, 4, 2, 1, 16, 32))
        for e in range(8): a(f"v_mov_b32 v{ACC+e}, 0")
        a(f"v_min_u32 {vm}, -2, {vm}"); a(f"v_min_u32 {vl}, -2, {vl}")
        a(f"s_lshl2_add_u32 {sT0}, {sRecA}, {sW}"); a(f"s_lshl3_add_u32 {sT0}, {sT0}, {WS_ML}")
        a("s_mov_b64 exec, 1")
        by_placement("mla", lambda b: a(f"buffer_store_dwordx2 v[58:59], off, {WS}, {sT0}{b}"))
        a("s_mov_b64 exec, -1")
    def softmaxB():
        rnd(SB)
        a(f"v_mul_f32 {SB}, {sC}, {SB}")
        a(f"v_max_f32_dpp {vmB}, {SB}, {SB} row_half_mirror {FULL}")
        red("v_max_f32", vmB, ("q1", "q2", 16, 32))
        a(f"v_sub_f32 {SB}, {SB}, {vmB}"); a(f"v_exp_f32 {SB}, {SB}")
        a(f"v_add_f32_dpp {vlB}, {SB}, {SB} row_half_mirror {FULL}")
        a(f"v_cvt_pk_bf16_f32 {SB}, {SB}, {SB}")
    def softmaxB2():
        red("v_add_f32", vlB, ("q1", "q2", 16, 32))
        a(f"v_min_u32 {vmB}, -2, {vmB}"); a(f"v_min_u32 {vlB}, -2, {vlB}")
        a(f"s_lshl2_add_u32 {sT0}, {sRecB}, {sW}"); a(f"s_lshl3_add_u32 {sT0}, {sT0}, {WS_ML}")
        a(f"v_lshlrev_b32 {t2}, 7, {vn}")
        a("s_mov_b64 exec, 0x101")
        by_placement("mlb", lambda b: a(f"buffer_store_dwordx2 v[62:63], {t2}, {WS}, {sT0} offen{b}"))
        a("s_mov_b64 exec, -1")
    def addresses():
        if swz:
            a(f"v_bfe_u32 {t0}, {vL}, 3, 2"); a(f"v_xor_b32 {t0}, {sW}, {t0}"); a(f"v_lshl_add_u32 {vTr}, {t0}, 5, {vTr}")
            a(f"v_and_b32 {t0}, 16, {vL}"); a(f"v_lshlrev_b32 {t0}, 1, {t0}"); a(f"v_xor_b32 {vWo}, {t0}, {vWo}"); a(f"v_xor_b32 {vWo2}, 64, {vWo}")
        else:
            a(f"s_lshl_b32 {sT0}, {sW}, 5"); a(f"v_add_u32 {vTr}, {sT0}, {vTr}"); a(f"v_mov_b32 {vWo2}, {vWo}")
        a(f"s_lshl_b32 {sLb}, {sW}, 12")
        if wfake == 1:
            a(f"v_lshlrev_b32 {vWo}, 4, {vL}"); a(f"v_mov_b32 {vWo2}, {vWo}")
            a(f"s_mul_i32 {sU}, {sX}, 28"); a(f"s_add_u32 {sU}, {sU}, {sR}"); a(f"s_lshl2_add_u32 {sU}, {sU}, {sW}"); a(f"s_lshl_b32 {sU}, {sU}, 12")
            a(f"s_cmp_ge_u32 {sR}, 28"); a(f"s_cselect_b32 {sU}, {OOB}, {sU}"); a(f"s_mov_b32 {sUB}, {sU}")
        if wfake == 2:
            a(f"v_mul_u32_u24 {vWo}, 896, {vg}"); a(f"v_lshl_add_u32 {vWo}, {vn}, 4, {vWo}")
            a(f"s_and_b32 {sT0}, {sR}, 3"); a(f"s_cmp_eq_u32 {sT0}, 3"); a(f"s_cselect_b32 {sT1}, 8, 16")
            a(f"v_cmp_gt_u32 vcc, {sT1}, {vn}"); a(f"v_mov_b32 {t0}, {OOB}"); a(f"v_cndmask_b32 {vWo}, {t0}, {vWo}, vcc"); a(f"v_mov_b32 {vWo2}, {vWo}")
            a(f"s_bfe_u32 {sU}, {sR}, 0x20002"); a(f"s_lshl2_add_u32 {sU}, {sX}, {sU}"); a(f"s_lshl2_add_u32 {sU}, {sU}, {sW}"); a(f"s_mul_i32 {sU}, {sU}, {32*896}")
            a(f"s_lshl_b32 {sT0}, {sT0}, 8"); a(f"s_add_u32 {sU}, {sU}, {sT0}"); a(f"s_add_u32 {sUB}, {sU}, {16*896}")
            a(f"s_cmp_ge_u32 {sR}, 16"); a("s_cselect_b32 s48, s52, s48"); a("s_cselect_b32 s49, s53, s49"); a("s_mov_b32 s52, s48"); a("s_mov_b32 s53, s49")
        y_base(vYo, 0); y_base(vYb, 1)
        a(f"v_mov_b32 {vYm}, 0xfffff000")
        a(f"v_mov_b32 {t0}, {YT[0]}"); a(f"v_mov_b32 {t1}, {YT[1]}"); a(f"v_cndmask_b32 {t0}, {t0}, {t1}, {sMk0}")
        a(f"v_mov_b32 {t2}, {YT[2]}"); a(f"v_mov_b32 {t1}, {YT[3]}"); a(f"v_cndmask_b32 {t2}, {t2}, {t1}, {sMk0}")
        a(f"v_cndmask_b32 {vYt}, {t0}, {t2}, {sMk1}")
        a(f"v_and_b32 {t0}, 1, {vg}"); a(f"v_lshlrev_b32 {t0}, 4, {t0}"); a(f"v_lshl_add_u32 {t0}, {vn}, 5, {t0}")
        a(f"s_lshl_b32 {sT0}, {sW}, 10"); a(f"s_add_u32 {sT0}, {sT0}, {L_PART}")
        a(f"v_add_u32 {vPa}, {sT0}, {t0}")
    nwo = 0; id_wo = None
    def gA():
        for k in range(4): a(f"buffer_load_dwordx4 {vr(G+4*k)}, {vGo}, {WS}, {sG} offen offset:{1024*k} sc1")
    def wo_issue():
        nonlocal nwo, id_wo
        j = (nwo - wbe) % 8
        a(f"s_add_u32 m0, {sLb}, {(L_WOA, L_WOB)[j >> 2] + 1024*(j & 3)}")
        a(f"s_add_u32 {sT0}, {(sU, sUB)[j >> 2]}, {(8*896, 1024, 4*896)[wfake]*(j & 3)}")
        id_wo = a(f"buffer_load_dwordx4 {(vWo, vWo2)[j & 1]}, {(WOA, WOB)[j >> 2]}, {sT0} offen {pol} lds")
        nwo += 1
    extras = {128: softmaxA, 130: softmaxA2, 132: unit_v, 134: addresses, 142: softmaxB, 144: softmaxB2}
    for i in range(wbe): extras[146 + 2 * (i % 7)] = (lambda f: (lambda: (f and f(), wo_issue())))(extras.get(146 + 2 * (i % 7)))
    for n in range(128, 160, 2): pair(n, procKB if n < 144 else procVB, extras.get(n))
    stamp("B_done")
    a(f"s_mov_b32 {sCnt}, 0")
    a("; ---- V_A ----")
    a("L_v:")
    a(f"s_cmp_eq_u32 {sCnt}, {ml0}"); a("s_cbranch_scc1 L_ml_issue")
    a(f"s_cmp_eq_u32 {sCnt}, {ml1}"); a("s_cbranch_scc1 L_ml_use")
    if stamps:
        a(f"s_cmp_eq_u32 {sCnt}, 10"); a("s_cbranch_scc1 L_st11")
    a("L_v_body:")
    for n in range(160, 160 + LG, 2): pair(n, procV)
    a(f"s_add_u32 {sCnt}, {sCnt}, {LG // 8}"); a(f"s_cmp_lt_u32 {sCnt}, {16 - LG // 8}"); a("s_cbranch_scc1 L_v")
    a("s_branch L_v_x")
    def ml_loads():
        a(f"buffer_load_dwordx2 {vr(MLG,2)}, {U[0]}, {WS}, {sT0} offen sc1")
        a(f"buffer_load_dwordx2 {vr(MLG+2,2)}, {U[1]}, {WS}, {sT1} offen sc1")
    a("L_ml_issue:")
    stamp("v4")
    a(f"s_andn2_b32 {sT0}, {sRecA}, 7"); a(f"s_lshl_b32 {sT0}, {sT0}, 5"); a(f"s_add_u32 {sT0}, {sT0}, {WS_ML}")
    a(f"s_andn2_b32 {sT1}, {sRecB}, 7"); a(f"s_lshl_b32 {sT1}, {sT1}, 5"); a(f"s_add_u32 {sT1}, {sT1}, {WS_ML}")
    a(f"v_lshlrev_b32 {U[0]}, 3, {vn}")
    a(f"v_and_b32 {t0}, 31, {vL}"); a(f"v_lshlrev_b32 {t0}, 3, {t0}"); a(f"v_lshrrev_b32 {t1}, 5, {vL}"); a(f"v_lshl_add_u32 {U[1]}, {t1}, 10, {t0}")
    ml_loads()
    a("s_branch L_v_body")
    a("L_ml_use:")
    stamp("v7")
    poll("L_ml", ml_loads, lambda: sentinel(range(MLG, MLG + 4)), sleep=2, first_issued=True)
    MA, MB = V
    a(f"v_max_f32_dpp {MA}, v{MLG}, v{MLG} row_ror:8 {FULL}"); a(f"v_max_f32_dpp {MB}, v{MLG+2}, v{MLG+2} row_ror:8 {FULL}")
    for s in (4, 2, 1):
        a(f"v_max_f32_dpp {MA}, {MA}, {MA} row_ror:{s} {FULL}"); a(f"v_max_f32_dpp {MB}, {MB}, {MB} row_ror:{s} {FULL}")
    red("v_max_f32", MB, (16,))
    a(f"v_mov_b32_dpp {t3}, {vmB} row_newbcast:0 row_mask:0x3 bank_mask:0xf")
    a(f"v_mov_b32_dpp {t3}, {vmB} row_newbcast:8 row_mask:0xc bank_mask:0xf")
    a(f"v_sub_f32 v{MLG}, v{MLG}, {MA}"); a(f"v_sub_f32 v{MLG+2}, v{MLG+2}, {MB}")
    a(f"v_sub_f32 {vfA}, {vm}, {MA}"); a(f"v_sub_f32 {t3}, {t3}, {MB}")
    a(f"v_exp_f32 v{MLG}, v{MLG}"); a(f"v_exp_f32 v{MLG+2}, v{MLG+2}"); a(f"v_exp_f32 {vfA}, {vfA}"); a(f"v_exp_f32 {t3}, {t3}")
    a(f"v_mul_f32 {MA}, v{MLG}, v{MLG+1}"); a(f"v_mul_f32 {MB}, v{MLG+2}, v{MLG+3}")
    for s in (8, 4, 2, 1):
        a(f"v_add_f32_dpp {MA}, {MA}, {MA} row_ror:{s} {FULL}"); a(f"v_add_f32_dpp {MB}, {MB}, {MB} row_ror:{s} {FULL}")
    red("v_add_f32", MB, (16,))
    a(f"v_rcp_f32 {MA}, {MA}"); a(f"v_rcp_f32 {MB}, {MB}")
    a(f"v_mul_f32 {vfA}, {vfA}, {MA}"); a(f"v_mul_f32 {t3}, {t3}, {MB}")
    for e in range(8): a(f"v_mul_f32 v{ACCB+e}, v{ACCB+e}, {t3}")
    a(f"v_lshrrev_b32 {t1}, 1, {vg}"); a(f"v_lshl_add_u32 {t0}, {t1}, 12, {vPa}")
    a(f"ds_write_b128 {t0}, {vr(ACCB)}"); a(f"ds_write_b128 {t0}, {vr(ACCB+4)} offset:512")
    a(f"v_lshl_add_u32 {vPa}, {t1}, 9, {vPa}")
    a(f"v_mov_b32 {t0}, {L_CNT}"); a(f"v_mov_b32 {t2}, 1")
    a("s_waitcnt lgkmcnt(0)")
    a("s_mov_b64 exec, 1")
    a(f"ds_add_u32 {t0}, {t2}")
    a("s_mov_b64 exec, -1")
    a("s_branch L_v_body")
    if stamps:
        a("L_st11:"); stamp("v11"); a("s_branch L_v_body")
    a("L_v_x:")
    stamp("v_x")
    for k in range(LG): ids[NTOT - LG + k] = a.vm_seq - (LG - 1 - k)
    a("s_mov_b32 vcc_lo, 0"); a("s_mov_b32 vcc_hi, -1")
    for n in range(NTOT - LG, NTOT):
        a.wait_vm(ids[n])
        if wg is None and n - (NTOT - 8) >= wod and nwo < 8: wo_issue()
        if wg is not None and n & 1:
            a(f"v_add_u32 {vPrg}, 1, {vPrg}"); a(f"ds_write_b32 {vPrA}, {vPrg}")
        procV(n, last=n >= NTOT - 8)
    if wg is not None: nwo = 8
    stamp("stream_done")
    for e in range(4): a(f"v_cndmask_b32 v{ACC+e}, v{ACC+e}, v{ACC+4+e}, vcc")
    for e in range(4): a(f"v_mul_f32 v{ACC+e}, v{ACC+e}, {vfA}")
    a(f"ds_write_b128 {vPa}, {vr(ACC)} offset:8192")
    while wpos == 0 and nwo < 8: wo_issue()
    a("s_waitcnt lgkmcnt(0)")
    a("s_barrier")
    while wpos == 1 and nwo < 8: wo_issue()
    for k in range(4): a(f"ds_read_b128 {vr(OBS+4*k)}, {vGo} offset:{L_PART + 1024*k}")
    if g2:
        a("s_barrier")
        while wpos == 2 and nwo < 8: wo_issue()
        gA()
        while nwo < 8: wo_issue()
    if wg is None and wbe < 8: a.wait_vm(id_wo)
    a("s_barrier")
    if fine: stamp("wo_in")
    a(f"s_cmp_ge_u32 {sR}, 28"); a("s_cbranch_scc1 L_s_fin")
    a("s_waitcnt lgkmcnt(0)")
    for dst, src in ((WTB, L_WOB), (WT, L_WOA)):
        for k in range(4):
            if src == L_WOA and k == 3: a("s_waitcnt lgkmcnt(6)")
            a(f"ds_read_b64_tr_b16 {vr(dst+4*k,2)}, {vTr} offset:{src+4096*k}")
            a(f"ds_read_b64_tr_b16 {vr(dst+4*k+2,2)}, {vTr} offset:{src+4096*k+512}")
    for k in range(4):
        a(f"v_mfma_f32_16x16x32_bf16 {vr(ACC+4)}, {vr(OBS+4*k)}, {vr(WTB+4*k)}, {vr(ACC+4) if k else 0}")
    if g2: a("s_waitcnt vmcnt(0)")
    poll("L_s2", gA, lambda: sentinel(range(G, G + 16)), masked=True, first_issued=g2)
    if g2: a("s_waitcnt lgkmcnt(0)")
    stamp("gathered")
    for k in range(4):
        a(f"v_mfma_f32_16x16x32_bf16 {vr(ACC)}, {vr(G+4*k)}, {vr(WT+4*k)}, {vr(ACC) if k else 0}")
    y_seal(ACC + 4)
    a(f"buffer_store_dword v{ACC+4}, {vYb}, {WS}, {sY} offen sc1")
    a(f"v_add_f32 v{ACC}, v{ACC}, v{ACC+1}"); a(f"v_add_f32 v{ACC+2}, v{ACC+2}, v{ACC+3}"); a(f"v_add_f32 v{ACC}, v{ACC}, v{ACC+2}")
    y_seal(ACC)
    a(f"buffer_store_dword v{ACC}, {vYo}, {WS}, {sY} offen sc1")
    if stamps:
        a("s_branch L_s_fin2")
        a("L_s_fin:")
        names["s"].pop(); stamp("gathered")
        a("L_s_fin2:")
    else:
        a("L_s_fin:")
    stamp("y")
    a("s_waitcnt vmcnt(0)")
    a("s_barrier")
    finish()

    cur[0] = "g"
    a("L_gov:")
    vA4 = "v2"; vBo = "v3"; vPw = "v4"; vP = "v5"; vPp = "v6"; vB = "v7"; vTh = "v8"; vL16 = "v16"
    sTg = sU; sPo = sRecA; sGa = sRecB; sIn = sY
    a(f"v_lshlrev_b32 {vL16}, 4, {vL}")
    a(f"s_lshl_b32 {sT1}, {sX}, 5"); a(f"s_add_u32 {sT1}, {sT1}, {sR}"); a(f"s_lshl_b32 {sT1}, {sT1}, 7"); a(f"s_add_u32 {sT1}, {sT1}, {WS_FL}")
    srd(60, None, None, WS_END)
    a("s_waitcnt lgkmcnt(0)")
    tag_load()
    a("s_mov_b32 s60, s28"); a("s_mov_b32 s61, s29")
    a("s_mov_b64 exec, 0xff")
    a("s_waitcnt lgkmcnt(0)")
    tag_make()
    a("v_mov_b32 v8, s56"); a("v_mov_b32 v9, s59"); a("v_mov_b32 v10, s56"); a("v_mov_b32 v11, s59")
    a(f"buffer_store_dwordx4 v[8:11], {vL16}, {WS}, {sT1} offen sc1")
    a("s_mov_b64 exec, -1")
    ytag_make()
    a(f"s_mul_i32 {sIn}, {sX}, {YG}"); a(f"s_add_u32 {sIn}, {sIn}, {WS_Y}")
    a(f"s_cmp_lg_u32 {sR}, 0"); a("s_cbranch_scc1 L_norace")
    a(f"s_add_u32 s4, s28, {sIn}"); a("s_addc_u32 s5, s29, 0")
    a("s_load_dword s6, s[4:5], 0 glc"); a("s_load_dword s7, s[4:5], 8192 glc")
    a(f"s_mov_b32 {sT1}, 0")
    a("s_waitcnt lgkmcnt(0)")
    for i in range(nrace):
        a("s_not_b32 s10, s6"); a("s_not_b32 s11, s7")
        for h in ((0, 1), (1, 0))[i & 1]: a(f"s_load_dword s{10+h}, s[4:5], {8192*h} glc")
        a("s_waitcnt lgkmcnt(1)")
        a("s_sleep 1")
        a("s_mov_b64 s[14:15], s[10:11]")
        a("s_waitcnt lgkmcnt(0)")
        a("s_cmp_eq_u32 s15, s7"); a(f"s_addc_u32 {sT1}, {sT1}, 0"); a("s_cmp_eq_u32 s14, s6"); a(f"s_subb_u32 {sT1}, {sT1}, 0")
    a(f"s_sub_i32 {sT2}, 0, {sT1}"); a("s_bitcmp1_b32 s59, 2"); a(f"s_cselect_b32 {sT1}, {sT2}, {sT1}")
    a(f"s_cmp_gt_i32 {sT1}, 0"); a(f"s_cselect_b32 {sT2}, 2, 0"); a(f"s_cmp_lt_i32 {sT1}, 0"); a(f"s_cselect_b32 {sT2}, 1, {sT2}")
    if near is not None: a(f"s_mov_b32 {sT2}, {1 + near}")
    a(f"s_and_b32 {sT1}, s59, 4"); a(f"s_or_b32 {sT1}, {sT1}, {sT2}")
    a(f"s_lshl4_add_u32 {sT1}, s58, {sT1}")
    a(f"v_mov_b32 v12, s56"); a(f"v_mov_b32 v13, {sT1}"); a(f"v_mov_b32 v14, s56"); a(f"v_mov_b32 v15, {sT1}")
    a(f"s_lshl_b32 {sT1}, {sX}, 7"); a(f"s_add_u32 {sT1}, {sT1}, {WS_CH}")
    a("s_mov_b64 exec, 0xff")
    a(f"buffer_store_dwordx4 v[12:15], {vL16}, {WS}, {sT1} offen sc1")
    a("s_mov_b64 exec, -1")
    a("L_norace:")
    a(f"s_lshr_b32 {sT0}, {sR}, 2"); a(f"s_lshl_b32 {sT0}, {sT0}, 14"); a(f"s_add_u32 {sIn}, {sIn}, {sT0}")
    a(f"s_and_b32 {sT0}, {sR}, 3"); a(f"s_lshl_b32 {sT0}, {sT0}, 11"); a(f"s_add_u32 {sIn}, {sIn}, {sT0}")
    if stamps: a("v_mov_b32 v254, 0"); a("v_mov_b32 v253, 0")
    stamp("hello")
    srd(44, "s24", "s25", 7168)
    if wg is not None:
        srd(4, "s12", "s13", 0 if nowo & 1 else 0x380000); srd(24, "s22", "s23", 0 if nowo & 2 else 0x380000)
        a("s_mov_b64 s[90:91], s[4:5]")
        a(f"s_mul_i32 {sT0}, {sR}, 37"); a(f"s_lshr_b32 {sT0}, {sT0}, 8"); a(f"s_mul_i32 {sT1}, {sT0}, 7"); a(f"s_sub_u32 {sT1}, {sR}, {sT1}")
        a(f"s_lshl2_add_u32 {sT0}, {sX}, {sT0}"); a(f"s_mul_i32 s70, {sT0}, {128*896}"); a(f"s_lshl_b32 {sT1}, {sT1}, 7"); a(f"s_add_u32 s70, s70, {sT1}")
        a(f"v_lshrrev_b32 {t0}, 3, {vL}"); a(f"v_mul_u32_u24 {t0}, 896, {t0}"); a(f"v_and_b32 {t2}, 7, {vL}"); a(f"v_lshl_add_u32 {vWo}, {t2}, 4, {t0}")
        a(f"v_and_b32 {t0}, 16, {vL}"); a(f"v_lshlrev_b32 {t0}, 1, {t0}"); a(f"v_xor_b32 {vWo}, {t0}, {vWo}"); a(f"v_xor_b32 {vWo2}, 64, {vWo}")
        a(f"v_mov_b32 v18, {total - wg}")
    if tlb:
        a(f"s_lshl4_add_u32 s40, {sB}, {sH}"); a("s_lshl_b32 s40, s40, 21")
        a(f"s_andn2_b32 s41, {sR}, 7"); a(f"s_add_u32 s41, s41, {sX}"); a(f"s_xor_b32 s41, s41, {bx}"); a("s_lshl_b32 s41, s41, 21"); a("s_add_u32 s41, s41, 0x180000")
        a(f"s_mul_i32 s42, {sX}, {512*896}")
        for i, (pp, o) in enumerate(((12, 42), (22, 42), (16, 41), (18, 41), (8, 40))):
            a(f"s_add_u32 s{pp}, s{pp}, s{o}"); a(f"s_addc_u32 s{pp+1}, s{pp+1}, 0")
            a(f"s_load_dword s{48+i}, s[{pp}:{pp+1}], 0")
    a(f"v_and_b32 {vA4}, 3, {vL}"); a(f"v_lshlrev_b32 {vA4}, 2, {vA4}")
    a(f"v_mov_b32 {vPp}, 0"); a(f"v_mov_b32 {vTh}, {int(th0 + 0.5)}"); a(f"v_mov_b32 {vB}, 0")
    a(f"ds_write_b32 {vA4}, {vPp} offset:{L_PRG}"); a(f"ds_write_b32 {vA4}, {vTh} offset:{L_TH}"); a(f"ds_write_b32 {vB}, {vB} offset:{L_CNT}")
    gc_ = gI // 2 if gc is None else gc
    a(f"s_mul_i32 {sG}, {sX}, 4352"); a(f"s_add_u32 {sG}, {sG}, {WS_GC}")
    a(f"v_lshlrev_b32 {vBo}, 2, {vL}")
    a(f"s_lshl2_add_u32 {sOff}, {sR}, {sG}")
    a(f"s_add_u32 {sGa}, {sG}, {8*4352}")
    a(f"s_mul_i32 {sTg}, {sX}, {gI // 8}"); a(f"s_add_u32 {sTg}, {sTg}, {gI // 8}")
    a(f"s_cmp_eq_u32 {sR}, {28 if gx else 99}"); a(f"s_cselect_b32 {sTg}, {sTg}, -1")
    sOut = sC
    a(f"s_and_b32 {sT0}, {sX}, 3"); a(f"s_mul_i32 {sOut}, {sT0}, 1792"); a(f"s_lshr_b32 {sT0}, {sX}, 2"); a(f"s_mul_i32 {sT0}, {sT0}, 896")
    a(f"s_add_u32 {sOut}, {sOut}, {sT0}"); a(f"s_lshl_b32 {sT0}, {sR}, 5"); a(f"s_add_u32 {sOut}, {sOut}, {sT0}")
    a(f"v_lshrrev_b32 {t1}, 1, {vg}"); a(f"v_and_b32 {t2}, 1, {vg}"); a(f"v_lshl_add_u32 {t1}, {t2}, 1, {t1}")
    a(f"v_and_b32 {t2}, 3, {vn}"); a(f"v_lshl_add_u32 {t1}, {t2}, 2, {t1}"); a(f"v_lshlrev_b32 {t3}, 1, {t1}")
    a("s_waitcnt lgkmcnt(0)")
    a("s_barrier")
    a(f"ds_read_b32 v10, {vB} offset:{L_LOC}"); a(f"ds_read_b32 v11, {vB} offset:{L_CH}")
    a("s_waitcnt lgkmcnt(0)")
    a(f"v_readfirstlane_b32 {sLocal}, v10"); a(f"v_readfirstlane_b32 {sCh}, v11")
    a(f"s_lshr_b32 {sT0}, {sCh}, {sX}"); a(f"s_and_b32 {sT0}, {sT0}, 1"); a(f"s_lshl_b32 {sT0}, {sT0}, 13"); a(f"s_add_u32 {sIn}, {sIn}, {sT0}")
    if stamps:
        a(f"v_writelane_b32 v255, {sCh}, 30"); a(f"s_getreg_b32 {sT0}, hwreg(HW_REG_HW_ID)"); a(f"v_writelane_b32 v255, {sT0}, 27")
    a(f"s_cmp_lg_u32 {sLocal}, 1"); a("s_cbranch_scc1 L_gend")
    poll("L_g0", lambda: a(f"ds_read_b32 {vPw}, {vA4} offset:{L_PRG}"), lambda: a(f"v_cmp_eq_u32 vcc, 0, {vPw}"), sleep=4)
    if xm:
        for i in range(1, 8):
            a(f"s_add_u32 {sT0}, {sX}, {i}"); a(f"s_and_b32 {sT0}, {sT0}, 7")
            a(f"s_mul_i32 s{31+i}, {sT0}, 4352"); a(f"s_add_u32 s{31+i}, s{31+i}, {WS_GC + 8*4352}")
            a(f"s_mul_i32 s{47+i}, {sT0}, {gI // 8}"); a(f"s_sub_u32 s{47+i}, s{47+i}, {gI - gI // 8}")
        a(f"s_sub_u32 {sPo}, {sTg}, {gI}")
    a(f"s_mov_b32 {sSpin}, {spin}")
    a("L_gloop:")
    a(f"ds_read_b32 {vPw}, {vA4} offset:{L_PRG}")
    a(f"s_sub_u32 {sSpin}, {sSpin}, 1"); a(f"s_cmp_eq_u32 {sSpin}, 0"); a("s_cbranch_scc1 L_gend")
    a("s_waitcnt lgkmcnt(0)")
    a(f"v_add_u32_dpp {vP}, {vPw}, {vPw} {QP1}"); a(f"v_add_u32_dpp {vP}, {vP}, {vP} {QP2}")
    a("s_mov_b64 exec, 1")
    a(f"buffer_store_dword {vP}, off, {WS}, {sOff}")
    a(f"v_cmp_le_u32 vcc, {total - 4 * gstop}, {vP}")
    a("s_cbranch_vccnz L_gend")
    a("s_mov_b32 exec_lo, -1"); a("s_mov_b32 exec_hi, 1")
    a(f"buffer_load_dword {vB}, {vBo}, {WS}, {sG} offen sc1")
    a("s_mov_b64 exec, -1")
    if xm:
        a(f"s_cmp_eq_u32 {sTg}, -1"); a("s_cbranch_scc1 L_gnl")
        for i in range(1, 8): a(f"s_load_dwordx2 s[{4+2*i}:{5+2*i}], s[28:29], s{31+i} glc")
        a("L_gnl:")
    a(f"v_cvt_f32_u32 {t0}, {vP}")
    a(f"v_mul_f32 {t0}, {f2u(-gain)}, {t0}"); a(f"v_add_f32 {t0}, {f2u(th0 + 0.5 + gain * c0)}, {t0}")
    if gw:
        a(f"v_lshlrev_b32 {vPw}, 2, {vPw}"); a(f"v_sub_u32 {vPw}, {vP}, {vPw}"); a(f"v_cvt_f32_i32 {vPw}, {vPw}")
        a(f"v_mul_f32 {vPw}, {f2u(gw)}, {vPw}"); a(f"v_add_f32 {t0}, {t0}, {vPw}")
    a("s_waitcnt vmcnt(0)")
    a(f"v_add_u32_dpp {t1}, {vB}, {vB} row_ror:8 {FULL}")
    a(f"v_readlane_b32 {sT3}, {vB}, 32")
    for sft in (4, 2, 1): a(f"v_add_u32_dpp {t1}, {t1}, {t1} row_ror:{sft} {FULL}")
    a(f"v_readlane_b32 {sT0}, {t1}, 0"); a(f"v_readlane_b32 {sT1}, {t1}, 16")
    a(f"v_cvt_f32_i32 v11, {sT3}")
    a(f"s_add_u32 {sT2}, {sT0}, {sT1}")
    a(f"v_cvt_f32_u32 v10, {sT2}")
    if wg is not None:
        a(f"v_cvt_f32_u32 v17, {vP}"); a(f"v_mul_f32 v18, {f2u(-wk / 32)}, v10"); a(f"v_mul_f32 v19, {f2u(-wk / 256)}, v11")
        a(f"v_mul_f32 v17, {f2u(wk)}, v17"); a("v_add_f32 v18, v18, v19"); a("v_add_f32 v18, v18, v17")
        a(f"v_add_f32 v18, {f2u(total - wg - wk * c0)}, v18"); a("v_cvt_i32_f32 v18, v18"); a(f"v_min_i32 v18, {total + wcap}, v18")
    a(f"v_mul_f32 v10, {f2u(gain / 32)}, v10"); a(f"v_mul_f32 v11, {f2u(gain * gx / 256)}, v11")
    a(f"v_add_f32 {t0}, {t0}, v10"); a(f"v_add_f32 {t0}, {t0}, v11")
    if kup:
        a(f"v_add_f32 v10, {f2u(-(th0 + kat))}, {t0}"); a("v_max_f32 v10, 0, v10"); a(f"v_mul_f32 v10, {f2u(kup)}, v10"); a(f"v_add_f32 {t0}, {t0}, v10")
    a(f"v_cvt_i32_f32 {vTh}, {t0}")
    a(f"v_med3_i32 {vTh}, {vTh}, {thmin}, {thmax}")
    a(f"ds_write_b32 {vA4}, {vTh} offset:{L_TH}")
    if stamps: a(f"v_add_u32 v254, v254, {vTh}"); a("v_add_u32 v253, 1, v253")
    if xm:
        a(f"s_cmp_eq_u32 {sTg}, -1"); a("s_cbranch_scc1 L_gloop")
        a(f"s_sub_u32 {sT0}, {gc_}, {sT2}"); a(f"s_lshl3_add_u32 {sT0}, {sT0}, {sPo}")
        a("s_waitcnt lgkmcnt(0)")
        for i in range(1, 8):
            a(f"s_xor_b64 s[{4+2*i}:{5+2*i}], s[{4+2*i}:{5+2*i}], s[56:57]"); a(f"s_lshr_b64 s[4:5], s[{4+2*i}:{5+2*i}], 14")
            a(f"s_cselect_b32 s{4+2*i}, s{47+i}, s{4+2*i}"); a(f"s_add_u32 {sT0}, {sT0}, s{4+2*i}")
        a(f"v_mov_b32 v10, {sT0}")
        a("s_mov_b64 exec, 1")
        a(f"buffer_store_dword v10, off, {WS}, {sG} offset:128")
        a("s_mov_b64 exec, -1")
        a(f"s_cmp_lt_u32 {sT2}, {sTg}"); a("s_cbranch_scc1 L_gloop")
        a(f"s_xor_b32 {sT0}, {sT2}, s56")
        for i in range(4): a(f"v_mov_b32 v{12+i}, {'s57' if i & 1 else sT0}")
        a("s_mov_b64 exec, 0xff")
        a(f"buffer_store_dwordx4 v[12:15], {vL16}, {WS}, {sGa} offen sc1"); a("s_mov_b64 exec, -1")
        a(f"s_add_u32 {sTg}, {sTg}, {gI}"); a(f"s_mov_b32 {sPo}, {sT2}")
        a("s_branch L_gloop")
    else:
        a(f"s_cmp_lt_u32 {sT2}, {sTg}"); a("s_cbranch_scc1 L_gloop")
        a(f"s_xor_b32 {sT0}, {sT2}, s56")
        for i in range(4): a(f"v_mov_b32 v{12+i}, {'s57' if i & 1 else sT0}")
        a("s_mov_b64 exec, 0xff")
        a(f"buffer_store_dwordx4 v[12:15], {vL16}, {WS}, {sGa} offen sc1"); a("s_mov_b64 exec, -1")
        for i in range(1, 8):
            a(f"s_add_u32 {sT0}, {sX}, {i}"); a(f"s_and_b32 {sT0}, {sT0}, 7"); a(f"s_mul_i32 {sT0}, {sT0}, 4352"); a(f"s_add_u32 {sT0}, {sT0}, {WS_GC + 8*4352}")
            a(f"s_load_dwordx2 s[{4+2*i}:{5+2*i}], s[28:29], {sT0} glc")
        a(f"s_add_u32 {sTg}, {sTg}, {gI}")
        a(f"s_sub_u32 {sT0}, {gc_}, {sT2}"); a(f"s_mul_i32 {sT0}, {sT0}, 7")
        a("s_waitcnt lgkmcnt(0)")
        for i in range(1, 8):
            a(f"s_xor_b64 s[{4+2*i}:{5+2*i}], s[{4+2*i}:{5+2*i}], s[56:57]"); a(f"s_lshr_b64 s[4:5], s[{4+2*i}:{5+2*i}], 14")
            a(f"s_cselect_b32 s{4+2*i}, 0, s{4+2*i}"); a(f"s_add_u32 {sT0}, {sT0}, s{4+2*i}")
        a(f"v_mov_b32 v10, {sT0}")
        a("s_mov_b64 exec, 1")
        a(f"buffer_store_dword v10, off, {WS}, {sG} offset:128")
        a("s_mov_b64 exec, -1")
        a("s_branch L_gloop")
    a("L_gend:")
    a("s_mov_b64 exec, -1")
    if stamps:
        a(f"v_readfirstlane_b32 {sT0}, v254"); a(f"v_readfirstlane_b32 {sT1}, v253"); a("s_nop 3")
        a(f"v_writelane_b32 v255, {sT0}, 28"); a(f"v_writelane_b32 v255, {sT1}, 29")
    stamp("gov_end")
    if wg is not None:
        a(f"s_cmp_ge_u32 {sR}, 28"); a("s_cbranch_scc1 L_gnowo")
        def pchk():
            a(f"v_add_u32_dpp {vP}, {vPw}, {vPw} {QP1}"); a(f"v_add_u32_dpp {vP}, {vP}, {vP} {QP2}"); a(f"v_cmp_gt_i32 vcc, v18, {vP}")
        srd(4, "s90", "s91", 0 if nowo & 1 else 0x380000)
        poll("L_gw", lambda: a(f"ds_read_b32 {vPw}, {vA4} offset:{L_PRG}"), pchk)
        a(f"s_mov_b32 m0, {L_WOA}")
        for j in range(32):
            a(f"s_add_u32 {sT0}, s70, {8*896*(j & 15)}")
            a(f"buffer_load_dwordx4 {(vWo, vWo2)[j & 1]}, {('s[4:7]', 's[24:27]')[j >> 4]}, {sT0} offen {pol} lds")
            if j < 31: a("s_add_u32 m0, m0, 1024")
        a("L_gnowo:")
        stamp("wo_issued")
    a(f"s_cmp_ge_u32 {sR}, 28")
    for i in range(4 if g2 else 3):
        if wg is not None and i == (2 if g2 else 1): a("s_waitcnt vmcnt(0)")
        a("s_barrier")
    a("s_cbranch_scc1 L_g_fin")
    F = 64
    def gY():
        for k in range(2): a(f"buffer_load_dwordx4 {vr(F+4*k)}, {vL16}, {WS}, {sIn} offen offset:{1024*k} sc1")
    def y_chk():
        for i in range(8): a(f"v_xor_b32 v{F+i}, {YT[i & 3]}, v{F+i}")
        a(f"v_or3_b32 {t0}, v{F}, v{F+1}, v{F+2}"); a(f"v_or3_b32 {t2}, v{F+3}, v{F+4}, v{F+5}")
        a(f"v_or3_b32 {t0}, {t0}, v{F+6}, v{F+7}"); a(f"v_or_b32 {t0}, {t0}, {t2}")
        a(f"v_and_b32 {t0}, 0xfff, {t0}"); a(f"v_cmp_ne_u32 vcc, 0, {t0}")
    poll("L_f", gY, y_chk, masked=True)
    for e in range(4): a(f"v_add_f32 v{F+e}, v{F+e}, v{F+4+e}")
    a(f"v_permlane32_swap_b32 v{F}, v{F+1}"); a(f"v_permlane32_swap_b32 v{F+2}, v{F+3}")
    a(f"v_add_f32 v{F}, v{F}, v{F+1}"); a(f"v_add_f32 v{F+2}, v{F+2}, v{F+3}")
    a(f"v_permlane16_swap_b32 v{F}, v{F+2}")
    a(f"v_add_f32 v{F}, v{F}, v{F+2}")
    red("v_add_f32", f"v{F}", (4, 8))
    a(f"v_cvt_pk_bf16_f32 v{F}, v{F}, v{F}")
    a("s_mov_b32 exec_lo, 0x000f000f"); a("s_mov_b32 exec_hi, 0x000f000f")
    a(f"buffer_store_short v{F}, {t3}, {OUT}, {sOut} offen")
    a(f"s_cmp_eq_u32 {sWG}, 0"); a("s_cbranch_scc0 L_g_fin")
    a("v_mov_b32 v8, s56"); a("v_mov_b32 v9, s57"); a(f"s_mov_b32 {sT0}, {WS_EP}")
    a("s_mov_b64 exec, 1")
    a(f"buffer_store_dwordx2 v[8:9], off, {WS}, {sT0} sc1")
    a("L_g_fin:")
    finish()

    cur[0] = "h"
    a("L_helper:")
    a(f"s_cmp_eq_u32 {sW}, 5"); a("s_cbranch_scc1 L_gov")
    def code_pull(tagl, reg, st):
        a("s_getpc_b64 s[30:31]")
        a(f"{tagl}:")
        a(f"s_sub_u32 s30, s30, {tagl}-{NAME}_kernel"); a("s_subb_u32 s31, s31, 0")
        a(f"s_lshl_b32 {sT1}, {sR}, {st}")
        a(f"v_lshl_add_u32 {t0}, {vL}, {st + 5}, {sT1}")
        a(f"v_min_u32 {t0}, L_end-{NAME}_kernel, {t0}")
        a(f"s_mov_b64 exec, {0x1f if st == 7 else 0xfff}")
        a(f"global_load_dword {reg}, {t0}, s[30:31]")
        a("s_mov_b64 exec, -1")
    if pf == 1: code_pull("L_pc", "v2", 7)
    if pf == 2: code_pull("L_pc", "v2", 6)
    XOP = 64; WOP = 96; QD = 208
    vXo = "v5"; vL8 = "v7"; vQt = "v17"
    a(f"v_lshrrev_b32 {t3}, 3, {vL}"); a(f"v_and_b32 {t2}, 7, {vL}"); a(f"v_lshlrev_b32 {t2}, 4, {t2}")
    a(f"v_lshl_add_u32 {vKo}, {t3}, 13, {t2}")
    a(f"v_and_b32 {vXo}, 3, {vL}"); a(f"v_mul_u32_u24 {vXo}, 896, {vXo}"); a(f"v_lshl_add_u32 {vXo}, {vg}, 4, {vXo}")
    a(f"s_bfe_u32 s44, {sR}, 0x10003")
    a(f"s_add_u32 s45, {sR}, {cbd}"); a("s_and_b32 s45, s45, 7"); a(f"s_lshl3_add_u32 s45, {sX}, s45")
    a(f"s_mul_i32 s46, {sT0}, {8*bx}"); a("s_xor_b32 s47, s45, s46")
    a(f"s_mul_i32 s46, s44, {224*8192}"); a("s_lshl_b32 s47, s47, 7"); a(f"s_add_u32 {sOff}, s46, s47")
    a(f"s_mul_i32 {sT2}, s44, 448")
    srd(32, None, None, 0 if nowo & 4 else 0x380000); srd(36, None, None, 0 if nox else 3584)
    a(f"s_mov_b32 m0, {L_WQ}")
    a(f"s_cmp_eq_u32 {sT0}, 0")
    a("s_waitcnt lgkmcnt(0)")
    a("s_cselect_b32 s32, s10, s20"); a("s_cselect_b32 s33, s11, s21")
    a("s_cselect_b32 s36, s4, s14"); a("s_cselect_b32 s37, s5, s15")
    tag_load()
    idk = []
    if wt is not None:
        a(f"v_lshlrev_b32 {t0}, 13, {t3}"); a(f"v_lshl_add_u32 {t0}, {t2}, 3, {t0}")
        a(f"s_and_b32 s40, {sR}, 15"); a(f"s_mul_i32 s40, s40, {28*8192}"); a(f"s_lshl_b32 s41, {sX}, 10"); a("s_add_u32 s40, s40, s41")
        for i in range(4):
            if i == 3: a("s_mov_b32 exec_hi, 0")
            a(f"buffer_load_dword v{8+i}, {t0}, {WQ}, s40 offen {wt}")
            if i < 3: a("s_add_u32 s40, s40, 65536")
        a("s_mov_b32 exec_hi, -1")
        if wtw: a("s_waitcnt vmcnt(0)")
        stamp("touched")
    if krot or krp:
        a(f"s_mul_i32 s40, s44, {krot}"); a(f"s_mul_i32 s41, {sT0}, {krp}"); a("s_add_u32 s40, s40, s41")
        a("s_cmp_ge_u32 s40, 7"); a("s_cselect_b32 s41, 7, 0"); a("s_sub_u32 s40, s40, s41")
        a("s_lshl_b32 s41, s40, 18"); a(f"s_add_u32 {sOff}, {sOff}, s41"); a("s_lshl_b32 s41, s40, 6"); a(f"s_add_u32 {sT2}, {sT2}, s41")
    for k in range(7):
        a(f"buffer_load_dwordx4 {vr(XOP+4*k)}, {vXo}, {XS}, {sT2} offen offset:{0 if krot or krp else 64*k}")
        if wqt and k >= wqt: a.wait_vm(idk[k - wqt])
        for j in range(4):
            r = a(f"buffer_load_dwordx4 {vKo}, {WQ}, {sOff} offen {pol} lds")
            if k < 6 or j < 3:
                a("s_add_u32 m0, m0, 1024"); a(f"s_add_u32 {sOff}, {sOff}, 65536")
        if (krot or krp) and k < 6:
            a(f"s_cmp_eq_u32 s40, {6 - k}"); a(f"s_cselect_b32 s41, {7 << 18}, 0"); a(f"s_cselect_b32 s42, {-6 << 6}, 64")
            a(f"s_sub_u32 {sOff}, {sOff}, s41"); a(f"s_add_i32 {sT2}, {sT2}, s42")
        idk.append(r)
    stamp("wq_issued")
    sQs = "s64"; sMc = "s48"; sPa = "s49"; sPb = "s50"; sBz = "s51"; sRd = "s69"; sFl = "s70"
    a(f"s_lshl1_add_u32 {sQs}, {sT0}, s44"); a(f"s_lshl_b32 {sQs}, {sQs}, 16"); a("s_lshl_b32 s46, s45, 10"); a(f"s_add_u32 {sQs}, {sQs}, s46")
    a(f"s_lshl3_add_u32 {sMc}, {sT0}, {sX}"); a(f"s_and_b32 {sT3}, {sR}, 15"); a(f"s_lshl4_add_u32 {sMc}, {sMc}, {sT3}")
    a(f"s_lshl_b32 {sMc}, {sMc}, 7"); a(f"s_add_u32 {sMc}, {sMc}, {WS_ML}")
    srd(60, "s28", "s29", WS_END)
    unit(1); unit_v()
    a(f"s_lshl_b32 {sRecA}, {sH}, 14"); a(f"s_add_u32 {sRecA}, {sRecA}, {WS_PO}")
    a(f"s_lshl_b32 {sRecB}, {sX}, 15"); a(f"s_add_u32 {sRecB}, {sRecB}, {WS_PO + 16*16384}")
    a(f"s_lshl_b32 {sPa}, {sT3}, 9"); a(f"s_add_u32 {sPa}, {sPa}, {sRecA}")
    a(f"s_lshl_b32 {sPb}, {sR}, 9"); a(f"s_add_u32 {sPb}, {sPb}, {sRecB}")
    a(f"v_and_b32 {t0}, 31, {vL}"); a(f"v_lshlrev_b32 {t0}, 4, {t0}"); a(f"v_lshrrev_b32 {t1}, 5, {vL}"); a(f"v_lshl_add_u32 v18, {t1}, 14, {t0}")
    a(f"s_lshl4_add_u32 {sRecA}, {sT3}, {sRecA}")
    a(f"s_lshr_b32 {sT0}, {sR}, 3"); a(f"s_and_b32 {sT1}, {sR}, 3"); a(f"s_lshl2_add_u32 {sT0}, {sT0}, {sT1}"); a(f"s_lshl4_add_u32 {sRecB}, {sT0}, {sRecB}")
    a(f"s_bfe_u32 {sT0}, {sR}, 0x10002"); a(f"s_lshl_b32 {sT0}, {sT0}, 13"); a(f"s_add_u32 {sRecB}, {sRecB}, {sT0}")
    a(f"v_lshrrev_b32 {t0}, 1, {vL}"); a(f"v_lshlrev_b32 {t0}, 8, {t0}"); a(f"v_and_b32 {t1}, 1, {vL}"); a(f"v_lshl_add_u32 {vPa}, {t1}, 3, {t0}")
    a(f"s_mul_i32 {sRd}, {sX}, 4352"); a(f"s_add_u32 {sRd}, {sRd}, {WS_GC}")
    a(f"s_cmp_eq_u32 {sR}, 0"); a(f"s_cselect_b32 {sBz}, {sRd}, {OOB}")
    a(f"s_lshl_b32 {sFl}, {sX}, 12"); a(f"s_add_u32 {sFl}, {sFl}, {WS_FL}")
    for i in range(4): a(f"v_mov_b32 v{AOP+i}, -1")
    for i in range(4): a(f"v_mov_b32 v{ACC+i}, 0")
    a(f"v_lshlrev_b32 {vL16}, 4, {vL}"); a(f"v_lshlrev_b32 {vL8}, 3, {vL}"); a(f"v_lshlrev_b32 {t3}, 7, {vL}")
    a(f"v_and_b32 {t0}, 3, {vn}"); a(f"v_lshlrev_b32 {t0}, 8, {t0}"); a(f"v_lshrrev_b32 {t1}, 2, {vn}")
    a(f"v_lshl_add_u32 {t0}, {t1}, 6, {t0}"); a(f"v_lshl_add_u32 {vQt}, {vg}, 4, {t0}")
    def hello_ld(): a(f"buffer_load_dwordx2 v[12:13], {t3}, {WS}, {sFl} offen sc1")
    for k in range(8):
        if k < 7: a.wait_vm(idk[k])
        if k == hk:
            a("s_mov_b32 exec_hi, 0"); hello_ld(); a("s_mov_b32 exec_hi, -1")
        if k: a("s_waitcnt lgkmcnt(0)")
        if k < 7:
            for c in range(4):
                a(f"ds_read_b64_tr_b16 {vr(WOP+16*(k%3)+4*c,2)}, {vTr} offset:{L_WQ + k*4096 + 32*c}")
                a(f"ds_read_b64_tr_b16 {vr(WOP+16*(k%3)+4*c+2,2)}, {vTr} offset:{L_WQ + k*4096 + 32*c + 512}")
        if k:
            for c in range(4):
                a(f"v_mfma_f32_16x16x32_bf16 {vr(QD+4*c)}, {vr(WOP+16*((k-1)%3)+4*c)}, {vr(XOP+4*(k-1))}, {vr(QD+4*c) if k > 1 else 0}")
    tag_make()
    for c in range(1, 4):
        for e in range(4):
            a(f"v_mov_b32_dpp v{QD+e}, v{QD+4*c+e} quad_perm:[0,1,2,3] row_mask:0xf bank_mask:{1<<c}")
    a(f"ds_write_b128 {vQt}, {vr(QD)} offset:{L_PART}")
    a(f"ds_read_b128 {vr(QD)}, {vL16} offset:{L_PART}")
    stamp("q_done")
    a("s_waitcnt vmcnt(0) lgkmcnt(0)")
    a("s_mov_b32 exec_hi, 0")
    poll("L_fl", hello_ld, lambda: tag_chk([12]), sleep=16, masked=True, first_issued=True)
    a("v_cmp_ne_u32 vcc, s59, v13")
    a("s_cmp_eq_u32 vcc_lo, 0"); a(f"s_cselect_b32 {sLocal}, {2 if force_remote else 1}, 2")
    stamp("hello_seen")
    a("v_mov_b32 v8, s56"); a("v_mov_b32 v9, s59")
    a(f"s_lshl3_add_u32 {sT1}, {sR}, {sRd}")
    def first_stores(b):
        a(f"buffer_store_dwordx4 {vr(QD)}, {vL16}, {WS}, {sQs} offen{b}")
        a(f"buffer_store_dwordx4 {vr(AOP)}, v18, {WS}, {sPb} offen{b}")
        a("s_mov_b32 exec_hi, 0")
        a(f"buffer_store_dwordx4 {vr(AOP)}, v18, {WS}, {sPa} offen{b}")
        a("s_mov_b32 exec_lo, 0xffff")
        a(f"buffer_store_dwordx4 {vr(ACC)}, {vL16}, {WS}, {sBz} offen{b}")
        a("s_mov_b32 exec_lo, 0xff")
        a(f"buffer_store_dwordx4 {vr(AOP)}, {vL16}, {WS}, {sMc} offen{b}")
        a("s_mov_b32 exec_lo, 1")
        a("s_waitcnt vmcnt(0)")
        a(f"buffer_store_dwordx2 v[8:9], off, {WS}, {sT1} offset:256{b}")
    by_placement("first", first_stores)
    a("s_mov_b32 exec_lo, -1")
    stamp("ready")
    poll("L_rd", lambda: a(f"buffer_load_dwordx2 v[12:13], {vL8}, {WS}, {sRd} offen offset:256 sc1"), lambda: tag_chk([12]), sleep=hsleep, masked=True)
    stamp("go_seen")
    a(f"v_lshlrev_b32 {t0}, 4, {vn}"); a(f"v_lshl_add_u32 {t0}, {vg}, 10, {t0}")
    a(f"s_lshr_b32 {sT0}, {sR}, 3"); a(f"s_lshl_b32 {sT0}, {sT0}, 8"); a(f"s_lshl_b32 {sT1}, {sX}, 13"); a(f"s_add_u32 {sT0}, {sT0}, {sT1}")
    a(f"s_add_u32 {sT0}, {sT0}, 0x20000")
    a(f"s_lshl4_add_u32 {sT2}, {sH}, {sB}"); a(f"s_lshl_b32 {sT2}, {sT2}, 8")
    for u in (2, 0, 1):
        for kh in range(2):
            a(f"s_add_u32 {sT1}, {sT2 if u == 2 else sT0}, {kh * 0x10000 + (4096 if u == 1 else 0)}")
            a(f"buffer_load_dwordx4 {vr(64+8*u+4*kh)}, {t0}, {WS}, {sT1} offen sc1")
    a(f"s_mov_b32 {sT1}, {WS_CH}")
    a("s_mov_b64 exec, 0xff")
    poll("L_ch", lambda: a(f"buffer_load_dwordx2 v[12:13], {t3}, {WS}, {sT1} offen sc1"), lambda: tag_chk([12]), masked=True, sleep=1)
    for bit, dst in ((1, sT0), (2, sT1), (4, sCh)):
        a(f"v_and_b32 v12, {bit}, v13"); a("v_cmp_ne_u32 vcc, 0, v12"); a(f"s_and_b32 {dst}, vcc_lo, 0xff")
    a(f"s_bcnt1_i32_b32 {sT0}, {sT0}"); a(f"s_bcnt1_i32_b32 {sT1}, {sT1}")
    a(f"s_cmp_gt_u32 {sT1}, {sT0}"); a(f"s_cselect_b32 {sT0}, 0xff, 0"); a(f"s_xor_b32 {sCh}, {sCh}, {sT0}")
    a(f"v_mov_b32 {t0}, {L_LOC}"); a(f"v_mov_b32 {t1}, {sLocal}"); a(f"v_mov_b32 {t2}, {sCh}"); a(f"ds_write2_b32 {t0}, {t1}, {t2} offset0:0 offset1:1")
    for u in range(3):
        for e in range(4): a(f"v_add_f32 v{64+8*u+e}, v{64+8*u+e}, v{64+8*u+4+e}")
        for e in range(2): a(f"v_cvt_pk_bf16_f32 v{64+8*u+e}, v{64+8*u+2*e}, v{64+8*u+2*e+1}")
        a(f"ds_write_b64 {vL8}, {vr(64+8*u,2)} offset:{L_Q+512*u}")
    a("s_waitcnt lgkmcnt(0)")
    stamp("q_in_lds")
    a("s_barrier")
    a(f"v_mov_b32 {t3}, 0")
    if vt:
        a(f"s_lshl4_add_u32 s40, {sB}, {sH}"); a("s_lshl_b32 s40, s40, 21")
        a(f"s_andn2_b32 s41, {sR}, 7"); a(f"s_add_u32 s41, s41, {sX}"); a("s_lshl_b32 s41, s41, 21"); a("s_add_u32 s41, s41, 0x180000")
        for pp, o in ((16, "s41"), (18, "s41"), (8, "s40"), (12, sU), (22, sU)):
            a(f"s_add_u32 s{pp}, s{pp}, {o}"); a(f"s_addc_u32 s{pp+1}, s{pp+1}, 0")
        if vt > 1:
            a(f"s_mul_i32 {sT0}, {sR}, {vt - 1}")
            def vchk():
                a("v_add3_u32 v8, v8, v9, v10"); a("v_add_u32 v8, v8, v11"); a(f"v_cmp_ge_u32 vcc, {sT0}, v8")
            poll("L_vt", lambda: a(f"ds_read_b128 v[8:11], {t3} offset:{L_PRG}"), vchk, sleep=2)
        a("s_mov_b64 exec, 1")
        for i, pp in enumerate((16, 18, 8)): a(f"global_load_dword v{12+i}, {t3}, s[{pp}:{pp+1}] {pol}")
        if vtw:
            a(f"s_cmp_ge_u32 {sR}, 28"); a("s_cbranch_scc1 L_vt_nw")
            for i, pp in enumerate((12, 22)): a(f"global_load_dword v{20+i}, {t3}, s[{pp}:{pp+1}] {pol}")
            a("L_vt_nw:")
        a("s_mov_b64 exec, -1")
    poll("L_cnt", lambda: a(f"ds_read_b32 v8, {t3} offset:{L_CNT}"), lambda: a("v_cmp_ne_u32 vcc, 4, v8"), sleep=16)
    stamp("B_in_lds")
    a("; ---- B: sum the waves, publish, gather the group's shares, sum them; then A's share at the end ----")
    CB = 184
    def combine(u):
        for w in range(4): a(f"ds_read_b128 {vr(CB+4*w)}, {vL16} offset:{L_PART + 4096*u + 1024*w}")
        a("s_waitcnt lgkmcnt(0)" if stamps else "s_waitcnt lgkmcnt(2)")
        for e in range(4): a(f"v_add_f32 v{CB+e}, v{CB+e}, v{CB+4+e}")
        a("s_waitcnt lgkmcnt(0)")
        for e in range(4): a(f"v_add_f32 v{CB+8+e}, v{CB+8+e}, v{CB+12+e}")
        for e in range(4): a(f"v_add_f32 v{CB+e}, v{CB+e}, v{CB+8+e}")
        for e in range(2): a(f"v_cvt_pk_bf16_f32 v{CB+e}, v{CB+2*e}, v{CB+2*e+1}")
        for e in range(2): a(f"v_min_u32 v{CB+16+2*u+e}, -2, v{CB+e}")
    def publish(u, so):
        by_placement(f"pub{u}", lambda b: a(f"buffer_store_dwordx2 {vr(CB+16+2*u,2)}, {vPa}, {WS}, {so} offen{b}"), have_scc=True)
    a(f"s_add_u32 {sT0}, {sRecB}, 16384")
    a(f"s_cmp_eq_u32 {sLocal}, 1")
    for u in range(2):
        combine(u); publish(u, (sRecB, sT0)[u])
    a(f"s_cmp_ge_u32 {sR}, 28"); a("s_cbranch_scc1 L_h_nos2")
    GB = 128; OB = 64
    a(f"s_add_u32 {sT0}, {sG}, 8192")
    def gB():
        for st in range(2):
            for k in range(4): a(f"buffer_load_dwordx4 {vr(GB+16*st+4*k)}, {vGo}, {WS}, {(sG, sT0)[st]} offen offset:{1024*k} sc1")
    poll("L_s2b", gB, lambda: sentinel(range(GB, GB + 32)), sleep=16, masked=True)
    for i in range(16):
        a(f"v_lshlrev_b32 v{160+i}, 16, v{GB+i}"); a(f"v_lshlrev_b32 {t0}, 16, v{GB+16+i}")
        a(f"v_and_b32 v{GB+i}, 0xffff0000, v{GB+i}"); a(f"v_and_b32 v{GB+16+i}, 0xffff0000, v{GB+16+i}")
        a(f"v_add_f32 v{160+i}, v{160+i}, {t0}"); a(f"v_add_f32 v{GB+i}, v{GB+i}, v{GB+16+i}")
    for qp in (QP1, QP2):
        for i in range(16):
            a(f"v_add_f32_dpp v{160+i}, v{160+i}, v{160+i} {qp}"); a(f"v_add_f32_dpp v{GB+i}, v{GB+i}, v{GB+i} {qp}")
    for i in range(16): a(f"v_cvt_pk_bf16_f32 v{GB+i}, v{160+i}, v{GB+i}")
    for k in range(4): a(f"ds_write_b128 {vL16}, {vr(GB+4*k)} offset:{L_PART + 1024*k}")
    a("L_h_nos2:")
    stamp("oB_ready")
    a(f"s_cmp_eq_u32 {sLocal}, 1")
    a("s_waitcnt lgkmcnt(0)")
    a("s_barrier")
    combine(2); publish(2, sRecA)
    stamp("published")
    for i in range(3 if g2 else 2): a("s_barrier")
    if stamps or probe: finish()
    a("L_end:")
    a("s_endpgm")
    a.pad()
    global STAMP_NAMES
    STAMP_NAMES = {k: v[:-1] for k, v in names.items()}
    head = HEADER + f"; @launch grid=(256,1,1) block=({64*NW},1,1) lds={L_KB + NL * 4096}\n" + DOC
    head += f'.amdgcn_target "amdgcn-amd-amdhsa--gfx950"\n.text\n.globl {NAME}_kernel\n.p2align 8\n.type {NAME}_kernel,@function\n{NAME}_kernel:\n'
    nv = 256 if stamps else max(RING + 4 * RP, 224)
    assert not (stamps and RP > 47)
    tail = f'''.section .rodata,"a"
.p2align 6
.amdhsa_kernel {NAME}_kernel
  .amdhsa_next_free_vgpr {nv}
  .amdhsa_next_free_sgpr 102
  .amdhsa_accum_offset {nv}
  .amdhsa_group_segment_fixed_size 0
  .amdhsa_kernarg_size 104
  .amdhsa_user_sgpr_count 2
  .amdhsa_user_sgpr_kernarg_segment_ptr 1
  .amdhsa_system_sgpr_workgroup_id_x 1
  .amdhsa_float_denorm_mode_32 3
.end_amdhsa_kernel
'''
    return head + a.text() + tail

if __name__ == "__main__":
    kw = eval("dict(" + (sys.argv[2] if len(sys.argv) > 2 else "") + ")")
    open(sys.argv[1], "w").write(gen(**kw))
```

```python
import os, sys, struct
from asmlib import Asm
def f2u(x): return struct.unpack('<I', struct.pack('<f', x))[0]

NAME = "concat_heads__mha_block_cached__sliding_block_cached__decode"
_ref = "cdna_kernels/" + NAME + ".s.ref"
HEADER = open(_ref).read().split("; Override launch")[0] if os.path.exists(_ref) else ""

WS_QP = 0x0
WS_ML = 0x40000
WS_PO = 0x48000
WS_FL = 0xC8000
WS_GC = 0xD0000
WS_EP = 0xE4000
WS_CH = 0xE5000
WS_Y = 0x100000
YG = 7 * 16384
WS_END = WS_Y + 8 * YG
WS_STAMP = 0x400000
L_WQ = 0
L_WOA = 0
L_WOB = 16384
L_PART = 32768
L_Q = L_PART + 12288
L_CNT = L_Q + 1536
L_LOC = L_CNT + 4
L_CH = L_CNT + 8
L_PRG = L_CNT + 16
L_TH = L_CNT + 32
L_ML = L_CNT + 64
L_KB = L_CNT + 512
OOB = 0x40000000
TAGC = (0x9E3779B9, 0x7F4A7C15)
CSCALE = 0x3DB8AA3B
NW = 6


DOC = """;
; constant; the seed is moved on at the end) or by a sentinel written earlier in the same launch.  Every
;
"""

def brev(j, bits): return int(f"{j:0{bits}b}"[::-1], 2)
FULL = "row_mask:0xf bank_mask:0xf"
QP1 = "quad_perm:[1,0,3,2] " + FULL
QP2 = "quad_perm:[2,3,0,1] " + FULL

def gen(D=5, D0=5, ND0=12, RP=46, NL=12, ratio=6, stamps=False, fine=False, spin=1 << 19, pol="nt", force_remote=False,
        th0=4.15, thmin=3, gain=0.125, gw=0.08, gx=0.75, gstop=3, gI=1536, gc=1130, c0=6,
        rot=1, rotx=4, rotm=1, tlb=False, wod=2, wpos=0, g2=True, hk=6, hsleep=2, near=None, nrace=4, ml0=4, ml1=6, nowo=0, swz=True, vt=0, pf=2, bx=0, ila=2, ilb=1, rp=4, rph=0, lay=0, kv=0, wqt=0, pbar=4, xm=1, wg=None, wk=1.0, wcap=8, wfake=0, wbe=0, hb=None, rx=None, vtw=False, krot=5, krp=3, cbd=0, nox=False, wt=None, wtw=True, LG=16, thmax=12, nboost=24, xa=(), xb=(), kup=2.0, kat=2.0, probe=None, wth=None, wde=0, wpe=2, fat=False, wper=1, qfake=0, seedsc=True, pre=0, nomf=False, h1=24, h2=56, mlh=True, xl=True, lsc=True, st1=0, st2=0, nob=0):
    a = Asm()
    NTOT = 288; RT = RP + NL; thmax = min(thmax, LG - 2)
    sWG = "s2"; sW = "s3"
    KA, VA, KB, VB, WQ, XS, WS, OUT, WOA, WOB = (f"s[{i}:{i+3}]" for i in (32, 36, 40, 44, 32, 36, 60, 44, 48, 52))
    sLb = "s64"
    sX, sR, sH, sB = "s72", "s73", "s74", "s75"
    sOff = "s76"; sCnt = "s77"; sT0 = "s78"; sT1 = "s79"; sT2 = "s80"; sT3 = "s81"
    sRecA = "s82"; sRecB = "s83"; sG = "s84"; sY = "s85"; sU = "s86"; sC = "s87"; sSpin = "s88"; sLocal = "s89"
    sMk1 = "s[90:91]"; sMk0 = "s[92:93]"; sTh = "s94"; sRot = "s95"
    vL = "v0"; vKo = "v1"; vM = [f"v{i}" for i in range(2, 6)]
    QA = 6; QB = 14; SP = 30; AOP = 34; ACC = 38
    T = ["v46", "v47"]; U = ["v48", "v49"]; V = ["v50", "v51"]; X = ["v52", "v53"]
    t0, t1, t2, t3 = "v54", "v55", "v56", "v57"
    vm, vl, vg, vn = "v58", "v59", "v60", "v61"
    vmB, vlB = "v62", "v63"
    RING = 64
    OBS = 96; WTB = 112; ACCB = 128; SB = "v136"; vfA = "v137"; MLG = 138; WT = 144; G = 160
    vGo = "v176"; vYo = "v177"; vTr = "v178"; vPa = "v179"; vPrg = "v180"; vPrA = "v181"; vTH = "v182"; vWo = "v183"; vYm = "v206"; vYt = "v207"; vYb = "v184"; vWo2 = "v185"
    def slot(k): return RING + 4 * k
    def vr(i, n=4): return f"v[{i}:{i+n-1}]"
    names = {"s": [], "h": [], "g": []}
    cur = ["s"]
    def stamp(name):
        if probe and name == "start": a("s_memrealtime s[96:97]")
        if probe and len(probe) > 5 and (cur[0], name) == (probe[0], probe[5]): a("s_memrealtime s[26:27]"); a("s_waitcnt lgkmcnt(0)")
        if probe and (cur[0], name) == probe[:2]: a("s_memrealtime s[20:21]"); a("s_waitcnt lgkmcnt(0)")
        if not stamps: return
        nm = names[cur[0]]
        if nm:
            a("s_waitcnt lgkmcnt(0)")
            a(f"v_writelane_b32 v255, s96, {len(nm)-1}")
        nm.append(name)
        a("s_memrealtime s[96:97]")
    def finish():
        if probe and cur[0] == probe[0]:
            if probe[1] == "end": a("s_memrealtime s[20:21]"); a("s_waitcnt lgkmcnt(0)")
            a(f"s_sub_u32 s20, s20, {'s26' if len(probe) > 5 else 's96'}"); a(f"s_mul_i32 s20, s20, {probe[2]}"); a(f"s_add_u32 s20, s20, {probe[4]}")
            if probe[3] is not None: a(f"s_cmp_eq_u32 {sR if probe[3] < 32 else sWG}, {probe[3]}"); a("s_cselect_b32 s20, s20, 0")
            a("s_min_u32 s20, s20, 40000")
            a("L_probe:"); a("s_memrealtime s[22:23]"); a("s_waitcnt lgkmcnt(0)"); a("s_sub_u32 s22, s22, s96"); a("s_cmp_lt_u32 s22, s20"); a("s_cbranch_scc1 L_probe")
        if stamps:
            a("s_mov_b64 exec, -1")
            stamp("end"); a("s_waitcnt vmcnt(0)"); stamp("acked"); stamp("x")
            a("s_mov_b32 exec_hi, 0")
            a(f"s_mul_i32 {sT0}, {sWG}, {NW}"); a(f"s_add_u32 {sT0}, {sT0}, {sW}"); a(f"s_lshl_b32 {sT0}, {sT0}, 7"); a(f"s_add_u32 {sT0}, {sT0}, {WS_STAMP}")
            a(f"v_lshl_add_u32 {t0}, {vL}, 2, {sT0}")
            a(f"global_store_dword {t0}, v255, s[28:29]")
        a("s_endpgm")
    def srd(i, lo, hi, size):
        if lo is not None: a(f"s_mov_b32 s{i}, {lo}"); a(f"s_mov_b32 s{i+1}, {hi}")
        a(f"s_mov_b32 s{i+2}, {size}"); a(f"s_mov_b32 s{i+3}, 0x20000")
    def poll(name, loads, check, sleep=0, first_issued=False, masked=False):
        sv = a.vm_seq
        a(f"s_mov_b32 {sSpin}, {spin}")
        if first_issued: a(f"s_branch {name}_chk")
        a(f"{name}:")
        if sleep: a(f"s_sleep {sleep}")
        loads()
        a(f"s_sub_u32 {sSpin}, {sSpin}, 1"); a(f"s_cmp_eq_u32 {sSpin}, 0")
        a("s_waitcnt vmcnt(0) lgkmcnt(0)")
        a(f"s_cbranch_scc1 {name}_go")
        if first_issued: a(f"{name}_chk:")
        check()
        if masked:
            a("s_and_b64 exec, exec, vcc")
            a(f"s_cbranch_scc1 {name}")
        else:
            a(f"s_cbranch_vccnz {name}")
        a(f"{name}_go:")
        if masked: a("s_mov_b64 exec, -1")
        if first_issued: a.vm_seq = sv
    def by_placement(tag, emit, have_scc=False):
        if not have_scc: a(f"s_cmp_eq_u32 {sLocal}, 1")
        a(f"s_cbranch_scc1 L_{tag}_l")
        sv = a.vm_seq
        emit(" sc1"); a.vm_seq = sv
        a(f"s_branch L_{tag}_d")
        a(f"L_{tag}_l:")
        emit("")
        a(f"L_{tag}_d:")
    def sentinel(regs):
        regs = list(regs); accs = [t0, t2]
        a(f"v_max_u32 {t0}, v{regs[0]}, v{regs[1]}"); a(f"v_max_u32 {t2}, v{regs[2]}, v{regs[3]}")
        for i in range(4, len(regs), 2):
            c = accs[(i >> 1) & 1]
            a(f"v_max3_u32 {c}, {c}, v{regs[i]}, v{regs[i+1]}")
        a(f"v_max_u32 {t0}, {t0}, {t2}")
        a(f"v_cmp_eq_u32 vcc, -1, {t0}")
    def red(op, r, steps):
        for s in steps:
            if s in (16, 32):
                a(f"v_mov_b32 {t1}, {r}"); a(f"v_permlane{s}_swap_b32 {r}, {t1}"); a(f"{op} {r}, {r}, {t1}")
            elif s == "q1": a(f"{op}_dpp {r}, {r}, {r} {QP1}")
            elif s == "q2": a(f"{op}_dpp {r}, {r}, {r} {QP2}")
            else: a(f"{op}_dpp {r}, {r}, {r} row_ror:{s} {FULL}")
    def rnd(r):
        a(f"v_cvt_pk_bf16_f32 {r}, {r}, {r}"); a(f"v_and_b32 {r}, 0xffff0000, {r}")
    def unit(P):
        a(f"s_mul_i32 {sT0}, {sR}, 37"); a(f"s_lshr_b32 {sT0}, {sT0}, 8")
        a(f"s_mul_i32 {sT1}, {sT0}, 7"); a(f"s_sub_u32 {sT1}, {sR}, {sT1}")
        a(f"s_lshl_b32 {sT2}, {sX}, 2"); a(f"s_add_u32 {sT0}, {sT0}, {sT2}")
        a(f"s_mul_i32 {sU}, {sT0}, {128*896}"); a(f"s_lshl_b32 {sT2}, {sT1}, 7"); a(f"s_add_u32 {sU}, {sU}, {sT2}")
        a(f"s_lshr_b32 {sG}, {sT0}, 1"); a(f"s_lshl_b32 {sG}, {sG}, 14"); a(f"s_and_b32 {sT2}, {sT0}, 1"); a(f"s_lshl_b32 {sT2}, {sT2}, 12")
        a(f"s_add_u32 {sG}, {sG}, {sT2}"); a(f"s_add_u32 {sG}, {sG}, {WS_PO + P*512*512}")
        a(f"s_lshl_b32 {sY}, {sT1}, 14"); a(f"s_lshl_b32 {sT2}, {sT0}, 6"); a(f"s_add_u32 {sY}, {sY}, {sT2}")
        a(f"s_add_u32 {sY}, {sY}, {WS_Y}")
    def unit_v():
        a(f"v_lshrrev_b32 {t0}, 2, {vn}"); a(f"v_and_b32 {t2}, 3, {vn}")
        a(f"v_lshlrev_b32 {vGo}, 4, {vL}")
        a(f"v_lshl_add_u32 {vTr}, {vg}, 3, {t0}"); a(f"v_lshlrev_b32 {vTr}, 7, {vTr}"); a(f"v_lshl_add_u32 {vTr}, {t2}, 3, {vTr}")
        a(f"v_lshrrev_b32 {t0}, 3, {vL}"); a(f"v_mul_u32_u24 {t0}, 896, {t0}"); a(f"v_and_b32 {t2}, 7, {vL}"); a(f"v_lshl_add_u32 {vWo}, {t2}, 4, {t0}")
    sCh = "s71"
    def y_base(dst, P):
        a(f"v_add_u32 {t0}, {4*P}, {vg}"); a(f"v_mul_u32_u24 {dst}, {YG}, {t0}")
        a(f"v_bfe_u32 {t2}, {sCh}, {t0}, 1"); a(f"v_lshl_add_u32 {dst}, {t2}, 13, {dst}"); a(f"v_lshl_add_u32 {dst}, {vn}, 2, {dst}")
    def tag_load(): a(f"s_load_dwordx2 s[56:57], s[28:29], {WS_EP}")
    def tag_make():
        a(f"s_add_u32 s56, s56, {TAGC[0]}"); a(f"s_addc_u32 s57, s57, {TAGC[1]}"); a("s_lshr_b32 s58, s57, 4")
        a(f"s_getreg_b32 {sT0}, hwreg(HW_REG_XCC_ID, 0, 4)")
        a("s_lshl_b32 s59, s58, 4"); a(f"s_or_b32 s59, s59, {sT0}")
    def tag_chk(regs):
        for i, r in enumerate(regs):
            a(f"v_lshrrev_b32 {t1}, 4, v{r+1}"); a(f"v_xor_b32 {t1}, s58, {t1}"); a(f"v_xor_b32 {t2}, s56, v{r}")
            if i: a(f"v_or3_b32 {t0}, {t0}, {t1}, {t2}")
            else: a(f"v_or_b32 {t0}, {t1}, {t2}")
        a(f"v_cmp_ne_u32 vcc, 0, {t0}")

    YT = ["s65", "s66", "s67", "s68"]
    def ytag_make():
        a(f"s_and_b32 {YT[0]}, s56, 0xfff"); a(f"s_bfe_u32 {YT[1]}, s56, 0xc000c")
        a(f"s_and_b32 {YT[2]}, s58, 0xfff"); a(f"s_bfe_u32 {YT[3]}, s58, 0xc000c")
    def y_seal(r):
        a(f"v_add_u32 v{r}, 0x800, v{r}"); a(f"v_and_or_b32 v{r}, v{r}, {vYm}, {vYt}")

    a("s_load_dwordx16 s[4:19], s[0:1], 0")
    a("s_load_dwordx8 s[20:27], s[0:1], 64")
    a("s_load_dwordx2 s[28:29], s[0:1], 96")
    stamp("start"); names["h"] = list(names["s"]); names["g"] = list(names["s"])
    a(f"s_cmp_ge_u32 {sWG}, 256")
    a("s_cbranch_scc1 L_end")
    a(f"v_lshrrev_b32 {t2}, 6, v0")
    a(f"v_and_b32 {vL}, 63, v0")
    a(f"v_readfirstlane_b32 {sW}, {t2}")
    a(f"v_lshrrev_b32 {vg}, 4, {vL}")
    a(f"v_and_b32 {vn}, 15, {vL}")
    a(f"s_and_b32 {sX}, {sWG}, 7")
    a(f"s_lshr_b32 {sR}, {sWG}, 3")
    a(f"s_lshr_b32 {sT0}, {sWG}, 7")
    a(f"s_lshl1_add_u32 {sH}, {sX}, {sT0}")
    a(f"s_bfe_u32 {sB}, {sR}, 0x20002")
    a(f"s_cmp_ge_u32 {sW}, 4")
    a("s_cbranch_scc1 L_helper")

    a(f"v_lshl_add_u32 {vKo}, {t2}, 2, {vg}")
    a(f"v_lshl_add_u32 {vKo}, {vKo}, 5, {vn}")
    a(f"v_lshlrev_b32 {vKo}, 4, {vKo}")
    HA = 3 << (13 + ila); HB = 7 << (13 + ilb)
    a(f"s_lshl4_add_u32 s40, {sB}, {sH}"); a(f"s_and_b32 s41, {sR}, 3")
    if hb:
        HA = (1 << hb[0]) | (1 << hb[1])
        a("s_lshl_b32 s40, s40, 21"); a("s_and_b32 s42, s41, 1"); a(f"s_lshl_b32 s42, s42, {hb[0]}"); a("s_add_u32 s40, s40, s42")
        a("s_lshr_b32 s42, s41, 1"); a(f"s_lshl_b32 s42, s42, {hb[1]}"); a("s_add_u32 s40, s40, s42")
    elif ila == 6:
        a("s_lshl2_add_u32 s40, s40, s41"); a("s_lshl_b32 s40, s40, 19")
    else:
        a(f"s_lshl_b32 s40, s40, {8 - ila}"); a("s_add_u32 s40, s40, s41"); a(f"s_lshl_b32 s40, s40, {13 + ila}")
    NRA = 0x200000 - HA; MA_ = 0x1fffff & ~HA
    if lay:
        nb = 3 + lay
        HA = (((1 << nb) - 1) << (13 + ila)) | ((15 << 21) if lay == 1 else (7 << 22))
        NRA = 0x8000000 - HA; MA_ = 0x7ffffff & ~HA
        a(f"s_and_b32 s40, {sR}, {(1 << nb) - 1}"); a(f"s_lshl_b32 s40, s40, {13 + ila}")
        a(f"s_lshl_b32 s42, {sH if lay == 1 else sX}, {20 + lay}"); a("s_add_u32 s40, s40, s42")
    srd(32, None, None, NRA)
    cur_off = [0]
    sMask = "s70"; sHole = "s100"; sRa = "s101"
    rota = rp or rph
    if rx:
        a(f"s_mul_i32 {sRa}, {sB}, {rx[0]}"); a(f"s_mul_i32 {sOff}, {sH}, {rx[1]}"); a(f"s_add_u32 {sRa}, {sRa}, {sOff}")
        a(f"s_lshr_b32 {sRa}, {sRa}, {rx[2]}"); a(f"s_and_b32 {sRa}, {sRa}, 3"); a(f"s_lshl_b32 {sRa}, {sRa}, 19")
    elif rp << ila == 16 and not rph:
        a(f"s_lshl_b32 {sRa}, {sB}, 19")
    elif rota:
        a(f"s_mul_i32 {sRa}, {sB}, {rp}"); a(f"s_mul_i32 {sOff}, {sH}, {rph}"); a(f"s_add_u32 {sRa}, {sRa}, {sOff}")
        a(f"s_lshl_b32 {sRa}, {sRa}, {15 + ila}"); a(f"s_and_b32 {sRa}, {sRa}, 0x1fffff")
    a(f"s_mov_b32 {sOff}, {sRa if rota else 0}")
    sXo = "s4"; sXa = "s5"; sXb = "s10"; sEff = "s11"
    def xor_make(dst, spec):
        a(f"s_mov_b32 {dst}, 0")
        for bit, src in spec:
            a(f"s_bitcmp1_b32 {sWG}, {src}"); a(f"s_cselect_b32 {sT1}, {1 << bit}, 0"); a(f"s_xor_b32 {dst}, {dst}, {sT1}")
    def advance(n, masked=False):
        if masked:
            a(f"s_or_b32 {sOff}, {sOff}, {sHole}"); a(f"s_addk_i32 {sOff}, 8192"); a(f"s_and_b32 {sOff}, {sOff}, {sMask}")
        else:
            nx = ((cur_off[0] | HA) + 8192) & ~HA
            d = nx - cur_off[0]; cur_off[0] = nx
            if d == 8192: a(f"s_addk_i32 {sOff}, 8192")
            else:
                a(f"s_add_u32 {sOff}, {sOff}, {d}")
                if rota: a(f"s_bitset0_b32 {sOff}, 21")
    def backlog(P0, do_issue, do_proc):
        p = 0; burst = 0; iss = RT
        while not (p % LG == 0 and iss - p == LG and p >= RT):
            do_proc(p); p += 1
            free = iss - RT < p and (P0 is None or iss < P0 + LG)
            if iss - p < LG or (iss - p > LG and free and (burst < D or p % ratio == 0)):
                assert free
                do_issue(); iss += 1; burst += 1
        return p
    P0 = backlog(None, lambda: None, lambda p: None)
    assert P0 - RT <= 16 and P0 <= 112
    a("s_waitcnt lgkmcnt(0)")
    a(f"s_add_u32 s32, s{6+2*kv}, s40"); a(f"s_addc_u32 s33, s{7+2*kv}, 0")
    if xa: xor_make(sXa, xa); a(f"s_mov_b32 {sXo}, {sXa}")
    ids = {}
    def srd_of(n): return KA if n < 128 else KB if n < 144 else VB if n < 160 else VA
    def kslot(n):
        if n >= P0: return n % LG
        if n >= RT: return LG + n - RT
        if n >= RP: return 32 + (n - RP) % 8
        NT = P0 - RT
        return LG + n if n < NT else n - NT if n < NT + LG else n
    def issue(n, masked=False):
        if n == 144: a(f"s_mov_b32 {sOff}, {sRot}")
        if n == 160:
            a(f"s_mov_b32 {sOff}, {sRa if rota else 0}"); a(f"s_mov_b32 {sHole}, {HA}"); a(f"s_mov_b32 {sMask}, {MA_}")
            if xa or xb: a(f"s_mov_b32 {sXo}, {sXa if xa else 0}")
        masked = masked or n >= 128
        so = sOff
        if xa or (xb and masked and n < 160):
            so = sEff
            if not n & 1: a(f"s_xor_b32 {sEff}, {sOff}, {sXo}")
        if RP <= n < RT:
            a(f"s_add_u32 m0, {sLb}, {256 + (n - RP) * 1024 - 256 * (n & 1)}")
            ids[n] = a(f"buffer_load_dwordx4 {vKo}, {srd_of(n)}, {so} offen offset:{256*(n&1)} {pol} lds")
        else:
            ids[n] = a(f"buffer_load_dwordx4 {vr(slot(kslot(n)))}, {vKo}, {srd_of(n)}, {so} offen offset:{256*(n&1)} {pol}")
        if n & 1: advance(n, masked)
    for n in range(D0): issue(n)
    issued = D0
    stamp("k0")
    tag_load()
    a(f"s_add_u32 s36, s{8-2*kv}, s40"); a(f"s_addc_u32 s37, s{9-2*kv}, 0"); srd(36, None, None, NRA)
    a(f"s_lshl2_add_u32 {sRecA}, {sH}, {sB}"); a(f"s_lshl3_add_u32 {sRecA}, {sRecA}, s41")
    a(f"s_lshl_b32 {sRecB}, {sX}, 6"); a(f"s_add_u32 {sRecB}, {sRecB}, {sR}"); a(f"s_add_u32 {sRecB}, {sRecB}, 512")
    a(f"s_andn2_b32 s44, {sR}, 7"); a(f"s_add_u32 s44, s44, {sX}"); a(f"s_xor_b32 s44, s44, {bx}"); a("s_lshl_b32 s44, s44, 21")
    a(f"s_and_b32 s45, {sR}, 7"); a(f"s_lshl_b32 s45, s45, {13 + ilb}"); a("s_add_u32 s44, s44, s45"); a("s_add_u32 s44, s44, 0x180000")
    a("s_add_u32 s40, s16, s44"); a("s_addc_u32 s41, s17, 0"); srd(40, None, None, 0x80000 - HB)
    a("s_add_u32 s44, s18, s44"); a("s_addc_u32 s45, s19, 0"); srd(44, None, None, 0x80000 - HB)
    srd(60, "s28", "s29", WS_END); srd(48, "s12", "s13", 0 if nowo & 1 else 0x380000); srd(52, "s22", "s23", 0 if nowo & 2 else 0x380000)
    unit(0)
    a(f"s_mul_i32 {sT0}, {sW}, {4*8*896}"); a(f"s_add_u32 {sU}, {sU}, {sT0}")
    a(f"s_lshl_b32 {sT0}, {sW}, 11"); a(f"s_add_u32 {sY}, {sY}, {sT0}")
    sUB = "s69"
    a(f"s_xor_b32 {sT0}, {sX}, {bx}"); a(f"s_sub_i32 {sT0}, {sT0}, {sX}"); a(f"s_mul_i32 {sT0}, {sT0}, {512*896}"); a(f"s_add_u32 {sUB}, {sU}, {sT0}")
    a(f"s_cmp_ge_u32 {sR}, 28"); a(f"s_cselect_b32 {sU}, {OOB}, {sU}"); a(f"s_cselect_b32 {sUB}, {OOB}, {sUB}"); a(f"s_cselect_b32 {sG}, {OOB}, {sG}")
    if True:
        a(f"s_mul_i32 {sRot}, {sR}, {rot}"); a(f"s_mul_i32 {sT0}, {sX}, {rotx}"); a(f"s_add_u32 {sRot}, {sRot}, {sT0}")
        a(f"s_and_b32 {sRot}, {sRot}, {rotm}")
        a(f"s_lshr_b32 {sT0}, {sRot}, {ilb}"); a(f"s_mul_i32 {sT0}, {sT0}, {7 << ilb}"); a(f"s_add_u32 {sRot}, {sRot}, {sT0}"); a(f"s_lshl_b32 {sRot}, {sRot}, 13")
    if xa or xb: xor_make(sXb, xb)
    if xb and not xa: a(f"s_mov_b32 {sXo}, 0")
    a(f"s_mov_b32 {sC}, {CSCALE}")
    a("s_mov_b32 s90, 0xcccccccc"); a("s_mov_b32 s91, 0xcccccccc")
    a("s_mov_b32 s92, 0xaaaaaaaa"); a("s_mov_b32 s93, 0xaaaaaaaa")
    a("s_and_b64 s[98:99], s[90:91], s[92:93]"); a(f"s_mov_b32 {sHole}, {HA}"); a(f"s_mov_b32 {sMask}, {MA_}")
    a(f"v_bfe_u32 {t0}, {vL}, 1, 2")
    a(f"v_mov_b32 {t2}, 0xffff"); a(f"v_mov_b32 {t1}, 0xffff0000")
    a(f"v_cndmask_b32 {t2}, {t2}, {t1}, {sMk0}")
    for j in range(4):
        a(f"v_cmp_eq_u32 vcc, {j}, {t0}")
        a(f"v_cndmask_b32 {vM[j]}, 0, {t2}, vcc")
    a(f"v_lshlrev_b32 {t3}, 4, {vn}"); a(f"v_mov_b32 {t0}, {L_LOC}")
    a(f"s_mul_i32 {sLb}, {sW}, {NL * 1024}"); a(f"s_add_u32 {sLb}, {sLb}, {L_KB - 256}")
    if nboost:
        a(f"s_and_b32 {sT0}, {sR}, 7"); a(f"s_cmp_eq_u32 {sT0}, 3"); a("s_cselect_b64 vcc, -1, 0")
    landed = -1
    def throttled_issue():
        nonlocal issued, landed
        d = D0 if issued < ND0 else D
        if RT - pbar - pre <= issued < RT - pbar: d += issued - (RT - pbar - pre) + 1
        if issued - d > landed:
            if 14 <= issued < 14 + nboost:
                landed = max(landed, issued - d - 1); a.wait_vm(ids[issued - d - 1])
                a(f"s_cbranch_vccnz L_boost{issued}"); a.wait_vm(ids[issued - d]); a(f"L_boost{issued}:")
            else:
                landed = issued - d; a.wait_vm(ids[landed])
        issue(issued); issued += 1
    while issued < RT - pbar:
        throttled_issue()
        if (fine or probe) and issued in (D0 + 1, 16, 26, 36, 46, 56, 66): stamp(f"ki{issued}")
        if issued == 24:
            a("s_waitcnt lgkmcnt(0)"); tag_make(); ytag_make()
    stamp("ring_full")
    a("s_barrier")
    if probe or fine: stamp("bar")
    a(f"ds_read_b128 {vr(QA)}, {t3} offset:{L_Q+1024}"); a(f"ds_read_b128 {vr(QA+4)}, {t3} offset:{L_Q+1024+256}")
    for k in range(4): a(f"ds_read_b128 {vr(QB+4*k)}, {t3} offset:{L_Q+256*k}")
    a(f"ds_read2_b32 v[54:55], {t0} offset0:0 offset1:1")
    while issued < RT: throttled_issue()
    a(f"v_lshl_add_u32 {t3}, {vL}, 4, {sLb}")
    a("s_waitcnt lgkmcnt(0)")
    a(f"v_readfirstlane_b32 {sLocal}, {t0}"); a(f"v_readfirstlane_b32 {sCh}, {t1}")
    stamp("q_ready")

    def tree(j, acc, dst_fn):
        u = U[(j >> 1) & 1]
        a(f"v_add_f32_dpp {u}, {acc}, {acc} row_ror:8 row_mask:0xf bank_mask:{'0xc' if j & 1 else '0x3'}")
        if not j & 1: return
        v = V[(j >> 2) & 1]
        a(f"v_add_f32_dpp {v}, {u}, {u} row_half_mirror row_mask:0xf bank_mask:{'0xa' if j & 2 else '0x5'}")
        if not j & 2: return
        a(f"v_add_f32_dpp {v}, {v}, {v} {QP2}")
        if not j & 4: return
        x = X[(j >> 3) & 1]
        a(f"v_cndmask_b32 {x}, {V[0]}, {V[1]}, {sMk1}")
        a(f"v_add_f32_dpp {x}, {x}, {x} {QP1}")
        if not j & 8: return
        dst_fn()
    def dots(acc, kr, qr, first):
        if first: a(f"v_mov_b32 {acc}, 0")
        for e in range(4): a(f"v_dot2c_f32_bf16 {acc}, v{kr+e}, v{qr+e}")
    ROT = "quad_perm:[1,2,3,0] " + FULL
    def procK(n, looped=False):
        k = kslot(n); i = (n >> 1) & 3; hf = n & 1
        acc = T[i & 1]
        dots(acc, slot(k), QA + 4 * hf, not hf)
        if not hf: return
        a(f"v_add_f32_dpp {U[0]}, {acc}, {acc} row_ror:8 row_mask:0xf bank_mask:{'0xc' if i & 1 else '0x3'}")
        if not i & 1: return
        a(f"v_add_f32_dpp {V[0]}, {U[0]}, {U[0]} row_half_mirror row_mask:0xf bank_mask:{'0xa' if i & 2 else '0x5'}")
        if not i & 2: return
        r = SP + (0 if looped else ((n >> 3) - P0 // 8) & 3)
        a(f"v_mov_b32_dpp {X[0]}, v{r} {ROT}")
        a(f"v_add_f32_dpp {V[0]}, {V[0]}, {V[0]} {QP2}")
        if looped:
            for e in range(3): a(f"v_mov_b32 v{SP+e}, v{SP+e+1}")
        a(f"v_add_f32_dpp {V[0]}, {V[0]}, {V[0]} {QP1}")
        a(f"v_cndmask_b32 v{SP+3 if looped else r}, {X[0]}, {V[0]}, s[98:99]")
    def procKB(n):
        k = kslot(n); j = (n - 128) >> 1; hf = n & 1
        for hd in range(2):
            dots(T[hd], slot(k), QB + 8 * hd + 4 * hf, not hf)
        if not hf: return
        for hd in range(2):
            tree(2 * j + hd, T[hd], lambda: a(f"v_cndmask_b32 {SB}, {X[0]}, {X[1]}, {sMk0}"))
    def procVB(n):
        k = kslot(n); j = (n - 144) >> 1; hf = n & 1
        if not hf:
            a(f"v_mov_b32_dpp {t0}, {SB} row_newbcast:{brev(j,3)} row_mask:0xf bank_mask:0x3")
            a(f"v_mov_b32_dpp {t0}, {SB} row_newbcast:{8+brev(j,3)} row_mask:0xf bank_mask:0xc")
            for e in range(4): a(f"v_and_b32 v{AOP+e}, {t0}, {vM[e]}")
        a(f"v_mfma_f32_16x16x32_bf16 {vr(ACCB+4*hf)}, {vr(AOP)}, {vr(slot(k))}, {vr(ACCB+4*hf) if j else 0}")
    def procV(n, last=False):
        if nomf: return
        k = kslot(n); i = (n >> 1) & 3; hf = n & 1
        if not hf:
            for e in range(4):
                a(f"v_and_b32_dpp v{AOP+e}, v{SP}, {vM[e]} row_newbcast:{8*(i&1) + 4*(i>>1)} {FULL}")
        a(f"v_mfma_f32_16x16x32_bf16 {vr(ACC+4*hf)}, {vr(AOP)}, {vr(slot(k))}, {vr(ACC+4*hf)}")
        if hf and i == 3 and not last:
            a(f"v_mov_b32_dpp {X[0]}, v{SP} {ROT}")
            for e in range(3): a(f"v_mov_b32 v{SP+e}, v{SP+e+1}")
            a(f"v_mov_b32 v{SP+3}, {X[0]}")
    AH = 4
    def backlog_proc(p):
        n = p + AH
        if RP <= n < RT:
            assert n <= landed and p > 39
            a(f"ds_read_b128 {vr(slot(kslot(n)))}, {t3} offset:{256 + (n - RP) * 1024}")
        if RP <= p < RT: a(f"s_waitcnt lgkmcnt({min(AH, RT - 1 - p)})")
        assert p <= landed
        procK(p)
    assert backlog(P0, throttled_issue, backlog_proc) == P0
    total = (NTOT - LG - P0) // 2 * 4
    a(f"s_lshl2_add_u32 {sT0}, {sW}, {L_PRG}")
    a(f"v_mov_b32 {vPrA}, {sT0}"); a(f"v_mov_b32 {vPrg}, 0")
    a(f"s_mov_b32 {sTh}, {int(th0 + 0.5)}")
    stamp("caught_up")
    nlad = [0]
    def pair(n, proc, extra=None, masked=False):
        j = n >> 1
        if j & 1:
            a(f"s_waitcnt vmcnt({LG - 2}) lgkmcnt(0)")
            a(f"v_readfirstlane_b32 {sTh}, {vTH}")
        else:
            a(f"s_waitcnt vmcnt({LG - 2})")
        proc(n); proc(n + 1)
        nlad[0] += 1
        levels = list(range(thmax, thmin - 1, -1))
        if lsc:
            levels = [t for t in levels if t <= 8 or (thmax - t) % 2 == 0]
            a(f"s_cmp_le_u32 {sTh}, 5"); a(f"s_cbranch_scc1 L_low{nlad[0]}")
        for i, th in enumerate(levels):
            if lsc and th == 5: a(f"L_low{nlad[0]}:")
            if th < LG - 2: a(f"s_waitcnt vmcnt({th})")
            if th > thmin: a(f"s_cmp_gt_u32 {sTh}, {levels[i+1]}"); a(f"s_cbranch_scc1 L_lad{nlad[0]}")
        a(f"L_lad{nlad[0]}:")
        issue(n + LG, masked); issue(n + LG + 1, masked)
        a(f"v_add_u32 {vPrg}, 1, {vPrg}")
        a(f"ds_write_b32 {vPrA}, {vPrg}")
        if not j & 1: a(f"ds_read_b32 {vTH}, {vPrA} offset:{L_TH - L_PRG}")
        if extra: extra()
    a(f"s_mov_b32 {sCnt}, {(128 - P0) // LG}")
    a("L_k:")
    a(f"s_sub_u32 {sCnt}, {sCnt}, 1"); a(f"s_cmp_eq_u32 {sCnt}, 0")
    a("s_cselect_b32 s32, s40, s32"); a("s_cselect_b32 s33, s41, s33"); a("s_cselect_b32 s34, s42, s34")
    a(f"s_cselect_b32 {sOff}, {sRot}, {sOff}"); a(f"s_cselect_b32 {sMask}, {0x7ffff & ~HB}, {sMask}"); a(f"s_cselect_b32 {sHole}, {HB}, {sHole}")
    if xa or xb: a(f"s_cselect_b32 {sXo}, {sXb}, {sXo}")
    for n in range(P0, P0 + LG, 2): pair(n, lambda m: procK(m, True), masked=True)
    a(f"s_cmp_lg_u32 {sCnt}, 0"); a("s_cbranch_scc1 L_k")
    stamp("K_done")
    def softmaxA():
        for e in range(4): rnd(f"v{SP+e}")
        a(f"v_max3_f32 {vm}, v{SP}, v{SP+1}, v{SP+2}"); a(f"v_max_f32 {vm}, {vm}, v{SP+3}")
        red("v_max_f32", vm, (8, 4, 2, 1, 16, 32))
        a(f"v_mul_f32 {vm}, {sC}, {vm}")
        for e in range(4): a(f"v_fma_f32 v{SP+e}, v{SP+e}, {sC}, -{vm}")
        for e in range(4): a(f"v_exp_f32 v{SP+e}, v{SP+e}")
        a(f"v_add_f32 {vl}, v{SP}, v{SP+1}"); a(f"v_add_f32 {t0}, v{SP+2}, v{SP+3}"); a(f"v_add_f32 {vl}, {vl}, {t0}")
        for e in range(4): a(f"v_cvt_pk_bf16_f32 v{SP+e}, v{SP+e}, v{SP+e}")
    def softmaxA2():
        red("v_add_f32", vl, (8, 4, 2, 1, 16, 32))
        for e in range(8): a(f"v_mov_b32 v{ACC+e}, 0")
        if mlh:
            a(f"s_lshl3_add_u32 {sT0}, {sW}, {L_ML + 64}"); a(f"v_mov_b32 {t2}, {sT0}"); a(f"ds_write_b64 {t2}, v[58:59]")
            return
        a(f"v_min_u32 {vm}, -2, {vm}"); a(f"v_min_u32 {vl}, -2, {vl}")
        a(f"s_lshl2_add_u32 {sT0}, {sRecA}, {sW}"); a(f"s_lshl3_add_u32 {sT0}, {sT0}, {WS_ML}")
        a("s_mov_b64 exec, 1")
        by_placement("mla", lambda b: a(f"buffer_store_dwordx2 v[58:59], off, {WS}, {sT0}{b}"))
        a("s_mov_b64 exec, -1")
    def softmaxB():
        rnd(SB)
        a(f"v_mul_f32 {SB}, {sC}, {SB}")
        a(f"v_max_f32_dpp {vmB}, {SB}, {SB} row_half_mirror {FULL}")
        red("v_max_f32", vmB, ("q1", "q2", 16, 32))
        a(f"v_sub_f32 {SB}, {SB}, {vmB}"); a(f"v_exp_f32 {SB}, {SB}")
        a(f"v_add_f32_dpp {vlB}, {SB}, {SB} row_half_mirror {FULL}")
        a(f"v_cvt_pk_bf16_f32 {SB}, {SB}, {SB}")
    def softmaxB2():
        red("v_add_f32", vlB, ("q1", "q2", 16, 32))
        if mlh:
            a(f"s_lshl3_add_u32 {sT0}, {sW}, {L_ML}"); a(f"v_and_b32 {t2}, 8, {vn}"); a(f"v_lshl_add_u32 {t2}, {t2}, 2, {sT0}"); a(f"ds_write_b64 {t2}, v[62:63]")
            return
        a(f"v_min_u32 {vmB}, -2, {vmB}"); a(f"v_min_u32 {vlB}, -2, {vlB}")
        a(f"s_lshl2_add_u32 {sT0}, {sRecB}, {sW}"); a(f"s_lshl3_add_u32 {sT0}, {sT0}, {WS_ML}")
        a(f"v_lshlrev_b32 {t2}, 7, {vn}")
        a("s_mov_b64 exec, 0x101")
        by_placement("mlb", lambda b: a(f"buffer_store_dwordx2 v[62:63], {t2}, {WS}, {sT0} offen{b}"))
        a("s_mov_b64 exec, -1")
    def addresses():
        if swz:
            a(f"v_bfe_u32 {t0}, {vL}, 3, 2"); a(f"v_xor_b32 {t0}, {sW}, {t0}"); a(f"v_lshl_add_u32 {vTr}, {t0}, 5, {vTr}")
            a(f"v_and_b32 {t0}, 16, {vL}"); a(f"v_lshlrev_b32 {t0}, 1, {t0}"); a(f"v_xor_b32 {vWo}, {t0}, {vWo}"); a(f"v_xor_b32 {vWo2}, 64, {vWo}")
        else:
            a(f"s_lshl_b32 {sT0}, {sW}, 5"); a(f"v_add_u32 {vTr}, {sT0}, {vTr}"); a(f"v_mov_b32 {vWo2}, {vWo}")
        a(f"s_lshl_b32 {sLb}, {sW}, 12")
        if wfake == 1:
            a(f"v_lshlrev_b32 {vWo}, 4, {vL}"); a(f"v_mov_b32 {vWo2}, {vWo}")
            a(f"s_mul_i32 {sU}, {sX}, 28"); a(f"s_add_u32 {sU}, {sU}, {sR}"); a(f"s_lshl2_add_u32 {sU}, {sU}, {sW}"); a(f"s_lshl_b32 {sU}, {sU}, 12")
            a(f"s_cmp_ge_u32 {sR}, 28"); a(f"s_cselect_b32 {sU}, {OOB}, {sU}"); a(f"s_mov_b32 {sUB}, {sU}")
        if wfake == 2:
            a(f"v_mul_u32_u24 {vWo}, 896, {vg}"); a(f"v_lshl_add_u32 {vWo}, {vn}, 4, {vWo}")
            a(f"s_and_b32 {sT0}, {sR}, 3"); a(f"s_cmp_eq_u32 {sT0}, 3"); a(f"s_cselect_b32 {sT1}, 8, 16")
            a(f"v_cmp_gt_u32 vcc, {sT1}, {vn}"); a(f"v_mov_b32 {t0}, {OOB}"); a(f"v_cndmask_b32 {vWo}, {t0}, {vWo}, vcc"); a(f"v_mov_b32 {vWo2}, {vWo}")
            a(f"s_bfe_u32 {sU}, {sR}, 0x20002"); a(f"s_lshl2_add_u32 {sU}, {sX}, {sU}"); a(f"s_lshl2_add_u32 {sU}, {sU}, {sW}"); a(f"s_mul_i32 {sU}, {sU}, {32*896}")
            a(f"s_lshl_b32 {sT0}, {sT0}, 8"); a(f"s_add_u32 {sU}, {sU}, {sT0}"); a(f"s_add_u32 {sUB}, {sU}, {16*896}")
            a(f"s_cmp_ge_u32 {sR}, 16"); a("s_cselect_b32 s48, s52, s48"); a("s_cselect_b32 s49, s53, s49"); a("s_mov_b32 s52, s48"); a("s_mov_b32 s53, s49")
        y_base(vYo, 0); y_base(vYb, 1)
        a(f"v_mov_b32 {vYm}, 0xfffff000")
        a(f"v_mov_b32 {t0}, {YT[0]}"); a(f"v_mov_b32 {t1}, {YT[1]}"); a(f"v_cndmask_b32 {t0}, {t0}, {t1}, {sMk0}")
        a(f"v_mov_b32 {t2}, {YT[2]}"); a(f"v_mov_b32 {t1}, {YT[3]}"); a(f"v_cndmask_b32 {t2}, {t2}, {t1}, {sMk0}")
        a(f"v_cndmask_b32 {vYt}, {t0}, {t2}, {sMk1}")
        a(f"v_and_b32 {t0}, 1, {vg}"); a(f"v_lshlrev_b32 {t0}, 4, {t0}"); a(f"v_lshl_add_u32 {t0}, {vn}, 5, {t0}")
        a(f"s_lshl_b32 {sT0}, {sW}, 10"); a(f"s_add_u32 {sT0}, {sT0}, {L_PART}")
        a(f"v_add_u32 {vPa}, {sT0}, {t0}")
    nwo = 0; id_wo = None
    def gA():
        for k in range(4): a(f"buffer_load_dwordx4 {vr(G+4*k)}, {vGo}, {WS}, {sG} offen offset:{1024*k} sc1")
    def wo_issue():
        nonlocal nwo, id_wo
        j = (nwo - wbe) % 8
        a(f"s_add_u32 m0, {sLb}, {(L_WOA, L_WOB)[j >> 2] + 1024*(j & 3)}")
        a(f"s_add_u32 {sT0}, {(sU, sUB)[j >> 2]}, {(8*896, 1024, 4*896)[wfake]*(j & 3)}")
        id_wo = a(f"buffer_load_dwordx4 {(vWo, vWo2)[j & 1]}, {(WOA, WOB)[j >> 2]}, {sT0} offen {pol} lds")
        nwo += 1
    extras = {128: softmaxA, 130: softmaxA2, 132: unit_v, 134: addresses, 142: softmaxB, 144: softmaxB2}
    if xl: extras = {142: softmaxB, 144: softmaxB2, 146: softmaxA, 148: softmaxA2, 150: unit_v, 152: addresses}
    for i in range(wbe): extras[146 + 2 * (i % 7)] = (lambda f: (lambda: (f and f(), wo_issue())))(extras.get(146 + 2 * (i % 7)))
    for n in range(128, 160, 2): pair(n, procKB if n < 144 else procVB, extras.get(n))
    a(f"v_lshrrev_b32 {t1}, 1, {vg}"); a(f"v_lshl_add_u32 {t0}, {t1}, 12, {vPa}")
    a(f"ds_write_b128 {t0}, {vr(ACCB)}"); a(f"ds_write_b128 {t0}, {vr(ACCB+4)} offset:512")
    a(f"v_lshl_add_u32 {vPa}, {t1}, 9, {vPa}")
    PB_ = (160 - P0) // 2
    stamp("B_done")
    a(f"s_mov_b32 {sCnt}, 0")
    a("; ---- V_A ----")
    a("L_v:")
    if stamps:
        for i in (4, 6, 10): a(f"s_cmp_eq_u32 {sCnt}, {i}"); a(f"s_cbranch_scc1 L_st{i}")
    a("L_v_body:")
    for n in range(160, 160 + LG, 2): pair(n, procV)
    a(f"s_add_u32 {sCnt}, {sCnt}, {LG // 8}"); a(f"s_cmp_lt_u32 {sCnt}, {16 - LG // 8}"); a("s_cbranch_scc1 L_v")
    if stamps:
        a("s_branch L_v_x")
        for i, nm in ((4, "v4"), (6, "v7"), (10, "v11")):
            a(f"L_st{i}:"); stamp(nm); a("s_branch L_v_body")
    a("L_v_x:")
    stamp("v_x")
    for k in range(LG): ids[NTOT - LG + k] = a.vm_seq - (LG - 1 - k)
    a("s_mov_b32 vcc_lo, 0"); a("s_mov_b32 vcc_hi, -1")
    def last(n0, n1, d, per):
        for n in range(n0, n1):
            a.wait_vm(ids[n])
            for i in range(per):
                if n - (NTOT - 8) >= d and nwo < 8: wo_issue()
            procV(n, last=n >= NTOT - 8)
    def share():
        stamp("stream_done")
        for e in range(4): a(f"v_cndmask_b32 v{ACC+e}, v{ACC+e}, v{ACC+4+e}, vcc")
        a(f"ds_write_b128 {vPa}, {vr(ACC)} offset:8192")
        while wpos == 0 and nwo < 8: wo_issue()
    last(NTOT - LG, NTOT - 8, 8, 0)
    if wth is not None:
        assert wpos == 0
        a(f"s_cmp_lt_u32 {sTh}, {wth}"); a("s_cbranch_scc1 L_calm")
        sv = (a.vm_seq, nwo)
        last(NTOT - 8, NTOT, wde, wpe); share()
        a("s_branch L_join")
        a.vm_seq, nwo = sv
        if stamps: names["s"].pop()
        a("L_calm:")
    last(NTOT - 8, NTOT, wod, wper); share()
    if wth is not None: a("L_join:")
    a("s_waitcnt lgkmcnt(0)")
    a("s_barrier")
    while wpos == 1 and nwo < 8: wo_issue()
    for k in range(4): a(f"ds_read_b128 {vr(OBS+4*k)}, {vGo} offset:{L_PART + 1024*k}")
    if g2:
        a("s_barrier")
        while wpos == 2 and nwo < 8: wo_issue()
        gA()
        while nwo < 8: wo_issue()
    if wg is None and wbe < 8: a.wait_vm(id_wo)
    a("s_barrier")
    if fine: stamp("wo_in")
    a(f"s_cmp_ge_u32 {sR}, 28"); a("s_cbranch_scc1 L_s_fin")
    a("s_waitcnt lgkmcnt(0)")
    for dst, src in ((WTB, L_WOB), (WT, L_WOA)):
        for k in range(4):
            if src == L_WOA and k == 3: a("s_waitcnt lgkmcnt(6)")
            a(f"ds_read_b64_tr_b16 {vr(dst+4*k,2)}, {vTr} offset:{src+4096*k}")
            a(f"ds_read_b64_tr_b16 {vr(dst+4*k+2,2)}, {vTr} offset:{src+4096*k+512}")
    for k in range(4):
        a(f"v_mfma_f32_16x16x32_bf16 {vr(ACC+4)}, {vr(OBS+4*k)}, {vr(WTB+4*k)}, {vr(ACC+4) if k else 0}")
    if g2: a("s_waitcnt vmcnt(0)")
    poll("L_s2", gA, lambda: sentinel(range(G, G + 16)), masked=True, first_issued=g2)
    if g2: a("s_waitcnt lgkmcnt(0)")
    stamp("gathered")
    for k in range(4):
        a(f"v_mfma_f32_16x16x32_bf16 {vr(ACC)}, {vr(G+4*k)}, {vr(WT+4*k)}, {vr(ACC) if k else 0}")
    y_seal(ACC + 4)
    a(f"buffer_store_dword v{ACC+4}, {vYb}, {WS}, {sY} offen sc1")
    a(f"v_add_f32 v{ACC}, v{ACC}, v{ACC+1}"); a(f"v_add_f32 v{ACC+2}, v{ACC+2}, v{ACC+3}"); a(f"v_add_f32 v{ACC}, v{ACC}, v{ACC+2}")
    y_seal(ACC)
    a(f"buffer_store_dword v{ACC}, {vYo}, {WS}, {sY} offen sc1")
    if stamps:
        a("s_branch L_s_fin2")
        a("L_s_fin:")
        names["s"].pop(); stamp("gathered")
        a("L_s_fin2:")
    else:
        a("L_s_fin:")
    stamp("y")
    a("s_waitcnt vmcnt(0)")
    a("s_barrier")
    finish()

    cur[0] = "g"
    a("L_gov:")
    vA4 = "v2"; vBo = "v3"; vPw = "v4"; vP = "v5"; vPp = "v6"; vB = "v7"; vTh = "v8"; vL16 = "v16"
    sTg = sU; sPo = sRecA; sGa = sRecB; sIn = sY
    a(f"v_lshlrev_b32 {vL16}, 4, {vL}")
    a(f"s_lshl_b32 {sT1}, {sX}, 5"); a(f"s_add_u32 {sT1}, {sT1}, {sR}"); a(f"s_lshl_b32 {sT1}, {sT1}, 7"); a(f"s_add_u32 {sT1}, {sT1}, {WS_FL}")
    srd(60, None, None, WS_END)
    a("s_waitcnt lgkmcnt(0)")
    tag_load()
    a("s_mov_b32 s60, s28"); a("s_mov_b32 s61, s29")
    a("s_mov_b64 exec, 0xff")
    a("s_waitcnt lgkmcnt(0)")
    tag_make()
    a("v_mov_b32 v8, s56"); a("v_mov_b32 v9, s59"); a("v_mov_b32 v10, s56"); a("v_mov_b32 v11, s59")
    a(f"buffer_store_dwordx4 v[8:11], {vL16}, {WS}, {sT1} offen sc1")
    a("s_mov_b64 exec, -1")
    ytag_make()
    a(f"s_mul_i32 {sIn}, {sX}, {YG}"); a(f"s_add_u32 {sIn}, {sIn}, {WS_Y}")
    a(f"s_cmp_lg_u32 {sR}, 0"); a("s_cbranch_scc1 L_norace")
    a(f"s_add_u32 s4, s28, {sIn}"); a("s_addc_u32 s5, s29, 0")
    a("s_load_dword s6, s[4:5], 0 glc"); a("s_load_dword s7, s[4:5], 8192 glc")
    a(f"s_mov_b32 {sT1}, 0")
    a("s_waitcnt lgkmcnt(0)")
    for i in range(nrace):
        a("s_not_b32 s10, s6"); a("s_not_b32 s11, s7")
        for h in ((0, 1), (1, 0))[i & 1]: a(f"s_load_dword s{10+h}, s[4:5], {8192*h} glc")
        a("s_waitcnt lgkmcnt(1)")
        a("s_sleep 1")
        a("s_mov_b64 s[14:15], s[10:11]")
        a("s_waitcnt lgkmcnt(0)")
        a("s_cmp_eq_u32 s15, s7"); a(f"s_addc_u32 {sT1}, {sT1}, 0"); a("s_cmp_eq_u32 s14, s6"); a(f"s_subb_u32 {sT1}, {sT1}, 0")
    a(f"s_sub_i32 {sT2}, 0, {sT1}"); a("s_bitcmp1_b32 s59, 2"); a(f"s_cselect_b32 {sT1}, {sT2}, {sT1}")
    a(f"s_cmp_gt_i32 {sT1}, 0"); a(f"s_cselect_b32 {sT2}, 2, 0"); a(f"s_cmp_lt_i32 {sT1}, 0"); a(f"s_cselect_b32 {sT2}, 1, {sT2}")
    if near is not None: a(f"s_mov_b32 {sT2}, {1 + near}")
    a(f"s_and_b32 {sT1}, s59, 4"); a(f"s_or_b32 {sT1}, {sT1}, {sT2}")
    a(f"s_lshl4_add_u32 {sT1}, s58, {sT1}")
    a(f"v_mov_b32 v12, s56"); a(f"v_mov_b32 v13, {sT1}"); a(f"v_mov_b32 v14, s56"); a(f"v_mov_b32 v15, {sT1}")
    a(f"s_lshl_b32 {sT1}, {sX}, 7"); a(f"s_add_u32 {sT1}, {sT1}, {WS_CH}")
    a("s_mov_b64 exec, 0xff")
    a(f"buffer_store_dwordx4 v[12:15], {vL16}, {WS}, {sT1} offen sc1")
    a("s_mov_b64 exec, -1")
    a("L_norace:")
    a(f"s_lshr_b32 {sT0}, {sR}, 2"); a(f"s_lshl_b32 {sT0}, {sT0}, 14"); a(f"s_add_u32 {sIn}, {sIn}, {sT0}")
    a(f"s_and_b32 {sT0}, {sR}, 3"); a(f"s_lshl_b32 {sT0}, {sT0}, 11"); a(f"s_add_u32 {sIn}, {sIn}, {sT0}")
    if stamps: a("v_mov_b32 v254, 0"); a("v_mov_b32 v253, 0")
    stamp("hello")
    srd(44, "s24", "s25", 7168)
    if wg is not None:
        srd(4, "s12", "s13", 0 if nowo & 1 else 0x380000); srd(24, "s22", "s23", 0 if nowo & 2 else 0x380000)
        a("s_mov_b64 s[90:91], s[4:5]")
        a(f"s_mul_i32 {sT0}, {sR}, 37"); a(f"s_lshr_b32 {sT0}, {sT0}, 8"); a(f"s_mul_i32 {sT1}, {sT0}, 7"); a(f"s_sub_u32 {sT1}, {sR}, {sT1}")
        a(f"s_lshl2_add_u32 {sT0}, {sX}, {sT0}"); a(f"s_mul_i32 s70, {sT0}, {128*896}"); a(f"s_lshl_b32 {sT1}, {sT1}, 7"); a(f"s_add_u32 s70, s70, {sT1}")
        a(f"v_lshrrev_b32 {t0}, 3, {vL}"); a(f"v_mul_u32_u24 {t0}, 896, {t0}"); a(f"v_and_b32 {t2}, 7, {vL}"); a(f"v_lshl_add_u32 {vWo}, {t2}, 4, {t0}")
        a(f"v_and_b32 {t0}, 16, {vL}"); a(f"v_lshlrev_b32 {t0}, 1, {t0}"); a(f"v_xor_b32 {vWo}, {t0}, {vWo}"); a(f"v_xor_b32 {vWo2}, 64, {vWo}")
        a(f"v_mov_b32 v18, {total - wg}")
    if tlb:
        a(f"s_lshl4_add_u32 s40, {sB}, {sH}"); a("s_lshl_b32 s40, s40, 21")
        a(f"s_andn2_b32 s41, {sR}, 7"); a(f"s_add_u32 s41, s41, {sX}"); a(f"s_xor_b32 s41, s41, {bx}"); a("s_lshl_b32 s41, s41, 21"); a("s_add_u32 s41, s41, 0x180000")
        a(f"s_mul_i32 s42, {sX}, {512*896}")
        for i, (pp, o) in enumerate(((12, 42), (22, 42), (16, 41), (18, 41), (8, 40))):
            a(f"s_add_u32 s{pp}, s{pp}, s{o}"); a(f"s_addc_u32 s{pp+1}, s{pp+1}, 0")
            a(f"s_load_dword s{48+i}, s[{pp}:{pp+1}], 0")
    a(f"v_and_b32 {vA4}, 3, {vL}"); a(f"v_lshlrev_b32 {vA4}, 2, {vA4}")
    a(f"v_mov_b32 {vPp}, 0"); a(f"v_mov_b32 {vTh}, {int(th0 + 0.5)}"); a(f"v_mov_b32 {vB}, 0")
    a(f"ds_write_b32 {vA4}, {vPp} offset:{L_PRG}"); a(f"ds_write_b32 {vA4}, {vTh} offset:{L_TH}")
    gc_ = gI // 2 if gc is None else gc
    a(f"s_mul_i32 {sG}, {sX}, 4352"); a(f"s_add_u32 {sG}, {sG}, {WS_GC}")
    a(f"v_lshlrev_b32 {vBo}, 2, {vL}")
    a(f"s_lshl2_add_u32 {sOff}, {sR}, {sG}")
    a(f"s_add_u32 {sGa}, {sG}, {8*4352}")
    a(f"s_mul_i32 {sTg}, {sX}, {gI // 8}"); a(f"s_add_u32 {sTg}, {sTg}, {gI // 8}")
    a(f"s_cmp_eq_u32 {sR}, {28 if gx else 99}"); a(f"s_cselect_b32 {sTg}, {sTg}, -1")
    sOut = sC
    a(f"s_and_b32 {sT0}, {sX}, 3"); a(f"s_mul_i32 {sOut}, {sT0}, 1792"); a(f"s_lshr_b32 {sT0}, {sX}, 2"); a(f"s_mul_i32 {sT0}, {sT0}, 896")
    a(f"s_add_u32 {sOut}, {sOut}, {sT0}"); a(f"s_lshl_b32 {sT0}, {sR}, 5"); a(f"s_add_u32 {sOut}, {sOut}, {sT0}")
    a(f"v_lshrrev_b32 {t1}, 1, {vg}"); a(f"v_and_b32 {t2}, 1, {vg}"); a(f"v_lshl_add_u32 {t1}, {t2}, 1, {t1}")
    a(f"v_and_b32 {t2}, 3, {vn}"); a(f"v_lshl_add_u32 {t1}, {t2}, 2, {t1}"); a(f"v_lshlrev_b32 {t3}, 1, {t1}")
    a("s_waitcnt lgkmcnt(0)")
    a("s_barrier")
    a(f"ds_read_b32 v10, {vB} offset:{L_LOC}"); a(f"ds_read_b32 v11, {vB} offset:{L_CH}")
    a("s_waitcnt lgkmcnt(0)")
    a(f"v_readfirstlane_b32 {sLocal}, v10"); a(f"v_readfirstlane_b32 {sCh}, v11")
    a(f"s_lshr_b32 {sT0}, {sCh}, {sX}"); a(f"s_and_b32 {sT0}, {sT0}, 1"); a(f"s_lshl_b32 {sT0}, {sT0}, 13"); a(f"s_add_u32 {sIn}, {sIn}, {sT0}")
    if stamps:
        a(f"v_writelane_b32 v255, {sCh}, 30"); a(f"s_getreg_b32 {sT0}, hwreg(HW_REG_HW_ID)"); a(f"v_writelane_b32 v255, {sT0}, 27")
    a(f"s_cmp_lg_u32 {sLocal}, 1"); a("s_cbranch_scc1 L_gend")
    poll("L_g0", lambda: a(f"ds_read_b32 {vPw}, {vA4} offset:{L_PRG}"), lambda: a(f"v_cmp_eq_u32 vcc, 0, {vPw}"), sleep=4)
    if xm:
        for i in range(1, 8):
            a(f"s_add_u32 {sT0}, {sX}, {i}"); a(f"s_and_b32 {sT0}, {sT0}, 7")
            a(f"s_mul_i32 s{31+i}, {sT0}, 4352"); a(f"s_add_u32 s{31+i}, s{31+i}, {WS_GC + 8*4352}")
            a(f"s_mul_i32 s{47+i}, {sT0}, {gI // 8}"); a(f"s_sub_u32 s{47+i}, s{47+i}, {gI - gI // 8}")
        a(f"s_sub_u32 {sPo}, {sTg}, {gI}")
    a(f"s_mov_b32 {sSpin}, {spin}")
    a("L_gloop:")
    a(f"ds_read_b32 {vPw}, {vA4} offset:{L_PRG}")
    a(f"s_sub_u32 {sSpin}, {sSpin}, 1"); a(f"s_cmp_eq_u32 {sSpin}, 0"); a("s_cbranch_scc1 L_gend")
    a("s_waitcnt lgkmcnt(0)")
    a(f"v_add_u32_dpp {vP}, {vPw}, {vPw} {QP1}"); a(f"v_add_u32_dpp {vP}, {vP}, {vP} {QP2}")
    a("s_mov_b64 exec, 1")
    a(f"buffer_store_dword {vP}, off, {WS}, {sOff}")
    a(f"v_cmp_le_u32 vcc, {total - 4 * gstop}, {vP}")
    a("s_cbranch_vccnz L_gend")
    a("s_mov_b32 exec_lo, -1"); a("s_mov_b32 exec_hi, 1")
    a(f"buffer_load_dword {vB}, {vBo}, {WS}, {sG} offen sc1")
    a("s_mov_b64 exec, -1")
    if xm:
        a(f"s_cmp_eq_u32 {sTg}, -1"); a("s_cbranch_scc1 L_gnl")
        for i in range(1, 8): a(f"s_load_dwordx2 s[{4+2*i}:{5+2*i}], s[28:29], s{31+i} glc")
        a("L_gnl:")
    a(f"v_cvt_f32_u32 {t0}, {vP}")
    a(f"v_mul_f32 {t0}, {f2u(-gain)}, {t0}"); a(f"v_add_f32 {t0}, {f2u(th0 + 0.5 + gain * c0)}, {t0}")
    if gw:
        a(f"v_lshlrev_b32 {vPw}, 2, {vPw}"); a(f"v_sub_u32 {vPw}, {vP}, {vPw}"); a(f"v_cvt_f32_i32 {vPw}, {vPw}")
        a(f"v_mul_f32 {vPw}, {f2u(gw)}, {vPw}"); a(f"v_add_f32 {t0}, {t0}, {vPw}")
    a("s_waitcnt vmcnt(0)")
    a(f"v_add_u32_dpp {t1}, {vB}, {vB} row_ror:8 {FULL}")
    a(f"v_readlane_b32 {sT3}, {vB}, 32")
    for sft in (4, 2, 1): a(f"v_add_u32_dpp {t1}, {t1}, {t1} row_ror:{sft} {FULL}")
    a(f"v_readlane_b32 {sT0}, {t1}, 0"); a(f"v_readlane_b32 {sT1}, {t1}, 16")
    a(f"v_cvt_f32_i32 v11, {sT3}")
    a(f"s_add_u32 {sT2}, {sT0}, {sT1}")
    a(f"v_cvt_f32_u32 v10, {sT2}")
    if wg is not None:
        a(f"v_cvt_f32_u32 v17, {vP}"); a(f"v_mul_f32 v18, {f2u(-wk / 32)}, v10"); a(f"v_mul_f32 v19, {f2u(-wk / 256)}, v11")
        a(f"v_mul_f32 v17, {f2u(wk)}, v17"); a("v_add_f32 v18, v18, v19"); a("v_add_f32 v18, v18, v17")
        a(f"v_add_f32 v18, {f2u(total - wg - wk * c0)}, v18"); a("v_cvt_i32_f32 v18, v18"); a(f"v_min_i32 v18, {total + wcap}, v18")
    a(f"v_mul_f32 v10, {f2u(gain / 32)}, v10"); a(f"v_mul_f32 v11, {f2u(gain * gx / 256)}, v11")
    a(f"v_add_f32 {t0}, {t0}, v10"); a(f"v_add_f32 {t0}, {t0}, v11")
    if kup:
        a(f"v_add_f32 v10, {f2u(-(th0 + kat))}, {t0}"); a("v_max_f32 v10, 0, v10"); a(f"v_mul_f32 v10, {f2u(kup)}, v10"); a(f"v_add_f32 {t0}, {t0}, v10")
    a(f"v_cvt_i32_f32 {vTh}, {t0}")
    a(f"v_med3_i32 {vTh}, {vTh}, {thmin}, {thmax}")
    a(f"ds_write_b32 {vA4}, {vTh} offset:{L_TH}")
    if stamps: a(f"v_add_u32 v254, v254, {vTh}"); a("v_add_u32 v253, 1, v253")
    if xm:
        a(f"s_cmp_eq_u32 {sTg}, -1"); a("s_cbranch_scc1 L_gloop")
        a(f"s_sub_u32 {sT0}, {gc_}, {sT2}"); a(f"s_lshl3_add_u32 {sT0}, {sT0}, {sPo}")
        a("s_waitcnt lgkmcnt(0)")
        for i in range(1, 8):
            a(f"s_xor_b64 s[{4+2*i}:{5+2*i}], s[{4+2*i}:{5+2*i}], s[56:57]"); a(f"s_lshr_b64 s[4:5], s[{4+2*i}:{5+2*i}], 14")
            a(f"s_cselect_b32 s{4+2*i}, s{47+i}, s{4+2*i}"); a(f"s_add_u32 {sT0}, {sT0}, s{4+2*i}")
        a(f"v_mov_b32 v10, {sT0}")
        a("s_mov_b64 exec, 1")
        a(f"buffer_store_dword v10, off, {WS}, {sG} offset:128")
        a("s_mov_b64 exec, -1")
        a(f"s_cmp_lt_u32 {sT2}, {sTg}"); a("s_cbranch_scc1 L_gloop")
        a(f"s_xor_b32 {sT0}, {sT2}, s56")
        for i in range(4): a(f"v_mov_b32 v{12+i}, {'s57' if i & 1 else sT0}")
        a("s_mov_b64 exec, 0xff")
        a(f"buffer_store_dwordx4 v[12:15], {vL16}, {WS}, {sGa} offen sc1"); a("s_mov_b64 exec, -1")
        a(f"s_add_u32 {sTg}, {sTg}, {gI}"); a(f"s_mov_b32 {sPo}, {sT2}")
        a("s_branch L_gloop")
    else:
        a(f"s_cmp_lt_u32 {sT2}, {sTg}"); a("s_cbranch_scc1 L_gloop")
        a(f"s_xor_b32 {sT0}, {sT2}, s56")
        for i in range(4): a(f"v_mov_b32 v{12+i}, {'s57' if i & 1 else sT0}")
        a("s_mov_b64 exec, 0xff")
        a(f"buffer_store_dwordx4 v[12:15], {vL16}, {WS}, {sGa} offen sc1"); a("s_mov_b64 exec, -1")
        for i in range(1, 8):
            a(f"s_add_u32 {sT0}, {sX}, {i}"); a(f"s_and_b32 {sT0}, {sT0}, 7"); a(f"s_mul_i32 {sT0}, {sT0}, 4352"); a(f"s_add_u32 {sT0}, {sT0}, {WS_GC + 8*4352}")
            a(f"s_load_dwordx2 s[{4+2*i}:{5+2*i}], s[28:29], {sT0} glc")
        a(f"s_add_u32 {sTg}, {sTg}, {gI}")
        a(f"s_sub_u32 {sT0}, {gc_}, {sT2}"); a(f"s_mul_i32 {sT0}, {sT0}, 7")
        a("s_waitcnt lgkmcnt(0)")
        for i in range(1, 8):
            a(f"s_xor_b64 s[{4+2*i}:{5+2*i}], s[{4+2*i}:{5+2*i}], s[56:57]"); a(f"s_lshr_b64 s[4:5], s[{4+2*i}:{5+2*i}], 14")
            a(f"s_cselect_b32 s{4+2*i}, 0, s{4+2*i}"); a(f"s_add_u32 {sT0}, {sT0}, s{4+2*i}")
        a(f"v_mov_b32 v10, {sT0}")
        a("s_mov_b64 exec, 1")
        a(f"buffer_store_dword v10, off, {WS}, {sG} offset:128")
        a("s_mov_b64 exec, -1")
        a("s_branch L_gloop")
    a("L_gend:")
    a("s_mov_b64 exec, -1")
    if stamps:
        a(f"v_readfirstlane_b32 {sT0}, v254"); a(f"v_readfirstlane_b32 {sT1}, v253"); a("s_nop 3")
        a(f"v_writelane_b32 v255, {sT0}, 28"); a(f"v_writelane_b32 v255, {sT1}, 29")
    stamp("gov_end")
    if wg is not None:
        a(f"s_cmp_ge_u32 {sR}, 28"); a("s_cbranch_scc1 L_gnowo")
        def pchk():
            a(f"v_add_u32_dpp {vP}, {vPw}, {vPw} {QP1}"); a(f"v_add_u32_dpp {vP}, {vP}, {vP} {QP2}"); a(f"v_cmp_gt_i32 vcc, v18, {vP}")
        srd(4, "s90", "s91", 0 if nowo & 1 else 0x380000)
        poll("L_gw", lambda: a(f"ds_read_b32 {vPw}, {vA4} offset:{L_PRG}"), pchk)
        a(f"s_mov_b32 m0, {L_WOA}")
        for j in range(32):
            a(f"s_add_u32 {sT0}, s70, {8*896*(j & 15)}")
            a(f"buffer_load_dwordx4 {(vWo, vWo2)[j & 1]}, {('s[4:7]', 's[24:27]')[j >> 4]}, {sT0} offen {pol} lds")
            if j < 31: a("s_add_u32 m0, m0, 1024")
        a("L_gnowo:")
        stamp("wo_issued")
    a(f"s_cmp_ge_u32 {sR}, 28")
    for i in range(4 if g2 else 3):
        if wg is not None and i == (2 if g2 else 1): a("s_waitcnt vmcnt(0)")
        a("s_barrier")
    a("s_cbranch_scc1 L_g_fin")
    F = 64
    def gY():
        for k in range(2): a(f"buffer_load_dwordx4 {vr(F+4*k)}, {vL16}, {WS}, {sIn} offen offset:{1024*k} sc1")
    def y_chk():
        for i in range(8): a(f"v_xor_b32 v{F+i}, {YT[i & 3]}, v{F+i}")
        a(f"v_or3_b32 {t0}, v{F}, v{F+1}, v{F+2}"); a(f"v_or3_b32 {t2}, v{F+3}, v{F+4}, v{F+5}")
        a(f"v_or3_b32 {t0}, {t0}, v{F+6}, v{F+7}"); a(f"v_or_b32 {t0}, {t0}, {t2}")
        a(f"v_and_b32 {t0}, 0xfff, {t0}"); a(f"v_cmp_ne_u32 vcc, 0, {t0}")
    if fat:
        def gYa():
            for i in range(8): a(f"v_mov_b32 v{F+i}, 0")
            for k in range(4): a(f"buffer_atomic_or_x2 {vr(F+2*k,2)}, {vL16}, {WS}, {sIn} offen offset:{1024*(k>>1) + 8*(k&1)} sc0 sc1")
        gY(); a("s_waitcnt vmcnt(0)")
        poll("L_f", gYa, y_chk, masked=True, first_issued=True)
    else:
        poll("L_f", gY, y_chk, masked=True)
    for e in range(4): a(f"v_add_f32 v{F+e}, v{F+e}, v{F+4+e}")
    a(f"v_permlane32_swap_b32 v{F}, v{F+1}"); a(f"v_permlane32_swap_b32 v{F+2}, v{F+3}")
    a(f"v_add_f32 v{F}, v{F}, v{F+1}"); a(f"v_add_f32 v{F+2}, v{F+2}, v{F+3}")
    a(f"v_permlane16_swap_b32 v{F}, v{F+2}")
    a(f"v_add_f32 v{F}, v{F}, v{F+2}")
    red("v_add_f32", f"v{F}", (4, 8))
    a(f"v_cvt_pk_bf16_f32 v{F}, v{F}, v{F}")
    a("s_mov_b32 exec_lo, 0x000f000f"); a("s_mov_b32 exec_hi, 0x000f000f")
    a(f"buffer_store_short v{F}, {t3}, {OUT}, {sOut} offen")
    a(f"s_cmp_eq_u32 {sWG}, 0"); a("s_cbranch_scc0 L_g_fin")
    a("v_mov_b32 v8, s56"); a("v_mov_b32 v9, s57"); a(f"s_mov_b32 {sT0}, {WS_EP}")
    a("s_mov_b64 exec, 1")
    a(f"buffer_store_dwordx2 v[8:9], off, {WS}, {sT0}{' sc1' if seedsc else ''}")
    a("L_g_fin:")
    finish()

    cur[0] = "h"
    a("L_helper:")
    a(f"s_cmp_eq_u32 {sW}, 5"); a("s_cbranch_scc1 L_gov")
    def code_pull(tagl, reg, st):
        a("s_getpc_b64 s[30:31]")
        a(f"{tagl}:")
        a(f"s_sub_u32 s30, s30, {tagl}-{NAME}_kernel"); a("s_subb_u32 s31, s31, 0")
        a(f"s_lshl_b32 {sT1}, {sR}, {st}")
        a(f"v_lshl_add_u32 {t0}, {vL}, {st + 5}, {sT1}")
        a(f"v_min_u32 {t0}, L_end-{NAME}_kernel, {t0}")
        a(f"s_mov_b64 exec, {0x1f if st == 7 else 0xfff}")
        a(f"global_load_dword {reg}, {t0}, s[30:31]")
        a("s_mov_b64 exec, -1")
    if pf == 1: code_pull("L_pc", "v2", 7)
    if pf == 2: code_pull("L_pc", "v2", 6)
    XOP = 64; WOP = 96; QD = 208
    vXo = "v5"; vL8 = "v7"; vQt = "v17"
    a(f"v_lshrrev_b32 {t3}, 3, {vL}"); a(f"v_and_b32 {t2}, 7, {vL}"); a(f"v_lshlrev_b32 {t2}, 4, {t2}")
    a(f"v_lshl_add_u32 {vKo}, {t3}, 13, {t2}")
    a(f"v_and_b32 {vXo}, 3, {vL}"); a(f"v_mul_u32_u24 {vXo}, 896, {vXo}"); a(f"v_lshl_add_u32 {vXo}, {vg}, 4, {vXo}")
    a(f"s_bfe_u32 s44, {sR}, 0x10003")
    a(f"s_add_u32 s45, {sR}, {cbd}"); a("s_and_b32 s45, s45, 7"); a(f"s_lshl3_add_u32 s45, {sX}, s45")
    a(f"s_mul_i32 s46, {sT0}, {8*bx}"); a("s_xor_b32 s47, s45, s46")
    a(f"s_mul_i32 s46, s44, {224*8192}"); a("s_lshl_b32 s47, s47, 7"); a(f"s_add_u32 {sOff}, s46, s47")
    a(f"s_mul_i32 {sT2}, s44, 448")
    srd(32, None, None, 0 if nowo & 4 else 0x380000); srd(36, None, None, 0 if nox else 3584)
    a(f"s_mov_b32 m0, {L_WQ}")
    a(f"s_cmp_eq_u32 {sT0}, 0")
    a("s_waitcnt lgkmcnt(0)")
    a("s_cselect_b32 s32, s10, s20"); a("s_cselect_b32 s33, s11, s21")
    a("s_cselect_b32 s36, s4, s14"); a("s_cselect_b32 s37, s5, s15")
    if qfake:
        krot = krp = 0
        a(f"v_lshrrev_b32 {t0}, {3 + qfake}, {vL}"); a(f"v_and_b32 {t1}, {(8 << qfake) - 1}, {vL}"); a(f"v_lshlrev_b32 {t1}, 4, {t1}"); a(f"v_lshl_add_u32 {vKo}, {t0}, 13, {t1}")
        a(f"s_and_b32 s40, {sR}, {(8 >> qfake) - 1}"); a(f"s_lshl_b32 s40, s40, {7 + qfake}"); a(f"s_lshl_b32 s41, {sX}, 10"); a("s_add_u32 s40, s40, s41")
        a(f"s_and_b32 s41, {sR}, 15"); a(f"s_lshr_b32 s41, s41, {3 - qfake}"); a(f"s_mul_i32 s41, s41, {(224 >> qfake) * 8192}"); a(f"s_add_u32 {sOff}, s40, s41")
    tag_load()
    idk = []
    if wt is not None:
        a(f"v_lshlrev_b32 {t0}, 13, {t3}"); a(f"v_lshl_add_u32 {t0}, {t2}, 3, {t0}")
        a(f"s_and_b32 s40, {sR}, 15"); a(f"s_mul_i32 s40, s40, {28*8192}"); a(f"s_lshl_b32 s41, {sX}, 10"); a("s_add_u32 s40, s40, s41")
        for i in range(4):
            if i == 3: a("s_mov_b32 exec_hi, 0")
            a(f"buffer_load_dword v{8+i}, {t0}, {WQ}, s40 offen {wt}")
            if i < 3: a("s_add_u32 s40, s40, 65536")
        a("s_mov_b32 exec_hi, -1")
        if wtw: a("s_waitcnt vmcnt(0)")
        stamp("touched")
    if krot or krp:
        a(f"s_mul_i32 s40, s44, {krot}"); a(f"s_mul_i32 s41, {sT0}, {krp}"); a("s_add_u32 s40, s40, s41")
        a("s_cmp_ge_u32 s40, 7"); a("s_cselect_b32 s41, 7, 0"); a("s_sub_u32 s40, s40, s41")
        a("s_lshl_b32 s41, s40, 18"); a(f"s_add_u32 {sOff}, {sOff}, s41"); a("s_lshl_b32 s41, s40, 6"); a(f"s_add_u32 {sT2}, {sT2}, s41")
    for k in range(7):
        a(f"buffer_load_dwordx4 {vr(XOP+4*k)}, {vXo}, {XS}, {sT2} offen offset:{0 if krot or krp else 64*k}")
        if wqt and k >= wqt: a.wait_vm(idk[k - wqt])
        for j in range(4):
            r = a(f"buffer_load_dwordx4 {vKo}, {WQ}, {sOff} offen {pol} lds")
            if k < 6 or j < 3:
                a("s_add_u32 m0, m0, 1024"); a(f"s_add_u32 {sOff}, {sOff}, {65536 >> qfake}")
        if (krot or krp) and k < 6:
            a(f"s_cmp_eq_u32 s40, {6 - k}"); a(f"s_cselect_b32 s41, {7 << 18}, 0"); a(f"s_cselect_b32 s42, {-6 << 6}, 64")
            a(f"s_sub_u32 {sOff}, {sOff}, s41"); a(f"s_add_i32 {sT2}, {sT2}, s42")
        idk.append(r)
    stamp("wq_issued")
    sQs = "s64"; sMc = "s48"; sPa = "s49"; sPb = "s50"; sBz = "s51"; sRd = "s69"; sFl = "s70"
    a(f"s_lshl1_add_u32 {sQs}, {sT0}, s44"); a(f"s_lshl_b32 {sQs}, {sQs}, 16"); a("s_lshl_b32 s46, s45, 10"); a(f"s_add_u32 {sQs}, {sQs}, s46")
    a(f"s_lshl3_add_u32 {sMc}, {sT0}, {sX}"); a(f"s_and_b32 {sT3}, {sR}, 15"); a(f"s_lshl4_add_u32 {sMc}, {sMc}, {sT3}")
    a(f"s_lshl_b32 {sMc}, {sMc}, 7"); a(f"s_add_u32 {sMc}, {sMc}, {WS_ML}")
    srd(60, "s28", "s29", WS_END)
    unit(1); unit_v()
    a(f"s_lshl_b32 {sRecA}, {sH}, 14"); a(f"s_add_u32 {sRecA}, {sRecA}, {WS_PO}")
    a(f"s_lshl_b32 {sRecB}, {sX}, 15"); a(f"s_add_u32 {sRecB}, {sRecB}, {WS_PO + 16*16384}")
    a(f"s_lshl_b32 {sPa}, {sT3}, 9"); a(f"s_add_u32 {sPa}, {sPa}, {sRecA}")
    a(f"s_lshl_b32 {sPb}, {sR}, 9"); a(f"s_add_u32 {sPb}, {sPb}, {sRecB}")
    a(f"v_and_b32 {t0}, 31, {vL}"); a(f"v_lshlrev_b32 {t0}, 4, {t0}"); a(f"v_lshrrev_b32 {t1}, 5, {vL}"); a(f"v_lshl_add_u32 v18, {t1}, 14, {t0}")
    a(f"s_lshl4_add_u32 {sRecA}, {sT3}, {sRecA}")
    a(f"s_lshr_b32 {sT0}, {sR}, 3"); a(f"s_and_b32 {sT1}, {sR}, 3"); a(f"s_lshl2_add_u32 {sT0}, {sT0}, {sT1}"); a(f"s_lshl4_add_u32 {sRecB}, {sT0}, {sRecB}")
    a(f"s_bfe_u32 {sT0}, {sR}, 0x10002"); a(f"s_lshl_b32 {sT0}, {sT0}, 13"); a(f"s_add_u32 {sRecB}, {sRecB}, {sT0}")
    a(f"v_lshrrev_b32 {t0}, 1, {vL}"); a(f"v_lshlrev_b32 {t0}, 8, {t0}"); a(f"v_and_b32 {t1}, 1, {vL}"); a(f"v_lshl_add_u32 {vPa}, {t1}, 3, {t0}")
    a(f"s_mul_i32 {sRd}, {sX}, 4352"); a(f"s_add_u32 {sRd}, {sRd}, {WS_GC}")
    a(f"s_cmp_eq_u32 {sR}, 0"); a(f"s_cselect_b32 {sBz}, {sRd}, {OOB}")
    a(f"s_lshl_b32 {sFl}, {sX}, 12"); a(f"s_add_u32 {sFl}, {sFl}, {WS_FL}")
    for i in range(4): a(f"v_mov_b32 v{AOP+i}, -1")
    for i in range(4): a(f"v_mov_b32 v{ACC+i}, 0")
    a(f"v_lshlrev_b32 {vL16}, 4, {vL}"); a(f"v_lshlrev_b32 {vL8}, 3, {vL}"); a(f"v_lshlrev_b32 {t3}, 7, {vL}")
    a(f"v_and_b32 {t0}, 3, {vn}"); a(f"v_lshlrev_b32 {t0}, 8, {t0}"); a(f"v_lshrrev_b32 {t1}, 2, {vn}")
    a(f"v_lshl_add_u32 {t0}, {t1}, 6, {t0}"); a(f"v_lshl_add_u32 {vQt}, {vg}, 4, {t0}")
    def hello_ld(): a(f"buffer_load_dwordx2 v[12:13], {t3}, {WS}, {sFl} offen sc1")
    for k in range(8):
        if k < 7: a.wait_vm(idk[k])
        if k == hk:
            a("s_mov_b32 exec_hi, 0"); hello_ld(); a("s_mov_b32 exec_hi, -1")
        if k: a("s_waitcnt lgkmcnt(0)")
        if k < 7:
            for c in range(4):
                a(f"ds_read_b64_tr_b16 {vr(WOP+16*(k%3)+4*c,2)}, {vTr} offset:{L_WQ + k*4096 + 32*c}")
                a(f"ds_read_b64_tr_b16 {vr(WOP+16*(k%3)+4*c+2,2)}, {vTr} offset:{L_WQ + k*4096 + 32*c + 512}")
        if k:
            for c in range(4):
                a(f"v_mfma_f32_16x16x32_bf16 {vr(QD+4*c)}, {vr(WOP+16*((k-1)%3)+4*c)}, {vr(XOP+4*(k-1))}, {vr(QD+4*c) if k > 1 else 0}")
    tag_make()
    for c in range(1, 4):
        for e in range(4):
            a(f"v_mov_b32_dpp v{QD+e}, v{QD+4*c+e} quad_perm:[0,1,2,3] row_mask:0xf bank_mask:{1<<c}")
    a(f"ds_write_b128 {vQt}, {vr(QD)} offset:{L_PART}")
    a(f"ds_read_b128 {vr(QD)}, {vL16} offset:{L_PART}")
    stamp("q_done")
    a("s_waitcnt vmcnt(0) lgkmcnt(0)")
    a("s_mov_b32 exec_hi, 0")
    poll("L_fl", hello_ld, lambda: tag_chk([12]), sleep=16, masked=True, first_issued=True)
    a("v_cmp_ne_u32 vcc, s59, v13")
    a("s_cmp_eq_u32 vcc_lo, 0"); a(f"s_cselect_b32 {sLocal}, {2 if force_remote else 1}, 2")
    stamp("hello_seen")
    a("v_mov_b32 v8, s56"); a("v_mov_b32 v9, s59")
    a(f"s_lshl3_add_u32 {sT1}, {sR}, {sRd}")
    def first_stores(b):
        a(f"buffer_store_dwordx4 {vr(QD)}, {vL16}, {WS}, {sQs} offen{b}")
        a(f"buffer_store_dwordx4 {vr(AOP)}, v18, {WS}, {sPb} offen{b}")
        a("s_mov_b32 exec_hi, 0")
        a(f"buffer_store_dwordx4 {vr(AOP)}, v18, {WS}, {sPa} offen{b}")
        a("s_mov_b32 exec_lo, 0xffff")
        a(f"buffer_store_dwordx4 {vr(ACC)}, {vL16}, {WS}, {sBz} offen{b}")
        a("s_mov_b32 exec_lo, 0xff")
        a(f"buffer_store_dwordx4 {vr(AOP)}, {vL16}, {WS}, {sMc} offen{b}")
        a("s_mov_b32 exec_lo, 1")
        a("s_waitcnt vmcnt(0)")
        a(f"buffer_store_dwordx2 v[8:9], off, {WS}, {sT1} offset:256{b}")
    by_placement("first", first_stores)
    a("s_mov_b32 exec_lo, -1")
    stamp("ready")
    poll("L_rd", lambda: a(f"buffer_load_dwordx2 v[12:13], {vL8}, {WS}, {sRd} offen offset:256 sc1"), lambda: tag_chk([12]), sleep=hsleep, masked=True)
    stamp("go_seen")
    a(f"v_lshlrev_b32 {t0}, 4, {vn}"); a(f"v_lshl_add_u32 {t0}, {vg}, 10, {t0}")
    a(f"s_lshr_b32 {sT0}, {sR}, 3"); a(f"s_lshl_b32 {sT0}, {sT0}, 8"); a(f"s_lshl_b32 {sT1}, {sX}, 13"); a(f"s_add_u32 {sT0}, {sT0}, {sT1}")
    a(f"s_add_u32 {sT0}, {sT0}, 0x20000")
    a(f"s_lshl4_add_u32 {sT2}, {sH}, {sB}"); a(f"s_lshl_b32 {sT2}, {sT2}, 8")
    for u in (2, 0, 1):
        for kh in range(2):
            a(f"s_add_u32 {sT1}, {sT2 if u == 2 else sT0}, {kh * 0x10000 + (4096 if u == 1 else 0)}")
            a(f"buffer_load_dwordx4 {vr(64+8*u+4*kh)}, {t0}, {WS}, {sT1} offen sc1")
    a(f"s_mov_b32 {sT1}, {WS_CH}")
    a("s_mov_b64 exec, 0xff")
    poll("L_ch", lambda: a(f"buffer_load_dwordx2 v[12:13], {t3}, {WS}, {sT1} offen sc1"), lambda: tag_chk([12]), masked=True, sleep=1)
    for bit, dst in ((1, sT0), (2, sT1), (4, sCh)):
        a(f"v_and_b32 v12, {bit}, v13"); a("v_cmp_ne_u32 vcc, 0, v12"); a(f"s_and_b32 {dst}, vcc_lo, 0xff")
    a(f"s_bcnt1_i32_b32 {sT0}, {sT0}"); a(f"s_bcnt1_i32_b32 {sT1}, {sT1}")
    a(f"s_cmp_gt_u32 {sT1}, {sT0}"); a(f"s_cselect_b32 {sT0}, 0xff, 0"); a(f"s_xor_b32 {sCh}, {sCh}, {sT0}")
    a(f"v_mov_b32 {t0}, {L_LOC}"); a(f"v_mov_b32 {t1}, {sLocal}"); a(f"v_mov_b32 {t2}, {sCh}"); a(f"ds_write2_b32 {t0}, {t1}, {t2} offset0:0 offset1:1")
    for u in range(3):
        for e in range(4): a(f"v_add_f32 v{64+8*u+e}, v{64+8*u+e}, v{64+8*u+4+e}")
        for e in range(2): a(f"v_cvt_pk_bf16_f32 v{64+8*u+e}, v{64+8*u+2*e}, v{64+8*u+2*e+1}")
        a(f"ds_write_b64 {vL8}, {vr(64+8*u,2)} offset:{L_Q+512*u}")
    a("s_waitcnt lgkmcnt(0)")
    stamp("q_in_lds")
    a("s_barrier")
    a(f"v_mov_b32 {t3}, 0")
    if vt:
        a(f"s_lshl4_add_u32 s40, {sB}, {sH}"); a("s_lshl_b32 s40, s40, 21")
        a(f"s_andn2_b32 s41, {sR}, 7"); a(f"s_add_u32 s41, s41, {sX}"); a("s_lshl_b32 s41, s41, 21"); a("s_add_u32 s41, s41, 0x180000")
        for pp, o in ((16, "s41"), (18, "s41"), (8, "s40"), (12, sU), (22, sU)):
            a(f"s_add_u32 s{pp}, s{pp}, {o}"); a(f"s_addc_u32 s{pp+1}, s{pp+1}, 0")
        if vt > 1:
            a(f"s_mul_i32 {sT0}, {sR}, {vt - 1}")
            def vchk():
                a("v_add3_u32 v8, v8, v9, v10"); a("v_add_u32 v8, v8, v11"); a(f"v_cmp_ge_u32 vcc, {sT0}, v8")
            poll("L_vt", lambda: a(f"ds_read_b128 v[8:11], {t3} offset:{L_PRG}"), vchk, sleep=2)
        a("s_mov_b64 exec, 1")
        for i, pp in enumerate((16, 18, 8)): a(f"global_load_dword v{12+i}, {t3}, s[{pp}:{pp+1}] {pol}")
        if vtw:
            a(f"s_cmp_ge_u32 {sR}, 28"); a("s_cbranch_scc1 L_vt_nw")
            for i, pp in enumerate((12, 22)): a(f"global_load_dword v{20+i}, {t3}, s[{pp}:{pp+1}] {pol}")
            a("L_vt_nw:")
        a("s_mov_b64 exec, -1")
    def wait_progress(name, target, stag=0):
        a(f"s_and_b32 {sCnt}, {sR}, {stag}"); a(f"s_add_u32 {sCnt}, {sCnt}, {target}")
        def chk():
            a("v_min3_u32 v8, v8, v9, v10"); a("v_min_u32 v8, v8, v11"); a(f"v_cmp_gt_u32 vcc, {sCnt}, v8")
        poll(name, lambda: a(f"ds_read_b128 v[8:11], {t3} offset:{L_PRG}"), chk, sleep=8)
    if mlh:
        a("; ---- the waves' (max, sum) pairs go out: lanes 0-3, 4-7 B's heads, 8-11 A ----")
        a(f"s_lshl2_add_u32 {sT0}, {sH}, {sB}"); a(f"s_and_b32 {sT1}, {sR}, 3"); a(f"s_lshl3_add_u32 {sT0}, {sT0}, {sT1}")
        a(f"s_lshl_b32 {sT1}, {sX}, 6"); a(f"s_add_u32 {sT1}, {sT1}, {sR}"); a(f"s_add_u32 {sT1}, {sT1}, 512")
        a(f"v_lshrrev_b32 {t0}, 2, {vL}"); a(f"v_lshl_add_u32 {t0}, {t0}, 5, {sT1}"); a(f"v_mov_b32 {t1}, {sT0}")
        a(f"v_cmp_lt_u32 vcc, 7, {vL}"); a(f"v_cndmask_b32 {t0}, {t0}, {t1}, vcc")
        a(f"v_and_b32 {t1}, 3, {vL}"); a(f"v_lshl_add_u32 {t0}, {t0}, 2, {t1}"); a(f"v_lshlrev_b32 {X[0]}, 3, {t0}")
        a(f"s_mov_b32 {sT2}, {WS_ML}")
        wait_progress("L_w0", PB_ - 3)
        a(f"ds_read_b64 v[12:13], {vL8} offset:{L_ML}")
        a("s_waitcnt lgkmcnt(0)")
        a("v_min_u32 v12, -2, v12"); a("v_min_u32 v13, -2, v13")
        a("s_mov_b64 exec, 0xfff")
        by_placement("ml", lambda b: a(f"buffer_store_dwordx2 v[12:13], {X[0]}, {WS}, {sT2} offen{b}"))
        a("s_mov_b64 exec, -1")
    a(f"s_lshl2_add_u32 {sT0}, {sH}, {sB}"); a(f"s_lshl_b32 {sT0}, {sT0}, 8"); a(f"s_add_u32 {sT0}, {sT0}, {WS_ML}")
    a(f"s_lshr_b32 {sT1}, {sR}, 3"); a(f"s_lshl3_add_u32 {sT1}, {sX}, {sT1}"); a(f"s_lshl_b32 {sT1}, {sT1}, 8"); a(f"s_add_u32 {sT1}, {sT1}, {WS_ML + 512*32}")
    a(f"v_lshlrev_b32 {U[0]}, 3, {vn}")
    a(f"v_and_b32 {t0}, 31, {vL}"); a(f"v_lshlrev_b32 {t0}, 3, {t0}"); a(f"v_lshrrev_b32 {t1}, 5, {vL}"); a(f"v_lshl_add_u32 {U[1]}, {t1}, 10, {t0}")
    wait_progress("L_w1", PB_ + max(1, h1 // 4), st1)
    stamp("B_in_lds")
    def ml_loads():
        a(f"buffer_load_dwordx2 {vr(MLG,2)}, {U[0]}, {WS}, {sT0} offen sc1")
        a(f"buffer_load_dwordx2 {vr(MLG+2,2)}, {U[1]}, {WS}, {sT1} offen sc1")
    poll("L_ml", ml_loads, lambda: sentinel(range(MLG, MLG + 4)), sleep=4)
    MA, MB = V
    a(f"v_max_f32_dpp {MA}, v{MLG}, v{MLG} row_ror:8 {FULL}"); a(f"v_max_f32_dpp {MB}, v{MLG+2}, v{MLG+2} row_ror:8 {FULL}")
    for sft in (4, 2, 1):
        a(f"v_max_f32_dpp {MA}, {MA}, {MA} row_ror:{sft} {FULL}"); a(f"v_max_f32_dpp {MB}, {MB}, {MB} row_ror:{sft} {FULL}")
    red("v_max_f32", MB, (16,))
    a(f"v_sub_f32 v{MLG}, v{MLG}, {MA}"); a(f"v_sub_f32 v{MLG+2}, v{MLG+2}, {MB}")
    a(f"v_exp_f32 v{MLG}, v{MLG}"); a(f"v_exp_f32 v{MLG+2}, v{MLG+2}")
    a(f"v_mul_f32 {MA}, v{MLG}, v{MLG+1}"); a(f"v_mul_f32 {MB}, v{MLG+2}, v{MLG+3}")
    for sft in (8, 4, 2, 1):
        a(f"v_add_f32_dpp {MA}, {MA}, {MA} row_ror:{sft} {FULL}"); a(f"v_add_f32_dpp {MB}, {MB}, {MB} row_ror:{sft} {FULL}")
    red("v_add_f32", MB, (16,))
    a(f"v_rcp_f32 {MA}, {MA}"); a(f"v_rcp_f32 {MB}, {MB}")
    a(f"v_mul_f32 {MA}, v{MLG}, {MA}"); a(f"v_mul_f32 {MB}, v{MLG+2}, {MB}")
    SF = 4
    a(f"s_and_b32 {sT0}, {sR}, 7"); a(f"s_lshl_b32 {sT0}, {sT0}, 2"); a(f"s_and_b32 {sT1}, {sT0}, 15")
    for u in range(3):
        for w in range(4):
            a(f"s_add_u32 {sT2}, {sT1 if u == 2 else sT0}, {w + (32 if u == 1 else 0)}")
            a(f"v_readlane_b32 s{SF+4*u+w}, {MA if u == 2 else MB}, {sT2}")
    a("; ---- B: sum the waves, publish, gather the group's shares, sum them; then A's share at the end ----")
    CB = 184
    def combine(u):
        for w in range(4): a(f"ds_read_b128 {vr(CB+4*w)}, {vL16} offset:{L_PART + 4096*u + 1024*w}")
        for w in range(4):
            a(f"s_waitcnt lgkmcnt({0 if stamps else 3 - w})")
            for e in range(4):
                if w: a(f"v_fmac_f32 v{CB+e}, s{SF+4*u+w}, v{CB+4*w+e}")
                else: a(f"v_mul_f32 v{CB+e}, s{SF+4*u}, v{CB+e}")
        for e in range(2): a(f"v_cvt_pk_bf16_f32 v{CB+e}, v{CB+2*e}, v{CB+2*e+1}")
        for e in range(2): a(f"v_min_u32 v{CB+16+2*u+e}, -2, v{CB+e}")
    def publish(u, so):
        by_placement(f"pub{u}", lambda b: a(f"buffer_store_dwordx2 {vr(CB+16+2*u,2)}, {vPa}, {WS}, {so} offen{b}"), have_scc=True)
    a(f"s_add_u32 {sT0}, {sRecB}, 16384")
    a(f"s_cmp_eq_u32 {sLocal}, 1")
    for u in range(2):
        combine(u)
        if not nob & 1: publish(u, (sRecB, sT0)[u])
    a(f"s_cmp_ge_u32 {sR}, 28"); a("s_cbranch_scc1 L_h_nos2")
    GB = 128; OB = 64
    a(f"s_add_u32 {sT0}, {sG}, 8192")
    if h2: wait_progress("L_w2", PB_ + h2 // 4, st2)
    def gB():
        for st in range(2):
            for k in range(4): a(f"buffer_load_dwordx4 {vr(GB+16*st+4*k)}, {vGo}, {WS}, {(sG, sT0)[st]} offen offset:{1024*k} sc1")
    if not nob: poll("L_s2b", gB, lambda: sentinel(range(GB, GB + 32)), sleep=16, masked=True)
    for i in range(16):
        a(f"v_lshlrev_b32 v{160+i}, 16, v{GB+i}"); a(f"v_lshlrev_b32 {t0}, 16, v{GB+16+i}")
        a(f"v_and_b32 v{GB+i}, 0xffff0000, v{GB+i}"); a(f"v_and_b32 v{GB+16+i}, 0xffff0000, v{GB+16+i}")
        a(f"v_add_f32 v{160+i}, v{160+i}, {t0}"); a(f"v_add_f32 v{GB+i}, v{GB+i}, v{GB+16+i}")
    for qp in (QP1, QP2):
        for i in range(16):
            a(f"v_add_f32_dpp v{160+i}, v{160+i}, v{160+i} {qp}"); a(f"v_add_f32_dpp v{GB+i}, v{GB+i}, v{GB+i} {qp}")
    for i in range(16): a(f"v_cvt_pk_bf16_f32 v{GB+i}, v{160+i}, v{GB+i}")
    for k in range(4): a(f"ds_write_b128 {vL16}, {vr(GB+4*k)} offset:{L_PART + 1024*k}")
    a("L_h_nos2:")
    stamp("oB_ready")
    a(f"s_cmp_eq_u32 {sLocal}, 1")
    a("s_waitcnt lgkmcnt(0)")
    a("s_barrier")
    combine(2); publish(2, sRecA)
    stamp("published")
    for i in range(3 if g2 else 2): a("s_barrier")
    if stamps or probe: finish()
    a("L_end:")
    a("s_endpgm")
    a.pad()
    global STAMP_NAMES
    STAMP_NAMES = {k: v[:-1] for k, v in names.items()}
    head = HEADER + f"; @launch grid=(256,1,1) block=({64*NW},1,1) lds={L_KB + NL * 4096}\n" + DOC
    head += f'.amdgcn_target "amdgcn-amd-amdhsa--gfx950"\n.text\n.globl {NAME}_kernel\n.p2align 8\n.type {NAME}_kernel,@function\n{NAME}_kernel:\n'
    nv = 256 if stamps else max(RING + 4 * RP, 224)
    assert not (stamps and RP > 47)
    tail = f'''.section .rodata,"a"
.p2align 6
.amdhsa_kernel {NAME}_kernel
  .amdhsa_next_free_vgpr {nv}
  .amdhsa_next_free_sgpr 102
  .amdhsa_accum_offset {nv}
  .amdhsa_group_segment_fixed_size 0
  .amdhsa_kernarg_size 104
  .amdhsa_user_sgpr_count 2
  .amdhsa_user_sgpr_kernarg_segment_ptr 1
  .amdhsa_system_sgpr_workgroup_id_x 1
  .amdhsa_float_denorm_mode_32 3
.end_amdhsa_kernel
'''
    return head + a.text() + tail

if __name__ == "__main__":
    kw = eval("dict(" + (sys.argv[2] if len(sys.argv) > 2 else "") + ")")
    open(sys.argv[1], "w").write(gen(**kw))
```

```python
import os, sys, struct
from asmlib import Asm
def f2u(x): return struct.unpack('<I', struct.pack('<f', x))[0]

NAME = "concat_heads__mha_block_cached__sliding_block_cached__decode"
_ref = "cdna_kernels/" + NAME + ".s.ref"
HEADER = open(_ref).read().split("; Override launch")[0] if os.path.exists(_ref) else ""

WS_QP = 0x0
WS_ML = 0x40000
WS_PO = 0x48000
WS_FL = 0xC8000
WS_GC = 0xD0000
WS_EP = 0xE4000
WS_CH = 0xE5000
WS_Y = 0x100000
YG = 7 * 16384
WS_END = WS_Y + 8 * YG
WS_STAMP = 0x400000
L_WQ = 0
L_WOA = 0
L_WOB = 16384
L_PART = 32768
L_Q = L_PART + 12288
L_CNT = L_Q + 1536
L_LOC = L_CNT + 4
L_CH = L_CNT + 8
L_PRG = L_CNT + 16
L_TH = L_CNT + 32
L_ML = L_CNT + 64
L_KB = L_CNT + 512
OOB = 0x40000000
TAGC = (0x9E3779B9, 0x7F4A7C15)
CSCALE = 0x3DB8AA3B
NW = 6


DOC = """;
; constant; the seed is moved on at the end) or by a sentinel written earlier in the same launch.  Every
;
"""

def brev(j, bits): return int(f"{j:0{bits}b}"[::-1], 2)
FULL = "row_mask:0xf bank_mask:0xf"
QP1 = "quad_perm:[1,0,3,2] " + FULL
QP2 = "quad_perm:[2,3,0,1] " + FULL

def gen(D=5, D0=5, ND0=12, RP=46, NL=12, ratio=6, stamps=False, fine=False, spin=1 << 19, pol="nt", force_remote=False,
        th0=4.15, thmin=3, gain=0.125, gw=0.08, gx=0.75, gstop=3, gI=1536, gc=1130, c0=6,
        rot=1, rotx=4, rotm=1, tlb=False, wod=2, wpos=0, g2=True, hk=6, hsleep=2, near=None, nrace=4, ml0=4, ml1=6, nowo=0, swz=True, vt=0, pf=2, bx=0, ila=2, ilb=1, rp=4, rph=0, lay=0, kv=0, wqt=0, pbar=4, xm=1, wg=None, wk=1.0, wcap=8, wfake=0, wbe=0, hb=None, rx=None, vtw=False, krot=5, krp=3, cbd=0, nox=False, wt=None, wtw=True, LG=16, thmax=12, nboost=24, xa=(), xb=(), kup=2.0, kat=2.0, probe=None, wth=None, wde=0, wpe=2, fat=False, wper=1, qfake=0, seedsc=True, pre=0, nomf=False, h1=24, h2=56, mlh=True, xl=True, lsc=True, st1=0, st2=0, nob=0, qp='sc1 nt', bp='sc1 nt', ap='sc1 nt', gp='sc1 nt', mp='sc1 nt', early=False, r2=10, yp='sc1', fp='sc1', lp='', xp=''):
    a = Asm()
    NTOT = 288; RT = RP + NL; thmax = min(thmax, LG - 2)
    sWG = "s2"; sW = "s3"
    KA, VA, KB, VB, WQ, XS, WS, OUT, WOA, WOB = (f"s[{i}:{i+3}]" for i in (32, 36, 40, 44, 32, 36, 60, 44, 48, 52))
    sLb = "s64"
    sX, sR, sH, sB = "s72", "s73", "s74", "s75"
    sOff = "s76"; sCnt = "s77"; sT0 = "s78"; sT1 = "s79"; sT2 = "s80"; sT3 = "s81"
    sRecA = "s82"; sRecB = "s83"; sG = "s84"; sY = "s85"; sU = "s86"; sC = "s87"; sSpin = "s88"; sLocal = "s89"
    sMk1 = "s[90:91]"; sMk0 = "s[92:93]"; sTh = "s94"; sRot = "s95"
    vL = "v0"; vKo = "v1"; vM = [f"v{i}" for i in range(2, 6)]
    QA = 6; QB = 14; SP = 30; AOP = 34; ACC = 38
    T = ["v46", "v47"]; U = ["v48", "v49"]; V = ["v50", "v51"]; X = ["v52", "v53"]
    t0, t1, t2, t3 = "v54", "v55", "v56", "v57"
    vm, vl, vg, vn = "v186", "v187", "v60", "v61"
    vmB, vlB = "v188", "v189"
    RING = 64
    OBS = 96; WTB = 112; ACCB = 128; SB = "v136"; vfA = "v137"; MLG = 138; WT = 144; G = 160
    vGo = "v176"; vYo = "v177"; vTr = "v178"; vPa = "v179"; vPrg = "v58"; vPrA = "v59"; vTH = "v62"; vWo = "v183"; vYm = "v206"; vYt = "v207"; vYb = "v184"; vWo2 = "v185"
    def slot(k): return RING + 4 * k
    def vr(i, n=4): return f"v[{i}:{i+n-1}]"
    names = {"s": [], "h": [], "g": []}
    cur = ["s"]
    def stamp(name):
        if probe and name == "start": a("s_memrealtime s[96:97]")
        if probe and len(probe) > 5 and (cur[0], name) == (probe[0], probe[5]): a("s_memrealtime s[26:27]"); a("s_waitcnt lgkmcnt(0)")
        if probe and (cur[0], name) == probe[:2]: a("s_memrealtime s[20:21]"); a("s_waitcnt lgkmcnt(0)")
        if not stamps: return
        nm = names[cur[0]]
        if nm:
            a("s_waitcnt lgkmcnt(0)")
            a(f"v_writelane_b32 v255, s96, {len(nm)-1}")
        nm.append(name)
        a("s_memrealtime s[96:97]")
    def finish():
        if probe and cur[0] == probe[0]:
            if probe[1] == "end": a("s_memrealtime s[20:21]"); a("s_waitcnt lgkmcnt(0)")
            a(f"s_sub_u32 s20, s20, {'s26' if len(probe) > 5 else 's96'}"); a(f"s_mul_i32 s20, s20, {probe[2]}"); a(f"s_add_u32 s20, s20, {probe[4]}")
            if probe[3] is not None: a(f"s_cmp_eq_u32 {sR if probe[3] < 32 else sWG}, {probe[3]}"); a("s_cselect_b32 s20, s20, 0")
            a("s_min_u32 s20, s20, 40000")
            a("L_probe:"); a("s_memrealtime s[22:23]"); a("s_waitcnt lgkmcnt(0)"); a("s_sub_u32 s22, s22, s96"); a("s_cmp_lt_u32 s22, s20"); a("s_cbranch_scc1 L_probe")
        if stamps:
            a("s_mov_b64 exec, -1")
            stamp("end"); a("s_waitcnt vmcnt(0)"); stamp("acked"); stamp("x")
            a("s_mov_b32 exec_hi, 0")
            a(f"s_mul_i32 {sT0}, {sWG}, {NW}"); a(f"s_add_u32 {sT0}, {sT0}, {sW}"); a(f"s_lshl_b32 {sT0}, {sT0}, 7"); a(f"s_add_u32 {sT0}, {sT0}, {WS_STAMP}")
            a(f"v_lshl_add_u32 {t0}, {vL}, 2, {sT0}")
            a(f"global_store_dword {t0}, v255, s[28:29]")
        a("s_endpgm")
    def srd(i, lo, hi, size):
        if lo is not None: a(f"s_mov_b32 s{i}, {lo}"); a(f"s_mov_b32 s{i+1}, {hi}")
        a(f"s_mov_b32 s{i+2}, {size}"); a(f"s_mov_b32 s{i+3}, 0x20000")
    def poll(name, loads, check, sleep=0, first_issued=False, masked=False):
        sv = a.vm_seq
        a(f"s_mov_b32 {sSpin}, {spin}")
        if first_issued: a(f"s_branch {name}_chk")
        a(f"{name}:")
        if sleep: a(f"s_sleep {sleep}")
        loads()
        a(f"s_sub_u32 {sSpin}, {sSpin}, 1"); a(f"s_cmp_eq_u32 {sSpin}, 0")
        a("s_waitcnt vmcnt(0) lgkmcnt(0)")
        a(f"s_cbranch_scc1 {name}_go")
        if first_issued: a(f"{name}_chk:")
        check()
        if masked:
            a("s_and_b64 exec, exec, vcc")
            a(f"s_cbranch_scc1 {name}")
        else:
            a(f"s_cbranch_vccnz {name}")
        a(f"{name}_go:")
        if masked: a("s_mov_b64 exec, -1")
        if first_issued: a.vm_seq = sv
    def by_placement(tag, emit, have_scc=False):
        if not have_scc: a(f"s_cmp_eq_u32 {sLocal}, 1")
        a(f"s_cbranch_scc1 L_{tag}_l")
        sv = a.vm_seq
        emit(" sc1"); a.vm_seq = sv
        a(f"s_branch L_{tag}_d")
        a(f"L_{tag}_l:")
        emit(" " + lp if lp else "")
        a(f"L_{tag}_d:")
    def sentinel(regs):
        regs = list(regs); accs = [t0, t2]
        a(f"v_max_u32 {t0}, v{regs[0]}, v{regs[1]}"); a(f"v_max_u32 {t2}, v{regs[2]}, v{regs[3]}")
        for i in range(4, len(regs), 2):
            c = accs[(i >> 1) & 1]
            a(f"v_max3_u32 {c}, {c}, v{regs[i]}, v{regs[i+1]}")
        a(f"v_max_u32 {t0}, {t0}, {t2}")
        a(f"v_cmp_eq_u32 vcc, -1, {t0}")
    def red(op, r, steps):
        for s in steps:
            if s in (16, 32):
                a(f"v_mov_b32 {t1}, {r}"); a(f"v_permlane{s}_swap_b32 {r}, {t1}"); a(f"{op} {r}, {r}, {t1}")
            elif s == "q1": a(f"{op}_dpp {r}, {r}, {r} {QP1}")
            elif s == "q2": a(f"{op}_dpp {r}, {r}, {r} {QP2}")
            else: a(f"{op}_dpp {r}, {r}, {r} row_ror:{s} {FULL}")
    def rnd(r):
        a(f"v_cvt_pk_bf16_f32 {r}, {r}, {r}"); a(f"v_and_b32 {r}, 0xffff0000, {r}")
    def unit(P):
        a(f"s_mul_i32 {sT0}, {sR}, 37"); a(f"s_lshr_b32 {sT0}, {sT0}, 8")
        a(f"s_mul_i32 {sT1}, {sT0}, 7"); a(f"s_sub_u32 {sT1}, {sR}, {sT1}")
        a(f"s_lshl_b32 {sT2}, {sX}, 2"); a(f"s_add_u32 {sT0}, {sT0}, {sT2}")
        a(f"s_mul_i32 {sU}, {sT0}, {128*896}"); a(f"s_lshl_b32 {sT2}, {sT1}, 7"); a(f"s_add_u32 {sU}, {sU}, {sT2}")
        a(f"s_lshr_b32 {sG}, {sT0}, 1"); a(f"s_lshl_b32 {sG}, {sG}, 14"); a(f"s_and_b32 {sT2}, {sT0}, 1"); a(f"s_lshl_b32 {sT2}, {sT2}, 12")
        a(f"s_add_u32 {sG}, {sG}, {sT2}"); a(f"s_add_u32 {sG}, {sG}, {WS_PO + P*512*512}")
        a(f"s_lshl_b32 {sY}, {sT1}, 14"); a(f"s_lshl_b32 {sT2}, {sT0}, 6"); a(f"s_add_u32 {sY}, {sY}, {sT2}")
        a(f"s_add_u32 {sY}, {sY}, {WS_Y}")
    def unit_v():
        a(f"v_lshrrev_b32 {t0}, 2, {vn}"); a(f"v_and_b32 {t2}, 3, {vn}")
        a(f"v_lshlrev_b32 {vGo}, 4, {vL}")
        a(f"v_lshl_add_u32 {vTr}, {vg}, 3, {t0}"); a(f"v_lshlrev_b32 {vTr}, 7, {vTr}"); a(f"v_lshl_add_u32 {vTr}, {t2}, 3, {vTr}")
        a(f"v_lshrrev_b32 {t0}, 3, {vL}"); a(f"v_mul_u32_u24 {t0}, 896, {t0}"); a(f"v_and_b32 {t2}, 7, {vL}"); a(f"v_lshl_add_u32 {vWo}, {t2}, 4, {t0}")
    sCh = "s71"
    def y_base(dst, P):
        a(f"v_add_u32 {t0}, {4*P}, {vg}"); a(f"v_mul_u32_u24 {dst}, {YG}, {t0}")
        a(f"v_bfe_u32 {t2}, {sCh}, {t0}, 1"); a(f"v_lshl_add_u32 {dst}, {t2}, 13, {dst}"); a(f"v_lshl_add_u32 {dst}, {vn}, 2, {dst}")
    def tag_load(): a(f"s_load_dwordx2 s[56:57], s[28:29], {WS_EP}")
    def tag_make():
        a(f"s_add_u32 s56, s56, {TAGC[0]}"); a(f"s_addc_u32 s57, s57, {TAGC[1]}"); a("s_lshr_b32 s58, s57, 4")
        a(f"s_getreg_b32 {sT0}, hwreg(HW_REG_XCC_ID, 0, 4)")
        a("s_lshl_b32 s59, s58, 4"); a(f"s_or_b32 s59, s59, {sT0}")
    def tag_chk(regs):
        for i, r in enumerate(regs):
            a(f"v_lshrrev_b32 {t1}, 4, v{r+1}"); a(f"v_xor_b32 {t1}, s58, {t1}"); a(f"v_xor_b32 {t2}, s56, v{r}")
            if i: a(f"v_or3_b32 {t0}, {t0}, {t1}, {t2}")
            else: a(f"v_or_b32 {t0}, {t1}, {t2}")
        a(f"v_cmp_ne_u32 vcc, 0, {t0}")

    YT = ["s65", "s66", "s67", "s68"]
    def ytag_make():
        a(f"s_and_b32 {YT[0]}, s56, 0xfff"); a(f"s_bfe_u32 {YT[1]}, s56, 0xc000c")
        a(f"s_and_b32 {YT[2]}, s58, 0xfff"); a(f"s_bfe_u32 {YT[3]}, s58, 0xc000c")
    def y_seal(r):
        a(f"v_add_u32 v{r}, 0x800, v{r}"); a(f"v_and_or_b32 v{r}, v{r}, {vYm}, {vYt}")

    a("s_load_dwordx16 s[4:19], s[0:1], 0")
    a("s_load_dwordx8 s[20:27], s[0:1], 64")
    a("s_load_dwordx2 s[28:29], s[0:1], 96")
    stamp("start"); names["h"] = list(names["s"]); names["g"] = list(names["s"])
    a(f"s_cmp_ge_u32 {sWG}, 256")
    a("s_cbranch_scc1 L_end")
    a(f"v_lshrrev_b32 {t2}, 6, v0")
    a(f"v_and_b32 {vL}, 63, v0")
    a(f"v_readfirstlane_b32 {sW}, {t2}")
    a(f"v_lshrrev_b32 {vg}, 4, {vL}")
    a(f"v_and_b32 {vn}, 15, {vL}")
    a(f"s_and_b32 {sX}, {sWG}, 7")
    a(f"s_lshr_b32 {sR}, {sWG}, 3")
    a(f"s_lshr_b32 {sT0}, {sWG}, 7")
    a(f"s_lshl1_add_u32 {sH}, {sX}, {sT0}")
    a(f"s_bfe_u32 {sB}, {sR}, 0x20002")
    a(f"s_cmp_ge_u32 {sW}, 4")
    a("s_cbranch_scc1 L_helper")

    a(f"v_lshl_add_u32 {vKo}, {t2}, 2, {vg}")
    a(f"v_lshl_add_u32 {vKo}, {vKo}, 5, {vn}")
    a(f"v_lshlrev_b32 {vKo}, 4, {vKo}")
    HA = 3 << (13 + ila); HB = 7 << (13 + ilb)
    a(f"s_lshl4_add_u32 s40, {sB}, {sH}"); a(f"s_and_b32 s41, {sR}, 3")
    if hb:
        HA = (1 << hb[0]) | (1 << hb[1])
        a("s_lshl_b32 s40, s40, 21"); a("s_and_b32 s42, s41, 1"); a(f"s_lshl_b32 s42, s42, {hb[0]}"); a("s_add_u32 s40, s40, s42")
        a("s_lshr_b32 s42, s41, 1"); a(f"s_lshl_b32 s42, s42, {hb[1]}"); a("s_add_u32 s40, s40, s42")
    elif ila == 6:
        a("s_lshl2_add_u32 s40, s40, s41"); a("s_lshl_b32 s40, s40, 19")
    else:
        a(f"s_lshl_b32 s40, s40, {8 - ila}"); a("s_add_u32 s40, s40, s41"); a(f"s_lshl_b32 s40, s40, {13 + ila}")
    NRA = 0x200000 - HA; MA_ = 0x1fffff & ~HA
    if lay:
        nb = 3 + lay
        HA = (((1 << nb) - 1) << (13 + ila)) | ((15 << 21) if lay == 1 else (7 << 22))
        NRA = 0x8000000 - HA; MA_ = 0x7ffffff & ~HA
        a(f"s_and_b32 s40, {sR}, {(1 << nb) - 1}"); a(f"s_lshl_b32 s40, s40, {13 + ila}")
        a(f"s_lshl_b32 s42, {sH if lay == 1 else sX}, {20 + lay}"); a("s_add_u32 s40, s40, s42")
    srd(32, None, None, NRA)
    cur_off = [0]
    sMask = "s70"; sHole = "s100"; sRa = "s101"
    rota = rp or rph
    if rx:
        a(f"s_mul_i32 {sRa}, {sB}, {rx[0]}"); a(f"s_mul_i32 {sOff}, {sH}, {rx[1]}"); a(f"s_add_u32 {sRa}, {sRa}, {sOff}")
        a(f"s_lshr_b32 {sRa}, {sRa}, {rx[2]}"); a(f"s_and_b32 {sRa}, {sRa}, 3"); a(f"s_lshl_b32 {sRa}, {sRa}, 19")
    elif rp << ila == 16 and not rph:
        a(f"s_lshl_b32 {sRa}, {sB}, 19")
    elif rota:
        a(f"s_mul_i32 {sRa}, {sB}, {rp}"); a(f"s_mul_i32 {sOff}, {sH}, {rph}"); a(f"s_add_u32 {sRa}, {sRa}, {sOff}")
        a(f"s_lshl_b32 {sRa}, {sRa}, {15 + ila}"); a(f"s_and_b32 {sRa}, {sRa}, 0x1fffff")
    a(f"s_mov_b32 {sOff}, {sRa if rota else 0}")
    sXo = "s4"; sXa = "s5"; sXb = "s10"; sEff = "s11"
    def xor_make(dst, spec):
        a(f"s_mov_b32 {dst}, 0")
        for bit, src in spec:
            a(f"s_bitcmp1_b32 {sWG}, {src}"); a(f"s_cselect_b32 {sT1}, {1 << bit}, 0"); a(f"s_xor_b32 {dst}, {dst}, {sT1}")
    def advance(n, masked=False):
        if masked:
            a(f"s_or_b32 {sOff}, {sOff}, {sHole}"); a(f"s_addk_i32 {sOff}, 8192"); a(f"s_and_b32 {sOff}, {sOff}, {sMask}")
        else:
            nx = ((cur_off[0] | HA) + 8192) & ~HA
            d = nx - cur_off[0]; cur_off[0] = nx
            if d == 8192: a(f"s_addk_i32 {sOff}, 8192")
            else:
                a(f"s_add_u32 {sOff}, {sOff}, {d}")
                if rota: a(f"s_bitset0_b32 {sOff}, 21")
    def backlog(P0, do_issue, do_proc):
        p = 0; burst = 0; iss = RT
        while not (p % LG == 0 and iss - p == LG and p >= RT):
            do_proc(p); p += 1
            if early:
                if p & 1: continue
                free = iss + 1 - RT < p and (P0 is None or iss < P0 + LG)
                if iss - p < LG or (iss - p > LG and free and (burst < 2 or p % r2 == 0)):
                    assert free
                    do_issue(); iss += 2; burst += 1
                continue
            free = iss - RT < p and (P0 is None or iss < P0 + LG)
            if iss - p < LG or (iss - p > LG and free and (burst < D or p % ratio == 0)):
                assert free
                do_issue(); iss += 1; burst += 1
        return p
    P0 = backlog(None, lambda: None, lambda p: None)
    assert P0 - RT <= 16 and P0 <= 112
    a("s_waitcnt lgkmcnt(0)")
    a(f"s_add_u32 s32, s{6+2*kv}, s40"); a(f"s_addc_u32 s33, s{7+2*kv}, 0")
    if xa: xor_make(sXa, xa); a(f"s_mov_b32 {sXo}, {sXa}")
    ids = {}
    def srd_of(n): return KA if n < 128 else KB if n < 144 else VB if n < 160 else VA
    def kslot(n):
        if n >= P0: return n % LG
        if n >= RT: return LG + n - RT
        if n >= RP: return 32 + (n - RP) % 8
        NT = P0 - RT
        return LG + n if n < NT else n - NT if n < NT + LG else n
    def issue(n, masked=False):
        if n == 144: a(f"s_mov_b32 {sOff}, {sRot}")
        if n == 160:
            a(f"s_mov_b32 {sOff}, {sRa if rota else 0}"); a(f"s_mov_b32 {sHole}, {HA}"); a(f"s_mov_b32 {sMask}, {MA_}")
            if xa or xb: a(f"s_mov_b32 {sXo}, {sXa if xa else 0}")
        masked = masked or n >= 128
        so = sOff
        if xa or (xb and masked and n < 160):
            so = sEff
            if not n & 1: a(f"s_xor_b32 {sEff}, {sOff}, {sXo}")
        if RP <= n < RT:
            a(f"s_add_u32 m0, {sLb}, {256 + (n - RP) * 1024 - 256 * (n & 1)}")
            ids[n] = a(f"buffer_load_dwordx4 {vKo}, {srd_of(n)}, {so} offen offset:{256*(n&1)} {pol} lds")
        else:
            ids[n] = a(f"buffer_load_dwordx4 {vr(slot(kslot(n)))}, {vKo}, {srd_of(n)}, {so} offen offset:{256*(n&1)} {pol}")
        if n & 1: advance(n, masked)
    for n in range(D0): issue(n)
    issued = D0
    stamp("k0")
    tag_load()
    a(f"s_add_u32 s36, s{8-2*kv}, s40"); a(f"s_addc_u32 s37, s{9-2*kv}, 0"); srd(36, None, None, NRA)
    a(f"s_lshl2_add_u32 {sRecA}, {sH}, {sB}"); a(f"s_lshl3_add_u32 {sRecA}, {sRecA}, s41")
    a(f"s_lshl_b32 {sRecB}, {sX}, 6"); a(f"s_add_u32 {sRecB}, {sRecB}, {sR}"); a(f"s_add_u32 {sRecB}, {sRecB}, 512")
    a(f"s_andn2_b32 s44, {sR}, 7"); a(f"s_add_u32 s44, s44, {sX}"); a(f"s_xor_b32 s44, s44, {bx}"); a("s_lshl_b32 s44, s44, 21")
    a(f"s_and_b32 s45, {sR}, 7"); a(f"s_lshl_b32 s45, s45, {13 + ilb}"); a("s_add_u32 s44, s44, s45"); a("s_add_u32 s44, s44, 0x180000")
    a("s_add_u32 s40, s16, s44"); a("s_addc_u32 s41, s17, 0"); srd(40, None, None, 0x80000 - HB)
    a("s_add_u32 s44, s18, s44"); a("s_addc_u32 s45, s19, 0"); srd(44, None, None, 0x80000 - HB)
    srd(60, "s28", "s29", WS_END); srd(48, "s12", "s13", 0 if nowo & 1 else 0x380000); srd(52, "s22", "s23", 0 if nowo & 2 else 0x380000)
    unit(0)
    a(f"s_mul_i32 {sT0}, {sW}, {4*8*896}"); a(f"s_add_u32 {sU}, {sU}, {sT0}")
    a(f"s_lshl_b32 {sT0}, {sW}, 11"); a(f"s_add_u32 {sY}, {sY}, {sT0}")
    sUB = "s69"
    a(f"s_xor_b32 {sT0}, {sX}, {bx}"); a(f"s_sub_i32 {sT0}, {sT0}, {sX}"); a(f"s_mul_i32 {sT0}, {sT0}, {512*896}"); a(f"s_add_u32 {sUB}, {sU}, {sT0}")
    a(f"s_cmp_ge_u32 {sR}, 28"); a(f"s_cselect_b32 {sU}, {OOB}, {sU}"); a(f"s_cselect_b32 {sUB}, {OOB}, {sUB}"); a(f"s_cselect_b32 {sG}, {OOB}, {sG}")
    if True:
        a(f"s_mul_i32 {sRot}, {sR}, {rot}"); a(f"s_mul_i32 {sT0}, {sX}, {rotx}"); a(f"s_add_u32 {sRot}, {sRot}, {sT0}")
        a(f"s_and_b32 {sRot}, {sRot}, {rotm}")
        a(f"s_lshr_b32 {sT0}, {sRot}, {ilb}"); a(f"s_mul_i32 {sT0}, {sT0}, {7 << ilb}"); a(f"s_add_u32 {sRot}, {sRot}, {sT0}"); a(f"s_lshl_b32 {sRot}, {sRot}, 13")
    if xa or xb: xor_make(sXb, xb)
    if xb and not xa: a(f"s_mov_b32 {sXo}, 0")
    a(f"s_mov_b32 {sC}, {CSCALE}")
    a("s_mov_b32 s90, 0xcccccccc"); a("s_mov_b32 s91, 0xcccccccc")
    a("s_mov_b32 s92, 0xaaaaaaaa"); a("s_mov_b32 s93, 0xaaaaaaaa")
    a("s_and_b64 s[98:99], s[90:91], s[92:93]"); a(f"s_mov_b32 {sHole}, {HA}"); a(f"s_mov_b32 {sMask}, {MA_}")
    a(f"v_bfe_u32 {t0}, {vL}, 1, 2")
    a(f"v_mov_b32 {t2}, 0xffff"); a(f"v_mov_b32 {t1}, 0xffff0000")
    a(f"v_cndmask_b32 {t2}, {t2}, {t1}, {sMk0}")
    for j in range(4):
        a(f"v_cmp_eq_u32 vcc, {j}, {t0}")
        a(f"v_cndmask_b32 {vM[j]}, 0, {t2}, vcc")
    a(f"v_lshlrev_b32 {t3}, 4, {vn}"); a(f"v_mov_b32 {t0}, {L_LOC}")
    a(f"s_mul_i32 {sLb}, {sW}, {NL * 1024}"); a(f"s_add_u32 {sLb}, {sLb}, {L_KB - 256}")
    if nboost:
        a(f"s_and_b32 {sT0}, {sR}, 7"); a(f"s_cmp_eq_u32 {sT0}, 3"); a("s_cselect_b64 vcc, -1, 0")
    landed = -1
    def throttled_issue():
        nonlocal issued, landed
        d = D0 if issued < ND0 else D
        if RT - pbar - pre <= issued < RT - pbar: d += issued - (RT - pbar - pre) + 1
        if issued - d > landed:
            if 14 <= issued < 14 + nboost:
                landed = max(landed, issued - d - 1); a.wait_vm(ids[issued - d - 1])
                a(f"s_cbranch_vccnz L_boost{issued}"); a.wait_vm(ids[issued - d]); a(f"L_boost{issued}:")
            else:
                landed = issued - d; a.wait_vm(ids[landed])
        issue(issued); issued += 1
    while issued < RT - pbar:
        throttled_issue()
        if (fine or probe) and issued in (D0 + 1, 16, 26, 36, 46, 56, 66): stamp(f"ki{issued}")
        if issued == 24:
            a("s_waitcnt lgkmcnt(0)"); tag_make(); ytag_make()
    stamp("ring_full")
    a("s_barrier")
    if probe or fine: stamp("bar")
    a(f"ds_read_b128 {vr(QA)}, {t3} offset:{L_Q+1024}"); a(f"ds_read_b128 {vr(QA+4)}, {t3} offset:{L_Q+1024+256}")
    for k in range(4): a(f"ds_read_b128 {vr(QB+4*k)}, {t3} offset:{L_Q+256*k}")
    a(f"ds_read2_b32 v[54:55], {t0} offset0:0 offset1:1")
    while issued < RT: throttled_issue()
    a(f"v_lshl_add_u32 {t3}, {vL}, 4, {sLb}")
    a("s_waitcnt lgkmcnt(0)")
    a(f"v_readfirstlane_b32 {sLocal}, {t0}"); a(f"v_readfirstlane_b32 {sCh}, {t1}")
    stamp("q_ready")

    def tree(j, acc, dst_fn):
        u = U[(j >> 1) & 1]
        a(f"v_add_f32_dpp {u}, {acc}, {acc} row_ror:8 row_mask:0xf bank_mask:{'0xc' if j & 1 else '0x3'}")
        if not j & 1: return
        v = V[(j >> 2) & 1]
        a(f"v_add_f32_dpp {v}, {u}, {u} row_half_mirror row_mask:0xf bank_mask:{'0xa' if j & 2 else '0x5'}")
        if not j & 2: return
        a(f"v_add_f32_dpp {v}, {v}, {v} {QP2}")
        if not j & 4: return
        x = X[(j >> 3) & 1]
        a(f"v_cndmask_b32 {x}, {V[0]}, {V[1]}, {sMk1}")
        a(f"v_add_f32_dpp {x}, {x}, {x} {QP1}")
        if not j & 8: return
        dst_fn()
    def dots(acc, kr, qr, first):
        if first: a(f"v_mov_b32 {acc}, 0")
        for e in range(4): a(f"v_dot2c_f32_bf16 {acc}, v{kr+e}, v{qr+e}")
    ROT = "quad_perm:[1,2,3,0] " + FULL
    def procK(n, looped=False):
        k = kslot(n); i = (n >> 1) & 3; hf = n & 1
        acc = T[i & 1]
        dots(acc, slot(k), QA + 4 * hf, not hf)
        if not hf: return
        a(f"v_add_f32_dpp {U[0]}, {acc}, {acc} row_ror:8 row_mask:0xf bank_mask:{'0xc' if i & 1 else '0x3'}")
        if not i & 1: return
        a(f"v_add_f32_dpp {V[0]}, {U[0]}, {U[0]} row_half_mirror row_mask:0xf bank_mask:{'0xa' if i & 2 else '0x5'}")
        if not i & 2: return
        r = SP + (0 if looped else ((n >> 3) - P0 // 8) & 3)
        a(f"v_mov_b32_dpp {X[0]}, v{r} {ROT}")
        a(f"v_add_f32_dpp {V[0]}, {V[0]}, {V[0]} {QP2}")
        if looped:
            for e in range(3): a(f"v_mov_b32 v{SP+e}, v{SP+e+1}")
        a(f"v_add_f32_dpp {V[0]}, {V[0]}, {V[0]} {QP1}")
        a(f"v_cndmask_b32 v{SP+3 if looped else r}, {X[0]}, {V[0]}, s[98:99]")
    def procKB(n):
        k = kslot(n); j = (n - 128) >> 1; hf = n & 1
        for hd in range(2):
            dots(T[hd], slot(k), QB + 8 * hd + 4 * hf, not hf)
        if not hf: return
        for hd in range(2):
            tree(2 * j + hd, T[hd], lambda: a(f"v_cndmask_b32 {SB}, {X[0]}, {X[1]}, {sMk0}"))
    def procVB(n):
        k = kslot(n); j = (n - 144) >> 1; hf = n & 1
        if not hf:
            a(f"v_mov_b32_dpp {t0}, {SB} row_newbcast:{brev(j,3)} row_mask:0xf bank_mask:0x3")
            a(f"v_mov_b32_dpp {t0}, {SB} row_newbcast:{8+brev(j,3)} row_mask:0xf bank_mask:0xc")
            for e in range(4): a(f"v_and_b32 v{AOP+e}, {t0}, {vM[e]}")
        a(f"v_mfma_f32_16x16x32_bf16 {vr(ACCB+4*hf)}, {vr(AOP)}, {vr(slot(k))}, {vr(ACCB+4*hf) if j else 0}")
    def procV(n, last=False):
        if nomf: return
        k = kslot(n); i = (n >> 1) & 3; hf = n & 1
        if not hf:
            for e in range(4):
                a(f"v_and_b32_dpp v{AOP+e}, v{SP}, {vM[e]} row_newbcast:{8*(i&1) + 4*(i>>1)} {FULL}")
        a(f"v_mfma_f32_16x16x32_bf16 {vr(ACC+4*hf)}, {vr(AOP)}, {vr(slot(k))}, {vr(ACC+4*hf)}")
        if hf and i == 3 and not last:
            a(f"v_mov_b32_dpp {X[0]}, v{SP} {ROT}")
            for e in range(3): a(f"v_mov_b32 v{SP+e}, v{SP+e+1}")
            a(f"v_mov_b32 v{SP+3}, {X[0]}")
    nlad = [0]
    def refill(n, masked=False):
        nlad[0] += 1
        levels = [t for t in range(thmax, thmin - 1, -1) if t <= 8 or (thmax - t) % 2 == 0]
        a(f"s_cmp_le_u32 {sTh}, 5"); a(f"s_cbranch_scc1 L_low{nlad[0]}")
        for i, th in enumerate(levels):
            if th == 5: a(f"L_low{nlad[0]}:")
            a(f"s_waitcnt vmcnt({th})")
            if th > thmin: a(f"s_cmp_gt_u32 {sTh}, {levels[i+1]}"); a(f"s_cbranch_scc1 L_lad{nlad[0]}")
        a(f"L_lad{nlad[0]}:")
        issue(n, masked); issue(n + 1, masked)
        a(f"v_add_u32 {vPrg}, 1, {vPrg}")
        a(f"ds_write_b32 {vPrA}, {vPrg}")
    def th_fetch(): a(f"ds_read_b32 {vTH}, {vPrA} offset:{L_TH - L_PRG}")
    def pair(n, proc, extra=None, masked=False):
        j = n >> 1
        if j & 1:
            a(f"s_waitcnt vmcnt({LG - 2}) lgkmcnt(0)")
            a(f"v_readfirstlane_b32 {sTh}, {vTH}")
        else:
            a(f"s_waitcnt vmcnt({LG - 2})")
        proc(n); proc(n + 1)
        refill(n + LG, masked)
        if not j & 1: th_fetch()
        if extra: extra()
    AH = 4
    def need(n):
        nonlocal landed
        if n > landed:
            assert early
            landed = n; a.wait_vm(ids[n])
    def backlog_proc(p):
        n = p + AH
        if RP <= n < RT:
            assert p > 39
            need(n)
            a(f"ds_read_b128 {vr(slot(kslot(n)))}, {t3} offset:{256 + (n - RP) * 1024}")
        if RP <= p < RT: a(f"s_waitcnt lgkmcnt({min(AH, RT - 1 - p)})")
        need(p)
        procK(p)
    def governed_issue():
        nonlocal issued, landed
        if issued > RT: a("s_waitcnt lgkmcnt(0)"); a(f"v_readfirstlane_b32 {sTh}, {vTH}")
        landed = max(landed, issued - thmax - 1)
        refill(issued); issued += 2
        th_fetch()
    def gov_init():
        a(f"s_lshl2_add_u32 {sT0}, {sW}, {L_PRG}")
        a(f"v_mov_b32 {vPrA}, {sT0}"); a(f"v_mov_b32 {vPrg}, 0")
        a(f"s_mov_b32 {sTh}, {int(th0 + 0.5)}")
    if early: gov_init()
    assert backlog(P0, governed_issue if early else throttled_issue, backlog_proc) == P0
    if not early: gov_init()
    N0 = RT if early else P0 + LG
    total = (NTOT - N0) // 2 * 4
    assert total * 32 < 0x4000
    stamp("caught_up")
    a(f"s_mov_b32 {sCnt}, {(128 - P0) // LG}")
    a("L_k:")
    a(f"s_sub_u32 {sCnt}, {sCnt}, 1"); a(f"s_cmp_eq_u32 {sCnt}, 0")
    a("s_cselect_b32 s32, s40, s32"); a("s_cselect_b32 s33, s41, s33"); a("s_cselect_b32 s34, s42, s34")
    a(f"s_cselect_b32 {sOff}, {sRot}, {sOff}"); a(f"s_cselect_b32 {sMask}, {0x7ffff & ~HB}, {sMask}"); a(f"s_cselect_b32 {sHole}, {HB}, {sHole}")
    if xa or xb: a(f"s_cselect_b32 {sXo}, {sXb}, {sXo}")
    for n in range(P0, P0 + LG, 2): pair(n, lambda m: procK(m, True), masked=True)
    a(f"s_cmp_lg_u32 {sCnt}, 0"); a("s_cbranch_scc1 L_k")
    stamp("K_done")
    def softmaxA():
        for e in range(4): rnd(f"v{SP+e}")
        a(f"v_max3_f32 {vm}, v{SP}, v{SP+1}, v{SP+2}"); a(f"v_max_f32 {vm}, {vm}, v{SP+3}")
        red("v_max_f32", vm, (8, 4, 2, 1, 16, 32))
        a(f"v_mul_f32 {vm}, {sC}, {vm}")
        for e in range(4): a(f"v_fma_f32 v{SP+e}, v{SP+e}, {sC}, -{vm}")
        for e in range(4): a(f"v_exp_f32 v{SP+e}, v{SP+e}")
        a(f"v_add_f32 {vl}, v{SP}, v{SP+1}"); a(f"v_add_f32 {t0}, v{SP+2}, v{SP+3}"); a(f"v_add_f32 {vl}, {vl}, {t0}")
        for e in range(4): a(f"v_cvt_pk_bf16_f32 v{SP+e}, v{SP+e}, v{SP+e}")
    def softmaxA2():
        red("v_add_f32", vl, (8, 4, 2, 1, 16, 32))
        for e in range(8): a(f"v_mov_b32 v{ACC+e}, 0")
        if mlh:
            a(f"s_lshl3_add_u32 {sT0}, {sW}, {L_ML + 64}"); a(f"v_mov_b32 {t2}, {sT0}"); a(f"ds_write_b64 {t2}, v[186:187]")
            return
        a(f"v_min_u32 {vm}, -2, {vm}"); a(f"v_min_u32 {vl}, -2, {vl}")
        a(f"s_lshl2_add_u32 {sT0}, {sRecA}, {sW}"); a(f"s_lshl3_add_u32 {sT0}, {sT0}, {WS_ML}")
        a("s_mov_b64 exec, 1")
        by_placement("mla", lambda b: a(f"buffer_store_dwordx2 v[186:187], off, {WS}, {sT0}{b}"))
        a("s_mov_b64 exec, -1")
    def softmaxB():
        rnd(SB)
        a(f"v_mul_f32 {SB}, {sC}, {SB}")
        a(f"v_max_f32_dpp {vmB}, {SB}, {SB} row_half_mirror {FULL}")
        red("v_max_f32", vmB, ("q1", "q2", 16, 32))
        a(f"v_sub_f32 {SB}, {SB}, {vmB}"); a(f"v_exp_f32 {SB}, {SB}")
        a(f"v_add_f32_dpp {vlB}, {SB}, {SB} row_half_mirror {FULL}")
        a(f"v_cvt_pk_bf16_f32 {SB}, {SB}, {SB}")
    def softmaxB2():
        red("v_add_f32", vlB, ("q1", "q2", 16, 32))
        if mlh:
            a(f"s_lshl3_add_u32 {sT0}, {sW}, {L_ML}"); a(f"v_and_b32 {t2}, 8, {vn}"); a(f"v_lshl_add_u32 {t2}, {t2}, 2, {sT0}"); a(f"ds_write_b64 {t2}, v[188:189]")
            return
        a(f"v_min_u32 {vmB}, -2, {vmB}"); a(f"v_min_u32 {vlB}, -2, {vlB}")
        a(f"s_lshl2_add_u32 {sT0}, {sRecB}, {sW}"); a(f"s_lshl3_add_u32 {sT0}, {sT0}, {WS_ML}")
        a(f"v_lshlrev_b32 {t2}, 7, {vn}")
        a("s_mov_b64 exec, 0x101")
        by_placement("mlb", lambda b: a(f"buffer_store_dwordx2 v[188:189], {t2}, {WS}, {sT0} offen{b}"))
        a("s_mov_b64 exec, -1")
    def addresses():
        if swz:
            a(f"v_bfe_u32 {t0}, {vL}, 3, 2"); a(f"v_xor_b32 {t0}, {sW}, {t0}"); a(f"v_lshl_add_u32 {vTr}, {t0}, 5, {vTr}")
            a(f"v_and_b32 {t0}, 16, {vL}"); a(f"v_lshlrev_b32 {t0}, 1, {t0}"); a(f"v_xor_b32 {vWo}, {t0}, {vWo}"); a(f"v_xor_b32 {vWo2}, 64, {vWo}")
        else:
            a(f"s_lshl_b32 {sT0}, {sW}, 5"); a(f"v_add_u32 {vTr}, {sT0}, {vTr}"); a(f"v_mov_b32 {vWo2}, {vWo}")
        a(f"s_lshl_b32 {sLb}, {sW}, 12")
        if wfake == 1:
            a(f"v_lshlrev_b32 {vWo}, 4, {vL}"); a(f"v_mov_b32 {vWo2}, {vWo}")
            a(f"s_mul_i32 {sU}, {sX}, 28"); a(f"s_add_u32 {sU}, {sU}, {sR}"); a(f"s_lshl2_add_u32 {sU}, {sU}, {sW}"); a(f"s_lshl_b32 {sU}, {sU}, 12")
            a(f"s_cmp_ge_u32 {sR}, 28"); a(f"s_cselect_b32 {sU}, {OOB}, {sU}"); a(f"s_mov_b32 {sUB}, {sU}")
        if wfake == 2:
            a(f"v_mul_u32_u24 {vWo}, 896, {vg}"); a(f"v_lshl_add_u32 {vWo}, {vn}, 4, {vWo}")
            a(f"s_and_b32 {sT0}, {sR}, 3"); a(f"s_cmp_eq_u32 {sT0}, 3"); a(f"s_cselect_b32 {sT1}, 8, 16")
            a(f"v_cmp_gt_u32 vcc, {sT1}, {vn}"); a(f"v_mov_b32 {t0}, {OOB}"); a(f"v_cndmask_b32 {vWo}, {t0}, {vWo}, vcc"); a(f"v_mov_b32 {vWo2}, {vWo}")
            a(f"s_bfe_u32 {sU}, {sR}, 0x20002"); a(f"s_lshl2_add_u32 {sU}, {sX}, {sU}"); a(f"s_lshl2_add_u32 {sU}, {sU}, {sW}"); a(f"s_mul_i32 {sU}, {sU}, {32*896}")
            a(f"s_lshl_b32 {sT0}, {sT0}, 8"); a(f"s_add_u32 {sU}, {sU}, {sT0}"); a(f"s_add_u32 {sUB}, {sU}, {16*896}")
            a(f"s_cmp_ge_u32 {sR}, 16"); a("s_cselect_b32 s48, s52, s48"); a("s_cselect_b32 s49, s53, s49"); a("s_mov_b32 s52, s48"); a("s_mov_b32 s53, s49")
        y_base(vYo, 0); y_base(vYb, 1)
        a(f"v_mov_b32 {vYm}, 0xfffff000")
        a(f"v_mov_b32 {t0}, {YT[0]}"); a(f"v_mov_b32 {t1}, {YT[1]}"); a(f"v_cndmask_b32 {t0}, {t0}, {t1}, {sMk0}")
        a(f"v_mov_b32 {t2}, {YT[2]}"); a(f"v_mov_b32 {t1}, {YT[3]}"); a(f"v_cndmask_b32 {t2}, {t2}, {t1}, {sMk0}")
        a(f"v_cndmask_b32 {vYt}, {t0}, {t2}, {sMk1}")
        a(f"v_and_b32 {t0}, 1, {vg}"); a(f"v_lshlrev_b32 {t0}, 4, {t0}"); a(f"v_lshl_add_u32 {t0}, {vn}, 5, {t0}")
        a(f"s_lshl_b32 {sT0}, {sW}, 10"); a(f"s_add_u32 {sT0}, {sT0}, {L_PART}")
        a(f"v_add_u32 {vPa}, {sT0}, {t0}")
    nwo = 0; id_wo = None
    def gA():
        for k in range(4): a(f"buffer_load_dwordx4 {vr(G+4*k)}, {vGo}, {WS}, {sG} offen offset:{1024*k} {ap}")
    def wo_issue():
        nonlocal nwo, id_wo
        j = (nwo - wbe) % 8
        a(f"s_add_u32 m0, {sLb}, {(L_WOA, L_WOB)[j >> 2] + 1024*(j & 3)}")
        a(f"s_add_u32 {sT0}, {(sU, sUB)[j >> 2]}, {(8*896, 1024, 4*896)[wfake]*(j & 3)}")
        id_wo = a(f"buffer_load_dwordx4 {(vWo, vWo2)[j & 1]}, {(WOA, WOB)[j >> 2]}, {sT0} offen {pol} lds")
        nwo += 1
    extras = {128: softmaxA, 130: softmaxA2, 132: unit_v, 134: addresses, 142: softmaxB, 144: softmaxB2}
    if xl: extras = {142: softmaxB, 144: softmaxB2, 146: softmaxA, 148: softmaxA2, 150: unit_v, 152: addresses}
    for i in range(wbe): extras[146 + 2 * (i % 7)] = (lambda f: (lambda: (f and f(), wo_issue())))(extras.get(146 + 2 * (i % 7)))
    for n in range(128, 160, 2): pair(n, procKB if n < 144 else procVB, extras.get(n))
    a(f"v_lshrrev_b32 {t1}, 1, {vg}"); a(f"v_lshl_add_u32 {t0}, {t1}, 12, {vPa}")
    a(f"ds_write_b128 {t0}, {vr(ACCB)}"); a(f"ds_write_b128 {t0}, {vr(ACCB+4)} offset:512")
    a(f"v_lshl_add_u32 {vPa}, {t1}, 9, {vPa}")
    PB_ = (160 + LG - N0) // 2
    stamp("B_done")
    a(f"s_mov_b32 {sCnt}, 0")
    a("; ---- V_A ----")
    a("L_v:")
    if stamps:
        for i in (4, 6, 10): a(f"s_cmp_eq_u32 {sCnt}, {i}"); a(f"s_cbranch_scc1 L_st{i}")
    a("L_v_body:")
    for n in range(160, 160 + LG, 2): pair(n, procV)
    a(f"s_add_u32 {sCnt}, {sCnt}, {LG // 8}"); a(f"s_cmp_lt_u32 {sCnt}, {16 - LG // 8}"); a("s_cbranch_scc1 L_v")
    if stamps:
        a("s_branch L_v_x")
        for i, nm in ((4, "v4"), (6, "v7"), (10, "v11")):
            a(f"L_st{i}:"); stamp(nm); a("s_branch L_v_body")
    a("L_v_x:")
    stamp("v_x")
    for k in range(LG): ids[NTOT - LG + k] = a.vm_seq - (LG - 1 - k)
    a("s_mov_b32 vcc_lo, 0"); a("s_mov_b32 vcc_hi, -1")
    def last(n0, n1, d, per):
        for n in range(n0, n1):
            a.wait_vm(ids[n])
            for i in range(per):
                if n - (NTOT - 8) >= d and nwo < 8: wo_issue()
            procV(n, last=n >= NTOT - 8)
    def share():
        stamp("stream_done")
        for e in range(4): a(f"v_cndmask_b32 v{ACC+e}, v{ACC+e}, v{ACC+4+e}, vcc")
        a(f"ds_write_b128 {vPa}, {vr(ACC)} offset:8192")
        while wpos == 0 and nwo < 8: wo_issue()
    last(NTOT - LG, NTOT - 8, 8, 0)
    if wth is not None:
        assert wpos == 0
        a(f"s_cmp_lt_u32 {sTh}, {wth}"); a("s_cbranch_scc1 L_calm")
        sv = (a.vm_seq, nwo)
        last(NTOT - 8, NTOT, wde, wpe); share()
        a("s_branch L_join")
        a.vm_seq, nwo = sv
        if stamps: names["s"].pop()
        a("L_calm:")
    last(NTOT - 8, NTOT, wod, wper); share()
    if wth is not None: a("L_join:")
    a("s_waitcnt lgkmcnt(0)")
    a("s_barrier")
    while wpos == 1 and nwo < 8: wo_issue()
    for k in range(4): a(f"ds_read_b128 {vr(OBS+4*k)}, {vGo} offset:{L_PART + 1024*k}")
    if g2:
        a("s_barrier")
        while wpos == 2 and nwo < 8: wo_issue()
        gA()
        while nwo < 8: wo_issue()
    if wg is None and wbe < 8: a.wait_vm(id_wo)
    a("s_barrier")
    if fine: stamp("wo_in")
    a(f"s_cmp_ge_u32 {sR}, 28"); a("s_cbranch_scc1 L_s_fin")
    a("s_waitcnt lgkmcnt(0)")
    for dst, src in ((WTB, L_WOB), (WT, L_WOA)):
        for k in range(4):
            if src == L_WOA and k == 3: a("s_waitcnt lgkmcnt(6)")
            a(f"ds_read_b64_tr_b16 {vr(dst+4*k,2)}, {vTr} offset:{src+4096*k}")
            a(f"ds_read_b64_tr_b16 {vr(dst+4*k+2,2)}, {vTr} offset:{src+4096*k+512}")
    for k in range(4):
        a(f"v_mfma_f32_16x16x32_bf16 {vr(ACC+4)}, {vr(OBS+4*k)}, {vr(WTB+4*k)}, {vr(ACC+4) if k else 0}")
    if g2: a("s_waitcnt vmcnt(0)")
    poll("L_s2", gA, lambda: sentinel(range(G, G + 16)), masked=True, first_issued=g2)
    if g2: a("s_waitcnt lgkmcnt(0)")
    stamp("gathered")
    for k in range(4):
        a(f"v_mfma_f32_16x16x32_bf16 {vr(ACC)}, {vr(G+4*k)}, {vr(WT+4*k)}, {vr(ACC) if k else 0}")
    y_seal(ACC + 4)
    a(f"buffer_store_dword v{ACC+4}, {vYb}, {WS}, {sY} offen sc1")
    a(f"v_add_f32 v{ACC}, v{ACC}, v{ACC+1}"); a(f"v_add_f32 v{ACC+2}, v{ACC+2}, v{ACC+3}"); a(f"v_add_f32 v{ACC}, v{ACC}, v{ACC+2}")
    y_seal(ACC)
    a(f"buffer_store_dword v{ACC}, {vYo}, {WS}, {sY} offen sc1")
    if stamps:
        a("s_branch L_s_fin2")
        a("L_s_fin:")
        names["s"].pop(); stamp("gathered")
        a("L_s_fin2:")
    else:
        a("L_s_fin:")
    stamp("y")
    a("s_waitcnt vmcnt(0)")
    a("s_barrier")
    finish()

    cur[0] = "g"
    a("L_gov:")
    vA4 = "v2"; vBo = "v3"; vPw = "v4"; vP = "v5"; vPp = "v6"; vB = "v7"; vTh = "v8"; vL16 = "v16"
    sTg = sU; sPo = sRecA; sGa = sRecB; sIn = sY
    a(f"v_lshlrev_b32 {vL16}, 4, {vL}")
    a(f"s_lshl_b32 {sT1}, {sX}, 5"); a(f"s_add_u32 {sT1}, {sT1}, {sR}"); a(f"s_lshl_b32 {sT1}, {sT1}, 7"); a(f"s_add_u32 {sT1}, {sT1}, {WS_FL}")
    srd(60, None, None, WS_END)
    a("s_waitcnt lgkmcnt(0)")
    tag_load()
    a("s_mov_b32 s60, s28"); a("s_mov_b32 s61, s29")
    a("s_mov_b64 exec, 0xff")
    a("s_waitcnt lgkmcnt(0)")
    tag_make()
    a("v_mov_b32 v8, s56"); a("v_mov_b32 v9, s59"); a("v_mov_b32 v10, s56"); a("v_mov_b32 v11, s59")
    a(f"buffer_store_dwordx4 v[8:11], {vL16}, {WS}, {sT1} offen sc1")
    a("s_mov_b64 exec, -1")
    ytag_make()
    a(f"s_mul_i32 {sIn}, {sX}, {YG}"); a(f"s_add_u32 {sIn}, {sIn}, {WS_Y}")
    a(f"s_cmp_lg_u32 {sR}, 0"); a("s_cbranch_scc1 L_norace")
    a(f"s_add_u32 s4, s28, {sIn}"); a("s_addc_u32 s5, s29, 0")
    a("s_load_dword s6, s[4:5], 0 glc"); a("s_load_dword s7, s[4:5], 8192 glc")
    a(f"s_mov_b32 {sT1}, 0")
    a("s_waitcnt lgkmcnt(0)")
    for i in range(nrace):
        a("s_not_b32 s10, s6"); a("s_not_b32 s11, s7")
        for h in ((0, 1), (1, 0))[i & 1]: a(f"s_load_dword s{10+h}, s[4:5], {8192*h} glc")
        a("s_waitcnt lgkmcnt(1)")
        a("s_sleep 1")
        a("s_mov_b64 s[14:15], s[10:11]")
        a("s_waitcnt lgkmcnt(0)")
        a("s_cmp_eq_u32 s15, s7"); a(f"s_addc_u32 {sT1}, {sT1}, 0"); a("s_cmp_eq_u32 s14, s6"); a(f"s_subb_u32 {sT1}, {sT1}, 0")
    a(f"s_sub_i32 {sT2}, 0, {sT1}"); a("s_bitcmp1_b32 s59, 2"); a(f"s_cselect_b32 {sT1}, {sT2}, {sT1}")
    a(f"s_cmp_gt_i32 {sT1}, 0"); a(f"s_cselect_b32 {sT2}, 2, 0"); a(f"s_cmp_lt_i32 {sT1}, 0"); a(f"s_cselect_b32 {sT2}, 1, {sT2}")
    if near is not None: a(f"s_mov_b32 {sT2}, {1 + near}")
    a(f"s_and_b32 {sT1}, s59, 4"); a(f"s_or_b32 {sT1}, {sT1}, {sT2}")
    a(f"s_lshl4_add_u32 {sT1}, s58, {sT1}")
    a(f"v_mov_b32 v12, s56"); a(f"v_mov_b32 v13, {sT1}"); a(f"v_mov_b32 v14, s56"); a(f"v_mov_b32 v15, {sT1}")
    a(f"s_lshl_b32 {sT1}, {sX}, 7"); a(f"s_add_u32 {sT1}, {sT1}, {WS_CH}")
    a("s_mov_b64 exec, 0xff")
    a(f"buffer_store_dwordx4 v[12:15], {vL16}, {WS}, {sT1} offen sc1")
    a("s_mov_b64 exec, -1")
    a("L_norace:")
    a(f"s_lshr_b32 {sT0}, {sR}, 2"); a(f"s_lshl_b32 {sT0}, {sT0}, 14"); a(f"s_add_u32 {sIn}, {sIn}, {sT0}")
    a(f"s_and_b32 {sT0}, {sR}, 3"); a(f"s_lshl_b32 {sT0}, {sT0}, 11"); a(f"s_add_u32 {sIn}, {sIn}, {sT0}")
    if stamps: a("v_mov_b32 v254, 0"); a("v_mov_b32 v253, 0")
    stamp("hello")
    srd(44, "s24", "s25", 7168)
    if wg is not None:
        srd(4, "s12", "s13", 0 if nowo & 1 else 0x380000); srd(24, "s22", "s23", 0 if nowo & 2 else 0x380000)
        a("s_mov_b64 s[90:91], s[4:5]")
        a(f"s_mul_i32 {sT0}, {sR}, 37"); a(f"s_lshr_b32 {sT0}, {sT0}, 8"); a(f"s_mul_i32 {sT1}, {sT0}, 7"); a(f"s_sub_u32 {sT1}, {sR}, {sT1}")
        a(f"s_lshl2_add_u32 {sT0}, {sX}, {sT0}"); a(f"s_mul_i32 s70, {sT0}, {128*896}"); a(f"s_lshl_b32 {sT1}, {sT1}, 7"); a(f"s_add_u32 s70, s70, {sT1}")
        a(f"v_lshrrev_b32 {t0}, 3, {vL}"); a(f"v_mul_u32_u24 {t0}, 896, {t0}"); a(f"v_and_b32 {t2}, 7, {vL}"); a(f"v_lshl_add_u32 {vWo}, {t2}, 4, {t0}")
        a(f"v_and_b32 {t0}, 16, {vL}"); a(f"v_lshlrev_b32 {t0}, 1, {t0}"); a(f"v_xor_b32 {vWo}, {t0}, {vWo}"); a(f"v_xor_b32 {vWo2}, 64, {vWo}")
        a(f"v_mov_b32 v18, {total - wg}")
    if tlb:
        a(f"s_lshl4_add_u32 s40, {sB}, {sH}"); a("s_lshl_b32 s40, s40, 21")
        a(f"s_andn2_b32 s41, {sR}, 7"); a(f"s_add_u32 s41, s41, {sX}"); a(f"s_xor_b32 s41, s41, {bx}"); a("s_lshl_b32 s41, s41, 21"); a("s_add_u32 s41, s41, 0x180000")
        a(f"s_mul_i32 s42, {sX}, {512*896}")
        for i, (pp, o) in enumerate(((12, 42), (22, 42), (16, 41), (18, 41), (8, 40))):
            a(f"s_add_u32 s{pp}, s{pp}, s{o}"); a(f"s_addc_u32 s{pp+1}, s{pp+1}, 0")
            a(f"s_load_dword s{48+i}, s[{pp}:{pp+1}], 0")
    a(f"v_and_b32 {vA4}, 3, {vL}"); a(f"v_lshlrev_b32 {vA4}, 2, {vA4}")
    a(f"v_mov_b32 {vPp}, 0"); a(f"v_mov_b32 {vTh}, {int(th0 + 0.5)}"); a(f"v_mov_b32 {vB}, 0")
    a(f"ds_write_b32 {vA4}, {vPp} offset:{L_PRG}"); a(f"ds_write_b32 {vA4}, {vTh} offset:{L_TH}")
    gc_ = gI // 2 if gc is None else gc
    a(f"s_mul_i32 {sG}, {sX}, 4352"); a(f"s_add_u32 {sG}, {sG}, {WS_GC}")
    a(f"v_lshlrev_b32 {vBo}, 2, {vL}")
    a(f"s_lshl2_add_u32 {sOff}, {sR}, {sG}")
    a(f"s_add_u32 {sGa}, {sG}, {8*4352}")
    a(f"s_mul_i32 {sTg}, {sX}, {gI // 8}"); a(f"s_add_u32 {sTg}, {sTg}, {gI // 8}")
    a(f"s_cmp_eq_u32 {sR}, {28 if gx else 99}"); a(f"s_cselect_b32 {sTg}, {sTg}, -1")
    sOut = sC
    a(f"s_and_b32 {sT0}, {sX}, 3"); a(f"s_mul_i32 {sOut}, {sT0}, 1792"); a(f"s_lshr_b32 {sT0}, {sX}, 2"); a(f"s_mul_i32 {sT0}, {sT0}, 896")
    a(f"s_add_u32 {sOut}, {sOut}, {sT0}"); a(f"s_lshl_b32 {sT0}, {sR}, 5"); a(f"s_add_u32 {sOut}, {sOut}, {sT0}")
    a(f"v_lshrrev_b32 {t1}, 1, {vg}"); a(f"v_and_b32 {t2}, 1, {vg}"); a(f"v_lshl_add_u32 {t1}, {t2}, 1, {t1}")
    a(f"v_and_b32 {t2}, 3, {vn}"); a(f"v_lshl_add_u32 {t1}, {t2}, 2, {t1}"); a(f"v_lshlrev_b32 {t3}, 1, {t1}")
    a("s_waitcnt lgkmcnt(0)")
    a("s_barrier")
    a(f"ds_read_b32 v10, {vB} offset:{L_LOC}"); a(f"ds_read_b32 v11, {vB} offset:{L_CH}")
    a("s_waitcnt lgkmcnt(0)")
    a(f"v_readfirstlane_b32 {sLocal}, v10"); a(f"v_readfirstlane_b32 {sCh}, v11")
    a(f"s_lshr_b32 {sT0}, {sCh}, {sX}"); a(f"s_and_b32 {sT0}, {sT0}, 1"); a(f"s_lshl_b32 {sT0}, {sT0}, 13"); a(f"s_add_u32 {sIn}, {sIn}, {sT0}")
    if stamps:
        a(f"v_writelane_b32 v255, {sCh}, 30"); a(f"s_getreg_b32 {sT0}, hwreg(HW_REG_HW_ID)"); a(f"v_writelane_b32 v255, {sT0}, 27")
    a(f"s_cmp_lg_u32 {sLocal}, 1"); a("s_cbranch_scc1 L_gend")
    poll("L_g0", lambda: a(f"ds_read_b32 {vPw}, {vA4} offset:{L_PRG}"), lambda: a(f"v_cmp_eq_u32 vcc, 0, {vPw}"), sleep=4)
    if xm:
        for i in range(1, 8):
            a(f"s_add_u32 {sT0}, {sX}, {i}"); a(f"s_and_b32 {sT0}, {sT0}, 7")
            a(f"s_mul_i32 s{31+i}, {sT0}, 4352"); a(f"s_add_u32 s{31+i}, s{31+i}, {WS_GC + 8*4352}")
            a(f"s_mul_i32 s{47+i}, {sT0}, {gI // 8}"); a(f"s_sub_u32 s{47+i}, s{47+i}, {gI - gI // 8}")
        a(f"s_sub_u32 {sPo}, {sTg}, {gI}")
    a(f"s_mov_b32 {sSpin}, {spin}")
    a("L_gloop:")
    a(f"ds_read_b32 {vPw}, {vA4} offset:{L_PRG}")
    a(f"s_sub_u32 {sSpin}, {sSpin}, 1"); a(f"s_cmp_eq_u32 {sSpin}, 0"); a("s_cbranch_scc1 L_gend")
    a("s_waitcnt lgkmcnt(0)")
    a(f"v_add_u32_dpp {vP}, {vPw}, {vPw} {QP1}"); a(f"v_add_u32_dpp {vP}, {vP}, {vP} {QP2}")
    a("s_mov_b64 exec, 1")
    a(f"buffer_store_dword {vP}, off, {WS}, {sOff}")
    a(f"v_cmp_le_u32 vcc, {total - 4 * gstop}, {vP}")
    a("s_cbranch_vccnz L_gend")
    a("s_mov_b32 exec_lo, -1"); a("s_mov_b32 exec_hi, 1")
    a(f"buffer_load_dword {vB}, {vBo}, {WS}, {sG} offen {gp}")
    a("s_mov_b64 exec, -1")
    if xm:
        a(f"s_cmp_eq_u32 {sTg}, -1"); a("s_cbranch_scc1 L_gnl")
        for i in range(1, 8): a(f"s_load_dwordx2 s[{4+2*i}:{5+2*i}], s[28:29], s{31+i} glc")
        a("L_gnl:")
    a(f"v_cvt_f32_u32 {t0}, {vP}")
    a(f"v_mul_f32 {t0}, {f2u(-gain)}, {t0}"); a(f"v_add_f32 {t0}, {f2u(th0 + 0.5 + gain * c0)}, {t0}")
    if gw:
        a(f"v_lshlrev_b32 {vPw}, 2, {vPw}"); a(f"v_sub_u32 {vPw}, {vP}, {vPw}"); a(f"v_cvt_f32_i32 {vPw}, {vPw}")
        a(f"v_mul_f32 {vPw}, {f2u(gw)}, {vPw}"); a(f"v_add_f32 {t0}, {t0}, {vPw}")
    a("s_waitcnt vmcnt(0)")
    a(f"v_add_u32_dpp {t1}, {vB}, {vB} row_ror:8 {FULL}")
    a(f"v_readlane_b32 {sT3}, {vB}, 32")
    for sft in (4, 2, 1): a(f"v_add_u32_dpp {t1}, {t1}, {t1} row_ror:{sft} {FULL}")
    a(f"v_readlane_b32 {sT0}, {t1}, 0"); a(f"v_readlane_b32 {sT1}, {t1}, 16")
    a(f"v_cvt_f32_i32 v11, {sT3}")
    a(f"s_add_u32 {sT2}, {sT0}, {sT1}")
    a(f"v_cvt_f32_u32 v10, {sT2}")
    if wg is not None:
        a(f"v_cvt_f32_u32 v17, {vP}"); a(f"v_mul_f32 v18, {f2u(-wk / 32)}, v10"); a(f"v_mul_f32 v19, {f2u(-wk / 256)}, v11")
        a(f"v_mul_f32 v17, {f2u(wk)}, v17"); a("v_add_f32 v18, v18, v19"); a("v_add_f32 v18, v18, v17")
        a(f"v_add_f32 v18, {f2u(total - wg - wk * c0)}, v18"); a("v_cvt_i32_f32 v18, v18"); a(f"v_min_i32 v18, {total + wcap}, v18")
    a(f"v_mul_f32 v10, {f2u(gain / 32)}, v10"); a(f"v_mul_f32 v11, {f2u(gain * gx / 256)}, v11")
    a(f"v_add_f32 {t0}, {t0}, v10"); a(f"v_add_f32 {t0}, {t0}, v11")
    if kup:
        a(f"v_add_f32 v10, {f2u(-(th0 + kat))}, {t0}"); a("v_max_f32 v10, 0, v10"); a(f"v_mul_f32 v10, {f2u(kup)}, v10"); a(f"v_add_f32 {t0}, {t0}, v10")
    a(f"v_cvt_i32_f32 {vTh}, {t0}")
    a(f"v_med3_i32 {vTh}, {vTh}, {thmin}, {thmax}")
    a(f"ds_write_b32 {vA4}, {vTh} offset:{L_TH}")
    if stamps: a(f"v_add_u32 v254, v254, {vTh}"); a("v_add_u32 v253, 1, v253")
    if xm:
        a(f"s_cmp_eq_u32 {sTg}, -1"); a("s_cbranch_scc1 L_gloop")
        a(f"s_sub_u32 {sT0}, {gc_}, {sT2}"); a(f"s_lshl3_add_u32 {sT0}, {sT0}, {sPo}")
        a("s_waitcnt lgkmcnt(0)")
        for i in range(1, 8):
            a(f"s_xor_b64 s[{4+2*i}:{5+2*i}], s[{4+2*i}:{5+2*i}], s[56:57]"); a(f"s_lshr_b64 s[4:5], s[{4+2*i}:{5+2*i}], 14")
            a(f"s_cselect_b32 s{4+2*i}, s{47+i}, s{4+2*i}"); a(f"s_add_u32 {sT0}, {sT0}, s{4+2*i}")
        a(f"v_mov_b32 v10, {sT0}")
        a("s_mov_b64 exec, 1")
        a(f"buffer_store_dword v10, off, {WS}, {sG} offset:128")
        a("s_mov_b64 exec, -1")
        a(f"s_cmp_lt_u32 {sT2}, {sTg}"); a("s_cbranch_scc1 L_gloop")
        a(f"s_xor_b32 {sT0}, {sT2}, s56")
        for i in range(4): a(f"v_mov_b32 v{12+i}, {'s57' if i & 1 else sT0}")
        a("s_mov_b64 exec, 0xff")
        a(f"buffer_store_dwordx4 v[12:15], {vL16}, {WS}, {sGa} offen sc1"); a("s_mov_b64 exec, -1")
        a(f"s_add_u32 {sTg}, {sTg}, {gI}"); a(f"s_mov_b32 {sPo}, {sT2}")
        a("s_branch L_gloop")
    else:
        a(f"s_cmp_lt_u32 {sT2}, {sTg}"); a("s_cbranch_scc1 L_gloop")
        a(f"s_xor_b32 {sT0}, {sT2}, s56")
        for i in range(4): a(f"v_mov_b32 v{12+i}, {'s57' if i & 1 else sT0}")
        a("s_mov_b64 exec, 0xff")
        a(f"buffer_store_dwordx4 v[12:15], {vL16}, {WS}, {sGa} offen sc1"); a("s_mov_b64 exec, -1")
        for i in range(1, 8):
            a(f"s_add_u32 {sT0}, {sX}, {i}"); a(f"s_and_b32 {sT0}, {sT0}, 7"); a(f"s_mul_i32 {sT0}, {sT0}, 4352"); a(f"s_add_u32 {sT0}, {sT0}, {WS_GC + 8*4352}")
            a(f"s_load_dwordx2 s[{4+2*i}:{5+2*i}], s[28:29], {sT0} glc")
        a(f"s_add_u32 {sTg}, {sTg}, {gI}")
        a(f"s_sub_u32 {sT0}, {gc_}, {sT2}"); a(f"s_mul_i32 {sT0}, {sT0}, 7")
        a("s_waitcnt lgkmcnt(0)")
        for i in range(1, 8):
            a(f"s_xor_b64 s[{4+2*i}:{5+2*i}], s[{4+2*i}:{5+2*i}], s[56:57]"); a(f"s_lshr_b64 s[4:5], s[{4+2*i}:{5+2*i}], 14")
            a(f"s_cselect_b32 s{4+2*i}, 0, s{4+2*i}"); a(f"s_add_u32 {sT0}, {sT0}, s{4+2*i}")
        a(f"v_mov_b32 v10, {sT0}")
        a("s_mov_b64 exec, 1")
        a(f"buffer_store_dword v10, off, {WS}, {sG} offset:128")
        a("s_mov_b64 exec, -1")
        a("s_branch L_gloop")
    a("L_gend:")
    a("s_mov_b64 exec, -1")
    if stamps:
        a(f"v_readfirstlane_b32 {sT0}, v254"); a(f"v_readfirstlane_b32 {sT1}, v253"); a("s_nop 3")
        a(f"v_writelane_b32 v255, {sT0}, 28"); a(f"v_writelane_b32 v255, {sT1}, 29")
    stamp("gov_end")
    if wg is not None:
        a(f"s_cmp_ge_u32 {sR}, 28"); a("s_cbranch_scc1 L_gnowo")
        def pchk():
            a(f"v_add_u32_dpp {vP}, {vPw}, {vPw} {QP1}"); a(f"v_add_u32_dpp {vP}, {vP}, {vP} {QP2}"); a(f"v_cmp_gt_i32 vcc, v18, {vP}")
        srd(4, "s90", "s91", 0 if nowo & 1 else 0x380000)
        poll("L_gw", lambda: a(f"ds_read_b32 {vPw}, {vA4} offset:{L_PRG}"), pchk)
        a(f"s_mov_b32 m0, {L_WOA}")
        for j in range(32):
            a(f"s_add_u32 {sT0}, s70, {8*896*(j & 15)}")
            a(f"buffer_load_dwordx4 {(vWo, vWo2)[j & 1]}, {('s[4:7]', 's[24:27]')[j >> 4]}, {sT0} offen {pol} lds")
            if j < 31: a("s_add_u32 m0, m0, 1024")
        a("L_gnowo:")
        stamp("wo_issued")
    a(f"s_cmp_ge_u32 {sR}, 28")
    for i in range(4 if g2 else 3):
        if wg is not None and i == (2 if g2 else 1): a("s_waitcnt vmcnt(0)")
        a("s_barrier")
    a("s_cbranch_scc1 L_g_fin")
    F = 64
    def gY():
        for k in range(2): a(f"buffer_load_dwordx4 {vr(F+4*k)}, {vL16}, {WS}, {sIn} offen offset:{1024*k} {yp}")
    def y_chk():
        for i in range(8): a(f"v_xor_b32 v{F+i}, {YT[i & 3]}, v{F+i}")
        a(f"v_or3_b32 {t0}, v{F}, v{F+1}, v{F+2}"); a(f"v_or3_b32 {t2}, v{F+3}, v{F+4}, v{F+5}")
        a(f"v_or3_b32 {t0}, {t0}, v{F+6}, v{F+7}"); a(f"v_or_b32 {t0}, {t0}, {t2}")
        a(f"v_and_b32 {t0}, 0xfff, {t0}"); a(f"v_cmp_ne_u32 vcc, 0, {t0}")
    if fat:
        def gYa():
            for i in range(8): a(f"v_mov_b32 v{F+i}, 0")
            for k in range(4): a(f"buffer_atomic_or_x2 {vr(F+2*k,2)}, {vL16}, {WS}, {sIn} offen offset:{1024*(k>>1) + 8*(k&1)} sc0 sc1")
        gY(); a("s_waitcnt vmcnt(0)")
        poll("L_f", gYa, y_chk, masked=True, first_issued=True)
    else:
        poll("L_f", gY, y_chk, masked=True)
    for e in range(4): a(f"v_add_f32 v{F+e}, v{F+e}, v{F+4+e}")
    a(f"v_permlane32_swap_b32 v{F}, v{F+1}"); a(f"v_permlane32_swap_b32 v{F+2}, v{F+3}")
    a(f"v_add_f32 v{F}, v{F}, v{F+1}"); a(f"v_add_f32 v{F+2}, v{F+2}, v{F+3}")
    a(f"v_permlane16_swap_b32 v{F}, v{F+2}")
    a(f"v_add_f32 v{F}, v{F}, v{F+2}")
    red("v_add_f32", f"v{F}", (4, 8))
    a(f"v_cvt_pk_bf16_f32 v{F}, v{F}, v{F}")
    a("s_mov_b32 exec_lo, 0x000f000f"); a("s_mov_b32 exec_hi, 0x000f000f")
    a(f"buffer_store_short v{F}, {t3}, {OUT}, {sOut} offen")
    a(f"s_cmp_eq_u32 {sWG}, 0"); a("s_cbranch_scc0 L_g_fin")
    a("v_mov_b32 v8, s56"); a("v_mov_b32 v9, s57"); a(f"s_mov_b32 {sT0}, {WS_EP}")
    a("s_mov_b64 exec, 1")
    a(f"buffer_store_dwordx2 v[8:9], off, {WS}, {sT0}{' sc1' if seedsc else ''}")
    a("L_g_fin:")
    finish()

    cur[0] = "h"
    a("L_helper:")
    a(f"s_cmp_eq_u32 {sW}, 5"); a("s_cbranch_scc1 L_gov")
    def code_pull(tagl, reg, st):
        a("s_getpc_b64 s[30:31]")
        a(f"{tagl}:")
        a(f"s_sub_u32 s30, s30, {tagl}-{NAME}_kernel"); a("s_subb_u32 s31, s31, 0")
        a(f"s_lshl_b32 {sT1}, {sR}, {st}")
        a(f"v_lshl_add_u32 {t0}, {vL}, {st + 5}, {sT1}")
        a(f"v_min_u32 {t0}, L_end-{NAME}_kernel, {t0}")
        a(f"s_mov_b64 exec, {0x1f if st == 7 else 0xfff}")
        a(f"global_load_dword {reg}, {t0}, s[30:31]")
        a("s_mov_b64 exec, -1")
    if pf == 1: code_pull("L_pc", "v2", 7)
    if pf == 2: code_pull("L_pc", "v2", 6)
    XOP = 64; WOP = 96; QD = 208
    vXo = "v5"; vL8 = "v7"; vQt = "v17"
    a(f"v_lshrrev_b32 {t3}, 3, {vL}"); a(f"v_and_b32 {t2}, 7, {vL}"); a(f"v_lshlrev_b32 {t2}, 4, {t2}")
    a(f"v_lshl_add_u32 {vKo}, {t3}, 13, {t2}")
    a(f"v_and_b32 {vXo}, 3, {vL}"); a(f"v_mul_u32_u24 {vXo}, 896, {vXo}"); a(f"v_lshl_add_u32 {vXo}, {vg}, 4, {vXo}")
    a(f"s_bfe_u32 s44, {sR}, 0x10003")
    a(f"s_add_u32 s45, {sR}, {cbd}"); a("s_and_b32 s45, s45, 7"); a(f"s_lshl3_add_u32 s45, {sX}, s45")
    a(f"s_mul_i32 s46, {sT0}, {8*bx}"); a("s_xor_b32 s47, s45, s46")
    a(f"s_mul_i32 s46, s44, {224*8192}"); a("s_lshl_b32 s47, s47, 7"); a(f"s_add_u32 {sOff}, s46, s47")
    a(f"s_mul_i32 {sT2}, s44, 448")
    srd(32, None, None, 0 if nowo & 4 else 0x380000); srd(36, None, None, 0 if nox else 3584)
    a(f"s_mov_b32 m0, {L_WQ}")
    a(f"s_cmp_eq_u32 {sT0}, 0")
    a("s_waitcnt lgkmcnt(0)")
    a("s_cselect_b32 s32, s10, s20"); a("s_cselect_b32 s33, s11, s21")
    a("s_cselect_b32 s36, s4, s14"); a("s_cselect_b32 s37, s5, s15")
    if qfake:
        krot = krp = 0
        a(f"v_lshrrev_b32 {t0}, {3 + qfake}, {vL}"); a(f"v_and_b32 {t1}, {(8 << qfake) - 1}, {vL}"); a(f"v_lshlrev_b32 {t1}, 4, {t1}"); a(f"v_lshl_add_u32 {vKo}, {t0}, 13, {t1}")
        a(f"s_and_b32 s40, {sR}, {(8 >> qfake) - 1}"); a(f"s_lshl_b32 s40, s40, {7 + qfake}"); a(f"s_lshl_b32 s41, {sX}, 10"); a("s_add_u32 s40, s40, s41")
        a(f"s_and_b32 s41, {sR}, 15"); a(f"s_lshr_b32 s41, s41, {3 - qfake}"); a(f"s_mul_i32 s41, s41, {(224 >> qfake) * 8192}"); a(f"s_add_u32 {sOff}, s40, s41")
    tag_load()
    idk = []
    if wt is not None:
        a(f"v_lshlrev_b32 {t0}, 13, {t3}"); a(f"v_lshl_add_u32 {t0}, {t2}, 3, {t0}")
        a(f"s_and_b32 s40, {sR}, 15"); a(f"s_mul_i32 s40, s40, {28*8192}"); a(f"s_lshl_b32 s41, {sX}, 10"); a("s_add_u32 s40, s40, s41")
        for i in range(4):
            if i == 3: a("s_mov_b32 exec_hi, 0")
            a(f"buffer_load_dword v{8+i}, {t0}, {WQ}, s40 offen {wt}")
            if i < 3: a("s_add_u32 s40, s40, 65536")
        a("s_mov_b32 exec_hi, -1")
        if wtw: a("s_waitcnt vmcnt(0)")
        stamp("touched")
    if krot or krp:
        a(f"s_mul_i32 s40, s44, {krot}"); a(f"s_mul_i32 s41, {sT0}, {krp}"); a("s_add_u32 s40, s40, s41")
        a("s_cmp_ge_u32 s40, 7"); a("s_cselect_b32 s41, 7, 0"); a("s_sub_u32 s40, s40, s41")
        a("s_lshl_b32 s41, s40, 18"); a(f"s_add_u32 {sOff}, {sOff}, s41"); a("s_lshl_b32 s41, s40, 6"); a(f"s_add_u32 {sT2}, {sT2}, s41")
    for k in range(7):
        a(f"buffer_load_dwordx4 {vr(XOP+4*k)}, {vXo}, {XS}, {sT2} offen offset:{0 if krot or krp else 64*k} {xp}")
        if wqt and k >= wqt: a.wait_vm(idk[k - wqt])
        for j in range(4):
            r = a(f"buffer_load_dwordx4 {vKo}, {WQ}, {sOff} offen {pol} lds")
            if k < 6 or j < 3:
                a("s_add_u32 m0, m0, 1024"); a(f"s_add_u32 {sOff}, {sOff}, {65536 >> qfake}")
        if (krot or krp) and k < 6:
            a(f"s_cmp_eq_u32 s40, {6 - k}"); a(f"s_cselect_b32 s41, {7 << 18}, 0"); a(f"s_cselect_b32 s42, {-6 << 6}, 64")
            a(f"s_sub_u32 {sOff}, {sOff}, s41"); a(f"s_add_i32 {sT2}, {sT2}, s42")
        idk.append(r)
    stamp("wq_issued")
    sQs = "s64"; sMc = "s48"; sPa = "s49"; sPb = "s50"; sBz = "s51"; sRd = "s69"; sFl = "s70"
    a(f"s_lshl1_add_u32 {sQs}, {sT0}, s44"); a(f"s_lshl_b32 {sQs}, {sQs}, 16"); a("s_lshl_b32 s46, s45, 10"); a(f"s_add_u32 {sQs}, {sQs}, s46")
    a(f"s_lshl3_add_u32 {sMc}, {sT0}, {sX}"); a(f"s_and_b32 {sT3}, {sR}, 15"); a(f"s_lshl4_add_u32 {sMc}, {sMc}, {sT3}")
    a(f"s_lshl_b32 {sMc}, {sMc}, 7"); a(f"s_add_u32 {sMc}, {sMc}, {WS_ML}")
    srd(60, "s28", "s29", WS_END)
    unit(1); unit_v()
    a(f"s_lshl_b32 {sRecA}, {sH}, 14"); a(f"s_add_u32 {sRecA}, {sRecA}, {WS_PO}")
    a(f"s_lshl_b32 {sRecB}, {sX}, 15"); a(f"s_add_u32 {sRecB}, {sRecB}, {WS_PO + 16*16384}")
    a(f"s_lshl_b32 {sPa}, {sT3}, 9"); a(f"s_add_u32 {sPa}, {sPa}, {sRecA}")
    a(f"s_lshl_b32 {sPb}, {sR}, 9"); a(f"s_add_u32 {sPb}, {sPb}, {sRecB}")
    a(f"v_and_b32 {t0}, 31, {vL}"); a(f"v_lshlrev_b32 {t0}, 4, {t0}"); a(f"v_lshrrev_b32 {t1}, 5, {vL}"); a(f"v_lshl_add_u32 v18, {t1}, 14, {t0}")
    a(f"s_lshl4_add_u32 {sRecA}, {sT3}, {sRecA}")
    a(f"s_lshr_b32 {sT0}, {sR}, 3"); a(f"s_and_b32 {sT1}, {sR}, 3"); a(f"s_lshl2_add_u32 {sT0}, {sT0}, {sT1}"); a(f"s_lshl4_add_u32 {sRecB}, {sT0}, {sRecB}")
    a(f"s_bfe_u32 {sT0}, {sR}, 0x10002"); a(f"s_lshl_b32 {sT0}, {sT0}, 13"); a(f"s_add_u32 {sRecB}, {sRecB}, {sT0}")
    a(f"v_lshrrev_b32 {t0}, 1, {vL}"); a(f"v_lshlrev_b32 {t0}, 8, {t0}"); a(f"v_and_b32 {t1}, 1, {vL}"); a(f"v_lshl_add_u32 {vPa}, {t1}, 3, {t0}")
    a(f"s_mul_i32 {sRd}, {sX}, 4352"); a(f"s_add_u32 {sRd}, {sRd}, {WS_GC}")
    a(f"s_cmp_eq_u32 {sR}, 0"); a(f"s_cselect_b32 {sBz}, {sRd}, {OOB}")
    a(f"s_lshl_b32 {sFl}, {sX}, 12"); a(f"s_add_u32 {sFl}, {sFl}, {WS_FL}")
    for i in range(4): a(f"v_mov_b32 v{AOP+i}, -1")
    for i in range(4): a(f"v_mov_b32 v{ACC+i}, 0")
    a(f"v_lshlrev_b32 {vL16}, 4, {vL}"); a(f"v_lshlrev_b32 {vL8}, 3, {vL}"); a(f"v_lshlrev_b32 {t3}, 7, {vL}")
    a(f"v_and_b32 {t0}, 3, {vn}"); a(f"v_lshlrev_b32 {t0}, 8, {t0}"); a(f"v_lshrrev_b32 {t1}, 2, {vn}")
    a(f"v_lshl_add_u32 {t0}, {t1}, 6, {t0}"); a(f"v_lshl_add_u32 {vQt}, {vg}, 4, {t0}")
    def hello_ld(): a(f"buffer_load_dwordx2 v[12:13], {t3}, {WS}, {sFl} offen {fp}")
    for k in range(8):
        if k < 7: a.wait_vm(idk[k])
        if k == hk:
            a("s_mov_b32 exec_hi, 0"); hello_ld(); a("s_mov_b32 exec_hi, -1")
        if k: a("s_waitcnt lgkmcnt(0)")
        if k < 7:
            for c in range(4):
                a(f"ds_read_b64_tr_b16 {vr(WOP+16*(k%3)+4*c,2)}, {vTr} offset:{L_WQ + k*4096 + 32*c}")
                a(f"ds_read_b64_tr_b16 {vr(WOP+16*(k%3)+4*c+2,2)}, {vTr} offset:{L_WQ + k*4096 + 32*c + 512}")
        if k:
            for c in range(4):
                a(f"v_mfma_f32_16x16x32_bf16 {vr(QD+4*c)}, {vr(WOP+16*((k-1)%3)+4*c)}, {vr(XOP+4*(k-1))}, {vr(QD+4*c) if k > 1 else 0}")
    tag_make()
    for c in range(1, 4):
        for e in range(4):
            a(f"v_mov_b32_dpp v{QD+e}, v{QD+4*c+e} quad_perm:[0,1,2,3] row_mask:0xf bank_mask:{1<<c}")
    a(f"ds_write_b128 {vQt}, {vr(QD)} offset:{L_PART}")
    a(f"ds_read_b128 {vr(QD)}, {vL16} offset:{L_PART}")
    stamp("q_done")
    a("s_waitcnt vmcnt(0) lgkmcnt(0)")
    a("s_mov_b32 exec_hi, 0")
    poll("L_fl", hello_ld, lambda: tag_chk([12]), sleep=16, masked=True, first_issued=True)
    a("v_cmp_ne_u32 vcc, s59, v13")
    a("s_cmp_eq_u32 vcc_lo, 0"); a(f"s_cselect_b32 {sLocal}, {2 if force_remote else 1}, 2")
    stamp("hello_seen")
    a("v_mov_b32 v8, s56"); a("v_mov_b32 v9, s59")
    a(f"s_lshl3_add_u32 {sT1}, {sR}, {sRd}")
    def first_stores(b):
        a(f"buffer_store_dwordx4 {vr(QD)}, {vL16}, {WS}, {sQs} offen{b}")
        a(f"buffer_store_dwordx4 {vr(AOP)}, v18, {WS}, {sPb} offen{b}")
        a("s_mov_b32 exec_hi, 0")
        a(f"buffer_store_dwordx4 {vr(AOP)}, v18, {WS}, {sPa} offen{b}")
        a("s_mov_b32 exec_lo, 0xffff")
        a(f"buffer_store_dwordx4 {vr(ACC)}, {vL16}, {WS}, {sBz} offen{b}")
        a("s_mov_b32 exec_lo, 0xff")
        a(f"buffer_store_dwordx4 {vr(AOP)}, {vL16}, {WS}, {sMc} offen{b}")
        a("s_mov_b32 exec_lo, 1")
        a("s_waitcnt vmcnt(0)")
        a(f"buffer_store_dwordx2 v[8:9], off, {WS}, {sT1} offset:256{b}")
    by_placement("first", first_stores)
    a("s_mov_b32 exec_lo, -1")
    stamp("ready")
    poll("L_rd", lambda: a(f"buffer_load_dwordx2 v[12:13], {vL8}, {WS}, {sRd} offen offset:256 {fp}"), lambda: tag_chk([12]), sleep=hsleep, masked=True)
    stamp("go_seen")
    a(f"v_lshlrev_b32 {t0}, 4, {vn}"); a(f"v_lshl_add_u32 {t0}, {vg}, 10, {t0}")
    a(f"s_lshr_b32 {sT0}, {sR}, 3"); a(f"s_lshl_b32 {sT0}, {sT0}, 8"); a(f"s_lshl_b32 {sT1}, {sX}, 13"); a(f"s_add_u32 {sT0}, {sT0}, {sT1}")
    a(f"s_add_u32 {sT0}, {sT0}, 0x20000")
    a(f"s_lshl4_add_u32 {sT2}, {sH}, {sB}"); a(f"s_lshl_b32 {sT2}, {sT2}, 8")
    for u in (2, 0, 1):
        for kh in range(2):
            a(f"s_add_u32 {sT1}, {sT2 if u == 2 else sT0}, {kh * 0x10000 + (4096 if u == 1 else 0)}")
            a(f"buffer_load_dwordx4 {vr(64+8*u+4*kh)}, {t0}, {WS}, {sT1} offen {qp}")
    a(f"s_mov_b32 {sT1}, {WS_CH}")
    a("s_mov_b64 exec, 0xff")
    poll("L_ch", lambda: a(f"buffer_load_dwordx2 v[12:13], {t3}, {WS}, {sT1} offen {fp}"), lambda: tag_chk([12]), masked=True, sleep=1)
    for bit, dst in ((1, sT0), (2, sT1), (4, sCh)):
        a(f"v_and_b32 v12, {bit}, v13"); a("v_cmp_ne_u32 vcc, 0, v12"); a(f"s_and_b32 {dst}, vcc_lo, 0xff")
    a(f"s_bcnt1_i32_b32 {sT0}, {sT0}"); a(f"s_bcnt1_i32_b32 {sT1}, {sT1}")
    a(f"s_cmp_gt_u32 {sT1}, {sT0}"); a(f"s_cselect_b32 {sT0}, 0xff, 0"); a(f"s_xor_b32 {sCh}, {sCh}, {sT0}")
    a(f"v_mov_b32 {t0}, {L_LOC}"); a(f"v_mov_b32 {t1}, {sLocal}"); a(f"v_mov_b32 {t2}, {sCh}"); a(f"ds_write2_b32 {t0}, {t1}, {t2} offset0:0 offset1:1")
    for u in range(3):
        for e in range(4): a(f"v_add_f32 v{64+8*u+e}, v{64+8*u+e}, v{64+8*u+4+e}")
        for e in range(2): a(f"v_cvt_pk_bf16_f32 v{64+8*u+e}, v{64+8*u+2*e}, v{64+8*u+2*e+1}")
        a(f"ds_write_b64 {vL8}, {vr(64+8*u,2)} offset:{L_Q+512*u}")
    a("s_waitcnt lgkmcnt(0)")
    stamp("q_in_lds")
    a("s_barrier")
    a(f"v_mov_b32 {t3}, 0")
    if vt:
        a(f"s_lshl4_add_u32 s40, {sB}, {sH}"); a("s_lshl_b32 s40, s40, 21")
        a(f"s_andn2_b32 s41, {sR}, 7"); a(f"s_add_u32 s41, s41, {sX}"); a("s_lshl_b32 s41, s41, 21"); a("s_add_u32 s41, s41, 0x180000")
        for pp, o in ((16, "s41"), (18, "s41"), (8, "s40"), (12, sU), (22, sU)):
            a(f"s_add_u32 s{pp}, s{pp}, {o}"); a(f"s_addc_u32 s{pp+1}, s{pp+1}, 0")
        if vt > 1:
            a(f"s_mul_i32 {sT0}, {sR}, {vt - 1}")
            def vchk():
                a("v_add3_u32 v8, v8, v9, v10"); a("v_add_u32 v8, v8, v11"); a(f"v_cmp_ge_u32 vcc, {sT0}, v8")
            poll("L_vt", lambda: a(f"ds_read_b128 v[8:11], {t3} offset:{L_PRG}"), vchk, sleep=2)
        a("s_mov_b64 exec, 1")
        for i, pp in enumerate((16, 18, 8)): a(f"global_load_dword v{12+i}, {t3}, s[{pp}:{pp+1}] {pol}")
        if vtw:
            a(f"s_cmp_ge_u32 {sR}, 28"); a("s_cbranch_scc1 L_vt_nw")
            for i, pp in enumerate((12, 22)): a(f"global_load_dword v{20+i}, {t3}, s[{pp}:{pp+1}] {pol}")
            a("L_vt_nw:")
        a("s_mov_b64 exec, -1")
    def wait_progress(name, target, stag=0):
        a(f"s_and_b32 {sCnt}, {sR}, {stag}"); a(f"s_add_u32 {sCnt}, {sCnt}, {target}")
        def chk():
            a("v_min3_u32 v8, v8, v9, v10"); a("v_min_u32 v8, v8, v11"); a(f"v_cmp_gt_u32 vcc, {sCnt}, v8")
        poll(name, lambda: a(f"ds_read_b128 v[8:11], {t3} offset:{L_PRG}"), chk, sleep=8)
    if mlh:
        a("; ---- the waves' (max, sum) pairs go out: lanes 0-3, 4-7 B's heads, 8-11 A ----")
        a(f"s_lshl2_add_u32 {sT0}, {sH}, {sB}"); a(f"s_and_b32 {sT1}, {sR}, 3"); a(f"s_lshl3_add_u32 {sT0}, {sT0}, {sT1}")
        a(f"s_lshl_b32 {sT1}, {sX}, 6"); a(f"s_add_u32 {sT1}, {sT1}, {sR}"); a(f"s_add_u32 {sT1}, {sT1}, 512")
        a(f"v_lshrrev_b32 {t0}, 2, {vL}"); a(f"v_lshl_add_u32 {t0}, {t0}, 5, {sT1}"); a(f"v_mov_b32 {t1}, {sT0}")
        a(f"v_cmp_lt_u32 vcc, 7, {vL}"); a(f"v_cndmask_b32 {t0}, {t0}, {t1}, vcc")
        a(f"v_and_b32 {t1}, 3, {vL}"); a(f"v_lshl_add_u32 {t0}, {t0}, 2, {t1}"); a(f"v_lshlrev_b32 {X[0]}, 3, {t0}")
        a(f"s_mov_b32 {sT2}, {WS_ML}")
        wait_progress("L_w0", PB_ - 3)
        a(f"ds_read_b64 v[12:13], {vL8} offset:{L_ML}")
        a("s_waitcnt lgkmcnt(0)")
        a("v_min_u32 v12, -2, v12"); a("v_min_u32 v13, -2, v13")
        a("s_mov_b64 exec, 0xfff")
        by_placement("ml", lambda b: a(f"buffer_store_dwordx2 v[12:13], {X[0]}, {WS}, {sT2} offen{b}"))
        a("s_mov_b64 exec, -1")
    a(f"s_lshl2_add_u32 {sT0}, {sH}, {sB}"); a(f"s_lshl_b32 {sT0}, {sT0}, 8"); a(f"s_add_u32 {sT0}, {sT0}, {WS_ML}")
    a(f"s_lshr_b32 {sT1}, {sR}, 3"); a(f"s_lshl3_add_u32 {sT1}, {sX}, {sT1}"); a(f"s_lshl_b32 {sT1}, {sT1}, 8"); a(f"s_add_u32 {sT1}, {sT1}, {WS_ML + 512*32}")
    a(f"v_lshlrev_b32 {U[0]}, 3, {vn}")
    a(f"v_and_b32 {t0}, 31, {vL}"); a(f"v_lshlrev_b32 {t0}, 3, {t0}"); a(f"v_lshrrev_b32 {t1}, 5, {vL}"); a(f"v_lshl_add_u32 {U[1]}, {t1}, 10, {t0}")
    wait_progress("L_w1", PB_ + max(1, h1 // 4), st1)
    stamp("B_in_lds")
    def ml_loads():
        a(f"buffer_load_dwordx2 {vr(MLG,2)}, {U[0]}, {WS}, {sT0} offen {mp}")
        a(f"buffer_load_dwordx2 {vr(MLG+2,2)}, {U[1]}, {WS}, {sT1} offen {mp}")
    poll("L_ml", ml_loads, lambda: sentinel(range(MLG, MLG + 4)), sleep=4)
    MA, MB = V
    a(f"v_max_f32_dpp {MA}, v{MLG}, v{MLG} row_ror:8 {FULL}"); a(f"v_max_f32_dpp {MB}, v{MLG+2}, v{MLG+2} row_ror:8 {FULL}")
    for sft in (4, 2, 1):
        a(f"v_max_f32_dpp {MA}, {MA}, {MA} row_ror:{sft} {FULL}"); a(f"v_max_f32_dpp {MB}, {MB}, {MB} row_ror:{sft} {FULL}")
    red("v_max_f32", MB, (16,))
    a(f"v_sub_f32 v{MLG}, v{MLG}, {MA}"); a(f"v_sub_f32 v{MLG+2}, v{MLG+2}, {MB}")
    a(f"v_exp_f32 v{MLG}, v{MLG}"); a(f"v_exp_f32 v{MLG+2}, v{MLG+2}")
    a(f"v_mul_f32 {MA}, v{MLG}, v{MLG+1}"); a(f"v_mul_f32 {MB}, v{MLG+2}, v{MLG+3}")
    for sft in (8, 4, 2, 1):
        a(f"v_add_f32_dpp {MA}, {MA}, {MA} row_ror:{sft} {FULL}"); a(f"v_add_f32_dpp {MB}, {MB}, {MB} row_ror:{sft} {FULL}")
    red("v_add_f32", MB, (16,))
    a(f"v_rcp_f32 {MA}, {MA}"); a(f"v_rcp_f32 {MB}, {MB}")
    a(f"v_mul_f32 {MA}, v{MLG}, {MA}"); a(f"v_mul_f32 {MB}, v{MLG+2}, {MB}")
    SF = 4
    a(f"s_and_b32 {sT0}, {sR}, 7"); a(f"s_lshl_b32 {sT0}, {sT0}, 2"); a(f"s_and_b32 {sT1}, {sT0}, 15")
    for u in range(3):
        for w in range(4):
            a(f"s_add_u32 {sT2}, {sT1 if u == 2 else sT0}, {w + (32 if u == 1 else 0)}")
            a(f"v_readlane_b32 s{SF+4*u+w}, {MA if u == 2 else MB}, {sT2}")
    a("; ---- B: sum the waves, publish, gather the group's shares, sum them; then A's share at the end ----")
    CB = 184
    def combine(u):
        for w in range(4): a(f"ds_read_b128 {vr(CB+4*w)}, {vL16} offset:{L_PART + 4096*u + 1024*w}")
        for w in range(4):
            a(f"s_waitcnt lgkmcnt({0 if stamps else 3 - w})")
            for e in range(4):
                if w: a(f"v_fmac_f32 v{CB+e}, s{SF+4*u+w}, v{CB+4*w+e}")
                else: a(f"v_mul_f32 v{CB+e}, s{SF+4*u}, v{CB+e}")
        for e in range(2): a(f"v_cvt_pk_bf16_f32 v{CB+e}, v{CB+2*e}, v{CB+2*e+1}")
        for e in range(2): a(f"v_min_u32 v{CB+16+2*u+e}, -2, v{CB+e}")
    def publish(u, so):
        by_placement(f"pub{u}", lambda b: a(f"buffer_store_dwordx2 {vr(CB+16+2*u,2)}, {vPa}, {WS}, {so} offen{b}"), have_scc=True)
    a(f"s_add_u32 {sT0}, {sRecB}, 16384")
    a(f"s_cmp_eq_u32 {sLocal}, 1")
    for u in range(2):
        combine(u)
        if not nob & 1: publish(u, (sRecB, sT0)[u])
    a(f"s_cmp_ge_u32 {sR}, 28"); a("s_cbranch_scc1 L_h_nos2")
    GB = 128; OB = 64
    a(f"s_add_u32 {sT0}, {sG}, 8192")
    if h2: wait_progress("L_w2", PB_ + h2 // 4, st2)
    def gB():
        for st in range(2):
            for k in range(4): a(f"buffer_load_dwordx4 {vr(GB+16*st+4*k)}, {vGo}, {WS}, {(sG, sT0)[st]} offen offset:{1024*k} {bp}")
    if not nob: poll("L_s2b", gB, lambda: sentinel(range(GB, GB + 32)), sleep=16, masked=True)
    for i in range(16):
        a(f"v_lshlrev_b32 v{160+i}, 16, v{GB+i}"); a(f"v_lshlrev_b32 {t0}, 16, v{GB+16+i}")
        a(f"v_and_b32 v{GB+i}, 0xffff0000, v{GB+i}"); a(f"v_and_b32 v{GB+16+i}, 0xffff0000, v{GB+16+i}")
        a(f"v_add_f32 v{160+i}, v{160+i}, {t0}"); a(f"v_add_f32 v{GB+i}, v{GB+i}, v{GB+16+i}")
    for qp in (QP1, QP2):
        for i in range(16):
            a(f"v_add_f32_dpp v{160+i}, v{160+i}, v{160+i} {qp}"); a(f"v_add_f32_dpp v{GB+i}, v{GB+i}, v{GB+i} {qp}")
    for i in range(16): a(f"v_cvt_pk_bf16_f32 v{GB+i}, v{160+i}, v{GB+i}")
    for k in range(4): a(f"ds_write_b128 {vL16}, {vr(GB+4*k)} offset:{L_PART + 1024*k}")
    a("L_h_nos2:")
    stamp("oB_ready")
    a(f"s_cmp_eq_u32 {sLocal}, 1")
    a("s_waitcnt lgkmcnt(0)")
    a("s_barrier")
    combine(2); publish(2, sRecA)
    stamp("published")
    for i in range(3 if g2 else 2): a("s_barrier")
    if stamps or probe: finish()
    a("L_end:")
    a("s_endpgm")
    a.pad()
    global STAMP_NAMES
    STAMP_NAMES = {k: v[:-1] for k, v in names.items()}
    head = HEADER + f"; @launch grid=(256,1,1) block=({64*NW},1,1) lds={L_KB + NL * 4096}\n" + DOC
    head += f'.amdgcn_target "amdgcn-amd-amdhsa--gfx950"\n.text\n.globl {NAME}_kernel\n.p2align 8\n.type {NAME}_kernel,@function\n{NAME}_kernel:\n'
    nv = 256 if stamps else max(RING + 4 * RP, 224)
    assert not (stamps and RP > 47)
    tail = f'''.section .rodata,"a"
.p2align 6
.amdhsa_kernel {NAME}_kernel
  .amdhsa_next_free_vgpr {nv}
  .amdhsa_next_free_sgpr 102
  .amdhsa_accum_offset {nv}
  .amdhsa_group_segment_fixed_size 0
  .amdhsa_kernarg_size 104
  .amdhsa_user_sgpr_count 2
  .amdhsa_user_sgpr_kernarg_segment_ptr 1
  .amdhsa_system_sgpr_workgroup_id_x 1
  .amdhsa_float_denorm_mode_32 3
.end_amdhsa_kernel
'''
    return head + a.text() + tail

if __name__ == "__main__":
    kw = eval("dict(" + (sys.argv[2] if len(sys.argv) > 2 else "") + ")")
    open(sys.argv[1], "w").write(gen(**kw))
```

```python
import os, sys, struct
from asmlib import Asm
def f2u(x): return struct.unpack('<I', struct.pack('<f', x))[0]

NAME = "concat_heads__mha_block_cached__sliding_block_cached__decode"
_ref = "cdna_kernels/" + NAME + ".s.ref"
HEADER = open(_ref).read().split("; Override launch")[0] if os.path.exists(_ref) else ""

WS_QP = 0x0
WS_ML = 0x40000
WS_PO = 0x48000
WS_FL = 0xC8000
WS_GC = 0xD0000
WS_EP = 0xE4000
WS_CH = 0xE5000
WS_Y = 0x100000
YG = 7 * 16384
WS_END = WS_Y + 8 * YG
WS_STAMP = 0x400000
L_WQ = 0
L_WOA = 0
L_WOB = 16384
L_PART = 32768
L_Q = L_PART + 12288
L_CNT = L_Q + 1536
L_LOC = L_CNT + 4
L_CH = L_CNT + 8
L_PRG = L_CNT + 16
L_TH = L_CNT + 32
L_ML = L_CNT + 64
L_KB = L_CNT + 512
OOB = 0x40000000
TAGC = (0x9E3779B9, 0x7F4A7C15)
CSCALE = 0x3DB8AA3B
NW = 6


DOC = """;
; constant; the seed is moved on at the end) or by a sentinel written earlier in the same launch.  Every
;
"""

def brev(j, bits): return int(f"{j:0{bits}b}"[::-1], 2)
FULL = "row_mask:0xf bank_mask:0xf"
QP1 = "quad_perm:[1,0,3,2] " + FULL
QP2 = "quad_perm:[2,3,0,1] " + FULL

def gen(D=5, D0=5, ND0=12, RP=46, NL=12, ratio=6, stamps=False, fine=False, spin=1 << 19, pol="nt", force_remote=False,
        th0=4.15, thmin=3, gain=0.125, gw=0.08, gx=0.75, gstop=3, gI=1536, gc=1130, c0=6,
        rot=1, rotx=4, rotm=1, tlb=False, wod=2, wpos=0, g2=True, hk=6, hsleep=2, near=None, nrace=4, ml0=4, ml1=6, nowo=0, swz=True, vt=0, pf=2, bx=0, ila=2, ilb=1, rp=4, rph=0, lay=0, kv=0, wqt=0, pbar=4, xm=1, wg=None, wk=1.0, wcap=8, wfake=0, wbe=0, hb=None, rx=None, vtw=False, krot=5, krp=3, cbd=0, nox=False, wt=None, wtw=True, LG=16, thmax=12, nboost=24, xa=(), xb=(), kup=2.0, kat=2.0, probe=None, wth=None, wde=0, wpe=2, fat=False, wper=1, qfake=0, seedsc=True, pre=0, nomf=False, h1=24, h2=56, mlh=True, xl=True, lsc=True, st1=0, st2=0, nob=0, qp='sc1 nt', bp='sc1 nt', ap='sc1 nt', gp='sc1 nt', mp='sc1 nt', early=False, r2=10, yp='sc1', fp='sc1', lp='', xp='', beta=8, dead=600):
    a = Asm()
    NTOT = 288; RT = RP + NL; thmax = min(thmax, LG - 2)
    sWG = "s2"; sW = "s3"
    KA, VA, KB, VB, WQ, XS, WS, OUT, WOA, WOB = (f"s[{i}:{i+3}]" for i in (32, 36, 40, 44, 32, 36, 60, 44, 48, 52))
    sLb = "s64"
    sX, sR, sH, sB = "s72", "s73", "s74", "s75"
    sOff = "s76"; sCnt = "s77"; sT0 = "s78"; sT1 = "s79"; sT2 = "s80"; sT3 = "s81"
    sRecA = "s82"; sRecB = "s83"; sG = "s84"; sY = "s85"; sU = "s86"; sC = "s87"; sSpin = "s88"; sLocal = "s89"
    sMk1 = "s[90:91]"; sMk0 = "s[92:93]"; sTh = "s94"; sRot = "s95"
    vL = "v0"; vKo = "v1"; vM = [f"v{i}" for i in range(2, 6)]
    QA = 6; QB = 14; SP = 30; AOP = 34; ACC = 38
    T = ["v46", "v47"]; U = ["v48", "v49"]; V = ["v50", "v51"]; X = ["v52", "v53"]
    t0, t1, t2, t3 = "v54", "v55", "v56", "v57"
    vm, vl, vg, vn = "v186", "v187", "v60", "v61"
    vmB, vlB = "v188", "v189"
    RING = 64
    OBS = 96; WTB = 112; ACCB = 128; SB = "v136"; vfA = "v137"; MLG = 138; WT = 144; G = 160
    vGo = "v176"; vYo = "v177"; vTr = "v178"; vPa = "v179"; vPrg = "v58"; vPrA = "v59"; vTH = "v62"; vWo = "v183"; vYm = "v206"; vYt = "v207"; vYb = "v184"; vWo2 = "v185"
    def slot(k): return RING + 4 * k
    def vr(i, n=4): return f"v[{i}:{i+n-1}]"
    names = {"s": [], "h": [], "g": []}
    cur = ["s"]
    def stamp(name):
        if probe and name == "start": a("s_memrealtime s[96:97]")
        if probe and len(probe) > 5 and (cur[0], name) == (probe[0], probe[5]): a("s_memrealtime s[26:27]"); a("s_waitcnt lgkmcnt(0)")
        if probe and (cur[0], name) == probe[:2]: a("s_memrealtime s[20:21]"); a("s_waitcnt lgkmcnt(0)")
        if not stamps: return
        nm = names[cur[0]]
        if nm:
            a("s_waitcnt lgkmcnt(0)")
            a(f"v_writelane_b32 v255, s96, {len(nm)-1}")
        nm.append(name)
        a("s_memrealtime s[96:97]")
    def finish():
        if probe and cur[0] == probe[0]:
            if probe[1] == "end": a("s_memrealtime s[20:21]"); a("s_waitcnt lgkmcnt(0)")
            a(f"s_sub_u32 s20, s20, {'s26' if len(probe) > 5 else 's96'}"); a(f"s_mul_i32 s20, s20, {probe[2]}"); a(f"s_add_u32 s20, s20, {probe[4]}")
            if probe[3] is not None: a(f"s_cmp_eq_u32 {sR if probe[3] < 32 else sWG}, {probe[3]}"); a("s_cselect_b32 s20, s20, 0")
            a("s_min_u32 s20, s20, 40000")
            a("L_probe:"); a("s_memrealtime s[22:23]"); a("s_waitcnt lgkmcnt(0)"); a("s_sub_u32 s22, s22, s96"); a("s_cmp_lt_u32 s22, s20"); a("s_cbranch_scc1 L_probe")
        if stamps:
            a("s_mov_b64 exec, -1")
            stamp("end"); a("s_waitcnt vmcnt(0)"); stamp("acked"); stamp("x")
            a("s_mov_b32 exec_hi, 0")
            a(f"s_mul_i32 {sT0}, {sWG}, {NW}"); a(f"s_add_u32 {sT0}, {sT0}, {sW}"); a(f"s_lshl_b32 {sT0}, {sT0}, 7"); a(f"s_add_u32 {sT0}, {sT0}, {WS_STAMP}")
            a(f"v_lshl_add_u32 {t0}, {vL}, 2, {sT0}")
            a(f"global_store_dword {t0}, v255, s[28:29]")
        a("s_endpgm")
    def srd(i, lo, hi, size):
        if lo is not None: a(f"s_mov_b32 s{i}, {lo}"); a(f"s_mov_b32 s{i+1}, {hi}")
        a(f"s_mov_b32 s{i+2}, {size}"); a(f"s_mov_b32 s{i+3}, 0x20000")
    def poll(name, loads, check, sleep=0, first_issued=False, masked=False):
        sv = a.vm_seq
        a(f"s_mov_b32 {sSpin}, {spin}")
        if first_issued: a(f"s_branch {name}_chk")
        a(f"{name}:")
        if sleep: a(f"s_sleep {sleep}")
        loads()
        a(f"s_sub_u32 {sSpin}, {sSpin}, 1"); a(f"s_cmp_eq_u32 {sSpin}, 0")
        a("s_waitcnt vmcnt(0) lgkmcnt(0)")
        a(f"s_cbranch_scc1 {name}_go")
        if first_issued: a(f"{name}_chk:")
        check()
        if masked:
            a("s_and_b64 exec, exec, vcc")
            a(f"s_cbranch_scc1 {name}")
        else:
            a(f"s_cbranch_vccnz {name}")
        a(f"{name}_go:")
        if masked: a("s_mov_b64 exec, -1")
        if first_issued: a.vm_seq = sv
    def by_placement(tag, emit, have_scc=False):
        if not have_scc: a(f"s_cmp_eq_u32 {sLocal}, 1")
        a(f"s_cbranch_scc1 L_{tag}_l")
        sv = a.vm_seq
        emit(" sc1"); a.vm_seq = sv
        a(f"s_branch L_{tag}_d")
        a(f"L_{tag}_l:")
        emit(" " + lp if lp else "")
        a(f"L_{tag}_d:")
    def sentinel(regs):
        regs = list(regs); accs = [t0, t2]
        a(f"v_max_u32 {t0}, v{regs[0]}, v{regs[1]}"); a(f"v_max_u32 {t2}, v{regs[2]}, v{regs[3]}")
        for i in range(4, len(regs), 2):
            c = accs[(i >> 1) & 1]
            a(f"v_max3_u32 {c}, {c}, v{regs[i]}, v{regs[i+1]}")
        a(f"v_max_u32 {t0}, {t0}, {t2}")
        a(f"v_cmp_eq_u32 vcc, -1, {t0}")
    def red(op, r, steps):
        for s in steps:
            if s in (16, 32):
                a(f"v_mov_b32 {t1}, {r}"); a(f"v_permlane{s}_swap_b32 {r}, {t1}"); a(f"{op} {r}, {r}, {t1}")
            elif s == "q1": a(f"{op}_dpp {r}, {r}, {r} {QP1}")
            elif s == "q2": a(f"{op}_dpp {r}, {r}, {r} {QP2}")
            else: a(f"{op}_dpp {r}, {r}, {r} row_ror:{s} {FULL}")
    def rnd(r):
        a(f"v_cvt_pk_bf16_f32 {r}, {r}, {r}"); a(f"v_and_b32 {r}, 0xffff0000, {r}")
    def unit(P):
        a(f"s_mul_i32 {sT0}, {sR}, 37"); a(f"s_lshr_b32 {sT0}, {sT0}, 8")
        a(f"s_mul_i32 {sT1}, {sT0}, 7"); a(f"s_sub_u32 {sT1}, {sR}, {sT1}")
        a(f"s_lshl_b32 {sT2}, {sX}, 2"); a(f"s_add_u32 {sT0}, {sT0}, {sT2}")
        a(f"s_mul_i32 {sU}, {sT0}, {128*896}"); a(f"s_lshl_b32 {sT2}, {sT1}, 7"); a(f"s_add_u32 {sU}, {sU}, {sT2}")
        a(f"s_lshr_b32 {sG}, {sT0}, 1"); a(f"s_lshl_b32 {sG}, {sG}, 14"); a(f"s_and_b32 {sT2}, {sT0}, 1"); a(f"s_lshl_b32 {sT2}, {sT2}, 12")
        a(f"s_add_u32 {sG}, {sG}, {sT2}"); a(f"s_add_u32 {sG}, {sG}, {WS_PO + P*512*512}")
        a(f"s_lshl_b32 {sY}, {sT1}, 14"); a(f"s_lshl_b32 {sT2}, {sT0}, 6"); a(f"s_add_u32 {sY}, {sY}, {sT2}")
        a(f"s_add_u32 {sY}, {sY}, {WS_Y}")
    def unit_v():
        a(f"v_lshrrev_b32 {t0}, 2, {vn}"); a(f"v_and_b32 {t2}, 3, {vn}")
        a(f"v_lshlrev_b32 {vGo}, 4, {vL}")
        a(f"v_lshl_add_u32 {vTr}, {vg}, 3, {t0}"); a(f"v_lshlrev_b32 {vTr}, 7, {vTr}"); a(f"v_lshl_add_u32 {vTr}, {t2}, 3, {vTr}")
        a(f"v_lshrrev_b32 {t0}, 3, {vL}"); a(f"v_mul_u32_u24 {t0}, 896, {t0}"); a(f"v_and_b32 {t2}, 7, {vL}"); a(f"v_lshl_add_u32 {vWo}, {t2}, 4, {t0}")
    sCh = "s71"
    def y_base(dst, P):
        a(f"v_add_u32 {t0}, {4*P}, {vg}"); a(f"v_mul_u32_u24 {dst}, {YG}, {t0}")
        a(f"v_bfe_u32 {t2}, {sCh}, {t0}, 1"); a(f"v_lshl_add_u32 {dst}, {t2}, 13, {dst}"); a(f"v_lshl_add_u32 {dst}, {vn}, 2, {dst}")
    def tag_load(): a(f"s_load_dwordx2 s[56:57], s[28:29], {WS_EP}")
    def tag_make():
        a(f"s_add_u32 s56, s56, {TAGC[0]}"); a(f"s_addc_u32 s57, s57, {TAGC[1]}"); a("s_lshr_b32 s58, s57, 4")
        a(f"s_getreg_b32 {sT0}, hwreg(HW_REG_XCC_ID, 0, 4)")
        a("s_lshl_b32 s59, s58, 4"); a(f"s_or_b32 s59, s59, {sT0}")
    def tag_chk(regs):
        for i, r in enumerate(regs):
            a(f"v_lshrrev_b32 {t1}, 4, v{r+1}"); a(f"v_xor_b32 {t1}, s58, {t1}"); a(f"v_xor_b32 {t2}, s56, v{r}")
            if i: a(f"v_or3_b32 {t0}, {t0}, {t1}, {t2}")
            else: a(f"v_or_b32 {t0}, {t1}, {t2}")
        a(f"v_cmp_ne_u32 vcc, 0, {t0}")

    YT = ["s65", "s66", "s67", "s68"]
    def ytag_make():
        a(f"s_and_b32 {YT[0]}, s56, 0xfff"); a(f"s_bfe_u32 {YT[1]}, s56, 0xc000c")
        a(f"s_and_b32 {YT[2]}, s58, 0xfff"); a(f"s_bfe_u32 {YT[3]}, s58, 0xc000c")
    def y_seal(r):
        a(f"v_add_u32 v{r}, 0x800, v{r}"); a(f"v_and_or_b32 v{r}, v{r}, {vYm}, {vYt}")

    a("s_load_dwordx16 s[4:19], s[0:1], 0")
    a("s_load_dwordx8 s[20:27], s[0:1], 64")
    a("s_load_dwordx2 s[28:29], s[0:1], 96")
    stamp("start"); names["h"] = list(names["s"]); names["g"] = list(names["s"])
    a(f"s_cmp_ge_u32 {sWG}, 256")
    a("s_cbranch_scc1 L_end")
    a(f"v_lshrrev_b32 {t2}, 6, v0")
    a(f"v_and_b32 {vL}, 63, v0")
    a(f"v_readfirstlane_b32 {sW}, {t2}")
    a(f"v_lshrrev_b32 {vg}, 4, {vL}")
    a(f"v_and_b32 {vn}, 15, {vL}")
    a(f"s_and_b32 {sX}, {sWG}, 7")
    a(f"s_lshr_b32 {sR}, {sWG}, 3")
    a(f"s_lshr_b32 {sT0}, {sWG}, 7")
    a(f"s_lshl1_add_u32 {sH}, {sX}, {sT0}")
    a(f"s_bfe_u32 {sB}, {sR}, 0x20002")
    a(f"s_cmp_ge_u32 {sW}, 4")
    a("s_cbranch_scc1 L_helper")

    a(f"v_lshl_add_u32 {vKo}, {t2}, 2, {vg}")
    a(f"v_lshl_add_u32 {vKo}, {vKo}, 5, {vn}")
    a(f"v_lshlrev_b32 {vKo}, 4, {vKo}")
    HA = 3 << (13 + ila); HB = 7 << (13 + ilb)
    a(f"s_lshl4_add_u32 s40, {sB}, {sH}"); a(f"s_and_b32 s41, {sR}, 3")
    if hb:
        HA = (1 << hb[0]) | (1 << hb[1])
        a("s_lshl_b32 s40, s40, 21"); a("s_and_b32 s42, s41, 1"); a(f"s_lshl_b32 s42, s42, {hb[0]}"); a("s_add_u32 s40, s40, s42")
        a("s_lshr_b32 s42, s41, 1"); a(f"s_lshl_b32 s42, s42, {hb[1]}"); a("s_add_u32 s40, s40, s42")
    elif ila == 6:
        a("s_lshl2_add_u32 s40, s40, s41"); a("s_lshl_b32 s40, s40, 19")
    else:
        a(f"s_lshl_b32 s40, s40, {8 - ila}"); a("s_add_u32 s40, s40, s41"); a(f"s_lshl_b32 s40, s40, {13 + ila}")
    NRA = 0x200000 - HA; MA_ = 0x1fffff & ~HA
    if lay:
        nb = 3 + lay
        HA = (((1 << nb) - 1) << (13 + ila)) | ((15 << 21) if lay == 1 else (7 << 22))
        NRA = 0x8000000 - HA; MA_ = 0x7ffffff & ~HA
        a(f"s_and_b32 s40, {sR}, {(1 << nb) - 1}"); a(f"s_lshl_b32 s40, s40, {13 + ila}")
        a(f"s_lshl_b32 s42, {sH if lay == 1 else sX}, {20 + lay}"); a("s_add_u32 s40, s40, s42")
    srd(32, None, None, NRA)
    cur_off = [0]
    sMask = "s70"; sHole = "s100"; sRa = "s101"
    rota = rp or rph
    if rx:
        a(f"s_mul_i32 {sRa}, {sB}, {rx[0]}"); a(f"s_mul_i32 {sOff}, {sH}, {rx[1]}"); a(f"s_add_u32 {sRa}, {sRa}, {sOff}")
        a(f"s_lshr_b32 {sRa}, {sRa}, {rx[2]}"); a(f"s_and_b32 {sRa}, {sRa}, 3"); a(f"s_lshl_b32 {sRa}, {sRa}, 19")
    elif rp << ila == 16 and not rph:
        a(f"s_lshl_b32 {sRa}, {sB}, 19")
    elif rota:
        a(f"s_mul_i32 {sRa}, {sB}, {rp}"); a(f"s_mul_i32 {sOff}, {sH}, {rph}"); a(f"s_add_u32 {sRa}, {sRa}, {sOff}")
        a(f"s_lshl_b32 {sRa}, {sRa}, {15 + ila}"); a(f"s_and_b32 {sRa}, {sRa}, 0x1fffff")
    a(f"s_mov_b32 {sOff}, {sRa if rota else 0}")
    sXo = "s4"; sXa = "s5"; sXb = "s10"; sEff = "s11"
    def xor_make(dst, spec):
        a(f"s_mov_b32 {dst}, 0")
        for bit, src in spec:
            a(f"s_bitcmp1_b32 {sWG}, {src}"); a(f"s_cselect_b32 {sT1}, {1 << bit}, 0"); a(f"s_xor_b32 {dst}, {dst}, {sT1}")
    def advance(n, masked=False):
        if masked:
            a(f"s_or_b32 {sOff}, {sOff}, {sHole}"); a(f"s_addk_i32 {sOff}, 8192"); a(f"s_and_b32 {sOff}, {sOff}, {sMask}")
        else:
            nx = ((cur_off[0] | HA) + 8192) & ~HA
            d = nx - cur_off[0]; cur_off[0] = nx
            if d == 8192: a(f"s_addk_i32 {sOff}, 8192")
            else:
                a(f"s_add_u32 {sOff}, {sOff}, {d}")
                if rota: a(f"s_bitset0_b32 {sOff}, 21")
    def backlog(P0, do_issue, do_proc):
        p = 0; burst = 0; iss = RT
        while not (p % LG == 0 and iss - p == LG and p >= RT):
            do_proc(p); p += 1
            if early:
                if p & 1: continue
                free = iss + 1 - RT < p and (P0 is None or iss < P0 + LG)
                if iss - p < LG or (iss - p > LG and free and (burst < 2 or p % r2 == 0)):
                    assert free
                    do_issue(); iss += 2; burst += 1
                continue
            free = iss - RT < p and (P0 is None or iss < P0 + LG)
            if iss - p < LG or (iss - p > LG and free and (burst < D or p % ratio == 0)):
                assert free
                do_issue(); iss += 1; burst += 1
        return p
    P0 = backlog(None, lambda: None, lambda p: None)
    assert P0 - RT <= 16 and P0 <= 112
    a("s_waitcnt lgkmcnt(0)")
    a(f"s_add_u32 s32, s{6+2*kv}, s40"); a(f"s_addc_u32 s33, s{7+2*kv}, 0")
    if xa: xor_make(sXa, xa); a(f"s_mov_b32 {sXo}, {sXa}")
    ids = {}
    def srd_of(n): return KA if n < 128 else KB if n < 144 else VB if n < 160 else VA
    def kslot(n):
        if n >= P0: return n % LG
        if n >= RT: return LG + n - RT
        if n >= RP: return 32 + (n - RP) % 8
        NT = P0 - RT
        return LG + n if n < NT else n - NT if n < NT + LG else n
    def issue(n, masked=False):
        if n == 144: a(f"s_mov_b32 {sOff}, {sRot}")
        if n == 160:
            a(f"s_mov_b32 {sOff}, {sRa if rota else 0}"); a(f"s_mov_b32 {sHole}, {HA}"); a(f"s_mov_b32 {sMask}, {MA_}")
            if xa or xb: a(f"s_mov_b32 {sXo}, {sXa if xa else 0}")
        masked = masked or n >= 128
        so = sOff
        if xa or (xb and masked and n < 160):
            so = sEff
            if not n & 1: a(f"s_xor_b32 {sEff}, {sOff}, {sXo}")
        if RP <= n < RT:
            a(f"s_add_u32 m0, {sLb}, {256 + (n - RP) * 1024 - 256 * (n & 1)}")
            ids[n] = a(f"buffer_load_dwordx4 {vKo}, {srd_of(n)}, {so} offen offset:{256*(n&1)} {pol} lds")
        else:
            ids[n] = a(f"buffer_load_dwordx4 {vr(slot(kslot(n)))}, {vKo}, {srd_of(n)}, {so} offen offset:{256*(n&1)} {pol}")
        if n & 1: advance(n, masked)
    for n in range(D0): issue(n)
    issued = D0
    stamp("k0")
    tag_load()
    a(f"s_add_u32 s36, s{8-2*kv}, s40"); a(f"s_addc_u32 s37, s{9-2*kv}, 0"); srd(36, None, None, NRA)
    a(f"s_lshl2_add_u32 {sRecA}, {sH}, {sB}"); a(f"s_lshl3_add_u32 {sRecA}, {sRecA}, s41")
    a(f"s_lshl_b32 {sRecB}, {sX}, 6"); a(f"s_add_u32 {sRecB}, {sRecB}, {sR}"); a(f"s_add_u32 {sRecB}, {sRecB}, 512")
    a(f"s_andn2_b32 s44, {sR}, 7"); a(f"s_add_u32 s44, s44, {sX}"); a(f"s_xor_b32 s44, s44, {bx}"); a("s_lshl_b32 s44, s44, 21")
    a(f"s_and_b32 s45, {sR}, 7"); a(f"s_lshl_b32 s45, s45, {13 + ilb}"); a("s_add_u32 s44, s44, s45"); a("s_add_u32 s44, s44, 0x180000")
    a("s_add_u32 s40, s16, s44"); a("s_addc_u32 s41, s17, 0"); srd(40, None, None, 0x80000 - HB)
    a("s_add_u32 s44, s18, s44"); a("s_addc_u32 s45, s19, 0"); srd(44, None, None, 0x80000 - HB)
    srd(60, "s28", "s29", WS_END); srd(48, "s12", "s13", 0 if nowo & 1 else 0x380000); srd(52, "s22", "s23", 0 if nowo & 2 else 0x380000)
    unit(0)
    a(f"s_mul_i32 {sT0}, {sW}, {4*8*896}"); a(f"s_add_u32 {sU}, {sU}, {sT0}")
    a(f"s_lshl_b32 {sT0}, {sW}, 11"); a(f"s_add_u32 {sY}, {sY}, {sT0}")
    sUB = "s69"
    a(f"s_xor_b32 {sT0}, {sX}, {bx}"); a(f"s_sub_i32 {sT0}, {sT0}, {sX}"); a(f"s_mul_i32 {sT0}, {sT0}, {512*896}"); a(f"s_add_u32 {sUB}, {sU}, {sT0}")
    a(f"s_cmp_ge_u32 {sR}, 28"); a(f"s_cselect_b32 {sU}, {OOB}, {sU}"); a(f"s_cselect_b32 {sUB}, {OOB}, {sUB}"); a(f"s_cselect_b32 {sG}, {OOB}, {sG}")
    if True:
        a(f"s_mul_i32 {sRot}, {sR}, {rot}"); a(f"s_mul_i32 {sT0}, {sX}, {rotx}"); a(f"s_add_u32 {sRot}, {sRot}, {sT0}")
        a(f"s_and_b32 {sRot}, {sRot}, {rotm}")
        a(f"s_lshr_b32 {sT0}, {sRot}, {ilb}"); a(f"s_mul_i32 {sT0}, {sT0}, {7 << ilb}"); a(f"s_add_u32 {sRot}, {sRot}, {sT0}"); a(f"s_lshl_b32 {sRot}, {sRot}, 13")
    if xa or xb: xor_make(sXb, xb)
    if xb and not xa: a(f"s_mov_b32 {sXo}, 0")
    a(f"s_mov_b32 {sC}, {CSCALE}")
    a("s_mov_b32 s90, 0xcccccccc"); a("s_mov_b32 s91, 0xcccccccc")
    a("s_mov_b32 s92, 0xaaaaaaaa"); a("s_mov_b32 s93, 0xaaaaaaaa")
    a("s_and_b64 s[98:99], s[90:91], s[92:93]"); a(f"s_mov_b32 {sHole}, {HA}"); a(f"s_mov_b32 {sMask}, {MA_}")
    a(f"v_bfe_u32 {t0}, {vL}, 1, 2")
    a(f"v_mov_b32 {t2}, 0xffff"); a(f"v_mov_b32 {t1}, 0xffff0000")
    a(f"v_cndmask_b32 {t2}, {t2}, {t1}, {sMk0}")
    for j in range(4):
        a(f"v_cmp_eq_u32 vcc, {j}, {t0}")
        a(f"v_cndmask_b32 {vM[j]}, 0, {t2}, vcc")
    a(f"v_lshlrev_b32 {t3}, 4, {vn}"); a(f"v_mov_b32 {t0}, {L_LOC}")
    a(f"s_mul_i32 {sLb}, {sW}, {NL * 1024}"); a(f"s_add_u32 {sLb}, {sLb}, {L_KB - 256}")
    if nboost:
        a(f"s_and_b32 {sT0}, {sR}, 7"); a(f"s_cmp_eq_u32 {sT0}, 3"); a("s_cselect_b64 vcc, -1, 0")
    landed = -1
    def throttled_issue():
        nonlocal issued, landed
        d = D0 if issued < ND0 else D
        if RT - pbar - pre <= issued < RT - pbar: d += issued - (RT - pbar - pre) + 1
        if issued - d > landed:
            if 14 <= issued < 14 + nboost:
                landed = max(landed, issued - d - 1); a.wait_vm(ids[issued - d - 1])
                a(f"s_cbranch_vccnz L_boost{issued}"); a.wait_vm(ids[issued - d]); a(f"L_boost{issued}:")
            else:
                landed = issued - d; a.wait_vm(ids[landed])
        issue(issued); issued += 1
    while issued < RT - pbar:
        throttled_issue()
        if (fine or probe) and issued in (D0 + 1, 16, 26, 36, 46, 56, 66): stamp(f"ki{issued}")
        if issued == 24:
            a("s_waitcnt lgkmcnt(0)"); tag_make(); ytag_make()
    stamp("ring_full")
    a("s_barrier")
    if probe or fine: stamp("bar")
    a(f"ds_read_b128 {vr(QA)}, {t3} offset:{L_Q+1024}"); a(f"ds_read_b128 {vr(QA+4)}, {t3} offset:{L_Q+1024+256}")
    for k in range(4): a(f"ds_read_b128 {vr(QB+4*k)}, {t3} offset:{L_Q+256*k}")
    a(f"ds_read2_b32 v[54:55], {t0} offset0:0 offset1:1")
    while issued < RT: throttled_issue()
    a(f"v_lshl_add_u32 {t3}, {vL}, 4, {sLb}")
    a("s_waitcnt lgkmcnt(0)")
    a(f"v_readfirstlane_b32 {sLocal}, {t0}"); a(f"v_readfirstlane_b32 {sCh}, {t1}")
    stamp("q_ready")

    def tree(j, acc, dst_fn):
        u = U[(j >> 1) & 1]
        a(f"v_add_f32_dpp {u}, {acc}, {acc} row_ror:8 row_mask:0xf bank_mask:{'0xc' if j & 1 else '0x3'}")
        if not j & 1: return
        v = V[(j >> 2) & 1]
        a(f"v_add_f32_dpp {v}, {u}, {u} row_half_mirror row_mask:0xf bank_mask:{'0xa' if j & 2 else '0x5'}")
        if not j & 2: return
        a(f"v_add_f32_dpp {v}, {v}, {v} {QP2}")
        if not j & 4: return
        x = X[(j >> 3) & 1]
        a(f"v_cndmask_b32 {x}, {V[0]}, {V[1]}, {sMk1}")
        a(f"v_add_f32_dpp {x}, {x}, {x} {QP1}")
        if not j & 8: return
        dst_fn()
    def dots(acc, kr, qr, first):
        if first: a(f"v_mov_b32 {acc}, 0")
        for e in range(4): a(f"v_dot2c_f32_bf16 {acc}, v{kr+e}, v{qr+e}")
    ROT = "quad_perm:[1,2,3,0] " + FULL
    def procK(n, looped=False):
        k = kslot(n); i = (n >> 1) & 3; hf = n & 1
        acc = T[i & 1]
        dots(acc, slot(k), QA + 4 * hf, not hf)
        if not hf: return
        a(f"v_add_f32_dpp {U[0]}, {acc}, {acc} row_ror:8 row_mask:0xf bank_mask:{'0xc' if i & 1 else '0x3'}")
        if not i & 1: return
        a(f"v_add_f32_dpp {V[0]}, {U[0]}, {U[0]} row_half_mirror row_mask:0xf bank_mask:{'0xa' if i & 2 else '0x5'}")
        if not i & 2: return
        r = SP + (0 if looped else ((n >> 3) - P0 // 8) & 3)
        a(f"v_mov_b32_dpp {X[0]}, v{r} {ROT}")
        a(f"v_add_f32_dpp {V[0]}, {V[0]}, {V[0]} {QP2}")
        if looped:
            for e in range(3): a(f"v_mov_b32 v{SP+e}, v{SP+e+1}")
        a(f"v_add_f32_dpp {V[0]}, {V[0]}, {V[0]} {QP1}")
        a(f"v_cndmask_b32 v{SP+3 if looped else r}, {X[0]}, {V[0]}, s[98:99]")
    def procKB(n):
        k = kslot(n); j = (n - 128) >> 1; hf = n & 1
        for hd in range(2):
            dots(T[hd], slot(k), QB + 8 * hd + 4 * hf, not hf)
        if not hf: return
        for hd in range(2):
            tree(2 * j + hd, T[hd], lambda: a(f"v_cndmask_b32 {SB}, {X[0]}, {X[1]}, {sMk0}"))
    def procVB(n):
        k = kslot(n); j = (n - 144) >> 1; hf = n & 1
        if not hf:
            a(f"v_mov_b32_dpp {t0}, {SB} row_newbcast:{brev(j,3)} row_mask:0xf bank_mask:0x3")
            a(f"v_mov_b32_dpp {t0}, {SB} row_newbcast:{8+brev(j,3)} row_mask:0xf bank_mask:0xc")
            for e in range(4): a(f"v_and_b32 v{AOP+e}, {t0}, {vM[e]}")
        a(f"v_mfma_f32_16x16x32_bf16 {vr(ACCB+4*hf)}, {vr(AOP)}, {vr(slot(k))}, {vr(ACCB+4*hf) if j else 0}")
    def procV(n, last=False):
        if nomf: return
        k = kslot(n); i = (n >> 1) & 3; hf = n & 1
        if not hf:
            for e in range(4):
                a(f"v_and_b32_dpp v{AOP+e}, v{SP}, {vM[e]} row_newbcast:{8*(i&1) + 4*(i>>1)} {FULL}")
        a(f"v_mfma_f32_16x16x32_bf16 {vr(ACC+4*hf)}, {vr(AOP)}, {vr(slot(k))}, {vr(ACC+4*hf)}")
        if hf and i == 3 and not last:
            a(f"v_mov_b32_dpp {X[0]}, v{SP} {ROT}")
            for e in range(3): a(f"v_mov_b32 v{SP+e}, v{SP+e+1}")
            a(f"v_mov_b32 v{SP+3}, {X[0]}")
    nlad = [0]
    def refill(n, masked=False):
        nlad[0] += 1
        levels = [t for t in range(thmax, thmin - 1, -1) if t <= 8 or (thmax - t) % 2 == 0]
        a(f"s_cmp_le_u32 {sTh}, 5"); a(f"s_cbranch_scc1 L_low{nlad[0]}")
        for i, th in enumerate(levels):
            if th == 5: a(f"L_low{nlad[0]}:")
            a(f"s_waitcnt vmcnt({th})")
            if th > thmin: a(f"s_cmp_gt_u32 {sTh}, {levels[i+1]}"); a(f"s_cbranch_scc1 L_lad{nlad[0]}")
        a(f"L_lad{nlad[0]}:")
        issue(n, masked); issue(n + 1, masked)
        a(f"v_add_u32 {vPrg}, 1, {vPrg}")
        a(f"ds_write_b32 {vPrA}, {vPrg}")
    def th_fetch(): a(f"ds_read_b32 {vTH}, {vPrA} offset:{L_TH - L_PRG}")
    def pair(n, proc, extra=None, masked=False):
        j = n >> 1
        if j & 1:
            a(f"s_waitcnt vmcnt({LG - 2}) lgkmcnt(0)")
            a(f"v_readfirstlane_b32 {sTh}, {vTH}")
        else:
            a(f"s_waitcnt vmcnt({LG - 2})")
        proc(n); proc(n + 1)
        refill(n + LG, masked)
        if not j & 1: th_fetch()
        if extra: extra()
    AH = 4
    def need(n):
        nonlocal landed
        if n > landed:
            assert early
            landed = n; a.wait_vm(ids[n])
    def backlog_proc(p):
        n = p + AH
        if RP <= n < RT:
            assert p > 39
            need(n)
            a(f"ds_read_b128 {vr(slot(kslot(n)))}, {t3} offset:{256 + (n - RP) * 1024}")
        if RP <= p < RT: a(f"s_waitcnt lgkmcnt({min(AH, RT - 1 - p)})")
        need(p)
        procK(p)
    def governed_issue():
        nonlocal issued, landed
        if issued > RT: a("s_waitcnt lgkmcnt(0)"); a(f"v_readfirstlane_b32 {sTh}, {vTH}")
        landed = max(landed, issued - thmax - 1)
        refill(issued); issued += 2
        th_fetch()
    def gov_init():
        a(f"s_lshl2_add_u32 {sT0}, {sW}, {L_PRG}")
        a(f"v_mov_b32 {vPrA}, {sT0}"); a(f"v_mov_b32 {vPrg}, 0")
        a(f"s_mov_b32 {sTh}, {int(th0 + 0.5)}")
    if early: gov_init()
    assert backlog(P0, governed_issue if early else throttled_issue, backlog_proc) == P0
    if not early: gov_init()
    N0 = RT if early else P0 + LG
    total = (NTOT - N0) // 2 * 4
    assert total * 32 < 0x4000
    stamp("caught_up")
    a(f"s_mov_b32 {sCnt}, {(128 - P0) // LG}")
    a("L_k:")
    a(f"s_sub_u32 {sCnt}, {sCnt}, 1"); a(f"s_cmp_eq_u32 {sCnt}, 0")
    a("s_cselect_b32 s32, s40, s32"); a("s_cselect_b32 s33, s41, s33"); a("s_cselect_b32 s34, s42, s34")
    a(f"s_cselect_b32 {sOff}, {sRot}, {sOff}"); a(f"s_cselect_b32 {sMask}, {0x7ffff & ~HB}, {sMask}"); a(f"s_cselect_b32 {sHole}, {HB}, {sHole}")
    if xa or xb: a(f"s_cselect_b32 {sXo}, {sXb}, {sXo}")
    for n in range(P0, P0 + LG, 2): pair(n, lambda m: procK(m, True), masked=True)
    a(f"s_cmp_lg_u32 {sCnt}, 0"); a("s_cbranch_scc1 L_k")
    stamp("K_done")
    def softmaxA():
        for e in range(4): rnd(f"v{SP+e}")
        a(f"v_max3_f32 {vm}, v{SP}, v{SP+1}, v{SP+2}"); a(f"v_max_f32 {vm}, {vm}, v{SP+3}")
        red("v_max_f32", vm, (8, 4, 2, 1, 16, 32))
        a(f"v_mul_f32 {vm}, {sC}, {vm}")
        for e in range(4): a(f"v_fma_f32 v{SP+e}, v{SP+e}, {sC}, -{vm}")
        for e in range(4): a(f"v_exp_f32 v{SP+e}, v{SP+e}")
        a(f"v_add_f32 {vl}, v{SP}, v{SP+1}"); a(f"v_add_f32 {t0}, v{SP+2}, v{SP+3}"); a(f"v_add_f32 {vl}, {vl}, {t0}")
        for e in range(4): a(f"v_cvt_pk_bf16_f32 v{SP+e}, v{SP+e}, v{SP+e}")
    def softmaxA2():
        red("v_add_f32", vl, (8, 4, 2, 1, 16, 32))
        for e in range(8): a(f"v_mov_b32 v{ACC+e}, 0")
        if mlh:
            a(f"s_lshl3_add_u32 {sT0}, {sW}, {L_ML + 64}"); a(f"v_mov_b32 {t2}, {sT0}"); a(f"ds_write_b64 {t2}, v[186:187]")
            return
        a(f"v_min_u32 {vm}, -2, {vm}"); a(f"v_min_u32 {vl}, -2, {vl}")
        a(f"s_lshl2_add_u32 {sT0}, {sRecA}, {sW}"); a(f"s_lshl3_add_u32 {sT0}, {sT0}, {WS_ML}")
        a("s_mov_b64 exec, 1")
        by_placement("mla", lambda b: a(f"buffer_store_dwordx2 v[186:187], off, {WS}, {sT0}{b}"))
        a("s_mov_b64 exec, -1")
    def softmaxB():
        rnd(SB)
        a(f"v_mul_f32 {SB}, {sC}, {SB}")
        a(f"v_max_f32_dpp {vmB}, {SB}, {SB} row_half_mirror {FULL}")
        red("v_max_f32", vmB, ("q1", "q2", 16, 32))
        a(f"v_sub_f32 {SB}, {SB}, {vmB}"); a(f"v_exp_f32 {SB}, {SB}")
        a(f"v_add_f32_dpp {vlB}, {SB}, {SB} row_half_mirror {FULL}")
        a(f"v_cvt_pk_bf16_f32 {SB}, {SB}, {SB}")
    def softmaxB2():
        red("v_add_f32", vlB, ("q1", "q2", 16, 32))
        if mlh:
            a(f"s_lshl3_add_u32 {sT0}, {sW}, {L_ML}"); a(f"v_and_b32 {t2}, 8, {vn}"); a(f"v_lshl_add_u32 {t2}, {t2}, 2, {sT0}"); a(f"ds_write_b64 {t2}, v[188:189]")
            return
        a(f"v_min_u32 {vmB}, -2, {vmB}"); a(f"v_min_u32 {vlB}, -2, {vlB}")
        a(f"s_lshl2_add_u32 {sT0}, {sRecB}, {sW}"); a(f"s_lshl3_add_u32 {sT0}, {sT0}, {WS_ML}")
        a(f"v_lshlrev_b32 {t2}, 7, {vn}")
        a("s_mov_b64 exec, 0x101")
        by_placement("mlb", lambda b: a(f"buffer_store_dwordx2 v[188:189], {t2}, {WS}, {sT0} offen{b}"))
        a("s_mov_b64 exec, -1")
    def addresses():
        if swz:
            a(f"v_bfe_u32 {t0}, {vL}, 3, 2"); a(f"v_xor_b32 {t0}, {sW}, {t0}"); a(f"v_lshl_add_u32 {vTr}, {t0}, 5, {vTr}")
            a(f"v_and_b32 {t0}, 16, {vL}"); a(f"v_lshlrev_b32 {t0}, 1, {t0}"); a(f"v_xor_b32 {vWo}, {t0}, {vWo}"); a(f"v_xor_b32 {vWo2}, 64, {vWo}")
        else:
            a(f"s_lshl_b32 {sT0}, {sW}, 5"); a(f"v_add_u32 {vTr}, {sT0}, {vTr}"); a(f"v_mov_b32 {vWo2}, {vWo}")
        a(f"s_lshl_b32 {sLb}, {sW}, 12")
        if wfake == 1:
            a(f"v_lshlrev_b32 {vWo}, 4, {vL}"); a(f"v_mov_b32 {vWo2}, {vWo}")
            a(f"s_mul_i32 {sU}, {sX}, 28"); a(f"s_add_u32 {sU}, {sU}, {sR}"); a(f"s_lshl2_add_u32 {sU}, {sU}, {sW}"); a(f"s_lshl_b32 {sU}, {sU}, 12")
            a(f"s_cmp_ge_u32 {sR}, 28"); a(f"s_cselect_b32 {sU}, {OOB}, {sU}"); a(f"s_mov_b32 {sUB}, {sU}")
        if wfake == 2:
            a(f"v_mul_u32_u24 {vWo}, 896, {vg}"); a(f"v_lshl_add_u32 {vWo}, {vn}, 4, {vWo}")
            a(f"s_and_b32 {sT0}, {sR}, 3"); a(f"s_cmp_eq_u32 {sT0}, 3"); a(f"s_cselect_b32 {sT1}, 8, 16")
            a(f"v_cmp_gt_u32 vcc, {sT1}, {vn}"); a(f"v_mov_b32 {t0}, {OOB}"); a(f"v_cndmask_b32 {vWo}, {t0}, {vWo}, vcc"); a(f"v_mov_b32 {vWo2}, {vWo}")
            a(f"s_bfe_u32 {sU}, {sR}, 0x20002"); a(f"s_lshl2_add_u32 {sU}, {sX}, {sU}"); a(f"s_lshl2_add_u32 {sU}, {sU}, {sW}"); a(f"s_mul_i32 {sU}, {sU}, {32*896}")
            a(f"s_lshl_b32 {sT0}, {sT0}, 8"); a(f"s_add_u32 {sU}, {sU}, {sT0}"); a(f"s_add_u32 {sUB}, {sU}, {16*896}")
            a(f"s_cmp_ge_u32 {sR}, 16"); a("s_cselect_b32 s48, s52, s48"); a("s_cselect_b32 s49, s53, s49"); a("s_mov_b32 s52, s48"); a("s_mov_b32 s53, s49")
        y_base(vYo, 0); y_base(vYb, 1)
        a(f"v_mov_b32 {vYm}, 0xfffff000")
        a(f"v_mov_b32 {t0}, {YT[0]}"); a(f"v_mov_b32 {t1}, {YT[1]}"); a(f"v_cndmask_b32 {t0}, {t0}, {t1}, {sMk0}")
        a(f"v_mov_b32 {t2}, {YT[2]}"); a(f"v_mov_b32 {t1}, {YT[3]}"); a(f"v_cndmask_b32 {t2}, {t2}, {t1}, {sMk0}")
        a(f"v_cndmask_b32 {vYt}, {t0}, {t2}, {sMk1}")
        a(f"v_and_b32 {t0}, 1, {vg}"); a(f"v_lshlrev_b32 {t0}, 4, {t0}"); a(f"v_lshl_add_u32 {t0}, {vn}, 5, {t0}")
        a(f"s_lshl_b32 {sT0}, {sW}, 10"); a(f"s_add_u32 {sT0}, {sT0}, {L_PART}")
        a(f"v_add_u32 {vPa}, {sT0}, {t0}")
    nwo = 0; id_wo = None
    def gA():
        for k in range(4): a(f"buffer_load_dwordx4 {vr(G+4*k)}, {vGo}, {WS}, {sG} offen offset:{1024*k} {ap}")
    def wo_issue():
        nonlocal nwo, id_wo
        j = (nwo - wbe) % 8
        a(f"s_add_u32 m0, {sLb}, {(L_WOA, L_WOB)[j >> 2] + 1024*(j & 3)}")
        a(f"s_add_u32 {sT0}, {(sU, sUB)[j >> 2]}, {(8*896, 1024, 4*896)[wfake]*(j & 3)}")
        id_wo = a(f"buffer_load_dwordx4 {(vWo, vWo2)[j & 1]}, {(WOA, WOB)[j >> 2]}, {sT0} offen {pol} lds")
        nwo += 1
    extras = {128: softmaxA, 130: softmaxA2, 132: unit_v, 134: addresses, 142: softmaxB, 144: softmaxB2}
    if xl: extras = {142: softmaxB, 144: softmaxB2, 146: softmaxA, 148: softmaxA2, 150: unit_v, 152: addresses}
    for i in range(wbe): extras[146 + 2 * (i % 7)] = (lambda f: (lambda: (f and f(), wo_issue())))(extras.get(146 + 2 * (i % 7)))
    for n in range(128, 160, 2): pair(n, procKB if n < 144 else procVB, extras.get(n))
    a(f"v_lshrrev_b32 {t1}, 1, {vg}"); a(f"v_lshl_add_u32 {t0}, {t1}, 12, {vPa}")
    a(f"ds_write_b128 {t0}, {vr(ACCB)}"); a(f"ds_write_b128 {t0}, {vr(ACCB+4)} offset:512")
    a(f"v_lshl_add_u32 {vPa}, {t1}, 9, {vPa}")
    PB_ = (160 + LG - N0) // 2
    stamp("B_done")
    a(f"s_mov_b32 {sCnt}, 0")
    a("; ---- V_A ----")
    a("L_v:")
    if stamps:
        for i in (4, 6, 10): a(f"s_cmp_eq_u32 {sCnt}, {i}"); a(f"s_cbranch_scc1 L_st{i}")
    a("L_v_body:")
    for n in range(160, 160 + LG, 2): pair(n, procV)
    a(f"s_add_u32 {sCnt}, {sCnt}, {LG // 8}"); a(f"s_cmp_lt_u32 {sCnt}, {16 - LG // 8}"); a("s_cbranch_scc1 L_v")
    if stamps:
        a("s_branch L_v_x")
        for i, nm in ((4, "v4"), (6, "v7"), (10, "v11")):
            a(f"L_st{i}:"); stamp(nm); a("s_branch L_v_body")
    a("L_v_x:")
    stamp("v_x")
    for k in range(LG): ids[NTOT - LG + k] = a.vm_seq - (LG - 1 - k)
    a("s_mov_b32 vcc_lo, 0"); a("s_mov_b32 vcc_hi, -1")
    def last(n0, n1, d, per):
        for n in range(n0, n1):
            a.wait_vm(ids[n])
            for i in range(per):
                if n - (NTOT - 8) >= d and nwo < 8: wo_issue()
            procV(n, last=n >= NTOT - 8)
    def share():
        stamp("stream_done")
        for e in range(4): a(f"v_cndmask_b32 v{ACC+e}, v{ACC+e}, v{ACC+4+e}, vcc")
        a(f"ds_write_b128 {vPa}, {vr(ACC)} offset:8192")
        while wpos == 0 and nwo < 8: wo_issue()
    last(NTOT - LG, NTOT - 8, 8, 0)
    if wth is not None:
        assert wpos == 0
        a(f"s_cmp_lt_u32 {sTh}, {wth}"); a("s_cbranch_scc1 L_calm")
        sv = (a.vm_seq, nwo)
        last(NTOT - 8, NTOT, wde, wpe); share()
        a("s_branch L_join")
        a.vm_seq, nwo = sv
        if stamps: names["s"].pop()
        a("L_calm:")
    last(NTOT - 8, NTOT, wod, wper); share()
    if wth is not None: a("L_join:")
    a("s_waitcnt lgkmcnt(0)")
    a("s_barrier")
    while wpos == 1 and nwo < 8: wo_issue()
    for k in range(4): a(f"ds_read_b128 {vr(OBS+4*k)}, {vGo} offset:{L_PART + 1024*k}")
    if g2:
        a("s_barrier")
        while wpos == 2 and nwo < 8: wo_issue()
        gA()
        while nwo < 8: wo_issue()
    if wg is None and wbe < 8: a.wait_vm(id_wo)
    a("s_barrier")
    if fine: stamp("wo_in")
    a(f"s_cmp_ge_u32 {sR}, 28"); a("s_cbranch_scc1 L_s_fin")
    a("s_waitcnt lgkmcnt(0)")
    for dst, src in ((WTB, L_WOB), (WT, L_WOA)):
        for k in range(4):
            if src == L_WOA and k == 3: a("s_waitcnt lgkmcnt(6)")
            a(f"ds_read_b64_tr_b16 {vr(dst+4*k,2)}, {vTr} offset:{src+4096*k}")
            a(f"ds_read_b64_tr_b16 {vr(dst+4*k+2,2)}, {vTr} offset:{src+4096*k+512}")
    for k in range(4):
        a(f"v_mfma_f32_16x16x32_bf16 {vr(ACC+4)}, {vr(OBS+4*k)}, {vr(WTB+4*k)}, {vr(ACC+4) if k else 0}")
    if g2: a("s_waitcnt vmcnt(0)")
    poll("L_s2", gA, lambda: sentinel(range(G, G + 16)), masked=True, first_issued=g2)
    if g2: a("s_waitcnt lgkmcnt(0)")
    stamp("gathered")
    for k in range(4):
        a(f"v_mfma_f32_16x16x32_bf16 {vr(ACC)}, {vr(G+4*k)}, {vr(WT+4*k)}, {vr(ACC) if k else 0}")
    y_seal(ACC + 4)
    a(f"buffer_store_dword v{ACC+4}, {vYb}, {WS}, {sY} offen sc1")
    a(f"v_add_f32 v{ACC}, v{ACC}, v{ACC+1}"); a(f"v_add_f32 v{ACC+2}, v{ACC+2}, v{ACC+3}"); a(f"v_add_f32 v{ACC}, v{ACC}, v{ACC+2}")
    y_seal(ACC)
    a(f"buffer_store_dword v{ACC}, {vYo}, {WS}, {sY} offen sc1")
    if stamps:
        a("s_branch L_s_fin2")
        a("L_s_fin:")
        names["s"].pop(); stamp("gathered")
        a("L_s_fin2:")
    else:
        a("L_s_fin:")
    stamp("y")
    a("s_waitcnt vmcnt(0)")
    a("s_barrier")
    finish()

    cur[0] = "g"
    a("L_gov:")
    vA4 = "v2"; vBo = "v3"; vPw = "v4"; vP = "v5"; vPp = "v6"; vB = "v7"; vTh = "v8"; vL16 = "v16"
    sTg = sU; sPo = sRecA; sGa = sRecB; sIn = sY
    a(f"v_lshlrev_b32 {vL16}, 4, {vL}")
    a(f"s_lshl_b32 {sT1}, {sX}, 5"); a(f"s_add_u32 {sT1}, {sT1}, {sR}"); a(f"s_lshl_b32 {sT1}, {sT1}, 7"); a(f"s_add_u32 {sT1}, {sT1}, {WS_FL}")
    srd(60, None, None, WS_END)
    a("s_waitcnt lgkmcnt(0)")
    tag_load()
    a("s_mov_b32 s60, s28"); a("s_mov_b32 s61, s29")
    a("s_mov_b64 exec, 0xff")
    a("s_waitcnt lgkmcnt(0)")
    tag_make()
    a("v_mov_b32 v8, s56"); a("v_mov_b32 v9, s59"); a("v_mov_b32 v10, s56"); a("v_mov_b32 v11, s59")
    a(f"buffer_store_dwordx4 v[8:11], {vL16}, {WS}, {sT1} offen sc1")
    a("s_mov_b64 exec, -1")
    ytag_make()
    a(f"s_mul_i32 {sIn}, {sX}, {YG}"); a(f"s_add_u32 {sIn}, {sIn}, {WS_Y}")
    a(f"s_cmp_lg_u32 {sR}, 0"); a("s_cbranch_scc1 L_norace")
    a(f"s_add_u32 s4, s28, {sIn}"); a("s_addc_u32 s5, s29, 0")
    a("s_load_dword s6, s[4:5], 0 glc"); a("s_load_dword s7, s[4:5], 8192 glc")
    a(f"s_mov_b32 {sT1}, 0")
    a("s_waitcnt lgkmcnt(0)")
    for i in range(nrace):
        a("s_not_b32 s10, s6"); a("s_not_b32 s11, s7")
        for h in ((0, 1), (1, 0))[i & 1]: a(f"s_load_dword s{10+h}, s[4:5], {8192*h} glc")
        a("s_waitcnt lgkmcnt(1)")
        a("s_sleep 1")
        a("s_mov_b64 s[14:15], s[10:11]")
        a("s_waitcnt lgkmcnt(0)")
        a("s_cmp_eq_u32 s15, s7"); a(f"s_addc_u32 {sT1}, {sT1}, 0"); a("s_cmp_eq_u32 s14, s6"); a(f"s_subb_u32 {sT1}, {sT1}, 0")
    a(f"s_sub_i32 {sT2}, 0, {sT1}"); a("s_bitcmp1_b32 s59, 2"); a(f"s_cselect_b32 {sT1}, {sT2}, {sT1}")
    a(f"s_cmp_gt_i32 {sT1}, 0"); a(f"s_cselect_b32 {sT2}, 2, 0"); a(f"s_cmp_lt_i32 {sT1}, 0"); a(f"s_cselect_b32 {sT2}, 1, {sT2}")
    if near is not None: a(f"s_mov_b32 {sT2}, {1 + near}")
    a(f"s_and_b32 {sT1}, s59, 4"); a(f"s_or_b32 {sT1}, {sT1}, {sT2}")
    a(f"s_lshl4_add_u32 {sT1}, s58, {sT1}")
    a(f"v_mov_b32 v12, s56"); a(f"v_mov_b32 v13, {sT1}"); a(f"v_mov_b32 v14, s56"); a(f"v_mov_b32 v15, {sT1}")
    a(f"s_lshl_b32 {sT1}, {sX}, 7"); a(f"s_add_u32 {sT1}, {sT1}, {WS_CH}")
    a("s_mov_b64 exec, 0xff")
    a(f"buffer_store_dwordx4 v[12:15], {vL16}, {WS}, {sT1} offen sc1")
    a("s_mov_b64 exec, -1")
    a("L_norace:")
    a(f"s_lshr_b32 {sT0}, {sR}, 2"); a(f"s_lshl_b32 {sT0}, {sT0}, 14"); a(f"s_add_u32 {sIn}, {sIn}, {sT0}")
    a(f"s_and_b32 {sT0}, {sR}, 3"); a(f"s_lshl_b32 {sT0}, {sT0}, 11"); a(f"s_add_u32 {sIn}, {sIn}, {sT0}")
    if stamps: a("v_mov_b32 v254, 0"); a("v_mov_b32 v253, 0")
    stamp("hello")
    srd(44, "s24", "s25", 7168)
    if wg is not None:
        srd(4, "s12", "s13", 0 if nowo & 1 else 0x380000); srd(24, "s22", "s23", 0 if nowo & 2 else 0x380000)
        a("s_mov_b64 s[90:91], s[4:5]")
        a(f"s_mul_i32 {sT0}, {sR}, 37"); a(f"s_lshr_b32 {sT0}, {sT0}, 8"); a(f"s_mul_i32 {sT1}, {sT0}, 7"); a(f"s_sub_u32 {sT1}, {sR}, {sT1}")
        a(f"s_lshl2_add_u32 {sT0}, {sX}, {sT0}"); a(f"s_mul_i32 s70, {sT0}, {128*896}"); a(f"s_lshl_b32 {sT1}, {sT1}, 7"); a(f"s_add_u32 s70, s70, {sT1}")
        a(f"v_lshrrev_b32 {t0}, 3, {vL}"); a(f"v_mul_u32_u24 {t0}, 896, {t0}"); a(f"v_and_b32 {t2}, 7, {vL}"); a(f"v_lshl_add_u32 {vWo}, {t2}, 4, {t0}")
        a(f"v_and_b32 {t0}, 16, {vL}"); a(f"v_lshlrev_b32 {t0}, 1, {t0}"); a(f"v_xor_b32 {vWo}, {t0}, {vWo}"); a(f"v_xor_b32 {vWo2}, 64, {vWo}")
        a(f"v_mov_b32 v18, {total - wg}")
    if tlb:
        a(f"s_lshl4_add_u32 s40, {sB}, {sH}"); a("s_lshl_b32 s40, s40, 21")
        a(f"s_andn2_b32 s41, {sR}, 7"); a(f"s_add_u32 s41, s41, {sX}"); a(f"s_xor_b32 s41, s41, {bx}"); a("s_lshl_b32 s41, s41, 21"); a("s_add_u32 s41, s41, 0x180000")
        a(f"s_mul_i32 s42, {sX}, {512*896}")
        for i, (pp, o) in enumerate(((12, 42), (22, 42), (16, 41), (18, 41), (8, 40))):
            a(f"s_add_u32 s{pp}, s{pp}, s{o}"); a(f"s_addc_u32 s{pp+1}, s{pp+1}, 0")
            a(f"s_load_dword s{48+i}, s[{pp}:{pp+1}], 0")
    a(f"v_and_b32 {vA4}, 3, {vL}"); a(f"v_lshlrev_b32 {vA4}, 2, {vA4}")
    a(f"v_mov_b32 {vPp}, 0"); a(f"v_mov_b32 {vTh}, {int(th0 + 0.5)}"); a(f"v_mov_b32 {vB}, 0")
    a(f"ds_write_b32 {vA4}, {vPp} offset:{L_PRG}"); a(f"ds_write_b32 {vA4}, {vTh} offset:{L_TH}")
    gc_ = gI // 2 if gc is None else gc
    a(f"s_mul_i32 {sG}, {sX}, 4352"); a(f"s_add_u32 {sG}, {sG}, {WS_GC}")
    a(f"v_lshlrev_b32 {vBo}, 2, {vL}")
    a(f"s_lshl2_add_u32 {sOff}, {sR}, {sG}")
    a(f"s_add_u32 {sGa}, {sG}, {8*4352}")
    a(f"s_mul_i32 {sTg}, {sX}, {gI // 8}"); a(f"s_add_u32 {sTg}, {sTg}, {gI // 8}")
    a(f"s_cmp_eq_u32 {sR}, {28 if gx else 99}"); a(f"s_cselect_b32 {sTg}, {sTg}, -1")
    sOut = sC
    a(f"s_and_b32 {sT0}, {sX}, 3"); a(f"s_mul_i32 {sOut}, {sT0}, 1792"); a(f"s_lshr_b32 {sT0}, {sX}, 2"); a(f"s_mul_i32 {sT0}, {sT0}, 896")
    a(f"s_add_u32 {sOut}, {sOut}, {sT0}"); a(f"s_lshl_b32 {sT0}, {sR}, 5"); a(f"s_add_u32 {sOut}, {sOut}, {sT0}")
    a(f"v_lshrrev_b32 {t1}, 1, {vg}"); a(f"v_and_b32 {t2}, 1, {vg}"); a(f"v_lshl_add_u32 {t1}, {t2}, 1, {t1}")
    a(f"v_and_b32 {t2}, 3, {vn}"); a(f"v_lshl_add_u32 {t1}, {t2}, 2, {t1}"); a(f"v_lshlrev_b32 {t3}, 1, {t1}")
    a("s_waitcnt lgkmcnt(0)")
    a("s_barrier")
    a(f"ds_read_b32 v10, {vB} offset:{L_LOC}"); a(f"ds_read_b32 v11, {vB} offset:{L_CH}")
    a("s_waitcnt lgkmcnt(0)")
    a(f"v_readfirstlane_b32 {sLocal}, v10"); a(f"v_readfirstlane_b32 {sCh}, v11")
    a(f"s_lshr_b32 {sT0}, {sCh}, {sX}"); a(f"s_and_b32 {sT0}, {sT0}, 1"); a(f"s_lshl_b32 {sT0}, {sT0}, 13"); a(f"s_add_u32 {sIn}, {sIn}, {sT0}")
    if stamps:
        a(f"v_writelane_b32 v255, {sCh}, 30"); a(f"s_getreg_b32 {sT0}, hwreg(HW_REG_HW_ID)"); a(f"v_writelane_b32 v255, {sT0}, 27")
    a(f"s_cmp_lg_u32 {sLocal}, 1"); a("s_cbranch_scc1 L_gend")
    poll("L_g0", lambda: a(f"ds_read_b32 {vPw}, {vA4} offset:{L_PRG}"), lambda: a(f"v_cmp_eq_u32 vcc, 0, {vPw}"), sleep=4)
    if xm:
        for i in range(1, 8):
            a(f"s_add_u32 {sT0}, {sX}, {i}"); a(f"s_and_b32 {sT0}, {sT0}, 7")
            a(f"s_mul_i32 s{31+i}, {sT0}, 4352"); a(f"s_add_u32 s{31+i}, s{31+i}, {WS_GC + 8*4352}")
            a(f"s_mul_i32 s{47+i}, {sT0}, {gI // 8}"); a(f"s_sub_u32 s{47+i}, s{47+i}, {gI - gI // 8}")
        a(f"s_sub_u32 {sPo}, {sTg}, {gI}")
        if beta: a("s_mov_b32 s40, 0x3fff"); a("s_mov_b32 s41, 0xffff"); a("s_mov_b32 s42, 0x8000")
    a(f"s_mov_b32 {sSpin}, {spin}")
    a("L_gloop:")
    a(f"ds_read_b32 {vPw}, {vA4} offset:{L_PRG}")
    a(f"s_sub_u32 {sSpin}, {sSpin}, 1"); a(f"s_cmp_eq_u32 {sSpin}, 0"); a("s_cbranch_scc1 L_gend")
    a("s_waitcnt lgkmcnt(0)")
    a(f"v_add_u32_dpp {vP}, {vPw}, {vPw} {QP1}"); a(f"v_add_u32_dpp {vP}, {vP}, {vP} {QP2}")
    a("s_mov_b64 exec, 1")
    a(f"buffer_store_dword {vP}, off, {WS}, {sOff}")
    a(f"v_cmp_le_u32 vcc, {total - 4 * gstop}, {vP}")
    a("s_cbranch_vccnz L_gend")
    a("s_mov_b32 exec_lo, -1"); a("s_mov_b32 exec_hi, 1")
    a(f"buffer_load_dword {vB}, {vBo}, {WS}, {sG} offen {gp}")
    a("s_mov_b64 exec, -1")
    if xm:
        a(f"s_cmp_eq_u32 {sTg}, -1"); a("s_cbranch_scc1 L_gnl")
        for i in range(1, 8): a(f"s_load_dwordx2 s[{4+2*i}:{5+2*i}], s[28:29], s{31+i} glc")
        a("L_gnl:")
    a(f"v_cvt_f32_u32 {t0}, {vP}")
    a(f"v_mul_f32 {t0}, {f2u(-gain)}, {t0}"); a(f"v_add_f32 {t0}, {f2u(th0 + 0.5 + gain * c0)}, {t0}")
    if gw:
        a(f"v_lshlrev_b32 {vPw}, 2, {vPw}"); a(f"v_sub_u32 {vPw}, {vP}, {vPw}"); a(f"v_cvt_f32_i32 {vPw}, {vPw}")
        a(f"v_mul_f32 {vPw}, {f2u(gw)}, {vPw}"); a(f"v_add_f32 {t0}, {t0}, {vPw}")
    a("s_waitcnt vmcnt(0)")
    a(f"v_add_u32_dpp {t1}, {vB}, {vB} row_ror:8 {FULL}")
    a(f"v_readlane_b32 {sT3}, {vB}, 32")
    for sft in (4, 2, 1): a(f"v_add_u32_dpp {t1}, {t1}, {t1} row_ror:{sft} {FULL}")
    a(f"v_readlane_b32 {sT0}, {t1}, 0"); a(f"v_readlane_b32 {sT1}, {t1}, 16")
    a(f"v_cvt_f32_i32 v11, {sT3}")
    a(f"s_add_u32 {sT2}, {sT0}, {sT1}")
    a(f"v_cvt_f32_u32 v10, {sT2}")
    if wg is not None:
        a(f"v_cvt_f32_u32 v17, {vP}"); a(f"v_mul_f32 v18, {f2u(-wk / 32)}, v10"); a(f"v_mul_f32 v19, {f2u(-wk / 256)}, v11")
        a(f"v_mul_f32 v17, {f2u(wk)}, v17"); a("v_add_f32 v18, v18, v19"); a("v_add_f32 v18, v18, v17")
        a(f"v_add_f32 v18, {f2u(total - wg - wk * c0)}, v18"); a("v_cvt_i32_f32 v18, v18"); a(f"v_min_i32 v18, {total + wcap}, v18")
    a(f"v_mul_f32 v10, {f2u(gain / 32)}, v10"); a(f"v_mul_f32 v11, {f2u(gain * gx / 256)}, v11")
    a(f"v_add_f32 {t0}, {t0}, v10"); a(f"v_add_f32 {t0}, {t0}, v11")
    if kup:
        a(f"v_add_f32 v10, {f2u(-(th0 + kat))}, {t0}"); a("v_max_f32 v10, 0, v10"); a(f"v_mul_f32 v10, {f2u(kup)}, v10"); a(f"v_add_f32 {t0}, {t0}, v10")
    a(f"v_cvt_i32_f32 {vTh}, {t0}")
    a(f"v_med3_i32 {vTh}, {vTh}, {thmin}, {thmax}")
    a(f"ds_write_b32 {vA4}, {vTh} offset:{L_TH}")
    if stamps: a(f"v_add_u32 v254, v254, {vTh}"); a("v_add_u32 v253, 1, v253")
    if xm:
        a(f"s_cmp_eq_u32 {sTg}, -1"); a("s_cbranch_scc1 L_gloop")
        a(f"s_sub_u32 {sT0}, {gc_}, {sT2}"); a(f"s_lshl3_add_u32 {sT0}, {sT0}, {sPo}")
        a("s_waitcnt lgkmcnt(0)")
        for i in range(1, 8):
            a(f"s_xor_b64 s[{4+2*i}:{5+2*i}], s[{4+2*i}:{5+2*i}], s[56:57]")
            if beta:
                a(f"s_andn2_b64 s[4:5], s[{4+2*i}:{5+2*i}], s[40:41]"); a(f"s_cselect_b32 s{5+2*i}, s42, s{5+2*i}")
            else: a(f"s_lshr_b64 s[4:5], s[{4+2*i}:{5+2*i}], 14")
            a(f"s_cselect_b32 s{4+2*i}, s{47+i}, s{4+2*i}"); a(f"s_add_u32 {sT0}, {sT0}, s{4+2*i}")
        if beta:
            a(f"s_add_i32 s43, {sT0}, 0x8000"); a("s_max_i32 s43, s43, 0"); a("s_min_i32 s43, s43, 0xffff")
            a("s_mov_b32 s4, s42"); a("s_mov_b32 s5, s42")
            for i in range(1, 8): a(f"s_max_u32 s4, s4, s{5+2*i}"); a(f"s_add_u32 s5, s5, s{5+2*i}")
            a("s_lshr_b32 s5, s5, 3"); a("s_sub_i32 s4, s4, s5"); a(f"s_sub_i32 s4, s4, {dead}"); a("s_max_i32 s4, s4, 0")
            a(f"s_mul_i32 s4, s4, {beta}"); a("s_lshr_b32 s4, s4, 4"); a(f"s_sub_i32 {sT0}, {sT0}, s4")
        a(f"v_mov_b32 v10, {sT0}")
        a("s_mov_b64 exec, 1")
        a(f"buffer_store_dword v10, off, {WS}, {sG} offset:128")
        a("s_mov_b64 exec, -1")
        a(f"s_cmp_lt_u32 {sT2}, {sTg}"); a("s_cbranch_scc1 L_gloop")
        a(f"s_xor_b32 {sT0}, {sT2}, s56")
        if beta: a("s_mov_b32 s42, s43"); a(f"s_xor_b32 {sT1}, s43, s57")
        for i in range(4): a(f"v_mov_b32 v{12+i}, {(sT1 if beta else 's57') if i & 1 else sT0}")
        a("s_mov_b64 exec, 0xff")
        a(f"buffer_store_dwordx4 v[12:15], {vL16}, {WS}, {sGa} offen sc1"); a("s_mov_b64 exec, -1")
        a(f"s_add_u32 {sTg}, {sTg}, {gI}"); a(f"s_mov_b32 {sPo}, {sT2}")
        a("s_branch L_gloop")
    else:
        a(f"s_cmp_lt_u32 {sT2}, {sTg}"); a("s_cbranch_scc1 L_gloop")
        a(f"s_xor_b32 {sT0}, {sT2}, s56")
        for i in range(4): a(f"v_mov_b32 v{12+i}, {'s57' if i & 1 else sT0}")
        a("s_mov_b64 exec, 0xff")
        a(f"buffer_store_dwordx4 v[12:15], {vL16}, {WS}, {sGa} offen sc1"); a("s_mov_b64 exec, -1")
        for i in range(1, 8):
            a(f"s_add_u32 {sT0}, {sX}, {i}"); a(f"s_and_b32 {sT0}, {sT0}, 7"); a(f"s_mul_i32 {sT0}, {sT0}, 4352"); a(f"s_add_u32 {sT0}, {sT0}, {WS_GC + 8*4352}")
            a(f"s_load_dwordx2 s[{4+2*i}:{5+2*i}], s[28:29], {sT0} glc")
        a(f"s_add_u32 {sTg}, {sTg}, {gI}")
        a(f"s_sub_u32 {sT0}, {gc_}, {sT2}"); a(f"s_mul_i32 {sT0}, {sT0}, 7")
        a("s_waitcnt lgkmcnt(0)")
        for i in range(1, 8):
            a(f"s_xor_b64 s[{4+2*i}:{5+2*i}], s[{4+2*i}:{5+2*i}], s[56:57]"); a(f"s_lshr_b64 s[4:5], s[{4+2*i}:{5+2*i}], 14")
            a(f"s_cselect_b32 s{4+2*i}, 0, s{4+2*i}"); a(f"s_add_u32 {sT0}, {sT0}, s{4+2*i}")
        a(f"v_mov_b32 v10, {sT0}")
        a("s_mov_b64 exec, 1")
        a(f"buffer_store_dword v10, off, {WS}, {sG} offset:128")
        a("s_mov_b64 exec, -1")
        a("s_branch L_gloop")
    a("L_gend:")
    a("s_mov_b64 exec, -1")
    if stamps:
        a(f"v_readfirstlane_b32 {sT0}, v254"); a(f"v_readfirstlane_b32 {sT1}, v253"); a("s_nop 3")
        a(f"v_writelane_b32 v255, {sT0}, 28"); a(f"v_writelane_b32 v255, {sT1}, 29")
    stamp("gov_end")
    if wg is not None:
        a(f"s_cmp_ge_u32 {sR}, 28"); a("s_cbranch_scc1 L_gnowo")
        def pchk():
            a(f"v_add_u32_dpp {vP}, {vPw}, {vPw} {QP1}"); a(f"v_add_u32_dpp {vP}, {vP}, {vP} {QP2}"); a(f"v_cmp_gt_i32 vcc, v18, {vP}")
        srd(4, "s90", "s91", 0 if nowo & 1 else 0x380000)
        poll("L_gw", lambda: a(f"ds_read_b32 {vPw}, {vA4} offset:{L_PRG}"), pchk)
        a(f"s_mov_b32 m0, {L_WOA}")
        for j in range(32):
            a(f"s_add_u32 {sT0}, s70, {8*896*(j & 15)}")
            a(f"buffer_load_dwordx4 {(vWo, vWo2)[j & 1]}, {('s[4:7]', 's[24:27]')[j >> 4]}, {sT0} offen {pol} lds")
            if j < 31: a("s_add_u32 m0, m0, 1024")
        a("L_gnowo:")
        stamp("wo_issued")
    a(f"s_cmp_ge_u32 {sR}, 28")
    for i in range(4 if g2 else 3):
        if wg is not None and i == (2 if g2 else 1): a("s_waitcnt vmcnt(0)")
        a("s_barrier")
    a("s_cbranch_scc1 L_g_fin")
    F = 64
    def gY():
        for k in range(2): a(f"buffer_load_dwordx4 {vr(F+4*k)}, {vL16}, {WS}, {sIn} offen offset:{1024*k} {yp}")
    def y_chk():
        for i in range(8): a(f"v_xor_b32 v{F+i}, {YT[i & 3]}, v{F+i}")
        a(f"v_or3_b32 {t0}, v{F}, v{F+1}, v{F+2}"); a(f"v_or3_b32 {t2}, v{F+3}, v{F+4}, v{F+5}")
        a(f"v_or3_b32 {t0}, {t0}, v{F+6}, v{F+7}"); a(f"v_or_b32 {t0}, {t0}, {t2}")
        a(f"v_and_b32 {t0}, 0xfff, {t0}"); a(f"v_cmp_ne_u32 vcc, 0, {t0}")
    if fat:
        def gYa():
            for i in range(8): a(f"v_mov_b32 v{F+i}, 0")
            for k in range(4): a(f"buffer_atomic_or_x2 {vr(F+2*k,2)}, {vL16}, {WS}, {sIn} offen offset:{1024*(k>>1) + 8*(k&1)} sc0 sc1")
        gY(); a("s_waitcnt vmcnt(0)")
        poll("L_f", gYa, y_chk, masked=True, first_issued=True)
    else:
        poll("L_f", gY, y_chk, masked=True)
    for e in range(4): a(f"v_add_f32 v{F+e}, v{F+e}, v{F+4+e}")
    a(f"v_permlane32_swap_b32 v{F}, v{F+1}"); a(f"v_permlane32_swap_b32 v{F+2}, v{F+3}")
    a(f"v_add_f32 v{F}, v{F}, v{F+1}"); a(f"v_add_f32 v{F+2}, v{F+2}, v{F+3}")
    a(f"v_permlane16_swap_b32 v{F}, v{F+2}")
    a(f"v_add_f32 v{F}, v{F}, v{F+2}")
    red("v_add_f32", f"v{F}", (4, 8))
    a(f"v_cvt_pk_bf16_f32 v{F}, v{F}, v{F}")
    a("s_mov_b32 exec_lo, 0x000f000f"); a("s_mov_b32 exec_hi, 0x000f000f")
    a(f"buffer_store_short v{F}, {t3}, {OUT}, {sOut} offen")
    a(f"s_cmp_eq_u32 {sWG}, 0"); a("s_cbranch_scc0 L_g_fin")
    a("v_mov_b32 v8, s56"); a("v_mov_b32 v9, s57"); a(f"s_mov_b32 {sT0}, {WS_EP}")
    a("s_mov_b64 exec, 1")
    a(f"buffer_store_dwordx2 v[8:9], off, {WS}, {sT0}{' sc1' if seedsc else ''}")
    a("L_g_fin:")
    finish()

    cur[0] = "h"
    a("L_helper:")
    a(f"s_cmp_eq_u32 {sW}, 5"); a("s_cbranch_scc1 L_gov")
    def code_pull(tagl, reg, st):
        a("s_getpc_b64 s[30:31]")
        a(f"{tagl}:")
        a(f"s_sub_u32 s30, s30, {tagl}-{NAME}_kernel"); a("s_subb_u32 s31, s31, 0")
        a(f"s_lshl_b32 {sT1}, {sR}, {st}")
        a(f"v_lshl_add_u32 {t0}, {vL}, {st + 5}, {sT1}")
        a(f"v_min_u32 {t0}, L_end-{NAME}_kernel, {t0}")
        a(f"s_mov_b64 exec, {0x1f if st == 7 else 0xfff}")
        a(f"global_load_dword {reg}, {t0}, s[30:31]")
        a("s_mov_b64 exec, -1")
    if pf == 1: code_pull("L_pc", "v2", 7)
    if pf == 2: code_pull("L_pc", "v2", 6)
    XOP = 64; WOP = 96; QD = 208
    vXo = "v5"; vL8 = "v7"; vQt = "v17"
    a(f"v_lshrrev_b32 {t3}, 3, {vL}"); a(f"v_and_b32 {t2}, 7, {vL}"); a(f"v_lshlrev_b32 {t2}, 4, {t2}")
    a(f"v_lshl_add_u32 {vKo}, {t3}, 13, {t2}")
    a(f"v_and_b32 {vXo}, 3, {vL}"); a(f"v_mul_u32_u24 {vXo}, 896, {vXo}"); a(f"v_lshl_add_u32 {vXo}, {vg}, 4, {vXo}")
    a(f"s_bfe_u32 s44, {sR}, 0x10003")
    a(f"s_add_u32 s45, {sR}, {cbd}"); a("s_and_b32 s45, s45, 7"); a(f"s_lshl3_add_u32 s45, {sX}, s45")
    a(f"s_mul_i32 s46, {sT0}, {8*bx}"); a("s_xor_b32 s47, s45, s46")
    a(f"s_mul_i32 s46, s44, {224*8192}"); a("s_lshl_b32 s47, s47, 7"); a(f"s_add_u32 {sOff}, s46, s47")
    a(f"s_mul_i32 {sT2}, s44, 448")
    srd(32, None, None, 0 if nowo & 4 else 0x380000); srd(36, None, None, 0 if nox else 3584)
    a(f"s_mov_b32 m0, {L_WQ}")
    a(f"s_cmp_eq_u32 {sT0}, 0")
    a("s_waitcnt lgkmcnt(0)")
    a("s_cselect_b32 s32, s10, s20"); a("s_cselect_b32 s33, s11, s21")
    a("s_cselect_b32 s36, s4, s14"); a("s_cselect_b32 s37, s5, s15")
    if qfake:
        krot = krp = 0
        a(f"v_lshrrev_b32 {t0}, {3 + qfake}, {vL}"); a(f"v_and_b32 {t1}, {(8 << qfake) - 1}, {vL}"); a(f"v_lshlrev_b32 {t1}, 4, {t1}"); a(f"v_lshl_add_u32 {vKo}, {t0}, 13, {t1}")
        a(f"s_and_b32 s40, {sR}, {(8 >> qfake) - 1}"); a(f"s_lshl_b32 s40, s40, {7 + qfake}"); a(f"s_lshl_b32 s41, {sX}, 10"); a("s_add_u32 s40, s40, s41")
        a(f"s_and_b32 s41, {sR}, 15"); a(f"s_lshr_b32 s41, s41, {3 - qfake}"); a(f"s_mul_i32 s41, s41, {(224 >> qfake) * 8192}"); a(f"s_add_u32 {sOff}, s40, s41")
    tag_load()
    idk = []
    if wt is not None:
        a(f"v_lshlrev_b32 {t0}, 13, {t3}"); a(f"v_lshl_add_u32 {t0}, {t2}, 3, {t0}")
        a(f"s_and_b32 s40, {sR}, 15"); a(f"s_mul_i32 s40, s40, {28*8192}"); a(f"s_lshl_b32 s41, {sX}, 10"); a("s_add_u32 s40, s40, s41")
        for i in range(4):
            if i == 3: a("s_mov_b32 exec_hi, 0")
            a(f"buffer_load_dword v{8+i}, {t0}, {WQ}, s40 offen {wt}")
            if i < 3: a("s_add_u32 s40, s40, 65536")
        a("s_mov_b32 exec_hi, -1")
        if wtw: a("s_waitcnt vmcnt(0)")
        stamp("touched")
    if krot or krp:
        a(f"s_mul_i32 s40, s44, {krot}"); a(f"s_mul_i32 s41, {sT0}, {krp}"); a("s_add_u32 s40, s40, s41")
        a("s_cmp_ge_u32 s40, 7"); a("s_cselect_b32 s41, 7, 0"); a("s_sub_u32 s40, s40, s41")
        a("s_lshl_b32 s41, s40, 18"); a(f"s_add_u32 {sOff}, {sOff}, s41"); a("s_lshl_b32 s41, s40, 6"); a(f"s_add_u32 {sT2}, {sT2}, s41")
    for k in range(7):
        a(f"buffer_load_dwordx4 {vr(XOP+4*k)}, {vXo}, {XS}, {sT2} offen offset:{0 if krot or krp else 64*k} {xp}")
        if wqt and k >= wqt: a.wait_vm(idk[k - wqt])
        for j in range(4):
            r = a(f"buffer_load_dwordx4 {vKo}, {WQ}, {sOff} offen {pol} lds")
            if k < 6 or j < 3:
                a("s_add_u32 m0, m0, 1024"); a(f"s_add_u32 {sOff}, {sOff}, {65536 >> qfake}")
        if (krot or krp) and k < 6:
            a(f"s_cmp_eq_u32 s40, {6 - k}"); a(f"s_cselect_b32 s41, {7 << 18}, 0"); a(f"s_cselect_b32 s42, {-6 << 6}, 64")
            a(f"s_sub_u32 {sOff}, {sOff}, s41"); a(f"s_add_i32 {sT2}, {sT2}, s42")
        idk.append(r)
    stamp("wq_issued")
    sQs = "s64"; sMc = "s48"; sPa = "s49"; sPb = "s50"; sBz = "s51"; sRd = "s69"; sFl = "s70"
    a(f"s_lshl1_add_u32 {sQs}, {sT0}, s44"); a(f"s_lshl_b32 {sQs}, {sQs}, 16"); a("s_lshl_b32 s46, s45, 10"); a(f"s_add_u32 {sQs}, {sQs}, s46")
    a(f"s_lshl3_add_u32 {sMc}, {sT0}, {sX}"); a(f"s_and_b32 {sT3}, {sR}, 15"); a(f"s_lshl4_add_u32 {sMc}, {sMc}, {sT3}")
    a(f"s_lshl_b32 {sMc}, {sMc}, 7"); a(f"s_add_u32 {sMc}, {sMc}, {WS_ML}")
    srd(60, "s28", "s29", WS_END)
    unit(1); unit_v()
    a(f"s_lshl_b32 {sRecA}, {sH}, 14"); a(f"s_add_u32 {sRecA}, {sRecA}, {WS_PO}")
    a(f"s_lshl_b32 {sRecB}, {sX}, 15"); a(f"s_add_u32 {sRecB}, {sRecB}, {WS_PO + 16*16384}")
    a(f"s_lshl_b32 {sPa}, {sT3}, 9"); a(f"s_add_u32 {sPa}, {sPa}, {sRecA}")
    a(f"s_lshl_b32 {sPb}, {sR}, 9"); a(f"s_add_u32 {sPb}, {sPb}, {sRecB}")
    a(f"v_and_b32 {t0}, 31, {vL}"); a(f"v_lshlrev_b32 {t0}, 4, {t0}"); a(f"v_lshrrev_b32 {t1}, 5, {vL}"); a(f"v_lshl_add_u32 v18, {t1}, 14, {t0}")
    a(f"s_lshl4_add_u32 {sRecA}, {sT3}, {sRecA}")
    a(f"s_lshr_b32 {sT0}, {sR}, 3"); a(f"s_and_b32 {sT1}, {sR}, 3"); a(f"s_lshl2_add_u32 {sT0}, {sT0}, {sT1}"); a(f"s_lshl4_add_u32 {sRecB}, {sT0}, {sRecB}")
    a(f"s_bfe_u32 {sT0}, {sR}, 0x10002"); a(f"s_lshl_b32 {sT0}, {sT0}, 13"); a(f"s_add_u32 {sRecB}, {sRecB}, {sT0}")
    a(f"v_lshrrev_b32 {t0}, 1, {vL}"); a(f"v_lshlrev_b32 {t0}, 8, {t0}"); a(f"v_and_b32 {t1}, 1, {vL}"); a(f"v_lshl_add_u32 {vPa}, {t1}, 3, {t0}")
    a(f"s_mul_i32 {sRd}, {sX}, 4352"); a(f"s_add_u32 {sRd}, {sRd}, {WS_GC}")
    a(f"s_cmp_eq_u32 {sR}, 0"); a(f"s_cselect_b32 {sBz}, {sRd}, {OOB}")
    a(f"s_lshl_b32 {sFl}, {sX}, 12"); a(f"s_add_u32 {sFl}, {sFl}, {WS_FL}")
    for i in range(4): a(f"v_mov_b32 v{AOP+i}, -1")
    for i in range(4): a(f"v_mov_b32 v{ACC+i}, 0")
    a(f"v_lshlrev_b32 {vL16}, 4, {vL}"); a(f"v_lshlrev_b32 {vL8}, 3, {vL}"); a(f"v_lshlrev_b32 {t3}, 7, {vL}")
    a(f"v_and_b32 {t0}, 3, {vn}"); a(f"v_lshlrev_b32 {t0}, 8, {t0}"); a(f"v_lshrrev_b32 {t1}, 2, {vn}")
    a(f"v_lshl_add_u32 {t0}, {t1}, 6, {t0}"); a(f"v_lshl_add_u32 {vQt}, {vg}, 4, {t0}")
    def hello_ld(): a(f"buffer_load_dwordx2 v[12:13], {t3}, {WS}, {sFl} offen {fp}")
    for k in range(8):
        if k < 7: a.wait_vm(idk[k])
        if k == hk:
            a("s_mov_b32 exec_hi, 0"); hello_ld(); a("s_mov_b32 exec_hi, -1")
        if k: a("s_waitcnt lgkmcnt(0)")
        if k < 7:
            for c in range(4):
                a(f"ds_read_b64_tr_b16 {vr(WOP+16*(k%3)+4*c,2)}, {vTr} offset:{L_WQ + k*4096 + 32*c}")
                a(f"ds_read_b64_tr_b16 {vr(WOP+16*(k%3)+4*c+2,2)}, {vTr} offset:{L_WQ + k*4096 + 32*c + 512}")
        if k:
            for c in range(4):
                a(f"v_mfma_f32_16x16x32_bf16 {vr(QD+4*c)}, {vr(WOP+16*((k-1)%3)+4*c)}, {vr(XOP+4*(k-1))}, {vr(QD+4*c) if k > 1 else 0}")
    tag_make()
    for c in range(1, 4):
        for e in range(4):
            a(f"v_mov_b32_dpp v{QD+e}, v{QD+4*c+e} quad_perm:[0,1,2,3] row_mask:0xf bank_mask:{1<<c}")
    a(f"ds_write_b128 {vQt}, {vr(QD)} offset:{L_PART}")
    a(f"ds_read_b128 {vr(QD)}, {vL16} offset:{L_PART}")
    stamp("q_done")
    a("s_waitcnt vmcnt(0) lgkmcnt(0)")
    a("s_mov_b32 exec_hi, 0")
    poll("L_fl", hello_ld, lambda: tag_chk([12]), sleep=16, masked=True, first_issued=True)
    a("v_cmp_ne_u32 vcc, s59, v13")
    a("s_cmp_eq_u32 vcc_lo, 0"); a(f"s_cselect_b32 {sLocal}, {2 if force_remote else 1}, 2")
    stamp("hello_seen")
    a("v_mov_b32 v8, s56"); a("v_mov_b32 v9, s59")
    a(f"s_lshl3_add_u32 {sT1}, {sR}, {sRd}")
    def first_stores(b):
        a(f"buffer_store_dwordx4 {vr(QD)}, {vL16}, {WS}, {sQs} offen{b}")
        a(f"buffer_store_dwordx4 {vr(AOP)}, v18, {WS}, {sPb} offen{b}")
        a("s_mov_b32 exec_hi, 0")
        a(f"buffer_store_dwordx4 {vr(AOP)}, v18, {WS}, {sPa} offen{b}")
        a("s_mov_b32 exec_lo, 0xffff")
        a(f"buffer_store_dwordx4 {vr(ACC)}, {vL16}, {WS}, {sBz} offen{b}")
        a("s_mov_b32 exec_lo, 0xff")
        a(f"buffer_store_dwordx4 {vr(AOP)}, {vL16}, {WS}, {sMc} offen{b}")
        a("s_mov_b32 exec_lo, 1")
        a("s_waitcnt vmcnt(0)")
        a(f"buffer_store_dwordx2 v[8:9], off, {WS}, {sT1} offset:256{b}")
    by_placement("first", first_stores)
    a("s_mov_b32 exec_lo, -1")
    stamp("ready")
    poll("L_rd", lambda: a(f"buffer_load_dwordx2 v[12:13], {vL8}, {WS}, {sRd} offen offset:256 {fp}"), lambda: tag_chk([12]), sleep=hsleep, masked=True)
    stamp("go_seen")
    a(f"v_lshlrev_b32 {t0}, 4, {vn}"); a(f"v_lshl_add_u32 {t0}, {vg}, 10, {t0}")
    a(f"s_lshr_b32 {sT0}, {sR}, 3"); a(f"s_lshl_b32 {sT0}, {sT0}, 8"); a(f"s_lshl_b32 {sT1}, {sX}, 13"); a(f"s_add_u32 {sT0}, {sT0}, {sT1}")
    a(f"s_add_u32 {sT0}, {sT0}, 0x20000")
    a(f"s_lshl4_add_u32 {sT2}, {sH}, {sB}"); a(f"s_lshl_b32 {sT2}, {sT2}, 8")
    for u in (2, 0, 1):
        for kh in range(2):
            a(f"s_add_u32 {sT1}, {sT2 if u == 2 else sT0}, {kh * 0x10000 + (4096 if u == 1 else 0)}")
            a(f"buffer_load_dwordx4 {vr(64+8*u+4*kh)}, {t0}, {WS}, {sT1} offen {qp}")
    a(f"s_mov_b32 {sT1}, {WS_CH}")
    a("s_mov_b64 exec, 0xff")
    poll("L_ch", lambda: a(f"buffer_load_dwordx2 v[12:13], {t3}, {WS}, {sT1} offen {fp}"), lambda: tag_chk([12]), masked=True, sleep=1)
    for bit, dst in ((1, sT0), (2, sT1), (4, sCh)):
        a(f"v_and_b32 v12, {bit}, v13"); a("v_cmp_ne_u32 vcc, 0, v12"); a(f"s_and_b32 {dst}, vcc_lo, 0xff")
    a(f"s_bcnt1_i32_b32 {sT0}, {sT0}"); a(f"s_bcnt1_i32_b32 {sT1}, {sT1}")
    a(f"s_cmp_gt_u32 {sT1}, {sT0}"); a(f"s_cselect_b32 {sT0}, 0xff, 0"); a(f"s_xor_b32 {sCh}, {sCh}, {sT0}")
    a(f"v_mov_b32 {t0}, {L_LOC}"); a(f"v_mov_b32 {t1}, {sLocal}"); a(f"v_mov_b32 {t2}, {sCh}"); a(f"ds_write2_b32 {t0}, {t1}, {t2} offset0:0 offset1:1")
    for u in range(3):
        for e in range(4): a(f"v_add_f32 v{64+8*u+e}, v{64+8*u+e}, v{64+8*u+4+e}")
        for e in range(2): a(f"v_cvt_pk_bf16_f32 v{64+8*u+e}, v{64+8*u+2*e}, v{64+8*u+2*e+1}")
        a(f"ds_write_b64 {vL8}, {vr(64+8*u,2)} offset:{L_Q+512*u}")
    a("s_waitcnt lgkmcnt(0)")
    stamp("q_in_lds")
    a("s_barrier")
    a(f"v_mov_b32 {t3}, 0")
    if vt:
        a(f"s_lshl4_add_u32 s40, {sB}, {sH}"); a("s_lshl_b32 s40, s40, 21")
        a(f"s_andn2_b32 s41, {sR}, 7"); a(f"s_add_u32 s41, s41, {sX}"); a("s_lshl_b32 s41, s41, 21"); a("s_add_u32 s41, s41, 0x180000")
        for pp, o in ((16, "s41"), (18, "s41"), (8, "s40"), (12, sU), (22, sU)):
            a(f"s_add_u32 s{pp}, s{pp}, {o}"); a(f"s_addc_u32 s{pp+1}, s{pp+1}, 0")
        if vt > 1:
            a(f"s_mul_i32 {sT0}, {sR}, {vt - 1}")
            def vchk():
                a("v_add3_u32 v8, v8, v9, v10"); a("v_add_u32 v8, v8, v11"); a(f"v_cmp_ge_u32 vcc, {sT0}, v8")
            poll("L_vt", lambda: a(f"ds_read_b128 v[8:11], {t3} offset:{L_PRG}"), vchk, sleep=2)
        a("s_mov_b64 exec, 1")
        for i, pp in enumerate((16, 18, 8)): a(f"global_load_dword v{12+i}, {t3}, s[{pp}:{pp+1}] {pol}")
        if vtw:
            a(f"s_cmp_ge_u32 {sR}, 28"); a("s_cbranch_scc1 L_vt_nw")
            for i, pp in enumerate((12, 22)): a(f"global_load_dword v{20+i}, {t3}, s[{pp}:{pp+1}] {pol}")
            a("L_vt_nw:")
        a("s_mov_b64 exec, -1")
    def wait_progress(name, target, stag=0):
        a(f"s_and_b32 {sCnt}, {sR}, {stag}"); a(f"s_add_u32 {sCnt}, {sCnt}, {target}")
        def chk():
            a("v_min3_u32 v8, v8, v9, v10"); a("v_min_u32 v8, v8, v11"); a(f"v_cmp_gt_u32 vcc, {sCnt}, v8")
        poll(name, lambda: a(f"ds_read_b128 v[8:11], {t3} offset:{L_PRG}"), chk, sleep=8)
    if mlh:
        a("; ---- the waves' (max, sum) pairs go out: lanes 0-3, 4-7 B's heads, 8-11 A ----")
        a(f"s_lshl2_add_u32 {sT0}, {sH}, {sB}"); a(f"s_and_b32 {sT1}, {sR}, 3"); a(f"s_lshl3_add_u32 {sT0}, {sT0}, {sT1}")
        a(f"s_lshl_b32 {sT1}, {sX}, 6"); a(f"s_add_u32 {sT1}, {sT1}, {sR}"); a(f"s_add_u32 {sT1}, {sT1}, 512")
        a(f"v_lshrrev_b32 {t0}, 2, {vL}"); a(f"v_lshl_add_u32 {t0}, {t0}, 5, {sT1}"); a(f"v_mov_b32 {t1}, {sT0}")
        a(f"v_cmp_lt_u32 vcc, 7, {vL}"); a(f"v_cndmask_b32 {t0}, {t0}, {t1}, vcc")
        a(f"v_and_b32 {t1}, 3, {vL}"); a(f"v_lshl_add_u32 {t0}, {t0}, 2, {t1}"); a(f"v_lshlrev_b32 {X[0]}, 3, {t0}")
        a(f"s_mov_b32 {sT2}, {WS_ML}")
        wait_progress("L_w0", PB_ - 3)
        a(f"ds_read_b64 v[12:13], {vL8} offset:{L_ML}")
        a("s_waitcnt lgkmcnt(0)")
        a("v_min_u32 v12, -2, v12"); a("v_min_u32 v13, -2, v13")
        a("s_mov_b64 exec, 0xfff")
        by_placement("ml", lambda b: a(f"buffer_store_dwordx2 v[12:13], {X[0]}, {WS}, {sT2} offen{b}"))
        a("s_mov_b64 exec, -1")
    a(f"s_lshl2_add_u32 {sT0}, {sH}, {sB}"); a(f"s_lshl_b32 {sT0}, {sT0}, 8"); a(f"s_add_u32 {sT0}, {sT0}, {WS_ML}")
    a(f"s_lshr_b32 {sT1}, {sR}, 3"); a(f"s_lshl3_add_u32 {sT1}, {sX}, {sT1}"); a(f"s_lshl_b32 {sT1}, {sT1}, 8"); a(f"s_add_u32 {sT1}, {sT1}, {WS_ML + 512*32}")
    a(f"v_lshlrev_b32 {U[0]}, 3, {vn}")
    a(f"v_and_b32 {t0}, 31, {vL}"); a(f"v_lshlrev_b32 {t0}, 3, {t0}"); a(f"v_lshrrev_b32 {t1}, 5, {vL}"); a(f"v_lshl_add_u32 {U[1]}, {t1}, 10, {t0}")
    wait_progress("L_w1", PB_ + max(1, h1 // 4), st1)
    stamp("B_in_lds")
    def ml_loads():
        a(f"buffer_load_dwordx2 {vr(MLG,2)}, {U[0]}, {WS}, {sT0} offen {mp}")
        a(f"buffer_load_dwordx2 {vr(MLG+2,2)}, {U[1]}, {WS}, {sT1} offen {mp}")
    poll("L_ml", ml_loads, lambda: sentinel(range(MLG, MLG + 4)), sleep=4)
    MA, MB = V
    a(f"v_max_f32_dpp {MA}, v{MLG}, v{MLG} row_ror:8 {FULL}"); a(f"v_max_f32_dpp {MB}, v{MLG+2}, v{MLG+2} row_ror:8 {FULL}")
    for sft in (4, 2, 1):
        a(f"v_max_f32_dpp {MA}, {MA}, {MA} row_ror:{sft} {FULL}"); a(f"v_max_f32_dpp {MB}, {MB}, {MB} row_ror:{sft} {FULL}")
    red("v_max_f32", MB, (16,))
    a(f"v_sub_f32 v{MLG}, v{MLG}, {MA}"); a(f"v_sub_f32 v{MLG+2}, v{MLG+2}, {MB}")
    a(f"v_exp_f32 v{MLG}, v{MLG}"); a(f"v_exp_f32 v{MLG+2}, v{MLG+2}")
    a(f"v_mul_f32 {MA}, v{MLG}, v{MLG+1}"); a(f"v_mul_f32 {MB}, v{MLG+2}, v{MLG+3}")
    for sft in (8, 4, 2, 1):
        a(f"v_add_f32_dpp {MA}, {MA}, {MA} row_ror:{sft} {FULL}"); a(f"v_add_f32_dpp {MB}, {MB}, {MB} row_ror:{sft} {FULL}")
    red("v_add_f32", MB, (16,))
    a(f"v_rcp_f32 {MA}, {MA}"); a(f"v_rcp_f32 {MB}, {MB}")
    a(f"v_mul_f32 {MA}, v{MLG}, {MA}"); a(f"v_mul_f32 {MB}, v{MLG+2}, {MB}")
    SF = 4
    a(f"s_and_b32 {sT0}, {sR}, 7"); a(f"s_lshl_b32 {sT0}, {sT0}, 2"); a(f"s_and_b32 {sT1}, {sT0}, 15")
    for u in range(3):
        for w in range(4):
            a(f"s_add_u32 {sT2}, {sT1 if u == 2 else sT0}, {w + (32 if u == 1 else 0)}")
            a(f"v_readlane_b32 s{SF+4*u+w}, {MA if u == 2 else MB}, {sT2}")
    a("; ---- B: sum the waves, publish, gather the group's shares, sum them; then A's share at the end ----")
    CB = 184
    def combine(u):
        for w in range(4): a(f"ds_read_b128 {vr(CB+4*w)}, {vL16} offset:{L_PART + 4096*u + 1024*w}")
        for w in range(4):
            a(f"s_waitcnt lgkmcnt({0 if stamps else 3 - w})")
            for e in range(4):
                if w: a(f"v_fmac_f32 v{CB+e}, s{SF+4*u+w}, v{CB+4*w+e}")
                else: a(f"v_mul_f32 v{CB+e}, s{SF+4*u}, v{CB+e}")
        for e in range(2): a(f"v_cvt_pk_bf16_f32 v{CB+e}, v{CB+2*e}, v{CB+2*e+1}")
        for e in range(2): a(f"v_min_u32 v{CB+16+2*u+e}, -2, v{CB+e}")
    def publish(u, so):
        by_placement(f"pub{u}", lambda b: a(f"buffer_store_dwordx2 {vr(CB+16+2*u,2)}, {vPa}, {WS}, {so} offen{b}"), have_scc=True)
    a(f"s_add_u32 {sT0}, {sRecB}, 16384")
    a(f"s_cmp_eq_u32 {sLocal}, 1")
    for u in range(2):
        combine(u)
        if not nob & 1: publish(u, (sRecB, sT0)[u])
    a(f"s_cmp_ge_u32 {sR}, 28"); a("s_cbranch_scc1 L_h_nos2")
    GB = 128; OB = 64
    a(f"s_add_u32 {sT0}, {sG}, 8192")
    if h2: wait_progress("L_w2", PB_ + h2 // 4, st2)
    def gB():
        for st in range(2):
            for k in range(4): a(f"buffer_load_dwordx4 {vr(GB+16*st+4*k)}, {vGo}, {WS}, {(sG, sT0)[st]} offen offset:{1024*k} {bp}")
    if not nob: poll("L_s2b", gB, lambda: sentinel(range(GB, GB + 32)), sleep=16, masked=True)
    for i in range(16):
        a(f"v_lshlrev_b32 v{160+i}, 16, v{GB+i}"); a(f"v_lshlrev_b32 {t0}, 16, v{GB+16+i}")
        a(f"v_and_b32 v{GB+i}, 0xffff0000, v{GB+i}"); a(f"v_and_b32 v{GB+16+i}, 0xffff0000, v{GB+16+i}")
        a(f"v_add_f32 v{160+i}, v{160+i}, {t0}"); a(f"v_add_f32 v{GB+i}, v{GB+i}, v{GB+16+i}")
    for qp in (QP1, QP2):
        for i in range(16):
            a(f"v_add_f32_dpp v{160+i}, v{160+i}, v{160+i} {qp}"); a(f"v_add_f32_dpp v{GB+i}, v{GB+i}, v{GB+i} {qp}")
    for i in range(16): a(f"v_cvt_pk_bf16_f32 v{GB+i}, v{160+i}, v{GB+i}")
    for k in range(4): a(f"ds_write_b128 {vL16}, {vr(GB+4*k)} offset:{L_PART + 1024*k}")
    a("L_h_nos2:")
    stamp("oB_ready")
    a(f"s_cmp_eq_u32 {sLocal}, 1")
    a("s_waitcnt lgkmcnt(0)")
    a("s_barrier")
    combine(2); publish(2, sRecA)
    stamp("published")
    for i in range(3 if g2 else 2): a("s_barrier")
    if stamps or probe: finish()
    a("L_end:")
    a("s_endpgm")
    a.pad()
    global STAMP_NAMES
    STAMP_NAMES = {k: v[:-1] for k, v in names.items()}
    head = HEADER + f"; @launch grid=(256,1,1) block=({64*NW},1,1) lds={L_KB + NL * 4096}\n" + DOC
    head += f'.amdgcn_target "amdgcn-amd-amdhsa--gfx950"\n.text\n.globl {NAME}_kernel\n.p2align 8\n.type {NAME}_kernel,@function\n{NAME}_kernel:\n'
    nv = 256 if stamps else max(RING + 4 * RP, 224)
    assert not (stamps and RP > 47)
    tail = f'''.section .rodata,"a"
.p2align 6
.amdhsa_kernel {NAME}_kernel
  .amdhsa_next_free_vgpr {nv}
  .amdhsa_next_free_sgpr 102
  .amdhsa_accum_offset {nv}
  .amdhsa_group_segment_fixed_size 0
  .amdhsa_kernarg_size 104
  .amdhsa_user_sgpr_count 2
  .amdhsa_user_sgpr_kernarg_segment_ptr 1
  .amdhsa_system_sgpr_workgroup_id_x 1
  .amdhsa_float_denorm_mode_32 3
.end_amdhsa_kernel
'''
    return head + a.text() + tail

if __name__ == "__main__":
    kw = eval("dict(" + (sys.argv[2] if len(sys.argv) > 2 else "") + ")")
    open(sys.argv[1], "w").write(gen(**kw))
```

```python
import os, sys, struct
from asmlib import Asm
def f2u(x): return struct.unpack('<I', struct.pack('<f', x))[0]

NAME = "concat_heads__mha_block_cached__sliding_block_cached__decode"
_ref = "cdna_kernels/" + NAME + ".s.ref"
HEADER = open(_ref).read().split("; Override launch")[0] if os.path.exists(_ref) else ""

WS_QP = 0x0
WS_ML = 0x40000
WS_PO = 0x48000
WS_FL = 0xC8000
WS_GC = 0xD0000
WS_EP = 0xE4000
WS_CH = 0xE5000
WS_PR = 0xE8000
WS_Y = 0x100000
YG = 7 * 16384
WS_END = WS_Y + 8 * YG
WS_STAMP = 0x400000
L_WQ = 0
L_WOA = 0
L_WOB = 16384
L_PART = 32768
L_Q = L_PART + 12288
L_CNT = L_Q + 1536
L_LOC = L_CNT + 4
L_CH = L_CNT + 8
L_PRG = L_CNT + 16
L_TH = L_CNT + 32
L_ML = L_CNT + 64
L_KB = L_CNT + 512
OOB = 0x40000000
TAGC = (0x9E3779B9, 0x7F4A7C15)
CSCALE = 0x3DB8AA3B
NW = 6


DOC = """;
; constant; the seed is moved on at the end) or by a sentinel written earlier in the same launch.  Every
;
"""

def brev(j, bits): return int(f"{j:0{bits}b}"[::-1], 2)
FULL = "row_mask:0xf bank_mask:0xf"
QP1 = "quad_perm:[1,0,3,2] " + FULL
QP2 = "quad_perm:[2,3,0,1] " + FULL

def gen(D=5, D0=5, ND0=12, RP=46, NL=12, ratio=6, stamps=False, fine=False, spin=1 << 19, pol="nt", force_remote=False,
        th0=4.15, thmin=3, gain=0.125, gw=0.08, gx=0.75, gstop=3, gI=1536, gc=1130, c0=6,
        rot=1, rotx=4, rotm=1, tlb=False, wod=2, wpos=0, g2=True, hk=6, hsleep=2, near=None, nrace=4, ml0=4, ml1=6, nowo=0, swz=True, vt=0, pf=2, bx=0, ila=2, ilb=1, rp=4, rph=0, lay=0, kv=0, wqt=0, pbar=4, xm=1, wg=None, wk=1.0, wcap=8, wfake=0, wbe=0, hb=None, rx=None, vtw=False, krot=5, krp=3, cbd=0, nox=False, wt=None, wtw=True, LG=16, thmax=12, nboost=24, xa=(), xb=(), kup=2.0, kat=2.0, probe=None, wth=None, wde=0, wpe=2, fat=False, wper=1, qfake=0, seedsc=True, pre=0, nomf=False, h1=24, h2=56, mlh=True, xl=True, lsc=True, st1=0, st2=0, nob=0, qp='sc1 nt', bp='sc1 nt', ap='sc1 nt', gp='sc1 nt', mp='sc1 nt', early=False, r2=10, yp='sc1', fp='sc1', lp='', xp='', beta=8, dead=600):
    a = Asm()
    NTOT = 288; RT = RP + NL; thmax = min(thmax, LG - 2)
    sWG = "s2"; sW = "s3"
    KA, VA, KB, VB, WQ, XS, WS, OUT, WOA, WOB = (f"s[{i}:{i+3}]" for i in (32, 36, 40, 44, 32, 36, 60, 44, 48, 52))
    sLb = "s64"
    sX, sR, sH, sB = "s72", "s73", "s74", "s75"
    sOff = "s76"; sCnt = "s77"; sT0 = "s78"; sT1 = "s79"; sT2 = "s80"; sT3 = "s81"
    sRecA = "s82"; sRecB = "s83"; sG = "s84"; sY = "s85"; sU = "s86"; sC = "s87"; sSpin = "s88"; sLocal = "s89"
    sMk1 = "s[90:91]"; sMk0 = "s[92:93]"; sTh = "s94"; sRot = "s95"
    vL = "v0"; vKo = "v1"; vM = [f"v{i}" for i in range(2, 6)]
    QA = 6; QB = 14; SP = 30; AOP = 34; ACC = 38
    T = ["v46", "v47"]; U = ["v48", "v49"]; V = ["v50", "v51"]; X = ["v52", "v53"]
    t0, t1, t2, t3 = "v54", "v55", "v56", "v57"
    vm, vl, vg, vn = "v186", "v187", "v60", "v61"
    vmB, vlB = "v188", "v189"
    RING = 64
    OBS = 96; WTB = 112; ACCB = 128; SB = "v136"; vfA = "v137"; MLG = 138; WT = 144; G = 160
    vGo = "v176"; vYo = "v177"; vTr = "v178"; vPa = "v179"; vPrg = "v58"; vPrA = "v59"; vTH = "v62"; vWo = "v183"; vYm = "v206"; vYt = "v207"; vYb = "v184"; vWo2 = "v185"
    def slot(k): return RING + 4 * k
    def vr(i, n=4): return f"v[{i}:{i+n-1}]"
    names = {"s": [], "h": [], "g": []}
    cur = ["s"]
    def stamp(name):
        if probe and name == "start": a("s_memrealtime s[96:97]")
        if probe and len(probe) > 5 and (cur[0], name) == (probe[0], probe[5]): a("s_memrealtime s[26:27]"); a("s_waitcnt lgkmcnt(0)")
        if probe and (cur[0], name) == probe[:2]: a("s_memrealtime s[20:21]"); a("s_waitcnt lgkmcnt(0)")
        if not stamps: return
        nm = names[cur[0]]
        if nm:
            a("s_waitcnt lgkmcnt(0)")
            a(f"v_writelane_b32 v255, s96, {len(nm)-1}")
        nm.append(name)
        a("s_memrealtime s[96:97]")
    def finish():
        if probe and cur[0] == probe[0]:
            if probe[1] == "end": a("s_memrealtime s[20:21]"); a("s_waitcnt lgkmcnt(0)")
            a(f"s_sub_u32 s20, s20, {'s26' if len(probe) > 5 else 's96'}"); a(f"s_mul_i32 s20, s20, {probe[2]}"); a(f"s_add_u32 s20, s20, {probe[4]}")
            if probe[3] is not None: a(f"s_cmp_eq_u32 {sR if probe[3] < 32 else sWG}, {probe[3]}"); a("s_cselect_b32 s20, s20, 0")
            a("s_min_u32 s20, s20, 40000")
            a("L_probe:"); a("s_memrealtime s[22:23]"); a("s_waitcnt lgkmcnt(0)"); a("s_sub_u32 s22, s22, s96"); a("s_cmp_lt_u32 s22, s20"); a("s_cbranch_scc1 L_probe")
        if stamps:
            a("s_mov_b64 exec, -1")
            stamp("end"); a("s_waitcnt vmcnt(0)"); stamp("acked"); stamp("x")
            a("s_mov_b32 exec_hi, 0")
            a(f"s_mul_i32 {sT0}, {sWG}, {NW}"); a(f"s_add_u32 {sT0}, {sT0}, {sW}"); a(f"s_lshl_b32 {sT0}, {sT0}, 7"); a(f"s_add_u32 {sT0}, {sT0}, {WS_STAMP}")
            a(f"v_lshl_add_u32 {t0}, {vL}, 2, {sT0}")
            a(f"global_store_dword {t0}, v255, s[28:29]")
        a("s_endpgm")
    def srd(i, lo, hi, size):
        if lo is not None: a(f"s_mov_b32 s{i}, {lo}"); a(f"s_mov_b32 s{i+1}, {hi}")
        a(f"s_mov_b32 s{i+2}, {size}"); a(f"s_mov_b32 s{i+3}, 0x20000")
    def poll(name, loads, check, sleep=0, first_issued=False, masked=False):
        sv = a.vm_seq
        a(f"s_mov_b32 {sSpin}, {spin}")
        if first_issued: a(f"s_branch {name}_chk")
        a(f"{name}:")
        if sleep: a(f"s_sleep {sleep}")
        loads()
        a(f"s_sub_u32 {sSpin}, {sSpin}, 1"); a(f"s_cmp_eq_u32 {sSpin}, 0")
        a("s_waitcnt vmcnt(0) lgkmcnt(0)")
        a(f"s_cbranch_scc1 {name}_go")
        if first_issued: a(f"{name}_chk:")
        check()
        if masked:
            a("s_and_b64 exec, exec, vcc")
            a(f"s_cbranch_scc1 {name}")
        else:
            a(f"s_cbranch_vccnz {name}")
        a(f"{name}_go:")
        if masked: a("s_mov_b64 exec, -1")
        if first_issued: a.vm_seq = sv
    def by_placement(tag, emit, have_scc=False):
        if not have_scc: a(f"s_cmp_eq_u32 {sLocal}, 1")
        a(f"s_cbranch_scc1 L_{tag}_l")
        sv = a.vm_seq
        emit(" sc1"); a.vm_seq = sv
        a(f"s_branch L_{tag}_d")
        a(f"L_{tag}_l:")
        emit(" " + lp if lp else "")
        a(f"L_{tag}_d:")
    def sentinel(regs):
        regs = list(regs); accs = [t0, t2]
        a(f"v_max_u32 {t0}, v{regs[0]}, v{regs[1]}"); a(f"v_max_u32 {t2}, v{regs[2]}, v{regs[3]}")
        for i in range(4, len(regs), 2):
            c = accs[(i >> 1) & 1]
            a(f"v_max3_u32 {c}, {c}, v{regs[i]}, v{regs[i+1]}")
        a(f"v_max_u32 {t0}, {t0}, {t2}")
        a(f"v_cmp_eq_u32 vcc, -1, {t0}")
    def red(op, r, steps):
        for s in steps:
            if s in (16, 32):
                a(f"v_mov_b32 {t1}, {r}"); a(f"v_permlane{s}_swap_b32 {r}, {t1}"); a(f"{op} {r}, {r}, {t1}")
            elif s == "q1": a(f"{op}_dpp {r}, {r}, {r} {QP1}")
            elif s == "q2": a(f"{op}_dpp {r}, {r}, {r} {QP2}")
            else: a(f"{op}_dpp {r}, {r}, {r} row_ror:{s} {FULL}")
    def rnd(r):
        a(f"v_cvt_pk_bf16_f32 {r}, {r}, {r}"); a(f"v_and_b32 {r}, 0xffff0000, {r}")
    def unit(P):
        a(f"s_mul_i32 {sT0}, {sR}, 37"); a(f"s_lshr_b32 {sT0}, {sT0}, 8")
        a(f"s_mul_i32 {sT1}, {sT0}, 7"); a(f"s_sub_u32 {sT1}, {sR}, {sT1}")
        a(f"s_lshl_b32 {sT2}, {sX}, 2"); a(f"s_add_u32 {sT0}, {sT0}, {sT2}")
        a(f"s_mul_i32 {sU}, {sT0}, {128*896}"); a(f"s_lshl_b32 {sT2}, {sT1}, 7"); a(f"s_add_u32 {sU}, {sU}, {sT2}")
        a(f"s_lshr_b32 {sG}, {sT0}, 1"); a(f"s_lshl_b32 {sG}, {sG}, 14"); a(f"s_and_b32 {sT2}, {sT0}, 1"); a(f"s_lshl_b32 {sT2}, {sT2}, 12")
        a(f"s_add_u32 {sG}, {sG}, {sT2}"); a(f"s_add_u32 {sG}, {sG}, {WS_PO + P*512*512}")
        a(f"s_lshl_b32 {sY}, {sT1}, 14"); a(f"s_lshl_b32 {sT2}, {sT0}, 6"); a(f"s_add_u32 {sY}, {sY}, {sT2}")
        a(f"s_add_u32 {sY}, {sY}, {WS_Y}")
    def unit_v():
        a(f"v_lshrrev_b32 {t0}, 2, {vn}"); a(f"v_and_b32 {t2}, 3, {vn}")
        a(f"v_lshlrev_b32 {vGo}, 4, {vL}")
        a(f"v_lshl_add_u32 {vTr}, {vg}, 3, {t0}"); a(f"v_lshlrev_b32 {vTr}, 7, {vTr}"); a(f"v_lshl_add_u32 {vTr}, {t2}, 3, {vTr}")
        a(f"v_lshrrev_b32 {t0}, 3, {vL}"); a(f"v_mul_u32_u24 {t0}, 896, {t0}"); a(f"v_and_b32 {t2}, 7, {vL}"); a(f"v_lshl_add_u32 {vWo}, {t2}, 4, {t0}")
    sCh = "s71"
    def y_base(dst, P):
        a(f"v_add_u32 {t0}, {4*P}, {vg}"); a(f"v_mul_u32_u24 {dst}, {YG}, {t0}")
        a(f"v_bfe_u32 {t2}, {sCh}, {t0}, 1"); a(f"v_lshl_add_u32 {dst}, {t2}, 13, {dst}"); a(f"v_lshl_add_u32 {dst}, {vn}, 2, {dst}")
    def tag_load(): a(f"s_load_dwordx2 s[56:57], s[28:29], {WS_EP}")
    def tag_make():
        a(f"s_add_u32 s56, s56, {TAGC[0]}"); a(f"s_addc_u32 s57, s57, {TAGC[1]}"); a("s_lshr_b32 s58, s57, 4")
        a(f"s_getreg_b32 {sT0}, hwreg(HW_REG_XCC_ID, 0, 4)")
        a("s_lshl_b32 s59, s58, 4"); a(f"s_or_b32 s59, s59, {sT0}")
    def tag_chk(regs):
        for i, r in enumerate(regs):
            a(f"v_lshrrev_b32 {t1}, 4, v{r+1}"); a(f"v_xor_b32 {t1}, s58, {t1}"); a(f"v_xor_b32 {t2}, s56, v{r}")
            if i: a(f"v_or3_b32 {t0}, {t0}, {t1}, {t2}")
            else: a(f"v_or_b32 {t0}, {t1}, {t2}")
        a(f"v_cmp_ne_u32 vcc, 0, {t0}")

    YT = ["s65", "s66", "s67", "s68"]
    def ytag_make():
        a(f"s_and_b32 {YT[0]}, s56, 0xfff"); a(f"s_bfe_u32 {YT[1]}, s56, 0xc000c")
        a(f"s_and_b32 {YT[2]}, s58, 0xfff"); a(f"s_bfe_u32 {YT[3]}, s58, 0xc000c")
    def y_seal(r):
        a(f"v_add_u32 v{r}, 0x800, v{r}"); a(f"v_and_or_b32 v{r}, v{r}, {vYm}, {vYt}")

    a("s_load_dwordx16 s[4:19], s[0:1], 0")
    a("s_load_dwordx8 s[20:27], s[0:1], 64")
    a("s_load_dwordx2 s[28:29], s[0:1], 96")
    stamp("start"); names["h"] = list(names["s"]); names["g"] = list(names["s"])
    a(f"s_cmp_ge_u32 {sWG}, 256")
    a("s_cbranch_scc1 L_end")
    a(f"v_lshrrev_b32 {t2}, 6, v0")
    a(f"v_and_b32 {vL}, 63, v0")
    a(f"v_readfirstlane_b32 {sW}, {t2}")
    a(f"v_lshrrev_b32 {vg}, 4, {vL}")
    a(f"v_and_b32 {vn}, 15, {vL}")
    a(f"s_and_b32 {sX}, {sWG}, 7")
    a(f"s_lshr_b32 {sR}, {sWG}, 3")
    a(f"s_lshr_b32 {sT0}, {sWG}, 7")
    a(f"s_lshl1_add_u32 {sH}, {sX}, {sT0}")
    a(f"s_bfe_u32 {sB}, {sR}, 0x20002")
    a(f"s_cmp_ge_u32 {sW}, 4")
    a("s_cbranch_scc1 L_helper")

    a(f"v_lshl_add_u32 {vKo}, {t2}, 2, {vg}")
    a(f"v_lshl_add_u32 {vKo}, {vKo}, 5, {vn}")
    a(f"v_lshlrev_b32 {vKo}, 4, {vKo}")
    HA = 3 << (13 + ila); HB = 7 << (13 + ilb)
    a(f"s_lshl4_add_u32 s40, {sB}, {sH}"); a(f"s_and_b32 s41, {sR}, 3")
    if hb:
        HA = (1 << hb[0]) | (1 << hb[1])
        a("s_lshl_b32 s40, s40, 21"); a("s_and_b32 s42, s41, 1"); a(f"s_lshl_b32 s42, s42, {hb[0]}"); a("s_add_u32 s40, s40, s42")
        a("s_lshr_b32 s42, s41, 1"); a(f"s_lshl_b32 s42, s42, {hb[1]}"); a("s_add_u32 s40, s40, s42")
    elif ila == 6:
        a("s_lshl2_add_u32 s40, s40, s41"); a("s_lshl_b32 s40, s40, 19")
    else:
        a(f"s_lshl_b32 s40, s40, {8 - ila}"); a("s_add_u32 s40, s40, s41"); a(f"s_lshl_b32 s40, s40, {13 + ila}")
    NRA = 0x200000 - HA; MA_ = 0x1fffff & ~HA
    if lay:
        nb = 3 + lay
        HA = (((1 << nb) - 1) << (13 + ila)) | ((15 << 21) if lay == 1 else (7 << 22))
        NRA = 0x8000000 - HA; MA_ = 0x7ffffff & ~HA
        a(f"s_and_b32 s40, {sR}, {(1 << nb) - 1}"); a(f"s_lshl_b32 s40, s40, {13 + ila}")
        a(f"s_lshl_b32 s42, {sH if lay == 1 else sX}, {20 + lay}"); a("s_add_u32 s40, s40, s42")
    srd(32, None, None, NRA)
    cur_off = [0]
    sMask = "s70"; sHole = "s100"; sRa = "s101"
    rota = rp or rph
    if rx:
        a(f"s_mul_i32 {sRa}, {sB}, {rx[0]}"); a(f"s_mul_i32 {sOff}, {sH}, {rx[1]}"); a(f"s_add_u32 {sRa}, {sRa}, {sOff}")
        a(f"s_lshr_b32 {sRa}, {sRa}, {rx[2]}"); a(f"s_and_b32 {sRa}, {sRa}, 3"); a(f"s_lshl_b32 {sRa}, {sRa}, 19")
    elif rp << ila == 16 and not rph:
        a(f"s_lshl_b32 {sRa}, {sB}, 19")
    elif rota:
        a(f"s_mul_i32 {sRa}, {sB}, {rp}"); a(f"s_mul_i32 {sOff}, {sH}, {rph}"); a(f"s_add_u32 {sRa}, {sRa}, {sOff}")
        a(f"s_lshl_b32 {sRa}, {sRa}, {15 + ila}"); a(f"s_and_b32 {sRa}, {sRa}, 0x1fffff")
    a(f"s_mov_b32 {sOff}, {sRa if rota else 0}")
    sXo = "s4"; sXa = "s5"; sXb = "s10"; sEff = "s11"
    def xor_make(dst, spec):
        a(f"s_mov_b32 {dst}, 0")
        for bit, src in spec:
            a(f"s_bitcmp1_b32 {sWG}, {src}"); a(f"s_cselect_b32 {sT1}, {1 << bit}, 0"); a(f"s_xor_b32 {dst}, {dst}, {sT1}")
    def advance(n, masked=False):
        if masked:
            a(f"s_or_b32 {sOff}, {sOff}, {sHole}"); a(f"s_addk_i32 {sOff}, 8192"); a(f"s_and_b32 {sOff}, {sOff}, {sMask}")
        else:
            nx = ((cur_off[0] | HA) + 8192) & ~HA
            d = nx - cur_off[0]; cur_off[0] = nx
            if d == 8192: a(f"s_addk_i32 {sOff}, 8192")
            else:
                a(f"s_add_u32 {sOff}, {sOff}, {d}")
                if rota: a(f"s_bitset0_b32 {sOff}, 21")
    def backlog(P0, do_issue, do_proc):
        p = 0; burst = 0; iss = RT
        while not (p % LG == 0 and iss - p == LG and p >= RT):
            do_proc(p); p += 1
            if early:
                if p & 1: continue
                free = iss + 1 - RT < p and (P0 is None or iss < P0 + LG)
                if iss - p < LG or (iss - p > LG and free and (burst < 2 or p % r2 == 0)):
                    assert free
                    do_issue(); iss += 2; burst += 1
                continue
            free = iss - RT < p and (P0 is None or iss < P0 + LG)
            if iss - p < LG or (iss - p > LG and free and (burst < D or p % ratio == 0)):
                assert free
                do_issue(); iss += 1; burst += 1
        return p
    P0 = backlog(None, lambda: None, lambda p: None)
    assert P0 - RT <= 16 and P0 <= 112
    a("s_waitcnt lgkmcnt(0)")
    a(f"s_add_u32 s32, s{6+2*kv}, s40"); a(f"s_addc_u32 s33, s{7+2*kv}, 0")
    if xa: xor_make(sXa, xa); a(f"s_mov_b32 {sXo}, {sXa}")
    ids = {}
    def srd_of(n): return KA if n < 128 else KB if n < 144 else VB if n < 160 else VA
    def kslot(n):
        if n >= P0: return n % LG
        if n >= RT: return LG + n - RT
        if n >= RP: return 32 + (n - RP) % 8
        NT = P0 - RT
        return LG + n if n < NT else n - NT if n < NT + LG else n
    def issue(n, masked=False):
        if n == 144: a(f"s_mov_b32 {sOff}, {sRot}")
        if n == 160:
            a(f"s_mov_b32 {sOff}, {sRa if rota else 0}"); a(f"s_mov_b32 {sHole}, {HA}"); a(f"s_mov_b32 {sMask}, {MA_}")
            if xa or xb: a(f"s_mov_b32 {sXo}, {sXa if xa else 0}")
        masked = masked or n >= 128
        so = sOff
        if xa or (xb and masked and n < 160):
            so = sEff
            if not n & 1: a(f"s_xor_b32 {sEff}, {sOff}, {sXo}")
        if RP <= n < RT:
            a(f"s_add_u32 m0, {sLb}, {256 + (n - RP) * 1024 - 256 * (n & 1)}")
            ids[n] = a(f"buffer_load_dwordx4 {vKo}, {srd_of(n)}, {so} offen offset:{256*(n&1)} {pol} lds")
        else:
            ids[n] = a(f"buffer_load_dwordx4 {vr(slot(kslot(n)))}, {vKo}, {srd_of(n)}, {so} offen offset:{256*(n&1)} {pol}")
        if n & 1: advance(n, masked)
    for n in range(D0): issue(n)
    issued = D0
    stamp("k0")
    tag_load()
    a(f"s_add_u32 s36, s{8-2*kv}, s40"); a(f"s_addc_u32 s37, s{9-2*kv}, 0"); srd(36, None, None, NRA)
    a(f"s_lshl2_add_u32 {sRecA}, {sH}, {sB}"); a(f"s_lshl3_add_u32 {sRecA}, {sRecA}, s41")
    a(f"s_lshl_b32 {sRecB}, {sX}, 6"); a(f"s_add_u32 {sRecB}, {sRecB}, {sR}"); a(f"s_add_u32 {sRecB}, {sRecB}, 512")
    a(f"s_andn2_b32 s44, {sR}, 7"); a(f"s_add_u32 s44, s44, {sX}"); a(f"s_xor_b32 s44, s44, {bx}"); a("s_lshl_b32 s44, s44, 21")
    a(f"s_and_b32 s45, {sR}, 7"); a(f"s_lshl_b32 s45, s45, {13 + ilb}"); a("s_add_u32 s44, s44, s45"); a("s_add_u32 s44, s44, 0x180000")
    a("s_add_u32 s40, s16, s44"); a("s_addc_u32 s41, s17, 0"); srd(40, None, None, 0x80000 - HB)
    a("s_add_u32 s44, s18, s44"); a("s_addc_u32 s45, s19, 0"); srd(44, None, None, 0x80000 - HB)
    srd(60, "s28", "s29", WS_END); srd(48, "s12", "s13", 0 if nowo & 1 else 0x380000); srd(52, "s22", "s23", 0 if nowo & 2 else 0x380000)
    unit(0)
    a(f"s_mul_i32 {sT0}, {sW}, {4*8*896}"); a(f"s_add_u32 {sU}, {sU}, {sT0}")
    a(f"s_lshl_b32 {sT0}, {sW}, 11"); a(f"s_add_u32 {sY}, {sY}, {sT0}")
    sUB = "s69"
    a(f"s_xor_b32 {sT0}, {sX}, {bx}"); a(f"s_sub_i32 {sT0}, {sT0}, {sX}"); a(f"s_mul_i32 {sT0}, {sT0}, {512*896}"); a(f"s_add_u32 {sUB}, {sU}, {sT0}")
    a(f"s_cmp_ge_u32 {sR}, 28"); a(f"s_cselect_b32 {sU}, {OOB}, {sU}"); a(f"s_cselect_b32 {sUB}, {OOB}, {sUB}"); a(f"s_cselect_b32 {sG}, {OOB}, {sG}")
    if True:
        a(f"s_mul_i32 {sRot}, {sR}, {rot}"); a(f"s_mul_i32 {sT0}, {sX}, {rotx}"); a(f"s_add_u32 {sRot}, {sRot}, {sT0}")
        a(f"s_and_b32 {sRot}, {sRot}, {rotm}")
        a(f"s_lshr_b32 {sT0}, {sRot}, {ilb}"); a(f"s_mul_i32 {sT0}, {sT0}, {7 << ilb}"); a(f"s_add_u32 {sRot}, {sRot}, {sT0}"); a(f"s_lshl_b32 {sRot}, {sRot}, 13")
    if xa or xb: xor_make(sXb, xb)
    if xb and not xa: a(f"s_mov_b32 {sXo}, 0")
    a(f"s_mov_b32 {sC}, {CSCALE}")
    a("s_mov_b32 s90, 0xcccccccc"); a("s_mov_b32 s91, 0xcccccccc")
    a("s_mov_b32 s92, 0xaaaaaaaa"); a("s_mov_b32 s93, 0xaaaaaaaa")
    a("s_and_b64 s[98:99], s[90:91], s[92:93]"); a(f"s_mov_b32 {sHole}, {HA}"); a(f"s_mov_b32 {sMask}, {MA_}")
    a(f"v_bfe_u32 {t0}, {vL}, 1, 2")
    a(f"v_mov_b32 {t2}, 0xffff"); a(f"v_mov_b32 {t1}, 0xffff0000")
    a(f"v_cndmask_b32 {t2}, {t2}, {t1}, {sMk0}")
    for j in range(4):
        a(f"v_cmp_eq_u32 vcc, {j}, {t0}")
        a(f"v_cndmask_b32 {vM[j]}, 0, {t2}, vcc")
    a(f"v_lshlrev_b32 {t3}, 4, {vn}"); a(f"v_mov_b32 {t0}, {L_LOC}")
    a(f"s_mul_i32 {sLb}, {sW}, {NL * 1024}"); a(f"s_add_u32 {sLb}, {sLb}, {L_KB - 256}")
    if nboost:
        a(f"s_and_b32 {sT0}, {sR}, 7"); a(f"s_cmp_eq_u32 {sT0}, 3"); a("s_cselect_b64 vcc, -1, 0")
    landed = -1
    def throttled_issue():
        nonlocal issued, landed
        d = D0 if issued < ND0 else D
        if RT - pbar - pre <= issued < RT - pbar: d += issued - (RT - pbar - pre) + 1
        if issued - d > landed:
            if 14 <= issued < 14 + nboost:
                landed = max(landed, issued - d - 1); a.wait_vm(ids[issued - d - 1])
                a(f"s_cbranch_vccnz L_boost{issued}"); a.wait_vm(ids[issued - d]); a(f"L_boost{issued}:")
            else:
                landed = issued - d; a.wait_vm(ids[landed])
        issue(issued); issued += 1
    while issued < RT - pbar:
        throttled_issue()
        if (fine or probe) and issued in (D0 + 1, 16, 26, 36, 46, 56, 66): stamp(f"ki{issued}")
        if issued == 24:
            a("s_waitcnt lgkmcnt(0)"); tag_make(); ytag_make()
    stamp("ring_full")
    a("s_barrier")
    if probe or fine: stamp("bar")
    a(f"ds_read_b128 {vr(QA)}, {t3} offset:{L_Q+1024}"); a(f"ds_read_b128 {vr(QA+4)}, {t3} offset:{L_Q+1024+256}")
    for k in range(4): a(f"ds_read_b128 {vr(QB+4*k)}, {t3} offset:{L_Q+256*k}")
    a(f"ds_read2_b32 v[54:55], {t0} offset0:0 offset1:1")
    while issued < RT: throttled_issue()
    a(f"v_lshl_add_u32 {t3}, {vL}, 4, {sLb}")
    a("s_waitcnt lgkmcnt(0)")
    a(f"v_readfirstlane_b32 {sLocal}, {t0}"); a(f"v_readfirstlane_b32 {sCh}, {t1}")
    stamp("q_ready")

    def tree(j, acc, dst_fn):
        u = U[(j >> 1) & 1]
        a(f"v_add_f32_dpp {u}, {acc}, {acc} row_ror:8 row_mask:0xf bank_mask:{'0xc' if j & 1 else '0x3'}")
        if not j & 1: return
        v = V[(j >> 2) & 1]
        a(f"v_add_f32_dpp {v}, {u}, {u} row_half_mirror row_mask:0xf bank_mask:{'0xa' if j & 2 else '0x5'}")
        if not j & 2: return
        a(f"v_add_f32_dpp {v}, {v}, {v} {QP2}")
        if not j & 4: return
        x = X[(j >> 3) & 1]
        a(f"v_cndmask_b32 {x}, {V[0]}, {V[1]}, {sMk1}")
        a(f"v_add_f32_dpp {x}, {x}, {x} {QP1}")
        if not j & 8: return
        dst_fn()
    def dots(acc, kr, qr, first):
        if first: a(f"v_mov_b32 {acc}, 0")
        for e in range(4): a(f"v_dot2c_f32_bf16 {acc}, v{kr+e}, v{qr+e}")
    ROT = "quad_perm:[1,2,3,0] " + FULL
    def procK(n, looped=False):
        k = kslot(n); i = (n >> 1) & 3; hf = n & 1
        acc = T[i & 1]
        dots(acc, slot(k), QA + 4 * hf, not hf)
        if not hf: return
        a(f"v_add_f32_dpp {U[0]}, {acc}, {acc} row_ror:8 row_mask:0xf bank_mask:{'0xc' if i & 1 else '0x3'}")
        if not i & 1: return
        a(f"v_add_f32_dpp {V[0]}, {U[0]}, {U[0]} row_half_mirror row_mask:0xf bank_mask:{'0xa' if i & 2 else '0x5'}")
        if not i & 2: return
        r = SP + (0 if looped else ((n >> 3) - P0 // 8) & 3)
        a(f"v_mov_b32_dpp {X[0]}, v{r} {ROT}")
        a(f"v_add_f32_dpp {V[0]}, {V[0]}, {V[0]} {QP2}")
        if looped:
            for e in range(3): a(f"v_mov_b32 v{SP+e}, v{SP+e+1}")
        a(f"v_add_f32_dpp {V[0]}, {V[0]}, {V[0]} {QP1}")
        a(f"v_cndmask_b32 v{SP+3 if looped else r}, {X[0]}, {V[0]}, s[98:99]")
    def procKB(n):
        k = kslot(n); j = (n - 128) >> 1; hf = n & 1
        for hd in range(2):
            dots(T[hd], slot(k), QB + 8 * hd + 4 * hf, not hf)
        if not hf: return
        for hd in range(2):
            tree(2 * j + hd, T[hd], lambda: a(f"v_cndmask_b32 {SB}, {X[0]}, {X[1]}, {sMk0}"))
    def procVB(n):
        k = kslot(n); j = (n - 144) >> 1; hf = n & 1
        if not hf:
            a(f"v_mov_b32_dpp {t0}, {SB} row_newbcast:{brev(j,3)} row_mask:0xf bank_mask:0x3")
            a(f"v_mov_b32_dpp {t0}, {SB} row_newbcast:{8+brev(j,3)} row_mask:0xf bank_mask:0xc")
            for e in range(4): a(f"v_and_b32 v{AOP+e}, {t0}, {vM[e]}")
        a(f"v_mfma_f32_16x16x32_bf16 {vr(ACCB+4*hf)}, {vr(AOP)}, {vr(slot(k))}, {vr(ACCB+4*hf) if j else 0}")
    def procV(n, last=False):
        if nomf: return
        k = kslot(n); i = (n >> 1) & 3; hf = n & 1
        if not hf:
            for e in range(4):
                a(f"v_and_b32_dpp v{AOP+e}, v{SP}, {vM[e]} row_newbcast:{8*(i&1) + 4*(i>>1)} {FULL}")
        a(f"v_mfma_f32_16x16x32_bf16 {vr(ACC+4*hf)}, {vr(AOP)}, {vr(slot(k))}, {vr(ACC+4*hf)}")
        if hf and i == 3 and not last:
            a(f"v_mov_b32_dpp {X[0]}, v{SP} {ROT}")
            for e in range(3): a(f"v_mov_b32 v{SP+e}, v{SP+e+1}")
            a(f"v_mov_b32 v{SP+3}, {X[0]}")
    nlad = [0]
    def refill(n, masked=False):
        nlad[0] += 1
        levels = [t for t in range(thmax, thmin - 1, -1) if t <= 8 or (thmax - t) % 2 == 0]
        a(f"s_cmp_le_u32 {sTh}, 5"); a(f"s_cbranch_scc1 L_low{nlad[0]}")
        for i, th in enumerate(levels):
            if th == 5: a(f"L_low{nlad[0]}:")
            a(f"s_waitcnt vmcnt({th})")
            if th > thmin: a(f"s_cmp_gt_u32 {sTh}, {levels[i+1]}"); a(f"s_cbranch_scc1 L_lad{nlad[0]}")
        a(f"L_lad{nlad[0]}:")
        issue(n, masked); issue(n + 1, masked)
        a(f"v_add_u32 {vPrg}, 1, {vPrg}")
        a(f"ds_write_b32 {vPrA}, {vPrg}")
    def th_fetch(): a(f"ds_read_b32 {vTH}, {vPrA} offset:{L_TH - L_PRG}")
    def pair(n, proc, extra=None, masked=False):
        j = n >> 1
        if j & 1:
            a(f"s_waitcnt vmcnt({LG - 2}) lgkmcnt(0)")
            a(f"v_readfirstlane_b32 {sTh}, {vTH}")
        else:
            a(f"s_waitcnt vmcnt({LG - 2})")
        proc(n); proc(n + 1)
        refill(n + LG, masked)
        if not j & 1: th_fetch()
        if extra: extra()
    AH = 4
    def need(n):
        nonlocal landed
        if n > landed:
            assert early
            landed = n; a.wait_vm(ids[n])
    def backlog_proc(p):
        n = p + AH
        if RP <= n < RT:
            assert p > 39
            need(n)
            a(f"ds_read_b128 {vr(slot(kslot(n)))}, {t3} offset:{256 + (n - RP) * 1024}")
        if RP <= p < RT: a(f"s_waitcnt lgkmcnt({min(AH, RT - 1 - p)})")
        need(p)
        procK(p)
    def governed_issue():
        nonlocal issued, landed
        if issued > RT: a("s_waitcnt lgkmcnt(0)"); a(f"v_readfirstlane_b32 {sTh}, {vTH}")
        landed = max(landed, issued - thmax - 1)
        refill(issued); issued += 2
        th_fetch()
    def gov_init():
        a(f"s_lshl2_add_u32 {sT0}, {sW}, {L_PRG}")
        a(f"v_mov_b32 {vPrA}, {sT0}"); a(f"v_mov_b32 {vPrg}, 0")
        a(f"s_mov_b32 {sTh}, {int(th0 + 0.5)}")
    if early: gov_init()
    assert backlog(P0, governed_issue if early else throttled_issue, backlog_proc) == P0
    if not early: gov_init()
    N0 = RT if early else P0 + LG
    total = (NTOT - N0) // 2 * 4
    assert total * 32 < 0x4000
    stamp("caught_up")
    a(f"s_mov_b32 {sCnt}, {(128 - P0) // LG}")
    a("L_k:")
    a(f"s_sub_u32 {sCnt}, {sCnt}, 1"); a(f"s_cmp_eq_u32 {sCnt}, 0")
    a("s_cselect_b32 s32, s40, s32"); a("s_cselect_b32 s33, s41, s33"); a("s_cselect_b32 s34, s42, s34")
    a(f"s_cselect_b32 {sOff}, {sRot}, {sOff}"); a(f"s_cselect_b32 {sMask}, {0x7ffff & ~HB}, {sMask}"); a(f"s_cselect_b32 {sHole}, {HB}, {sHole}")
    if xa or xb: a(f"s_cselect_b32 {sXo}, {sXb}, {sXo}")
    for n in range(P0, P0 + LG, 2): pair(n, lambda m: procK(m, True), masked=True)
    a(f"s_cmp_lg_u32 {sCnt}, 0"); a("s_cbranch_scc1 L_k")
    stamp("K_done")
    def softmaxA():
        for e in range(4): rnd(f"v{SP+e}")
        a(f"v_max3_f32 {vm}, v{SP}, v{SP+1}, v{SP+2}"); a(f"v_max_f32 {vm}, {vm}, v{SP+3}")
        red("v_max_f32", vm, (8, 4, 2, 1, 16, 32))
        a(f"v_mul_f32 {vm}, {sC}, {vm}")
        for e in range(4): a(f"v_fma_f32 v{SP+e}, v{SP+e}, {sC}, -{vm}")
        for e in range(4): a(f"v_exp_f32 v{SP+e}, v{SP+e}")
        a(f"v_add_f32 {vl}, v{SP}, v{SP+1}"); a(f"v_add_f32 {t0}, v{SP+2}, v{SP+3}"); a(f"v_add_f32 {vl}, {vl}, {t0}")
        for e in range(4): a(f"v_cvt_pk_bf16_f32 v{SP+e}, v{SP+e}, v{SP+e}")
    def softmaxA2():
        red("v_add_f32", vl, (8, 4, 2, 1, 16, 32))
        for e in range(8): a(f"v_mov_b32 v{ACC+e}, 0")
        if mlh:
            a(f"s_lshl3_add_u32 {sT0}, {sW}, {L_ML + 64}"); a(f"v_mov_b32 {t2}, {sT0}"); a(f"ds_write_b64 {t2}, v[186:187]")
            return
        a(f"v_min_u32 {vm}, -2, {vm}"); a(f"v_min_u32 {vl}, -2, {vl}")
        a(f"s_lshl2_add_u32 {sT0}, {sRecA}, {sW}"); a(f"s_lshl3_add_u32 {sT0}, {sT0}, {WS_ML}")
        a("s_mov_b64 exec, 1")
        by_placement("mla", lambda b: a(f"buffer_store_dwordx2 v[186:187], off, {WS}, {sT0}{b}"))
        a("s_mov_b64 exec, -1")
    def softmaxB():
        rnd(SB)
        a(f"v_mul_f32 {SB}, {sC}, {SB}")
        a(f"v_max_f32_dpp {vmB}, {SB}, {SB} row_half_mirror {FULL}")
        red("v_max_f32", vmB, ("q1", "q2", 16, 32))
        a(f"v_sub_f32 {SB}, {SB}, {vmB}"); a(f"v_exp_f32 {SB}, {SB}")
        a(f"v_add_f32_dpp {vlB}, {SB}, {SB} row_half_mirror {FULL}")
        a(f"v_cvt_pk_bf16_f32 {SB}, {SB}, {SB}")
    def softmaxB2():
        red("v_add_f32", vlB, ("q1", "q2", 16, 32))
        if mlh:
            a(f"s_lshl3_add_u32 {sT0}, {sW}, {L_ML}"); a(f"v_and_b32 {t2}, 8, {vn}"); a(f"v_lshl_add_u32 {t2}, {t2}, 2, {sT0}"); a(f"ds_write_b64 {t2}, v[188:189]")
            return
        a(f"v_min_u32 {vmB}, -2, {vmB}"); a(f"v_min_u32 {vlB}, -2, {vlB}")
        a(f"s_lshl2_add_u32 {sT0}, {sRecB}, {sW}"); a(f"s_lshl3_add_u32 {sT0}, {sT0}, {WS_ML}")
        a(f"v_lshlrev_b32 {t2}, 7, {vn}")
        a("s_mov_b64 exec, 0x101")
        by_placement("mlb", lambda b: a(f"buffer_store_dwordx2 v[188:189], {t2}, {WS}, {sT0} offen{b}"))
        a("s_mov_b64 exec, -1")
    def addresses():
        if swz:
            a(f"v_bfe_u32 {t0}, {vL}, 3, 2"); a(f"v_xor_b32 {t0}, {sW}, {t0}"); a(f"v_lshl_add_u32 {vTr}, {t0}, 5, {vTr}")
            a(f"v_and_b32 {t0}, 16, {vL}"); a(f"v_lshlrev_b32 {t0}, 1, {t0}"); a(f"v_xor_b32 {vWo}, {t0}, {vWo}"); a(f"v_xor_b32 {vWo2}, 64, {vWo}")
        else:
            a(f"s_lshl_b32 {sT0}, {sW}, 5"); a(f"v_add_u32 {vTr}, {sT0}, {vTr}"); a(f"v_mov_b32 {vWo2}, {vWo}")
        a(f"s_lshl_b32 {sLb}, {sW}, 12")
        if wfake == 1:
            a(f"v_lshlrev_b32 {vWo}, 4, {vL}"); a(f"v_mov_b32 {vWo2}, {vWo}")
            a(f"s_mul_i32 {sU}, {sX}, 28"); a(f"s_add_u32 {sU}, {sU}, {sR}"); a(f"s_lshl2_add_u32 {sU}, {sU}, {sW}"); a(f"s_lshl_b32 {sU}, {sU}, 12")
            a(f"s_cmp_ge_u32 {sR}, 28"); a(f"s_cselect_b32 {sU}, {OOB}, {sU}"); a(f"s_mov_b32 {sUB}, {sU}")
        if wfake == 2:
            a(f"v_mul_u32_u24 {vWo}, 896, {vg}"); a(f"v_lshl_add_u32 {vWo}, {vn}, 4, {vWo}")
            a(f"s_and_b32 {sT0}, {sR}, 3"); a(f"s_cmp_eq_u32 {sT0}, 3"); a(f"s_cselect_b32 {sT1}, 8, 16")
            a(f"v_cmp_gt_u32 vcc, {sT1}, {vn}"); a(f"v_mov_b32 {t0}, {OOB}"); a(f"v_cndmask_b32 {vWo}, {t0}, {vWo}, vcc"); a(f"v_mov_b32 {vWo2}, {vWo}")
            a(f"s_bfe_u32 {sU}, {sR}, 0x20002"); a(f"s_lshl2_add_u32 {sU}, {sX}, {sU}"); a(f"s_lshl2_add_u32 {sU}, {sU}, {sW}"); a(f"s_mul_i32 {sU}, {sU}, {32*896}")
            a(f"s_lshl_b32 {sT0}, {sT0}, 8"); a(f"s_add_u32 {sU}, {sU}, {sT0}"); a(f"s_add_u32 {sUB}, {sU}, {16*896}")
            a(f"s_cmp_ge_u32 {sR}, 16"); a("s_cselect_b32 s48, s52, s48"); a("s_cselect_b32 s49, s53, s49"); a("s_mov_b32 s52, s48"); a("s_mov_b32 s53, s49")
        y_base(vYo, 0); y_base(vYb, 1)
        a(f"v_mov_b32 {vYm}, 0xfffff000")
        a(f"v_mov_b32 {t0}, {YT[0]}"); a(f"v_mov_b32 {t1}, {YT[1]}"); a(f"v_cndmask_b32 {t0}, {t0}, {t1}, {sMk0}")
        a(f"v_mov_b32 {t2}, {YT[2]}"); a(f"v_mov_b32 {t1}, {YT[3]}"); a(f"v_cndmask_b32 {t2}, {t2}, {t1}, {sMk0}")
        a(f"v_cndmask_b32 {vYt}, {t0}, {t2}, {sMk1}")
        a(f"v_and_b32 {t0}, 1, {vg}"); a(f"v_lshlrev_b32 {t0}, 4, {t0}"); a(f"v_lshl_add_u32 {t0}, {vn}, 5, {t0}")
        a(f"s_lshl_b32 {sT0}, {sW}, 10"); a(f"s_add_u32 {sT0}, {sT0}, {L_PART}")
        a(f"v_add_u32 {vPa}, {sT0}, {t0}")
    nwo = 0; id_wo = None
    def gA():
        for k in range(4): a(f"buffer_load_dwordx4 {vr(G+4*k)}, {vGo}, {WS}, {sG} offen offset:{1024*k} {ap}")
    def wo_issue():
        nonlocal nwo, id_wo
        j = (nwo - wbe) % 8
        a(f"s_add_u32 m0, {sLb}, {(L_WOA, L_WOB)[j >> 2] + 1024*(j & 3)}")
        a(f"s_add_u32 {sT0}, {(sU, sUB)[j >> 2]}, {(8*896, 1024, 4*896)[wfake]*(j & 3)}")
        id_wo = a(f"buffer_load_dwordx4 {(vWo, vWo2)[j & 1]}, {(WOA, WOB)[j >> 2]}, {sT0} offen {pol} lds")
        nwo += 1
    extras = {128: softmaxA, 130: softmaxA2, 132: unit_v, 134: addresses, 142: softmaxB, 144: softmaxB2}
    if xl: extras = {142: softmaxB, 144: softmaxB2, 146: softmaxA, 148: softmaxA2, 150: unit_v, 152: addresses}
    for i in range(wbe): extras[146 + 2 * (i % 7)] = (lambda f: (lambda: (f and f(), wo_issue())))(extras.get(146 + 2 * (i % 7)))
    for n in range(128, 160, 2): pair(n, procKB if n < 144 else procVB, extras.get(n))
    a(f"v_lshrrev_b32 {t1}, 1, {vg}"); a(f"v_lshl_add_u32 {t0}, {t1}, 12, {vPa}")
    a(f"ds_write_b128 {t0}, {vr(ACCB)}"); a(f"ds_write_b128 {t0}, {vr(ACCB+4)} offset:512")
    a(f"v_lshl_add_u32 {vPa}, {t1}, 9, {vPa}")
    PB_ = (160 + LG - N0) // 2
    stamp("B_done")
    a(f"s_mov_b32 {sCnt}, 0")
    a("; ---- V_A ----")
    a("L_v:")
    if stamps:
        for i in (4, 6, 10): a(f"s_cmp_eq_u32 {sCnt}, {i}"); a(f"s_cbranch_scc1 L_st{i}")
    a("L_v_body:")
    for n in range(160, 160 + LG, 2): pair(n, procV)
    a(f"s_add_u32 {sCnt}, {sCnt}, {LG // 8}"); a(f"s_cmp_lt_u32 {sCnt}, {16 - LG // 8}"); a("s_cbranch_scc1 L_v")
    if stamps:
        a("s_branch L_v_x")
        for i, nm in ((4, "v4"), (6, "v7"), (10, "v11")):
            a(f"L_st{i}:"); stamp(nm); a("s_branch L_v_body")
    a("L_v_x:")
    stamp("v_x")
    for k in range(LG): ids[NTOT - LG + k] = a.vm_seq - (LG - 1 - k)
    a("s_mov_b32 vcc_lo, 0"); a("s_mov_b32 vcc_hi, -1")
    def last(n0, n1, d, per):
        for n in range(n0, n1):
            a.wait_vm(ids[n])
            for i in range(per):
                if n - (NTOT - 8) >= d and nwo < 8: wo_issue()
            procV(n, last=n >= NTOT - 8)
    def share():
        stamp("stream_done")
        for e in range(4): a(f"v_cndmask_b32 v{ACC+e}, v{ACC+e}, v{ACC+4+e}, vcc")
        a(f"ds_write_b128 {vPa}, {vr(ACC)} offset:8192")
        while wpos == 0 and nwo < 8: wo_issue()
    last(NTOT - LG, NTOT - 8, 8, 0)
    if wth is not None:
        assert wpos == 0
        a(f"s_cmp_lt_u32 {sTh}, {wth}"); a("s_cbranch_scc1 L_calm")
        sv = (a.vm_seq, nwo)
        last(NTOT - 8, NTOT, wde, wpe); share()
        a("s_branch L_join")
        a.vm_seq, nwo = sv
        if stamps: names["s"].pop()
        a("L_calm:")
    last(NTOT - 8, NTOT, wod, wper); share()
    if wth is not None: a("L_join:")
    a("s_waitcnt lgkmcnt(0)")
    a("s_barrier")
    while wpos == 1 and nwo < 8: wo_issue()
    for k in range(4): a(f"ds_read_b128 {vr(OBS+4*k)}, {vGo} offset:{L_PART + 1024*k}")
    if g2:
        a("s_barrier")
        while wpos == 2 and nwo < 8: wo_issue()
        gA()
        while nwo < 8: wo_issue()
    if wg is None and wbe < 8: a.wait_vm(id_wo)
    a("s_barrier")
    if fine: stamp("wo_in")
    a(f"s_cmp_ge_u32 {sR}, 28"); a("s_cbranch_scc1 L_s_fin")
    a("s_waitcnt lgkmcnt(0)")
    for dst, src in ((WTB, L_WOB), (WT, L_WOA)):
        for k in range(4):
            if src == L_WOA and k == 3: a("s_waitcnt lgkmcnt(6)")
            a(f"ds_read_b64_tr_b16 {vr(dst+4*k,2)}, {vTr} offset:{src+4096*k}")
            a(f"ds_read_b64_tr_b16 {vr(dst+4*k+2,2)}, {vTr} offset:{src+4096*k+512}")
    for k in range(4):
        a(f"v_mfma_f32_16x16x32_bf16 {vr(ACC+4)}, {vr(OBS+4*k)}, {vr(WTB+4*k)}, {vr(ACC+4) if k else 0}")
    if g2: a("s_waitcnt vmcnt(0)")
    poll("L_s2", gA, lambda: sentinel(range(G, G + 16)), masked=True, first_issued=g2)
    if g2: a("s_waitcnt lgkmcnt(0)")
    stamp("gathered")
    for k in range(4):
        a(f"v_mfma_f32_16x16x32_bf16 {vr(ACC)}, {vr(G+4*k)}, {vr(WT+4*k)}, {vr(ACC) if k else 0}")
    y_seal(ACC + 4)
    a(f"buffer_store_dword v{ACC+4}, {vYb}, {WS}, {sY} offen sc1")
    a(f"v_add_f32 v{ACC}, v{ACC}, v{ACC+1}"); a(f"v_add_f32 v{ACC+2}, v{ACC+2}, v{ACC+3}"); a(f"v_add_f32 v{ACC}, v{ACC}, v{ACC+2}")
    y_seal(ACC)
    a(f"buffer_store_dword v{ACC}, {vYo}, {WS}, {sY} offen sc1")
    if stamps:
        a("s_branch L_s_fin2")
        a("L_s_fin:")
        names["s"].pop(); stamp("gathered")
        a("L_s_fin2:")
    else:
        a("L_s_fin:")
    stamp("y")
    a("s_waitcnt vmcnt(0)")
    a("s_barrier")
    finish()

    cur[0] = "g"
    a("L_gov:")
    vA4 = "v2"; vBo = "v3"; vPw = "v4"; vP = "v5"; vPp = "v6"; vB = "v7"; vTh = "v8"; vL16 = "v16"
    sTg = sU; sPo = sRecA; sGa = sRecB; sIn = sY
    a(f"v_lshlrev_b32 {vL16}, 4, {vL}")
    a(f"s_lshl_b32 {sT1}, {sX}, 5"); a(f"s_add_u32 {sT1}, {sT1}, {sR}"); a(f"s_lshl_b32 {sT1}, {sT1}, 7"); a(f"s_add_u32 {sT1}, {sT1}, {WS_FL}")
    srd(60, None, None, WS_END)
    a("s_waitcnt lgkmcnt(0)")
    tag_load()
    a("s_mov_b32 s60, s28"); a("s_mov_b32 s61, s29")
    a("s_mov_b64 exec, 0xff")
    a("s_waitcnt lgkmcnt(0)")
    tag_make()
    a("v_mov_b32 v8, s56"); a("v_mov_b32 v9, s59"); a("v_mov_b32 v10, s56"); a("v_mov_b32 v11, s59")
    a(f"buffer_store_dwordx4 v[8:11], {vL16}, {WS}, {sT1} offen sc1")
    a("s_mov_b64 exec, -1")
    ytag_make()
    a(f"s_mul_i32 {sIn}, {sX}, {YG}"); a(f"s_add_u32 {sIn}, {sIn}, {WS_Y}")
    a("; ---- r = 0: which of two lines it has just written answers first (near or far memory); only speed depends on it ----")
    a(f"s_cmp_lg_u32 {sR}, 0"); a("s_cbranch_scc1 L_norace")
    a(f"s_lshl_b32 {sT1}, {sX}, 7"); a(f"s_add_u32 {sT1}, {sT1}, {WS_PR}"); a(f"s_add_u32 {sT2}, {sT1}, 8192")
    a("s_mov_b64 exec, 0xff")
    a(f"buffer_store_dwordx4 v[8:11], {vL16}, {WS}, {sT1} offen sc1"); a(f"buffer_store_dwordx4 v[8:11], {vL16}, {WS}, {sT2} offen sc1")
    a("s_mov_b64 exec, -1")
    a(f"s_add_u32 s4, s28, {sT1}"); a("s_addc_u32 s5, s29, 0")
    a(f"s_mov_b32 {sT1}, 0")
    a("s_waitcnt vmcnt(0)")
    for i in range(nrace):
        a("s_not_b32 s10, s56"); a("s_not_b32 s11, s56")
        for h in ((0, 1), (1, 0))[i & 1]: a(f"s_load_dword s{10+h}, s[4:5], {8192*h} glc")
        a("s_waitcnt lgkmcnt(1)")
        a("s_sleep 1")
        a("s_mov_b64 s[14:15], s[10:11]")
        a("s_waitcnt lgkmcnt(0)")
        a("s_cmp_eq_u32 s15, s56"); a(f"s_addc_u32 {sT1}, {sT1}, 0"); a("s_cmp_eq_u32 s14, s56"); a(f"s_subb_u32 {sT1}, {sT1}, 0")
    a(f"s_sub_i32 {sT2}, 0, {sT1}"); a("s_bitcmp1_b32 s59, 2"); a(f"s_cselect_b32 {sT1}, {sT2}, {sT1}")
    a(f"s_cmp_gt_i32 {sT1}, 0"); a(f"s_cselect_b32 {sT2}, 2, 0"); a(f"s_cmp_lt_i32 {sT1}, 0"); a(f"s_cselect_b32 {sT2}, 1, {sT2}")
    if near is not None: a(f"s_mov_b32 {sT2}, {1 + near}")
    a(f"s_and_b32 {sT1}, s59, 4"); a(f"s_or_b32 {sT1}, {sT1}, {sT2}")
    a(f"s_lshl4_add_u32 {sT1}, s58, {sT1}")
    a(f"v_mov_b32 v12, s56"); a(f"v_mov_b32 v13, {sT1}"); a(f"v_mov_b32 v14, s56"); a(f"v_mov_b32 v15, {sT1}")
    a(f"s_lshl_b32 {sT1}, {sX}, 7"); a(f"s_add_u32 {sT1}, {sT1}, {WS_CH}")
    a("s_mov_b64 exec, 0xff")
    a(f"buffer_store_dwordx4 v[12:15], {vL16}, {WS}, {sT1} offen sc1")
    a("s_mov_b64 exec, -1")
    a("L_norace:")
    a(f"s_lshr_b32 {sT0}, {sR}, 2"); a(f"s_lshl_b32 {sT0}, {sT0}, 14"); a(f"s_add_u32 {sIn}, {sIn}, {sT0}")
    a(f"s_and_b32 {sT0}, {sR}, 3"); a(f"s_lshl_b32 {sT0}, {sT0}, 11"); a(f"s_add_u32 {sIn}, {sIn}, {sT0}")
    if stamps: a("v_mov_b32 v254, 0"); a("v_mov_b32 v253, 0")
    stamp("hello")
    srd(44, "s24", "s25", 7168)
    if wg is not None:
        srd(4, "s12", "s13", 0 if nowo & 1 else 0x380000); srd(24, "s22", "s23", 0 if nowo & 2 else 0x380000)
        a("s_mov_b64 s[90:91], s[4:5]")
        a(f"s_mul_i32 {sT0}, {sR}, 37"); a(f"s_lshr_b32 {sT0}, {sT0}, 8"); a(f"s_mul_i32 {sT1}, {sT0}, 7"); a(f"s_sub_u32 {sT1}, {sR}, {sT1}")
        a(f"s_lshl2_add_u32 {sT0}, {sX}, {sT0}"); a(f"s_mul_i32 s70, {sT0}, {128*896}"); a(f"s_lshl_b32 {sT1}, {sT1}, 7"); a(f"s_add_u32 s70, s70, {sT1}")
        a(f"v_lshrrev_b32 {t0}, 3, {vL}"); a(f"v_mul_u32_u24 {t0}, 896, {t0}"); a(f"v_and_b32 {t2}, 7, {vL}"); a(f"v_lshl_add_u32 {vWo}, {t2}, 4, {t0}")
        a(f"v_and_b32 {t0}, 16, {vL}"); a(f"v_lshlrev_b32 {t0}, 1, {t0}"); a(f"v_xor_b32 {vWo}, {t0}, {vWo}"); a(f"v_xor_b32 {vWo2}, 64, {vWo}")
        a(f"v_mov_b32 v18, {total - wg}")
    if tlb:
        a(f"s_lshl4_add_u32 s40, {sB}, {sH}"); a("s_lshl_b32 s40, s40, 21")
        a(f"s_andn2_b32 s41, {sR}, 7"); a(f"s_add_u32 s41, s41, {sX}"); a(f"s_xor_b32 s41, s41, {bx}"); a("s_lshl_b32 s41, s41, 21"); a("s_add_u32 s41, s41, 0x180000")
        a(f"s_mul_i32 s42, {sX}, {512*896}")
        for i, (pp, o) in enumerate(((12, 42), (22, 42), (16, 41), (18, 41), (8, 40))):
            a(f"s_add_u32 s{pp}, s{pp}, s{o}"); a(f"s_addc_u32 s{pp+1}, s{pp+1}, 0")
            a(f"s_load_dword s{48+i}, s[{pp}:{pp+1}], 0")
    a(f"v_and_b32 {vA4}, 3, {vL}"); a(f"v_lshlrev_b32 {vA4}, 2, {vA4}")
    a(f"v_mov_b32 {vPp}, 0"); a(f"v_mov_b32 {vTh}, {int(th0 + 0.5)}"); a(f"v_mov_b32 {vB}, 0")
    a(f"ds_write_b32 {vA4}, {vPp} offset:{L_PRG}"); a(f"ds_write_b32 {vA4}, {vTh} offset:{L_TH}")
    gc_ = gI // 2 if gc is None else gc
    a(f"s_mul_i32 {sG}, {sX}, 4352"); a(f"s_add_u32 {sG}, {sG}, {WS_GC}")
    a(f"v_lshlrev_b32 {vBo}, 2, {vL}")
    a(f"s_lshl2_add_u32 {sOff}, {sR}, {sG}")
    a(f"s_add_u32 {sGa}, {sG}, {8*4352}")
    a(f"s_mul_i32 {sTg}, {sX}, {gI // 8}"); a(f"s_add_u32 {sTg}, {sTg}, {gI // 8}")
    a(f"s_cmp_eq_u32 {sR}, {28 if gx else 99}"); a(f"s_cselect_b32 {sTg}, {sTg}, -1")
    sOut = sC
    a(f"s_and_b32 {sT0}, {sX}, 3"); a(f"s_mul_i32 {sOut}, {sT0}, 1792"); a(f"s_lshr_b32 {sT0}, {sX}, 2"); a(f"s_mul_i32 {sT0}, {sT0}, 896")
    a(f"s_add_u32 {sOut}, {sOut}, {sT0}"); a(f"s_lshl_b32 {sT0}, {sR}, 5"); a(f"s_add_u32 {sOut}, {sOut}, {sT0}")
    a(f"v_lshrrev_b32 {t1}, 1, {vg}"); a(f"v_and_b32 {t2}, 1, {vg}"); a(f"v_lshl_add_u32 {t1}, {t2}, 1, {t1}")
    a(f"v_and_b32 {t2}, 3, {vn}"); a(f"v_lshl_add_u32 {t1}, {t2}, 2, {t1}"); a(f"v_lshlrev_b32 {t3}, 1, {t1}")
    a("s_waitcnt lgkmcnt(0)")
    a("s_barrier")
    a(f"ds_read_b32 v10, {vB} offset:{L_LOC}"); a(f"ds_read_b32 v11, {vB} offset:{L_CH}")
    a("s_waitcnt lgkmcnt(0)")
    a(f"v_readfirstlane_b32 {sLocal}, v10"); a(f"v_readfirstlane_b32 {sCh}, v11")
    a(f"s_lshr_b32 {sT0}, {sCh}, {sX}"); a(f"s_and_b32 {sT0}, {sT0}, 1"); a(f"s_lshl_b32 {sT0}, {sT0}, 13"); a(f"s_add_u32 {sIn}, {sIn}, {sT0}")
    if stamps:
        a(f"v_writelane_b32 v255, {sCh}, 30"); a(f"s_getreg_b32 {sT0}, hwreg(HW_REG_HW_ID)"); a(f"v_writelane_b32 v255, {sT0}, 27")
    a(f"s_cmp_lg_u32 {sLocal}, 1"); a("s_cbranch_scc1 L_gend")
    poll("L_g0", lambda: a(f"ds_read_b32 {vPw}, {vA4} offset:{L_PRG}"), lambda: a(f"v_cmp_eq_u32 vcc, 0, {vPw}"), sleep=4)
    if xm:
        for i in range(1, 8):
            a(f"s_add_u32 {sT0}, {sX}, {i}"); a(f"s_and_b32 {sT0}, {sT0}, 7")
            a(f"s_mul_i32 s{31+i}, {sT0}, 4352"); a(f"s_add_u32 s{31+i}, s{31+i}, {WS_GC + 8*4352}")
            a(f"s_mul_i32 s{47+i}, {sT0}, {gI // 8}"); a(f"s_sub_u32 s{47+i}, s{47+i}, {gI - gI // 8}")
        a(f"s_sub_u32 {sPo}, {sTg}, {gI}")
        if beta: a("s_mov_b32 s40, 0x3fff"); a("s_mov_b32 s41, 0xffff"); a("s_mov_b32 s42, 0x8000")
    a(f"s_mov_b32 {sSpin}, {spin}")
    a("L_gloop:")
    a(f"ds_read_b32 {vPw}, {vA4} offset:{L_PRG}")
    a(f"s_sub_u32 {sSpin}, {sSpin}, 1"); a(f"s_cmp_eq_u32 {sSpin}, 0"); a("s_cbranch_scc1 L_gend")
    a("s_waitcnt lgkmcnt(0)")
    a(f"v_add_u32_dpp {vP}, {vPw}, {vPw} {QP1}"); a(f"v_add_u32_dpp {vP}, {vP}, {vP} {QP2}")
    a("s_mov_b64 exec, 1")
    a(f"buffer_store_dword {vP}, off, {WS}, {sOff}")
    a(f"v_cmp_le_u32 vcc, {total - 4 * gstop}, {vP}")
    a("s_cbranch_vccnz L_gend")
    a("s_mov_b32 exec_lo, -1"); a("s_mov_b32 exec_hi, 1")
    a(f"buffer_load_dword {vB}, {vBo}, {WS}, {sG} offen {gp}")
    a("s_mov_b64 exec, -1")
    if xm:
        a(f"s_cmp_eq_u32 {sTg}, -1"); a("s_cbranch_scc1 L_gnl")
        for i in range(1, 8): a(f"s_load_dwordx2 s[{4+2*i}:{5+2*i}], s[28:29], s{31+i} glc")
        a("L_gnl:")
    a(f"v_cvt_f32_u32 {t0}, {vP}")
    a(f"v_mul_f32 {t0}, {f2u(-gain)}, {t0}"); a(f"v_add_f32 {t0}, {f2u(th0 + 0.5 + gain * c0)}, {t0}")
    if gw:
        a(f"v_lshlrev_b32 {vPw}, 2, {vPw}"); a(f"v_sub_u32 {vPw}, {vP}, {vPw}"); a(f"v_cvt_f32_i32 {vPw}, {vPw}")
        a(f"v_mul_f32 {vPw}, {f2u(gw)}, {vPw}"); a(f"v_add_f32 {t0}, {t0}, {vPw}")
    a("s_waitcnt vmcnt(0)")
    a(f"v_add_u32_dpp {t1}, {vB}, {vB} row_ror:8 {FULL}")
    a(f"v_readlane_b32 {sT3}, {vB}, 32")
    for sft in (4, 2, 1): a(f"v_add_u32_dpp {t1}, {t1}, {t1} row_ror:{sft} {FULL}")
    a(f"v_readlane_b32 {sT0}, {t1}, 0"); a(f"v_readlane_b32 {sT1}, {t1}, 16")
    a(f"v_cvt_f32_i32 v11, {sT3}")
    a(f"s_add_u32 {sT2}, {sT0}, {sT1}")
    a(f"v_cvt_f32_u32 v10, {sT2}")
    if wg is not None:
        a(f"v_cvt_f32_u32 v17, {vP}"); a(f"v_mul_f32 v18, {f2u(-wk / 32)}, v10"); a(f"v_mul_f32 v19, {f2u(-wk / 256)}, v11")
        a(f"v_mul_f32 v17, {f2u(wk)}, v17"); a("v_add_f32 v18, v18, v19"); a("v_add_f32 v18, v18, v17")
        a(f"v_add_f32 v18, {f2u(total - wg - wk * c0)}, v18"); a("v_cvt_i32_f32 v18, v18"); a(f"v_min_i32 v18, {total + wcap}, v18")
    a(f"v_mul_f32 v10, {f2u(gain / 32)}, v10"); a(f"v_mul_f32 v11, {f2u(gain * gx / 256)}, v11")
    a(f"v_add_f32 {t0}, {t0}, v10"); a(f"v_add_f32 {t0}, {t0}, v11")
    if kup:
        a(f"v_add_f32 v10, {f2u(-(th0 + kat))}, {t0}"); a("v_max_f32 v10, 0, v10"); a(f"v_mul_f32 v10, {f2u(kup)}, v10"); a(f"v_add_f32 {t0}, {t0}, v10")
    a(f"v_cvt_i32_f32 {vTh}, {t0}")
    a(f"v_med3_i32 {vTh}, {vTh}, {thmin}, {thmax}")
    a(f"ds_write_b32 {vA4}, {vTh} offset:{L_TH}")
    if stamps: a(f"v_add_u32 v254, v254, {vTh}"); a("v_add_u32 v253, 1, v253")
    if xm:
        a(f"s_cmp_eq_u32 {sTg}, -1"); a("s_cbranch_scc1 L_gloop")
        a(f"s_sub_u32 {sT0}, {gc_}, {sT2}"); a(f"s_lshl3_add_u32 {sT0}, {sT0}, {sPo}")
        a("s_waitcnt lgkmcnt(0)")
        for i in range(1, 8):
            a(f"s_xor_b64 s[{4+2*i}:{5+2*i}], s[{4+2*i}:{5+2*i}], s[56:57]")
            if beta:
                a(f"s_andn2_b64 s[4:5], s[{4+2*i}:{5+2*i}], s[40:41]"); a(f"s_cselect_b32 s{5+2*i}, s42, s{5+2*i}")
            else: a(f"s_lshr_b64 s[4:5], s[{4+2*i}:{5+2*i}], 14")
            a(f"s_cselect_b32 s{4+2*i}, s{47+i}, s{4+2*i}"); a(f"s_add_u32 {sT0}, {sT0}, s{4+2*i}")
        if beta:
            a(f"s_add_i32 s43, {sT0}, 0x8000"); a("s_max_i32 s43, s43, 0"); a("s_min_i32 s43, s43, 0xffff")
            a("s_mov_b32 s4, s42"); a("s_mov_b32 s5, s42")
            for i in range(1, 8): a(f"s_max_u32 s4, s4, s{5+2*i}"); a(f"s_add_u32 s5, s5, s{5+2*i}")
            a("s_lshr_b32 s5, s5, 3"); a("s_sub_i32 s4, s4, s5"); a(f"s_sub_i32 s4, s4, {dead}"); a("s_max_i32 s4, s4, 0")
            a(f"s_mul_i32 s4, s4, {beta}"); a("s_lshr_b32 s4, s4, 4"); a(f"s_sub_i32 {sT0}, {sT0}, s4")
        a(f"v_mov_b32 v10, {sT0}")
        a("s_mov_b64 exec, 1")
        a(f"buffer_store_dword v10, off, {WS}, {sG} offset:128")
        a("s_mov_b64 exec, -1")
        a(f"s_cmp_lt_u32 {sT2}, {sTg}"); a("s_cbranch_scc1 L_gloop")
        a(f"s_xor_b32 {sT0}, {sT2}, s56")
        if beta: a("s_mov_b32 s42, s43"); a(f"s_xor_b32 {sT1}, s43, s57")
        for i in range(4): a(f"v_mov_b32 v{12+i}, {(sT1 if beta else 's57') if i & 1 else sT0}")
        a("s_mov_b64 exec, 0xff")
        a(f"buffer_store_dwordx4 v[12:15], {vL16}, {WS}, {sGa} offen sc1"); a("s_mov_b64 exec, -1")
        a(f"s_add_u32 {sTg}, {sTg}, {gI}"); a(f"s_mov_b32 {sPo}, {sT2}")
        a("s_branch L_gloop")
    else:
        a(f"s_cmp_lt_u32 {sT2}, {sTg}"); a("s_cbranch_scc1 L_gloop")
        a(f"s_xor_b32 {sT0}, {sT2}, s56")
        for i in range(4): a(f"v_mov_b32 v{12+i}, {'s57' if i & 1 else sT0}")
        a("s_mov_b64 exec, 0xff")
        a(f"buffer_store_dwordx4 v[12:15], {vL16}, {WS}, {sGa} offen sc1"); a("s_mov_b64 exec, -1")
        for i in range(1, 8):
            a(f"s_add_u32 {sT0}, {sX}, {i}"); a(f"s_and_b32 {sT0}, {sT0}, 7"); a(f"s_mul_i32 {sT0}, {sT0}, 4352"); a(f"s_add_u32 {sT0}, {sT0}, {WS_GC + 8*4352}")
            a(f"s_load_dwordx2 s[{4+2*i}:{5+2*i}], s[28:29], {sT0} glc")
        a(f"s_add_u32 {sTg}, {sTg}, {gI}")
        a(f"s_sub_u32 {sT0}, {gc_}, {sT2}"); a(f"s_mul_i32 {sT0}, {sT0}, 7")
        a("s_waitcnt lgkmcnt(0)")
        for i in range(1, 8):
            a(f"s_xor_b64 s[{4+2*i}:{5+2*i}], s[{4+2*i}:{5+2*i}], s[56:57]"); a(f"s_lshr_b64 s[4:5], s[{4+2*i}:{5+2*i}], 14")
            a(f"s_cselect_b32 s{4+2*i}, 0, s{4+2*i}"); a(f"s_add_u32 {sT0}, {sT0}, s{4+2*i}")
        a(f"v_mov_b32 v10, {sT0}")
        a("s_mov_b64 exec, 1")
        a(f"buffer_store_dword v10, off, {WS}, {sG} offset:128")
        a("s_mov_b64 exec, -1")
        a("s_branch L_gloop")
    a("L_gend:")
    a("s_mov_b64 exec, -1")
    if stamps:
        a(f"v_readfirstlane_b32 {sT0}, v254"); a(f"v_readfirstlane_b32 {sT1}, v253"); a("s_nop 3")
        a(f"v_writelane_b32 v255, {sT0}, 28"); a(f"v_writelane_b32 v255, {sT1}, 29")
    stamp("gov_end")
    if wg is not None:
        a(f"s_cmp_ge_u32 {sR}, 28"); a("s_cbranch_scc1 L_gnowo")
        def pchk():
            a(f"v_add_u32_dpp {vP}, {vPw}, {vPw} {QP1}"); a(f"v_add_u32_dpp {vP}, {vP}, {vP} {QP2}"); a(f"v_cmp_gt_i32 vcc, v18, {vP}")
        srd(4, "s90", "s91", 0 if nowo & 1 else 0x380000)
        poll("L_gw", lambda: a(f"ds_read_b32 {vPw}, {vA4} offset:{L_PRG}"), pchk)
        a(f"s_mov_b32 m0, {L_WOA}")
        for j in range(32):
            a(f"s_add_u32 {sT0}, s70, {8*896*(j & 15)}")
            a(f"buffer_load_dwordx4 {(vWo, vWo2)[j & 1]}, {('s[4:7]', 's[24:27]')[j >> 4]}, {sT0} offen {pol} lds")
            if j < 31: a("s_add_u32 m0, m0, 1024")
        a("L_gnowo:")
        stamp("wo_issued")
    a(f"s_cmp_ge_u32 {sR}, 28")
    for i in range(4 if g2 else 3):
        if wg is not None and i == (2 if g2 else 1): a("s_waitcnt vmcnt(0)")
        a("s_barrier")
    a("s_cbranch_scc1 L_g_fin")
    F = 64
    def gY():
        for k in range(2): a(f"buffer_load_dwordx4 {vr(F+4*k)}, {vL16}, {WS}, {sIn} offen offset:{1024*k} {yp}")
    def y_chk():
        for i in range(8): a(f"v_xor_b32 v{F+i}, {YT[i & 3]}, v{F+i}")
        a(f"v_or3_b32 {t0}, v{F}, v{F+1}, v{F+2}"); a(f"v_or3_b32 {t2}, v{F+3}, v{F+4}, v{F+5}")
        a(f"v_or3_b32 {t0}, {t0}, v{F+6}, v{F+7}"); a(f"v_or_b32 {t0}, {t0}, {t2}")
        a(f"v_and_b32 {t0}, 0xfff, {t0}"); a(f"v_cmp_ne_u32 vcc, 0, {t0}")
    if fat:
        def gYa():
            for i in range(8): a(f"v_mov_b32 v{F+i}, 0")
            for k in range(4): a(f"buffer_atomic_or_x2 {vr(F+2*k,2)}, {vL16}, {WS}, {sIn} offen offset:{1024*(k>>1) + 8*(k&1)} sc0 sc1")
        gY(); a("s_waitcnt vmcnt(0)")
        poll("L_f", gYa, y_chk, masked=True, first_issued=True)
    else:
        poll("L_f", gY, y_chk, masked=True)
    for e in range(4): a(f"v_add_f32 v{F+e}, v{F+e}, v{F+4+e}")
    a(f"v_permlane32_swap_b32 v{F}, v{F+1}"); a(f"v_permlane32_swap_b32 v{F+2}, v{F+3}")
    a(f"v_add_f32 v{F}, v{F}, v{F+1}"); a(f"v_add_f32 v{F+2}, v{F+2}, v{F+3}")
    a(f"v_permlane16_swap_b32 v{F}, v{F+2}")
    a(f"v_add_f32 v{F}, v{F}, v{F+2}")
    red("v_add_f32", f"v{F}", (4, 8))
    a(f"v_cvt_pk_bf16_f32 v{F}, v{F}, v{F}")
    a("s_mov_b32 exec_lo, 0x000f000f"); a("s_mov_b32 exec_hi, 0x000f000f")
    a(f"buffer_store_short v{F}, {t3}, {OUT}, {sOut} offen")
    a(f"s_cmp_eq_u32 {sWG}, 0"); a("s_cbranch_scc0 L_g_fin")
    a("v_mov_b32 v8, s56"); a("v_mov_b32 v9, s57"); a(f"s_mov_b32 {sT0}, {WS_EP}")
    a("s_mov_b64 exec, 1")
    a(f"buffer_store_dwordx2 v[8:9], off, {WS}, {sT0}{' sc1' if seedsc else ''}")
    a("L_g_fin:")
    finish()

    cur[0] = "h"
    a("L_helper:")
    a(f"s_cmp_eq_u32 {sW}, 5"); a("s_cbranch_scc1 L_gov")
    def code_pull(tagl, reg, st):
        a("s_getpc_b64 s[30:31]")
        a(f"{tagl}:")
        a(f"s_sub_u32 s30, s30, {tagl}-{NAME}_kernel"); a("s_subb_u32 s31, s31, 0")
        a(f"s_lshl_b32 {sT1}, {sR}, {st}")
        a(f"v_lshl_add_u32 {t0}, {vL}, {st + 5}, {sT1}")
        a(f"v_min_u32 {t0}, L_end-{NAME}_kernel, {t0}")
        a(f"s_mov_b64 exec, {0x1f if st == 7 else 0xfff}")
        a(f"global_load_dword {reg}, {t0}, s[30:31]")
        a("s_mov_b64 exec, -1")
    if pf == 1: code_pull("L_pc", "v2", 7)
    if pf == 2: code_pull("L_pc", "v2", 6)
    XOP = 64; WOP = 96; QD = 208
    vXo = "v5"; vL8 = "v7"; vQt = "v17"
    a(f"v_lshrrev_b32 {t3}, 3, {vL}"); a(f"v_and_b32 {t2}, 7, {vL}"); a(f"v_lshlrev_b32 {t2}, 4, {t2}")
    a(f"v_lshl_add_u32 {vKo}, {t3}, 13, {t2}")
    a(f"v_and_b32 {vXo}, 3, {vL}"); a(f"v_mul_u32_u24 {vXo}, 896, {vXo}"); a(f"v_lshl_add_u32 {vXo}, {vg}, 4, {vXo}")
    a(f"s_bfe_u32 s44, {sR}, 0x10003")
    a(f"s_add_u32 s45, {sR}, {cbd}"); a("s_and_b32 s45, s45, 7"); a(f"s_lshl3_add_u32 s45, {sX}, s45")
    a(f"s_mul_i32 s46, {sT0}, {8*bx}"); a("s_xor_b32 s47, s45, s46")
    a(f"s_mul_i32 s46, s44, {224*8192}"); a("s_lshl_b32 s47, s47, 7"); a(f"s_add_u32 {sOff}, s46, s47")
    a(f"s_mul_i32 {sT2}, s44, 448")
    srd(32, None, None, 0 if nowo & 4 else 0x380000); srd(36, None, None, 0 if nox else 3584)
    a(f"s_mov_b32 m0, {L_WQ}")
    a(f"s_cmp_eq_u32 {sT0}, 0")
    a("s_waitcnt lgkmcnt(0)")
    a("s_cselect_b32 s32, s10, s20"); a("s_cselect_b32 s33, s11, s21")
    a("s_cselect_b32 s36, s4, s14"); a("s_cselect_b32 s37, s5, s15")
    if qfake:
        krot = krp = 0
        a(f"v_lshrrev_b32 {t0}, {3 + qfake}, {vL}"); a(f"v_and_b32 {t1}, {(8 << qfake) - 1}, {vL}"); a(f"v_lshlrev_b32 {t1}, 4, {t1}"); a(f"v_lshl_add_u32 {vKo}, {t0}, 13, {t1}")
        a(f"s_and_b32 s40, {sR}, {(8 >> qfake) - 1}"); a(f"s_lshl_b32 s40, s40, {7 + qfake}"); a(f"s_lshl_b32 s41, {sX}, 10"); a("s_add_u32 s40, s40, s41")
        a(f"s_and_b32 s41, {sR}, 15"); a(f"s_lshr_b32 s41, s41, {3 - qfake}"); a(f"s_mul_i32 s41, s41, {(224 >> qfake) * 8192}"); a(f"s_add_u32 {sOff}, s40, s41")
    tag_load()
    idk = []
    if wt is not None:
        a(f"v_lshlrev_b32 {t0}, 13, {t3}"); a(f"v_lshl_add_u32 {t0}, {t2}, 3, {t0}")
        a(f"s_and_b32 s40, {sR}, 15"); a(f"s_mul_i32 s40, s40, {28*8192}"); a(f"s_lshl_b32 s41, {sX}, 10"); a("s_add_u32 s40, s40, s41")
        for i in range(4):
            if i == 3: a("s_mov_b32 exec_hi, 0")
            a(f"buffer_load_dword v{8+i}, {t0}, {WQ}, s40 offen {wt}")
            if i < 3: a("s_add_u32 s40, s40, 65536")
        a("s_mov_b32 exec_hi, -1")
        if wtw: a("s_waitcnt vmcnt(0)")
        stamp("touched")
    if krot or krp:
        a(f"s_mul_i32 s40, s44, {krot}"); a(f"s_mul_i32 s41, {sT0}, {krp}"); a("s_add_u32 s40, s40, s41")
        a("s_cmp_ge_u32 s40, 7"); a("s_cselect_b32 s41, 7, 0"); a("s_sub_u32 s40, s40, s41")
        a("s_lshl_b32 s41, s40, 18"); a(f"s_add_u32 {sOff}, {sOff}, s41"); a("s_lshl_b32 s41, s40, 6"); a(f"s_add_u32 {sT2}, {sT2}, s41")
    for k in range(7):
        a(f"buffer_load_dwordx4 {vr(XOP+4*k)}, {vXo}, {XS}, {sT2} offen offset:{0 if krot or krp else 64*k} {xp}")
        if wqt and k >= wqt: a.wait_vm(idk[k - wqt])
        for j in range(4):
            r = a(f"buffer_load_dwordx4 {vKo}, {WQ}, {sOff} offen {pol} lds")
            if k < 6 or j < 3:
                a("s_add_u32 m0, m0, 1024"); a(f"s_add_u32 {sOff}, {sOff}, {65536 >> qfake}")
        if (krot or krp) and k < 6:
            a(f"s_cmp_eq_u32 s40, {6 - k}"); a(f"s_cselect_b32 s41, {7 << 18}, 0"); a(f"s_cselect_b32 s42, {-6 << 6}, 64")
            a(f"s_sub_u32 {sOff}, {sOff}, s41"); a(f"s_add_i32 {sT2}, {sT2}, s42")
        idk.append(r)
    stamp("wq_issued")
    sQs = "s64"; sMc = "s48"; sPa = "s49"; sPb = "s50"; sBz = "s51"; sRd = "s69"; sFl = "s70"
    a(f"s_lshl1_add_u32 {sQs}, {sT0}, s44"); a(f"s_lshl_b32 {sQs}, {sQs}, 16"); a("s_lshl_b32 s46, s45, 10"); a(f"s_add_u32 {sQs}, {sQs}, s46")
    a(f"s_lshl3_add_u32 {sMc}, {sT0}, {sX}"); a(f"s_and_b32 {sT3}, {sR}, 15"); a(f"s_lshl4_add_u32 {sMc}, {sMc}, {sT3}")
    a(f"s_lshl_b32 {sMc}, {sMc}, 7"); a(f"s_add_u32 {sMc}, {sMc}, {WS_ML}")
    srd(60, "s28", "s29", WS_END)
    unit(1); unit_v()
    a(f"s_lshl_b32 {sRecA}, {sH}, 14"); a(f"s_add_u32 {sRecA}, {sRecA}, {WS_PO}")
    a(f"s_lshl_b32 {sRecB}, {sX}, 15"); a(f"s_add_u32 {sRecB}, {sRecB}, {WS_PO + 16*16384}")
    a(f"s_lshl_b32 {sPa}, {sT3}, 9"); a(f"s_add_u32 {sPa}, {sPa}, {sRecA}")
    a(f"s_lshl_b32 {sPb}, {sR}, 9"); a(f"s_add_u32 {sPb}, {sPb}, {sRecB}")
    a(f"v_and_b32 {t0}, 31, {vL}"); a(f"v_lshlrev_b32 {t0}, 4, {t0}"); a(f"v_lshrrev_b32 {t1}, 5, {vL}"); a(f"v_lshl_add_u32 v18, {t1}, 14, {t0}")
    a(f"s_lshl4_add_u32 {sRecA}, {sT3}, {sRecA}")
    a(f"s_lshr_b32 {sT0}, {sR}, 3"); a(f"s_and_b32 {sT1}, {sR}, 3"); a(f"s_lshl2_add_u32 {sT0}, {sT0}, {sT1}"); a(f"s_lshl4_add_u32 {sRecB}, {sT0}, {sRecB}")
    a(f"s_bfe_u32 {sT0}, {sR}, 0x10002"); a(f"s_lshl_b32 {sT0}, {sT0}, 13"); a(f"s_add_u32 {sRecB}, {sRecB}, {sT0}")
    a(f"v_lshrrev_b32 {t0}, 1, {vL}"); a(f"v_lshlrev_b32 {t0}, 8, {t0}"); a(f"v_and_b32 {t1}, 1, {vL}"); a(f"v_lshl_add_u32 {vPa}, {t1}, 3, {t0}")
    a(f"s_mul_i32 {sRd}, {sX}, 4352"); a(f"s_add_u32 {sRd}, {sRd}, {WS_GC}")
    a(f"s_cmp_eq_u32 {sR}, 0"); a(f"s_cselect_b32 {sBz}, {sRd}, {OOB}")
    a(f"s_lshl_b32 {sFl}, {sX}, 12"); a(f"s_add_u32 {sFl}, {sFl}, {WS_FL}")
    for i in range(4): a(f"v_mov_b32 v{AOP+i}, -1")
    for i in range(4): a(f"v_mov_b32 v{ACC+i}, 0")
    a(f"v_lshlrev_b32 {vL16}, 4, {vL}"); a(f"v_lshlrev_b32 {vL8}, 3, {vL}"); a(f"v_lshlrev_b32 {t3}, 7, {vL}")
    a(f"v_and_b32 {t0}, 3, {vn}"); a(f"v_lshlrev_b32 {t0}, 8, {t0}"); a(f"v_lshrrev_b32 {t1}, 2, {vn}")
    a(f"v_lshl_add_u32 {t0}, {t1}, 6, {t0}"); a(f"v_lshl_add_u32 {vQt}, {vg}, 4, {t0}")
    def hello_ld(): a(f"buffer_load_dwordx2 v[12:13], {t3}, {WS}, {sFl} offen {fp}")
    for k in range(8):
        if k < 7: a.wait_vm(idk[k])
        if k == hk:
            a("s_mov_b32 exec_hi, 0"); hello_ld(); a("s_mov_b32 exec_hi, -1")
        if k: a("s_waitcnt lgkmcnt(0)")
        if k < 7:
            for c in range(4):
                a(f"ds_read_b64_tr_b16 {vr(WOP+16*(k%3)+4*c,2)}, {vTr} offset:{L_WQ + k*4096 + 32*c}")
                a(f"ds_read_b64_tr_b16 {vr(WOP+16*(k%3)+4*c+2,2)}, {vTr} offset:{L_WQ + k*4096 + 32*c + 512}")
        if k:
            for c in range(4):
                a(f"v_mfma_f32_16x16x32_bf16 {vr(QD+4*c)}, {vr(WOP+16*((k-1)%3)+4*c)}, {vr(XOP+4*(k-1))}, {vr(QD+4*c) if k > 1 else 0}")
    tag_make()
    for c in range(1, 4):
        for e in range(4):
            a(f"v_mov_b32_dpp v{QD+e}, v{QD+4*c+e} quad_perm:[0,1,2,3] row_mask:0xf bank_mask:{1<<c}")
    a(f"ds_write_b128 {vQt}, {vr(QD)} offset:{L_PART}")
    a(f"ds_read_b128 {vr(QD)}, {vL16} offset:{L_PART}")
    stamp("q_done")
    a("s_waitcnt vmcnt(0) lgkmcnt(0)")
    a("s_mov_b32 exec_hi, 0")
    poll("L_fl", hello_ld, lambda: tag_chk([12]), sleep=16, masked=True, first_issued=True)
    a("v_cmp_ne_u32 vcc, s59, v13")
    a("s_cmp_eq_u32 vcc_lo, 0"); a(f"s_cselect_b32 {sLocal}, {2 if force_remote else 1}, 2")
    stamp("hello_seen")
    a("v_mov_b32 v8, s56"); a("v_mov_b32 v9, s59")
    a(f"s_lshl3_add_u32 {sT1}, {sR}, {sRd}")
    def first_stores(b):
        a(f"buffer_store_dwordx4 {vr(QD)}, {vL16}, {WS}, {sQs} offen{b}")
        a(f"buffer_store_dwordx4 {vr(AOP)}, v18, {WS}, {sPb} offen{b}")
        a("s_mov_b32 exec_hi, 0")
        a(f"buffer_store_dwordx4 {vr(AOP)}, v18, {WS}, {sPa} offen{b}")
        a("s_mov_b32 exec_lo, 0xffff")
        a(f"buffer_store_dwordx4 {vr(ACC)}, {vL16}, {WS}, {sBz} offen{b}")
        a("s_mov_b32 exec_lo, 0xff")
        a(f"buffer_store_dwordx4 {vr(AOP)}, {vL16}, {WS}, {sMc} offen{b}")
        a("s_mov_b32 exec_lo, 1")
        a("s_waitcnt vmcnt(0)")
        a(f"buffer_store_dwordx2 v[8:9], off, {WS}, {sT1} offset:256{b}")
    by_placement("first", first_stores)
    a("s_mov_b32 exec_lo, -1")
    stamp("ready")
    poll("L_rd", lambda: a(f"buffer_load_dwordx2 v[12:13], {vL8}, {WS}, {sRd} offen offset:256 {fp}"), lambda: tag_chk([12]), sleep=hsleep, masked=True)
    stamp("go_seen")
    a(f"v_lshlrev_b32 {t0}, 4, {vn}"); a(f"v_lshl_add_u32 {t0}, {vg}, 10, {t0}")
    a(f"s_lshr_b32 {sT0}, {sR}, 3"); a(f"s_lshl_b32 {sT0}, {sT0}, 8"); a(f"s_lshl_b32 {sT1}, {sX}, 13"); a(f"s_add_u32 {sT0}, {sT0}, {sT1}")
    a(f"s_add_u32 {sT0}, {sT0}, 0x20000")
    a(f"s_lshl4_add_u32 {sT2}, {sH}, {sB}"); a(f"s_lshl_b32 {sT2}, {sT2}, 8")
    for u in (2, 0, 1):
        for kh in range(2):
            a(f"s_add_u32 {sT1}, {sT2 if u == 2 else sT0}, {kh * 0x10000 + (4096 if u == 1 else 0)}")
            a(f"buffer_load_dwordx4 {vr(64+8*u+4*kh)}, {t0}, {WS}, {sT1} offen {qp}")
    a(f"s_mov_b32 {sT1}, {WS_CH}")
    a("s_mov_b64 exec, 0xff")
    poll("L_ch", lambda: a(f"buffer_load_dwordx2 v[12:13], {t3}, {WS}, {sT1} offen {fp}"), lambda: tag_chk([12]), masked=True, sleep=1)
    for bit, dst in ((1, sT0), (2, sT1), (4, sCh)):
        a(f"v_and_b32 v12, {bit}, v13"); a("v_cmp_ne_u32 vcc, 0, v12"); a(f"s_and_b32 {dst}, vcc_lo, 0xff")
    a(f"s_bcnt1_i32_b32 {sT0}, {sT0}"); a(f"s_bcnt1_i32_b32 {sT1}, {sT1}")
    a(f"s_cmp_gt_u32 {sT1}, {sT0}"); a(f"s_cselect_b32 {sT0}, 0xff, 0"); a(f"s_xor_b32 {sCh}, {sCh}, {sT0}")
    a(f"v_mov_b32 {t0}, {L_LOC}"); a(f"v_mov_b32 {t1}, {sLocal}"); a(f"v_mov_b32 {t2}, {sCh}"); a(f"ds_write2_b32 {t0}, {t1}, {t2} offset0:0 offset1:1")
    for u in range(3):
        for e in range(4): a(f"v_add_f32 v{64+8*u+e}, v{64+8*u+e}, v{64+8*u+4+e}")
        for e in range(2): a(f"v_cvt_pk_bf16_f32 v{64+8*u+e}, v{64+8*u+2*e}, v{64+8*u+2*e+1}")
        a(f"ds_write_b64 {vL8}, {vr(64+8*u,2)} offset:{L_Q+512*u}")
    a("s_waitcnt lgkmcnt(0)")
    stamp("q_in_lds")
    a("s_barrier")
    a(f"v_mov_b32 {t3}, 0")
    if vt:
        a(f"s_lshl4_add_u32 s40, {sB}, {sH}"); a("s_lshl_b32 s40, s40, 21")
        a(f"s_andn2_b32 s41, {sR}, 7"); a(f"s_add_u32 s41, s41, {sX}"); a("s_lshl_b32 s41, s41, 21"); a("s_add_u32 s41, s41, 0x180000")
        for pp, o in ((16, "s41"), (18, "s41"), (8, "s40"), (12, sU), (22, sU)):
            a(f"s_add_u32 s{pp}, s{pp}, {o}"); a(f"s_addc_u32 s{pp+1}, s{pp+1}, 0")
        if vt > 1:
            a(f"s_mul_i32 {sT0}, {sR}, {vt - 1}")
            def vchk():
                a("v_add3_u32 v8, v8, v9, v10"); a("v_add_u32 v8, v8, v11"); a(f"v_cmp_ge_u32 vcc, {sT0}, v8")
            poll("L_vt", lambda: a(f"ds_read_b128 v[8:11], {t3} offset:{L_PRG}"), vchk, sleep=2)
        a("s_mov_b64 exec, 1")
        for i, pp in enumerate((16, 18, 8)): a(f"global_load_dword v{12+i}, {t3}, s[{pp}:{pp+1}] {pol}")
        if vtw:
            a(f"s_cmp_ge_u32 {sR}, 28"); a("s_cbranch_scc1 L_vt_nw")
            for i, pp in enumerate((12, 22)): a(f"global_load_dword v{20+i}, {t3}, s[{pp}:{pp+1}] {pol}")
            a("L_vt_nw:")
        a("s_mov_b64 exec, -1")
    def wait_progress(name, target, stag=0):
        a(f"s_and_b32 {sCnt}, {sR}, {stag}"); a(f"s_add_u32 {sCnt}, {sCnt}, {target}")
        def chk():
            a("v_min3_u32 v8, v8, v9, v10"); a("v_min_u32 v8, v8, v11"); a(f"v_cmp_gt_u32 vcc, {sCnt}, v8")
        poll(name, lambda: a(f"ds_read_b128 v[8:11], {t3} offset:{L_PRG}"), chk, sleep=8)
    if mlh:
        a("; ---- the waves' (max, sum) pairs go out: lanes 0-3, 4-7 B's heads, 8-11 A ----")
        a(f"s_lshl2_add_u32 {sT0}, {sH}, {sB}"); a(f"s_and_b32 {sT1}, {sR}, 3"); a(f"s_lshl3_add_u32 {sT0}, {sT0}, {sT1}")
        a(f"s_lshl_b32 {sT1}, {sX}, 6"); a(f"s_add_u32 {sT1}, {sT1}, {sR}"); a(f"s_add_u32 {sT1}, {sT1}, 512")
        a(f"v_lshrrev_b32 {t0}, 2, {vL}"); a(f"v_lshl_add_u32 {t0}, {t0}, 5, {sT1}"); a(f"v_mov_b32 {t1}, {sT0}")
        a(f"v_cmp_lt_u32 vcc, 7, {vL}"); a(f"v_cndmask_b32 {t0}, {t0}, {t1}, vcc")
        a(f"v_and_b32 {t1}, 3, {vL}"); a(f"v_lshl_add_u32 {t0}, {t0}, 2, {t1}"); a(f"v_lshlrev_b32 {X[0]}, 3, {t0}")
        a(f"s_mov_b32 {sT2}, {WS_ML}")
        wait_progress("L_w0", PB_ - 3)
        a(f"ds_read_b64 v[12:13], {vL8} offset:{L_ML}")
        a("s_waitcnt lgkmcnt(0)")
        a("v_min_u32 v12, -2, v12"); a("v_min_u32 v13, -2, v13")
        a("s_mov_b64 exec, 0xfff")
        by_placement("ml", lambda b: a(f"buffer_store_dwordx2 v[12:13], {X[0]}, {WS}, {sT2} offen{b}"))
        a("s_mov_b64 exec, -1")
    a(f"s_lshl2_add_u32 {sT0}, {sH}, {sB}"); a(f"s_lshl_b32 {sT0}, {sT0}, 8"); a(f"s_add_u32 {sT0}, {sT0}, {WS_ML}")
    a(f"s_lshr_b32 {sT1}, {sR}, 3"); a(f"s_lshl3_add_u32 {sT1}, {sX}, {sT1}"); a(f"s_lshl_b32 {sT1}, {sT1}, 8"); a(f"s_add_u32 {sT1}, {sT1}, {WS_ML + 512*32}")
    a(f"v_lshlrev_b32 {U[0]}, 3, {vn}")
    a(f"v_and_b32 {t0}, 31, {vL}"); a(f"v_lshlrev_b32 {t0}, 3, {t0}"); a(f"v_lshrrev_b32 {t1}, 5, {vL}"); a(f"v_lshl_add_u32 {U[1]}, {t1}, 10, {t0}")
    wait_progress("L_w1", PB_ + max(1, h1 // 4), st1)
    stamp("B_in_lds")
    def ml_loads():
        a(f"buffer_load_dwordx2 {vr(MLG,2)}, {U[0]}, {WS}, {sT0} offen {mp}")
        a(f"buffer_load_dwordx2 {vr(MLG+2,2)}, {U[1]}, {WS}, {sT1} offen {mp}")
    poll("L_ml", ml_loads, lambda: sentinel(range(MLG, MLG + 4)), sleep=4)
    MA, MB = V
    a(f"v_max_f32_dpp {MA}, v{MLG}, v{MLG} row_ror:8 {FULL}"); a(f"v_max_f32_dpp {MB}, v{MLG+2}, v{MLG+2} row_ror:8 {FULL}")
    for sft in (4, 2, 1):
        a(f"v_max_f32_dpp {MA}, {MA}, {MA} row_ror:{sft} {FULL}"); a(f"v_max_f32_dpp {MB}, {MB}, {MB} row_ror:{sft} {FULL}")
    red("v_max_f32", MB, (16,))
    a(f"v_sub_f32 v{MLG}, v{MLG}, {MA}"); a(f"v_sub_f32 v{MLG+2}, v{MLG+2}, {MB}")
    a(f"v_exp_f32 v{MLG}, v{MLG}"); a(f"v_exp_f32 v{MLG+2}, v{MLG+2}")
    a(f"v_mul_f32 {MA}, v{MLG}, v{MLG+1}"); a(f"v_mul_f32 {MB}, v{MLG+2}, v{MLG+3}")
    for sft in (8, 4, 2, 1):
        a(f"v_add_f32_dpp {MA}, {MA}, {MA} row_ror:{sft} {FULL}"); a(f"v_add_f32_dpp {MB}, {MB}, {MB} row_ror:{sft} {FULL}")
    red("v_add_f32", MB, (16,))
    a(f"v_rcp_f32 {MA}, {MA}"); a(f"v_rcp_f32 {MB}, {MB}")
    a(f"v_mul_f32 {MA}, v{MLG}, {MA}"); a(f"v_mul_f32 {MB}, v{MLG+2}, {MB}")
    SF = 4
    a(f"s_and_b32 {sT0}, {sR}, 7"); a(f"s_lshl_b32 {sT0}, {sT0}, 2"); a(f"s_and_b32 {sT1}, {sT0}, 15")
    for u in range(3):
        for w in range(4):
            a(f"s_add_u32 {sT2}, {sT1 if u == 2 else sT0}, {w + (32 if u == 1 else 0)}")
            a(f"v_readlane_b32 s{SF+4*u+w}, {MA if u == 2 else MB}, {sT2}")
    a("; ---- B: sum the waves, publish, gather the group's shares, sum them; then A's share at the end ----")
    CB = 184
    def combine(u):
        for w in range(4): a(f"ds_read_b128 {vr(CB+4*w)}, {vL16} offset:{L_PART + 4096*u + 1024*w}")
        for w in range(4):
            a(f"s_waitcnt lgkmcnt({0 if stamps else 3 - w})")
            for e in range(4):
                if w: a(f"v_fmac_f32 v{CB+e}, s{SF+4*u+w}, v{CB+4*w+e}")
                else: a(f"v_mul_f32 v{CB+e}, s{SF+4*u}, v{CB+e}")
        for e in range(2): a(f"v_cvt_pk_bf16_f32 v{CB+e}, v{CB+2*e}, v{CB+2*e+1}")
        for e in range(2): a(f"v_min_u32 v{CB+16+2*u+e}, -2, v{CB+e}")
    def publish(u, so):
        by_placement(f"pub{u}", lambda b: a(f"buffer_store_dwordx2 {vr(CB+16+2*u,2)}, {vPa}, {WS}, {so} offen{b}"), have_scc=True)
    a(f"s_add_u32 {sT0}, {sRecB}, 16384")
    a(f"s_cmp_eq_u32 {sLocal}, 1")
    for u in range(2):
        combine(u)
        if not nob & 1: publish(u, (sRecB, sT0)[u])
    a(f"s_cmp_ge_u32 {sR}, 28"); a("s_cbranch_scc1 L_h_nos2")
    GB = 128; OB = 64
    a(f"s_add_u32 {sT0}, {sG}, 8192")
    if h2: wait_progress("L_w2", PB_ + h2 // 4, st2)
    def gB():
        for st in range(2):
            for k in range(4): a(f"buffer_load_dwordx4 {vr(GB+16*st+4*k)}, {vGo}, {WS}, {(sG, sT0)[st]} offen offset:{1024*k} {bp}")
    if not nob: poll("L_s2b", gB, lambda: sentinel(range(GB, GB + 32)), sleep=16, masked=True)
    for i in range(16):
        a(f"v_lshlrev_b32 v{160+i}, 16, v{GB+i}"); a(f"v_lshlrev_b32 {t0}, 16, v{GB+16+i}")
        a(f"v_and_b32 v{GB+i}, 0xffff0000, v{GB+i}"); a(f"v_and_b32 v{GB+16+i}, 0xffff0000, v{GB+16+i}")
        a(f"v_add_f32 v{160+i}, v{160+i}, {t0}"); a(f"v_add_f32 v{GB+i}, v{GB+i}, v{GB+16+i}")
    for qp in (QP1, QP2):
        for i in range(16):
            a(f"v_add_f32_dpp v{160+i}, v{160+i}, v{160+i} {qp}"); a(f"v_add_f32_dpp v{GB+i}, v{GB+i}, v{GB+i} {qp}")
    for i in range(16): a(f"v_cvt_pk_bf16_f32 v{GB+i}, v{160+i}, v{GB+i}")
    for k in range(4): a(f"ds_write_b128 {vL16}, {vr(GB+4*k)} offset:{L_PART + 1024*k}")
    a("L_h_nos2:")
    stamp("oB_ready")
    a(f"s_cmp_eq_u32 {sLocal}, 1")
    a("s_waitcnt lgkmcnt(0)")
    a("s_barrier")
    combine(2); publish(2, sRecA)
    stamp("published")
    for i in range(3 if g2 else 2): a("s_barrier")
    if stamps or probe: finish()
    a("L_end:")
    a("s_endpgm")
    a.pad()
    global STAMP_NAMES
    STAMP_NAMES = {k: v[:-1] for k, v in names.items()}
    head = HEADER + f"; @launch grid=(256,1,1) block=({64*NW},1,1) lds={L_KB + NL * 4096}\n" + DOC
    head += f'.amdgcn_target "amdgcn-amd-amdhsa--gfx950"\n.text\n.globl {NAME}_kernel\n.p2align 8\n.type {NAME}_kernel,@function\n{NAME}_kernel:\n'
    nv = 256 if stamps else max(RING + 4 * RP, 224)
    assert not (stamps and RP > 47)
    tail = f'''.section .rodata,"a"
.p2align 6
.amdhsa_kernel {NAME}_kernel
  .amdhsa_next_free_vgpr {nv}
  .amdhsa_next_free_sgpr 102
  .amdhsa_accum_offset {nv}
  .amdhsa_group_segment_fixed_size 0
  .amdhsa_kernarg_size 104
  .amdhsa_user_sgpr_count 2
  .amdhsa_user_sgpr_kernarg_segment_ptr 1
  .amdhsa_system_sgpr_workgroup_id_x 1
  .amdhsa_float_denorm_mode_32 3
.end_amdhsa_kernel
'''
    return head + a.text() + tail

if __name__ == "__main__":
    kw = eval("dict(" + (sys.argv[2] if len(sys.argv) > 2 else "") + ")")
    open(sys.argv[1], "w").write(gen(**kw))
```
